```python
import torch

def _softmax(x, axis=-1):
    return torch.softmax(x, dim=axis)
def _gelu(x):
    return torch.nn.functional.gelu(x, approximate="tanh")
def _silu(x):
    return torch.nn.functional.silu(x)
def _sigmoid(x):
    return torch.sigmoid(x)
def _layernorm(x, axis=-1, eps=1e-5):
    m = x.mean(dim=axis, keepdim=True)
    v = x.var(dim=axis, keepdim=True, unbiased=False)
    return (x - m) / torch.sqrt(v + eps)
def _scatter_add(tgt, idx, src, axis=0):
    return tgt.clone().index_add_(axis, idx, src)
def _segment_sum(src, seg, n):
    out = torch.zeros((n,) + src.shape[1:], dtype=src.dtype)
    return out.index_add_(0, seg, src)
def _pad(x, pw):
    flat = tuple(v for pair in reversed(pw) for v in pair)
    return torch.nn.functional.pad(x, flat)

kernel_name = 'concat_heads__mha_block__ssm_conv_s4d__prompt'

def setup_inputs():

    _w = (lambda a: (lambda t: t.to(torch.bfloat16) if t.is_floating_point() else t)(torch.as_tensor(a)))
    def _A_setup():
        B, S, D, H = 1, 2048, 576, 32
        return {
            "x": _w((lambda *s: torch.randn(*s, dtype=torch.bfloat16) * 0.2)(B, S, D)),
            "wqkv": _w((lambda *s: torch.randn(*s, dtype=torch.bfloat16) * 0.2)(D, 3 * D)),
            "wo": _w((lambda *s: torch.randn(*s, dtype=torch.bfloat16) * 0.05)(D, D)),
        }
    _A_in = _A_setup()

    def _B_setup():
        Bsz, L, D, N = 1, 2048, 576, 128
        return {
            "u": _w((lambda *s: torch.randn(*s, dtype=torch.bfloat16) * 0.05)(Bsz, L, D)),
            "log_A_real": _w((lambda *s: torch.randn(*s, dtype=torch.bfloat16) * 6.4)(D, N) * 0.5),
            "A_imag": _w((lambda *s: torch.randn(*s, dtype=torch.bfloat16) * 0.1)(D, N) * 3.14),
            "C_real": _w((lambda *s: torch.randn(*s, dtype=torch.bfloat16) * 0.8)(D, N) / N ** 0.5),
            "C_imag": _w((lambda *s: torch.randn(*s, dtype=torch.bfloat16) * 0.8)(D, N) / N ** 0.5),
            "log_dt": _w((lambda *s: torch.randn(*s, dtype=torch.bfloat16) * 0.1)(D) * 0.5 - 4.0),
            "D_skip": _w((lambda *s: torch.randn(*s, dtype=torch.bfloat16) * 0.1)(D)),
        }
    _B_in = _B_setup()

    return {
        "A_x": _A_in["x"],
        "A_wqkv": _A_in["wqkv"],
        "A_wo": _A_in["wo"],
        "B_u": _B_in["u"],
        "B_log_A_real": _B_in["log_A_real"],
        "B_A_imag": _B_in["A_imag"],
        "B_C_real": _B_in["C_real"],
        "B_C_imag": _B_in["C_imag"],
        "B_log_dt": _B_in["log_dt"],
        "B_D_skip": _B_in["D_skip"],
    }

def reference(A_x, A_wqkv, A_wo, B_u, B_log_A_real, B_A_imag, B_C_real, B_C_imag, B_log_dt, B_D_skip):
    def _A_ref(x, wqkv, wo):
        B, S, D = x.shape
        H = 32
        Dh = D // H
        qkv = (lambda x, *d: x.permute(*d))((x @ wqkv).reshape(B, S, 3, H, Dh), 2, 0, 3, 1, 4)
        q, k, v = qkv[0], qkv[1], qkv[2]
        scores = torch.einsum("bhqd,bhkd->bhqk", q, k) * (Dh ** -0.5)
        p = _softmax(scores, axis=-1)
        o = torch.einsum("bhqk,bhkd->bhqd", p, v)
        return (lambda x, *d: x.permute(*d))(o, 0, 2, 1, 3).reshape(B, S, D) @ wo

    def _B_ref(u, log_A_real, A_imag, C_real, C_imag, log_dt, D_skip):
        L = u.shape[1]
        dt = torch.exp(log_dt)
        A = -torch.exp(log_A_real) + 1j * A_imag
        C = (C_real + 1j * C_imag) * dt[:, None]
        pos = (lambda x, dt: x.to(dt))(torch.arange(L), log_dt.dtype)
        P = torch.exp((A * dt[:, None])[:, :, None] * pos[None, None, :])
        K = 2.0 * torch.einsum("dn,dnl->dl", C, P).real
        L2 = 2 * L
        u_t = (lambda x, *d: x.permute(*d))(u, 0, 2, 1)
        Kf = (lambda x, *a, **k: torch.fft.rfft(x.float(), *a, **k))(K, L2)
        Uf = (lambda x, *a, **k: torch.fft.rfft(x.float(), *a, **k))(u_t, L2)
        y = (lambda x, *a, **k: torch.fft.irfft(x, *a, **k).to(torch.bfloat16))(Uf * Kf[None, :, :], L2)[:, :, :L]
        y = (lambda x, *d: x.permute(*d))(y, 0, 2, 1)
        return y + u * D_skip[None, None, :]

    a = _A_ref(A_x, A_wqkv, A_wo)
    b = _B_ref(B_u, B_log_A_real, B_A_imag, B_C_real, B_C_imag, B_log_dt, B_D_skip)
    return torch.concatenate([a, b], axis=-1)
```

```python
import sys, struct, math

def f2u(x): return struct.unpack("<I", struct.pack("<f", x))[0]

WS_QK = 0
QK_T = 73728
WS_V = WS_QK + 64 * QK_T
V_H = 73728
WS_O = WS_V + 32 * V_H
O_T = 36864
WS_WO = WS_O + 64 * O_T
WS_U = WS_WO + 18 * O_T
WS_KR = WS_U + 576 * 4096
KRC = 4224
KRCH = 2 * KRC
WS_Y = WS_KR + 576 * KRCH
WS_END = WS_Y + 256 * 9216 + 8192

class A:
    def __init__(s): s.l = []
    def __call__(s, t):
        for line in t.strip("\n").split("\n"):
            s.l.append(line if line.strip().endswith(":") and not line.startswith(" ") else "    " + line.strip())
    def text(s): return "\n".join(s.l) + "\n"

def vr(b, n): return f"v[{b}:{b+n-1}]"

def srd(a, d, lo, size):
    a(f"""s_mov_b32 s{d}, s{lo}
    s_mov_b32 s{d+1}, s{lo+1}
    s_mov_b32 s{d+2}, {size}
    s_mov_b32 s{d+3}, 0x20000""")

def kdesc(name, nv, ns=96):
    return f""".section .rodata,"a"
.p2align 6
.amdhsa_kernel {name}
  .amdhsa_next_free_vgpr {nv}
  .amdhsa_next_free_sgpr {ns}
  .amdhsa_accum_offset {(nv+3)//4*4}
  .amdhsa_group_segment_fixed_size 0
  .amdhsa_kernarg_size 104
  .amdhsa_user_sgpr_count 2
  .amdhsa_user_sgpr_kernarg_segment_ptr 1
  .amdhsa_system_sgpr_workgroup_id_x 1
.end_amdhsa_kernel
"""

def khead(a, name):
    a(f""".text
.globl {name}
.p2align 8
.type {name},@function""")
    a.l.append(f"{name}:")

def transpose8(a, I, O, sLO, sHI):
    for c in range(8):
        for t in range(4):
            a(f"v_perm_b32 v{O+4*c+t}, v{I+4*(2*t+1)+(c>>1)}, v{I+4*(2*t)+(c>>1)}, s{sHI if c&1 else sLO}")

def k1(a):
    khead(a, "k1_kernel")
    a(f"""
    s_cmp_ge_u32 s2, 256
    s_cbranch_scc1 k1_done
    s_load_dwordx16 s[4:19], s[0:1], 0
    s_load_dwordx4 s[20:23], s[0:1], 64
    s_load_dwordx2 s[24:25], s[0:1], 96
    v_lshrrev_b32 v1, 6, v0
    v_and_b32 v0, 63, v0
    v_readfirstlane_b32 s3, v1
    s_and_b32 s26, s2, 7
    s_lshr_b32 s27, s2, 3
    s_cmp_ge_u32 s3, 4
    s_cbranch_scc1 k1_helper
    s_cmp_ge_u32 s27, 28
    s_cbranch_scc1 k1_helper
    """)
    a(f"""
    s_and_b32 s40, s26, 3
    s_lshl_b32 s40, s40, 2
    s_and_b32 s44, s27, 3
    s_add_u32 s40, s40, s44
    s_lshr_b32 s41, s26, 2
    s_mul_i32 s41, s41, 7
    s_lshr_b32 s44, s27, 2
    s_add_u32 s41, s41, s44
    s_and_b32 s42, s3, 1
    s_lshr_b32 s43, s3, 1
    v_lshrrev_b32 v4, 3, v0              ; r3
    v_lshrrev_b32 v5, 2, v4
    v_lshlrev_b32 v5, 3, v5              ; 8*(r3>>2)
    v_and_b32 v6, 3, v4
    v_add_u32 v5, v5, v6                 ; tokoff
    s_lshl_b32 s44, s40, 7
    s_lshl_b32 s45, s3, 5
    s_add_u32 s44, s44, s45
    v_add_u32 v5, s44, v5
    v_mul_u32_u24 v5, 1152, v5
    v_lshrrev_b32 v6, 1, v4              ; (r3>>1)&3
    v_and_b32 v7, 7, v0
    v_xor_b32 v6, v6, v7
    v_lshl_add_u32 v2, v6, 4, v5
    v_xor_b32 v6, 4, v6
    v_lshl_add_u32 v3, v6, 4, v5
    v_add_u32 v3, 4608, v3
    v_lshrrev_b32 v5, 4, v0
    v_mul_u32_u24 v4, 3456, v5
    v_lshlrev_b32 v5, 2, v5
    v_and_b32 v6, 15, v0
    v_xor_b32 v5, v5, v6
    v_lshl_add_u32 v4, v5, 4, v4
    s_lshl_b32 s44, s41, 8
    s_mul_i32 s45, s3, {16*3456}
    s_add_u32 s44, s44, s45
    v_add_u32 v4, s44, v4
    s_lshl_b32 s46, s3, 12
    s_waitcnt lgkmcnt(0)
    """)
    srd(a, 28, 4, 2359296)
    srd(a, 32, 6, 1990656)
    srd(a, 36, 24, WS_END)
    def dma(stage):
        out = []
        slot = stage & 3
        for pp in range(4):
            out.append([f"s_add_u32 m0, s46, {slot*32768 + pp*1024}",
                        f"s_mov_b32 s47, {stage*128 + (pp>>1)*18432}",
                        f"buffer_load_dwordx4 v{2+(pp&1)}, s[28:31], s47 offen lds"])
            out.append([f"s_add_u32 m0, s46, {slot*32768 + 16384 + pp*1024}",
                        f"s_mov_b32 s47, {stage*221184 + pp*13824}",
                        f"buffer_load_dwordx4 v4, s[32:35], s47 offen lds"])
        return out
    for st in range(4):
        for g in dma(st):
            a("\n".join(g))
    a(f"""
    v_and_b32 v5, 31, v0                 ; i
    v_lshrrev_b32 v6, 5, v0              ; hf
    s_lshl_b32 s44, s42, 6
    v_add_u32 v7, s44, v5
    v_lshlrev_b32 v7, 7, v7              ; row*128
    v_bfe_u32 v5, v5, 1, 3               ; s_i
    v_xor_b32 v5, v5, v6
    """)
    for j in range(4):
        a(f"""v_xor_b32 v20, {2*j}, v5
        v_lshl_add_u32 v{8+j}, v20, 4, v7
        v_add_u32 v{12+j}, 0x10000, v{8+j}""")
    a(f"""
    v_bfe_u32 v5, v0, 2, 2               ; r
    v_lshl_add_u32 v7, v6, 3, v5         ; 8hf + r
    v_lshlrev_b32 v7, 8, v7
    v_bfe_u32 v20, v0, 4, 1              ; nh
    v_lshl_add_u32 v7, v20, 5, v7
    v_and_b32 v20, 3, v0
    v_lshl_add_u32 v7, v20, 3, v7
    v_add_u32 v7, 16384, v7
    s_lshl_b32 s44, s43, 1
    v_xor_b32 v5, s44, v5
    v_lshl_add_u32 v16, v5, 6, v7
    v_xor_b32 v5, 1, v5
    v_lshl_add_u32 v17, v5, 6, v7
    v_add_u32 v18, 0x10000, v16
    v_add_u32 v19, 0x10000, v17
    """)
    for i in range(64):
        a(f"v_mov_b32 v{64+i}, 0")
    a("""s_cmp_ge_u32 s41, 9
    s_cbranch_scc1 k1_gemm_v""")
    FB = [24, 40]
    def reads(stage, j, fb):
        slot = stage & 3
        hi = slot >> 1
        base = (slot & 1) * 32768
        out = []
        out.append(f"ds_read_b128 {vr(fb,4)}, v{8+4*hi+j} offset:{base}")
        out.append(f"ds_read_b64_tr_b16 {vr(fb+8,2)}, v{16+2*hi} offset:{base+j*4096}")
        out.append(f"ds_read_b64_tr_b16 {vr(fb+10,2)}, v{16+2*hi} offset:{base+j*4096+1024}")
        out.append(f"ds_read_b64_tr_b16 {vr(fb+12,2)}, v{17+2*hi} offset:{base+j*4096}")
        out.append(f"ds_read_b64_tr_b16 {vr(fb+14,2)}, v{17+2*hi} offset:{base+j*4096+1024}")
        out.append(f"ds_read_b128 {vr(fb+4,4)}, v{8+4*hi+j} offset:{base+4096}")
        return out
    def mfmas(fb, vor):
        out = []
        for (ta, tb) in ((0,0),(0,1),(1,0),(1,1)):
            acc = 64 + 16*(2*ta+tb)
            X = vr(fb+4*ta, 4); W = vr(fb+8+4*tb, 4)
            if vor: out.append(f"v_mfma_f32_32x32x16_bf16 {vr(acc,16)}, {X}, {W}, {vr(acc,16)}")
            else:   out.append(f"v_mfma_f32_32x32x16_bf16 {vr(acc,16)}, {W}, {X}, {vr(acc,16)}")
        return out
    def mainloop(vor):
        a("s_waitcnt vmcnt(24)\ns_barrier")
        a("\n".join(reads(0, 0, FB[0])))
        for st in range(9):
            for j in range(4):
                cur = FB[j & 1]; nxt = FB[(j+1) & 1]
                extra = []
                if j < 3:
                    rd = reads(st, j+1, nxt)
                    a("s_waitcnt lgkmcnt(0)")
                elif st < 8:
                    n = (min(8, st+3) - (st+1)) * 8
                    a(f"s_waitcnt vmcnt({n}) lgkmcnt(0)\ns_barrier")
                    rd = reads(st+1, 0, nxt)
                    if st + 4 <= 8: extra = dma(st+4)
                else:
                    rd = []
                    a("s_waitcnt lgkmcnt(0)")
                m = mfmas(cur, vor)
                a(m[0]); a("\n".join(rd[:3])) if rd else None
                a(m[1]); a("\n".join(rd[3:])) if rd else None
                a(m[2])
                for g in extra[:4]: a("\n".join(g))
                a(m[3])
                for g in extra[4:]: a("\n".join(g))
    mainloop(False)
    a(f"""
    s_lshl_b32 s44, s40, 1
    s_add_u32 s44, s44, s42
    s_mul_i32 s44, s44, {2*QK_T}
    s_lshl_b32 s45, s41, 1
    s_add_u32 s45, s45, s43
    s_lshl_b32 s45, s45, 12
    s_add_u32 s44, s44, s45
    s_add_u32 s45, s44, {QK_T}
    v_lshlrev_b32 v2, 3, v0
    s_nop 7
    """)
    for ta in range(2):
        for tb in range(2):
            acc = 64 + 16*(2*ta+tb)
            o = 24 + 8*((2*ta+tb)&3)
            for r in range(8):
                a(f"v_cvt_pk_bf16_f32 v{o+r}, v{acc+2*r}, v{acc+2*r+1}")
            for rq in range(4):
                a(f"buffer_store_dwordx2 {vr(o+2*rq,2)}, v2, s[36:39], s{44+ta} offen offset:{tb*2048+rq*512}")
    a("s_endpgm")
    a.l.append("k1_gemm_v:")
    mainloop(True)
    a(f"""
    s_lshl_b32 s44, s41, 1
    s_add_u32 s44, s44, s43
    s_sub_u32 s44, s44, 18
    s_cmp_ge_u32 s44, 9
    s_cbranch_scc1 k1_done
    s_lshl_b32 s44, s44, 6
    v_and_b32 v5, 31, v0
    v_add_u32 v5, s44, v5                ; f (tb=0)
    v_lshrrev_b32 v6, 5, v0
    v_mul_u32_u24 v6, 288, v6            ; hf*288
    s_mov_b32 s47, {V_H - 18*16}
    """)
    for tb in range(2):
        a(f"""
        v_mul_u32_u24 v7, 3641, v5           ; f/18 = (f*3641)>>16 for f<576
        v_lshrrev_b32 v7, 16, v7
        v_mul_lo_u32 v7, v7, s47             ; h*(V_H-288)
        v_lshl_add_u32 v7, v5, 4, v7         ; + f*16  => h*V_H + d*16
        v_add_u32 v{2+tb}, v7, v6
        v_add_u32 v5, 32, v5
        """)
    a(f"""
    s_lshl_b32 s44, s40, 1
    s_add_u32 s44, s44, s42
    s_mul_i32 s44, s44, 2304
    s_add_u32 s44, s44, {WS_V}
    """)
    for ta in range(2):
        for tb in range(2):
            acc = 64 + 16*(2*ta+tb)
            o = 24 + 8*((2*ta+tb)&3)
            for r in range(8):
                a(f"v_cvt_pk_bf16_f32 v{o+r}, v{acc+2*r}, v{acc+2*r+1}")
            for hh in range(2):
                a(f"buffer_store_dwordx4 {vr(o+4*hh,4)}, v{2+tb}, s[36:39], s44 offen offset:{ta*1152+hh*576}")
    a("s_endpgm")

    a.l.append("k1_helper:")
    a(f"""
    s_and_b32 s41, s3, 1
    s_bfe_u32 s45, s3, 0x10001           ; (wave>>1)&1
    s_lshl_b32 s40, s2, 1
    s_add_u32 s40, s40, s45
    s_sub_u32 s46, s2, 224
    s_lshl_b32 s46, s46, 1
    s_add_u32 s46, s46, s45
    s_add_u32 s46, s46, 512
    s_and_b32 s42, s3, 3
    s_lshl_b32 s42, s42, 13
    s_add_u32 s47, s42, 131072
    s_cmp_lt_u32 s3, 4
    s_cselect_b32 s40, s46, s40
    s_cselect_b32 s42, s42, s47
    v_and_b32 v2, 31, v0
    s_lshl_b32 s45, s40, 7
    s_lshl_b32 s46, s41, 6
    s_add_u32 s45, s45, s46
    v_add_u32 v2, s45, v2
    v_lshlrev_b32 v2, 1, v2
    s_lshl_b32 s45, s40, 1
    v_mov_b32 v3, s45
    s_waitcnt lgkmcnt(0)
    global_load_ushort v4, v3, s[20:21]
    global_load_ushort v6, v2, s[12:13]
    global_load_ushort v7, v2, s[14:15]
    global_load_ushort v8, v2, s[16:17]
    global_load_ushort v9, v2, s[18:19]
    global_load_ushort v10, v2, s[12:13] offset:64
    global_load_ushort v11, v2, s[14:15] offset:64
    global_load_ushort v12, v2, s[16:17] offset:64
    global_load_ushort v13, v2, s[18:19] offset:64
    global_load_ushort v5, v3, s[22:23]
    """)
    srd(a, 36, 24, WS_END)
    a(f"""
    s_mov_b32 s43, 0
    v_mov_b32 v127, 0
    s_cmp_eq_u32 s3, 5
    s_cbranch_scc1 k1_h_u0
    s_cmp_eq_u32 s3, 7
    s_cbranch_scc0 k1_h_notask
    s_cmp_lt_u32 s2, 32
    s_cbranch_scc1 k1_h_u1
    s_cmp_lt_u32 s2, 113
    s_cbranch_scc0 k1_h_notask
    s_sub_u32 s44, s2, 32
    s_mul_i32 s45, s44, 57
    s_lshr_b32 s45, s45, 9
    s_mul_i32 s46, s45, 9
    s_sub_u32 s46, s44, s46              ; ob
    v_lshrrev_b32 v120, 3, v0
    s_lshl_b32 s47, s45, 3
    v_add_u32 v121, s47, v120            ; rg
    v_lshrrev_b32 v122, 1, v121          ; ks
    v_and_b32 v123, 1, v121              ; hf
    v_mul_u32_u24 v124, 18, v122
    v_lshl_add_u32 v124, v123, 2, v124
    v_mul_u32_u24 v125, 72, v120
    v_add_u32 v125, 16, v125
    s_cmp_eq_u32 s45, 8
    s_cselect_b64 vcc, -1, 0
    s_cselect_b32 s50, 18, 2
    s_cselect_b32 s52, 36, 8
    s_cselect_b32 s54, 54, 10
    s_mul_i32 s50, s50, 1152
    s_mul_i32 s52, s52, 1152
    s_mul_i32 s54, s54, 1152
    v_cndmask_b32 v124, v124, v125, vcc
    v_mul_u32_u24 v124, 1152, v124
    v_and_b32 v125, 7, v0
    s_lshl_b32 s47, s46, 3
    v_add_u32 v125, s47, v125            ; oct
    v_lshl_add_u32 v126, v125, 4, v124
    v_lshrrev_b32 v124, 2, v125
    v_mul_u32_u24 v124, {O_T}, v124
    v_lshl_add_u32 v124, v122, 10, v124
    v_lshl_add_u32 v124, v123, 9, v124
    v_and_b32 v125, 3, v125
    v_lshl_add_u32 v127, v125, 7, v124
    s_mov_b32 s60, {WS_WO}
    s_mov_b32 s61, 16
    s_mov_b32 s28, s8
    s_mov_b32 s29, s9
    s_mov_b32 s30, 663552
    s_branch k1_h_ld
k1_h_u1:
    s_add_u32 s44, s2, 256
    s_branch k1_h_u
k1_h_u0:
    s_mov_b32 s44, s2
k1_h_u:
    s_mul_i32 s45, s44, 7282
    s_lshr_b32 s45, s45, 16
    s_mul_i32 s46, s45, 9
    s_sub_u32 s46, s44, s46              ; ob
    v_lshrrev_b32 v120, 3, v0
    s_lshl_b32 s47, s45, 3
    v_add_u32 v121, s47, v120            ; g
    v_mul_u32_u24 v124, 9216, v121
    v_and_b32 v125, 7, v0
    s_lshl_b32 s47, s46, 3
    v_add_u32 v125, s47, v125            ; oct
    v_lshl_add_u32 v126, v125, 4, v124
    v_lshlrev_b32 v124, 15, v125         ; oct*8*4096
    v_bfe_u32 v122, v121, 1, 1
    v_lshl_add_u32 v124, v122, 11, v124  ; es*2048
    v_lshrrev_b32 v122, 2, v121
    v_lshl_add_u32 v124, v122, 5, v124   ; blk*32
    v_and_b32 v122, 1, v121
    v_lshl_add_u32 v127, v122, 4, v124
    s_mov_b32 s50, {2*1152}
    s_mov_b32 s52, {4*1152}
    s_mov_b32 s54, {6*1152}
    s_mov_b32 s60, {WS_U}
    s_mov_b32 s61, 4096
    s_mov_b32 s28, s10
    s_mov_b32 s29, s11
    s_mov_b32 s30, 2359296
k1_h_ld:
    s_mov_b32 s31, 0x20000
    s_mov_b32 s43, 1
    buffer_load_dwordx4 v[128:131], v126, s[28:31], 0 offen
    buffer_load_dwordx4 v[132:135], v126, s[28:31], 0 offen offset:1152
    buffer_load_dwordx4 v[136:139], v126, s[28:31], s50 offen
    buffer_load_dwordx4 v[140:143], v126, s[28:31], s50 offen offset:1152
    buffer_load_dwordx4 v[144:147], v126, s[28:31], s52 offen
    buffer_load_dwordx4 v[148:151], v126, s[28:31], s52 offen offset:1152
    buffer_load_dwordx4 v[152:155], v126, s[28:31], s54 offen
    buffer_load_dwordx4 v[156:159], v126, s[28:31], s54 offen offset:1152
k1_h_notask:
    """)
    z0 = list(range(9)) + [14,15,16,20,21,24,25]
    z1 = [9,9,10,11,11,11,12,13,13,17,18,19,22,23,26,27]
    def pack(z, lo):
        v = 0
        for r in range(lo, lo+8): v |= (z[r]-r) << (4*(r-lo))
        return v
    a(f"""
    v_and_b32 v14, 31, v0                ; rho / b
    v_lshrrev_b32 v15, 5, v0             ; h
    v_and_b32 v16, 3, v14
    v_lshrrev_b32 v17, 3, v14
    v_lshl_add_u32 v16, v17, 2, v16      ; r
    v_mov_b32 v17, {pack(z0,0):#x}
    v_mov_b32 v18, {pack(z0,8):#x}
    v_mov_b32 v19, {pack(z1,0):#x}
    v_mov_b32 v20, {pack(z1,8):#x}
    v_cmp_lt_u32 vcc, 7, v16
    v_and_b32 v21, 4, v14
    v_and_b32 v22, 7, v16
    v_cndmask_b32 v17, v17, v18, vcc
    v_cndmask_b32 v19, v19, v20, vcc
    v_cmp_ne_u32 vcc, 0, v21
    v_lshlrev_b32 v22, 2, v22
    s_nop 0
    v_cndmask_b32 v17, v17, v19, vcc
    v_bfe_u32 v17, v17, v22, 4
    v_add3_u32 v17, v17, v16, 32
    v_lshrrev_b32 v18, 1, v17
    v_lshlrev_b32 v18, 4, v18
    v_lshl_add_u32 v17, v17, 7, v18
    v_lshl_add_u32 v17, v15, 4, v17
    v_add_u32 v17, s42, v17
    v_lshrrev_b32 v18, 1, v14
    v_lshlrev_b32 v18, 4, v18
    v_lshl_add_u32 v18, v14, 7, v18
    v_lshl_add_u32 v18, v15, 4, v18
    v_add_u32 v18, s42, v18
    v_mul_u32_u24 v19, {32*128+16*16}, v15
    v_lshl_add_u32 v19, v14, 2, v19
    v_add_u32 v19, s42, v19
    v_cmp_lt_u32 s[48:49], 31, v0
    """)
    for i in range(16): a(f"v_mov_b32 v{64+i}, 0")
    L2E = f2u(1.4426950408889634); L2E_LO = f2u(1.4426950408889634 - struct.unpack("<f", struct.pack("<I", f2u(1.4426950408889634)))[0])
    LN2 = f2u(0.6931471805599453)
    a(f"""
    s_mov_b32 s50, {L2E:#x}
    s_mov_b32 s51, {L2E_LO:#x}
    s_mov_b32 s52, {LN2:#x}
    s_mov_b32 s53, 0
    s_barrier
    s_waitcnt vmcnt(0)
    """)
    def exp_bf16(x, t, lo):
        a(f"""
        v_mul_f32 v{t}, s50, v{x}
        v_fma_f32 v{lo}, v{x}, s50, -v{t}
        v_exp_f32 v{t}, v{t}
        v_fma_f32 v{lo}, v{x}, s51, v{lo}
        v_mul_f32 v{lo}, s52, v{lo}
        v_fma_f32 v{t}, v{t}, v{lo}, v{t}
        v_cvt_pk_bf16_f32 v{t}, v{t}, v{t}
        v_lshlrev_b32 v{x}, 16, v{t}
        """)
    a("v_lshlrev_b32 v4, 16, v4\nv_lshlrev_b32 v5, 16, v5")
    exp_bf16(4, 20, 21)
    a.l.append("k1_h_pass:")
    a("""
    v_lshlrev_b32 v6, 16, v6
    v_lshlrev_b32 v7, 16, v7
    v_lshlrev_b32 v8, 16, v8
    v_lshlrev_b32 v9, 16, v9
    """)
    exp_bf16(6, 20, 21)
    a(f"""
    v_mul_f32 v6, v6, v4
    v_mul_f32 v7, v7, v4
    v_mul_f32 v8, v8, v4
    v_mul_f32 v9, v9, v4
    v_mul_f32 v6, s50, v6
    v_mul_f32 v7, 0.15915494, v7         ; zi/(2pi)
    v_add_f32 v8, v8, v8
    v_mul_f32 v9, -2.0, v9
    v_cndmask_b32 v7, v7, -v7, s[48:49]
    v_cndmask_b32 v40, 1.0, v8, s[48:49]
    v_cndmask_b32 v41, 0, v9, s[48:49]
    """)
    DL = [1, 2, 4, 8, 248]
    MR = {d: 24 + 2*i for i, d in enumerate(DL)}
    for d in DL:
        a(f"""
        v_mov_b32 v20, {f2u(8.0):#x}
        v_mov_b32 v21, {f2u(float(d)):#x}
        v_cndmask_b32 v20, v20, v21, s[48:49]
        v_mul_f32 v21, v6, v20
        v_mul_f32 v22, v7, v20
        v_exp_f32 v21, -v21
        v_fract_f32 v22, v22
        v_cos_f32 v20, v22
        v_sin_f32 v22, v22
        v_mul_f32 v{MR[d]}, v21, v20
        v_mul_f32 v{MR[d]+1}, v21, v22
        """)
    a("s_barrier")
    deltas = [1]*8 + [248] + [2]*4 + [248] + [4]*2 + [248] + [4]*2 + [248, 8, 248, 8, 248, 8, 248, 8] + [8]*4
    for z in range(32):
        cur = 40 + 2*(z & 1); nxt = 40 + 2*((z+1) & 1)
        if z == 28: a("s_mov_b32 exec_hi, 0")
        if z < 31:
            W = MR[deltas[z]]
            a(f"v_pk_mul_f32 v[44:45], {vr(cur,2)}, {vr(W,2)} op_sel:[0,0] op_sel_hi:[0,1]")
        a(f"v_cvt_pk_bf16_f32 v{46+(z&1)}, v{cur}, v{cur+1}")
        if z < 31:
            a(f"v_pk_fma_f32 {vr(nxt,2)}, {vr(cur,2)}, {vr(W,2)}, v[44:45] op_sel:[1,1,0] op_sel_hi:[1,0,1] neg_lo:[0,1,0]")
        a(f"ds_write_b32 v19, v{46+(z&1)} offset:{z*128 + (z>>1)*16}")
        if z == 15: a("s_barrier")
    a("s_mov_b64 exec, -1")
    for j in range(4):
        a(f"ds_read_b128 {vr(80+8*j,4)}, v17 offset:{32*j}")
        a(f"ds_read_b128 {vr(84+8*j,4)}, v18 offset:{32*j}")
    a("""v_mov_b32 v6, v10
    v_mov_b32 v7, v11
    v_mov_b32 v8, v12
    v_mov_b32 v9, v13""")
    for j in range(4):
        a(f"s_waitcnt lgkmcnt({6-2*j})")
        a(f"v_mfma_f32_32x32x16_bf16 v[64:79], {vr(80+8*j,4)}, {vr(84+8*j,4)}, v[64:79]")
    a(f"""
    s_add_u32 s53, s53, 1
    s_cmp_eq_u32 s53, 2
    s_cbranch_scc1 k1_h_fin
    s_barrier
    s_branch k1_h_pass
k1_h_fin:
    v_lshlrev_b32 v20, 4, v0
    s_or_b32 s45, s42, 8192
    v_add_u32 v20, s45, v20
    s_cmp_eq_u32 s41, 0
    s_cbranch_scc1 k1_h_even
    s_nop 15
    ds_write_b128 v20, v[64:67]
    ds_write_b128 v20, v[68:71] offset:1024
    ds_write_b128 v20, v[72:75] offset:2048
    ds_write_b128 v20, v[76:79] offset:3072
    s_waitcnt lgkmcnt(0)
    s_barrier
    s_cmp_eq_u32 s43, 0
    s_cbranch_scc1 k1_h_end
    s_mov_b32 s50, 0x05040100
    s_mov_b32 s51, 0x07060302
    """)
    transpose8(a, 128, 160, 50, 51)
    for c in range(8):
        a(f"buffer_store_dwordx4 {vr(160+4*c,4)}, v127, s[36:39], s60 offen")
        if c < 7: a("s_add_u32 s60, s60, s61")
    a(f"""
    s_branch k1_h_end
k1_h_even:
    s_barrier
    ds_read_b128 v[80:83], v20
    ds_read_b128 v[84:87], v20 offset:1024
    ds_read_b128 v[88:91], v20 offset:2048
    ds_read_b128 v[92:95], v20 offset:3072
    v_cmp_eq_u32 vcc, 0, v0
    v_sub_u32 v21, 63, v0
    v_lshlrev_b32 v21, 4, v21
    v_cndmask_b32 v5, 0, v5, vcc
    v_and_b32 v22, 1, v0
    v_cmp_eq_u32 vcc, 1, v22             ; b odd
    s_mul_i32 s44, s40, {KRCH}
    s_add_u32 s44, s44, {WS_KR}
    s_add_u32 s45, s44, {KRC}
    s_waitcnt lgkmcnt(0)
    """)
    for i in range(16): a(f"v_add_f32 v{64+i}, v{64+i}, v{80+i}")
    a("v_add_f32 v64, v64, v5")
    d = lambda r: f"v{64+r}"
    a(f"v_cndmask_b32 v96, {d(12)}, {d(13)}, vcc\nv_cndmask_b32 v97, {d(14)}, {d(15)}, vcc")
    units = [
      (0, 0, [(7,6),(5,4),(3,2),(1,0)]), (0, 1, [(8,7),(6,5),(4,3),(2,1)]),
      (1, 0, [(11,11),(10,10),(10,9),(9,9)]), (1, 1, [(11,11),(11,10),(10,10),(9,9)]),
      (2, 0, [(13,13),(13,32),(12,12),(12,12)]), (2, 1, [(13,13),(13,13),(32,12),(12,12)]),
      (3, 0, [(15,15),(15,33),(14,14),(14,14)]), (3, 1, [(15,15),(15,15),(33,14),(14,14)]),
    ]
    for ui, (G, cp, prs) in enumerate(units):
        o = 100 + 4*ui
        for t, (lo, hi) in enumerate(prs):
            a(f"v_cvt_pk_bf16_f32 v{o+t}, {d(lo)}, {d(hi)}")
        a(f"buffer_store_dwordx4 {vr(o,4)}, v21, s[36:39], s{44+cp} offen offset:{(3-G)*1024}")
    a(f"""
    v_mov_b32 v81, 0
    v_cvt_pk_bf16_f32 v80, v64, v81
    v_mov_b32 v82, 0
    v_mov_b32 v83, 0
    v_mov_b32 v84, 0
    v_mov_b32 v85, 0
    v_mov_b32 v86, 0
    v_mov_b32 v87, 0
    v_cmp_eq_u32 vcc, 0, v0
    v_lshlrev_b32 v21, 4, v0
    v_add_u32 v21, 4096, v21
    v_cndmask_b32 v80, 0, v80, vcc
    s_mov_b64 exec, 15
    buffer_store_dwordx4 v[84:87], v21, s[36:39], s44 offen
    buffer_store_dwordx4 v[80:83], v21, s[36:39], s45 offen
    s_mov_b64 exec, -1
k1_h_end:
    s_barrier
    s_barrier
k1_done:
    s_endpgm
    """)
    a.l.append(kdesc("k1_kernel", 192))

L_KT = 65536
L_V = 81920
def k2(a):
    khead(a, "k2_kernel")
    S = [0, 16]; O = 32; NEG = 48; P = 64; KF = [72, 76]; TF = [80, 84]; VF = [88, 96]; Q = 104; QL = 108; QH = 110
    vK, vT, vV = 112, 113, 114
    a(f"""
    s_cmp_ge_u32 s2, 256
    s_cbranch_scc1 k2_done
    s_load_dwordx2 s[24:25], s[0:1], 96
    v_lshrrev_b32 v1, 6, v0
    v_and_b32 v116, 63, v0
    v_readfirstlane_b32 s3, v1
    s_cmp_ge_u32 s3, 8
    s_cbranch_scc1 k2_conv
    s_and_b32 s4, s2, 31                 ; h
    s_lshr_b32 s5, s2, 5
    s_lshl_b32 s5, s5, 3
    s_add_u32 s5, s5, s3
    s_lshr_b32 s6, s4, 1
    s_mul_i32 s6, s6, 2304               ; pair*9*256
    s_and_b32 s7, s4, 1                  ; odd
    s_mul_i32 s8, s7, 1280
    s_add_u32 s8, s8, s6
    s_add_u32 s9, s6, 1024
    s_mul_i32 s10, s5, {QK_T}
    s_add_u32 s11, s10, s8
    s_add_u32 s12, s10, s9
    v_lshlrev_b32 v{vK}, 3, v116         ; lane*8
    v_and_b32 v117, 31, v116
    v_lshlrev_b32 v118, 3, v117
    v_lshlrev_b32 v119, 4, v116          ; lane*16
    v_lshrrev_b32 v120, 4, v116
    s_mov_b32 s13, {QK_T}
    v_mul_lo_u32 v120, v120, s13
    v_and_b32 v121, 15, v116
    v_lshl_add_u32 v120, v121, 4, v120
    s_mul_i32 s14, s3, {QK_T}
    s_add_u32 s14, s14, s8
    s_add_u32 s14, s14, {144*256}
    s_mul_i32 s15, s4, {V_H}
    s_lshl_b32 s16, s3, 10               ; w*1024
    s_add_u32 s15, s15, s16
    s_add_u32 s15, s15, {WS_V}           ; V piece w
    s_mul_i32 s17, s3, {4*QK_T}
    s_add_u32 s17, s17, s9
    s_add_u32 s17, s17, {144*256}
    s_waitcnt lgkmcnt(0)
    """)
    srd(a, 36, 24, WS_END)
    a(f"""
    buffer_load_dwordx2 v[{Q}:{Q+1}], v{vK}, s[36:39], s11 offen
    buffer_load_dwordx2 v[{Q+2}:{Q+3}], v{vK}, s[36:39], s11 offen offset:512
    buffer_load_dwordx2 v[{QL}:{QL+1}], v118, s[36:39], s12 offen
    """)
    def dK(j): a(f"s_add_u32 m0, s16, {j*8192}\n" + (f"s_add_u32 s14, s14, {8*QK_T}\n" if j else "s_nop 0\n") + "buffer_load_dwordx4 v119, s[36:39], s14 offen lds")
    def dV(j): a(f"s_add_u32 m0, s16, {L_V + j*8192}\n" + (f"s_add_u32 s15, s15, 8192\n" if j else "s_nop 0\n") + "buffer_load_dwordx4 v119, s[36:39], s15 offen lds")
    def dT(j): a(f"s_add_u32 m0, s16, {L_KT + j*8192}\n" + (f"s_add_u32 s17, s17, {32*QK_T}\n" if j else "s_nop 0\n") + "buffer_load_dwordx4 v120, s[36:39], s17 offen lds")
    dK(0); dV(0); dT(0); dV(1); dK(1)
    for j in range(2, 8):
        dV(j); dK(j)
        if j == 3: dT(1)
    dV(8)
    for i in range(16): a(f"v_mov_b32 v{NEG+i}, 0")
    for i in range(16): a(f"v_mov_b32 v{VF[0]+i}, 0x3f803f80")
    a(f"""
    v_add_u32 v{vT}, {L_KT}, v{vK}
    v_lshrrev_b32 v121, 5, v116
    v_mul_u32_u24 v121, 288, v121
    v_lshl_add_u32 v{vV}, v117, 4, v121
    v_add_u32 v{vV}, {L_V}, v{vV}
    s_mov_b32 s18, 0x3ffff
    s_mov_b32 s19, 0x3ffff
    s_mov_b32 s20, 0
    s_mov_b32 s21, {f2u(18**-0.5 * 1.4426950408889634):#x}
    v_cmp_lt_u32 s[22:23], 31, v116
    s_waitcnt vmcnt(19)
    """)
    for r in list(range(Q, Q+4)) + [QL, QL+1]:
        a(f"""v_lshlrev_b32 v121, 16, v{r}
        v_and_b32 v{r}, 0xffff0000, v{r}
        v_mul_f32 v121, s21, v121
        v_mul_f32 v{r}, s21, v{r}
        v_cvt_pk_bf16_f32 v{r}, v121, v{r}""")
    a(f"""
    s_cmp_eq_u32 s7, 0
    s_cselect_b64 vcc, -1, 0
    v_cndmask_b32 v{QL}, 0, v{QL}, vcc
    v_cndmask_b32 v{QL+1}, v{QL+1}, 0, vcc
    v_cndmask_b32 v{QH}, 0, v{QL}, s[22:23]
    v_cndmask_b32 v{QH+1}, 0, v{QL+1}, s[22:23]
    v_cndmask_b32 v{QL}, v{QL}, 0, s[22:23]
    v_cndmask_b32 v{QL+1}, v{QL+1}, 0, s[22:23]
    s_waitcnt vmcnt(14)
    s_barrier
k2_run:
    """)
    def rdK(buf, t): a(f"ds_read2st64_b64 {vr(KF[buf],4)}, v{vK} offset0:{2*t} offset1:{2*t+1}")
    def rdT(buf, q): a(f"ds_read2st64_b64 {vr(TF[buf],4)}, v{vT} offset0:{2*q} offset1:{2*q+1}")
    def rdV(buf, t):
        a(f"""s_mov_b64 exec, s[18:19]
        ds_read_b128 {vr(VF[buf],4)}, v{vV} offset:{t*1152}
        ds_read_b128 {vr(VF[buf]+4,4)}, v{vV} offset:{t*1152+576}
        s_mov_b64 exec, -1""")
    def qk_main(t): a(f"v_mfma_f32_32x32x16_bf16 {vr(S[t&1],16)}, {vr(KF[t&1],4)}, {vr(Q,4)}, {vr(NEG,16)}")
    def qk_tail(t, tb):
        tt = t & 3
        a(f"v_mfma_f32_32x32x8_bf16 {vr(S[t&1],16)}, {vr(TF[tb]+2*(tt>>1),2)}, {vr(QH if tt&1 else QL,2)}, {vr(S[t&1],16)}")
    def pv(t, half): a(f"v_mfma_f32_32x32x16_bf16 {vr(O,16)}, {vr(VF[t&1]+4*half,4)}, {vr(P+4*half,4)}, {vr(O,16)}")
    def ex(t, r0, r1):
        for r in range(r0, r1): a(f"v_exp_f32 v{S[t&1]+r}, v{S[t&1]+r}")
    def cv(t, c0, c1):
        for c in range(c0, c1): a(f"v_cvt_pk_bf16_f32 v{P+c}, v{S[t&1]+2*c}, v{S[t&1]+2*c+1}")
    rdK(0, 0); rdT(0, 0); rdK(1, 1); rdV(0, 0)
    for i in range(16): a(f"v_mov_b32 v{O+i}, 0")
    for i in range(4): a(f"v_mov_b32 v{P+4+i}, 0")
    a("s_mov_b32 s26, 0\ns_waitcnt lgkmcnt(3)")
    qk_main(0); qk_tail(0, 0)
    a("s_nop 7\ns_nop 3")
    a(".p2align 6")
    a.l.append("k2_loop:")
    for t in range(8):
        if t == 4:
            a("""s_cmp_lg_u32 s26, 1
            s_cbranch_scc1 k2_nobar
            s_cmp_lg_u32 s20, 0
            s_cbranch_scc1 k2_nobar
            s_waitcnt vmcnt(0)
            s_barrier""")
            a.l.append("k2_nobar:")
        a("s_waitcnt lgkmcnt(0)")
        qk_main(t+1)
        rdK(t&1, t+2)
        if (t & 3) == 1: rdT(((t>>2)+1)&1, (t>>2)+1)
        ex(t, 0, 4)
        pv(t-1, 1)
        rdV((t+1)&1, t+1)
        ex(t, 4, 8); cv(t, 0, 4)
        qk_tail(t+1, ((t+1)>>2)&1)
        ex(t, 8, 12)
        pv(t, 0)
        if t == 7:
            a(f"""v_add_u32 v{vK}, 8192, v{vK}
            v_add_u32 v{vT}, 2048, v{vT}
            v_add_u32 v{vV}, 9216, v{vV}
            s_add_u32 s26, s26, 1
            s_cmp_lt_u32 s26, 8""")
        ex(t, 12, 16); cv(t, 4, 8)
    a("s_cbranch_scc1 k2_loop")
    a("s_nop 1")
    pv(7, 1)
    a(f"""
    v_subrev_u32 v{vK}, 65536, v{vK}
    v_subrev_u32 v{vT}, 16384, v{vT}
    v_subrev_u32 v{vV}, {8*9216}, v{vV}
    s_waitcnt lgkmcnt(0)
    s_nop 15
    s_cmp_lg_u32 s20, 0
    s_cbranch_scc1 k2_fin
    v_max3_f32 v121, abs(v{O}), abs(v{O+1}), abs(v{O+2})
    v_max3_f32 v121, abs(v{O+3}), abs(v{O+4}), v121
    v_max3_f32 v121, abs(v{O+5}), abs(v{O+6}), v121
    v_max3_f32 v121, abs(v{O+7}), abs(v{O+8}), v121
    v_add_f32 v122, v{O}, v{O+1}
    v_add_f32 v123, v{O+2}, v{O+3}
    v_add_f32 v124, v{O+4}, v{O+5}
    v_add_f32 v125, v{O+6}, v{O+7}
    v_add_f32 v126, v{O+8}, v{O+9}
    v_add_f32 v122, v122, v123
    v_add_f32 v124, v124, v125
    v_add_f32 v122, v122, v126
    v_add_f32 v122, v122, v124
    v_max3_f32 v121, abs(v{O+9}), v{O+10}, v121
    s_mov_b32 s27, {f2u(2.0**100):#x}
    v_cmp_ngt_f32 vcc, s27, v121
    v_cmp_nle_f32 s[28:29], 1.0, v{O+10}
    v_cmp_u_f32 s[30:31], v122, v122
    s_or_b64 vcc, vcc, s[28:29]
    s_or_b64 vcc, vcc, s[30:31]
    s_cbranch_vccz k2_fin
    s_mov_b32 s20, 1
    s_mov_b32 s26, 0
    v_mov_b32 v121, 0xff800000
k2_mx:
    """)
    rdT(0, 0)
    for t in range(4):
        rdK(0, t)
        a("s_waitcnt lgkmcnt(0)")
        a(f"v_mfma_f32_32x32x16_bf16 {vr(S[0],16)}, {vr(KF[0],4)}, {vr(Q,4)}, 0")
        a(f"v_mfma_f32_32x32x8_bf16 {vr(S[0],16)}, {vr(TF[0]+2*(t>>1),2)}, {vr(QH if t&1 else QL,2)}, {vr(S[0],16)}")
        a("s_nop 15")
        for r in range(8): a(f"v_max3_f32 v121, v{S[0]+2*r}, v{S[0]+2*r+1}, v121")
    a(f"""
    v_add_u32 v{vK}, 4096, v{vK}
    v_add_u32 v{vT}, 1024, v{vT}
    s_add_u32 s26, s26, 1
    s_cmp_lt_u32 s26, 16
    s_cbranch_scc1 k2_mx
    v_subrev_u32 v{vK}, 65536, v{vK}
    v_subrev_u32 v{vT}, 16384, v{vT}
    v_mov_b32 v122, v121
    s_nop 1
    v_permlane32_swap_b32 v121, v122
    s_nop 1
    v_max_f32 v121, v121, v122
    """)
    for i in range(16): a(f"v_sub_f32 v{NEG+i}, 0, v121")
    a(f"""
    s_branch k2_run
k2_fin:
    v_rcp_f32 v121, v{O+10}
    s_mul_i32 s10, s5, {O_T}
    s_add_u32 s10, s10, {WS_O}
    s_lshl_b32 s11, s4, 10
    s_add_u32 s11, s11, s10
    s_lshr_b32 s12, s4, 2
    s_lshl_b32 s12, s12, 9
    s_and_b32 s13, s4, 3
    s_lshl_b32 s13, s13, 2
    s_add_u32 s12, s12, s13
    s_add_u32 s12, s12, s10
    s_add_u32 s12, s12, 32768
    """)
    for r in range(10): a(f"v_mul_f32 v{O+r}, v{O+r}, v121")
    for c in range(5): a(f"v_cvt_pk_bf16_f32 v{P+c}, v{O+2*c}, v{O+2*c+1}")
    a(f"""
    buffer_store_dwordx4 {vr(P,4)}, v119, s[36:39], s11 offen
    s_mov_b32 exec_hi, 0
    buffer_store_dword v{P+4}, v119, s[36:39], s12 offen
    s_endpgm
    """)
    a.l.append("k2_conv:")
    a(f"""
    s_setprio 3
    s_and_b32 s4, s2, 7                  ; x
    s_lshr_b32 s5, s2, 3                 ; idx
    s_sub_u32 s6, s3, 8                  ; slot
    s_lshl_b32 s7, s5, 1
    s_add_u32 s7, s7, s6
    s_add_u32 s8, s5, 64
    s_cmp_eq_u32 s6, 2
    s_cselect_b32 s7, s8, s7             ; oct
    s_cmp_ge_u32 s7, 72
    s_cbranch_scc1 k2_done
    s_lshl_b32 s8, s7, 3
    s_add_u32 s8, s8, s4                 ; channel
    s_mul_i32 s9, s8, {KRCH}
    s_add_u32 s9, s9, {WS_KR}            ; K soffset
    s_lshl_b32 s10, s8, 12
    s_add_u32 s10, s10, {WS_U - 31*32}   ; U soffset (k=31)
    s_mov_b32 s11, 31                    ; k
    v_and_b32 v117, 31, v116             ; rho / a'
    v_lshrrev_b32 v118, 5, v116          ; h
    v_and_b32 v119, 16, v117
    v_bfe_u32 v120, v117, 2, 1
    v_lshl_add_u32 v119, v120, 3, v119
    v_and_b32 v120, 3, v117
    v_lshl_add_u32 v119, v120, 1, v119
    v_bfe_u32 v120, v117, 3, 1           ; parity
    v_lshlrev_b32 v121, 3, v118
    v_sub_u32 v121, v121, v119
    v_add_u32 v121, 30, v121
    v_lshlrev_b32 v121, 1, v121
    v_xor_b32 v120, 1, v120
    v_mul_u32_u24 v120, {KRC+4}, v120
    v_add_u32 v112, v121, v120           ; vA
    v_lshlrev_b32 v113, 5, v117
    v_lshl_add_u32 v113, v118, 4, v113   ; vB
    """)
    for i in range(96): a(f"v_mov_b32 v{i}, 0")
    a("s_waitcnt lgkmcnt(0)")
    srd(a, 36, 24, WS_END)
    a("s_barrier\ns_barrier")
    def cload(buf, es):
        b = 32 + 16*buf
        a(f"""buffer_load_dwordx4 {vr(b,4)}, v112, s[36:39], s9 offen offset:2048
        buffer_load_dwordx4 {vr(b+4,4)}, v113, s[36:39], s10 offen offset:{es*2048+1024}
        buffer_load_dwordx4 {vr(b+8,4)}, v112, s[36:39], s9 offen
        s_lshl_b32 s12, -1, s11
        s_mov_b32 s13, s12
        s_mov_b64 exec, s[12:13]
        buffer_load_dwordx4 {vr(b+12,4)}, v113, s[36:39], s10 offen offset:{es*2048}
        s_mov_b64 exec, -1
        s_add_u32 s9, s9, 32""")
        if es: a("s_add_u32 s10, s10, 32\ns_sub_u32 s11, s11, 1")
    for buf in range(4): cload(buf, buf & 1)
    a("s_mov_b32 s14, 0")
    a.l.append("k2_cloop:")
    for buf in range(4):
        b = 32 + 16*buf
        a(f"""s_waitcnt vmcnt(12)
        v_mfma_f32_32x32x16_bf16 v[16:31], {vr(b,4)}, {vr(b+4,4)}, v[16:31]
        v_mfma_f32_32x32x16_bf16 v[0:15], {vr(b,4)}, {vr(b+12,4)}, v[0:15]
        v_mfma_f32_32x32x16_bf16 v[16:31], {vr(b+8,4)}, {vr(b+12,4)}, v[16:31]""")
        cload(buf, buf & 1)
    a(f"""
    s_add_u32 s14, s14, 1
    s_cmp_lt_u32 s14, 16
    s_cbranch_scc1 k2_cloop
    v_lshl_add_u32 v114, v117, 2, v118   ; g = 4a'+hf
    v_mul_u32_u24 v114, 9216, v114
    s_mul_i32 s15, s4, 1152
    s_lshl_b32 s16, s7, 4
    s_add_u32 s15, s15, s16
    s_add_u32 s15, s15, {WS_Y}
    s_nop 7
    """)
    for u in range(4):
        for r in range(4): a(f"v_cvt_pk_bf16_f32 v{96+4*u+r}, v{8*u+r}, v{8*u+r+4}")
        a(f"s_add_u32 s16, s15, {(u&1)*2*9216 + (u>>1)*128*9216}")
        a(f"buffer_store_dwordx4 {vr(96+4*u,4)}, v114, s[36:39], s16 offen")
    a.l.append("k2_done:")
    a("s_endpgm")
    a.l.append(kdesc("k2_kernel", 128))

def k3(a):
    khead(a, "k3_kernel")
    a(f"""
    s_cmp_ge_u32 s2, 240
    s_cbranch_scc1 k3_done
    s_load_dwordx2 s[22:23], s[0:1], 80
    s_load_dwordx2 s[24:25], s[0:1], 96
    v_lshrrev_b32 v1, 6, v0
    v_and_b32 v0, 63, v0
    v_readfirstlane_b32 s3, v1
    s_cmp_ge_u32 s2, 192
    s_cbranch_scc1 k3_tr
    s_and_b32 s4, s2, 7
    s_lshr_b32 s5, s2, 3                 ; idx 0..23
    s_and_b32 s6, s5, 3
    s_lshl_b32 s4, s4, 2
    s_add_u32 s4, s4, s6                 ; tm
    s_lshr_b32 s5, s5, 2                 ; tn
    s_lshl_b32 s6, s4, 1
    s_add_u32 s7, s6, s3
    s_mul_i32 s7, s7, {O_T}
    s_add_u32 s7, s7, {WS_O}
    s_mul_i32 s8, s5, 3
    s_add_u32 s9, s8, s3
    s_mul_i32 s9, s9, {O_T}
    s_add_u32 s9, s9, {WS_WO - 2*O_T}
    s_cmp_lt_u32 s3, 2
    s_cselect_b32 s7, s7, s9
    s_lshl_b32 s10, s3, 15
    ; compute tile: ta = w/3, tb = w%3
    s_cmp_ge_u32 s3, 3
    s_cselect_b32 s11, 1, 0
    s_mul_i32 s12, s11, 3
    s_sub_u32 s12, s3, s12
    s_add_u32 s13, s6, s11
    s_add_u32 s14, s8, s12               ; n tile
    s_mul_i32 s15, s13, {O_T}
    s_add_u32 s15, s15, {WS_O + 32768}
    s_mul_i32 s16, s14, {O_T}
    s_add_u32 s16, s16, {WS_WO + 32768}
    v_lshlrev_b32 v2, 4, v0
    s_lshl_b32 s17, s11, 15
    v_add_u32 v3, s17, v2
    s_add_u32 s17, s12, 2
    s_lshl_b32 s17, s17, 15
    v_add_u32 v4, s17, v2
    s_waitcnt lgkmcnt(0)
    """)
    srd(a, 36, 24, WS_END)
    srd(a, 32, 22, 4718592)
    a("""s_cmp_eq_u32 s3, 5
    s_cbranch_scc1 k3_nodma
    s_mov_b32 m0, s10""")
    for g in range(8):
        if g: a("s_add_u32 m0, m0, 4096\ns_add_u32 s7, s7, 4096")
        else: a("s_nop 0")
        for q in range(4):
            a(f"buffer_load_dwordx4 v2, s[36:39], s7 offen offset:{q*1024} lds")
    a.l.append("k3_nodma:")
    for q in range(4):
        a(f"buffer_load_dwordx4 {vr(64+8*q,4)}, v2, s[36:39], s15 offen offset:{q*1024}")
        a(f"buffer_load_dwordx4 {vr(68+8*q,4)}, v2, s[36:39], s16 offen offset:{q*1024}")
    for i in range(16): a(f"v_mov_b32 v{16+i}, 0")
    for c in range(4):
        a(f"s_waitcnt vmcnt({32-8*c})\ns_barrier")
        for k in range(8):
            ks = 8*c + k
            if k < 4:
                a(f"ds_read_b128 {vr(32+8*k,4)}, v3 offset:{ks*1024}\nds_read_b128 {vr(36+8*k,4)}, v4 offset:{ks*1024}")
        for k in range(8):
            ks = 8*c + k
            b = 32 + 8*(k & 3)
            a(f"s_waitcnt lgkmcnt({6 if k < 5 else 2*(7-k)})")
            a(f"v_mfma_f32_32x32x16_bf16 v[16:31], {vr(b,4)}, {vr(b+4,4)}, v[16:31]")
            if k < 4:
                a(f"ds_read_b128 {vr(b,4)}, v3 offset:{(ks+4)*1024}\nds_read_b128 {vr(b+4,4)}, v4 offset:{(ks+4)*1024}")
    a("s_waitcnt vmcnt(0)")
    for q in range(4):
        a(f"v_mfma_f32_32x32x16_bf16 v[16:31], {vr(64+8*q,4)}, {vr(68+8*q,4)}, v[16:31]")
    a(f"""
    v_lshrrev_b32 v5, 5, v0
    v_mul_u32_u24 v5, {8*2304}, v5
    v_and_b32 v6, 31, v0
    v_lshl_add_u32 v5, v6, 1, v5
    s_mul_i32 s17, s13, {32*2304}
    s_lshl_b32 s18, s14, 6
    s_add_u32 s17, s17, s18
    s_nop 7
    s_nop 3
    """)
    for c in range(8):
        a(f"v_cvt_pk_bf16_f32 v{32+c}, v{16+2*c}, v{16+2*c+1}")
    for c in range(8):
        tok = (2*c & 7) + 16*(c >> 2)
        a(f"""s_add_u32 s18, s17, {tok*2304}
        buffer_store_short v{32+c}, v5, s[32:35], s18 offen
        buffer_store_short_d16_hi v{32+c}, v5, s[32:35], s18 offen offset:2304""")
    a("s_endpgm")
    a.l.append("k3_tr:")
    a(f"""
    s_sub_u32 s4, s2, 192
    s_mul_i32 s4, s4, 6
    s_add_u32 s4, s4, s3                 ; task
    s_mul_i32 s5, s4, 7282
    s_lshr_b32 s5, s5, 16                ; gb
    s_mul_i32 s6, s5, 9
    s_sub_u32 s6, s4, s6                 ; ob
    v_lshrrev_b32 v2, 3, v0
    s_lshl_b32 s7, s5, 3
    v_add_u32 v2, s7, v2                 ; g
    v_and_b32 v3, 7, v0
    s_lshl_b32 s7, s6, 3
    v_add_u32 v3, s7, v3                 ; oct
    v_mul_u32_u24 v4, 9216, v2
    v_lshl_add_u32 v4, v3, 4, v4
    v_mul_u32_u24 v5, {8*2304}, v2
    v_lshl_add_u32 v5, v3, 4, v5
    s_mov_b32 s8, {WS_Y}
    s_mov_b32 s9, {WS_Y + 4608}
    s_mov_b32 s10, 0x05040100
    s_mov_b32 s11, 0x07060302
    s_waitcnt lgkmcnt(0)
    """)
    srd(a, 36, 24, WS_END)
    srd(a, 32, 22, 4718592)
    for j in range(8):
        a(f"buffer_load_dwordx4 {vr(16+4*j,4)}, v4, s[36:39], s{8+(j>>2)} offen offset:{(j&3)*1152}")
    a("s_waitcnt vmcnt(0)")
    transpose8(a, 16, 48, 10, 11)
    for c in range(8):
        a(f"s_mov_b32 s12, {1152 + c*2304}\nbuffer_store_dwordx4 {vr(48+4*c,4)}, v5, s[32:35], s12 offen")
    a.l.append("k3_done:")
    a("s_endpgm")
    a.l.append(kdesc("k3_kernel", 96))

def main():
    ref = open("concat_heads__mha_block__ssm_conv_s4d__prompt.s.ref").read().split("\n")
    head = [l for l in ref if l.startswith(";") and "@launch" not in l and "Override launch" not in l and "grid=ceil" not in l]
    head += ["; @launch kernel=k1_kernel grid=(256,1,1) block=(512,1,1) lds=163840",
             "; @launch kernel=k2_kernel grid=(256,1,1) block=(704,1,1) lds=155648",
             "; @launch kernel=k3_kernel grid=(240,1,1) block=(384,1,1) lds=163840"]
    a = A()
    k1(a); k2(a); k3(a)
    out = "\n".join(head) + "\n.amdgcn_target \"amdgcn-amd-amdhsa--gfx950\"\n" + a.text()
    path = sys.argv[1] if len(sys.argv) > 1 else "concat_heads__mha_block__ssm_conv_s4d__prompt.s"
    open(path, "w").write(out)
main()
```

```python
import sys, struct, math

def f2u(x): return struct.unpack("<I", struct.pack("<f", x))[0]

WS_QK = 0
QK_T = 73728
WS_V = WS_QK + 64 * QK_T
V_H = 73728
WS_O = WS_V + 32 * V_H
O_T = 36864
WS_WO = WS_O + 64 * O_T
WS_U = WS_WO + 18 * O_T
WS_KR = WS_U + 576 * 4096
KRC = 4224
KRCH = 2 * KRC
WS_Y = WS_KR + 576 * KRCH
WS_END = WS_Y + 256 * 9216 + 8192

class A:
    def __init__(s): s.l = []
    def __call__(s, t):
        for line in t.strip("\n").split("\n"):
            s.l.append(line if line.strip().endswith(":") and not line.startswith(" ") else "    " + line.strip())
    def text(s): return "\n".join(s.l) + "\n"

def vr(b, n): return f"v[{b}:{b+n-1}]"

def srd(a, d, lo, size):
    a(f"""s_mov_b32 s{d}, s{lo}
    s_mov_b32 s{d+1}, s{lo+1}
    s_mov_b32 s{d+2}, {size}
    s_mov_b32 s{d+3}, 0x20000""")

def kdesc(name, nv, ns=96):
    return f""".section .rodata,"a"
.p2align 6
.amdhsa_kernel {name}
  .amdhsa_next_free_vgpr {nv}
  .amdhsa_next_free_sgpr {ns}
  .amdhsa_accum_offset {(nv+3)//4*4}
  .amdhsa_group_segment_fixed_size 0
  .amdhsa_kernarg_size 104
  .amdhsa_user_sgpr_count 2
  .amdhsa_user_sgpr_kernarg_segment_ptr 1
  .amdhsa_system_sgpr_workgroup_id_x 1
.end_amdhsa_kernel
"""

INSTR = "instr" in sys.argv
OPT = dict(x.split("=") for x in sys.argv if "=" in x)
ST1 = OPT.get("st1", "").replace("+", " ")
ST2 = OPT.get("st2", "sc1").replace("+", " ")
STQ = OPT.get("stq", ""); STV = OPT.get("stv", ""); STU = OPT.get("stu", "sc1"); STK = OPT.get("stk", "sc1")
WS_ST = 24 << 20
def stamp(a, i):
    if INSTR: a(f"s_memtime s[{70+2*i}:{71+2*i}]")
def stamp_rt(a, i):
    if INSTR: a(f"s_memrealtime s[{86+2*i}:{87+2*i}]")
def stamp_out(a, kidx):
    if not INSTR: return
    a(f"""s_memtime s[84:85]
    s_memrealtime s[88:89]
    s_waitcnt lgkmcnt(0)
    s_mov_b64 exec, 1
    s_lshl_b32 s90, s2, 4
    s_add_u32 s90, s90, s3
    s_lshl_b32 s90, s90, 6
    s_add_u32 s90, s90, {WS_ST + kidx*(256*16*64)}
    v_mov_b32 v1, s90""")
    for i in range(10):
        a(f"v_mov_b32 v2, s{70+2*i}\nglobal_store_dword v1, v2, s[24:25] offset:{4*i}")
    a("s_waitcnt vmcnt(0)")

def khead(a, name):
    a(f""".text
.globl {name}
.p2align 8
.type {name},@function""")
    a.l.append(f"{name}:")
    if INSTR:
        for i in range(70, 90): a(f"s_mov_b32 s{i}, 0")
    stamp(a, 0); stamp_rt(a, 0)

def transpose8(a, I, O, sLO, sHI):
    for c in range(8):
        for t in range(4):
            a(f"v_perm_b32 v{O+4*c+t}, v{I+4*(2*t+1)+(c>>1)}, v{I+4*(2*t)+(c>>1)}, s{sHI if c&1 else sLO}")

def k1(a):
    khead(a, "k1_kernel")
    L_SCR = 131072; L_FL = 147456
    a(f"""
    s_cmp_ge_u32 s2, 256
    s_cbranch_scc1 k1_done
    s_load_dwordx16 s[4:19], s[0:1], 0
    s_load_dwordx4 s[20:23], s[0:1], 64
    s_load_dwordx2 s[24:25], s[0:1], 96
    v_lshrrev_b32 v1, 6, v0
    v_and_b32 v0, 63, v0
    v_readfirstlane_b32 s3, v1
    s_and_b32 s26, s2, 7
    s_lshr_b32 s27, s2, 3
    s_and_b32 s40, s26, 3
    s_lshl_b32 s40, s40, 2
    s_and_b32 s44, s27, 3
    s_add_u32 s40, s40, s44              ; mt
    s_lshr_b32 s41, s26, 2
    s_mul_i32 s41, s41, 7
    s_lshr_b32 s44, s27, 2
    s_add_u32 s41, s41, s44              ; part
    v_mov_b32 v23, {L_FL}
    s_cmp_ge_u32 s3, 6
    s_cbranch_scc1 k1_gemm
    s_cmp_ge_u32 s3, 2
    s_cbranch_scc1 k1_kgen
    s_cmp_ge_u32 s27, 28
    s_cbranch_scc1 k1_done
    s_lshl_b32 s48, s40, 1
    s_add_u32 s48, s48, s41
    s_mul_i32 s49, s48, 57
    s_lshr_b32 s49, s49, 9
    s_mul_i32 s49, s49, 9
    s_sub_u32 s48, s48, s49
    {"s_mov_b32 s48, 0" if "norot" in OPT else ""}
    s_cmp_eq_u32 s3, 1
    s_cbranch_scc1 k1_ldw
    v_lshrrev_b32 v4, 3, v0              ; r3
    v_lshrrev_b32 v5, 2, v4
    v_lshlrev_b32 v5, 3, v5
    v_and_b32 v6, 3, v4
    v_add_u32 v5, v5, v6                 ; tokoff
    s_lshl_b32 s44, s40, 7
    v_add_u32 v5, s44, v5
    v_mul_u32_u24 v5, 1152, v5
    v_lshrrev_b32 v6, 1, v4
    v_and_b32 v7, 7, v0
    v_xor_b32 v6, v6, v7
    v_lshl_add_u32 v2, v6, 4, v5
    v_xor_b32 v6, 4, v6
    v_lshl_add_u32 v3, v6, 4, v5
    v_add_u32 v3, {4608-1024}, v3
    s_mov_b32 s50, 128
    s_mov_b32 s51, 18432
    s_mov_b32 s52, 0
    s_waitcnt lgkmcnt(0)
    s_mov_b32 s28, s4
    s_mov_b32 s29, s5
    s_mov_b32 s30, 2359296
    s_branch k1_ld
k1_ldw:
    v_lshrrev_b32 v5, 4, v0
    v_mul_u32_u24 v2, 3456, v5
    v_lshlrev_b32 v5, 2, v5
    v_and_b32 v6, 15, v0
    v_xor_b32 v5, v5, v6
    v_lshl_add_u32 v2, v5, 4, v2
    s_lshl_b32 s44, s41, 8
    v_add_u32 v2, s44, v2
    v_add_u32 v3, {13824-1024}, v2
    s_mov_b32 s50, 221184
    s_mov_b32 s51, 27648
    s_mov_b32 s52, 16384
    s_waitcnt lgkmcnt(0)
    s_mov_b32 s28, s6
    s_mov_b32 s29, s7
    s_mov_b32 s30, 1990656
k1_ld:
    s_mov_b32 s31, 0x20000
    s_lshl_b32 s44, s3, 2
    v_add_u32 v22, s44, v23
    s_mov_b32 s53, 0                     ; stage
k1_ld_loop:
    s_cmp_lt_u32 s53, 4
    s_cbranch_scc1 k1_ld_go
    s_sub_u32 s54, s53, 3
k1_ld_poll:
    ds_read_b128 v[8:11], v23 offset:16
    s_waitcnt lgkmcnt(0)
    v_min_u32 v8, v8, v9
    v_min3_u32 v8, v8, v10, v11
    v_cmp_le_u32 vcc, s54, v8
    s_cbranch_vccz k1_ld_poll
k1_ld_go:
    s_mul_i32 s47, s48, s50
    s_and_b32 s55, s53, 3
    s_lshl_b32 s55, s55, 15
    s_add_u32 m0, s55, s52
    s_add_u32 s48, s48, 1
    """)
    for p in range(8):
        a(f"""buffer_load_dwordx4 v2, s[28:31], s47 offen lds
        buffer_load_dwordx4 v3, s[28:31], s47 offen offset:1024 lds""")
        if p < 7: a("s_add_u32 m0, m0, 2048\ns_add_u32 s47, s47, s51")
    a(f"""
    s_cmp_eq_u32 s48, 9
    s_cselect_b32 s48, 0, s48
    s_cmp_lg_u32 s53, 0
    s_cbranch_scc1 k1_ld_nb
    s_barrier
k1_ld_nb:
    v_mov_b32 v8, s53
    s_waitcnt vmcnt(16)
    ds_write_b32 v22, v8
    s_add_u32 s53, s53, 1
    s_cmp_lt_u32 s53, 9
    s_cbranch_scc1 k1_ld_loop
    v_mov_b32 v9, 9
    s_waitcnt vmcnt(0)
    ds_write_b32 v22, v9
    """)
    stamp_out(a, 0)
    a("s_endpgm")
    a.l.append("k1_gemm:")
    a(f"""
    s_cmp_ge_u32 s27, 28
    s_cbranch_scc1 k1_kgen
    s_sub_u32 s45, s3, 6
    s_and_b32 s42, s45, 1                ; mw
    s_lshr_b32 s43, s45, 1               ; nw
    s_lshl_b32 s45, s45, 2
    v_add_u32 v22, s45, v23
    v_and_b32 v5, 31, v0                 ; i
    v_lshrrev_b32 v6, 5, v0              ; hf
    s_lshl_b32 s44, s42, 6
    v_add_u32 v7, s44, v5
    v_lshlrev_b32 v7, 7, v7
    v_bfe_u32 v5, v5, 1, 3
    v_xor_b32 v5, v5, v6
    """)
    for j in range(4):
        a(f"""v_xor_b32 v20, {2*j}, v5
        v_lshl_add_u32 v{8+j}, v20, 4, v7
        v_add_u32 v{12+j}, 0x10000, v{8+j}""")
    a(f"""
    v_bfe_u32 v5, v0, 2, 2               ; r
    v_lshl_add_u32 v7, v6, 3, v5
    v_lshlrev_b32 v7, 8, v7
    v_bfe_u32 v20, v0, 4, 1
    v_lshl_add_u32 v7, v20, 5, v7
    v_and_b32 v20, 3, v0
    v_lshl_add_u32 v7, v20, 3, v7
    v_add_u32 v7, 16384, v7
    s_lshl_b32 s44, s43, 1
    v_xor_b32 v5, s44, v5
    v_lshl_add_u32 v16, v5, 6, v7
    v_xor_b32 v5, 1, v5
    v_lshl_add_u32 v17, v5, 6, v7
    v_add_u32 v18, 0x10000, v16
    v_add_u32 v19, 0x10000, v17
    s_barrier
    """)
    for i in range(64):
        a(f"v_mov_b32 v{64+i}, 0")
    a("s_waitcnt lgkmcnt(0)")
    srd(a, 36, 24, WS_END)
    if "nogemm" in OPT: a("v_mov_b32 v58, 9\nds_write_b32 v22, v58 offset:16\ns_endpgm")
    a("""s_cmp_ge_u32 s41, 9
    s_cbranch_scc1 k1_gemm_v""")
    FB = [24, 40]
    def reads(stage, j, fb):
        slot = stage & 3
        hi = slot >> 1
        base = (slot & 1) * 32768
        out = []
        out.append(f"ds_read_b128 {vr(fb,4)}, v{8+4*hi+j} offset:{base}")
        out.append(f"ds_read_b64_tr_b16 {vr(fb+8,2)}, v{16+2*hi} offset:{base+j*4096}")
        out.append(f"ds_read_b64_tr_b16 {vr(fb+10,2)}, v{16+2*hi} offset:{base+j*4096+1024}")
        out.append(f"ds_read_b64_tr_b16 {vr(fb+12,2)}, v{17+2*hi} offset:{base+j*4096}")
        out.append(f"ds_read_b64_tr_b16 {vr(fb+14,2)}, v{17+2*hi} offset:{base+j*4096+1024}")
        out.append(f"ds_read_b128 {vr(fb+4,4)}, v{8+4*hi+j} offset:{base+4096}")
        return out
    def mfmas(fb, vor):
        out = []
        for (ta, tb) in ((0,0),(0,1),(1,0),(1,1)):
            acc = 64 + 16*(2*ta+tb)
            X = vr(fb+4*ta, 4); W = vr(fb+8+4*tb, 4)
            if vor: out.append(f"v_mfma_f32_32x32x16_bf16 {vr(acc,16)}, {X}, {W}, {vr(acc,16)}")
            else:   out.append(f"v_mfma_f32_32x32x16_bf16 {vr(acc,16)}, {W}, {X}, {vr(acc,16)}")
        return out
    def check(tag, need, first_read):
        if not first_read:
            a(f"""v_min_u32 v56, v56, v57
            v_cmp_le_u32 vcc, {need}, v56
            s_cbranch_vccnz {tag}_ok""")
        a.l.append(f"{tag}_p:")
        a(f"""ds_read_b64 v[56:57], v23
        s_waitcnt lgkmcnt(0)
        v_min_u32 v56, v56, v57
        v_cmp_le_u32 vcc, {need}, v56
        s_cbranch_vccz {tag}_p""")
        a.l.append(f"{tag}_ok:")
    def mainloop(vor):
        check(f"k1_c{int(vor)}_0", 1, True)
        stamp(a, 3)
        a("\n".join(reads(0, 0, FB[0])))
        for st in range(9):
            for j in range(4):
                cur = FB[j & 1]; nxt = FB[(j+1) & 1]
                a("s_waitcnt lgkmcnt(0)")
                m = mfmas(cur, vor)
                a(m[0])
                if j < 3:
                    rd = reads(st, j+1, nxt)
                elif st < 8:
                    if st < 5: a(f"v_mov_b32 v58, {st+1}\nds_write_b32 v22, v58 offset:16")
                    check(f"k1_c{int(vor)}_{st+1}", st+2, False)
                    rd = reads(st+1, 0, nxt)
                else:
                    rd = []
                a("\n".join(rd[:3])) if rd else None
                a(m[1]); a("\n".join(rd[3:])) if rd else None
                a(m[2])
                if j == 2 and st < 8: a("ds_read_b64 v[56:57], v23")
                a(m[3])
            if st == 3: stamp(a, 5)
        stamp(a, 4)
    mainloop(False)
    a(f"""
    s_lshl_b32 s44, s40, 1
    s_add_u32 s44, s44, s42
    s_mul_i32 s44, s44, {2*QK_T}
    s_lshl_b32 s45, s41, 1
    s_add_u32 s45, s45, s43
    s_lshl_b32 s45, s45, 12
    s_add_u32 s44, s44, s45
    s_add_u32 s45, s44, {QK_T}
    v_lshlrev_b32 v2, 3, v0
    s_nop 7
    """)
    for ta in range(2):
        for tb in range(2):
            acc = 64 + 16*(2*ta+tb)
            o = 24 + 8*((2*ta+tb)&3)
            for r in range(8):
                a(f"v_cvt_pk_bf16_f32 v{o+r}, v{acc+2*r}, v{acc+2*r+1}")
            for rq in range(4):
                a(f"buffer_store_dwordx2 {vr(o+2*rq,2)}, v2, s[36:39], s{44+ta} offen offset:{tb*2048+rq*512} {STQ}")
    stamp(a, 6); a("s_waitcnt vmcnt(0)") if INSTR else None
    stamp_out(a, 0)
    a("s_endpgm")
    a.l.append("k1_gemm_v:")
    mainloop(True)
    a(f"""
    s_lshl_b32 s44, s41, 1
    s_add_u32 s44, s44, s43
    s_sub_u32 s44, s44, 18
    s_cmp_ge_u32 s44, 9
    s_cbranch_scc1 k1_done
    s_lshl_b32 s44, s44, 6
    v_and_b32 v5, 31, v0
    v_add_u32 v5, s44, v5                ; f (tb=0)
    v_lshrrev_b32 v6, 5, v0
    v_mul_u32_u24 v6, 288, v6
    s_mov_b32 s47, {V_H - 18*16}
    """)
    for tb in range(2):
        a(f"""
        v_mul_u32_u24 v7, 3641, v5           ; f/18 = (f*3641)>>16 for f<576
        v_lshrrev_b32 v7, 16, v7
        v_mul_lo_u32 v7, v7, s47
        v_lshl_add_u32 v7, v5, 4, v7         ; h*V_H + d*16
        v_add_u32 v{2+tb}, v7, v6
        v_add_u32 v5, 32, v5
        """)
    a(f"""
    s_lshl_b32 s44, s40, 1
    s_add_u32 s44, s44, s42
    s_mul_i32 s44, s44, 2304
    s_add_u32 s44, s44, {WS_V}
    """)
    for ta in range(2):
        for tb in range(2):
            acc = 64 + 16*(2*ta+tb)
            o = 24 + 8*((2*ta+tb)&3)
            for r in range(8):
                a(f"v_cvt_pk_bf16_f32 v{o+r}, v{acc+2*r}, v{acc+2*r+1}")
            for hh in range(2):
                a(f"buffer_store_dwordx4 {vr(o+4*hh,4)}, v{2+tb}, s[36:39], s44 offen offset:{ta*1152+hh*576} {STV}")
    stamp(a, 6); a("s_waitcnt vmcnt(0)") if INSTR else None
    stamp_out(a, 0)
    a("s_endpgm")

    a.l.append("k1_kgen:")
    L2E = f2u(1.4426950408889634); L2E_LO = f2u(1.4426950408889634 - struct.unpack("<f", struct.pack("<I", f2u(1.4426950408889634)))[0])
    LN2 = f2u(0.6931471805599453)
    a(f"""
    s_sub_u32 s43, s3, 2
    s_and_b32 s41, s43, 1
    s_bfe_u32 s45, s43, 0x10001
    s_lshl_b32 s40, s2, 1
    s_add_u32 s40, s40, s45
    s_add_u32 s46, s40, {512 - 448}      ; 512 + 2*(wg-224) + p
    s_lshl_b32 s42, s43, 12
    s_add_u32 s47, s42, {L_SCR}
    s_cmp_ge_u32 s43, 4
    s_cselect_b32 s40, s46, s40          ; channel
    s_cselect_b32 s42, s42, s47
    s_lshl_b32 s45, s40, 7
    s_lshl_b32 s46, s41, 6
    s_add_u32 s45, s45, s46
    v_add_u32 v2, s45, v0
    v_lshlrev_b32 v2, 1, v2
    s_lshl_b32 s45, s40, 1
    v_mov_b32 v3, s45
    v_mov_b32 v10, 0
    v_lshl_add_u32 v11, v0, 2, v23
    s_waitcnt lgkmcnt(0)
    global_load_ushort v4, v3, s[20:21]
    global_load_ushort v6, v2, s[12:13]
    global_load_ushort v7, v2, s[14:15]
    global_load_ushort v8, v2, s[16:17]
    global_load_ushort v9, v2, s[18:19]
    global_load_ushort v5, v3, s[22:23]
    s_cmp_lg_u32 s43, 0
    s_cbranch_scc1 k1_k_noz
    ds_write_b32 v11, v10
    s_waitcnt lgkmcnt(0)
k1_k_noz:
    s_barrier
    """)
    if "nokgen" in OPT: a("s_endpgm")
    srd(a, 36, 24, WS_END)
    a(f"""
    v_lshlrev_b32 v10, 6, v0
    v_bfe_u32 v11, v0, 1, 2
    v_lshl_add_u32 v10, v11, 4, v10
    v_add_u32 v10, s42, v10
    v_xor_b32 v11, 16, v10
    v_xor_b32 v12, 32, v10
    v_xor_b32 v13, 48, v10
    v_lshrrev_b32 v14, 5, v0             ; hf
    v_bfe_u32 v15, v0, 2, 2              ; r
    v_lshl_add_u32 v14, v14, 3, v15
    v_lshlrev_b32 v14, 6, v14
    v_bfe_u32 v16, v0, 4, 1
    v_bfe_u32 v17, v0, 1, 1
    v_lshl_add_u32 v16, v16, 1, v17      ; octet
    v_lshrrev_b32 v15, 1, v15
    v_xor_b32 v16, v16, v15
    v_lshl_add_u32 v14, v16, 4, v14
    v_and_b32 v15, 1, v0
    v_lshl_add_u32 v14, v15, 3, v14
    v_add_u32 v18, s42, v14
    v_xor_b32 v19, 32, v18               ; (q=1)
    s_mov_b32 s50, {L2E:#x}
    s_mov_b32 s51, {L2E_LO:#x}
    s_mov_b32 s52, {LN2:#x}
    s_mov_b32 s53, {f2u(248.0):#x}
    s_mov_b32 s54, {f2u(8.0):#x}
    v_mov_b32 v64, 1.0
    v_mov_b32 v65, 0
    s_waitcnt vmcnt(0)
    """)
    stamp(a, 3)
    def exp_bf16(x, t, lo):
        a(f"""
        v_mul_f32 v{t}, s50, v{x}
        v_fma_f32 v{lo}, v{x}, s50, -v{t}
        v_exp_f32 v{t}, v{t}
        v_fma_f32 v{lo}, v{x}, s51, v{lo}
        v_mul_f32 v{lo}, s52, v{lo}
        v_fma_f32 v{t}, v{t}, v{lo}, v{t}
        v_cvt_pk_bf16_f32 v{t}, v{t}, v{t}
        v_lshlrev_b32 v{x}, 16, v{t}
        """)
    for r in range(4, 10): a(f"v_lshlrev_b32 v{r}, 16, v{r}")
    exp_bf16(4, 20, 21)
    exp_bf16(6, 20, 21)
    a(f"""
    v_mul_f32 v6, v6, v4
    v_mul_f32 v7, v7, v4
    v_mul_f32 v8, v8, v4
    v_mul_f32 v9, v9, v4
    v_mul_f32 v6, s50, v6                ; -Re(z)*log2e
    v_mul_f32 v7, 0.15915494, v7         ; Im(z)/(2pi)
    v_add_f32 v8, v8, v8
    v_mul_f32 v9, -2.0, v9
    """)
    DL = [8, 1, 2, 4, 248]
    DS = {8: "s54", 1: "1.0", 2: "2.0", 4: "4.0", 248: "s53"}
    MR = {d: 24 + 2*i for i, d in enumerate(DL)}
    def mkE(d):
        a(f"""
        v_mul_f32 v21, {DS[d]}, v6
        v_mul_f32 v22, {DS[d]}, v7
        v_exp_f32 v21, -v21
        v_fract_f32 v22, v22
        v_cos_f32 v20, v22
        v_sin_f32 v22, v22
        v_mul_f32 v{MR[d]}, v21, v20
        v_mul_f32 v{MR[d]+1}, v21, v22
        """)
    def step(cur, nxt, W, conj):
        n = "-" if conj else ""; p = "" if conj else "-"
        a(f"""v_mul_f32 v{nxt}, v{cur}, v{W}
        v_mul_f32 v{nxt+1}, v{cur+1}, v{W}
        v_fma_f32 v{nxt}, {p}v{cur+1}, v{W+1}, v{nxt}
        v_fma_f32 v{nxt+1}, {n}v{cur}, v{W+1}, v{nxt+1}""")
    def pack_write(slots, comp, pk):
        for g in range(4):
            for t in range(4):
                lo, hi = slots[8*g+2*t], slots[8*g+2*t+1]
                a(f"v_cvt_pk_bf16_f32 v{pk+4*g+t}, v{64+2*lo+comp}, v{64+2*hi+comp}")
            a(f"ds_write_b128 v{10+g}, {vr(pk+4*g,4)}")
    def tr_reads(dst):
        for ks in range(4):
            for q in range(2):
                a(f"ds_read_b64_tr_b16 {vr(dst+4*ks+2*q,2)}, v{18+q} offset:{ks*1024+q*256}")
    mkE(8)
    for z in range(31): step(64+2*z, 66+2*z, MR[8], False)
    pack_write(list(range(32)), 0, 40); tr_reads(128)
    for d in DL[1:3]: mkE(d)
    pack_write(list(range(32)), 1, 40); tr_reads(144)
    for d in DL[3:]: mkE(d)
    a("v_mov_b32 v64, v8\nv_mov_b32 v65, v9")
    deltas = [1]*8 + [248] + [2]*4 + [248] + [4]*2 + [248] + [4]*2 + [248, 8, 248, 8, 248, 8, 248, 8]
    for z in range(27): step(64+2*z, 66+2*z, MR[deltas[z]], True)
    z0 = list(range(9)) + [14,15,16,20,21,24,25]
    z1 = [9,9,10,11,11,11,12,13,13,17,18,19,22,23,26,27]
    slots = [(z1 if (rho >> 2) & 1 else z0)[(rho & 3) + 4*(rho >> 3)] for rho in range(32)]
    pack_write(slots, 0, 40); tr_reads(24)
    pack_write(slots, 1, 40)
    a("s_waitcnt lgkmcnt(4)")
    tr_reads(64)
    for ks in range(4):
        a(f"v_mfma_f32_32x32x16_bf16 v[96:111], {vr(24+4*ks,4)}, {vr(128+4*ks,4)}, " + ("0" if ks == 0 else "v[96:111]"))
    for ks in range(4):
        a(f"s_waitcnt lgkmcnt({6-2*ks})")
        a(f"v_mfma_f32_32x32x16_bf16 v[96:111], {vr(64+4*ks,4)}, {vr(144+4*ks,4)}, v[96:111]")
    stamp(a, 5)
    a(f"""
    v_lshlrev_b32 v20, 4, v0
    s_or_b32 s45, s42, 4096
    v_add_u32 v20, s45, v20
    s_lshr_b32 s45, s43, 1
    s_lshl_b32 s45, s45, 2
    v_add_u32 v22, s45, v23
    v_mov_b32 v21, 1
    s_cmp_eq_u32 s41, 0
    s_cbranch_scc1 k1_k_even
    s_nop 7
    ds_write_b128 v20, v[96:99]
    ds_write_b128 v20, v[100:103] offset:1024
    ds_write_b128 v20, v[104:107] offset:2048
    ds_write_b128 v20, v[108:111] offset:3072
    ds_write_b32 v22, v21 offset:32
    {"s_branch k1_k_end" if "notask" in OPT else ""}
    s_cmp_eq_u32 s43, 1
    s_cbranch_scc1 k1_h_u0
    s_cmp_eq_u32 s43, 3
    s_cbranch_scc0 k1_k_end
    s_cmp_lt_u32 s2, 32
    s_cbranch_scc1 k1_h_u1
    s_cmp_lt_u32 s2, 113
    s_cbranch_scc0 k1_k_end
    s_sub_u32 s44, s2, 32
    s_mul_i32 s45, s44, 57
    s_lshr_b32 s45, s45, 9
    s_mul_i32 s46, s45, 9
    s_sub_u32 s46, s44, s46              ; ob
    v_lshrrev_b32 v10, 3, v0
    s_lshl_b32 s47, s45, 3
    v_add_u32 v11, s47, v10              ; rg
    v_lshrrev_b32 v12, 1, v11            ; ks
    v_and_b32 v13, 1, v11                ; hf
    v_mul_u32_u24 v14, 18, v12
    v_lshl_add_u32 v14, v13, 2, v14
    v_mul_u32_u24 v15, 72, v10
    v_add_u32 v15, 16, v15
    s_cmp_eq_u32 s45, 8
    s_cselect_b64 vcc, -1, 0
    s_cselect_b32 s50, 18, 2
    s_cselect_b32 s52, 36, 8
    s_cselect_b32 s54, 54, 10
    s_mul_i32 s50, s50, 1152
    s_mul_i32 s52, s52, 1152
    s_mul_i32 s54, s54, 1152
    v_cndmask_b32 v14, v14, v15, vcc
    v_mul_u32_u24 v14, 1152, v14
    v_and_b32 v15, 7, v0
    s_lshl_b32 s47, s46, 3
    v_add_u32 v15, s47, v15              ; oct
    v_lshl_add_u32 v16, v15, 4, v14
    v_lshrrev_b32 v14, 2, v15
    v_mul_u32_u24 v14, {O_T}, v14
    v_lshl_add_u32 v14, v12, 10, v14
    v_lshl_add_u32 v14, v13, 9, v14
    v_and_b32 v15, 3, v15
    v_lshl_add_u32 v17, v15, 7, v14
    s_mov_b32 s60, {WS_WO}
    s_mov_b32 s61, 16
    s_mov_b32 s28, s8
    s_mov_b32 s29, s9
    s_mov_b32 s30, 663552
    s_branch k1_h_ld
k1_h_u1:
    s_add_u32 s44, s2, 256
    s_branch k1_h_u
k1_h_u0:
    s_mov_b32 s44, s2
k1_h_u:
    s_mul_i32 s45, s44, 7282
    s_lshr_b32 s45, s45, 16
    s_mul_i32 s46, s45, 9
    s_sub_u32 s46, s44, s46              ; ob
    s_lshr_b32 s47, s45, 1               ; B
    s_and_b32 s45, s45, 1                ; es
    v_bfe_u32 v10, v0, 1, 2
    s_lshl_b32 s48, s47, 2
    v_add_u32 v10, s48, v10              ; blk
    v_and_b32 v11, 1, v0                 ; h
    v_lshl_add_u32 v12, v10, 2, v11
    s_lshl_b32 s48, s45, 1
    v_add_u32 v12, s48, v12              ; g
    v_mul_u32_u24 v14, 9216, v12
    v_lshrrev_b32 v15, 3, v0
    s_lshl_b32 s48, s46, 3
    v_add_u32 v15, s48, v15              ; oct
    v_lshl_add_u32 v16, v15, 4, v14
    v_lshlrev_b32 v14, 15, v15
    v_lshl_add_u32 v14, v10, 5, v14
    v_lshl_add_u32 v17, v11, 4, v14
    s_mov_b32 s50, {2*1152}
    s_mov_b32 s52, {4*1152}
    s_mov_b32 s54, {6*1152}
    s_lshl_b32 s60, s45, 11
    s_add_u32 s60, s60, {WS_U}
    s_mov_b32 s61, 4096
    s_mov_b32 s28, s10
    s_mov_b32 s29, s11
    s_mov_b32 s30, 2359296
k1_h_ld:
    s_mov_b32 s31, 0x20000
    buffer_load_dwordx4 v[24:27], v16, s[28:31], 0 offen
    buffer_load_dwordx4 v[28:31], v16, s[28:31], 0 offen offset:1152
    buffer_load_dwordx4 v[32:35], v16, s[28:31], s50 offen
    buffer_load_dwordx4 v[36:39], v16, s[28:31], s50 offen offset:1152
    buffer_load_dwordx4 v[40:43], v16, s[28:31], s52 offen
    buffer_load_dwordx4 v[44:47], v16, s[28:31], s52 offen offset:1152
    buffer_load_dwordx4 v[48:51], v16, s[28:31], s54 offen
    buffer_load_dwordx4 v[52:55], v16, s[28:31], s54 offen offset:1152
    s_mov_b32 s50, 0x05040100
    s_mov_b32 s51, 0x07060302
    s_waitcnt vmcnt(0)
    """)
    transpose8(a, 24, 128, 50, 51)
    a("s_cmp_eq_u32 s61, 16\ns_cbranch_scc1 k1_h_stw")
    for c in range(8):
        a(f"buffer_store_dwordx4 {vr(128+4*c,4)}, v17, s[36:39], s60 offen {STU}")
        if c < 7: a("s_add_u32 s60, s60, s61")
    a("s_branch k1_k_end")
    a.l.append("k1_h_stw:")
    for c in range(8):
        a(f"buffer_store_dwordx4 {vr(128+4*c,4)}, v17, s[36:39], s60 offen offset:{16*c}")
    a(f"""
    s_branch k1_k_end
k1_k_even:
    {"s_branch k1_k_end" if "nokst" in OPT else ""}
    v_cmp_eq_u32 vcc, 0, v0
    v_sub_u32 v21, 63, v0
    v_lshlrev_b32 v21, 4, v21
    v_cndmask_b32 v5, 0, v5, vcc
    s_mul_i32 s44, s40, {KRCH}
    s_add_u32 s44, s44, {WS_KR}
    s_add_u32 s45, s44, {KRC}
k1_k_poll:
    ds_read_b32 v10, v22 offset:32
    s_waitcnt lgkmcnt(0)
    v_cmp_ne_u32 vcc, 0, v10
    s_cbranch_vccz k1_k_poll
    ds_read_b128 v[80:83], v20
    ds_read_b128 v[84:87], v20 offset:1024
    ds_read_b128 v[88:91], v20 offset:2048
    ds_read_b128 v[92:95], v20 offset:3072
    v_and_b32 v22, 1, v0
    v_cmp_eq_u32 vcc, 1, v22             ; b odd
    s_waitcnt lgkmcnt(0)
    """)
    for i in range(16): a(f"v_add_f32 v{64+i}, v{96+i}, v{80+i}")
    a("v_add_f32 v64, v64, v5")
    d = lambda r: f"v{64+r}"
    a(f"v_cndmask_b32 v96, {d(12)}, {d(13)}, vcc\nv_cndmask_b32 v97, {d(14)}, {d(15)}, vcc")
    units = [
      (0, 0, [(7,6),(5,4),(3,2),(1,0)]), (0, 1, [(8,7),(6,5),(4,3),(2,1)]),
      (1, 0, [(11,11),(10,10),(10,9),(9,9)]), (1, 1, [(11,11),(11,10),(10,10),(9,9)]),
      (2, 0, [(13,13),(13,32),(12,12),(12,12)]), (2, 1, [(13,13),(13,13),(32,12),(12,12)]),
      (3, 0, [(15,15),(15,33),(14,14),(14,14)]), (3, 1, [(15,15),(15,15),(33,14),(14,14)]),
    ]
    for ui, (G, cp, prs) in enumerate(units):
        o = 100 + 4*ui
        for t, (lo, hi) in enumerate(prs):
            a(f"v_cvt_pk_bf16_f32 v{o+t}, {d(lo)}, {d(hi)}")
        a(f"buffer_store_dwordx4 {vr(o,4)}, v21, s[36:39], s{44+cp} offen offset:{(3-G)*1024} {STK}")
    a(f"""
    v_mov_b32 v81, 0
    v_cvt_pk_bf16_f32 v80, v64, v81
    v_mov_b32 v82, 0
    v_mov_b32 v83, 0
    v_mov_b32 v84, 0
    v_mov_b32 v85, 0
    v_mov_b32 v86, 0
    v_mov_b32 v87, 0
    v_cmp_eq_u32 vcc, 0, v0
    v_lshlrev_b32 v21, 4, v0
    v_add_u32 v21, 4096, v21
    v_cndmask_b32 v80, 0, v80, vcc
    s_mov_b64 exec, 15
    buffer_store_dwordx4 v[84:87], v21, s[36:39], s44 offen {STK}
    buffer_store_dwordx4 v[80:83], v21, s[36:39], s45 offen {STK}
    s_mov_b64 exec, -1
k1_k_end:
    """)
    stamp(a, 6); a("s_waitcnt vmcnt(0)") if INSTR else None
    stamp_out(a, 0)
    a.l.append("k1_done:")
    a("s_endpgm")
    a.l.append(kdesc("k1_kernel", 160))

L_KT = 65536
L_V = 81920
def k2(a):
    khead(a, "k2_kernel")
    S = [0, 16]; O = 32; NEG = 48; P = 64; KF = [72, 76]; TF = [80, 84]; VF = [88, 96]; Q = 104; QL = 108; QH = 110
    vK, vT, vV = 112, 113, 114
    a(f"""
    s_cmp_ge_u32 s2, 256
    s_cbranch_scc1 k2_done
    s_load_dwordx2 s[24:25], s[0:1], 96
    v_lshrrev_b32 v1, 6, v0
    v_and_b32 v116, 63, v0
    v_readfirstlane_b32 s3, v1
    s_cmp_ge_u32 s3, 8
    s_cbranch_scc1 k2_conv
    s_and_b32 s4, s2, 31                 ; h
    s_lshr_b32 s5, s2, 5
    s_lshl_b32 s5, s5, 3
    s_add_u32 s5, s5, s3
    s_lshr_b32 s6, s4, 1
    s_mul_i32 s6, s6, 2304               ; pair*9*256
    s_and_b32 s7, s4, 1                  ; odd
    s_mul_i32 s8, s7, 1280
    s_add_u32 s8, s8, s6
    s_add_u32 s9, s6, 1024
    s_mul_i32 s10, s5, {QK_T}
    s_add_u32 s11, s10, s8
    s_add_u32 s12, s10, s9
    v_lshlrev_b32 v{vK}, 3, v116         ; lane*8
    v_and_b32 v117, 31, v116
    v_lshlrev_b32 v118, 3, v117
    v_lshlrev_b32 v119, 4, v116          ; lane*16
    v_lshrrev_b32 v120, 4, v116
    s_mov_b32 s13, {QK_T}
    v_mul_lo_u32 v120, v120, s13
    v_and_b32 v121, 15, v116
    v_lshl_add_u32 v120, v121, 4, v120
    s_mul_i32 s14, s3, {QK_T}
    s_add_u32 s14, s14, s8
    s_add_u32 s14, s14, {144*256}
    s_mul_i32 s15, s4, {V_H}
    s_lshl_b32 s16, s3, 10               ; w*1024
    s_add_u32 s15, s15, s16
    s_add_u32 s15, s15, {WS_V}           ; V piece w
    s_mul_i32 s17, s3, {4*QK_T}
    s_add_u32 s17, s17, s9
    s_add_u32 s17, s17, {144*256}
    s_waitcnt lgkmcnt(0)
    """)
    stamp(a, 1)
    srd(a, 36, 24, WS_END)
    a(f"""
    buffer_load_dwordx2 v[{Q}:{Q+1}], v{vK}, s[36:39], s11 offen
    buffer_load_dwordx2 v[{Q+2}:{Q+3}], v{vK}, s[36:39], s11 offen offset:512
    buffer_load_dwordx2 v[{QL}:{QL+1}], v118, s[36:39], s12 offen
    """)
    def dK(j): a(f"s_add_u32 m0, s16, {j*8192}\n" + (f"s_add_u32 s14, s14, {8*QK_T}\n" if j else "s_nop 0\n") + "buffer_load_dwordx4 v119, s[36:39], s14 offen lds")
    def dV(j): a(f"s_add_u32 m0, s16, {L_V + j*8192}\n" + (f"s_add_u32 s15, s15, 8192\n" if j else "s_nop 0\n") + "buffer_load_dwordx4 v119, s[36:39], s15 offen lds")
    def dT(j): a(f"s_add_u32 m0, s16, {L_KT + j*8192}\n" + (f"s_add_u32 s17, s17, {32*QK_T}\n" if j else "s_nop 0\n") + "buffer_load_dwordx4 v120, s[36:39], s17 offen lds")
    dK(0); dV(0); dT(0); dV(1); dK(1)
    stamp(a, 2)
    for i in range(16): a(f"v_mov_b32 v{O+i}, 0")
    for i in range(4): a(f"v_mov_b32 v{P+4+i}, 0")
    if "noprio" not in OPT: a("s_setprio 2")
    a(f"""v_and_b32 v121, 27, v116
    v_cmp_eq_u32 vcc, 18, v121
    v_mov_b32 v121, 0x3f803f80
    s_nop 0
    v_cndmask_b32 v{VF[0]}, 0, v121, vcc""")
    for i in range(1, 16): a(f"v_mov_b32 v{VF[0]+i}, v{VF[0]}")
    a(f"""
    v_add_u32 v{vT}, {L_KT}, v{vK}
    v_lshrrev_b32 v121, 5, v116
    v_mul_u32_u24 v121, 288, v121
    v_lshl_add_u32 v{vV}, v117, 4, v121
    v_add_u32 v{vV}, {L_V}, v{vV}
    s_mov_b32 s18, 0x3ffff
    s_mov_b32 s19, 0x3ffff
    s_mov_b32 s21, {f2u(18**-0.5 * 1.4426950408889634):#x}
    v_cmp_lt_u32 s[22:23], 31, v116
    s_waitcnt vmcnt(5)
    """)
    for r in list(range(Q, Q+4)) + [QL, QL+1]:
        a(f"""v_lshlrev_b32 v121, 16, v{r}
        v_and_b32 v{r}, 0xffff0000, v{r}
        v_mul_f32 v121, s21, v121
        v_mul_f32 v{r}, s21, v{r}
        v_cvt_pk_bf16_f32 v{r}, v121, v{r}""")
    a(f"""
    s_cmp_eq_u32 s7, 0
    s_cselect_b64 vcc, -1, 0
    v_cndmask_b32 v{QL}, 0, v{QL}, vcc
    v_cndmask_b32 v{QL+1}, v{QL+1}, 0, vcc
    v_cndmask_b32 v{QH}, 0, v{QL}, s[22:23]
    v_cndmask_b32 v{QH+1}, 0, v{QL+1}, s[22:23]
    v_cndmask_b32 v{QL}, v{QL}, 0, s[22:23]
    v_cndmask_b32 v{QL+1}, v{QL+1}, 0, s[22:23]
    s_waitcnt vmcnt(0)
    s_barrier
    """)
    stamp(a, 3)
    def rdK(buf, t): a(f"ds_read2st64_b64 {vr(KF[buf],4)}, v{vK} offset0:{2*t} offset1:{2*t+1}")
    def rdT(buf, q): a(f"ds_read2st64_b64 {vr(TF[buf],4)}, v{vT} offset0:{2*q} offset1:{2*q+1}")
    def rdV(buf, t):
        a(f"""s_mov_b64 exec, s[18:19]
        ds_read_b128 {vr(VF[buf],4)}, v{vV} offset:{t*1152}
        ds_read_b128 {vr(VF[buf]+4,4)}, v{vV} offset:{t*1152+576}
        s_mov_b64 exec, -1""")
    def qk_tail(t, tb):
        tt = t & 3
        a(f"v_mfma_f32_32x32x8_bf16 {vr(S[t&1],16)}, {vr(TF[tb]+2*(tt>>1),2)}, {vr(QH if tt&1 else QL,2)}, {vr(S[t&1],16)}")
    def pv(t, half): a(f"v_mfma_f32_32x32x16_bf16 {vr(O,16)}, {vr(VF[t&1]+4*half,4)}, {vr(P+4*half,4)}, {vr(O,16)}")
    def ex(t, r0, r1):
        for r in range(r0, r1): a(f"v_exp_f32 v{S[t&1]+r}, v{S[t&1]+r}")
    def cv(t, c0, c1):
        for c in range(c0, c1): a(f"v_cvt_pk_bf16_f32 v{P+c}, v{S[t&1]+2*c}, v{S[t&1]+2*c+1}")
    def run(fast):
        tag = "k2f" if fast else "k2s"
        def qk_main(t): a(f"v_mfma_f32_32x32x16_bf16 {vr(S[t&1],16)}, {vr(KF[t&1],4)}, {vr(Q,4)}, " + ("0" if fast else vr(NEG,16)))
        rdK(0, 0); rdT(0, 0); rdK(1, 1); rdV(0, 0)
        if not fast:
            for i in range(16): a(f"v_mov_b32 v{O+i}, 0")
            for i in range(4): a(f"v_mov_b32 v{P+4+i}, 0")
        a("s_mov_b32 s26, 0\ns_waitcnt lgkmcnt(3)")
        qk_main(0); qk_tail(0, 0)
        a("s_nop 7\ns_nop 3")
        a(".p2align 6")
        a.l.append(f"{tag}_loop:")
        for t in range(8):
            if fast and t == 4:
                a(f"""s_cmp_lg_u32 s26, 1
                s_cbranch_scc1 {tag}_nobar""")
                stamp(a, 4)
                a("s_barrier")
                stamp(a, 5)
                a.l.append(f"{tag}_nobar:")
                if "noprio" not in OPT:
                    a(f"""s_cmp_lg_u32 s26, 6
                    s_cbranch_scc1 {tag}_np1
                    s_setprio 1""")
                    a.l.append(f"{tag}_np1:")
            if fast and t == 6 and "noprio" not in OPT:
                a(f"""s_cmp_lg_u32 s26, 7
                s_cbranch_scc1 {tag}_np0
                s_setprio 0""")
                a.l.append(f"{tag}_np0:")
            a("s_waitcnt lgkmcnt(0)")
            qk_main(t+1)
            rdK(t&1, t+2)
            if (t & 3) == 1: rdT(((t>>2)+1)&1, (t>>2)+1)
            ex(t, 0, 4)
            pv(t-1, 1)
            rdV((t+1)&1, t+1)
            ex(t, 4, 8); cv(t, 0, 4)
            qk_tail(t+1, ((t+1)>>2)&1)
            ex(t, 8, 12)
            pv(t, 0)
            if t == 7:
                a(f"""v_add_u32 v{vK}, 8192, v{vK}
                v_add_u32 v{vT}, 2048, v{vT}
                v_add_u32 v{vV}, 9216, v{vV}
                s_add_u32 s26, s26, 1
                s_cmp_lt_u32 s26, 8""")
            ex(t, 12, 16); cv(t, 4, 8)
        a(f"s_cbranch_scc1 {tag}_loop")
        if fast: stamp(a, 6)
        a("s_nop 1")
        pv(7, 1)
        a(f"""
        v_subrev_u32 v{vK}, 65536, v{vK}
        v_subrev_u32 v{vT}, 16384, v{vT}
        v_subrev_u32 v{vV}, {8*9216}, v{vV}
        s_waitcnt lgkmcnt(0)
        s_nop 15
        """)
    run(True)
    a(f"""
    v_max3_f32 v121, abs(v{O}), abs(v{O+1}), abs(v{O+2})
    v_max3_f32 v121, abs(v{O+3}), abs(v{O+4}), v121
    v_max3_f32 v121, abs(v{O+5}), abs(v{O+6}), v121
    v_max3_f32 v121, abs(v{O+7}), abs(v{O+8}), v121
    v_add_f32 v122, v{O}, v{O+1}
    v_add_f32 v123, v{O+2}, v{O+3}
    v_add_f32 v124, v{O+4}, v{O+5}
    v_add_f32 v125, v{O+6}, v{O+7}
    v_add_f32 v126, v{O+8}, v{O+9}
    v_add_f32 v122, v122, v123
    v_add_f32 v124, v124, v125
    v_add_f32 v122, v122, v126
    v_add_f32 v122, v122, v124
    v_max3_f32 v121, abs(v{O+9}), v{O+10}, v121
    s_mov_b32 s27, {f2u(2.0**100):#x}
    v_cmp_ngt_f32 vcc, s27, v121
    v_cmp_nle_f32 s[28:29], 1.0, v{O+10}
    v_cmp_u_f32 s[30:31], v122, v122
    s_or_b64 vcc, vcc, s[28:29]
    s_or_b64 vcc, vcc, s[30:31]
    s_cbranch_vccz k2_fin
    s_mov_b32 s26, 0
    v_mov_b32 v121, 0xff800000
k2_mx:
    """)
    rdT(0, 0)
    for t in range(4):
        rdK(0, t)
        a("s_waitcnt lgkmcnt(0)")
        a(f"v_mfma_f32_32x32x16_bf16 {vr(S[0],16)}, {vr(KF[0],4)}, {vr(Q,4)}, 0")
        a(f"v_mfma_f32_32x32x8_bf16 {vr(S[0],16)}, {vr(TF[0]+2*(t>>1),2)}, {vr(QH if t&1 else QL,2)}, {vr(S[0],16)}")
        a("s_nop 15")
        for r in range(8): a(f"v_max3_f32 v121, v{S[0]+2*r}, v{S[0]+2*r+1}, v121")
    a(f"""
    v_add_u32 v{vK}, 4096, v{vK}
    v_add_u32 v{vT}, 1024, v{vT}
    s_add_u32 s26, s26, 1
    s_cmp_lt_u32 s26, 16
    s_cbranch_scc1 k2_mx
    v_subrev_u32 v{vK}, 65536, v{vK}
    v_subrev_u32 v{vT}, 16384, v{vT}
    v_mov_b32 v122, v121
    s_nop 1
    v_permlane32_swap_b32 v121, v122
    s_nop 1
    v_max_f32 v121, v121, v122
    """)
    for i in range(16): a(f"v_sub_f32 v{NEG+i}, 0, v121")
    run(False)
    a(f"""
k2_fin:
    v_rcp_f32 v121, v{O+10}
    s_mul_i32 s10, s5, {O_T}
    s_add_u32 s10, s10, {WS_O}
    s_lshl_b32 s11, s4, 10
    s_add_u32 s11, s11, s10
    s_lshr_b32 s12, s4, 2
    s_lshl_b32 s12, s12, 9
    s_and_b32 s13, s4, 3
    s_lshl_b32 s13, s13, 2
    s_add_u32 s12, s12, s13
    s_add_u32 s12, s12, s10
    s_add_u32 s12, s12, 32768
    """)
    for r in range(10): a(f"v_mul_f32 v{O+r}, v{O+r}, v121")
    for c in range(5): a(f"v_cvt_pk_bf16_f32 v{P+c}, v{O+2*c}, v{O+2*c+1}")
    a(f"""
    buffer_store_dwordx4 {vr(P,4)}, v119, s[36:39], s11 offen {ST2}
    s_mov_b32 exec_hi, 0
    buffer_store_dword v{P+4}, v119, s[36:39], s12 offen {ST2}
    """)
    stamp_out(a, 1)
    a("s_endpgm")
    a.l.append("k2_conv:")
    a(f"""
    s_and_b32 s4, s2, 31                 ; h
    s_lshr_b32 s6, s4, 1
    s_mul_i32 s6, s6, 2304
    s_and_b32 s7, s4, 1
    s_mul_i32 s8, s7, 1280
    s_add_u32 s8, s8, s6
    s_add_u32 s8, s8, {144*256 + 16*QK_T}          ; K main
    s_add_u32 s9, s6, {1024 + 144*256 + 32*QK_T}   ; K tail
    s_mul_i32 s10, s4, {V_H}
    s_add_u32 s10, s10, {WS_V + 16384}             ; V
    v_lshlrev_b32 v119, 4, v116
    v_lshrrev_b32 v120, 4, v116
    s_mov_b32 s13, {QK_T}
    v_mul_lo_u32 v120, v120, s13
    v_and_b32 v121, 15, v116
    v_lshl_add_u32 v120, v121, 4, v120
    s_mov_b32 s11, {QK_T}
    s_mov_b32 s12, 48
    s_mov_b32 m0, 16384
    s_sub_u32 s14, s3, 9
    s_mul_i32 s14, s14, {14*1024}
    s_add_u32 s10, s10, s14
    s_add_u32 s14, s14, {L_V + 16384}
    s_bitcmp1_b32 s3, 0
    s_cselect_b32 s8, s10, s8
    s_cselect_b32 s11, 1024, s11
    s_cselect_b32 s12, 28, s12
    s_cselect_b32 m0, s14, m0
    s_cmp_eq_u32 s3, 10
    s_cselect_b32 s8, s9, s8
    s_cselect_b32 s11, {4*QK_T}, s11
    s_cselect_b32 s12, 8, s12
    s_cselect_b32 m0, {L_KT + 8192}, m0
    s_cselect_b64 vcc, -1, 0
    v_cndmask_b32 v119, v119, v120, vcc
    s_waitcnt lgkmcnt(0)
    """)
    srd(a, 36, 24, WS_END)
    a(f"""
    s_barrier
k2_ld:
    buffer_load_dwordx4 v119, s[36:39], s8 offen lds
    s_add_u32 m0, m0, 1024
    s_add_u32 s8, s8, s11
    s_sub_u32 s12, s12, 1
    s_cmp_lg_u32 s12, 0
    s_cbranch_scc1 k2_ld
    s_setprio 3
    s_and_b32 s4, s2, 7                  ; x
    s_lshr_b32 s5, s2, 3                 ; idx
    s_sub_u32 s6, s3, 8
    s_lshl_b32 s6, s6, 5
    s_add_u32 s6, s6, s5                 ; slot
    s_sub_u32 s7, s6, 72
    s_lshl_b32 s7, s7, 1
    s_cmp_lt_u32 s6, 72
    s_cselect_b32 s7, s6, s7
    s_cselect_b32 s20, 0, 8
    s_cselect_b32 s21, 0, 2048
    s_cselect_b32 s22, 1024, 0
    s_cselect_b32 s23, -1, 0
    s_lshl_b32 s8, s7, 3
    s_add_u32 s8, s8, s4                 ; channel
    s_mul_i32 s9, s8, {KRCH}
    s_add_u32 s9, s9, {WS_KR + 2048}     ; A1
    s_lshl_b32 s10, s8, 12
    s_add_u32 s10, s10, s22
    s_add_u32 s10, s10, {WS_U - 31*32}   ; B1
    s_add_u32 s8, s8, s20
    s_mul_i32 s17, s8, {KRCH}
    s_add_u32 s17, s17, s21
    s_add_u32 s17, s17, {WS_KR}          ; A2
    s_lshl_b32 s18, s8, 12
    s_add_u32 s18, s18, {WS_U - 31*32}   ; B2
    s_mov_b32 s11, 31                    ; k
    v_and_b32 v117, 31, v116             ; rho / a'
    v_lshrrev_b32 v118, 5, v116          ; h
    v_and_b32 v119, 16, v117
    v_bfe_u32 v120, v117, 2, 1
    v_lshl_add_u32 v119, v120, 3, v119
    v_and_b32 v120, 3, v117
    v_lshl_add_u32 v119, v120, 1, v119
    v_bfe_u32 v120, v117, 3, 1           ; parity
    v_lshlrev_b32 v121, 3, v118
    v_sub_u32 v121, v121, v119
    v_add_u32 v121, 30, v121
    v_lshlrev_b32 v121, 1, v121
    v_xor_b32 v120, 1, v120
    v_mul_u32_u24 v120, {KRC+4}, v120
    v_add_u32 v112, v121, v120           ; vA
    v_lshlrev_b32 v113, 5, v117
    v_lshl_add_u32 v113, v118, 4, v113   ; vB
    """)
    CD = int(OPT.get("cd", 4))
    for i in range(32): a(f"v_mov_b32 v{i}, 0")
    for buf in range(CD):
        for i in list(range(4, 8)) + list(range(12, 16)): a(f"v_mov_b32 v{32+16*buf+i}, 0")
    a("s_waitcnt vmcnt(0)\ns_barrier")
    a("""s_cmp_ge_u32 s6, 108
    s_cbranch_scc1 k2_done""")
    if "noconv" in OPT: a("s_endpgm")
    stamp(a, 3)
    def cload1(buf, es):
        b = 32 + 16*buf
        a(f"""buffer_load_dwordx4 {vr(b,4)}, v112, s[36:39], s9 offen
        s_lshl_b32 s12, -1, s11
        s_or_b32 exec_lo, s12, s23
        s_or_b32 exec_hi, s12, s23
        buffer_load_dwordx4 {vr(b+4,4)}, v113, s[36:39], s10 offen offset:{es*2048}
        s_mov_b64 exec, -1
        s_add_u32 s9, s9, 32""")
    def cload2(buf, es):
        b = 32 + 16*buf
        a(f"""buffer_load_dwordx4 {vr(b+8,4)}, v112, s[36:39], s17 offen
        s_mov_b32 exec_lo, s12
        s_mov_b32 exec_hi, s12
        buffer_load_dwordx4 {vr(b+12,4)}, v113, s[36:39], s18 offen offset:{es*2048}
        s_mov_b64 exec, -1
        s_add_u32 s17, s17, 32""")
        if es: a("s_add_u32 s10, s10, 32\ns_add_u32 s18, s18, 32\ns_sub_u32 s11, s11, 1")
    for buf in range(CD): cload1(buf, buf & 1); cload2(buf, buf & 1)
    a("s_mov_b32 s14, 0")
    a.l.append("k2_cloop:")
    for buf in range(CD):
        b = 32 + 16*buf
        a(f"""s_waitcnt vmcnt({4*CD-2})
        {"; " if "cnomfma" in OPT else ""}v_mfma_f32_32x32x16_bf16 v[0:15], {vr(b,4)}, {vr(b+4,4)}, v[0:15]""")
        cload1(buf, buf & 1)
        a(f"""s_waitcnt vmcnt({4*CD-2})
        {"; " if "cnomfma" in OPT else ""}v_mfma_f32_32x32x16_bf16 v[16:31], {vr(b+8,4)}, {vr(b+12,4)}, v[16:31]""")
        cload2(buf, buf & 1)
    a(f"""
    s_add_u32 s14, s14, 1
    s_cmp_lt_u32 s14, {64//CD}
    s_cbranch_scc1 k2_cloop
    v_lshl_add_u32 v114, v117, 2, v118   ; g = 4a'+hf
    v_mul_u32_u24 v114, 9216, v114
    s_mul_i32 s15, s4, 1152
    s_lshl_b32 s16, s7, 4
    s_add_u32 s15, s15, s16
    s_add_u32 s15, s15, {WS_Y}
    s_add_u32 s16, s15, {2*9216}
    s_nop 7
    s_cmp_lt_u32 s6, 72
    s_cbranch_scc0 k2_clow
    """)
    for r in range(16): a(f"v_add_f32 v{r}, v{r}, v{16+r}")
    a(f"s_add_u32 s15, s15, {128*9216}\ns_add_u32 s16, s16, {128*9216}\ns_branch k2_cst")
    a.l.append("k2_clow:")
    for u in range(2, 4):
        for r in range(4): a(f"v_cvt_pk_bf16_f32 v{96+4*u+r}, v{8*u+r}, v{8*u+r+4}")
        a(f"buffer_store_dwordx4 {vr(96+4*u,4)}, v114, s[36:39], s{15+(u&1)} offen offset:16 {ST2}")
    a.l.append("k2_cst:")
    for u in range(2):
        for r in range(4): a(f"v_cvt_pk_bf16_f32 v{96+4*u+r}, v{8*u+r}, v{8*u+r+4}")
        a(f"buffer_store_dwordx4 {vr(96+4*u,4)}, v114, s[36:39], s{15+(u&1)} offen {ST2}")
    stamp_out(a, 1)
    a.l.append("k2_done:")
    a("s_endpgm")
    a.l.append(kdesc("k2_kernel", 128))

def k3(a):
    khead(a, "k3_kernel")
    a(f"""
    s_cmp_ge_u32 s2, 240
    s_cbranch_scc1 k3_done
    s_load_dwordx2 s[22:23], s[0:1], 80
    s_load_dwordx2 s[24:25], s[0:1], 96
    v_lshrrev_b32 v1, 6, v0
    v_and_b32 v0, 63, v0
    v_readfirstlane_b32 s3, v1
    s_cmp_ge_u32 s2, 192
    s_cbranch_scc1 k3_tr
    s_and_b32 s4, s2, 7
    s_lshr_b32 s5, s2, 3                 ; idx 0..23
    s_and_b32 s6, s5, 3
    s_lshl_b32 s4, s4, 2
    s_add_u32 s4, s4, s6                 ; tm
    s_lshr_b32 s5, s5, 2                 ; tn
    s_lshl_b32 s6, s4, 1
    s_add_u32 s7, s6, s3
    s_mul_i32 s7, s7, {O_T}
    s_add_u32 s7, s7, {WS_O}
    s_mul_i32 s8, s5, 3
    s_add_u32 s9, s8, s3
    s_mul_i32 s9, s9, {O_T}
    s_add_u32 s9, s9, {WS_WO - 2*O_T}
    s_cmp_lt_u32 s3, 2
    s_cselect_b32 s7, s7, s9
    s_lshl_b32 s10, s3, 15
    ; compute tile: ta = w/3, tb = w%3
    s_cmp_ge_u32 s3, 3
    s_cselect_b32 s11, 1, 0
    s_mul_i32 s12, s11, 3
    s_sub_u32 s12, s3, s12
    s_add_u32 s13, s6, s11
    s_add_u32 s14, s8, s12               ; n tile
    s_mul_i32 s15, s13, {O_T}
    s_add_u32 s15, s15, {WS_O + 32768}
    s_mul_i32 s16, s14, {O_T}
    s_add_u32 s16, s16, {WS_WO + 32768}
    v_lshlrev_b32 v2, 4, v0
    s_lshl_b32 s17, s11, 15
    v_add_u32 v3, s17, v2
    s_add_u32 s17, s12, 2
    s_lshl_b32 s17, s17, 15
    v_add_u32 v4, s17, v2
    s_waitcnt lgkmcnt(0)
    """)
    stamp(a, 1)
    srd(a, 36, 24, WS_END)
    srd(a, 32, 22, 4718592)
    a("""s_cmp_eq_u32 s3, 5
    s_cbranch_scc1 k3_nodma
    s_mov_b32 m0, s10""")
    for g in range(8):
        if g: a("s_add_u32 m0, m0, 4096\ns_add_u32 s7, s7, 4096")
        else: a("s_nop 0")
        for q in range(4):
            a(f"buffer_load_dwordx4 v2, s[36:39], s7 offen offset:{q*1024} lds")
    a.l.append("k3_nodma:")
    for q in range(4):
        a(f"buffer_load_dwordx4 {vr(64+8*q,4)}, v2, s[36:39], s15 offen offset:{q*1024}")
        a(f"buffer_load_dwordx4 {vr(68+8*q,4)}, v2, s[36:39], s16 offen offset:{q*1024}")
    stamp(a, 2)
    for i in range(16): a(f"v_mov_b32 v{16+i}, 0")
    for c in range(4):
        a(f"s_waitcnt vmcnt({32-8*c})\ns_barrier")
        stamp(a, 3 if c == 0 else 5 if c == 3 else 7) if c in (0, 3) else None
        for k in range(8):
            ks = 8*c + k
            if k < 4:
                a(f"ds_read_b128 {vr(32+8*k,4)}, v3 offset:{ks*1024}\nds_read_b128 {vr(36+8*k,4)}, v4 offset:{ks*1024}")
        for k in range(8):
            ks = 8*c + k
            b = 32 + 8*(k & 3)
            a(f"s_waitcnt lgkmcnt({6 if k < 5 else 2*(7-k)})")
            a(f"v_mfma_f32_32x32x16_bf16 v[16:31], {vr(b,4)}, {vr(b+4,4)}, v[16:31]")
            if k < 4:
                a(f"ds_read_b128 {vr(b,4)}, v3 offset:{(ks+4)*1024}\nds_read_b128 {vr(b+4,4)}, v4 offset:{(ks+4)*1024}")
    a("s_waitcnt vmcnt(0)")
    for q in range(4):
        a(f"v_mfma_f32_32x32x16_bf16 v[16:31], {vr(64+8*q,4)}, {vr(68+8*q,4)}, v[16:31]")
    stamp(a, 4)
    a(f"""
    v_lshrrev_b32 v5, 5, v0
    v_mul_u32_u24 v5, {8*2304}, v5
    v_and_b32 v6, 31, v0
    v_lshl_add_u32 v5, v6, 1, v5
    s_mul_i32 s17, s13, {32*2304}
    s_lshl_b32 s18, s14, 6
    s_add_u32 s17, s17, s18
    s_nop 7
    s_nop 3
    """)
    for c in range(8):
        a(f"v_cvt_pk_bf16_f32 v{32+c}, v{16+2*c}, v{16+2*c+1}")
    for c in range(8):
        tok = (2*c & 7) + 16*(c >> 2)
        a(f"""s_add_u32 s18, s17, {tok*2304}
        buffer_store_short v{32+c}, v5, s[32:35], s18 offen
        buffer_store_short_d16_hi v{32+c}, v5, s[32:35], s18 offen offset:2304""")
    stamp(a, 6); a("s_waitcnt vmcnt(0)") if INSTR else None
    stamp_out(a, 2)
    a("s_endpgm")
    a.l.append("k3_tr:")
    a(f"""
    s_sub_u32 s4, s2, 192
    s_mul_i32 s4, s4, 6
    s_add_u32 s4, s4, s3                 ; task
    s_mul_i32 s5, s4, 7282
    s_lshr_b32 s5, s5, 16                ; gb
    s_mul_i32 s6, s5, 9
    s_sub_u32 s6, s4, s6                 ; ob
    v_lshrrev_b32 v2, 3, v0
    s_lshl_b32 s7, s5, 3
    v_add_u32 v2, s7, v2                 ; g
    v_and_b32 v3, 7, v0
    s_lshl_b32 s7, s6, 3
    v_add_u32 v3, s7, v3                 ; oct
    v_mul_u32_u24 v4, 9216, v2
    v_lshl_add_u32 v4, v3, 4, v4
    v_mul_u32_u24 v5, {8*2304}, v2
    v_lshl_add_u32 v5, v3, 4, v5
    s_mov_b32 s8, {WS_Y}
    s_mov_b32 s9, {WS_Y + 4608}
    s_mov_b32 s10, 0x05040100
    s_mov_b32 s11, 0x07060302
    s_waitcnt lgkmcnt(0)
    """)
    srd(a, 36, 24, WS_END)
    srd(a, 32, 22, 4718592)
    for j in range(8):
        a(f"buffer_load_dwordx4 {vr(16+4*j,4)}, v4, s[36:39], s{8+(j>>2)} offen offset:{(j&3)*1152}")
    a("s_waitcnt vmcnt(0)")
    transpose8(a, 16, 48, 10, 11)
    for c in range(8):
        a(f"s_mov_b32 s12, {1152 + c*2304}\nbuffer_store_dwordx4 {vr(48+4*c,4)}, v5, s[32:35], s12 offen")
    stamp(a, 6); a("s_waitcnt vmcnt(0)") if INSTR else None
    stamp_out(a, 2)
    a.l.append("k3_done:")
    a("s_endpgm")
    a.l.append(kdesc("k3_kernel", 96))

def main():
    ref = open("concat_heads__mha_block__ssm_conv_s4d__prompt.s.ref").read().split("\n")
    head = [l for l in ref if l.startswith(";") and "@launch" not in l and "Override launch" not in l and "grid=ceil" not in l]
    head += ["; @launch kernel=k1_kernel grid=(256,1,1) block=(640,1,1) lds=147712",
             "; @launch kernel=k2_kernel grid=(256,1,1) block=(768,1,1) lds=155648",
             "; @launch kernel=k3_kernel grid=(240,1,1) block=(384,1,1) lds=163840"]
    a = A()
    k1(a); k2(a); k3(a)
    out = "\n".join(head) + "\n.amdgcn_target \"amdgcn-amd-amdhsa--gfx950\"\n" + a.text()
    path = sys.argv[1] if len(sys.argv) > 1 and sys.argv[1].endswith(".s") else "concat_heads__mha_block__ssm_conv_s4d__prompt.s"
    open(path, "w").write(out)
main()
```

```python
import sys, struct, math

def f2u(x): return struct.unpack("<I", struct.pack("<f", x))[0]

WS_QK = 0
QK_T = 73728
WS_V = WS_QK + 64 * QK_T
V_H = 73728
WS_O = WS_V + 32 * V_H
O_T = 36864
WS_WO = WS_O + 64 * O_T
WS_U = WS_WO + 18 * O_T
WS_KR = WS_U + 576 * 4096
KRC = 4224
KRCH = 2 * KRC
WS_Y = WS_KR + 576 * KRCH
WS_END = WS_Y + 256 * 9216 + 8192

class A:
    def __init__(s): s.l = []
    def __call__(s, t):
        for line in t.strip("\n").split("\n"):
            s.l.append(line if line.strip().endswith(":") and not line.startswith(" ") else "    " + line.strip())
    def text(s): return "\n".join(s.l) + "\n"

def vr(b, n): return f"v[{b}:{b+n-1}]"

def srd(a, d, lo, size):
    a(f"""s_mov_b32 s{d}, s{lo}
    s_mov_b32 s{d+1}, s{lo+1}
    s_mov_b32 s{d+2}, {size}
    s_mov_b32 s{d+3}, 0x20000""")

def kdesc(name, nv, ns=96):
    return f""".section .rodata,"a"
.p2align 6
.amdhsa_kernel {name}
  .amdhsa_next_free_vgpr {nv}
  .amdhsa_next_free_sgpr {ns}
  .amdhsa_accum_offset {(nv+3)//4*4}
  .amdhsa_group_segment_fixed_size 0
  .amdhsa_kernarg_size 104
  .amdhsa_user_sgpr_count 2
  .amdhsa_user_sgpr_kernarg_segment_ptr 1
  .amdhsa_system_sgpr_workgroup_id_x 1
.end_amdhsa_kernel
"""

INSTR = "instr" in sys.argv
OPT = dict(x.split("=") for x in sys.argv if "=" in x)
ST1 = OPT.get("st1", "").replace("+", " ")
ST2 = OPT.get("st2", "sc1").replace("+", " ")
LDF = OPT.get("ldf", "")
STQ = OPT.get("stq", ""); STV = OPT.get("stv", ""); STU = OPT.get("stu", ""); STK = OPT.get("stk", "")
WS_ST = 24 << 20
def stamp(a, i):
    if INSTR: a(f"s_memtime s[{70+2*i}:{71+2*i}]")
def stamp_rt(a, i):
    if INSTR: a(f"s_memrealtime s[{86+2*i}:{87+2*i}]")
def stamp_out(a, kidx):
    if not INSTR: return
    a(f"""s_memtime s[84:85]
    s_memrealtime s[88:89]
    s_waitcnt lgkmcnt(0)
    s_mov_b64 exec, 1
    s_lshl_b32 s90, s2, 4
    s_add_u32 s90, s90, s3
    s_lshl_b32 s90, s90, 6
    s_add_u32 s90, s90, {WS_ST + kidx*(256*16*64)}
    v_mov_b32 v1, s90""")
    for i in range(10):
        a(f"v_mov_b32 v2, s{70+2*i}\nglobal_store_dword v1, v2, s[24:25] offset:{4*i}")
    a("s_waitcnt vmcnt(0)")

def khead(a, name):
    a(f""".text
.globl {name}
.p2align 8
.type {name},@function""")
    a.l.append(f"{name}:")
    if INSTR:
        for i in range(70, 90): a(f"s_mov_b32 s{i}, 0")
    stamp(a, 0); stamp_rt(a, 0)

def transpose8(a, I, O, sLO, sHI):
    for c in range(8):
        for t in range(4):
            a(f"v_perm_b32 v{O+4*c+t}, v{I+4*(2*t+1)+(c>>1)}, v{I+4*(2*t)+(c>>1)}, s{sHI if c&1 else sLO}")

def k1(a):
    khead(a, "k1_kernel")
    L_FL = 131072
    mod9 = """
    s_mul_i32 s49, s48, 57
    s_lshr_b32 s49, s49, 9
    s_mul_i32 s49, s49, 9
    s_sub_u32 s48, s48, s49"""
    ROT = {"wg": "s_lshl_b32 s48, s40, 1\n    s_add_u32 s48, s48, s41" + mod9,
           "none": "s_mov_b32 s48, 0",
           "xcd": "s_and_b32 s48, s26, 3\n    s_lshl_b32 s48, s48, 1\n    s_lshr_b32 s49, s26, 2\n    s_mul_i32 s49, s49, 5\n    s_add_u32 s48, s48, s49" + mod9}[OPT.get("rot", "wg")]
    a(f"""
    s_cmp_ge_u32 s2, 256
    s_cbranch_scc1 k1_done
    s_load_dwordx16 s[4:19], s[0:1], 0
    s_load_dwordx4 s[20:23], s[0:1], 64
    s_load_dwordx2 s[24:25], s[0:1], 96
    v_lshrrev_b32 v1, 6, v0
    v_and_b32 v0, 63, v0
    v_readfirstlane_b32 s3, v1
    s_and_b32 s26, s2, 7
    s_lshr_b32 s27, s2, 3
    s_and_b32 s40, s26, 3
    s_lshl_b32 s40, s40, 2
    s_and_b32 s44, s27, 3
    s_add_u32 s40, s40, s44              ; mt
    s_lshr_b32 s41, s26, 2
    s_mul_i32 s41, s41, 7
    s_lshr_b32 s44, s27, 2
    s_add_u32 s41, s41, s44              ; part
    v_mov_b32 v23, {L_FL}
    s_cmp_lg_u32 s3, 0
    s_cbranch_scc1 k1_noarm
    v_mov_b32 v14, -1
    v_lshl_add_u32 v15, v0, 2, v23
    ds_write_b32 v15, v14
    s_waitcnt lgkmcnt(0)
k1_noarm:
    s_barrier
    {ROT}
    s_cmp_lt_u32 s3, 4
    s_cbranch_scc1 k1_kgen
    s_cmp_lt_u32 s3, 8
    s_cbranch_scc1 k1_gemm
    s_cmp_ge_u32 s27, 28
    s_cbranch_scc1 k1_task
    {"s_endpgm" if "noload" in OPT else ""}
    s_bfe_u32 s56, s3, 0x10001
    s_bitcmp1_b32 s3, 0
    s_cbranch_scc1 k1_ldw
    v_lshrrev_b32 v4, 3, v0              ; r3
    v_lshrrev_b32 v5, 2, v4
    v_lshlrev_b32 v5, 3, v5
    v_and_b32 v6, 3, v4
    v_add_u32 v5, v5, v6                 ; tokoff
    s_lshl_b32 s44, s40, 7
    v_add_u32 v5, s44, v5
    v_mul_u32_u24 v5, 1152, v5
    v_lshrrev_b32 v6, 1, v4
    v_and_b32 v7, 7, v0
    v_xor_b32 v6, v6, v7
    v_lshl_add_u32 v2, v6, 4, v5
    v_xor_b32 v6, 4, v6
    v_lshl_add_u32 v3, v6, 4, v5
    v_add_u32 v3, {4608-1024}, v3
    s_mov_b32 s50, 128
    s_mov_b32 s51, 18432
    s_mov_b32 s52, 0
    s_waitcnt lgkmcnt(0)
    s_mov_b32 s28, s4
    s_mov_b32 s29, s5
    s_mov_b32 s30, 2359296
    s_branch k1_ld
k1_ldw:
    v_lshrrev_b32 v5, 4, v0
    v_mul_u32_u24 v2, 3456, v5
    v_lshlrev_b32 v5, 2, v5
    v_and_b32 v6, 15, v0
    v_xor_b32 v5, v5, v6
    v_lshl_add_u32 v2, v5, 4, v2
    s_lshl_b32 s44, s41, 8
    v_add_u32 v2, s44, v2
    v_add_u32 v3, {13824-1024}, v2
    s_mov_b32 s50, 221184
    s_mov_b32 s51, 27648
    s_mov_b32 s52, 16384
    s_waitcnt lgkmcnt(0)
    s_mov_b32 s28, s6
    s_mov_b32 s29, s7
    s_mov_b32 s30, 1990656
k1_ld:
    s_mov_b32 s31, 0x20000
    s_mul_i32 s57, s56, s51
    s_lshl_b32 s57, s57, 2
    s_lshl_b32 s56, s56, 13
    s_add_u32 s52, s52, s56
    s_and_b32 s58, s3, 3
    s_lshl_b32 s58, s58, 2
    s_add_u32 s58, s58, {L_FL}
    v_mov_b32 v4, 0x7ffffff0
    s_mov_b32 s53, 0                     ; stage
k1_ld_loop:
    s_cmp_lt_u32 s53, {99 if "nopoll" in OPT else 4}
    s_cbranch_scc1 k1_ld_go
k1_ld_poll:
    ds_read_b128 v[8:11], v23 offset:160
    s_waitcnt lgkmcnt(0)
    v_or_b32 v8, v8, v9
    v_or3_b32 v8, v8, v10, v11
    v_cmp_eq_u32 vcc, 0, v8
    s_cbranch_vccz k1_ld_poll
    v_add_u32 v23, 16, v23
k1_ld_go:
    s_mul_i32 s47, s48, s50
    s_add_u32 s47, s47, s57
    s_and_b32 s55, s53, 3
    s_lshl_b32 s55, s55, 15
    s_add_u32 m0, s55, s52
    s_add_u32 s48, s48, 1
    """)
    for p in range(4):
        a(f"""buffer_load_dwordx4 v2, s[28:31], s47 offen {LDF} lds
        buffer_load_dwordx4 v3, s[28:31], s47 offen offset:1024 {LDF} lds""")
        if p < 3: a("s_add_u32 m0, m0, 2048\ns_add_u32 s47, s47, s51")
    a(f"""
    s_cmp_eq_u32 s48, 9
    s_cselect_b32 s48, 0, s48
    s_mov_b32 m0, s58
    s_mov_b64 exec, 1
    buffer_load_dword v4, s[28:31], 0 offen lds
    s_mov_b64 exec, -1
    s_add_u32 s58, s58, 16
    s_add_u32 s53, s53, 1
    s_cmp_lt_u32 s53, 9
    s_cbranch_scc1 k1_ld_loop
    s_waitcnt vmcnt(0)
    """)
    stamp_out(a, 0)
    a("s_endpgm")
    a.l.append("k1_gemm:")
    if OPT.get("pf", "0") == "1":
        a(f"""
        v_and_b32 v2, 15, v0
        s_and_b32 s44, s26, 3
        s_lshl_b32 s44, s44, 5
        s_add_u32 s44, s44, s27
        s_lshl_b32 s44, s44, 4
        v_add_u32 v3, s44, v2
        v_mul_u32_u24 v3, 1152, v3
        v_bfe_u32 v4, v0, 4, 1
        s_lshl_b32 s44, s27, 1
        v_add_u32 v4, s44, v4
        v_mul_u32_u24 v4, 3456, v4
        v_lshl_add_u32 v4, v2, 7, v4
        s_lshr_b32 s45, s26, 2
        s_mul_i32 s45, s45, 1792
        v_add_u32 v4, s45, v4
        v_mov_b32 v7, 0x7ffffff0
        v_cmp_lt_u32 vcc, 13, v2
        s_mov_b32 s47, 221184
        s_mov_b32 s31, 0x20000
        v_cndmask_b32 v4, v4, v7, vcc
        s_waitcnt lgkmcnt(0)
        """)
        for rnd in range(2):
            isx = [0b0001, 0b1010][rnd]; base = [[0,0,2,4],[6,4,8,8]][rnd]
            a(f"""
            s_sub_u32 s44, s3, 4
            s_lshl_b32 s45, s44, 2
            s_lshr_b32 s46, {sum(b << (4*i) for i, b in enumerate(base)):#x}, s45
            s_and_b32 s46, s46, 15
            s_bitcmp1_b32 {isx}, s44
            s_cselect_b32 s28, s4, s6
            s_cselect_b32 s29, s5, s7
            s_cselect_b32 s30, 2359296, s47
            s_cselect_b32 s45, 4, 5
            s_cselect_b32 s49, 128, s47
            s_cselect_b64 s[50:51], -1, 0
            s_cbranch_scc1 k1_pf{rnd}
            s_mul_i32 s30, s47, 9
k1_pf{rnd}:
            v_lshrrev_b32 v5, s45, v0
            v_add_u32 v5, s46, v5
            v_cmp_lt_u32 vcc, 8, v5
            v_add_u32 v5, s48, v5
            v_cndmask_b32 v6, v4, v3, s[50:51]
            v_cndmask_b32 v6, v6, v7, vcc
            v_cmp_lt_u32 vcc, 8, v5
            v_subrev_u32 v20, 9, v5
            s_nop 0
            v_cndmask_b32 v5, v5, v20, vcc
            v_mul_lo_u32 v5, v5, s49
            v_add_u32 v6, v5, v6
            buffer_load_dword v{60+rnd}, v6, s[28:31], 0 offen
            """)
    a(f"""
    s_cmp_ge_u32 s27, 28
    s_cbranch_scc1 k1_kgen
    s_sub_u32 s45, s3, 4
    s_and_b32 s42, s45, 1                ; mw
    s_lshr_b32 s43, s45, 1               ; nw
    s_lshl_b32 s58, s45, 2
    s_add_u32 s58, s58, {L_FL + 160}
    v_mov_b32 v22, 0x7ffffff0
    v_and_b32 v5, 31, v0                 ; i
    v_lshrrev_b32 v6, 5, v0              ; hf
    s_lshl_b32 s44, s42, 6
    v_add_u32 v7, s44, v5
    v_lshlrev_b32 v7, 7, v7
    v_bfe_u32 v5, v5, 1, 3
    v_xor_b32 v5, v5, v6
    """)
    for j in range(4):
        a(f"""v_xor_b32 v20, {2*j}, v5
        v_lshl_add_u32 v{8+j}, v20, 4, v7
        v_add_u32 v{12+j}, 0x10000, v{8+j}""")
    a(f"""
    v_bfe_u32 v5, v0, 2, 2               ; r
    v_lshl_add_u32 v7, v6, 3, v5
    v_lshlrev_b32 v7, 8, v7
    v_bfe_u32 v20, v0, 4, 1
    v_lshl_add_u32 v7, v20, 5, v7
    v_and_b32 v20, 3, v0
    v_lshl_add_u32 v7, v20, 3, v7
    v_add_u32 v7, 16384, v7
    s_lshl_b32 s44, s43, 1
    v_xor_b32 v5, s44, v5
    v_lshl_add_u32 v16, v5, 6, v7
    v_xor_b32 v5, 1, v5
    v_lshl_add_u32 v17, v5, 6, v7
    v_add_u32 v18, 0x10000, v16
    v_add_u32 v19, 0x10000, v17
    s_setprio {OPT.get("gprio", 2)}
    """)
    for i in range(64):
        a(f"v_mov_b32 v{64+i}, 0")
    a("s_waitcnt lgkmcnt(0)")
    srd(a, 36, 24, WS_END)
    if "nogemm" in OPT: a("s_endpgm")
    a("""s_cmp_ge_u32 s41, 9
    s_cbranch_scc1 k1_gemm_v""")
    FB = [24, 40]
    def reads(stage, j, fb):
        slot = stage & 3
        if "fixslot" in OPT: slot = 0
        hi = slot >> 1
        base = (slot & 1) * 32768
        out = []
        out.append(f"ds_read_b128 {vr(fb,4)}, v{8+4*hi+j} offset:{base}")
        out.append(f"ds_read_b64_tr_b16 {vr(fb+8,2)}, v{16+2*hi} offset:{base+j*4096}")
        out.append(f"ds_read_b64_tr_b16 {vr(fb+10,2)}, v{16+2*hi} offset:{base+j*4096+1024}")
        out.append(f"ds_read_b64_tr_b16 {vr(fb+12,2)}, v{17+2*hi} offset:{base+j*4096}")
        out.append(f"ds_read_b64_tr_b16 {vr(fb+14,2)}, v{17+2*hi} offset:{base+j*4096+1024}")
        out.append(f"ds_read_b128 {vr(fb+4,4)}, v{8+4*hi+j} offset:{base+4096}")
        return out
    def mfmas(fb, vor):
        out = []
        for (ta, tb) in ((0,0),(0,1),(1,0),(1,1)):
            acc = 64 + 16*(2*ta+tb)
            X = vr(fb+4*ta, 4); W = vr(fb+8+4*tb, 4)
            if vor: out.append(f"v_mfma_f32_32x32x16_bf16 {vr(acc,16)}, {X}, {W}, {vr(acc,16)}")
            else:   out.append(f"v_mfma_f32_32x32x16_bf16 {vr(acc,16)}, {W}, {X}, {vr(acc,16)}")
        return out
    def check(tag, st, first_read):
        if "nocheck" in OPT: return
        if not first_read:
            a(f"""v_or_b32 v56, v56, v57
            v_or3_b32 v56, v56, v58, v59
            v_cmp_eq_u32 vcc, 0, v56
            s_cbranch_vccnz {tag}_ok""")
        a.l.append(f"{tag}_p:")
        a(f"""ds_read_b128 v[56:59], v23 offset:{16*st}
        s_waitcnt lgkmcnt(0)
        v_or_b32 v56, v56, v57
        v_or3_b32 v56, v56, v58, v59
        v_cmp_eq_u32 vcc, 0, v56
        s_cbranch_vccz {tag}_p""")
        a.l.append(f"{tag}_ok:")
    FB = [24, 40, 128]
    def mainloop(vor):
        check(f"k1_c{int(vor)}_0", 0, True)
        stamp(a, 3)
        a("\n".join(reads(0, 0, FB[0]) + reads(0, 1, FB[1])))
        for g in range(36):
            st, j = divmod(g, 4)
            a(f"s_waitcnt lgkmcnt({6 if g < 35 else 0})")
            m = mfmas(FB[g % 3], vor)
            a(m[0])
            if j == 1 and st < 8: a(f"ds_read_b128 v[56:59], v23 offset:{16*(st+1)}")
            if j == 2 and st < 8: check(f"k1_c{int(vor)}_{st+1}", st+1, False)
            if j == 3 and st < 5: a(f"s_add_u32 m0, s58, {16*st}\ns_mov_b64 exec, 1\nbuffer_load_dword v22, s[36:39], 0 offen lds\ns_mov_b64 exec, -1")
            rd = reads((g+2)//4, (g+2)%4, FB[(g+2) % 3]) if g + 2 < 36 else []
            if "nord" in OPT: rd = []
            if "notr" in OPT: rd = [x.replace("ds_read_b64_tr_b16", "ds_read_b64") for x in rd]
            a("\n".join(rd[:3])) if rd else None
            a(m[1]); a("\n".join(rd[3:])) if rd else None
            a(m[2]); a(m[3])
            if g == 15: stamp(a, 5)
        stamp(a, 4)
    mainloop(False)
    a(f"""
    s_lshl_b32 s44, s40, 1
    s_add_u32 s44, s44, s42
    s_mul_i32 s44, s44, {2*QK_T}
    s_lshl_b32 s45, s41, 1
    s_add_u32 s45, s45, s43
    s_lshl_b32 s45, s45, 12
    s_add_u32 s44, s44, s45
    s_add_u32 s45, s44, {QK_T}
    v_lshlrev_b32 v2, 3, v0
    s_nop 7
    """)
    for ta in range(2):
        for tb in range(2):
            acc = 64 + 16*(2*ta+tb)
            o = 24 + 8*((2*ta+tb)&3)
            for r in range(8):
                a(f"v_cvt_pk_bf16_f32 v{o+r}, v{acc+2*r}, v{acc+2*r+1}")
            for rq in range(4):
                a(f"buffer_store_dwordx2 {vr(o+2*rq,2)}, v2, s[36:39], s{44+ta} offen offset:{tb*2048+rq*512} {STQ}")
    stamp(a, 6); a("s_waitcnt vmcnt(0)") if INSTR else None
    stamp_out(a, 0)
    a("s_endpgm")
    a.l.append("k1_gemm_v:")
    mainloop(True)
    a(f"""
    s_lshl_b32 s44, s41, 1
    s_add_u32 s44, s44, s43
    s_sub_u32 s44, s44, 18
    s_cmp_ge_u32 s44, 9
    s_cbranch_scc1 k1_done
    s_lshl_b32 s44, s44, 6
    v_and_b32 v5, 31, v0
    v_add_u32 v5, s44, v5                ; f (tb=0)
    v_lshrrev_b32 v6, 5, v0
    v_mul_u32_u24 v6, 288, v6
    s_mov_b32 s47, {V_H - 18*16}
    """)
    for tb in range(2):
        a(f"""
        v_mul_u32_u24 v7, 3641, v5           ; f/18 = (f*3641)>>16 for f<576
        v_lshrrev_b32 v7, 16, v7
        v_mul_lo_u32 v7, v7, s47
        v_lshl_add_u32 v7, v5, 4, v7         ; h*V_H + d*16
        v_add_u32 v{2+tb}, v7, v6
        v_add_u32 v5, 32, v5
        """)
    a(f"""
    s_lshl_b32 s44, s40, 1
    s_add_u32 s44, s44, s42
    s_mul_i32 s44, s44, 2304
    s_add_u32 s44, s44, {WS_V}
    """)
    for ta in range(2):
        for tb in range(2):
            acc = 64 + 16*(2*ta+tb)
            o = 24 + 8*((2*ta+tb)&3)
            for r in range(8):
                a(f"v_cvt_pk_bf16_f32 v{o+r}, v{acc+2*r}, v{acc+2*r+1}")
            for hh in range(2):
                a(f"buffer_store_dwordx4 {vr(o+4*hh,4)}, v{2+tb}, s[36:39], s44 offen offset:{ta*1152+hh*576} {STV}")
    stamp(a, 6); a("s_waitcnt vmcnt(0)") if INSTR else None
    stamp_out(a, 0)
    a("s_endpgm")

    a.l.append("k1_kgen:")
    L2E = f2u(1.4426950408889634); L2E_LO = f2u(1.4426950408889634 - struct.unpack("<f", struct.pack("<I", f2u(1.4426950408889634)))[0])
    LN2 = f2u(0.6931471805599453)
    z0 = list(range(9)) + [14,15,16,20,21,24,25]
    z1 = [9,9,10,11,11,11,12,13,13,17,18,19,22,23,26,27]
    def pack(z, lo):
        v = 0
        for r in range(lo, lo+8): v |= (z[r]-r) << (4*(r-lo))
        return v
    a(f"""
    s_mov_b32 s43, s3
    s_and_b32 s41, s43, 1
    s_bfe_u32 s45, s43, 0x10001
    s_lshl_b32 s40, s2, 1
    s_add_u32 s40, s40, s45
    s_add_u32 s46, s40, {512 - 448}      ; 512 + 2*(wg-224) + p
    s_cmp_ge_u32 s43, 4
    s_cselect_b32 s40, s46, s40          ; channel
    s_lshl_b32 s45, s40, 7
    s_lshl_b32 s46, s41, 6
    s_add_u32 s45, s45, s46
    v_add_u32 v2, s45, v0
    v_lshlrev_b32 v2, 1, v2
    s_lshl_b32 s45, s40, 1
    v_mov_b32 v3, s45
    s_waitcnt lgkmcnt(0)
    global_load_ushort v4, v3, s[20:21]
    global_load_ushort v6, v2, s[12:13]
    global_load_ushort v7, v2, s[14:15]
    global_load_ushort v8, v2, s[16:17]
    global_load_ushort v9, v2, s[18:19]
    global_load_ushort v5, v3, s[22:23]
    """)
    if "nokgen" in OPT: a("s_endpgm")
    srd(a, 36, 24, WS_END)
    a(f"""
    v_and_b32 v14, 31, v0                ; column
    v_and_b32 v16, 3, v14
    v_lshrrev_b32 v17, 3, v14
    v_lshl_add_u32 v16, v17, 2, v16      ; r
    v_mov_b32 v17, {pack(z0,0):#x}
    v_mov_b32 v18, {pack(z0,8):#x}
    v_mov_b32 v19, {pack(z1,0):#x}
    v_mov_b32 v20, {pack(z1,8):#x}
    v_cmp_lt_u32 vcc, 7, v16
    v_and_b32 v21, 4, v14
    v_and_b32 v22, 7, v16
    v_cndmask_b32 v17, v17, v18, vcc
    v_cndmask_b32 v19, v19, v20, vcc
    v_cmp_ne_u32 vcc, 0, v21
    v_lshlrev_b32 v22, 2, v22
    v_lshrrev_b32 v15, 5, v0
    v_cndmask_b32 v17, v17, v19, vcc
    v_bfe_u32 v17, v17, v22, 4
    v_add_u32 v17, v17, v16
    v_lshlrev_b32 v15, 2, v15            ; 4h
    s_mov_b32 s50, 0x3f80
    """)
    for (zr, dst) in ((14, 40), (17, 48)):
        a(f"""
        v_and_b32 v18, 1, v{zr}
        v_lshlrev_b32 v18, 4, v18
        v_lshlrev_b32 v18, v18, s50
        v_lshrrev_b32 v19, 1, v{zr}
        v_sub_u32 v19, v19, v15
        """)
        for d in range(8):
            a(f"v_cmp_eq_u32 s[{52+2*d}:{53+2*d}], {8*(d>>2) + (d&3)}, v19")
        for d in range(8):
            a(f"v_cndmask_b32 v{dst+d}, 0, v18, s[{52+2*d}:{53+2*d}]")
    a(f"""
    s_mov_b32 s50, {L2E:#x}
    s_mov_b32 s51, {L2E_LO:#x}
    s_mov_b32 s52, {LN2:#x}
    s_mov_b32 s53, {f2u(248.0):#x}
    s_mov_b32 s54, {f2u(8.0):#x}
    s_waitcnt vmcnt(0)
    """)
    stamp(a, 3)
    def exp_bf16(x, t, lo):
        a(f"""
        v_mul_f32 v{t}, s50, v{x}
        v_fma_f32 v{lo}, v{x}, s50, -v{t}
        v_exp_f32 v{t}, v{t}
        v_fma_f32 v{lo}, v{x}, s51, v{lo}
        v_mul_f32 v{lo}, s52, v{lo}
        v_fma_f32 v{t}, v{t}, v{lo}, v{t}
        v_cvt_pk_bf16_f32 v{t}, v{t}, v{t}
        v_lshlrev_b32 v{x}, 16, v{t}
        """)
    for r in (4, 5): a(f"v_lshlrev_b32 v{r}, 16, v{r}")
    exp_bf16(4, 20, 21)
    for r in range(6, 10): a(f"v_lshlrev_b32 v{r}, 16, v{r}")
    exp_bf16(6, 20, 21)
    a(f"""
    v_mul_f32 v6, v6, v4
    v_mul_f32 v7, v7, v4
    v_mul_f32 v8, v8, v4
    v_mul_f32 v9, v9, v4
    v_mul_f32 v6, s50, v6                ; -Re(z)*log2e
    v_mul_f32 v7, 0.15915494, v7         ; Im(z)/(2pi)
    v_add_f32 v8, v8, v8
    v_mul_f32 v9, -2.0, v9
    """)
    DL = [8, 1, 2, 4, 248]
    DS = {8: "s54", 1: "1.0", 2: "2.0", 4: "4.0", 248: "s53"}
    MR = {d: 24 + 2*i for i, d in enumerate(DL)}
    def mkE(d):
        a(f"""
        v_mul_f32 v21, {DS[d]}, v6
        v_mul_f32 v22, {DS[d]}, v7
        v_exp_f32 v21, -v21
        v_fract_f32 v22, v22
        v_cos_f32 v20, v22
        v_sin_f32 v22, v22
        v_mul_f32 v{MR[d]}, v21, v20
        v_mul_f32 v{MR[d]+1}, v21, v22
        """)
    P = 56; Dt = 88; YO = 120; ACC = 152
    R = lambda z: 34 + 2*(z % 3)
    def chain(dl, conj, mid=None):
        for z in range(len(dl) + 1):
            cur, nxt = R(z), R(z+1)
            if z < len(dl):
                W = MR[dl[z]]
                if "pk" not in OPT: a(f"v_mul_f32 v{nxt}, v{cur}, v{W}\nv_mul_f32 v{nxt+1}, v{cur+1}, v{W}")
                else: a(f"v_pk_mul_f32 {vr(nxt,2)}, {vr(cur,2)}, {vr(W,2)} op_sel:[0,0] op_sel_hi:[1,0]")
            if z & 1: a(f"v_cvt_pk_bf16_f32 v{P+(z>>1)}, v{R(z-1)}, v{cur}")
            if z < len(dl):
                if "pk" not in OPT:
                    n = "-" if conj else ""; p = "" if conj else "-"
                    a(f"v_fma_f32 v{nxt}, {p}v{cur+1}, v{W+1}, v{nxt}\nv_fma_f32 v{nxt+1}, {n}v{cur}, v{W+1}, v{nxt+1}")
                else:
                    a(f"v_pk_fma_f32 {vr(nxt,2)}, {vr(cur,2)}, {vr(W,2)}, {vr(nxt,2)} op_sel:[1,1,0] op_sel_hi:[0,1,1] " + ("neg_hi:[1,0,0]" if conj else "neg_lo:[1,0,0]"))
            if z & 1: a(f"v_cvt_pk_bf16_f32 v{P+16+(z>>1)}, v{R(z-1)+1}, v{cur+1}")
            if mid and z == 4: mid()
    def swaps(comp):
        for pr in range(2):
            for t in range(4):
                a(f"v_permlane32_swap_b32 v{P+16*comp+8*pr+t}, v{P+16*comp+8*pr+4+t}")
    def tmfma(comp, sel):
        for blk in range(2):
            a(f"v_mfma_f32_32x32x16_bf16 {vr(Dt+16*blk,16)}, {vr(P+16*comp+4*blk,4)}, {vr(sel,4)}, 0")
        for blk in range(2):
            a(f"v_mfma_f32_32x32x16_bf16 {vr(Dt+16*blk,16)}, {vr(P+16*comp+8+4*blk,4)}, {vr(sel+4,4)}, {vr(Dt+16*blk,16)}")
    def tcvt(dst):
        for i in range(16): a(f"v_cvt_pk_bf16_f32 v{dst+i}, v{Dt+2*i}, v{Dt+2*i+1}")
    mkE(8)
    a(f"v_mov_b32 v{R(0)}, 1.0\nv_mov_b32 v{R(0)+1}, 0")
    chain([8]*31, False)
    mkE(1)
    swaps(0); swaps(1)
    tmfma(0, 40)
    mkE(2); mkE(4)
    tcvt(YO)
    tmfma(1, 40)
    mkE(248)
    a(f"v_mov_b32 v{R(0)}, v8\nv_mov_b32 v{R(0)+1}, v9")
    deltas = [1]*8 + [248] + [2]*4 + [248] + [4]*2 + [248] + [4]*2 + [248, 8, 248, 8, 248, 8, 248, 8]
    chain(deltas, True, mid=lambda: tcvt(YO+16))
    a(f"""s_mul_i32 s44, s40, {KRCH}
    s_add_u32 s44, s44, {WS_KR}""")
    swaps(0); swaps(1)
    tmfma(0, 48)
    a(f"""
    v_cmp_eq_u32 vcc, 0, v0
    v_sub_u32 v21, 63, v0
    v_lshlrev_b32 v21, 4, v21
    v_cndmask_b32 v5, 0, v5, vcc
    s_add_u32 s45, s44, {KRC}
    v_mov_b32 v20, 0x7ffffff0
    s_lshr_b32 s46, s43, 1
    s_lshl_b32 s46, s46, 2
    v_add_u32 v22, s46, v23
    s_add_u32 m0, s46, {L_FL + 240}
    s_nop 1""")
    tcvt(P)
    tmfma(1, 48)
    for i in range(4):
        a(f"v_mfma_f32_32x32x16_bf16 {vr(ACC,16)}, {vr(P+4*i,4)}, {vr(YO+4*i,4)}, " + ("0" if i == 0 else vr(ACC,16)))
    a("s_nop 7")
    tcvt(P+16)
    a("s_nop 1")
    for i in range(4, 8):
        a(f"v_mfma_f32_32x32x16_bf16 {vr(ACC,16)}, {vr(P+4*i,4)}, {vr(YO+4*i,4)}, {vr(ACC,16)}")
    stamp(a, 5)
    a(f"""
    s_cmp_eq_u32 s41, 0
    s_cbranch_scc1 k1_k_even
    s_nop 10
    """)
    for i in range(4):
        a(f"buffer_store_dwordx4 {vr(ACC+4*i,4)}, v21, s[36:39], s44 offen offset:{1024*i}")
    a(f"""
    s_mov_b64 exec, 1
    s_waitcnt vmcnt(0)
    buffer_load_dword v20, s[36:39], 0 offen lds
    s_branch k1_k_end
k1_k_even:
    ds_read_b32 v10, v22 offset:240
    s_waitcnt lgkmcnt(0)
    v_cmp_eq_u32 vcc, 0, v10
    s_cbranch_vccz k1_k_even
    """)
    for i in range(4):
        a(f"buffer_load_dwordx4 {vr(56+4*i,4)}, v21, s[36:39], s44 offen offset:{1024*i} sc1")
    a(f"""
    v_and_b32 v22, 1, v0
    v_cmp_eq_u32 vcc, 1, v22             ; b odd
    s_waitcnt vmcnt(0)
    """)
    for i in range(16): a(f"v_add_f32 v{ACC+i}, v{ACC+i}, v{56+i}")
    d = lambda r: f"v{ACC+r}" if r < 16 else f"v{r}"
    a(f"v_add_f32 {d(0)}, {d(0)}, v5")
    a(f"v_cndmask_b32 v32, {d(12)}, {d(13)}, vcc\nv_cndmask_b32 v33, {d(14)}, {d(15)}, vcc")
    units = [
      (0, 0, [(7,6),(5,4),(3,2),(1,0)]), (0, 1, [(8,7),(6,5),(4,3),(2,1)]),
      (1, 0, [(11,11),(10,10),(10,9),(9,9)]), (1, 1, [(11,11),(11,10),(10,10),(9,9)]),
      (2, 0, [(13,13),(13,32),(12,12),(12,12)]), (2, 1, [(13,13),(13,13),(32,12),(12,12)]),
      (3, 0, [(15,15),(15,33),(14,14),(14,14)]), (3, 1, [(15,15),(15,15),(33,14),(14,14)]),
    ]
    for ui, (G, cp, prs) in enumerate(units):
        o = 100 + 4*ui
        for t, (lo, hi) in enumerate(prs):
            a(f"v_cvt_pk_bf16_f32 v{o+t}, {d(lo)}, {d(hi)}")
        a(f"buffer_store_dwordx4 {vr(o,4)}, v21, s[36:39], s{44+cp} offen offset:{(3-G)*1024} {STK}")
    a(f"""
    v_mov_b32 v81, 0
    v_cvt_pk_bf16_f32 v80, {d(0)}, v81
    v_mov_b32 v82, 0
    v_mov_b32 v83, 0
    v_mov_b32 v84, 0
    v_mov_b32 v85, 0
    v_mov_b32 v86, 0
    v_mov_b32 v87, 0
    v_cmp_eq_u32 vcc, 0, v0
    v_lshlrev_b32 v21, 4, v0
    v_add_u32 v21, 4096, v21
    v_cndmask_b32 v80, 0, v80, vcc
    s_mov_b64 exec, 15
    buffer_store_dwordx4 v[84:87], v21, s[36:39], s44 offen {STK}
    buffer_store_dwordx4 v[80:83], v21, s[36:39], s45 offen {STK}
    s_mov_b64 exec, -1
    s_branch k1_k_end
k1_task:
    s_sub_u32 s44, s2, 224
    s_lshr_b32 s45, s44, 1               ; B
    s_and_b32 s46, s44, 1                ; es
    s_sub_u32 s47, s3, 8
    s_lshl_b32 s48, s45, 3
    s_add_u32 s48, s48, s46
    s_mul_i32 s48, s48, {16*1152}
    s_lshl_b32 s49, s47, 7
    s_add_u32 s48, s48, s49
    v_lshrrev_b32 v10, 3, v0
    v_and_b32 v9, 7, v0
    v_mul_u32_u24 v11, 1152, v10
    v_lshl_add_u32 v11, v9, 4, v11
    v_xor_b32 v12, v10, v9
    v_lshlrev_b32 v12, 4, v12
    v_lshl_add_u32 v12, v9, 10, v12
    s_mul_i32 s49, s47, 24576
    v_add_u32 v12, s49, v12
    s_mov_b32 m0, s49
    v_lshlrev_b32 v17, 15, v10
    v_lshl_add_u32 v17, v9, 4, v17
    s_lshl_b32 s60, s47, 18
    s_lshl_b32 s45, s45, 7
    s_lshl_b32 s46, s46, 11
    s_add_u32 s60, s60, s45
    s_add_u32 s60, s60, s46
    s_add_u32 s60, s60, {WS_U}
    s_mov_b32 s50, 0x05040100
    s_mov_b32 s51, 0x07060302
    """)
    for p in range(8): a(f"v_xor_b32 v{24+p}, {16*p}, v11")
    a("s_waitcnt lgkmcnt(0)")
    srd(a, 28, 10, 2359296)
    srd(a, 36, 24, WS_END)
    for i in range(3):
        if i == 2: a("s_cmp_lg_u32 s47, 0\ns_cbranch_scc1 k1_t2")
        for p in range(8):
            a(f"""s_add_u32 s49, s48, {i*512 + ((p>>1)*32 + (p&1)*8)*1152}
            buffer_load_dwordx4 v{24+p}, s[28:31], s49 offen lds
            s_add_u32 m0, m0, 1024""")
    a.l.append("k1_t2:")
    for i in range(3):
        if i == 2: a("s_cmp_lg_u32 s47, 0\ns_cbranch_scc1 k1_k_end")
        a(f"s_waitcnt vmcnt({[8, 8, 16][i]})")
        for j in range(8): a(f"ds_read_b128 {vr(32+4*j,4)}, v12 offset:{i*8192 + j*128}")
        a("s_waitcnt lgkmcnt(0)")
        O_ = [64, 96, 128][i]
        transpose8(a, 32, O_, 50, 51)
        for c in range(8):
            a(f"s_add_u32 s49, s60, {i*(4<<18) + c*4096}\nbuffer_store_dwordx4 {vr(O_+4*c,4)}, v17, s[36:39], s49 offen {STU}")
    a("""
k1_k_end:
    """)
    stamp(a, 6); a("s_waitcnt vmcnt(0)") if INSTR else None
    stamp_out(a, 0)
    a.l.append("k1_done:")
    a("s_endpgm")
    a.l.append(kdesc("k1_kernel", 168))

L_KT = 65536
L_V = 81920
def k2(a):
    khead(a, "k2_kernel")
    S = [0, 16]; O = 32; NEG = 48; P = 64; KF = [72, 76]; TF = [80, 84]; VF = [88, 96]; Q = 104; QL = 108; QH = 110
    vK, vT, vV = 112, 113, 114
    a(f"""
    s_cmp_ge_u32 s2, 256
    s_cbranch_scc1 k2_done
    s_load_dwordx2 s[24:25], s[0:1], 96
    s_load_dwordx2 s[40:41], s[0:1], 16
    v_lshrrev_b32 v1, 6, v0
    v_and_b32 v116, 63, v0
    v_readfirstlane_b32 s3, v1
    s_cmp_ge_u32 s3, 8
    s_cbranch_scc1 k2_conv
    s_and_b32 s4, s2, 31                 ; h
    s_lshr_b32 s5, s2, 5
    s_lshl_b32 s5, s5, 3
    s_add_u32 s5, s5, s3
    s_lshr_b32 s6, s4, 1
    s_mul_i32 s6, s6, 2304               ; pair*9*256
    s_and_b32 s7, s4, 1                  ; odd
    s_mul_i32 s8, s7, 1280
    s_add_u32 s8, s8, s6
    s_add_u32 s9, s6, 1024
    s_mul_i32 s10, s5, {QK_T}
    s_add_u32 s11, s10, s8
    s_add_u32 s12, s10, s9
    v_lshlrev_b32 v{vK}, 3, v116         ; lane*8
    v_and_b32 v117, 31, v116
    v_lshlrev_b32 v118, 3, v117
    v_lshlrev_b32 v119, 4, v116          ; lane*16
    v_lshrrev_b32 v120, 4, v116
    s_mov_b32 s13, {QK_T}
    v_mul_lo_u32 v120, v120, s13
    v_and_b32 v121, 15, v116
    v_lshl_add_u32 v120, v121, 4, v120
    s_mul_i32 s14, s3, {QK_T}
    s_add_u32 s14, s14, s8
    s_add_u32 s14, s14, {144*256}
    s_mul_i32 s15, s4, {V_H}
    s_lshl_b32 s16, s3, 10               ; w*1024
    s_add_u32 s15, s15, s16
    s_add_u32 s15, s15, {WS_V}           ; V piece w
    s_mul_i32 s17, s3, {4*QK_T}
    s_add_u32 s17, s17, s9
    s_add_u32 s17, s17, {144*256}
    s_waitcnt lgkmcnt(0)
    """)
    stamp(a, 1)
    srd(a, 36, 24, WS_END)
    a(f"""
    buffer_load_dwordx2 v[{Q}:{Q+1}], v{vK}, s[36:39], s11 offen
    buffer_load_dwordx2 v[{Q+2}:{Q+3}], v{vK}, s[36:39], s11 offen offset:512
    buffer_load_dwordx2 v[{QL}:{QL+1}], v118, s[36:39], s12 offen
    """)
    def dK(j): a(f"s_add_u32 m0, s16, {j*8192}\n" + (f"s_add_u32 s14, s14, {8*QK_T}\n" if j else "s_nop 0\n") + "buffer_load_dwordx4 v119, s[36:39], s14 offen lds")
    def dV(j): a(f"s_add_u32 m0, s16, {L_V + j*8192}\n" + (f"s_add_u32 s15, s15, 8192\n" if j else "s_nop 0\n") + "buffer_load_dwordx4 v119, s[36:39], s15 offen lds")
    def dT(j): a(f"s_add_u32 m0, s16, {L_KT + j*8192}\n" + (f"s_add_u32 s17, s17, {32*QK_T}\n" if j else "s_nop 0\n") + "buffer_load_dwordx4 v120, s[36:39], s17 offen lds")
    dK(0); dV(0); dT(0); dV(1); dK(1)
    stamp(a, 2)
    for i in range(16): a(f"v_mov_b32 v{O+i}, 0")
    for i in range(4): a(f"v_mov_b32 v{P+4+i}, 0")
    if "noprio" not in OPT: a("s_setprio 2")
    a(f"""v_and_b32 v121, 27, v116
    v_cmp_eq_u32 vcc, 18, v121
    v_mov_b32 v121, 0x3f803f80
    s_nop 0
    v_cndmask_b32 v{VF[0]}, 0, v121, vcc""")
    for i in range(1, 16): a(f"v_mov_b32 v{VF[0]+i}, v{VF[0]}")
    a(f"""
    v_add_u32 v{vT}, {L_KT}, v{vK}
    v_lshrrev_b32 v121, 5, v116
    v_mul_u32_u24 v121, 288, v121
    v_lshl_add_u32 v{vV}, v117, 4, v121
    v_add_u32 v{vV}, {L_V}, v{vV}
    s_mov_b32 s18, 0x3ffff
    s_mov_b32 s19, 0x3ffff
    s_mov_b32 s21, {f2u(18**-0.5 * 1.4426950408889634):#x}
    v_cmp_lt_u32 s[22:23], 31, v116
    s_waitcnt vmcnt(5)
    """)
    for r in list(range(Q, Q+4)) + [QL, QL+1]:
        a(f"""v_lshlrev_b32 v121, 16, v{r}
        v_and_b32 v{r}, 0xffff0000, v{r}
        v_mul_f32 v121, s21, v121
        v_mul_f32 v{r}, s21, v{r}
        v_cvt_pk_bf16_f32 v{r}, v121, v{r}""")
    a(f"""
    s_cmp_eq_u32 s7, 0
    s_cselect_b64 vcc, -1, 0
    v_cndmask_b32 v{QL}, 0, v{QL}, vcc
    v_cndmask_b32 v{QL+1}, v{QL+1}, 0, vcc
    v_cndmask_b32 v{QH}, 0, v{QL}, s[22:23]
    v_cndmask_b32 v{QH+1}, 0, v{QL+1}, s[22:23]
    v_cndmask_b32 v{QL}, v{QL}, 0, s[22:23]
    v_cndmask_b32 v{QL+1}, v{QL+1}, 0, s[22:23]
    s_waitcnt vmcnt(0)
    s_barrier
    """)
    stamp(a, 3)
    def rdK(buf, t): a(f"ds_read2st64_b64 {vr(KF[buf],4)}, v{vK} offset0:{2*t} offset1:{2*t+1}")
    def rdT(buf, q): a(f"ds_read2st64_b64 {vr(TF[buf],4)}, v{vT} offset0:{2*q} offset1:{2*q+1}")
    def rdV(buf, t):
        a(f"""s_mov_b64 exec, s[18:19]
        ds_read_b128 {vr(VF[buf],4)}, v{vV} offset:{t*1152}
        ds_read_b128 {vr(VF[buf]+4,4)}, v{vV} offset:{t*1152+576}
        s_mov_b64 exec, -1""")
    def qk_tail(t, tb):
        tt = t & 3
        a(f"v_mfma_f32_32x32x8_bf16 {vr(S[t&1],16)}, {vr(TF[tb]+2*(tt>>1),2)}, {vr(QH if tt&1 else QL,2)}, {vr(S[t&1],16)}")
    def pv(t, half): a(f"v_mfma_f32_32x32x16_bf16 {vr(O,16)}, {vr(VF[t&1]+4*half,4)}, {vr(P+4*half,4)}, {vr(O,16)}")
    def ex(t, r0, r1):
        for r in range(r0, r1): a(f"v_exp_f32 v{S[t&1]+r}, v{S[t&1]+r}")
    def cv(t, c0, c1):
        for c in range(c0, c1): a(f"v_cvt_pk_bf16_f32 v{P+c}, v{S[t&1]+2*c}, v{S[t&1]+2*c+1}")
    def run(fast):
        tag = "k2f" if fast else "k2s"
        def qk_main(t): a(f"v_mfma_f32_32x32x16_bf16 {vr(S[t&1],16)}, {vr(KF[t&1],4)}, {vr(Q,4)}, " + ("0" if fast else vr(NEG,16)))
        rdK(0, 0); rdT(0, 0); rdK(1, 1); rdV(0, 0)
        if not fast:
            for i in range(16): a(f"v_mov_b32 v{O+i}, 0")
            for i in range(4): a(f"v_mov_b32 v{P+4+i}, 0")
        a("s_mov_b32 s26, 0\ns_waitcnt lgkmcnt(3)")
        qk_main(0); qk_tail(0, 0)
        a("s_nop 7\ns_nop 3")
        a(".p2align 6")
        a.l.append(f"{tag}_loop:")
        for t in range(8):
            if fast and t == 4:
                a(f"""s_cmp_lg_u32 s26, 1
                s_cbranch_scc1 {tag}_nobar""")
                stamp(a, 4)
                a("s_barrier")
                stamp(a, 5)
                a.l.append(f"{tag}_nobar:")
                if "noprio" not in OPT:
                    a(f"""s_cmp_lg_u32 s26, 6
                    s_cbranch_scc1 {tag}_np1
                    s_setprio 1""")
                    a.l.append(f"{tag}_np1:")
            if fast and t == 6 and "noprio" not in OPT:
                a(f"""s_cmp_lg_u32 s26, 7
                s_cbranch_scc1 {tag}_np0
                s_setprio 0""")
                a.l.append(f"{tag}_np0:")
            a("s_waitcnt lgkmcnt(0)")
            qk_main(t+1)
            rdK(t&1, t+2)
            if (t & 3) == 1: rdT(((t>>2)+1)&1, (t>>2)+1)
            ex(t, 0, 4)
            pv(t-1, 1)
            rdV((t+1)&1, t+1)
            ex(t, 4, 8); cv(t, 0, 4)
            qk_tail(t+1, ((t+1)>>2)&1)
            ex(t, 8, 12)
            pv(t, 0)
            if t == 7:
                a(f"""v_add_u32 v{vK}, 8192, v{vK}
                v_add_u32 v{vT}, 2048, v{vT}
                v_add_u32 v{vV}, 9216, v{vV}
                s_add_u32 s26, s26, 1
                s_cmp_lt_u32 s26, 8""")
            ex(t, 12, 16); cv(t, 4, 8)
        a(f"s_cbranch_scc1 {tag}_loop")
        if fast: stamp(a, 6)
        a("s_nop 1")
        pv(7, 1)
        a(f"""
        v_subrev_u32 v{vK}, 65536, v{vK}
        v_subrev_u32 v{vT}, 16384, v{vT}
        v_subrev_u32 v{vV}, {8*9216}, v{vV}
        s_waitcnt lgkmcnt(0)
        s_nop 15
        """)
    run(True)
    a(f"""
    v_max3_f32 v121, abs(v{O}), abs(v{O+1}), abs(v{O+2})
    v_max3_f32 v121, abs(v{O+3}), abs(v{O+4}), v121
    v_max3_f32 v121, abs(v{O+5}), abs(v{O+6}), v121
    v_max3_f32 v121, abs(v{O+7}), abs(v{O+8}), v121
    v_add_f32 v122, v{O}, v{O+1}
    v_add_f32 v123, v{O+2}, v{O+3}
    v_add_f32 v124, v{O+4}, v{O+5}
    v_add_f32 v125, v{O+6}, v{O+7}
    v_add_f32 v126, v{O+8}, v{O+9}
    v_add_f32 v122, v122, v123
    v_add_f32 v124, v124, v125
    v_add_f32 v122, v122, v126
    v_add_f32 v122, v122, v124
    v_max3_f32 v121, abs(v{O+9}), v{O+10}, v121
    s_mov_b32 s27, {f2u(2.0**100):#x}
    v_cmp_ngt_f32 vcc, s27, v121
    v_cmp_nle_f32 s[28:29], 1.0, v{O+10}
    v_cmp_u_f32 s[30:31], v122, v122
    s_or_b64 vcc, vcc, s[28:29]
    s_or_b64 vcc, vcc, s[30:31]
    s_cbranch_vccz k2_fin
    s_mov_b32 s26, 0
    v_mov_b32 v121, 0xff800000
k2_mx:
    """)
    rdT(0, 0)
    for t in range(4):
        rdK(0, t)
        a("s_waitcnt lgkmcnt(0)")
        a(f"v_mfma_f32_32x32x16_bf16 {vr(S[0],16)}, {vr(KF[0],4)}, {vr(Q,4)}, 0")
        a(f"v_mfma_f32_32x32x8_bf16 {vr(S[0],16)}, {vr(TF[0]+2*(t>>1),2)}, {vr(QH if t&1 else QL,2)}, {vr(S[0],16)}")
        a("s_nop 15")
        for r in range(8): a(f"v_max3_f32 v121, v{S[0]+2*r}, v{S[0]+2*r+1}, v121")
    a(f"""
    v_add_u32 v{vK}, 4096, v{vK}
    v_add_u32 v{vT}, 1024, v{vT}
    s_add_u32 s26, s26, 1
    s_cmp_lt_u32 s26, 16
    s_cbranch_scc1 k2_mx
    v_subrev_u32 v{vK}, 65536, v{vK}
    v_subrev_u32 v{vT}, 16384, v{vT}
    v_mov_b32 v122, v121
    s_nop 1
    v_permlane32_swap_b32 v121, v122
    s_nop 1
    v_max_f32 v121, v121, v122
    """)
    for i in range(16): a(f"v_sub_f32 v{NEG+i}, 0, v121")
    run(False)
    a(f"""
k2_fin:
    v_rcp_f32 v121, v{O+10}
    s_mul_i32 s10, s5, {O_T}
    s_add_u32 s10, s10, {WS_O}
    s_lshl_b32 s11, s4, 10
    s_add_u32 s11, s11, s10
    s_lshr_b32 s12, s4, 2
    s_lshl_b32 s12, s12, 9
    s_and_b32 s13, s4, 3
    s_lshl_b32 s13, s13, 2
    s_add_u32 s12, s12, s13
    s_add_u32 s12, s12, s10
    s_add_u32 s12, s12, 32768
    """)
    for r in range(10): a(f"v_mul_f32 v{O+r}, v{O+r}, v121")
    for c in range(5): a(f"v_cvt_pk_bf16_f32 v{P+c}, v{O+2*c}, v{O+2*c+1}")
    a(f"""
    buffer_store_dwordx4 {vr(P,4)}, v119, s[36:39], s11 offen {ST2}
    s_mov_b32 exec_hi, 0
    buffer_store_dword v{P+4}, v119, s[36:39], s12 offen {ST2}
    """)
    stamp_out(a, 1)
    a("s_endpgm")
    a.l.append("k2_conv:")
    a(f"""
    s_and_b32 s4, s2, 31                 ; h
    s_lshr_b32 s6, s4, 1
    s_mul_i32 s6, s6, 2304
    s_and_b32 s7, s4, 1
    s_mul_i32 s8, s7, 1280
    s_add_u32 s8, s8, s6
    s_add_u32 s8, s8, {144*256 + 16*QK_T}          ; K main
    s_add_u32 s9, s6, {1024 + 144*256 + 32*QK_T}   ; K tail
    s_mul_i32 s10, s4, {V_H}
    s_add_u32 s10, s10, {WS_V + 16384}             ; V
    v_lshlrev_b32 v119, 4, v116
    v_lshrrev_b32 v120, 4, v116
    s_mov_b32 s13, {QK_T}
    v_mul_lo_u32 v120, v120, s13
    v_and_b32 v121, 15, v116
    v_lshl_add_u32 v120, v121, 4, v120
    s_mov_b32 s11, {QK_T}
    s_mov_b32 s12, 48
    s_mov_b32 m0, 16384
    s_sub_u32 s14, s3, 9
    s_mul_i32 s14, s14, {14*1024}
    s_add_u32 s10, s10, s14
    s_add_u32 s14, s14, {L_V + 16384}
    s_bitcmp1_b32 s3, 0
    s_cselect_b32 s8, s10, s8
    s_cselect_b32 s11, 1024, s11
    s_cselect_b32 s12, 28, s12
    s_cselect_b32 m0, s14, m0
    s_cmp_eq_u32 s3, 10
    s_cselect_b32 s8, s9, s8
    s_cselect_b32 s11, {4*QK_T}, s11
    s_cselect_b32 s12, 8, s12
    s_cselect_b32 m0, {L_KT + 8192}, m0
    s_cselect_b64 vcc, -1, 0
    v_cndmask_b32 v119, v119, v120, vcc
    s_waitcnt lgkmcnt(0)
    """)
    srd(a, 36, 24, WS_END)
    a(f"""
    s_barrier
k2_ld:
    buffer_load_dwordx4 v119, s[36:39], s8 offen lds
    s_add_u32 m0, m0, 1024
    s_add_u32 s8, s8, s11
    s_sub_u32 s12, s12, 1
    s_cmp_lg_u32 s12, 0
    s_cbranch_scc1 k2_ld
    s_lshr_b32 s12, s2, 3
    s_lshl_b32 s12, s12, 2
    s_add_u32 s12, s12, s3
    s_sub_u32 s12, s12, 8
    s_lshl_b32 s12, s12, 13
    v_lshlrev_b32 v121, 7, v116
    s_mov_b32 s42, 663552
    s_mov_b32 s43, 0x20000
    {"; " if "notouch" in OPT else ""}buffer_load_dword v122, v121, s[40:43], s12 offen
    s_setprio 3
    s_and_b32 s4, s2, 7                  ; x
    s_lshr_b32 s5, s2, 3                 ; idx
    s_sub_u32 s6, s3, 8
    s_lshl_b32 s6, s6, 5
    s_add_u32 s6, s6, s5                 ; slot
    s_sub_u32 s7, s6, 72
    s_lshl_b32 s7, s7, 1
    s_cmp_lt_u32 s6, 72
    s_cselect_b32 s7, s6, s7
    s_cselect_b32 s20, 0, 8
    s_cselect_b32 s21, 0, 2048
    s_cselect_b32 s22, 1024, 0
    s_cselect_b32 s23, -1, 0
    s_lshl_b32 s8, s7, 3
    s_add_u32 s8, s8, s4                 ; channel
    s_mul_i32 s9, s8, {KRCH}
    s_add_u32 s9, s9, {WS_KR + 2048}     ; A1
    s_lshl_b32 s10, s8, 12
    s_add_u32 s10, s10, s22
    s_add_u32 s10, s10, {WS_U - 31*32}   ; B1
    s_add_u32 s8, s8, s20
    s_mul_i32 s17, s8, {KRCH}
    s_add_u32 s17, s17, s21
    s_add_u32 s17, s17, {WS_KR}          ; A2
    s_lshl_b32 s18, s8, 12
    s_add_u32 s18, s18, {WS_U - 31*32}   ; B2
    s_mov_b32 s11, 31                    ; k
    v_and_b32 v117, 31, v116             ; rho / a'
    v_lshrrev_b32 v118, 5, v116          ; h
    v_and_b32 v119, 16, v117
    v_bfe_u32 v120, v117, 2, 1
    v_lshl_add_u32 v119, v120, 3, v119
    v_and_b32 v120, 3, v117
    v_lshl_add_u32 v119, v120, 1, v119
    v_bfe_u32 v120, v117, 3, 1           ; parity
    v_lshlrev_b32 v121, 3, v118
    v_sub_u32 v121, v121, v119
    v_add_u32 v121, 30, v121
    v_lshlrev_b32 v121, 1, v121
    v_xor_b32 v120, 1, v120
    v_mul_u32_u24 v120, {KRC+4}, v120
    v_add_u32 v112, v121, v120           ; vA
    v_lshlrev_b32 v113, 5, v117
    v_lshl_add_u32 v113, v118, 4, v113   ; vB
    """)
    CD = int(OPT.get("cd", 4))
    for i in range(32): a(f"v_mov_b32 v{i}, 0")
    for buf in range(CD):
        for i in list(range(4, 8)) + list(range(12, 16)): a(f"v_mov_b32 v{32+16*buf+i}, 0")
    a("s_waitcnt vmcnt(0)\ns_barrier")
    a("""s_cmp_ge_u32 s6, 108
    s_cbranch_scc1 k2_done""")
    if "noconv" in OPT: a("s_endpgm")
    stamp(a, 3)
    def cload1(buf, es):
        b = 32 + 16*buf
        a(f"""buffer_load_dwordx4 {vr(b,4)}, v112, s[36:39], s9 offen
        s_lshl_b32 s12, -1, s11
        s_or_b32 exec_lo, s12, s23
        s_or_b32 exec_hi, s12, s23
        buffer_load_dwordx4 {vr(b+4,4)}, v113, s[36:39], s10 offen offset:{es*2048}
        s_mov_b64 exec, -1
        s_add_u32 s9, s9, 32""")
    def cload2(buf, es):
        b = 32 + 16*buf
        a(f"""buffer_load_dwordx4 {vr(b+8,4)}, v112, s[36:39], s17 offen
        s_mov_b32 exec_lo, s12
        s_mov_b32 exec_hi, s12
        buffer_load_dwordx4 {vr(b+12,4)}, v113, s[36:39], s18 offen offset:{es*2048}
        s_mov_b64 exec, -1
        s_add_u32 s17, s17, 32""")
        if es: a("s_add_u32 s10, s10, 32\ns_add_u32 s18, s18, 32\ns_sub_u32 s11, s11, 1")
    for buf in range(CD): cload1(buf, buf & 1); cload2(buf, buf & 1)
    a("s_mov_b32 s14, 0")
    a.l.append("k2_cloop:")
    for buf in range(CD):
        b = 32 + 16*buf
        a(f"""s_waitcnt vmcnt({4*CD-2})
        {"; " if "cnomfma" in OPT else ""}v_mfma_f32_32x32x16_bf16 v[0:15], {vr(b,4)}, {vr(b+4,4)}, v[0:15]""")
        cload1(buf, buf & 1)
        a(f"""s_waitcnt vmcnt({4*CD-2})
        {"; " if "cnomfma" in OPT else ""}v_mfma_f32_32x32x16_bf16 v[16:31], {vr(b+8,4)}, {vr(b+12,4)}, v[16:31]""")
        cload2(buf, buf & 1)
    a(f"""
    s_add_u32 s14, s14, 1
    s_cmp_lt_u32 s14, {64//CD}
    s_cbranch_scc1 k2_cloop
    v_lshl_add_u32 v114, v117, 2, v118   ; g = 4a'+hf
    v_mul_u32_u24 v114, 9216, v114
    s_mul_i32 s15, s4, 1152
    s_lshl_b32 s16, s7, 4
    s_add_u32 s15, s15, s16
    s_add_u32 s15, s15, {WS_Y}
    s_add_u32 s16, s15, {2*9216}
    s_nop 7
    s_cmp_lt_u32 s6, 72
    s_cbranch_scc0 k2_clow
    """)
    for r in range(16): a(f"v_add_f32 v{r}, v{r}, v{16+r}")
    a(f"s_add_u32 s15, s15, {128*9216}\ns_add_u32 s16, s16, {128*9216}\ns_branch k2_cst")
    a.l.append("k2_clow:")
    for u in range(2, 4):
        for r in range(4): a(f"v_cvt_pk_bf16_f32 v{96+4*u+r}, v{8*u+r}, v{8*u+r+4}")
        a(f"buffer_store_dwordx4 {vr(96+4*u,4)}, v114, s[36:39], s{15+(u&1)} offen offset:16 {ST2}")
    a.l.append("k2_cst:")
    for u in range(2):
        for r in range(4): a(f"v_cvt_pk_bf16_f32 v{96+4*u+r}, v{8*u+r}, v{8*u+r+4}")
        a(f"buffer_store_dwordx4 {vr(96+4*u,4)}, v114, s[36:39], s{15+(u&1)} offen {ST2}")
    stamp_out(a, 1)
    a.l.append("k2_done:")
    a("s_endpgm")
    a.l.append(kdesc("k2_kernel", 128))

def k3(a):
    khead(a, "k3_kernel")
    L_FL = 143360
    a(f"""
    s_cmp_ge_u32 s2, 240
    s_cbranch_scc1 k3_done
    s_load_dwordx2 s[20:21], s[0:1], 16
    s_load_dwordx2 s[22:23], s[0:1], 80
    s_load_dwordx2 s[24:25], s[0:1], 96
    v_lshrrev_b32 v1, 6, v0
    v_and_b32 v0, 63, v0
    v_readfirstlane_b32 s3, v1
    s_cmp_ge_u32 s2, 192
    s_cbranch_scc1 k3_tr
    s_cmp_lg_u32 s3, 0
    s_cbranch_scc1 k3_noarm
    v_lshlrev_b32 v2, 3, v0
    v_add_u32 v2, {L_FL}, v2
    v_and_b32 v3, 3, v0
    v_cmp_gt_u32 vcc, 3, v3
    v_cmp_gt_u32 s[8:9], 2, v3
    s_nop 0
    v_cndmask_b32 v4, 0, -1, vcc
    v_cndmask_b32 v5, 0, -1, s[8:9]
    ds_write_b64 v2, v[4:5]
    s_waitcnt lgkmcnt(0)
k3_noarm:
    s_barrier
    s_and_b32 s4, s2, 7
    s_lshr_b32 s5, s2, 3                 ; idx 0..23
    s_and_b32 s6, s5, 3
    s_lshl_b32 s4, s4, 2
    s_add_u32 s4, s4, s6                 ; tm
    s_lshr_b32 s5, s5, 2                 ; tn
    v_lshlrev_b32 v2, 4, v0
    s_cmp_ge_u32 s3, 5
    s_cbranch_scc1 k3_comp
    s_mul_i32 s41, s5, 3
    s_lshr_b32 s41, s41, 1
    s_lshl_b32 s40, s6, 1
    s_add_u32 s40, s40, s41
    s_cmp_ge_u32 s40, 9
    s_cselect_b32 s41, 9, 0
    s_sub_u32 s40, s40, s41
    {"s_mov_b32 s40, 0" if "norot3" in OPT else ""}
    s_lshl_b32 s6, s4, 1
    s_sub_u32 s17, s3, 2
    s_lshl_b32 s17, s17, 6
    v_add_u32 v5, s17, v0                ; U
    v_mul_u32_u24 v6, 5462, v5
    v_lshrrev_b32 v6, 16, v6             ; row = U/12
    v_mul_u32_u24 v7, 12, v6
    v_sub_u32 v7, v5, v7
    s_mul_i32 s17, s5, 192
    v_lshl_add_u32 v7, v7, 4, s17
    v_mul_u32_u24 v8, 1152, v6
    v_add_u32 v8, v8, v7
    v_and_b32 v9, 4, v6
    v_lshrrev_b32 v10, 3, v6
    v_lshl_add_u32 v9, v10, 1, v9
    v_bfe_u32 v10, v6, 1, 1
    v_add_u32 v9, v9, v10
    v_mul_u32_u24 v9, 18, v9
    v_and_b32 v10, 1, v6
    v_add3_u32 v9, v9, v10, 16
    v_mul_u32_u24 v9, 1152, v9
    v_add_u32 v9, v9, v7
    s_add_u32 s7, s6, s3
    s_mul_i32 s7, s7, {O_T}
    s_add_u32 s7, s7, {WS_O}
    s_lshl_b32 s10, s3, 12
    s_lshl_b32 s17, s3, 10
    s_add_u32 s17, s17, {8192 - 2048}
    s_mov_b32 s44, 20736
    s_mov_b32 s45, {8*20736}
    s_mov_b32 s46, 3072
    s_lshl_b32 s51, s3, 2
    s_add_u32 s51, s51, {L_FL}
    v_mov_b32 v11, 0x7ffffff0
    s_cmp_lt_u32 s3, 2
    s_cselect_b64 vcc, -1, 0
    s_cselect_b32 s7, s7, 0
    s_cselect_b32 s10, s10, s17
    s_cselect_b32 s44, 1024, s44
    s_cselect_b32 s45, 1024, s45
    s_cselect_b32 s46, 1024, s46
    s_cselect_b32 s47, 32768, 0
    v_cndmask_b32 v8, v8, v2, vcc
    v_cndmask_b32 v9, v9, v2, vcc
    s_mov_b32 s42, 0                     ; position
    s_waitcnt lgkmcnt(0)
    s_cmp_lt_u32 s3, 2
    s_cselect_b32 s28, s24, s20
    s_cselect_b32 s29, s25, s21
    s_mov_b32 s30, 663552
    s_cselect_b32 s30, {WS_END}, s30
    s_mov_b32 s31, 0x20000
k3_ld:
    s_lshl_b32 s48, s44, 2
    s_mul_i32 s48, s48, s40
    s_cmp_eq_u32 s40, 8
    s_cselect_b32 s48, s47, s48
    s_cselect_b32 s49, s45, s44
    s_cselect_b64 vcc, -1, 0
    s_cselect_b32 s40, -1, s40
    s_add_u32 s40, s40, 1
    s_add_u32 s48, s48, s7
    v_cndmask_b32 v10, v8, v9, vcc
    s_mov_b32 m0, s10
    s_add_u32 s10, s10, 20480
    """)
    for q in range(4):
        a("buffer_load_dwordx4 v10, s[28:31], s48 offen lds")
        if q < 3: a("s_add_u32 m0, m0, s46\ns_add_u32 s48, s48, s49")
    a(f"""
    s_mov_b32 m0, s51
    s_mov_b64 exec, 1
    buffer_load_dword v11, s[28:31], 0 offen lds
    s_mov_b64 exec, -1
    s_add_u32 s51, s51, 32
    s_add_u32 s42, s42, 1
    s_cmp_lg_u32 s42, 7
    s_cbranch_scc1 k3_ldn
    s_sub_u32 s10, s10, 143360
    s_barrier
k3_ldn:
    s_cmp_lt_u32 s42, 9
    s_cbranch_scc1 k3_ld
    """)
    if INSTR: a("s_waitcnt vmcnt(0)")
    stamp_out(a, 2)
    a(f"""
    s_endpgm
k3_comp:
    ; compute tile: ta = w/3, tb = w%3
    s_sub_u32 s9, s3, 5
    s_lshl_b32 s6, s4, 1
    s_mul_i32 s8, s5, 3
    s_cmp_ge_u32 s9, 3
    s_cselect_b32 s11, 1, 0
    s_mul_i32 s12, s11, 3
    s_sub_u32 s12, s9, s12
    s_add_u32 s13, s6, s11
    s_add_u32 s14, s8, s12               ; n tile
    s_lshl_b32 s17, s11, 12
    v_add_u32 v3, s17, v2
    v_lshrrev_b32 v5, 5, v0
    v_bfe_u32 v6, v0, 2, 2
    v_lshl_add_u32 v5, v5, 2, v6
    v_mul_u32_u24 v4, 192, v5            ; (4hf + r)*192
    v_bfe_u32 v5, v0, 4, 1
    v_lshl_add_u32 v4, v5, 5, v4
    v_and_b32 v5, 3, v0
    v_lshl_add_u32 v4, v5, 3, v4
    s_lshl_b32 s17, s12, 6
    s_add_u32 s17, s17, 8192
    v_add_u32 v4, s17, v4
    v_and_b32 v7, 7, v0
    v_lshlrev_b32 v7, 2, v7
    v_add_u32 v7, {L_FL}, v7
    v_add_u32 v8, 61440, v3
    v_add_u32 v9, 61440, v4
    v_add_u32 v10, 122880, v3
    v_add_u32 v11, 122880, v4
    s_waitcnt lgkmcnt(0)
    """)
    srd(a, 32, 22, 4718592)
    def rd(p):
        slot = p % 7; hi = slot // 3; base = (slot % 3) * 20480; fb = 32 + 32*(p & 1)
        va, vb = [(3, 4), (8, 9), (10, 11)][hi]
        out = []
        for k in range(4):
            out.append(f"ds_read_b128 {vr(fb+8*k,4)}, v{va} offset:{base+k*1024}")
            out.append(f"ds_read_b64_tr_b16 {vr(fb+4+8*k,2)}, v{vb} offset:{base+k*3072}")
            out.append(f"ds_read_b64_tr_b16 {vr(fb+6+8*k,2)}, v{vb} offset:{base+k*3072+8*192}")
        return out
    def poll(p):
        a.l.append(f"k3_p{p}:")
        a(f"""ds_read_b32 v12, v7 offset:{32*p}
        s_waitcnt lgkmcnt(0)
        v_cmp_ne_u32 vcc, 0, v12
        s_cbranch_vccnz k3_p{p}""")
    poll(0)
    stamp(a, 3)
    a("\n".join(rd(0)))
    for p in range(9):
        fb = 32 + 32*(p & 1)
        m = [f"v_mfma_f32_32x32x16_bf16 v[16:31], {vr(fb+8*k,4)}, {vr(fb+4+8*k,4)}, " + ("0" if p == 0 and k == 0 else "v[16:31]") for k in range(4)]
        if p < 8:
            a(f"ds_read_b32 v12, v7 offset:{32*(p+1)}\ns_waitcnt lgkmcnt(0)")
            a(m[0])
            a(f"v_cmp_ne_u32 vcc, 0, v12\ns_cbranch_vccz k3_f{p}")
            a(m[1]); a(m[2]); a(m[3])
            if p == 4: a("s_barrier")
            poll(p+1)
            a("\n".join(rd(p+1)))
            a(f"s_branch k3_g{p}")
            a.l.append(f"k3_f{p}:")
            r = rd(p+1)
            a("\n".join(r[:6])); a(m[1]); a("\n".join(r[6:])); a(m[2]); a(m[3])
            if p == 4: a("s_barrier")
            a.l.append(f"k3_g{p}:")
        else:
            a("s_waitcnt lgkmcnt(0)")
            a("\n".join(m))
    stamp(a, 4)
    a(f"""
    v_lshrrev_b32 v5, 5, v0
    v_mul_u32_u24 v5, {8*2304}, v5
    v_and_b32 v6, 31, v0
    v_lshl_add_u32 v5, v6, 1, v5
    s_mul_i32 s17, s13, {32*2304}
    s_lshl_b32 s18, s14, 6
    s_add_u32 s17, s17, s18
    s_nop 7
    s_nop 3
    """)
    for c in range(8):
        a(f"v_cvt_pk_bf16_f32 v{32+c}, v{16+2*c}, v{16+2*c+1}")
    for c in range(8):
        tok = (2*c & 7) + 16*(c >> 2)
        a(f"""s_add_u32 s18, s17, {tok*2304}
        buffer_store_short v{32+c}, v5, s[32:35], s18 offen
        buffer_store_short_d16_hi v{32+c}, v5, s[32:35], s18 offen offset:2304""")
    stamp(a, 6); a("s_waitcnt vmcnt(0)") if INSTR else None
    stamp_out(a, 2)
    a("s_endpgm")
    a.l.append("k3_tr:")
    a(f"""
    s_cmp_ge_u32 s3, 6
    s_cbranch_scc1 k3_done
    s_sub_u32 s4, s2, 192
    s_mul_i32 s4, s4, 6
    s_add_u32 s4, s4, s3                 ; task
    s_mul_i32 s5, s4, 7282
    s_lshr_b32 s5, s5, 16                ; gb
    s_mul_i32 s6, s5, 9
    s_sub_u32 s6, s4, s6                 ; ob
    v_lshrrev_b32 v2, 3, v0
    s_lshl_b32 s7, s5, 3
    v_add_u32 v2, s7, v2                 ; g
    v_and_b32 v3, 7, v0
    s_lshl_b32 s7, s6, 3
    v_add_u32 v3, s7, v3                 ; oct
    v_mul_u32_u24 v4, 9216, v2
    v_lshl_add_u32 v4, v3, 4, v4
    v_mul_u32_u24 v5, {8*2304}, v2
    v_lshl_add_u32 v5, v3, 4, v5
    s_mov_b32 s8, {WS_Y}
    s_mov_b32 s9, {WS_Y + 4608}
    s_mov_b32 s10, 0x05040100
    s_mov_b32 s11, 0x07060302
    s_waitcnt lgkmcnt(0)
    """)
    srd(a, 36, 24, WS_END)
    srd(a, 32, 22, 4718592)
    for j in range(8):
        a(f"buffer_load_dwordx4 {vr(16+4*j,4)}, v4, s[36:39], s{8+(j>>2)} offen offset:{(j&3)*1152}")
    a("s_waitcnt vmcnt(0)")
    transpose8(a, 16, 48, 10, 11)
    for c in range(8):
        a(f"s_mov_b32 s12, {1152 + c*2304}\nbuffer_store_dwordx4 {vr(48+4*c,4)}, v5, s[32:35], s12 offen")
    stamp(a, 6); a("s_waitcnt vmcnt(0)") if INSTR else None
    stamp_out(a, 2)
    a.l.append("k3_done:")
    a("s_endpgm")
    a.l.append(kdesc("k3_kernel", 96))

def main():
    ref = open("concat_heads__mha_block__ssm_conv_s4d__prompt.s.ref").read().split("\n")
    head = [l for l in ref if l.startswith(";") and "@launch" not in l and "Override launch" not in l and "grid=ceil" not in l]
    head += ["; @launch kernel=k1_kernel grid=(256,1,1) block=(768,1,1) lds=131328",
             "; @launch kernel=k2_kernel grid=(256,1,1) block=(768,1,1) lds=155648",
             "; @launch kernel=k3_kernel grid=(240,1,1) block=(704,1,1) lds=143872"]
    a = A()
    k1(a); k2(a); k3(a)
    out = "\n".join(head) + "\n.amdgcn_target \"amdgcn-amd-amdhsa--gfx950\"\n" + a.text()
    path = sys.argv[1] if len(sys.argv) > 1 and sys.argv[1].endswith(".s") else "concat_heads__mha_block__ssm_conv_s4d__prompt.s"
    open(path, "w").write(out)
main()
```

```python
import sys, struct, math

def f2u(x): return struct.unpack("<I", struct.pack("<f", x))[0]

WS_QK = 0
QK_T = 73728
WS_V = WS_QK + 64 * QK_T
V_H = 73728
WS_O = WS_V + 32 * V_H
O_T = 36864
WS_WO = WS_O + 64 * O_T
WS_U = WS_WO + 18 * O_T
WS_KR = WS_U + 576 * 4096
KRC = 4224
KRCH = 2 * KRC
WS_Y = WS_KR + 576 * KRCH
WS_END = WS_Y + 256 * 9216 + 8192

class A:
    def __init__(s): s.l = []
    def __call__(s, t):
        for line in t.strip("\n").split("\n"):
            s.l.append(line if line.strip().endswith(":") and not line.startswith(" ") else "    " + line.strip())
    def text(s): return "\n".join(s.l) + "\n"

def vr(b, n): return f"v[{b}:{b+n-1}]"

def srd(a, d, lo, size):
    a(f"""s_mov_b32 s{d}, s{lo}
    s_mov_b32 s{d+1}, s{lo+1}
    s_mov_b32 s{d+2}, {size}
    s_mov_b32 s{d+3}, 0x20000""")

def kdesc(name, nv, ns=96):
    return f""".section .rodata,"a"
.p2align 6
.amdhsa_kernel {name}
  .amdhsa_next_free_vgpr {nv}
  .amdhsa_next_free_sgpr {ns}
  .amdhsa_accum_offset {(nv+3)//4*4}
  .amdhsa_group_segment_fixed_size 0
  .amdhsa_kernarg_size 104
  .amdhsa_user_sgpr_count 2
  .amdhsa_user_sgpr_kernarg_segment_ptr 1
  .amdhsa_system_sgpr_workgroup_id_x 1
.end_amdhsa_kernel
"""

INSTR = "instr" in sys.argv
OPT = dict(x.split("=") for x in sys.argv if "=" in x)
ST1 = OPT.get("st1", "").replace("+", " ")
ST2 = OPT.get("st2", "sc1").replace("+", " ")
LDF = OPT.get("ldf", "")
STQ = OPT.get("stq", ""); STV = OPT.get("stv", ""); STU = OPT.get("stu", ""); STK = OPT.get("stk", "")
WS_ST = 24 << 20
def stamp(a, i):
    if INSTR: a(f"s_memtime s[{70+2*i}:{71+2*i}]")
def stamp_rt(a, i):
    if INSTR: a(f"s_memrealtime s[{86+2*i}:{87+2*i}]")
def stamp_out(a, kidx):
    if not INSTR: return
    a(f"""s_memtime s[84:85]
    s_memrealtime s[88:89]
    s_waitcnt lgkmcnt(0)
    s_mov_b64 exec, 1
    s_lshl_b32 s90, s2, 4
    s_add_u32 s90, s90, s3
    s_lshl_b32 s90, s90, 6
    s_add_u32 s90, s90, {WS_ST + kidx*(256*16*64)}
    v_mov_b32 v1, s90""")
    for i in range(10):
        a(f"v_mov_b32 v2, s{70+2*i}\nglobal_store_dword v1, v2, s[24:25] offset:{4*i}")
    a("s_waitcnt vmcnt(0)")

DIAG = int(OPT.get("diag", 0))
def diag_entry(a, k):
    if not DIAG: return
    a(f"""s_memrealtime s[94:95]
    s_load_dwordx2 s[92:93], s[0:1], 96
    s_cmp_lg_u32 s2, 0
    s_cbranch_scc1 dg{k}_skip
    s_waitcnt lgkmcnt(0)
    v_cmp_eq_u32 vcc, 0, v0
    s_and_saveexec_b64 s[90:91], vcc
    s_cbranch_execz dg{k}_r
    v_mov_b32 v1, {(24<<20) + 128*k}
    v_mov_b32 v2, s94
    global_store_dword v1, v2, s[92:93]
dg{k}_r:
    s_mov_b64 exec, s[90:91]
dg{k}_skip:
    s_waitcnt lgkmcnt(0)""")
def diag_end(a):
    if not DIAG: return
    a(f"""s_cmp_lg_u32 s2, 0
    s_cbranch_scc1 dge_skip
    s_waitcnt vmcnt(0)
    s_memrealtime s[80:81]
    v_mov_b32 v1, {24<<20}
    global_load_dword v2, v1, s[92:93] sc1
    global_load_dword v3, v1, s[92:93] offset:128 sc1
    s_waitcnt vmcnt(0) lgkmcnt(0)
    v_readfirstlane_b32 s82, v2
    v_readfirstlane_b32 s83, v3
    s_nop 3
    {["", "s_sub_u32 s84, s83, s82", "s_sub_u32 s84, s94, s83", "s_sub_u32 s84, s80, s94", "s_mov_b32 s84, 0"][DIAG]}
    s_min_u32 s84, s84, 10000
    s_lshl_b32 s84, s84, 2
dge_spin:
    s_memrealtime s[86:87]
    s_waitcnt lgkmcnt(0)
    s_sub_u32 s85, s86, s80
    s_cmp_lt_u32 s85, s84
    s_cbranch_scc1 dge_spin
dge_skip:""")

def khead(a, name):
    a(f""".text
.globl {name}
.p2align 8
.type {name},@function""")
    a.l.append(f"{name}:")
    if INSTR:
        for i in range(70, 90): a(f"s_mov_b32 s{i}, 0")
    stamp(a, 0); stamp_rt(a, 0)
    diag_entry(a, int(name[1]) - 1)

def transpose8(a, I, O, sLO, sHI):
    for c in range(8):
        for t in range(4):
            a(f"v_perm_b32 v{O+4*c+t}, v{I+4*(2*t+1)+(c>>1)}, v{I+4*(2*t)+(c>>1)}, s{sHI if c&1 else sLO}")

def k1(a):
    khead(a, "k1_kernel")
    L_FL = 131072
    mod9 = """
    s_mul_i32 s49, s48, 57
    s_lshr_b32 s49, s49, 9
    s_mul_i32 s49, s49, 9
    s_sub_u32 s48, s48, s49"""
    ROT = {"wg": "s_lshl_b32 s48, s40, 1\n    s_add_u32 s48, s48, s41" + mod9,
           "none": "s_mov_b32 s48, 0",
           "xcd": "s_and_b32 s48, s26, 3\n    s_lshl_b32 s48, s48, 1\n    s_lshr_b32 s49, s26, 2\n    s_mul_i32 s49, s49, 5\n    s_add_u32 s48, s48, s49" + mod9}[OPT.get("rot", "wg")]
    a(f"""
    s_cmp_ge_u32 s2, 256
    s_cbranch_scc1 k1_done
    s_load_dwordx16 s[4:19], s[0:1], 0
    s_load_dwordx4 s[20:23], s[0:1], 64
    s_load_dwordx2 s[24:25], s[0:1], 96
    v_lshrrev_b32 v1, 6, v0
    v_and_b32 v0, 63, v0
    v_readfirstlane_b32 s3, v1
    s_and_b32 s26, s2, 7
    s_lshr_b32 s27, s2, 3
    s_and_b32 s40, s26, 3
    s_lshl_b32 s40, s40, 2
    s_and_b32 s44, s27, 3
    s_add_u32 s40, s40, s44              ; mt
    s_lshr_b32 s41, s26, 2
    s_mul_i32 s41, s41, 7
    s_lshr_b32 s44, s27, 2
    s_add_u32 s41, s41, s44              ; part
    v_mov_b32 v23, {L_FL}
    s_cmp_lg_u32 s3, 0
    s_cbranch_scc1 k1_noarm
    v_mov_b32 v14, -1
    v_lshl_add_u32 v15, v0, 2, v23
    ds_write_b32 v15, v14
    s_waitcnt lgkmcnt(0)
k1_noarm:
    s_barrier
    {ROT}
    s_cmp_lt_u32 s3, 4
    s_cbranch_scc1 k1_kgen
    s_cmp_lt_u32 s3, 8
    s_cbranch_scc1 k1_gemm
    s_cmp_ge_u32 s27, 28
    s_cbranch_scc1 k1_task
    {"s_endpgm" if "noload" in OPT else ""}
    s_bfe_u32 s56, s3, 0x10001
    s_bitcmp1_b32 s3, 0
    s_cbranch_scc1 k1_ldw
    v_lshrrev_b32 v4, 3, v0              ; r3
    v_lshrrev_b32 v5, 2, v4
    v_lshlrev_b32 v5, 3, v5
    v_and_b32 v6, 3, v4
    v_add_u32 v5, v5, v6                 ; tokoff
    s_lshl_b32 s44, s40, 7
    v_add_u32 v5, s44, v5
    v_mul_u32_u24 v5, 1152, v5
    v_lshrrev_b32 v6, 1, v4
    v_and_b32 v7, 7, v0
    v_xor_b32 v6, v6, v7
    v_lshl_add_u32 v2, v6, 4, v5
    v_xor_b32 v6, 4, v6
    v_lshl_add_u32 v3, v6, 4, v5
    v_add_u32 v3, {4608-1024}, v3
    s_mov_b32 s50, 128
    s_mov_b32 s51, 18432
    s_mov_b32 s52, 0
    s_waitcnt lgkmcnt(0)
    s_mov_b32 s28, s4
    s_mov_b32 s29, s5
    s_mov_b32 s30, 2359296
    s_branch k1_ld
k1_ldw:
    v_lshrrev_b32 v5, 4, v0
    v_mul_u32_u24 v2, 3456, v5
    v_lshlrev_b32 v5, 2, v5
    v_and_b32 v6, 15, v0
    v_xor_b32 v5, v5, v6
    v_lshl_add_u32 v2, v5, 4, v2
    s_lshl_b32 s44, s41, 8
    v_add_u32 v2, s44, v2
    v_add_u32 v3, {13824-1024}, v2
    s_mov_b32 s50, 221184
    s_mov_b32 s51, 27648
    s_mov_b32 s52, 16384
    s_waitcnt lgkmcnt(0)
    s_mov_b32 s28, s6
    s_mov_b32 s29, s7
    s_mov_b32 s30, 1990656
k1_ld:
    s_mov_b32 s31, 0x20000
    s_mul_i32 s57, s56, s51
    s_lshl_b32 s57, s57, 2
    s_lshl_b32 s56, s56, 13
    s_add_u32 s52, s52, s56
    s_and_b32 s58, s3, 3
    s_lshl_b32 s58, s58, 2
    s_add_u32 s58, s58, {L_FL}
    v_mov_b32 v4, 0x7ffffff0
    s_mov_b32 s53, 0                     ; stage
k1_ld_loop:
    s_cmp_lt_u32 s53, {99 if "nopoll" in OPT else 4}
    s_cbranch_scc1 k1_ld_go
k1_ld_poll:
    ds_read_b128 v[8:11], v23 offset:160
    s_waitcnt lgkmcnt(0)
    v_or_b32 v8, v8, v9
    v_or3_b32 v8, v8, v10, v11
    v_cmp_eq_u32 vcc, 0, v8
    s_cbranch_vccz k1_ld_poll
    v_add_u32 v23, 16, v23
k1_ld_go:
    s_mul_i32 s47, s48, s50
    s_add_u32 s47, s47, s57
    s_and_b32 s55, s53, 3
    s_lshl_b32 s55, s55, 15
    s_add_u32 m0, s55, s52
    s_add_u32 s48, s48, 1
    """)
    for p in range(4):
        a(f"""buffer_load_dwordx4 v2, s[28:31], s47 offen {LDF} lds
        buffer_load_dwordx4 v3, s[28:31], s47 offen offset:1024 {LDF} lds""")
        if p < 3: a("s_add_u32 m0, m0, 2048\ns_add_u32 s47, s47, s51")
    a(f"""
    s_cmp_eq_u32 s48, 9
    s_cselect_b32 s48, 0, s48
    s_mov_b32 m0, s58
    s_mov_b64 exec, 1
    buffer_load_dword v4, s[28:31], 0 offen lds
    s_mov_b64 exec, -1
    s_add_u32 s58, s58, 16
    s_add_u32 s53, s53, 1
    s_cmp_lt_u32 s53, 9
    s_cbranch_scc1 k1_ld_loop
    s_waitcnt vmcnt(0)
    """)
    stamp_out(a, 0)
    a("s_endpgm")
    a.l.append("k1_gemm:")
    if OPT.get("pf", "0") == "1":
        a(f"""
        v_and_b32 v2, 15, v0
        s_and_b32 s44, s26, 3
        s_lshl_b32 s44, s44, 5
        s_add_u32 s44, s44, s27
        s_lshl_b32 s44, s44, 4
        v_add_u32 v3, s44, v2
        v_mul_u32_u24 v3, 1152, v3
        v_bfe_u32 v4, v0, 4, 1
        s_lshl_b32 s44, s27, 1
        v_add_u32 v4, s44, v4
        v_mul_u32_u24 v4, 3456, v4
        v_lshl_add_u32 v4, v2, 7, v4
        s_lshr_b32 s45, s26, 2
        s_mul_i32 s45, s45, 1792
        v_add_u32 v4, s45, v4
        v_mov_b32 v7, 0x7ffffff0
        v_cmp_lt_u32 vcc, 13, v2
        s_mov_b32 s47, 221184
        s_mov_b32 s31, 0x20000
        v_cndmask_b32 v4, v4, v7, vcc
        s_waitcnt lgkmcnt(0)
        """)
        for rnd in range(2):
            isx = [0b0001, 0b1010][rnd]; base = [[0,0,2,4],[6,4,8,8]][rnd]
            a(f"""
            s_sub_u32 s44, s3, 4
            s_lshl_b32 s45, s44, 2
            s_lshr_b32 s46, {sum(b << (4*i) for i, b in enumerate(base)):#x}, s45
            s_and_b32 s46, s46, 15
            s_bitcmp1_b32 {isx}, s44
            s_cselect_b32 s28, s4, s6
            s_cselect_b32 s29, s5, s7
            s_cselect_b32 s30, 2359296, s47
            s_cselect_b32 s45, 4, 5
            s_cselect_b32 s49, 128, s47
            s_cselect_b64 s[50:51], -1, 0
            s_cbranch_scc1 k1_pf{rnd}
            s_mul_i32 s30, s47, 9
k1_pf{rnd}:
            v_lshrrev_b32 v5, s45, v0
            v_add_u32 v5, s46, v5
            v_cmp_lt_u32 vcc, 8, v5
            v_add_u32 v5, s48, v5
            v_cndmask_b32 v6, v4, v3, s[50:51]
            v_cndmask_b32 v6, v6, v7, vcc
            v_cmp_lt_u32 vcc, 8, v5
            v_subrev_u32 v20, 9, v5
            s_nop 0
            v_cndmask_b32 v5, v5, v20, vcc
            v_mul_lo_u32 v5, v5, s49
            v_add_u32 v6, v5, v6
            buffer_load_dword v{60+rnd}, v6, s[28:31], 0 offen
            """)
    a(f"""
    s_cmp_ge_u32 s27, 28
    s_cbranch_scc1 k1_kgen
    s_sub_u32 s45, s3, 4
    s_and_b32 s42, s45, 1                ; mw
    s_lshr_b32 s43, s45, 1               ; nw
    s_lshl_b32 s58, s45, 2
    s_add_u32 s58, s58, {L_FL + 160}
    v_mov_b32 v22, 0x7ffffff0
    v_and_b32 v5, 31, v0                 ; i
    v_lshrrev_b32 v6, 5, v0              ; hf
    s_lshl_b32 s44, s42, 6
    v_add_u32 v7, s44, v5
    v_lshlrev_b32 v7, 7, v7
    v_bfe_u32 v5, v5, 1, 3
    v_xor_b32 v5, v5, v6
    """)
    for j in range(4):
        a(f"""v_xor_b32 v20, {2*j}, v5
        v_lshl_add_u32 v{8+j}, v20, 4, v7
        v_add_u32 v{12+j}, 0x10000, v{8+j}""")
    a(f"""
    v_bfe_u32 v5, v0, 2, 2               ; r
    v_lshl_add_u32 v7, v6, 3, v5
    v_lshlrev_b32 v7, 8, v7
    v_bfe_u32 v20, v0, 4, 1
    v_lshl_add_u32 v7, v20, 5, v7
    v_and_b32 v20, 3, v0
    v_lshl_add_u32 v7, v20, 3, v7
    v_add_u32 v7, 16384, v7
    s_lshl_b32 s44, s43, 1
    v_xor_b32 v5, s44, v5
    v_lshl_add_u32 v16, v5, 6, v7
    v_xor_b32 v5, 1, v5
    v_lshl_add_u32 v17, v5, 6, v7
    v_add_u32 v18, 0x10000, v16
    v_add_u32 v19, 0x10000, v17
    s_setprio {OPT.get("gprio", 2)}
    """)
    for i in range(64):
        a(f"v_mov_b32 v{64+i}, 0")
    a("s_waitcnt lgkmcnt(0)")
    srd(a, 36, 24, WS_END)
    if "nogemm" in OPT: a("s_endpgm")
    a("""s_cmp_ge_u32 s41, 9
    s_cbranch_scc1 k1_gemm_v""")
    FB = [24, 40]
    def reads(stage, j, fb):
        slot = stage & 3
        if "fixslot" in OPT: slot = 0
        hi = slot >> 1
        base = (slot & 1) * 32768
        out = []
        out.append(f"ds_read_b128 {vr(fb,4)}, v{8+4*hi+j} offset:{base}")
        out.append(f"ds_read_b64_tr_b16 {vr(fb+8,2)}, v{16+2*hi} offset:{base+j*4096}")
        out.append(f"ds_read_b64_tr_b16 {vr(fb+10,2)}, v{16+2*hi} offset:{base+j*4096+1024}")
        out.append(f"ds_read_b64_tr_b16 {vr(fb+12,2)}, v{17+2*hi} offset:{base+j*4096}")
        out.append(f"ds_read_b64_tr_b16 {vr(fb+14,2)}, v{17+2*hi} offset:{base+j*4096+1024}")
        out.append(f"ds_read_b128 {vr(fb+4,4)}, v{8+4*hi+j} offset:{base+4096}")
        return out
    def mfmas(fb, vor):
        out = []
        for (ta, tb) in ((0,0),(0,1),(1,0),(1,1)):
            acc = 64 + 16*(2*ta+tb)
            X = vr(fb+4*ta, 4); W = vr(fb+8+4*tb, 4)
            if vor: out.append(f"v_mfma_f32_32x32x16_bf16 {vr(acc,16)}, {X}, {W}, {vr(acc,16)}")
            else:   out.append(f"v_mfma_f32_32x32x16_bf16 {vr(acc,16)}, {W}, {X}, {vr(acc,16)}")
        return out
    def check(tag, st, first_read):
        if "nocheck" in OPT: return
        if not first_read:
            a(f"""v_or_b32 v56, v56, v57
            v_or3_b32 v56, v56, v58, v59
            v_cmp_eq_u32 vcc, 0, v56
            s_cbranch_vccnz {tag}_ok""")
        a.l.append(f"{tag}_p:")
        a(f"""ds_read_b128 v[56:59], v23 offset:{16*st}
        s_waitcnt lgkmcnt(0)
        v_or_b32 v56, v56, v57
        v_or3_b32 v56, v56, v58, v59
        v_cmp_eq_u32 vcc, 0, v56
        s_cbranch_vccz {tag}_p""")
        a.l.append(f"{tag}_ok:")
    FB = [24, 40, 128]
    def mainloop(vor):
        check(f"k1_c{int(vor)}_0", 0, True)
        stamp(a, 3)
        a("\n".join(reads(0, 0, FB[0]) + reads(0, 1, FB[1])))
        for g in range(36):
            st, j = divmod(g, 4)
            a(f"s_waitcnt lgkmcnt({6 if g < 35 else 0})")
            m = mfmas(FB[g % 3], vor)
            a(m[0])
            if j == 1 and st < 8: a(f"ds_read_b128 v[56:59], v23 offset:{16*(st+1)}")
            if j == 2 and st < 8: check(f"k1_c{int(vor)}_{st+1}", st+1, False)
            if j == 3 and st < 5: a(f"s_add_u32 m0, s58, {16*st}\ns_mov_b64 exec, 1\nbuffer_load_dword v22, s[36:39], 0 offen lds\ns_mov_b64 exec, -1")
            rd = reads((g+2)//4, (g+2)%4, FB[(g+2) % 3]) if g + 2 < 36 else []
            if "nord" in OPT: rd = []
            if "notr" in OPT: rd = [x.replace("ds_read_b64_tr_b16", "ds_read_b64") for x in rd]
            a("\n".join(rd[:3])) if rd else None
            a(m[1]); a("\n".join(rd[3:])) if rd else None
            a(m[2]); a(m[3])
            if g == 15: stamp(a, 5)
        stamp(a, 4)
    mainloop(False)
    a(f"""
    s_lshl_b32 s44, s40, 1
    s_add_u32 s44, s44, s42
    s_mul_i32 s44, s44, {2*QK_T}
    s_lshl_b32 s45, s41, 1
    s_add_u32 s45, s45, s43
    s_lshl_b32 s45, s45, 12
    s_add_u32 s44, s44, s45
    s_add_u32 s45, s44, {QK_T}
    v_lshlrev_b32 v2, 3, v0
    s_nop 7
    """)
    for ta in range(2):
        for tb in range(2):
            acc = 64 + 16*(2*ta+tb)
            o = 24 + 8*((2*ta+tb)&3)
            for r in range(8):
                a(f"v_cvt_pk_bf16_f32 v{o+r}, v{acc+2*r}, v{acc+2*r+1}")
            for rq in range(4):
                a(f"buffer_store_dwordx2 {vr(o+2*rq,2)}, v2, s[36:39], s{44+ta} offen offset:{tb*2048+rq*512} {STQ}")
    stamp(a, 6); a("s_waitcnt vmcnt(0)") if INSTR else None
    stamp_out(a, 0)
    a("s_endpgm")
    a.l.append("k1_gemm_v:")
    mainloop(True)
    a(f"""
    s_lshl_b32 s44, s41, 1
    s_add_u32 s44, s44, s43
    s_sub_u32 s44, s44, 18
    s_cmp_ge_u32 s44, 9
    s_cbranch_scc1 k1_done
    s_lshl_b32 s44, s44, 6
    v_and_b32 v5, 31, v0
    v_add_u32 v5, s44, v5                ; f (tb=0)
    v_lshrrev_b32 v6, 5, v0
    v_mul_u32_u24 v6, 288, v6
    s_mov_b32 s47, {V_H - 18*16}
    """)
    for tb in range(2):
        a(f"""
        v_mul_u32_u24 v7, 3641, v5           ; f/18 = (f*3641)>>16 for f<576
        v_lshrrev_b32 v7, 16, v7
        v_mul_lo_u32 v7, v7, s47
        v_lshl_add_u32 v7, v5, 4, v7         ; h*V_H + d*16
        v_add_u32 v{2+tb}, v7, v6
        v_add_u32 v5, 32, v5
        """)
    a(f"""
    s_lshl_b32 s44, s40, 1
    s_add_u32 s44, s44, s42
    s_mul_i32 s44, s44, 2304
    s_add_u32 s44, s44, {WS_V}
    """)
    for ta in range(2):
        for tb in range(2):
            acc = 64 + 16*(2*ta+tb)
            o = 24 + 8*((2*ta+tb)&3)
            for r in range(8):
                a(f"v_cvt_pk_bf16_f32 v{o+r}, v{acc+2*r}, v{acc+2*r+1}")
            for hh in range(2):
                a(f"buffer_store_dwordx4 {vr(o+4*hh,4)}, v{2+tb}, s[36:39], s44 offen offset:{ta*1152+hh*576} {STV}")
    stamp(a, 6); a("s_waitcnt vmcnt(0)") if INSTR else None
    stamp_out(a, 0)
    a("s_endpgm")

    a.l.append("k1_kgen:")
    L2E = f2u(1.4426950408889634); L2E_LO = f2u(1.4426950408889634 - struct.unpack("<f", struct.pack("<I", f2u(1.4426950408889634)))[0])
    LN2 = f2u(0.6931471805599453)
    z0 = list(range(9)) + [14,15,16,20,21,24,25]
    z1 = [9,9,10,11,11,11,12,13,13,17,18,19,22,23,26,27]
    def pack(z, lo):
        v = 0
        for r in range(lo, lo+8): v |= (z[r]-r) << (4*(r-lo))
        return v
    a(f"""
    s_mov_b32 s43, s3
    s_and_b32 s41, s43, 1
    s_bfe_u32 s45, s43, 0x10001
    s_lshl_b32 s40, s2, 1
    s_add_u32 s40, s40, s45
    s_add_u32 s46, s40, {512 - 448}      ; 512 + 2*(wg-224) + p
    s_cmp_ge_u32 s43, 4
    s_cselect_b32 s40, s46, s40          ; channel
    s_lshl_b32 s45, s40, 7
    s_lshl_b32 s46, s41, 6
    s_add_u32 s45, s45, s46
    v_add_u32 v2, s45, v0
    v_lshlrev_b32 v2, 1, v2
    s_lshl_b32 s45, s40, 1
    v_mov_b32 v3, s45
    s_waitcnt lgkmcnt(0)
    global_load_ushort v4, v3, s[20:21]
    global_load_ushort v6, v2, s[12:13]
    global_load_ushort v7, v2, s[14:15]
    global_load_ushort v8, v2, s[16:17]
    global_load_ushort v9, v2, s[18:19]
    global_load_ushort v5, v3, s[22:23]
    """)
    if "nokgen" in OPT: a("s_endpgm")
    srd(a, 36, 24, WS_END)
    a(f"""
    v_and_b32 v14, 31, v0                ; column
    v_and_b32 v16, 3, v14
    v_lshrrev_b32 v17, 3, v14
    v_lshl_add_u32 v16, v17, 2, v16      ; r
    v_mov_b32 v17, {pack(z0,0):#x}
    v_mov_b32 v18, {pack(z0,8):#x}
    v_mov_b32 v19, {pack(z1,0):#x}
    v_mov_b32 v20, {pack(z1,8):#x}
    v_cmp_lt_u32 vcc, 7, v16
    v_and_b32 v21, 4, v14
    v_and_b32 v22, 7, v16
    v_cndmask_b32 v17, v17, v18, vcc
    v_cndmask_b32 v19, v19, v20, vcc
    v_cmp_ne_u32 vcc, 0, v21
    v_lshlrev_b32 v22, 2, v22
    v_lshrrev_b32 v15, 5, v0
    v_cndmask_b32 v17, v17, v19, vcc
    v_bfe_u32 v17, v17, v22, 4
    v_add_u32 v17, v17, v16
    v_lshlrev_b32 v15, 2, v15            ; 4h
    s_mov_b32 s50, 0x3f80
    """)
    for (zr, dst) in ((14, 40), (17, 48)):
        a(f"""
        v_and_b32 v18, 1, v{zr}
        v_lshlrev_b32 v18, 4, v18
        v_lshlrev_b32 v18, v18, s50
        v_lshrrev_b32 v19, 1, v{zr}
        v_sub_u32 v19, v19, v15
        """)
        for d in range(8):
            a(f"v_cmp_eq_u32 s[{52+2*d}:{53+2*d}], {8*(d>>2) + (d&3)}, v19")
        for d in range(8):
            a(f"v_cndmask_b32 v{dst+d}, 0, v18, s[{52+2*d}:{53+2*d}]")
    a(f"""
    s_mov_b32 s50, {L2E:#x}
    s_mov_b32 s51, {L2E_LO:#x}
    s_mov_b32 s52, {LN2:#x}
    s_mov_b32 s53, {f2u(248.0):#x}
    s_mov_b32 s54, {f2u(8.0):#x}
    s_waitcnt vmcnt(0)
    """)
    stamp(a, 3)
    def exp_bf16(x, t, lo):
        a(f"""
        v_mul_f32 v{t}, s50, v{x}
        v_fma_f32 v{lo}, v{x}, s50, -v{t}
        v_exp_f32 v{t}, v{t}
        v_fma_f32 v{lo}, v{x}, s51, v{lo}
        v_mul_f32 v{lo}, s52, v{lo}
        v_fma_f32 v{t}, v{t}, v{lo}, v{t}
        v_cvt_pk_bf16_f32 v{t}, v{t}, v{t}
        v_lshlrev_b32 v{x}, 16, v{t}
        """)
    for r in (4, 5): a(f"v_lshlrev_b32 v{r}, 16, v{r}")
    exp_bf16(4, 20, 21)
    for r in range(6, 10): a(f"v_lshlrev_b32 v{r}, 16, v{r}")
    exp_bf16(6, 20, 21)
    a(f"""
    v_mul_f32 v6, v6, v4
    v_mul_f32 v7, v7, v4
    v_mul_f32 v8, v8, v4
    v_mul_f32 v9, v9, v4
    v_mul_f32 v6, s50, v6                ; -Re(z)*log2e
    v_mul_f32 v7, 0.15915494, v7         ; Im(z)/(2pi)
    v_add_f32 v8, v8, v8
    v_mul_f32 v9, -2.0, v9
    """)
    DL = [8, 1, 2, 4, 248]
    DS = {8: "s54", 1: "1.0", 2: "2.0", 4: "4.0", 248: "s53"}
    MR = {d: 24 + 2*i for i, d in enumerate(DL)}
    def mkE(d):
        a(f"""
        v_mul_f32 v21, {DS[d]}, v6
        v_mul_f32 v22, {DS[d]}, v7
        v_exp_f32 v21, -v21
        v_fract_f32 v22, v22
        v_cos_f32 v20, v22
        v_sin_f32 v22, v22
        v_mul_f32 v{MR[d]}, v21, v20
        v_mul_f32 v{MR[d]+1}, v21, v22
        """)
    P = 56; Dt = 88; YO = 120; ACC = 152
    R = lambda z: 34 + 2*(z % 3)
    def chain(dl, conj, mid=None):
        for z in range(len(dl) + 1):
            cur, nxt = R(z), R(z+1)
            if z < len(dl):
                W = MR[dl[z]]
                if "pk" not in OPT: a(f"v_mul_f32 v{nxt}, v{cur}, v{W}\nv_mul_f32 v{nxt+1}, v{cur+1}, v{W}")
                else: a(f"v_pk_mul_f32 {vr(nxt,2)}, {vr(cur,2)}, {vr(W,2)} op_sel:[0,0] op_sel_hi:[1,0]")
            if z & 1: a(f"v_cvt_pk_bf16_f32 v{P+(z>>1)}, v{R(z-1)}, v{cur}")
            if z < len(dl):
                if "pk" not in OPT:
                    n = "-" if conj else ""; p = "" if conj else "-"
                    a(f"v_fma_f32 v{nxt}, {p}v{cur+1}, v{W+1}, v{nxt}\nv_fma_f32 v{nxt+1}, {n}v{cur}, v{W+1}, v{nxt+1}")
                else:
                    a(f"v_pk_fma_f32 {vr(nxt,2)}, {vr(cur,2)}, {vr(W,2)}, {vr(nxt,2)} op_sel:[1,1,0] op_sel_hi:[0,1,1] " + ("neg_hi:[1,0,0]" if conj else "neg_lo:[1,0,0]"))
            if z & 1: a(f"v_cvt_pk_bf16_f32 v{P+16+(z>>1)}, v{R(z-1)+1}, v{cur+1}")
            if mid and z == 4: mid()
    def swaps(comp):
        for pr in range(2):
            for t in range(4):
                a(f"v_permlane32_swap_b32 v{P+16*comp+8*pr+t}, v{P+16*comp+8*pr+4+t}")
    def tmfma(comp, sel):
        for blk in range(2):
            a(f"v_mfma_f32_32x32x16_bf16 {vr(Dt+16*blk,16)}, {vr(P+16*comp+4*blk,4)}, {vr(sel,4)}, 0")
        for blk in range(2):
            a(f"v_mfma_f32_32x32x16_bf16 {vr(Dt+16*blk,16)}, {vr(P+16*comp+8+4*blk,4)}, {vr(sel+4,4)}, {vr(Dt+16*blk,16)}")
    def tcvt(dst):
        for i in range(16): a(f"v_cvt_pk_bf16_f32 v{dst+i}, v{Dt+2*i}, v{Dt+2*i+1}")
    mkE(8)
    a(f"v_mov_b32 v{R(0)}, 1.0\nv_mov_b32 v{R(0)+1}, 0")
    chain([8]*31, False)
    mkE(1)
    swaps(0); swaps(1)
    tmfma(0, 40)
    mkE(2); mkE(4)
    tcvt(YO)
    tmfma(1, 40)
    mkE(248)
    a(f"v_mov_b32 v{R(0)}, v8\nv_mov_b32 v{R(0)+1}, v9")
    deltas = [1]*8 + [248] + [2]*4 + [248] + [4]*2 + [248] + [4]*2 + [248, 8, 248, 8, 248, 8, 248, 8]
    chain(deltas, True, mid=lambda: tcvt(YO+16))
    a(f"""s_mul_i32 s44, s40, {KRCH}
    s_add_u32 s44, s44, {WS_KR}""")
    swaps(0); swaps(1)
    tmfma(0, 48)
    a(f"""
    v_cmp_eq_u32 vcc, 0, v0
    v_sub_u32 v21, 63, v0
    v_lshlrev_b32 v21, 4, v21
    v_cndmask_b32 v5, 0, v5, vcc
    s_add_u32 s45, s44, {KRC}
    v_mov_b32 v20, 0x7ffffff0
    s_lshr_b32 s46, s43, 1
    s_lshl_b32 s46, s46, 2
    v_add_u32 v22, s46, v23
    s_add_u32 m0, s46, {L_FL + 240}
    s_nop 1""")
    tcvt(P)
    tmfma(1, 48)
    for i in range(4):
        a(f"v_mfma_f32_32x32x16_bf16 {vr(ACC,16)}, {vr(P+4*i,4)}, {vr(YO+4*i,4)}, " + ("0" if i == 0 else vr(ACC,16)))
    a("s_nop 7")
    tcvt(P+16)
    a("s_nop 1")
    for i in range(4, 8):
        a(f"v_mfma_f32_32x32x16_bf16 {vr(ACC,16)}, {vr(P+4*i,4)}, {vr(YO+4*i,4)}, {vr(ACC,16)}")
    stamp(a, 5)
    a(f"""
    s_cmp_eq_u32 s41, 0
    s_cbranch_scc1 k1_k_even
    s_nop 10
    """)
    for i in range(4):
        a(f"buffer_store_dwordx4 {vr(ACC+4*i,4)}, v21, s[36:39], s44 offen offset:{1024*i}")
    a(f"""
    s_mov_b64 exec, 1
    s_waitcnt vmcnt(0)
    buffer_load_dword v20, s[36:39], 0 offen lds
    s_branch k1_k_end
k1_k_even:
    ds_read_b32 v10, v22 offset:240
    s_waitcnt lgkmcnt(0)
    v_cmp_eq_u32 vcc, 0, v10
    s_cbranch_vccz k1_k_even
    """)
    for i in range(4):
        a(f"buffer_load_dwordx4 {vr(56+4*i,4)}, v21, s[36:39], s44 offen offset:{1024*i} sc1")
    a(f"""
    v_and_b32 v22, 1, v0
    v_cmp_eq_u32 vcc, 1, v22             ; b odd
    s_waitcnt vmcnt(0)
    """)
    for i in range(16): a(f"v_add_f32 v{ACC+i}, v{ACC+i}, v{56+i}")
    d = lambda r: f"v{ACC+r}" if r < 16 else f"v{r}"
    a(f"v_add_f32 {d(0)}, {d(0)}, v5")
    a(f"v_cndmask_b32 v32, {d(12)}, {d(13)}, vcc\nv_cndmask_b32 v33, {d(14)}, {d(15)}, vcc")
    units = [
      (0, 0, [(7,6),(5,4),(3,2),(1,0)]), (0, 1, [(8,7),(6,5),(4,3),(2,1)]),
      (1, 0, [(11,11),(10,10),(10,9),(9,9)]), (1, 1, [(11,11),(11,10),(10,10),(9,9)]),
      (2, 0, [(13,13),(13,32),(12,12),(12,12)]), (2, 1, [(13,13),(13,13),(32,12),(12,12)]),
      (3, 0, [(15,15),(15,33),(14,14),(14,14)]), (3, 1, [(15,15),(15,15),(33,14),(14,14)]),
    ]
    for ui, (G, cp, prs) in enumerate(units):
        o = 100 + 4*ui
        for t, (lo, hi) in enumerate(prs):
            a(f"v_cvt_pk_bf16_f32 v{o+t}, {d(lo)}, {d(hi)}")
        a(f"buffer_store_dwordx4 {vr(o,4)}, v21, s[36:39], s{44+cp} offen offset:{(3-G)*1024} {STK}")
    a(f"""
    v_mov_b32 v81, 0
    v_cvt_pk_bf16_f32 v80, {d(0)}, v81
    v_mov_b32 v82, 0
    v_mov_b32 v83, 0
    v_mov_b32 v84, 0
    v_mov_b32 v85, 0
    v_mov_b32 v86, 0
    v_mov_b32 v87, 0
    v_cmp_eq_u32 vcc, 0, v0
    v_lshlrev_b32 v21, 4, v0
    v_add_u32 v21, 4096, v21
    v_cndmask_b32 v80, 0, v80, vcc
    s_mov_b64 exec, 15
    buffer_store_dwordx4 v[84:87], v21, s[36:39], s44 offen {STK}
    buffer_store_dwordx4 v[80:83], v21, s[36:39], s45 offen {STK}
    s_mov_b64 exec, -1
    s_branch k1_k_end
k1_task:
    s_sub_u32 s44, s2, 224
    s_lshr_b32 s45, s44, 1               ; B
    s_and_b32 s46, s44, 1                ; es
    s_sub_u32 s47, s3, 8
    s_lshl_b32 s48, s45, 3
    s_add_u32 s48, s48, s46
    s_mul_i32 s48, s48, {16*1152}
    s_lshl_b32 s49, s47, 7
    s_add_u32 s48, s48, s49
    v_lshrrev_b32 v10, 3, v0
    v_and_b32 v9, 7, v0
    v_mul_u32_u24 v11, 1152, v10
    v_lshl_add_u32 v11, v9, 4, v11
    v_xor_b32 v12, v10, v9
    v_lshlrev_b32 v12, 4, v12
    v_lshl_add_u32 v12, v9, 10, v12
    s_mul_i32 s49, s47, 24576
    v_add_u32 v12, s49, v12
    s_mov_b32 m0, s49
    v_lshlrev_b32 v17, 15, v10
    v_lshl_add_u32 v17, v9, 4, v17
    s_lshl_b32 s60, s47, 18
    s_lshl_b32 s45, s45, 7
    s_lshl_b32 s46, s46, 11
    s_add_u32 s60, s60, s45
    s_add_u32 s60, s60, s46
    s_add_u32 s60, s60, {WS_U}
    s_mov_b32 s50, 0x05040100
    s_mov_b32 s51, 0x07060302
    """)
    for p in range(8): a(f"v_xor_b32 v{24+p}, {16*p}, v11")
    a("s_waitcnt lgkmcnt(0)")
    srd(a, 28, 10, 2359296)
    srd(a, 36, 24, WS_END)
    for i in range(3):
        if i == 2: a("s_cmp_lg_u32 s47, 0\ns_cbranch_scc1 k1_t2")
        for p in range(8):
            a(f"""s_add_u32 s49, s48, {i*512 + ((p>>1)*32 + (p&1)*8)*1152}
            buffer_load_dwordx4 v{24+p}, s[28:31], s49 offen lds
            s_add_u32 m0, m0, 1024""")
    a.l.append("k1_t2:")
    for i in range(3):
        if i == 2: a("s_cmp_lg_u32 s47, 0\ns_cbranch_scc1 k1_k_end")
        a(f"s_waitcnt vmcnt({[8, 8, 16][i]})")
        for j in range(8): a(f"ds_read_b128 {vr(32+4*j,4)}, v12 offset:{i*8192 + j*128}")
        a("s_waitcnt lgkmcnt(0)")
        O_ = [64, 96, 128][i]
        transpose8(a, 32, O_, 50, 51)
        for c in range(8):
            a(f"s_add_u32 s49, s60, {i*(4<<18) + c*4096}\nbuffer_store_dwordx4 {vr(O_+4*c,4)}, v17, s[36:39], s49 offen {STU}")
    a("""
k1_k_end:
    """)
    stamp(a, 6); a("s_waitcnt vmcnt(0)") if INSTR else None
    stamp_out(a, 0)
    a.l.append("k1_done:")
    a("s_endpgm")
    a.l.append(kdesc("k1_kernel", 168))

L_KT = 65536
L_V = 81920
def k2(a):
    khead(a, "k2_kernel")
    S = [0, 16]; O = 32; NEG = 48; P = 64; KF = [72, 76]; TF = [80, 84]; VF = [88, 96]; Q = 104; QL = 108; QH = 110
    vK, vT, vV = 112, 113, 114
    a(f"""
    s_cmp_ge_u32 s2, 256
    s_cbranch_scc1 k2_done
    s_load_dwordx2 s[24:25], s[0:1], 96
    s_load_dwordx2 s[40:41], s[0:1], 16
    v_lshrrev_b32 v1, 6, v0
    v_and_b32 v116, 63, v0
    v_readfirstlane_b32 s3, v1
    s_cmp_ge_u32 s3, 8
    s_cbranch_scc1 k2_conv
    s_and_b32 s4, s2, 31                 ; h
    s_lshr_b32 s5, s2, 5
    s_lshl_b32 s5, s5, 3
    s_add_u32 s5, s5, s3
    s_lshr_b32 s6, s4, 1
    s_mul_i32 s6, s6, 2304               ; pair*9*256
    s_and_b32 s7, s4, 1                  ; odd
    s_mul_i32 s8, s7, 1280
    s_add_u32 s8, s8, s6
    s_add_u32 s9, s6, 1024
    s_mul_i32 s10, s5, {QK_T}
    s_add_u32 s11, s10, s8
    s_add_u32 s12, s10, s9
    v_lshlrev_b32 v{vK}, 3, v116         ; lane*8
    v_and_b32 v117, 31, v116
    v_lshlrev_b32 v118, 3, v117
    v_lshlrev_b32 v119, 4, v116          ; lane*16
    v_lshrrev_b32 v120, 4, v116
    s_mov_b32 s13, {QK_T}
    v_mul_lo_u32 v120, v120, s13
    v_and_b32 v121, 15, v116
    v_lshl_add_u32 v120, v121, 4, v120
    s_mul_i32 s14, s3, {QK_T}
    s_add_u32 s14, s14, s8
    s_add_u32 s14, s14, {144*256}
    s_mul_i32 s15, s4, {V_H}
    s_lshl_b32 s16, s3, 10               ; w*1024
    s_add_u32 s15, s15, s16
    s_add_u32 s15, s15, {WS_V}           ; V piece w
    s_mul_i32 s17, s3, {4*QK_T}
    s_add_u32 s17, s17, s9
    s_add_u32 s17, s17, {144*256}
    s_waitcnt lgkmcnt(0)
    """)
    stamp(a, 1)
    srd(a, 36, 24, WS_END)
    a(f"""
    buffer_load_dwordx2 v[{Q}:{Q+1}], v{vK}, s[36:39], s11 offen
    buffer_load_dwordx2 v[{Q+2}:{Q+3}], v{vK}, s[36:39], s11 offen offset:512
    buffer_load_dwordx2 v[{QL}:{QL+1}], v118, s[36:39], s12 offen
    """)
    def dK(j): a(f"s_add_u32 m0, s16, {j*8192}\n" + (f"s_add_u32 s14, s14, {8*QK_T}\n" if j else "s_nop 0\n") + "buffer_load_dwordx4 v119, s[36:39], s14 offen lds")
    def dV(j): a(f"s_add_u32 m0, s16, {L_V + j*8192}\n" + (f"s_add_u32 s15, s15, 8192\n" if j else "s_nop 0\n") + "buffer_load_dwordx4 v119, s[36:39], s15 offen lds")
    def dT(j): a(f"s_add_u32 m0, s16, {L_KT + j*8192}\n" + (f"s_add_u32 s17, s17, {32*QK_T}\n" if j else "s_nop 0\n") + "buffer_load_dwordx4 v120, s[36:39], s17 offen lds")
    dK(0); dV(0); dT(0); dV(1); dK(1)
    stamp(a, 2)
    for i in range(16): a(f"v_mov_b32 v{O+i}, 0")
    for i in range(4): a(f"v_mov_b32 v{P+4+i}, 0")
    if "noprio" not in OPT: a("s_setprio 2")
    a(f"""v_and_b32 v121, 27, v116
    v_cmp_eq_u32 vcc, 18, v121
    v_mov_b32 v121, 0x3f803f80
    s_nop 0
    v_cndmask_b32 v{VF[0]}, 0, v121, vcc""")
    for i in range(1, 16): a(f"v_mov_b32 v{VF[0]+i}, v{VF[0]}")
    a(f"""
    v_add_u32 v{vT}, {L_KT}, v{vK}
    v_lshrrev_b32 v121, 5, v116
    v_mul_u32_u24 v121, 288, v121
    v_lshl_add_u32 v{vV}, v117, 4, v121
    v_add_u32 v{vV}, {L_V}, v{vV}
    s_mov_b32 s18, 0x3ffff
    s_mov_b32 s19, 0x3ffff
    s_mov_b32 s21, {f2u(18**-0.5 * 1.4426950408889634):#x}
    v_cmp_lt_u32 s[22:23], 31, v116
    s_waitcnt vmcnt(5)
    """)
    for r in list(range(Q, Q+4)) + [QL, QL+1]:
        a(f"""v_lshlrev_b32 v121, 16, v{r}
        v_and_b32 v{r}, 0xffff0000, v{r}
        v_mul_f32 v121, s21, v121
        v_mul_f32 v{r}, s21, v{r}
        v_cvt_pk_bf16_f32 v{r}, v121, v{r}""")
    a(f"""
    s_cmp_eq_u32 s7, 0
    s_cselect_b64 vcc, -1, 0
    v_cndmask_b32 v{QL}, 0, v{QL}, vcc
    v_cndmask_b32 v{QL+1}, v{QL+1}, 0, vcc
    v_cndmask_b32 v{QH}, 0, v{QL}, s[22:23]
    v_cndmask_b32 v{QH+1}, 0, v{QL+1}, s[22:23]
    v_cndmask_b32 v{QL}, v{QL}, 0, s[22:23]
    v_cndmask_b32 v{QL+1}, v{QL+1}, 0, s[22:23]
    s_waitcnt vmcnt(0)
    s_barrier
    """)
    stamp(a, 3)
    def rdK(buf, t): a(f"ds_read2st64_b64 {vr(KF[buf],4)}, v{vK} offset0:{2*t} offset1:{2*t+1}")
    def rdT(buf, q): a(f"ds_read2st64_b64 {vr(TF[buf],4)}, v{vT} offset0:{2*q} offset1:{2*q+1}")
    def rdV(buf, t):
        a(f"""s_mov_b64 exec, s[18:19]
        ds_read_b128 {vr(VF[buf],4)}, v{vV} offset:{t*1152}
        ds_read_b128 {vr(VF[buf]+4,4)}, v{vV} offset:{t*1152+576}
        s_mov_b64 exec, -1""")
    def qk_tail(t, tb):
        tt = t & 3
        a(f"v_mfma_f32_32x32x8_bf16 {vr(S[t&1],16)}, {vr(TF[tb]+2*(tt>>1),2)}, {vr(QH if tt&1 else QL,2)}, {vr(S[t&1],16)}")
    def pv(t, half): a(f"v_mfma_f32_32x32x16_bf16 {vr(O,16)}, {vr(VF[t&1]+4*half,4)}, {vr(P+4*half,4)}, {vr(O,16)}")
    def ex(t, r0, r1):
        for r in range(r0, r1): a(f"v_exp_f32 v{S[t&1]+r}, v{S[t&1]+r}")
    def cv(t, c0, c1):
        for c in range(c0, c1): a(f"v_cvt_pk_bf16_f32 v{P+c}, v{S[t&1]+2*c}, v{S[t&1]+2*c+1}")
    def run(fast):
        tag = "k2f" if fast else "k2s"
        def qk_main(t): a(f"v_mfma_f32_32x32x16_bf16 {vr(S[t&1],16)}, {vr(KF[t&1],4)}, {vr(Q,4)}, " + ("0" if fast else vr(NEG,16)))
        rdK(0, 0); rdT(0, 0); rdK(1, 1); rdV(0, 0)
        if not fast:
            for i in range(16): a(f"v_mov_b32 v{O+i}, 0")
            for i in range(4): a(f"v_mov_b32 v{P+4+i}, 0")
        a("s_mov_b32 s26, 0\ns_waitcnt lgkmcnt(3)")
        qk_main(0); qk_tail(0, 0)
        a("s_nop 7\ns_nop 3")
        a(".p2align 6")
        a.l.append(f"{tag}_loop:")
        for t in range(8):
            if fast and t == 4:
                a(f"""s_cmp_lg_u32 s26, 1
                s_cbranch_scc1 {tag}_nobar""")
                stamp(a, 4)
                a("s_barrier")
                stamp(a, 5)
                a.l.append(f"{tag}_nobar:")
                if "noprio" not in OPT:
                    a(f"""s_cmp_lg_u32 s26, 6
                    s_cbranch_scc1 {tag}_np1
                    s_setprio 1""")
                    a.l.append(f"{tag}_np1:")
            if fast and t == 6 and "noprio" not in OPT:
                a(f"""s_cmp_lg_u32 s26, 7
                s_cbranch_scc1 {tag}_np0
                s_setprio 0""")
                a.l.append(f"{tag}_np0:")
            a("s_waitcnt lgkmcnt(0)")
            qk_main(t+1)
            rdK(t&1, t+2)
            if (t & 3) == 1: rdT(((t>>2)+1)&1, (t>>2)+1)
            ex(t, 0, 4)
            pv(t-1, 1)
            rdV((t+1)&1, t+1)
            ex(t, 4, 8); cv(t, 0, 4)
            qk_tail(t+1, ((t+1)>>2)&1)
            ex(t, 8, 12)
            pv(t, 0)
            if t == 7:
                a(f"""v_add_u32 v{vK}, 8192, v{vK}
                v_add_u32 v{vT}, 2048, v{vT}
                v_add_u32 v{vV}, 9216, v{vV}
                s_add_u32 s26, s26, 1
                s_cmp_lt_u32 s26, 8""")
            ex(t, 12, 16); cv(t, 4, 8)
        a(f"s_cbranch_scc1 {tag}_loop")
        if fast: stamp(a, 6)
        a("s_nop 1")
        pv(7, 1)
        a(f"""
        v_subrev_u32 v{vK}, 65536, v{vK}
        v_subrev_u32 v{vT}, 16384, v{vT}
        v_subrev_u32 v{vV}, {8*9216}, v{vV}
        s_waitcnt lgkmcnt(0)
        s_nop 15
        """)
    run(True)
    a(f"""
    v_max3_f32 v121, abs(v{O}), abs(v{O+1}), abs(v{O+2})
    v_max3_f32 v121, abs(v{O+3}), abs(v{O+4}), v121
    v_max3_f32 v121, abs(v{O+5}), abs(v{O+6}), v121
    v_max3_f32 v121, abs(v{O+7}), abs(v{O+8}), v121
    v_add_f32 v122, v{O}, v{O+1}
    v_add_f32 v123, v{O+2}, v{O+3}
    v_add_f32 v124, v{O+4}, v{O+5}
    v_add_f32 v125, v{O+6}, v{O+7}
    v_add_f32 v126, v{O+8}, v{O+9}
    v_add_f32 v122, v122, v123
    v_add_f32 v124, v124, v125
    v_add_f32 v122, v122, v126
    v_add_f32 v122, v122, v124
    v_max3_f32 v121, abs(v{O+9}), v{O+10}, v121
    s_mov_b32 s27, {f2u(2.0**100):#x}
    v_cmp_ngt_f32 vcc, s27, v121
    v_cmp_nle_f32 s[28:29], 1.0, v{O+10}
    v_cmp_u_f32 s[30:31], v122, v122
    s_or_b64 vcc, vcc, s[28:29]
    s_or_b64 vcc, vcc, s[30:31]
    s_cbranch_vccz k2_fin
    s_mov_b32 s26, 0
    v_mov_b32 v121, 0xff800000
k2_mx:
    """)
    rdT(0, 0)
    for t in range(4):
        rdK(0, t)
        a("s_waitcnt lgkmcnt(0)")
        a(f"v_mfma_f32_32x32x16_bf16 {vr(S[0],16)}, {vr(KF[0],4)}, {vr(Q,4)}, 0")
        a(f"v_mfma_f32_32x32x8_bf16 {vr(S[0],16)}, {vr(TF[0]+2*(t>>1),2)}, {vr(QH if t&1 else QL,2)}, {vr(S[0],16)}")
        a("s_nop 15")
        for r in range(8): a(f"v_max3_f32 v121, v{S[0]+2*r}, v{S[0]+2*r+1}, v121")
    a(f"""
    v_add_u32 v{vK}, 4096, v{vK}
    v_add_u32 v{vT}, 1024, v{vT}
    s_add_u32 s26, s26, 1
    s_cmp_lt_u32 s26, 16
    s_cbranch_scc1 k2_mx
    v_subrev_u32 v{vK}, 65536, v{vK}
    v_subrev_u32 v{vT}, 16384, v{vT}
    v_mov_b32 v122, v121
    s_nop 1
    v_permlane32_swap_b32 v121, v122
    s_nop 1
    v_max_f32 v121, v121, v122
    """)
    for i in range(16): a(f"v_sub_f32 v{NEG+i}, 0, v121")
    run(False)
    a(f"""
k2_fin:
    v_rcp_f32 v121, v{O+10}
    s_mul_i32 s10, s5, {O_T}
    s_add_u32 s10, s10, {WS_O}
    s_lshl_b32 s11, s4, 10
    s_add_u32 s11, s11, s10
    s_lshr_b32 s12, s4, 2
    s_lshl_b32 s12, s12, 9
    s_and_b32 s13, s4, 3
    s_lshl_b32 s13, s13, 2
    s_add_u32 s12, s12, s13
    s_add_u32 s12, s12, s10
    s_add_u32 s12, s12, 32768
    """)
    for r in range(10): a(f"v_mul_f32 v{O+r}, v{O+r}, v121")
    for c in range(5): a(f"v_cvt_pk_bf16_f32 v{P+c}, v{O+2*c}, v{O+2*c+1}")
    a(f"""
    buffer_store_dwordx4 {vr(P,4)}, v119, s[36:39], s11 offen {ST2}
    s_mov_b32 exec_hi, 0
    buffer_store_dword v{P+4}, v119, s[36:39], s12 offen {ST2}
    """)
    stamp_out(a, 1)
    a("s_endpgm")
    a.l.append("k2_conv:")
    a(f"""
    s_and_b32 s4, s2, 31                 ; h
    s_lshr_b32 s6, s4, 1
    s_mul_i32 s6, s6, 2304
    s_and_b32 s7, s4, 1
    s_mul_i32 s8, s7, 1280
    s_add_u32 s8, s8, s6
    s_add_u32 s8, s8, {144*256 + 16*QK_T}          ; K main
    s_add_u32 s9, s6, {1024 + 144*256 + 32*QK_T}   ; K tail
    s_mul_i32 s10, s4, {V_H}
    s_add_u32 s10, s10, {WS_V + 16384}             ; V
    v_lshlrev_b32 v119, 4, v116
    v_lshrrev_b32 v120, 4, v116
    s_mov_b32 s13, {QK_T}
    v_mul_lo_u32 v120, v120, s13
    v_and_b32 v121, 15, v116
    v_lshl_add_u32 v120, v121, 4, v120
    s_mov_b32 s11, {QK_T}
    s_mov_b32 s12, 48
    s_mov_b32 m0, 16384
    s_sub_u32 s14, s3, 9
    s_mul_i32 s14, s14, {14*1024}
    s_add_u32 s10, s10, s14
    s_add_u32 s14, s14, {L_V + 16384}
    s_bitcmp1_b32 s3, 0
    s_cselect_b32 s8, s10, s8
    s_cselect_b32 s11, 1024, s11
    s_cselect_b32 s12, 28, s12
    s_cselect_b32 m0, s14, m0
    s_cmp_eq_u32 s3, 10
    s_cselect_b32 s8, s9, s8
    s_cselect_b32 s11, {4*QK_T}, s11
    s_cselect_b32 s12, 8, s12
    s_cselect_b32 m0, {L_KT + 8192}, m0
    s_cselect_b64 vcc, -1, 0
    v_cndmask_b32 v119, v119, v120, vcc
    s_waitcnt lgkmcnt(0)
    """)
    srd(a, 36, 24, WS_END)
    a(f"""
    s_barrier
k2_ld:
    buffer_load_dwordx4 v119, s[36:39], s8 offen lds
    s_add_u32 m0, m0, 1024
    s_add_u32 s8, s8, s11
    s_sub_u32 s12, s12, 1
    s_cmp_lg_u32 s12, 0
    s_cbranch_scc1 k2_ld
    s_lshr_b32 s12, s2, 3
    s_lshl_b32 s12, s12, 2
    s_add_u32 s12, s12, s3
    s_sub_u32 s12, s12, 8
    s_lshl_b32 s12, s12, 13
    v_lshlrev_b32 v121, 7, v116
    s_mov_b32 s42, 663552
    s_mov_b32 s43, 0x20000
    {"; " if "notouch" in OPT else ""}buffer_load_dword v122, v121, s[40:43], s12 offen
    s_setprio 3
    s_and_b32 s4, s2, 7                  ; x
    s_lshr_b32 s5, s2, 3                 ; idx
    s_sub_u32 s6, s3, 8
    s_lshl_b32 s6, s6, 5
    s_add_u32 s6, s6, s5                 ; slot
    s_sub_u32 s7, s6, 72
    s_lshl_b32 s7, s7, 1
    s_cmp_lt_u32 s6, 72
    s_cselect_b32 s7, s6, s7
    s_cselect_b32 s20, 0, 8
    s_cselect_b32 s21, 0, 2048
    s_cselect_b32 s22, 1024, 0
    s_cselect_b32 s23, -1, 0
    s_lshl_b32 s8, s7, 3
    s_add_u32 s8, s8, s4                 ; channel
    s_mul_i32 s9, s8, {KRCH}
    s_add_u32 s9, s9, {WS_KR + 2048}     ; A1
    s_lshl_b32 s10, s8, 12
    s_add_u32 s10, s10, s22
    s_add_u32 s10, s10, {WS_U - 31*32}   ; B1
    s_add_u32 s8, s8, s20
    s_mul_i32 s17, s8, {KRCH}
    s_add_u32 s17, s17, s21
    s_add_u32 s17, s17, {WS_KR}          ; A2
    s_lshl_b32 s18, s8, 12
    s_add_u32 s18, s18, {WS_U - 31*32}   ; B2
    s_mov_b32 s11, 31                    ; k
    v_and_b32 v117, 31, v116             ; rho / a'
    v_lshrrev_b32 v118, 5, v116          ; h
    v_and_b32 v119, 16, v117
    v_bfe_u32 v120, v117, 2, 1
    v_lshl_add_u32 v119, v120, 3, v119
    v_and_b32 v120, 3, v117
    v_lshl_add_u32 v119, v120, 1, v119
    v_bfe_u32 v120, v117, 3, 1           ; parity
    v_lshlrev_b32 v121, 3, v118
    v_sub_u32 v121, v121, v119
    v_add_u32 v121, 30, v121
    v_lshlrev_b32 v121, 1, v121
    v_xor_b32 v120, 1, v120
    v_mul_u32_u24 v120, {KRC+4}, v120
    v_add_u32 v112, v121, v120           ; vA
    v_lshlrev_b32 v113, 5, v117
    v_lshl_add_u32 v113, v118, 4, v113   ; vB
    """)
    CD = int(OPT.get("cd", 4))
    for i in range(32): a(f"v_mov_b32 v{i}, 0")
    for buf in range(CD):
        for i in list(range(4, 8)) + list(range(12, 16)): a(f"v_mov_b32 v{32+16*buf+i}, 0")
    a("s_waitcnt vmcnt(0)\ns_barrier")
    a("""s_cmp_ge_u32 s6, 108
    s_cbranch_scc1 k2_done""")
    if "noconv" in OPT: a("s_endpgm")
    stamp(a, 3)
    def cload1(buf, es):
        b = 32 + 16*buf
        a(f"""buffer_load_dwordx4 {vr(b,4)}, v112, s[36:39], s9 offen
        s_lshl_b32 s12, -1, s11
        s_or_b32 exec_lo, s12, s23
        s_or_b32 exec_hi, s12, s23
        buffer_load_dwordx4 {vr(b+4,4)}, v113, s[36:39], s10 offen offset:{es*2048}
        s_mov_b64 exec, -1
        s_add_u32 s9, s9, 32""")
    def cload2(buf, es):
        b = 32 + 16*buf
        a(f"""buffer_load_dwordx4 {vr(b+8,4)}, v112, s[36:39], s17 offen
        s_mov_b32 exec_lo, s12
        s_mov_b32 exec_hi, s12
        buffer_load_dwordx4 {vr(b+12,4)}, v113, s[36:39], s18 offen offset:{es*2048}
        s_mov_b64 exec, -1
        s_add_u32 s17, s17, 32""")
        if es: a("s_add_u32 s10, s10, 32\ns_add_u32 s18, s18, 32\ns_sub_u32 s11, s11, 1")
    for buf in range(CD): cload1(buf, buf & 1); cload2(buf, buf & 1)
    a("s_mov_b32 s14, 0")
    a.l.append("k2_cloop:")
    for buf in range(CD):
        b = 32 + 16*buf
        a(f"""s_waitcnt vmcnt({4*CD-2})
        {"; " if "cnomfma" in OPT else ""}v_mfma_f32_32x32x16_bf16 v[0:15], {vr(b,4)}, {vr(b+4,4)}, v[0:15]""")
        cload1(buf, buf & 1)
        a(f"""s_waitcnt vmcnt({4*CD-2})
        {"; " if "cnomfma" in OPT else ""}v_mfma_f32_32x32x16_bf16 v[16:31], {vr(b+8,4)}, {vr(b+12,4)}, v[16:31]""")
        cload2(buf, buf & 1)
    a(f"""
    s_add_u32 s14, s14, 1
    s_cmp_lt_u32 s14, {64//CD}
    s_cbranch_scc1 k2_cloop
    v_lshl_add_u32 v114, v117, 2, v118   ; g = 4a'+hf
    v_mul_u32_u24 v114, 9216, v114
    s_mul_i32 s15, s4, 1152
    s_lshl_b32 s16, s7, 4
    s_add_u32 s15, s15, s16
    s_add_u32 s15, s15, {WS_Y}
    s_add_u32 s16, s15, {2*9216}
    s_nop 7
    s_cmp_lt_u32 s6, 72
    s_cbranch_scc0 k2_clow
    """)
    for r in range(16): a(f"v_add_f32 v{r}, v{r}, v{16+r}")
    a(f"s_add_u32 s15, s15, {128*9216}\ns_add_u32 s16, s16, {128*9216}\ns_branch k2_cst")
    a.l.append("k2_clow:")
    for u in range(2, 4):
        for r in range(4): a(f"v_cvt_pk_bf16_f32 v{96+4*u+r}, v{8*u+r}, v{8*u+r+4}")
        a(f"buffer_store_dwordx4 {vr(96+4*u,4)}, v114, s[36:39], s{15+(u&1)} offen offset:16 {ST2}")
    a.l.append("k2_cst:")
    for u in range(2):
        for r in range(4): a(f"v_cvt_pk_bf16_f32 v{96+4*u+r}, v{8*u+r}, v{8*u+r+4}")
        a(f"buffer_store_dwordx4 {vr(96+4*u,4)}, v114, s[36:39], s{15+(u&1)} offen {ST2}")
    stamp_out(a, 1)
    a.l.append("k2_done:")
    a("s_endpgm")
    a.l.append(kdesc("k2_kernel", 128))

def k3(a):
    khead(a, "k3_kernel")
    L_FL = 143360
    a(f"""
    s_cmp_ge_u32 s2, 240
    s_cbranch_scc1 k3_done
    s_load_dwordx2 s[20:21], s[0:1], 16
    s_load_dwordx2 s[22:23], s[0:1], 80
    s_load_dwordx2 s[24:25], s[0:1], 96
    v_lshrrev_b32 v1, 6, v0
    v_and_b32 v0, 63, v0
    v_readfirstlane_b32 s3, v1
    s_cmp_ge_u32 s2, 192
    s_cbranch_scc1 k3_tr
    s_cmp_lg_u32 s3, 0
    s_cbranch_scc1 k3_noarm
    v_lshlrev_b32 v2, 3, v0
    v_add_u32 v2, {L_FL}, v2
    v_and_b32 v3, 3, v0
    v_cmp_gt_u32 vcc, 3, v3
    v_cmp_gt_u32 s[8:9], 2, v3
    s_nop 0
    v_cndmask_b32 v4, 0, -1, vcc
    v_cndmask_b32 v5, 0, -1, s[8:9]
    ds_write_b64 v2, v[4:5]
    s_waitcnt lgkmcnt(0)
k3_noarm:
    s_barrier
    s_and_b32 s4, s2, 7
    s_lshr_b32 s5, s2, 3                 ; idx 0..23
    s_and_b32 s6, s5, 3
    s_lshl_b32 s4, s4, 2
    s_add_u32 s4, s4, s6                 ; tm
    s_lshr_b32 s5, s5, 2                 ; tn
    v_lshlrev_b32 v2, 4, v0
    s_cmp_ge_u32 s3, 5
    s_cbranch_scc1 k3_comp
    s_mul_i32 s41, s5, 3
    s_lshr_b32 s41, s41, 1
    s_lshl_b32 s40, s6, 1
    s_add_u32 s40, s40, s41
    s_cmp_ge_u32 s40, 9
    s_cselect_b32 s41, 9, 0
    s_sub_u32 s40, s40, s41
    {"s_mov_b32 s40, 0" if "norot3" in OPT else ""}
    s_lshl_b32 s6, s4, 1
    s_sub_u32 s17, s3, 2
    s_lshl_b32 s17, s17, 6
    v_add_u32 v5, s17, v0                ; U
    v_mul_u32_u24 v6, 5462, v5
    v_lshrrev_b32 v6, 16, v6             ; row = U/12
    v_mul_u32_u24 v7, 12, v6
    v_sub_u32 v7, v5, v7
    s_mul_i32 s17, s5, 192
    v_lshl_add_u32 v7, v7, 4, s17
    v_mul_u32_u24 v8, 1152, v6
    v_add_u32 v8, v8, v7
    v_and_b32 v9, 4, v6
    v_lshrrev_b32 v10, 3, v6
    v_lshl_add_u32 v9, v10, 1, v9
    v_bfe_u32 v10, v6, 1, 1
    v_add_u32 v9, v9, v10
    v_mul_u32_u24 v9, 18, v9
    v_and_b32 v10, 1, v6
    v_add3_u32 v9, v9, v10, 16
    v_mul_u32_u24 v9, 1152, v9
    v_add_u32 v9, v9, v7
    s_add_u32 s7, s6, s3
    s_mul_i32 s7, s7, {O_T}
    s_add_u32 s7, s7, {WS_O}
    s_lshl_b32 s10, s3, 12
    s_lshl_b32 s17, s3, 10
    s_add_u32 s17, s17, {8192 - 2048}
    s_mov_b32 s44, 20736
    s_mov_b32 s45, {8*20736}
    s_mov_b32 s46, 3072
    s_lshl_b32 s51, s3, 2
    s_add_u32 s51, s51, {L_FL}
    v_mov_b32 v11, 0x7ffffff0
    s_cmp_lt_u32 s3, 2
    s_cselect_b64 vcc, -1, 0
    s_cselect_b32 s7, s7, 0
    s_cselect_b32 s10, s10, s17
    s_cselect_b32 s44, 1024, s44
    s_cselect_b32 s45, 1024, s45
    s_cselect_b32 s46, 1024, s46
    s_cselect_b32 s47, 32768, 0
    v_cndmask_b32 v8, v8, v2, vcc
    v_cndmask_b32 v9, v9, v2, vcc
    s_mov_b32 s42, 0                     ; position
    s_waitcnt lgkmcnt(0)
    s_cmp_lt_u32 s3, 2
    s_cselect_b32 s28, s24, s20
    s_cselect_b32 s29, s25, s21
    s_mov_b32 s30, 663552
    s_cselect_b32 s30, {WS_END}, s30
    s_mov_b32 s31, 0x20000
k3_ld:
    s_lshl_b32 s48, s44, 2
    s_mul_i32 s48, s48, s40
    s_cmp_eq_u32 s40, 8
    s_cselect_b32 s48, s47, s48
    s_cselect_b32 s49, s45, s44
    s_cselect_b64 vcc, -1, 0
    s_cselect_b32 s40, -1, s40
    s_add_u32 s40, s40, 1
    s_add_u32 s48, s48, s7
    v_cndmask_b32 v10, v8, v9, vcc
    s_mov_b32 m0, s10
    s_add_u32 s10, s10, 20480
    """)
    for q in range(4):
        a("buffer_load_dwordx4 v10, s[28:31], s48 offen lds")
        if q < 3: a("s_add_u32 m0, m0, s46\ns_add_u32 s48, s48, s49")
    a(f"""
    s_mov_b32 m0, s51
    s_mov_b64 exec, 1
    buffer_load_dword v11, s[28:31], 0 offen lds
    s_mov_b64 exec, -1
    s_add_u32 s51, s51, 32
    s_add_u32 s42, s42, 1
    s_cmp_lg_u32 s42, 7
    s_cbranch_scc1 k3_ldn
    s_sub_u32 s10, s10, 143360
    s_barrier
k3_ldn:
    s_cmp_lt_u32 s42, 9
    s_cbranch_scc1 k3_ld
    """)
    if INSTR: a("s_waitcnt vmcnt(0)")
    stamp_out(a, 2)
    a(f"""
    s_endpgm
k3_comp:
    ; compute tile: ta = w/3, tb = w%3
    s_sub_u32 s9, s3, 5
    s_lshl_b32 s6, s4, 1
    s_mul_i32 s8, s5, 3
    s_cmp_ge_u32 s9, 3
    s_cselect_b32 s11, 1, 0
    s_mul_i32 s12, s11, 3
    s_sub_u32 s12, s9, s12
    s_add_u32 s13, s6, s11
    s_add_u32 s14, s8, s12               ; n tile
    s_lshl_b32 s17, s11, 12
    v_add_u32 v3, s17, v2
    v_lshrrev_b32 v5, 5, v0
    v_bfe_u32 v6, v0, 2, 2
    v_lshl_add_u32 v5, v5, 2, v6
    v_mul_u32_u24 v4, 192, v5            ; (4hf + r)*192
    v_bfe_u32 v5, v0, 4, 1
    v_lshl_add_u32 v4, v5, 5, v4
    v_and_b32 v5, 3, v0
    v_lshl_add_u32 v4, v5, 3, v4
    s_lshl_b32 s17, s12, 6
    s_add_u32 s17, s17, 8192
    v_add_u32 v4, s17, v4
    v_and_b32 v7, 7, v0
    v_lshlrev_b32 v7, 2, v7
    v_add_u32 v7, {L_FL}, v7
    v_add_u32 v8, 61440, v3
    v_add_u32 v9, 61440, v4
    v_add_u32 v10, 122880, v3
    v_add_u32 v11, 122880, v4
    s_waitcnt lgkmcnt(0)
    """)
    srd(a, 32, 22, 4718592)
    def rd(p):
        slot = p % 7; hi = slot // 3; base = (slot % 3) * 20480; fb = 32 + 32*(p & 1)
        va, vb = [(3, 4), (8, 9), (10, 11)][hi]
        out = []
        for k in range(4):
            out.append(f"ds_read_b128 {vr(fb+8*k,4)}, v{va} offset:{base+k*1024}")
            out.append(f"ds_read_b64_tr_b16 {vr(fb+4+8*k,2)}, v{vb} offset:{base+k*3072}")
            out.append(f"ds_read_b64_tr_b16 {vr(fb+6+8*k,2)}, v{vb} offset:{base+k*3072+8*192}")
        return out
    def poll(p):
        a.l.append(f"k3_p{p}:")
        a(f"""ds_read_b32 v12, v7 offset:{32*p}
        s_waitcnt lgkmcnt(0)
        v_cmp_ne_u32 vcc, 0, v12
        s_cbranch_vccnz k3_p{p}""")
    poll(0)
    stamp(a, 3)
    a("\n".join(rd(0)))
    for p in range(9):
        fb = 32 + 32*(p & 1)
        m = [f"v_mfma_f32_32x32x16_bf16 v[16:31], {vr(fb+8*k,4)}, {vr(fb+4+8*k,4)}, " + ("0" if p == 0 and k == 0 else "v[16:31]") for k in range(4)]
        if p < 8:
            a(f"ds_read_b32 v12, v7 offset:{32*(p+1)}\ns_waitcnt lgkmcnt(0)")
            a(m[0])
            a(f"v_cmp_ne_u32 vcc, 0, v12\ns_cbranch_vccz k3_f{p}")
            a(m[1]); a(m[2]); a(m[3])
            if p == 4: a("s_barrier")
            poll(p+1)
            a("\n".join(rd(p+1)))
            a(f"s_branch k3_g{p}")
            a.l.append(f"k3_f{p}:")
            r = rd(p+1)
            a("\n".join(r[:6])); a(m[1]); a("\n".join(r[6:])); a(m[2]); a(m[3])
            if p == 4: a("s_barrier")
            a.l.append(f"k3_g{p}:")
        else:
            a("s_waitcnt lgkmcnt(0)")
            a("\n".join(m))
    stamp(a, 4)
    a(f"""
    v_lshrrev_b32 v5, 5, v0
    v_mul_u32_u24 v5, {8*2304}, v5
    v_and_b32 v6, 31, v0
    v_lshl_add_u32 v5, v6, 1, v5
    s_mul_i32 s17, s13, {32*2304}
    s_lshl_b32 s18, s14, 6
    s_add_u32 s17, s17, s18
    s_nop 7
    s_nop 3
    """)
    for c in range(8):
        a(f"v_cvt_pk_bf16_f32 v{32+c}, v{16+2*c}, v{16+2*c+1}")
    for c in range(8):
        tok = (2*c & 7) + 16*(c >> 2)
        a(f"""s_add_u32 s18, s17, {tok*2304}
        buffer_store_short v{32+c}, v5, s[32:35], s18 offen
        buffer_store_short_d16_hi v{32+c}, v5, s[32:35], s18 offen offset:2304""")
    diag_end(a)
    stamp(a, 6); a("s_waitcnt vmcnt(0)") if INSTR else None
    stamp_out(a, 2)
    a("s_endpgm")
    a.l.append("k3_tr:")
    a(f"""
    s_cmp_ge_u32 s3, 6
    s_cbranch_scc1 k3_done
    s_sub_u32 s4, s2, 192
    s_mul_i32 s4, s4, 6
    s_add_u32 s4, s4, s3                 ; task
    s_mul_i32 s5, s4, 7282
    s_lshr_b32 s5, s5, 16                ; gb
    s_mul_i32 s6, s5, 9
    s_sub_u32 s6, s4, s6                 ; ob
    v_lshrrev_b32 v2, 3, v0
    s_lshl_b32 s7, s5, 3
    v_add_u32 v2, s7, v2                 ; g
    v_and_b32 v3, 7, v0
    s_lshl_b32 s7, s6, 3
    v_add_u32 v3, s7, v3                 ; oct
    v_mul_u32_u24 v4, 9216, v2
    v_lshl_add_u32 v4, v3, 4, v4
    v_mul_u32_u24 v5, {8*2304}, v2
    v_lshl_add_u32 v5, v3, 4, v5
    s_mov_b32 s8, {WS_Y}
    s_mov_b32 s9, {WS_Y + 4608}
    s_mov_b32 s10, 0x05040100
    s_mov_b32 s11, 0x07060302
    s_waitcnt lgkmcnt(0)
    """)
    srd(a, 36, 24, WS_END)
    srd(a, 32, 22, 4718592)
    for j in range(8):
        a(f"buffer_load_dwordx4 {vr(16+4*j,4)}, v4, s[36:39], s{8+(j>>2)} offen offset:{(j&3)*1152}")
    a("s_waitcnt vmcnt(0)")
    transpose8(a, 16, 48, 10, 11)
    for c in range(8):
        a(f"s_mov_b32 s12, {1152 + c*2304}\nbuffer_store_dwordx4 {vr(48+4*c,4)}, v5, s[32:35], s12 offen")
    stamp(a, 6); a("s_waitcnt vmcnt(0)") if INSTR else None
    stamp_out(a, 2)
    a.l.append("k3_done:")
    a("s_endpgm")
    a.l.append(kdesc("k3_kernel", 96))

def main():
    ref = open("concat_heads__mha_block__ssm_conv_s4d__prompt.s.ref").read().split("\n")
    head = [l for l in ref if l.startswith(";") and "@launch" not in l and "Override launch" not in l and "grid=ceil" not in l]
    head += ["; @launch kernel=k1_kernel grid=(256,1,1) block=(768,1,1) lds=131328",
             "; @launch kernel=k2_kernel grid=(256,1,1) block=(768,1,1) lds=155648",
             "; @launch kernel=k3_kernel grid=(240,1,1) block=(704,1,1) lds=143872"]
    a = A()
    k1(a); k2(a); k3(a)
    out = "\n".join(head) + "\n.amdgcn_target \"amdgcn-amd-amdhsa--gfx950\"\n" + a.text()
    path = sys.argv[1] if len(sys.argv) > 1 and sys.argv[1].endswith(".s") else "concat_heads__mha_block__ssm_conv_s4d__prompt.s"
    open(path, "w").write(out)
main()
```

```python
import sys, struct
KN = "concat_heads__mha_block__ssm_conv_s4d__prompt_kernel"
def f2u(x): return struct.unpack("<I", struct.pack("<f", x))[0]
INSTR = "instr" in sys.argv
OPT = dict(x.split("=") for x in sys.argv if "=" in x)

WS_QK = 0; QK_T = 73728
WS_V = WS_QK + 64 * QK_T; V_H = 73728
WS_O = WS_V + 32 * V_H; O_T = 36864
WS_U = WS_O + 64 * O_T
WS_Y = WS_U + 576 * 4096
WS_X = WS_Y + 576 * 4096
WS_FL = WS_X + 576 * 4096
FS = 128
FL_A = 0; FL_S = 864 * FS; FL_Y = FL_S + 288 * FS; FL_B = FL_Y + 1152 * FS; FL_E = FL_B + 2048 * FS
WS_END = WS_FL + FL_E + FS
WS_ST = 24 << 20
L_FL = 155648
KC = 4156
KAREA = 8448
L_KT = 65536; L_V = 81920; L_BOUNCE = 155648

class A:
    def __init__(s): s.l = []
    def __call__(s, t):
        for line in t.strip("\n").split("\n"):
            q = line.strip()
            if not q: continue
            s.l.append(q if q.endswith(":") else "    " + q)
    def text(s): return "\n".join(s.l) + "\n"
a = A()
def vr(b, n): return f"v[{b}:{b+n-1}]"
def srd(d, lo, size):
    a(f"""s_mov_b32 s{d}, s{lo}
    s_mov_b32 s{d+1}, s{lo+1}
    s_mov_b32 s{d+2}, {size}
    s_mov_b32 s{d+3}, 0x20000""")

SSETS = {"1": ["Aend", "Aack", "Bflag", "Bgo", "Bloop", "Back"],
         "2": ["Bloop", "Back", "CW", "Cflag", "Cfirst", "Cmfma"],
         "3": ["Afirst", "Akgen", "Abuilt", "Aconv", "Aend", "Aack"]}
def stamp(name):
    if INSTR and name in SSETS[OPT.get("sset", "1")]:
        i = SSETS[OPT.get("sset", "1")].index(name) + 1
        a(f"s_memtime s[{70+2*i}:{71+2*i}]")
def stamp_out():
    if not INSTR: return
    a(f"""s_waitcnt vmcnt(0)
    s_memtime s[84:85]
    s_memrealtime s[88:89]
    s_waitcnt lgkmcnt(0)
    s_mov_b64 exec, 1
    s_lshl_b32 s90, s2, 4
    s_add_u32 s90, s90, s3
    s_lshl_b32 s90, s90, 6
    s_add_u32 s90, s90, {WS_ST}
    v_mov_b32 v166, s90""")
    for i in range(10):
        a(f"v_mov_b32 v167, s{70+2*i}\nglobal_store_dword v166, v167, s[24:25] offset:{4*i}")

def transpose8(I, O, sLO, sHI):
    for c in range(8):
        for t in range(4):
            a(f"v_perm_b32 v{O+4*c+t}, v{I+4*(2*t+1)+(c>>1)}, v{I+4*(2*t)+(c>>1)}, s{sHI if c&1 else sLO}")

def flag_set(soff, t):
    a(f"""v_mov_b32 v{t}, {WS_FL}
    v_mov_b32 v{t+1}, s92
    s_mov_b64 exec, 1
    buffer_store_dword v{t+1}, v{t}, s[36:39], {soff} offen sc1
    s_mov_b64 exec, -1""")
def poll_issue(n, t):
    for i in range(n): a(f"buffer_load_dword v{t+4+i}, v{t+i}, s[36:39], s93 offen sc1")
def flag_poll(tag, n, t, issued=False):
    a("s_mov_b32 s91, 0")
    if issued: a(f"s_branch {tag}_c")
    a(f"{tag}:")
    poll_issue(n, t)
    a(f"{tag}_c:\ns_add_u32 s91, s91, 1\ns_waitcnt vmcnt(0)")
    for i in range(n): a(f"v_xor_b32 v{t+4+i}, s92, v{t+4+i}")
    for i in range(1, n): a(f"v_or_b32 v{t+4}, v{t+4}, v{t+4+i}")
    a(f"""v_cmp_ne_u32 vcc, 0, v{t+4}
    s_cbranch_vccz {tag}_x
    s_mov_b64 exec, vcc
    s_sleep {OPT.get("slp", 2)}
    s_cmp_lt_u32 s91, 0x80000
    s_cbranch_scc1 {tag}
    {tag}_x:
    s_mov_b64 exec, -1""")
def lds_wait(tag, vaddr, off, t):
    a(f"""{tag}:
    ds_read_b32 v{t}, v{vaddr} offset:{off}
    s_waitcnt lgkmcnt(0)
    v_cmp_eq_u32 vcc, 0, v{t}
    s_cbranch_vccz {tag}""")
def kargs():
    a(f"""s_waitcnt lgkmcnt(0)
    s_add_u32 s68, s24, {WS_FL + FL_E}
    s_addc_u32 s69, s25, 0
    s_load_dword s92, s[68:69], 0""")
    srd(36, 24, WS_END)

def utask():
    a(f"""
    s_mul_i32 s61, s44, {FS}
    s_add_u32 s61, s61, {FL_S}
    s_lshr_b32 s47, s44, 5
    s_bfe_u32 s46, s44, 0x40001          ; B
    s_and_b32 s44, s44, 1                ; es
    s_lshl_b32 s48, s46, 3
    s_add_u32 s48, s48, s44
    s_mul_i32 s48, s48, {16*1152}
    s_lshl_b32 s49, s47, 7
    s_add_u32 s48, s48, s49
    v_lshrrev_b32 v60, 3, v0
    v_and_b32 v61, 7, v0
    v_mul_u32_u24 v62, 1152, v60
    v_lshl_add_u32 v62, v61, 4, v62
    s_mov_b32 m0, s45
    """)
    srd(28, 10, 2359296)
    for p in range(8):
        a(f"""v_xor_b32 v63, {16*p}, v62
        s_add_u32 s49, s48, {((p>>1)*32 + (p&1)*8)*1152}
        buffer_load_dwordx4 v63, s[28:31], s49 offen lds
        s_add_u32 m0, m0, 1024""")
    a(f"""
    v_xor_b32 v62, v60, v61
    v_lshlrev_b32 v62, 4, v62
    v_lshl_add_u32 v62, v61, 10, v62
    v_add_u32 v62, s45, v62
    v_lshlrev_b32 v63, 15, v60
    v_lshl_add_u32 v63, v61, 4, v63
    s_lshl_b32 s60, s47, 18
    s_lshl_b32 s46, s46, 7
    s_lshl_b32 s44, s44, 11
    s_add_u32 s60, s60, s46
    s_add_u32 s60, s60, s44
    s_add_u32 s60, s60, {WS_U}
    s_mov_b32 s50, 0x05040100
    s_mov_b32 s51, 0x07060302
    s_waitcnt vmcnt(0)
    """)
    for j in range(8): a(f"ds_read_b128 {vr(64+4*j,4)}, v62 offset:{j*128}")
    a("s_waitcnt lgkmcnt(0)")
    transpose8(64, 96, 50, 51)
    for c in range(8):
        a(f"buffer_store_dwordx4 {vr(96+4*c,4)}, v63, s[36:39], s60 offen sc1\ns_add_u32 s60, s60, 4096")

def phaseA():
    mod9 = """
    s_mul_i32 s49, s48, 57
    s_lshr_b32 s49, s49, 9
    s_mul_i32 s49, s49, 9
    s_sub_u32 s48, s48, s49"""
    ROT = {"wg": "s_lshl_b32 s48, s40, 1\ns_add_u32 s48, s48, s41" + mod9, "none": "s_mov_b32 s48, 0",
           "xcd": "s_and_b32 s48, s26, 3\ns_lshl_b32 s48, s48, 1\ns_lshr_b32 s49, s26, 2\ns_mul_i32 s49, s49, 5\ns_add_u32 s48, s48, s49" + mod9}[OPT.get("rot", "xcd")]
    a(f"""
    s_cmp_ge_u32 s2, 256
    s_cbranch_scc1 k_done
    s_load_dwordx16 s[4:19], s[0:1], 0
    s_load_dwordx4 s[20:23], s[0:1], 64
    s_load_dwordx2 s[24:25], s[0:1], 96
    s_load_dwordx2 s[96:97], s[0:1], 80
    s_load_dwordx2 s[94:95], s[0:1], 16
    v_lshrrev_b32 v1, 6, v0
    v_and_b32 v0, 63, v0
    v_readfirstlane_b32 s3, v1
    s_and_b32 s26, s2, 7
    s_lshr_b32 s27, s2, 3
    s_and_b32 s40, s26, 3
    s_lshl_b32 s40, s40, 2
    s_and_b32 s44, s27, 3
    s_add_u32 s40, s40, s44
    s_lshr_b32 s41, s26, 2
    s_mul_i32 s41, s41, 7
    s_lshr_b32 s44, s27, 2
    s_add_u32 s41, s41, s44
    s_mov_b32 s93, {WS_FL}
    v_mov_b32 v23, {L_FL}
    s_cmp_lg_u32 s3, 0
    s_cbranch_scc1 a_noarm
    v_mov_b32 v14, -1
    v_mov_b32 v15, -1
    v_lshl_add_u32 v16, v0, 3, v23
    ds_write_b64 v16, v[14:15]
    s_waitcnt lgkmcnt(0)
    a_noarm:
    s_barrier
    s_cmp_lt_u32 s3, 4
    s_cbranch_scc1 a_ssm
    s_cmp_lt_u32 s3, 8
    s_cbranch_scc1 a_gemm
    s_cmp_ge_u32 s27, 28
    s_cbranch_scc1 a_task
    {ROT}
    s_bfe_u32 s56, s3, 0x10001
    s_bitcmp1_b32 s3, 0
    s_cbranch_scc1 a_ldw
    v_lshrrev_b32 v4, 3, v0
    v_lshrrev_b32 v5, 2, v4
    v_lshlrev_b32 v5, 3, v5
    v_and_b32 v6, 3, v4
    v_add_u32 v5, v5, v6
    s_lshl_b32 s44, s40, 7
    v_add_u32 v5, s44, v5
    v_mul_u32_u24 v5, 1152, v5
    v_lshrrev_b32 v6, 1, v4
    v_and_b32 v7, 7, v0
    v_xor_b32 v6, v6, v7
    v_lshl_add_u32 v2, v6, 4, v5
    v_xor_b32 v6, 4, v6
    v_lshl_add_u32 v3, v6, 4, v5
    v_add_u32 v3, {4608-1024}, v3
    s_mov_b32 s50, 128
    s_mov_b32 s51, 18432
    s_mov_b32 s52, 0
    s_waitcnt lgkmcnt(0)
    s_mov_b32 s28, s4
    s_mov_b32 s29, s5
    s_mov_b32 s30, 2359296
    s_branch a_ld
    a_ldw:
    v_lshrrev_b32 v5, 4, v0
    v_mul_u32_u24 v2, 3456, v5
    v_lshlrev_b32 v5, 2, v5
    v_and_b32 v6, 15, v0
    v_xor_b32 v5, v5, v6
    v_lshl_add_u32 v2, v5, 4, v2
    s_lshl_b32 s44, s41, 8
    v_add_u32 v2, s44, v2
    v_add_u32 v3, {13824-1024}, v2
    s_mov_b32 s50, 221184
    s_mov_b32 s51, 27648
    s_mov_b32 s52, 16384
    s_waitcnt lgkmcnt(0)
    s_mov_b32 s28, s6
    s_mov_b32 s29, s7
    s_mov_b32 s30, 1990656
    a_ld:
    s_mov_b32 s31, 0x20000
    s_mul_i32 s57, s56, s51
    s_lshl_b32 s57, s57, 2
    s_lshl_b32 s56, s56, 13
    s_add_u32 s52, s52, s56
    s_and_b32 s58, s3, 3
    s_lshl_b32 s58, s58, 2
    s_add_u32 s58, s58, {L_FL}
    v_mov_b32 v4, 0x7ffffff0
    s_mov_b32 s53, 0
    a_ld_loop:
    s_cmp_lt_u32 s53, 4
    s_cbranch_scc1 a_ld_go
    a_ld_poll:
    ds_read_b128 v[8:11], v23 offset:160
    s_waitcnt lgkmcnt(0)
    v_or_b32 v8, v8, v9
    v_or3_b32 v8, v8, v10, v11
    v_cmp_eq_u32 vcc, 0, v8
    s_cbranch_vccz a_ld_poll
    v_add_u32 v23, 16, v23
    a_ld_go:
    s_mul_i32 s47, s48, s50
    s_add_u32 s47, s47, s57
    s_and_b32 s55, s53, 3
    s_lshl_b32 s55, s55, 15
    s_add_u32 m0, s55, s52
    s_add_u32 s48, s48, 1
    """)
    for p in range(4):
        a("buffer_load_dwordx4 v2, s[28:31], s47 offen lds\nbuffer_load_dwordx4 v3, s[28:31], s47 offen offset:1024 lds")
        if p < 3: a("s_add_u32 m0, m0, 2048\ns_add_u32 s47, s47, s51")
    a(f"""
    s_cmp_eq_u32 s48, 9
    s_cselect_b32 s48, 0, s48
    s_mov_b32 m0, s58
    s_mov_b64 exec, 1
    buffer_load_dword v4, s[28:31], 0 offen lds
    s_mov_b64 exec, -1
    s_add_u32 s58, s58, 16
    s_add_u32 s53, s53, 1
    s_cmp_lt_u32 s53, 9
    s_cbranch_scc1 a_ld_loop
    """)
    kargs()
    a("s_waitcnt lgkmcnt(0)\ns_add_u32 s92, s92, 1\ns_branch a_end")
    a(f"""
    a_gemm:
    s_cmp_ge_u32 s27, 28
    s_cbranch_scc1 a_ssm
    """)
    kargs()
    a("""s_cmp_lg_u32 s3, 4
    s_cbranch_scc1 a_g0
    s_mov_b32 s44, s2
    s_mov_b32 s45, 131072""")
    utask()
    a(f"""
    a_g0:
    s_sub_u32 s45, s3, 4
    s_and_b32 s42, s45, 1                ; mw
    s_lshr_b32 s43, s45, 1               ; nw
    s_lshl_b32 s58, s45, 2
    s_add_u32 s58, s58, {L_FL + 160}
    v_mov_b32 v22, 0x7ffffff0
    v_and_b32 v5, 31, v0
    v_lshrrev_b32 v6, 5, v0
    s_lshl_b32 s44, s42, 6
    v_add_u32 v7, s44, v5
    v_lshlrev_b32 v7, 7, v7
    v_bfe_u32 v5, v5, 1, 3
    v_xor_b32 v5, v5, v6
    """)
    for j in range(4):
        a(f"v_xor_b32 v20, {2*j}, v5\nv_lshl_add_u32 v{8+j}, v20, 4, v7\nv_add_u32 v{12+j}, 0x10000, v{8+j}")
    a(f"""
    v_bfe_u32 v5, v0, 2, 2
    v_lshl_add_u32 v7, v6, 3, v5
    v_lshlrev_b32 v7, 8, v7
    v_bfe_u32 v20, v0, 4, 1
    v_lshl_add_u32 v7, v20, 5, v7
    v_and_b32 v20, 3, v0
    v_lshl_add_u32 v7, v20, 3, v7
    v_add_u32 v7, 16384, v7
    s_lshl_b32 s44, s43, 1
    v_xor_b32 v5, s44, v5
    v_lshl_add_u32 v16, v5, 6, v7
    v_xor_b32 v5, 1, v5
    v_lshl_add_u32 v17, v5, 6, v7
    v_add_u32 v18, 0x10000, v16
    v_add_u32 v19, 0x10000, v17
    s_setprio {OPT.get('gprio', 2)}
    s_waitcnt lgkmcnt(0)
    s_add_u32 s92, s92, 1
    s_lshl_b32 s46, s40, 1
    s_add_u32 s46, s46, s42
    s_lshl_b32 s47, s41, 1
    s_add_u32 s47, s47, s43
    s_lshl_b32 s59, s47, 5
    s_add_u32 s59, s59, s46
    s_mul_i32 s59, s59, {FS}
    s_cmp_ge_u32 s41, 9
    s_cbranch_scc1 a_gemm_v""")
    FB = [24, 40, 128]
    def reads(stage, j, fb):
        slot = stage & 3; hi = slot >> 1; base = (slot & 1) * 32768
        return [f"ds_read_b128 {vr(fb,4)}, v{8+4*hi+j} offset:{base}",
                f"ds_read_b64_tr_b16 {vr(fb+8,2)}, v{16+2*hi} offset:{base+j*4096}",
                f"ds_read_b64_tr_b16 {vr(fb+10,2)}, v{16+2*hi} offset:{base+j*4096+1024}",
                f"ds_read_b64_tr_b16 {vr(fb+12,2)}, v{17+2*hi} offset:{base+j*4096}",
                f"ds_read_b64_tr_b16 {vr(fb+14,2)}, v{17+2*hi} offset:{base+j*4096+1024}",
                f"ds_read_b128 {vr(fb+4,4)}, v{8+4*hi+j} offset:{base+4096}"]
    def mfmas(fb, vor, first):
        out = []
        for (ta, tb) in ((0,0),(0,1),(1,0),(1,1)):
            acc = vr(64 + 16*(2*ta+tb), 16); X = vr(fb+4*ta, 4); W = vr(fb+8+4*tb, 4)
            out.append(f"v_mfma_f32_32x32x16_bf16 {acc}, " + (f"{X}, {W}" if vor else f"{W}, {X}") + ", " + ("0" if first else acc))
        return out
    def check(tag, st, first_read):
        if not first_read:
            a(f"""v_or_b32 v56, v56, v57
            v_or3_b32 v56, v56, v58, v59
            v_cmp_eq_u32 vcc, 0, v56
            s_cbranch_vccnz {tag}_ok""")
        a(f"""{tag}_p:
        ds_read_b128 v[56:59], v23 offset:{16*st}
        s_waitcnt lgkmcnt(0)
        v_or_b32 v56, v56, v57
        v_or3_b32 v56, v56, v58, v59
        v_cmp_eq_u32 vcc, 0, v56
        s_cbranch_vccz {tag}_p
        {tag}_ok:""")
    def mainloop(vor):
        check(f"a_c{int(vor)}_0", 0, True)
        stamp("Afirst")
        a("\n".join(reads(0, 0, FB[0]) + reads(0, 1, FB[1])))
        for g in range(36):
            st, j = divmod(g, 4)
            a(f"s_waitcnt lgkmcnt({6 if g < 35 else 0})")
            m = mfmas(FB[g % 3], vor, g == 0)
            a(m[0])
            if j == 1 and st < 8: a(f"ds_read_b128 v[56:59], v23 offset:{16*(st+1)}")
            if j == 2 and st < 8: check(f"a_c{int(vor)}_{st+1}", st+1, False)
            if j == 3 and st < 5: a(f"s_add_u32 m0, s58, {16*st}\ns_mov_b64 exec, 1\nbuffer_load_dword v22, s[36:39], 0 offen lds\ns_mov_b64 exec, -1")
            if g == int(OPT.get("ug", 1)):
                a(f"s_cmp_lg_u32 s3, 4\ns_cbranch_scc1 a_uf{int(vor)}\ns_waitcnt vmcnt(0)")
                flag_set("s61", 60)
                a(f"a_uf{int(vor)}:")
            rd = reads((g+2)//4, (g+2)%4, FB[(g+2) % 3]) if g + 2 < 36 else []
            a("\n".join(rd[:3])); a(m[1]); a("\n".join(rd[3:])); a(m[2]); a(m[3])
        stamp("Aconv")
    a(f"""
    s_mul_i32 s44, s46, {2*QK_T}
    s_lshl_b32 s45, s47, 12
    s_add_u32 s44, s44, s45
    s_add_u32 s45, s44, {QK_T}
    v_lshlrev_b32 v2, 3, v0
    """)
    mainloop(False)
    for ta in range(2):
        for tb in range(2):
            acc = 64 + 16*(2*ta+tb); o = 24 + 8*(2*ta+tb)
            if ta + tb == 0: a("s_nop 8")
            for r in range(8): a(f"v_cvt_pk_bf16_f32 v{o+r}, v{acc+2*r}, v{acc+2*r+1}")
            for rq in range(4): a(f"buffer_store_dwordx2 {vr(o+2*rq,2)}, v2, s[36:39], s{44+ta} offen offset:{tb*2048+rq*512} sc1")
    a(f"""s_branch a_gemm_end
    a_gemm_v:
    s_sub_u32 s44, s47, 18
    s_lshl_b32 s44, s44, 6
    v_and_b32 v5, 31, v0
    v_add_u32 v5, s44, v5                ; V feature
    v_lshrrev_b32 v6, 5, v0
    v_mul_u32_u24 v6, 288, v6
    s_mov_b32 s45, {V_H - 18*16}
    """)
    for tb in range(2):
        a(f"""
        v_mul_u32_u24 v7, 3641, v5
        v_lshrrev_b32 v7, 16, v7             ; f/18
        v_mul_lo_u32 v7, v7, s45
        v_lshl_add_u32 v7, v5, 4, v7         ; h*V_H + d*16
        v_add_u32 v{2+tb}, v7, v6
        v_add_u32 v5, 32, v5
        """)
    a(f"s_mul_i32 s44, s46, 2304\ns_add_u32 s44, s44, {WS_V}")
    mainloop(True)
    a("s_cmp_ge_u32 s47, 27\ns_cbranch_scc1 a_end")
    for ta in range(2):
        for tb in range(2):
            acc = 64 + 16*(2*ta+tb); o = 24 + 8*(2*ta+tb)
            if ta + tb == 0: a("s_nop 8")
            for r in range(8): a(f"v_cvt_pk_bf16_f32 v{o+r}, v{acc+2*r}, v{acc+2*r+1}")
            for hh in range(2): a(f"buffer_store_dwordx4 {vr(o+4*hh,4)}, v{2+tb}, s[36:39], s44 offen offset:{ta*1152+hh*576} sc1")
    a("a_gemm_end:")
    stamp("Aend")
    a("s_waitcnt vmcnt(0)")
    stamp("Aack")
    flag_set("s59", 2)
    a("s_branch a_end\na_gemm_skip:\ns_add_u32 s92, s92, 1\ns_branch a_end")

    a("""a_task:
    s_cmp_ge_u32 s3, 10
    s_cbranch_scc1 a_idle
    s_sub_u32 s44, s3, 8
    s_lshl_b32 s45, s44, 13
    s_lshl_b32 s44, s44, 5
    s_add_u32 s44, s44, s2""")
    kargs()
    utask()
    a("s_mov_b32 s59, s61\ns_add_u32 s92, s92, 1\ns_branch a_gemm_end\na_idle:")
    kargs()
    a("s_waitcnt lgkmcnt(0)\ns_branch a_gemm_skip")

    L2E = f2u(1.4426950408889634); L2E_LO = f2u(1.4426950408889634 - struct.unpack("<f", struct.pack("<I", L2E))[0])
    LN2 = f2u(0.6931471805599453)
    z0 = list(range(9)) + [14,15,16,20,21,24,25]
    z1 = [9,9,10,11,11,11,12,13,13,17,18,19,22,23,26,27]
    def pack(z, lo):
        v = 0
        for r in range(lo, lo+8): v |= (z[r]-r) << (4*(r-lo))
        return v
    a(f"""
    a_ssm:
    s_and_b32 s41, s3, 1                 ; half
    s_bfe_u32 s45, s3, 0x10001
    s_lshl_b32 s40, s2, 1
    s_add_u32 s40, s40, s45
    s_add_u32 s46, s40, {512 - 448}
    s_mul_i32 s42, s45, {KAREA}
    s_add_u32 s47, s42, 98304
    s_add_u32 s42, s42, 131072
    s_cmp_ge_u32 s3, 4
    s_cselect_b32 s40, s46, s40          ; channel
    s_cselect_b32 s42, s47, s42
    s_lshr_b32 s43, s3, 1
    s_lshl_b32 s43, s43, 13
    s_add_u32 s47, s43, {81920 - 16384}
    s_add_u32 s43, s43, 147968
    s_cmp_ge_u32 s3, 4
    s_cselect_b32 s43, s47, s43
    s_lshl_b32 s45, s40, 7
    s_lshl_b32 s46, s41, 6
    s_add_u32 s45, s45, s46
    v_add_u32 v2, s45, v0
    v_lshlrev_b32 v2, 1, v2
    s_lshl_b32 s45, s40, 1
    v_mov_b32 v3, s45
    s_waitcnt lgkmcnt(0)
    global_load_ushort v4, v3, s[20:21]
    global_load_ushort v6, v2, s[12:13]
    global_load_ushort v7, v2, s[14:15]
    global_load_ushort v8, v2, s[16:17]
    global_load_ushort v9, v2, s[18:19]
    global_load_ushort v5, v3, s[22:23]
    """)
    kargs()
    a(f"""
    v_and_b32 v14, 31, v0
    v_and_b32 v16, 3, v14
    v_lshrrev_b32 v17, 3, v14
    v_lshl_add_u32 v16, v17, 2, v16
    v_mov_b32 v17, {pack(z0,0):#x}
    v_mov_b32 v18, {pack(z0,8):#x}
    v_mov_b32 v19, {pack(z1,0):#x}
    v_mov_b32 v20, {pack(z1,8):#x}
    v_cmp_lt_u32 vcc, 7, v16
    v_and_b32 v21, 4, v14
    v_and_b32 v22, 7, v16
    v_cndmask_b32 v17, v17, v18, vcc
    v_cndmask_b32 v19, v19, v20, vcc
    v_cmp_ne_u32 vcc, 0, v21
    v_lshlrev_b32 v22, 2, v22
    v_lshrrev_b32 v15, 5, v0
    v_cndmask_b32 v17, v17, v19, vcc
    v_bfe_u32 v17, v17, v22, 4
    v_add_u32 v17, v17, v16
    v_lshlrev_b32 v15, 2, v15
    s_mov_b32 s50, 0x3f80
    """)
    for (zr, dst) in ((14, 40), (17, 48)):
        a(f"""v_and_b32 v18, 1, v{zr}
        v_lshlrev_b32 v18, 4, v18
        v_lshlrev_b32 v18, v18, s50
        v_lshrrev_b32 v19, 1, v{zr}
        v_sub_u32 v19, v19, v15""")
        for d in range(8): a(f"v_cmp_eq_u32 s[{52+2*d}:{53+2*d}], {8*(d>>2) + (d&3)}, v19")
        for d in range(8): a(f"v_cndmask_b32 v{dst+d}, 0, v18, s[{52+2*d}:{53+2*d}]")
    a(f"""
    s_mov_b32 s50, {L2E:#x}
    s_mov_b32 s51, {L2E_LO:#x}
    s_mov_b32 s52, {LN2:#x}
    s_mov_b32 s53, {f2u(248.0):#x}
    s_mov_b32 s54, {f2u(8.0):#x}
    s_waitcnt vmcnt(0) lgkmcnt(0)
    s_add_u32 s92, s92, 1
    """)
    stamp("Afirst")
    def exp_bf16(x, t, lo):
        a(f"""v_mul_f32 v{t}, s50, v{x}
        v_fma_f32 v{lo}, v{x}, s50, -v{t}
        v_exp_f32 v{t}, v{t}
        v_fma_f32 v{lo}, v{x}, s51, v{lo}
        v_mul_f32 v{lo}, s52, v{lo}
        v_fma_f32 v{t}, v{t}, v{lo}, v{t}
        v_cvt_pk_bf16_f32 v{t}, v{t}, v{t}
        v_lshlrev_b32 v{x}, 16, v{t}""")
    for r in range(4, 10): a(f"v_lshlrev_b32 v{r}, 16, v{r}")
    exp_bf16(4, 20, 21)
    exp_bf16(6, 20, 21)
    a("""
    v_mul_f32 v6, v6, v4
    v_mul_f32 v7, v7, v4
    v_mul_f32 v8, v8, v4
    v_mul_f32 v9, v9, v4
    v_mul_f32 v6, s50, v6                ; -Re(z)*log2e
    v_mul_f32 v7, 0.15915494, v7         ; Im(z)/(2pi)
    v_add_f32 v8, v8, v8
    v_mul_f32 v9, -2.0, v9
    """)
    DL = [8, 1, 2, 4, 248]
    DS = {8: "s54", 1: "1.0", 2: "2.0", 4: "4.0", 248: "s53"}
    MR = {d: 24 + 2*i for i, d in enumerate(DL)}
    def mkE(d):
        a(f"""v_mul_f32 v21, {DS[d]}, v6
        v_mul_f32 v22, {DS[d]}, v7
        v_exp_f32 v21, -v21
        v_fract_f32 v22, v22
        v_cos_f32 v20, v22
        v_sin_f32 v22, v22
        v_mul_f32 v{MR[d]}, v21, v20
        v_mul_f32 v{MR[d]+1}, v21, v22""")
    P = 56; Dt = 88; YO = 120; ACC = 152
    R = lambda z: 34 + 2*(z % 3)
    def chain(dl, conj, mid=None):
        n = "-" if conj else ""; p = "" if conj else "-"
        for z in range(len(dl) + 1):
            cur, nxt = R(z), R(z+1)
            if z < len(dl):
                W = MR[dl[z]]
                a(f"v_mul_f32 v{nxt}, v{cur}, v{W}\nv_mul_f32 v{nxt+1}, v{cur+1}, v{W}")
            if z & 1: a(f"v_cvt_pk_bf16_f32 v{P+(z>>1)}, v{R(z-1)}, v{cur}")
            if z < len(dl): a(f"v_fma_f32 v{nxt}, {p}v{cur+1}, v{W+1}, v{nxt}\nv_fma_f32 v{nxt+1}, {n}v{cur}, v{W+1}, v{nxt+1}")
            if z & 1: a(f"v_cvt_pk_bf16_f32 v{P+16+(z>>1)}, v{R(z-1)+1}, v{cur+1}")
            if mid and z == 4: mid()
    def swaps(comp):
        for pr in range(2):
            for t in range(4): a(f"v_permlane32_swap_b32 v{P+16*comp+8*pr+t}, v{P+16*comp+8*pr+4+t}")
    def tmfma(comp, sel):
        for blk in range(2): a(f"v_mfma_f32_32x32x16_bf16 {vr(Dt+16*blk,16)}, {vr(P+16*comp+4*blk,4)}, {vr(sel,4)}, 0")
        for blk in range(2): a(f"v_mfma_f32_32x32x16_bf16 {vr(Dt+16*blk,16)}, {vr(P+16*comp+8+4*blk,4)}, {vr(sel+4,4)}, {vr(Dt+16*blk,16)}")
    def tcvt(dst):
        for i in range(16): a(f"v_cvt_pk_bf16_f32 v{dst+i}, v{Dt+2*i}, v{Dt+2*i+1}")
    mkE(8)
    a(f"v_mov_b32 v{R(0)}, 1.0\nv_mov_b32 v{R(0)+1}, 0")
    chain([8]*31, False)
    mkE(1); swaps(0); swaps(1); tmfma(0, 40); mkE(2); mkE(4); tcvt(YO); tmfma(1, 40); mkE(248)
    a(f"v_mov_b32 v{R(0)}, v8\nv_mov_b32 v{R(0)+1}, v9")
    deltas = [1]*8 + [248] + [2]*4 + [248] + [4]*2 + [248] + [4]*2 + [248, 8, 248, 8, 248, 8, 248, 8]
    chain(deltas, True, mid=lambda: tcvt(YO+16))
    a("v_cmp_eq_u32 vcc, 0, v0\nv_sub_u32 v21, 63, v0")
    swaps(0); swaps(1); tmfma(0, 48)
    a(f"""
    v_cndmask_b32 v5, 0, v5, vcc
    v_lshl_add_u32 v21, v21, 4, s42
    s_lshl_b32 s46, s3, 4
    v_add_u32 v22, s46, v23
    v_xor_b32 v20, 16, v22               ; partner's
    v_mov_b32 v19, 0
    s_lshr_b32 s46, s40, 6
    s_mul_i32 s46, s46, {32*FS}
    s_add_u32 s46, s46, {FL_S}
    v_and_b32 v10, 31, v0
    v_mul_u32_u24 v10, {FS}, v10
    v_add_u32 v10, s46, v10
    """)
    tcvt(P); tmfma(1, 48)
    for i in range(4): a(f"v_mfma_f32_32x32x16_bf16 {vr(ACC,16)}, {vr(P+4*i,4)}, {vr(YO+4*i,4)}, " + ("0" if i == 0 else vr(ACC,16)))
    a("s_nop 7")
    tcvt(P+16)
    a("s_nop 1")
    for i in range(4, 8): a(f"v_mfma_f32_32x32x16_bf16 {vr(ACC,16)}, {vr(P+4*i,4)}, {vr(YO+4*i,4)}, {vr(ACC,16)}")
    stamp("Akgen")
    CA = 24; CU = 68; CF = 132
    for i in range(44): a(f"v_mov_b32 v{CA+i}, 0")
    a(f"""
    s_lshl_b32 s44, s40, 12
    s_add_u32 s44, s44, {WS_X}
    v_lshlrev_b32 v12, 4, v0
    s_cmp_eq_u32 s41, 0
    s_cbranch_scc1 a_s_even
    """)
    for i in range(4): a(f"buffer_store_dwordx4 {vr(ACC+4*i,4)}, v12, s[36:39], s44 offen offset:{1024*i} {OPT.get('stx','sc1')}")
    a(f"""s_lshl_b32 s46, s3, 4
    s_add_u32 m0, s46, {L_FL + 256}
    v_mov_b32 v13, 0x7ffffff0
    s_mov_b64 exec, 1
    s_waitcnt vmcnt(0)
    buffer_load_dword v13, s[36:39], 0 offen lds
    s_mov_b64 exec, -1
    s_branch a_s_p
    a_s_even:""")
    lds_wait("a_s_e1", 20, 256, 13)
    for i in range(4): a(f"buffer_load_dwordx4 {vr(68+4*i,4)}, v12, s[36:39], s44 offen offset:{1024*i} sc1")
    a("""v_and_b32 v13, 1, v0
    v_cmp_eq_u32 vcc, 1, v13             ; b odd
    s_waitcnt vmcnt(0)""")
    for i in range(16): a(f"v_add_f32 v{ACC+i}, v{ACC+i}, v{68+i}")
    d = lambda r: f"v{ACC+r}" if r < 16 else f"v{r-16}"
    a(f"v_add_f32 {d(0)}, {d(0)}, v5")
    a(f"v_cndmask_b32 v16, {d(12)}, {d(13)}, vcc\nv_cndmask_b32 v17, {d(14)}, {d(15)}, vcc")
    units = [
      (0, 0, [(7,6),(5,4),(3,2),(1,0)]), (0, 1, [(8,7),(6,5),(4,3),(2,1)]),
      (1, 0, [(11,11),(10,10),(10,9),(9,9)]), (1, 1, [(11,11),(11,10),(10,10),(9,9)]),
      (2, 0, [(13,13),(13,32),(12,12),(12,12)]), (2, 1, [(13,13),(13,13),(32,12),(12,12)]),
      (3, 0, [(15,15),(15,33),(14,14),(14,14)]), (3, 1, [(15,15),(15,15),(33,14),(14,14)])]
    for ui, (G, cp, prs) in enumerate(units):
        for t, (lo, hi) in enumerate(prs): a(f"v_cvt_pk_bf16_f32 v{100+4*ui+t}, {d(lo)}, {d(hi)}")
    a(f"""
    v_cvt_pk_bf16_f32 v132, {d(0)}, v19
    v_cmp_eq_u32 vcc, 0, v0
    v_lshl_add_u32 v133, v0, 2, s42
    """)
    for G in range(4): a(f"v_add_u32 v{134+G}, {(3-G)*1024 + KC}, v21")
    a(f"""
    v_cndmask_b32 v132, 0, v132, vcc
    a_s_p:
    s_cmp_ge_u32 s27, 28
    s_cbranch_scc1 a_s_g1
    """)
    def wait_stage(tag, st):
        a(f"""{tag}:
        ds_read_b128 v[16:19], v23 offset:{16*st}
        s_waitcnt lgkmcnt(0)
        v_or_b32 v16, v16, v17
        v_or3_b32 v16, v16, v18, v19
        v_cmp_eq_u32 vcc, 0, v16
        s_cbranch_vccnz {tag}_x
        s_sleep 1
        s_branch {tag}
        {tag}_x:""")
    wait_stage("a_s_w1", int(OPT.get("ust", 6)))
    a("a_s_g1:")
    flag_poll("a_s_pu", 1, 10)
    a(f"""
    s_lshl_b32 s44, s40, 12
    s_lshl_b32 s45, s41, 11
    s_add_u32 s44, s44, s45
    s_add_u32 s44, s44, {WS_U}
    s_add_u32 m0, s43, s45
    s_nop 0
    buffer_load_dwordx4 v12, s[36:39], s44 offen sc1 lds
    buffer_load_dwordx4 v12, s[36:39], s44 offen offset:1024 sc1 lds
    s_cmp_ge_u32 s27, 28
    s_cbranch_scc1 a_s_g2
    """)
    wait_stage("a_s_w2", 8)
    a("""a_s_g2:
    v_mov_b32 v19, 0
    s_cmp_lg_u32 s41, 0
    s_cbranch_scc1 a_s_u""")
    for ui, (G, cp, prs) in enumerate(units):
        o = 100 + 4*ui
        if cp == 0: a(f"ds_write_b128 v21, {vr(o,4)} offset:{(3-G)*1024}")
        else: a(f"ds_write2_b32 v{134+G}, v{o}, v{o+1} offset0:0 offset1:1\nds_write2_b32 v{134+G}, v{o+2}, v{o+3} offset0:2 offset1:3")
    a(f"""
    s_mov_b64 exec, 0x7fff
    ds_write_b32 v133, v19 offset:4096
    s_mov_b64 exec, 0xffff
    ds_write_b32 v133, v132 offset:{4096 + KC}
    s_mov_b64 exec, -1
    a_s_u:
    s_waitcnt vmcnt(0)
    ds_write_b32 v22, v19 offset:268
    """)
    for i in range(32): a(f"v_mov_b32 v{CU+i}, 0")
    a(f"""
    v_and_b32 v12, 31, v0
    v_lshrrev_b32 v13, 5, v0             ; h
    v_lshlrev_b32 v16, 5, v12
    v_lshl_add_u32 v16, v13, 4, v16
    s_lshl_b32 s45, s41, 7
    s_sub_u32 s44, s43, s45
    s_sub_u32 s44, s44, 96
    v_add_u32 v16, s44, v16
    s_lshl_b32 s45, s41, 2
    v_lshlrev_b32 v17, 3, v13
    v_sub_u32 v17, v17, v12
    v_lshlrev_b32 v17, 1, v17            ; 2*(8h - b)
    v_and_b32 v18, 1, v12
    v_xor_b32 v18, 1, v18
    v_mul_u32_u24 v18, {KC + 2}, v18
    s_lshl_b32 s46, s41, 8
    s_sub_u32 s46, s42, s46
    s_add_u32 s46, s46, {62 + 120*32}
    v_add3_u32 v17, v17, v18, s46
    v_subrev_u32 v18, 2048, v17
    """)
    lds_wait("a_s_o1", 20, 268, 12)
    for q in range(4):
        a(f"s_add_u32 s46, s45, {q}\ns_lshl_b32 exec_lo, -1, s46\ns_mov_b32 exec_hi, exec_lo")
        for es in range(2): a(f"ds_read_b128 {vr(CU+8*q+4*es,4)}, v16 offset:{es*2048 + (3-q)*32}")
        a("s_mov_b64 exec, -1")
        for es in range(2): a(f"ds_read_b128 {vr(CU+32+8*q+4*es,4)}, v16 offset:{es*2048 + 1024 + (3-q)*32}")
        if q == 2: a("s_waitcnt lgkmcnt(4)")
    a("s_waitcnt lgkmcnt(2)")
    stamp("Abuilt")
    steps = [(k, q, es) for k in range(4) for q in range(4) for es in range(2)]
    def frd(i):
        k, q, es = steps[i]; b = CF + 8*(i & 3); o = (6 - 2*q + es) * 8
        if q == 0 and es == 0 and k: a("v_subrev_u32 v17, 512, v17\nv_subrev_u32 v18, 512, v18")
        a(f"""ds_read2_b32 {vr(b,2)}, v17 offset0:{o} offset1:{o+1}
        ds_read2_b32 {vr(b+2,2)}, v17 offset0:{o+2} offset1:{o+3}
        ds_read2_b32 {vr(b+4,2)}, v18 offset0:{o} offset1:{o+1}
        ds_read2_b32 {vr(b+6,2)}, v18 offset0:{o+2} offset1:{o+3}""")
    for i in range(3): frd(i)
    for i, (k, q, es) in enumerate(steps):
        b = CF + 8*(i & 3); U0 = vr(CU+8*q+4*es, 4); U1 = vr(CU+32+8*q+4*es, 4)
        lo = vr(CA+4*k, 16); hi = vr(CA+16+4*k, 16)
        w = f"s_waitcnt lgkmcnt({4*min(2, 31-i)})"
        a(w)
        if q == 0 and es == 0 and k: a("s_nop 9")
        a(f"v_mfma_f32_32x32x16_bf16 {lo}, {U0}, {vr(b,4)}, {lo}")
        a(f"v_mfma_f32_32x32x16_bf16 {hi}, {U1}, {vr(b,4)}, {hi}")
        if i + 3 < 32: frd(i+3)
        a(f"v_mfma_f32_32x32x16_bf16 {hi}, {U0}, {vr(b+4,4)}, {hi}")
    stamp("Aconv")
    a(f"""
    ds_write_b32 v22, v19 offset:260
    s_lshl_b32 s46, s41, 12
    s_add_u32 s46, s46, s42
    v_lshl_add_u32 v16, v0, 4, s46
    s_lshl_b32 s46, s41, 13
    s_sub_u32 s46, 4096, s46
    v_add_u32 v17, s46, v16              ; partner's
    v_lshlrev_b32 v18, 4, v0
    s_lshl_b32 s44, s40, 12
    s_lshl_b32 s45, s41, 11
    s_add_u32 s44, s44, s45
    s_add_u32 s44, s44, {WS_Y}
    s_lshl_b32 s59, s40, 1
    s_add_u32 s59, s59, s41
    s_mul_i32 s59, s59, {FS}
    s_add_u32 s59, s59, {FL_Y}
    """)
    lds_wait("a_s_y1", 20, 260, 12)
    a("s_cmp_eq_u32 s41, 0\ns_cbranch_scc1 a_s_y0")
    for i in range(4): a(f"ds_write_b128 v16, {vr(CA+4*i,4)} offset:{1024*i}")
    a("ds_write_b32 v22, v19 offset:264\ns_waitcnt lgkmcnt(0)")
    for i in range(16): a(f"v_mov_b32 v{CA+i}, v{CA+16+i}")
    a("s_branch a_s_y2\na_s_y0:")
    for i in range(4): a(f"ds_write_b128 v16, {vr(CA+16+4*i,4)} offset:{1024*i}")
    a("ds_write_b32 v22, v19 offset:264\na_s_y2:")
    lds_wait("a_s_y3", 20, 264, 12)
    for i in range(4): a(f"ds_read_b128 {vr(CU+4*i,4)}, v17 offset:{1024*i}")
    a("s_waitcnt lgkmcnt(0)")
    for i in range(16): a(f"v_add_f32 v{CA+i}, v{CA+i}, v{CU+i}")
    for i in range(8): a(f"v_cvt_pk_bf16_f32 v{CF+i}, v{CA+2*i}, v{CA+2*i+1}")
    for g in range(2): a(f"buffer_store_dwordx4 {vr(CF+4*g,4)}, v18, s[36:39], s44 offen offset:{1024*g} sc1")
    stamp("Aend")
    a("s_mov_b32 s62, s59\ns_branch a_end1")
    a(f"""a_end:
    s_mov_b32 s62, 0
    a_end1:
    v_mov_b32 v116, v0
    s_cmp_lg_u32 s3, 4
    s_cbranch_scc1 a_end2
    v_mov_b32 v4, {L_FL}
    v_mov_b32 v5, 0
    ds_write_b32 v4, v5 offset:240
    a_end2:""")

S = [0, 16]; O = 32; NEG = 48; P = 64; KF = [72, 76]; TF = [80, 84]; VF = [88, 96]; Q = 104; QL = 108; QH = 110
vK, vT, vV = 112, 113, 114
def rdK(buf, t): a(f"ds_read2st64_b64 {vr(KF[buf],4)}, v{vK} offset0:{2*t} offset1:{2*t+1}")
def rdT(buf, q): a(f"ds_read2st64_b64 {vr(TF[buf],4)}, v{vT} offset0:{2*q} offset1:{2*q+1}")
def rdV(buf, t):
    a(f"""s_mov_b64 exec, s[18:19]
    ds_read_b128 {vr(VF[buf],4)}, v{vV} offset:{t*1152}
    ds_read_b128 {vr(VF[buf]+4,4)}, v{vV} offset:{t*1152+576}
    s_mov_b64 exec, -1""")
def qk_tail(t, tb):
    tt = t & 3
    a(f"v_mfma_f32_32x32x8_bf16 {vr(S[t&1],16)}, {vr(TF[tb]+2*(tt>>1),2)}, {vr(QH if tt&1 else QL,2)}, {vr(S[t&1],16)}")
def pv(t, half): a(f"v_mfma_f32_32x32x16_bf16 {vr(O,16)}, {vr(VF[t&1]+4*half,4)}, {vr(P+4*half,4)}, {vr(O,16)}")
def ex(t, r0, r1):
    for r in range(r0, r1): a(f"v_exp_f32 v{S[t&1]+r}, v{S[t&1]+r}")
def cv(t, c0, c1):
    for c in range(c0, c1): a(f"v_cvt_pk_bf16_f32 v{P+c}, v{S[t&1]+2*c}, v{S[t&1]+2*c+1}")
def att_run(fast):
    tag = "b_f" if fast else "b_s"
    def qk_main(t): a(f"v_mfma_f32_32x32x16_bf16 {vr(S[t&1],16)}, {vr(KF[t&1],4)}, {vr(Q,4)}, " + ("0" if fast else vr(NEG,16)))
    rdK(0, 0); rdT(0, 0); rdK(1, 1); rdV(0, 0)
    if not fast:
        for i in range(16): a(f"v_mov_b32 v{O+i}, 0")
        for i in range(4): a(f"v_mov_b32 v{P+4+i}, 0")
    a("s_mov_b32 s26, 0\ns_waitcnt lgkmcnt(3)")
    qk_main(0); qk_tail(0, 0)
    a(f"s_nop 7\ns_nop 3\n.p2align 6\n{tag}_loop:")
    for t in range(8):
        if fast and t == 2:
            a(f"s_cmp_lg_u32 s26, 1\ns_cbranch_scc1 {tag}_np2\ns_setprio 2\n{tag}_np2:")
        if fast and t == 4:
            a(f"s_cmp_lg_u32 s26, 1\ns_cbranch_scc1 {tag}_nobar\ns_barrier\n{tag}_nobar:")
            a(f"s_cmp_lg_u32 s26, 6\ns_cbranch_scc1 {tag}_np1\ns_setprio 1\n{tag}_np1:")
        if fast and t == 6:
            a(f"s_cmp_lg_u32 s26, 7\ns_cbranch_scc1 {tag}_np0\ns_setprio 0\n{tag}_np0:")
        a("s_waitcnt lgkmcnt(0)")
        qk_main(t+1)
        rdK(t&1, t+2)
        if (t & 3) == 1: rdT(((t>>2)+1)&1, (t>>2)+1)
        ex(t, 0, 4)
        pv(t-1, 1)
        rdV((t+1)&1, t+1)
        ex(t, 4, 8); cv(t, 0, 4)
        qk_tail(t+1, ((t+1)>>2)&1)
        ex(t, 8, 12)
        pv(t, 0)
        if t == 7:
            a(f"""v_add_u32 v{vK}, 8192, v{vK}
            v_add_u32 v{vT}, 2048, v{vT}
            v_add_u32 v{vV}, 9216, v{vV}
            s_add_u32 s26, s26, 1
            s_cmp_lt_u32 s26, 8""")
        ex(t, 12, 16); cv(t, 4, 8)
    a(f"s_cbranch_scc1 {tag}_loop")
    if fast: stamp("Bloop")
    a("s_nop 1")
    pv(7, 1)

def phaseB():
    a(f"""
    s_cmp_ge_u32 s3, 8
    s_cbranch_scc1 b_aux
    s_and_b32 s4, s2, 31                 ; head
    s_lshr_b32 s5, s2, 5
    s_lshl_b32 s5, s5, 3
    s_add_u32 s5, s5, s3
    s_lshr_b32 s6, s4, 1
    s_mul_i32 s6, s6, 2304
    s_and_b32 s7, s4, 1
    s_mul_i32 s8, s7, 1280
    s_add_u32 s8, s8, s6
    s_add_u32 s9, s6, 1024
    s_mul_i32 s10, s5, {QK_T}
    s_add_u32 s11, s10, s8
    s_add_u32 s12, s10, s9
    v_lshlrev_b32 v{vK}, 3, v116
    v_and_b32 v117, 31, v116
    v_lshlrev_b32 v118, 3, v117
    v_lshlrev_b32 v119, 4, v116
    v_lshrrev_b32 v120, 4, v116
    s_mov_b32 s13, {QK_T}
    v_mul_lo_u32 v120, v120, s13
    v_and_b32 v121, 15, v116
    v_lshl_add_u32 v120, v121, 4, v120
    s_mul_i32 s14, s3, {QK_T}
    s_add_u32 s14, s14, s8
    s_add_u32 s14, s14, {144*256}
    s_mul_i32 s15, s4, {V_H}
    s_lshl_b32 s16, s3, 10
    s_add_u32 s15, s15, s16
    s_add_u32 s15, s15, {WS_V}
    s_mul_i32 s17, s3, {4*QK_T}
    s_add_u32 s17, s17, s9
    s_add_u32 s17, s17, {144*256}
    """)
    for i in range(16): a(f"v_mov_b32 v{O+i}, 0")
    for i in range(4): a(f"v_mov_b32 v{P+4+i}, 0")
    a(f"""v_and_b32 v121, 27, v116
    v_cmp_eq_u32 vcc, 18, v121
    v_mov_b32 v121, 0x3f803f80
    s_nop 0
    v_cndmask_b32 v{VF[0]}, 0, v121, vcc""")
    for i in range(1, 16): a(f"v_mov_b32 v{VF[0]+i}, v{VF[0]}")
    a(f"""
    v_add_u32 v{vT}, {L_KT}, v{vK}
    v_lshrrev_b32 v121, 5, v116
    v_mul_u32_u24 v121, 288, v121
    v_lshl_add_u32 v{vV}, v117, 4, v121
    v_add_u32 v{vV}, {L_V}, v{vV}
    s_mov_b32 s18, 0x3ffff
    s_mov_b32 s19, 0x3ffff
    s_mov_b32 s21, {f2u(18**-0.5 * 1.4426950408889634):#x}
    v_cmp_lt_u32 s[22:23], 31, v116
    s_setprio 3
    s_barrier
    """)
    stamp("Bflag")
    a(f"""
    buffer_load_dwordx2 v[{Q}:{Q+1}], v{vK}, s[36:39], s11 offen sc1
    buffer_load_dwordx2 v[{Q+2}:{Q+3}], v{vK}, s[36:39], s11 offen offset:512 sc1
    buffer_load_dwordx2 v[{QL}:{QL+1}], v118, s[36:39], s12 offen sc1
    """)
    def dK(j): a(f"s_add_u32 m0, s16, {j*8192}\n" + (f"s_add_u32 s14, s14, {8*QK_T}\n" if j else "s_nop 0\n") + "buffer_load_dwordx4 v119, s[36:39], s14 offen sc1 lds")
    def dV(j): a(f"s_add_u32 m0, s16, {L_V + j*8192}\n" + ("s_add_u32 s15, s15, 8192\n" if j else "s_nop 0\n") + "buffer_load_dwordx4 v119, s[36:39], s15 offen sc1 lds")
    def dT(j): a(f"s_add_u32 m0, s16, {L_KT + j*8192}\ns_nop 0\nbuffer_load_dwordx4 v120, s[36:39], s17 offen sc1 lds")
    dK(0); dV(0); dT(0); dV(1); dK(1)
    a("s_waitcnt vmcnt(5)")
    for r in list(range(Q, Q+4)) + [QL, QL+1]:
        a(f"""v_lshlrev_b32 v121, 16, v{r}
        v_and_b32 v{r}, 0xffff0000, v{r}
        v_mul_f32 v121, s21, v121
        v_mul_f32 v{r}, s21, v{r}
        v_cvt_pk_bf16_f32 v{r}, v121, v{r}""")
    a(f"""
    s_cmp_eq_u32 s7, 0
    s_cselect_b64 vcc, -1, 0
    v_cndmask_b32 v{QL}, 0, v{QL}, vcc
    v_cndmask_b32 v{QL+1}, v{QL+1}, 0, vcc
    v_cndmask_b32 v{QH}, 0, v{QL}, s[22:23]
    v_cndmask_b32 v{QH+1}, 0, v{QL+1}, s[22:23]
    v_cndmask_b32 v{QL}, v{QL}, 0, s[22:23]
    v_cndmask_b32 v{QL+1}, v{QL+1}, 0, s[22:23]
    s_waitcnt vmcnt(0)
    s_barrier
    s_cmp_eq_u32 s62, 0
    s_cbranch_scc1 b_nyf
    """)
    flag_set("s62", 122)
    a("b_nyf:")
    stamp("Bgo")
    att_run(True)
    a(f"""
    s_mul_i32 s10, s5, {O_T}
    s_add_u32 s10, s10, {WS_O}
    s_lshl_b32 s11, s4, 10
    s_add_u32 s11, s11, s10
    s_lshl_b32 s12, s4, 7
    s_add_u32 s12, s12, s10
    s_add_u32 s12, s12, 32768
    s_lshl_b32 s59, s5, 5
    s_add_u32 s59, s59, s4
    s_mul_i32 s59, s59, {FS}
    s_add_u32 s59, s59, {FL_B}
    s_mov_b32 s27, {f2u(2.0**100):#x}
    v_lshlrev_b32 v127, 2, v116
    s_nop 1
    v_max3_f32 v121, abs(v{O}), abs(v{O+1}), abs(v{O+2})
    v_max3_f32 v121, abs(v{O+3}), abs(v{O+4}), v121
    v_max3_f32 v121, abs(v{O+5}), abs(v{O+6}), v121
    v_max3_f32 v121, abs(v{O+7}), abs(v{O+8}), v121
    v_add_f32 v122, v{O}, v{O+1}
    v_add_f32 v123, v{O+2}, v{O+3}
    v_add_f32 v124, v{O+4}, v{O+5}
    v_add_f32 v125, v{O+6}, v{O+7}
    v_add_f32 v126, v{O+8}, v{O+9}
    v_add_f32 v122, v122, v123
    v_add_f32 v124, v124, v125
    v_add_f32 v122, v122, v126
    v_add_f32 v122, v122, v124
    v_max3_f32 v121, abs(v{O+9}), v{O+10}, v121
    v_cmp_ngt_f32 vcc, s27, v121
    v_cmp_nle_f32 s[28:29], 1.0, v{O+10}
    v_cmp_u_f32 s[30:31], v122, v122
    s_or_b64 vcc, vcc, s[28:29]
    s_or_b64 vcc, vcc, s[30:31]
    s_cbranch_vccnz b_slow
    b_fin:
    v_rcp_f32 v121, v{O+10}
    s_nop 0
    """)
    for r in range(10): a(f"v_mul_f32 v{O+r}, v{O+r}, v121")
    for c in range(5): a(f"v_cvt_pk_bf16_f32 v{P+c}, v{O+2*c}, v{O+2*c+1}")
    a(f"""
    buffer_store_dwordx4 {vr(P,4)}, v119, s[36:39], s11 offen sc1
    s_mov_b32 exec_hi, 0
    buffer_store_dword v{P+4}, v127, s[36:39], s12 offen sc1
    s_mov_b32 exec_hi, -1
    v_mov_b32 v0, v116
    s_waitcnt lgkmcnt(0)
    s_barrier
    s_waitcnt vmcnt(0)
    """)
    stamp("Back")
    flag_set("s59", 2)
    a("s_branch c_start")
    a(f"""
    b_aux:
    s_and_b32 s4, s2, 31
    s_lshr_b32 s6, s4, 1
    s_and_b32 s7, s4, 1
    s_cmp_lg_u32 s3, 8
    s_cbranch_scc1 b_nopoll
    s_mul_i32 s8, s6, 36
    s_lshl_b32 s9, s7, 4
    s_add_u32 s8, s8, s9
    s_mul_i32 s9, s4, 18
    v_lshrrev_b32 v8, 5, v116
    v_mul_u32_u24 v9, 19, v8
    v_add_u32 v9, s8, v9
    v_add_u32 v10, 576, v9
    v_lshrrev_b32 v10, 6, v10
    v_and_b32 v11, 31, v116
    v_lshl_add_u32 v10, v10, 5, v11
    v_mul_u32_u24 v120, {FS}, v10
    v_mul_u32_u24 v10, 17, v8
    v_add_u32 v10, s9, v10
    v_add_u32 v10, 1152, v10
    v_lshrrev_b32 v10, 6, v10
    v_lshl_add_u32 v10, v10, 5, v11
    v_mul_u32_u24 v121, {FS}, v10
    v_lshrrev_b32 v10, 6, v9
    s_lshr_b32 s9, s2, 5
    s_lshl_b32 s9, s9, 2
    v_and_b32 v11, 3, v116
    v_add_u32 v11, s9, v11
    v_lshl_add_u32 v10, v10, 5, v11
    v_mul_u32_u24 v122, {FS}, v10
    v_mov_b32 v8, {L_FL}
    b_pw:
    s_sleep 1
    ds_read_b32 v9, v8 offset:240
    s_waitcnt lgkmcnt(0)
    v_cmp_eq_u32 vcc, 0, v9
    s_cbranch_vccz b_pw
    """)
    flag_poll("b_pa", 3, 120)
    a(f"""
    b_nopoll:
    s_barrier
    s_mul_i32 s6, s6, 2304
    s_mul_i32 s8, s7, 1280
    s_add_u32 s8, s8, s6
    s_add_u32 s8, s8, {144*256 + 16*QK_T}
    s_add_u32 s9, s6, {1024 + 144*256 + 32*QK_T}
    s_mul_i32 s10, s4, {V_H}
    s_add_u32 s10, s10, {WS_V + 16384}
    v_lshlrev_b32 v119, 4, v116
    v_lshrrev_b32 v120, 4, v116
    s_mov_b32 s13, {QK_T}
    v_mul_lo_u32 v120, v120, s13
    v_and_b32 v121, 15, v116
    v_lshl_add_u32 v120, v121, 4, v120
    s_mov_b32 s11, {QK_T}
    s_mov_b32 s12, 48
    s_mov_b32 m0, 16384
    s_sub_u32 s14, s3, 9
    s_mul_i32 s14, s14, {14*1024}
    s_add_u32 s10, s10, s14
    s_add_u32 s14, s14, {L_V + 16384}
    s_bitcmp1_b32 s3, 0
    s_cselect_b32 s8, s10, s8
    s_cselect_b32 s11, 1024, s11
    s_cselect_b32 s12, 28, s12
    s_cselect_b32 m0, s14, m0
    s_cmp_eq_u32 s3, 10
    s_cselect_b32 s8, s9, s8
    s_cselect_b32 s11, {4*QK_T}, s11
    s_cselect_b32 s12, 8, s12
    s_cselect_b32 m0, {L_KT + 8192}, m0
    s_cselect_b64 vcc, -1, 0
    v_cndmask_b32 v119, v119, v120, vcc
    s_setprio 3
    s_barrier
    b_ld:
    buffer_load_dwordx4 v119, s[36:39], s8 offen sc1 lds
    s_add_u32 m0, m0, 1024
    s_add_u32 s8, s8, s11
    s_sub_u32 s12, s12, 1
    s_cmp_lg_u32 s12, 0
    s_cbranch_scc1 b_ld
    s_waitcnt vmcnt(0)
    s_barrier
    """)
    srd(28, 94, 663552)
    srd(32, 96, 4718592)
    a(f"""
    s_lshr_b32 s12, s2, 3
    s_lshl_b32 s12, s12, 2
    s_add_u32 s12, s12, s3
    s_sub_u32 s12, s12, 8
    s_lshl_b32 s12, s12, 13
    v_lshlrev_b32 v121, 7, v116
    buffer_load_dword v115, v121, s[28:31], s12 offen
    s_cmp_lg_u32 s3, 9
    s_cbranch_scc1 b_noy
    ; ---- SSM output: 64 channels x 64 positions per task, through the spare LDS
    s_mov_b32 s4, s2
    v_lshrrev_b32 v10, 3, v116
    v_and_b32 v9, 7, v116
    v_lshlrev_b32 v11, 12, v10
    v_lshl_add_u32 v11, v9, 4, v11
    v_xor_b32 v12, v10, v9
    v_lshlrev_b32 v12, 4, v12
    v_lshl_add_u32 v12, v9, 10, v12
    v_add_u32 v12, {L_BOUNCE}, v12
    s_mov_b32 s50, 0x05040100
    s_mov_b32 s51, 0x07060302
    """)
    for p in range(8): a(f"v_xor_b32 v{24+p}, {16*p}, v11")
    a(f"""
    b_y:
    s_lshr_b32 s5, s4, 5
    s_and_b32 s6, s4, 31                 ; sub
    s_lshl_b32 s7, s5, 7
    s_lshr_b32 s8, s6, 4
    s_add_u32 s7, s7, s8
    v_lshl_add_u32 v120, v116, 1, s7
    v_mul_u32_u24 v120, {FS}, v120
    v_add_u32 v120, {FL_Y}, v120
    """)
    flag_poll("b_py", 1, 120)
    a(f"""
    s_lshl_b32 s7, s5, 18
    s_lshl_b32 s8, s6, 7
    s_add_u32 s7, s7, s8
    s_add_u32 s7, s7, {WS_Y}
    s_mov_b32 m0, {L_BOUNCE}
    """)
    for p in range(8):
        a(f"s_nop 0\nbuffer_load_dwordx4 v{24+p}, s[36:39], s7 offen sc1 lds\ns_add_u32 m0, m0, 1024\ns_add_u32 s7, s7, 32768")
    a(f"""
    s_and_b32 s8, s6, 3
    s_lshl_b32 s8, s8, 3
    s_bfe_u32 s9, s6, 0x10002
    s_lshl_b32 s9, s9, 7
    s_add_u32 s8, s8, s9
    s_lshr_b32 s9, s6, 3
    s_lshl_b32 s9, s9, 9
    s_add_u32 s8, s8, s9
    v_add_u32 v17, s8, v10
    v_mul_u32_u24 v17, 2304, v17
    v_lshl_add_u32 v17, v9, 4, v17
    s_lshl_b32 s8, s5, 7
    s_add_u32 s8, s8, 1152
    s_waitcnt vmcnt(0)
    """)
    for j in range(8): a(f"ds_read_b128 {vr(32+4*j,4)}, v12 offset:{j*128}")
    a("s_waitcnt lgkmcnt(0)")
    transpose8(32, 64, 50, 51)
    for c in range(8):
        a(f"s_add_u32 s9, s8, {((c&3)*32 + (c>>2)*256)*2304}\nbuffer_store_dwordx4 {vr(64+4*c,4)}, v17, s[32:35], s9 offen {OPT.get('sty','sc1')}")
    a(f"""
    s_add_u32 s4, s4, 256
    s_cmp_lt_u32 s4, 288
    s_cbranch_scc1 b_y
    b_noy:
    s_setprio 0
    v_mov_b32 v0, v116
    s_lshr_b32 s5, s2, 5                 ; tn
    s_mul_i32 s17, s5, 192
    """)
    for t in range(3):
        a(f"""v_add_u32 v5, {64*t}, v0
        v_mul_u32_u24 v6, 5462, v5
        v_lshrrev_b32 v6, 16, v6             ; row
        v_mul_u32_u24 v7, 12, v6
        v_sub_u32 v7, v5, v7
        v_lshl_add_u32 v7, v7, 4, s17
        v_mul_u32_u24 v8, 1152, v6
        v_add_u32 v{12+t}, v8, v7
        v_and_b32 v9, 4, v6
        v_lshrrev_b32 v10, 3, v6
        v_lshl_add_u32 v9, v10, 1, v9
        v_bfe_u32 v10, v6, 1, 1
        v_add_u32 v9, v9, v10
        v_mul_u32_u24 v9, 18, v9
        v_and_b32 v10, 1, v6
        v_add3_u32 v9, v9, v10, 16
        v_mul_u32_u24 v9, 1152, v9
        v_add_u32 v{16+t}, v9, v7""")
    a(f"""
    s_sub_u32 s8, s3, 8
    s_mul_i32 s10, s8, {9*20736}
    s_mul_i32 m0, s8, {9*3072}
    s_mov_b32 s12, 20736
    s_mov_b32 s13, 0
    s_barrier
    s_cmp_ge_u32 s2, 192
    s_cbranch_scc1 c_idle
    b_w:
    s_cmp_lg_u32 s13, 5
    s_cbranch_scc1 b_w1
    s_cmp_lg_u32 s8, 3
    s_cbranch_scc1 b_w1
    v_mov_b32 v12, v16
    v_mov_b32 v13, v17
    v_mov_b32 v14, v18
    s_mov_b32 s10, 0
    s_mov_b32 s12, {8*20736}
    b_w1:
    buffer_load_dwordx4 v12, s[28:31], s10 offen lds
    s_add_u32 m0, m0, 1024
    s_add_u32 s13, s13, 1
    buffer_load_dwordx4 v13, s[28:31], s10 offen lds
    s_add_u32 m0, m0, 1024
    s_cmp_lt_u32 s13, 9
    buffer_load_dwordx4 v14, s[28:31], s10 offen lds
    s_cbranch_scc0 c_start
    s_add_u32 m0, m0, 1024
    s_add_u32 s10, s10, s12
    s_branch b_w
    """)

def phaseC():
    a(f"""
    c_start:
    s_cmp_ge_u32 s2, 192
    s_cbranch_scc1 k_done2
    """)
    srd(32, 96, 4718592)
    a(f"""
    s_and_b32 s4, s2, 7
    s_bfe_u32 s6, s2, 0x20003
    s_lshl_b32 s7, s4, 2
    s_add_u32 s7, s7, s6                 ; tm
    s_lshr_b32 s5, s2, 5                 ; tn
    s_mul_i32 s8, s3, 43
    s_lshr_b32 s8, s8, 7                 ; w/3
    s_mul_i32 s9, s8, 3
    s_sub_u32 s9, s3, s9                 ; tb = w%3
    s_lshr_b32 s13, s8, 1                ; kh
    s_and_b32 s14, s8, 1                 ; ta
    v_lshrrev_b32 v5, 5, v0
    v_bfe_u32 v6, v0, 2, 2
    v_lshl_add_u32 v6, v5, 2, v6
    v_mul_u32_u24 v4, 192, v6
    v_bfe_u32 v6, v0, 4, 1
    v_lshl_add_u32 v4, v6, 5, v4
    v_and_b32 v6, 3, v0
    v_lshl_add_u32 v4, v6, 3, v4
    s_lshl_b32 s17, s9, 6
    s_mul_i32 s18, s13, {18*3072}
    s_add_u32 s17, s17, s18
    v_add_u32 v4, s17, v4
    v_lshlrev_b32 v2, 4, v0
    s_mul_i32 s17, s8, {18*1024}
    v_add_u32 v3, s17, v2
    v_and_b32 v11, 31, v0
    v_lshlrev_b32 v11, 2, v11
    v_lshl_add_u32 v11, v5, 9, v11
    v_add_u32 v11, s17, v11
    v_add_u32 v11, {14*1024}, v11
    s_lshl_b32 s15, s7, 1
    s_add_u32 s15, s15, s14
    s_mul_i32 s16, s15, {O_T}
    s_mul_i32 s18, s13, {18*1024}
    s_add_u32 s16, s16, s18
    s_lshl_b32 s18, s9, 10
    s_add_u32 s16, s16, s18
    s_add_u32 s16, s16, {WS_O}
    s_add_u32 s17, s17, s18
    s_mul_i32 s18, s7, {64*FS}
    s_add_u32 s18, s18, {FL_B}
    v_mul_u32_u24 v120, {FS}, v0
    v_add_u32 v120, s18, v120
    s_cmp_lt_u32 s3, 8
    s_cbranch_scc1 c_nw
    s_waitcnt vmcnt(0)
    c_nw:
    s_barrier
    """)
    stamp("CW")
    a("s_cmp_lg_u32 s3, 8\ns_cbranch_scc1 c_ni")
    poll_issue(1, 120)
    a("c_ni:")
    for k in range(18):
        a(f"ds_read_b64_tr_b16 {vr(32+4*k,2)}, v4 offset:{k*3072}\nds_read_b64_tr_b16 {vr(34+4*k,2)}, v4 offset:{k*3072+8*192}")
        if k % 4 == 3: a("s_waitcnt lgkmcnt(6)")
    a("s_cmp_lg_u32 s3, 8\ns_cbranch_scc1 c_np")
    flag_poll("c_pb", 1, 120, issued=True)
    a("c_np:\ns_mov_b32 m0, s17\ns_waitcnt lgkmcnt(0)\ns_barrier")
    stamp("Cflag")
    for i in range(6):
        a("buffer_load_dwordx4 v2, s[36:39], s16 offen sc1 lds")
        if i < 5: a("s_add_u32 m0, m0, 3072\ns_add_u32 s16, s16, 3072")
    a(f"""
    s_mul_i32 s18, s3, 2048
    s_add_u32 s18, s18, 81920
    v_add_u32 v6, s18, v2
    s_mov_b32 s19, {-6*2048 & 0xffffffff:#x}
    s_cmp_eq_u32 s13, 0
    s_cselect_b32 s19, {6*2048}, s19
    v_add_u32 v7, s19, v6                ; partner's
    v_mul_u32_u24 v5, {8*2304}, v5
    v_and_b32 v8, 31, v0
    v_lshl_add_u32 v5, v8, 1, v5
    s_mul_i32 s17, s15, {32*2304}
    s_mul_i32 s18, s5, 192
    s_add_u32 s17, s17, s18
    s_lshl_b32 s18, s9, 6
    s_add_u32 s17, s17, s18
    s_mul_i32 s18, s13, {16*2304}
    s_add_u32 s17, s17, s18
    """)
    for c in range(3):
        a(f"s_waitcnt vmcnt({4-2*c})\ns_barrier")
        if c == 0: stamp("Cfirst")
        if c < 2:
            for k in range(6): a(f"ds_read_b128 {vr(104+4*k,4)}, v3 offset:{(6*c+k)*1024}")
        else:
            for k in range(2): a(f"ds_read_b128 {vr(104+4*k,4)}, v3 offset:{(6*c+k)*1024}")
            a("s_cmp_eq_u32 s13, 1\ns_cbranch_scc1 c_tl")
            for k in range(2, 6): a(f"ds_read_b128 {vr(104+4*k,4)}, v3 offset:{(6*c+k)*1024}")
            a("s_branch c_tm\nc_tl:")
            for k in range(2, 6):
                a(f"""ds_read2_b32 {vr(104+4*k,2)}, v11 offset0:0 offset1:32
                ds_read2_b32 {vr(106+4*k,2)}, v11 offset0:64 offset1:96
                v_add_u32 v11, 1024, v11""")
            a("s_waitcnt lgkmcnt(0)\nc_tm:")
        for k in range(6):
            a(f"s_waitcnt lgkmcnt({5-k})")
            a(f"v_mfma_f32_32x32x16_bf16 v[16:31], {vr(104+4*k,4)}, {vr(32+4*(6*c+k),4)}, " + ("0" if c == 0 and k == 0 else "v[16:31]"))
    stamp("Cmfma")
    a("""
    s_nop 10
    s_cmp_eq_u32 s13, 0
    s_cbranch_scc1 c_x0
    ds_write_b128 v6, v[16:19]
    ds_write_b128 v6, v[20:23] offset:1024
    s_waitcnt lgkmcnt(0)
    """)
    for r in range(8): a(f"v_mov_b32 v{16+r}, v{24+r}")
    a("""s_branch c_x1
    c_x0:
    ds_write_b128 v6, v[24:27]
    ds_write_b128 v6, v[28:31] offset:1024
    c_x1:
    s_waitcnt lgkmcnt(0)
    s_barrier
    ds_read_b128 v[32:35], v7
    ds_read_b128 v[36:39], v7 offset:1024
    s_waitcnt lgkmcnt(0)""")
    for r in range(8): a(f"v_add_f32 v{16+r}, v{16+r}, v{32+r}")
    for c in range(4): a(f"v_cvt_pk_bf16_f32 v{40+c}, v{16+2*c}, v{16+2*c+1}")
    for c in range(4):
        a(f"""s_add_u32 s18, s17, {2*c*2304}
        buffer_store_short v{40+c}, v5, s[32:35], s18 offen {OPT.get('sto','')}
        buffer_store_short_d16_hi v{40+c}, v5, s[32:35], s18 offen offset:2304 {OPT.get('sto','')}""")
    a("k_done2:")
    stamp_out()
    a(f"""k_done:
    s_endpgm
    c_idle:
    s_cmp_lg_u32 s2, 255
    s_cbranch_scc1 k_done2
    s_cmp_lg_u32 s3, 8
    s_cbranch_scc1 k_done2
    v_lshrrev_b32 v120, 5, v116
    v_lshlrev_b32 v120, 8, v120
    v_and_b32 v121, 31, v116
    v_add_u32 v120, v120, v121
    v_mul_u32_u24 v120, {FS}, v120
    v_add_u32 v120, {FL_B}, v120
    v_add_u32 v121, {512*FS}, v120
    v_add_u32 v122, {1024*FS}, v120
    v_add_u32 v123, {1536*FS}, v120
    """)
    flag_poll("c_pe", 4, 120)
    a(f"s_mov_b32 s6, {FL_E}")
    flag_set("s6", 2)
    a("s_branch k_done2")
    a(f"""
    b_slow:
    v_subrev_u32 v{vK}, 65536, v{vK}
    v_subrev_u32 v{vT}, 16384, v{vT}
    v_subrev_u32 v{vV}, {8*9216}, v{vV}
    s_mov_b32 s26, 0
    v_mov_b32 v121, 0xff800000
    s_waitcnt lgkmcnt(0)
    b_mx:
    """)
    rdT(0, 0)
    for t in range(4):
        rdK(0, t)
        a("s_waitcnt lgkmcnt(0)")
        a(f"v_mfma_f32_32x32x16_bf16 {vr(S[0],16)}, {vr(KF[0],4)}, {vr(Q,4)}, 0")
        a(f"v_mfma_f32_32x32x8_bf16 {vr(S[0],16)}, {vr(TF[0]+2*(t>>1),2)}, {vr(QH if t&1 else QL,2)}, {vr(S[0],16)}")
        a("s_nop 15")
        for r in range(8): a(f"v_max3_f32 v121, v{S[0]+2*r}, v{S[0]+2*r+1}, v121")
    a(f"""
    v_add_u32 v{vK}, 4096, v{vK}
    v_add_u32 v{vT}, 1024, v{vT}
    s_add_u32 s26, s26, 1
    s_cmp_lt_u32 s26, 16
    s_cbranch_scc1 b_mx
    v_subrev_u32 v{vK}, 65536, v{vK}
    v_subrev_u32 v{vT}, 16384, v{vT}
    v_mov_b32 v122, v121
    s_nop 1
    v_permlane32_swap_b32 v121, v122
    s_nop 1
    v_max_f32 v121, v121, v122
    """)
    for i in range(16): a(f"v_sub_f32 v{NEG+i}, 0, v121")
    att_run(False)
    a("s_nop 15\ns_branch b_fin")

def main():
    ref = open("concat_heads__mha_block__ssm_conv_s4d__prompt.s.ref").read().split("\n")
    head = [l for l in ref if l.startswith(";") and "@launch" not in l and "Override launch" not in l and "grid=ceil" not in l]
    head += ["; @launch grid=(256,1,1) block=(768,1,1) lds=163840"]
    a(f".text\n.globl {KN}\n.p2align 8\n.type {KN},@function\n{KN}:")
    if INSTR:
        for i in range(70, 90): a(f"s_mov_b32 s{i}, 0")
        a("s_memtime s[70:71]\ns_memrealtime s[86:87]")
    phaseA(); phaseB(); phaseC()
    desc = f""".section .rodata,"a"
.p2align 6
.amdhsa_kernel {KN}
  .amdhsa_next_free_vgpr 168
  .amdhsa_next_free_sgpr 102
  .amdhsa_accum_offset 168
  .amdhsa_group_segment_fixed_size 0
  .amdhsa_kernarg_size 104
  .amdhsa_user_sgpr_count 2
  .amdhsa_user_sgpr_kernarg_segment_ptr 1
  .amdhsa_system_sgpr_workgroup_id_x 1
.end_amdhsa_kernel
"""
    out = "\n".join(head) + "\n.amdgcn_target \"amdgcn-amd-amdhsa--gfx950\"\n" + a.text() + desc
    path = sys.argv[1] if len(sys.argv) > 1 and sys.argv[1].endswith(".s") else "concat_heads__mha_block__ssm_conv_s4d__prompt.s"
    open(path, "w").write(out)
main()
```

```python
import sys, struct
KN = "concat_heads__mha_block__ssm_conv_s4d__prompt_kernel"
def f2u(x): return struct.unpack("<I", struct.pack("<f", x))[0]
INSTR = "instr" in sys.argv
OPT = dict(x.split("=") for x in sys.argv if "=" in x)

WS_QK = 0; QK_T = 73728
WS_V = WS_QK + 64 * QK_T; V_H = 73728
WS_O = WS_V + 32 * V_H; O_T = 36864
WS_U = WS_O + 64 * O_T
WS_Y = WS_U + 576 * 4096
WS_X = WS_Y + 576 * 4096
WS_FL = WS_X + 576 * 4096
FS = 128
FL_A = 0; FL_S = 864 * FS; FL_Y = FL_S + 288 * FS; FL_B = FL_Y + 1152 * FS; FL_E = FL_B + 2048 * FS
WS_END = WS_FL + FL_E + FS
WS_ST = 24 << 20
L_FL = 155648
KC = 4156
KAREA = 8448
L_KT = 65536; L_V = 81920; L_BOUNCE = 155648

class A:
    def __init__(s): s.l = []
    def __call__(s, t):
        for line in t.strip("\n").split("\n"):
            q = line.strip()
            if not q: continue
            s.l.append(q if q.endswith(":") else "    " + q)
    def text(s): return "\n".join(s.l) + "\n"
a = A()
def vr(b, n): return f"v[{b}:{b+n-1}]"
def srd(d, lo, size):
    a(f"""s_mov_b32 s{d}, s{lo}
    s_mov_b32 s{d+1}, s{lo+1}
    s_mov_b32 s{d+2}, {size}
    s_mov_b32 s{d+3}, 0x20000""")

SSETS = {"1": ["Aend", "Aack", "Bflag", "Bgo", "Bloop", "Back"],
         "2": ["Bloop", "Back", "CW", "Cflag", "Cfirst", "Cmfma"],
         "3": ["Afirst", "Akgen", "Abuilt", "Aconv", "Aend", "Aack"]}
DIAG = OPT.get("diag")
def stamp(name):
    if DIAG == name: a("s_memrealtime s[72:73]")
    if INSTR and name in SSETS[OPT.get("sset", "1")]:
        i = SSETS[OPT.get("sset", "1")].index(name) + 1
        a(f"s_memtime s[{70+2*i}:{71+2*i}]")
def stamp_out():
    if not INSTR: return
    a(f"""s_waitcnt vmcnt(0)
    s_memtime s[84:85]
    s_memrealtime s[88:89]
    s_waitcnt lgkmcnt(0)
    s_mov_b64 exec, 1
    s_lshl_b32 s90, s2, 4
    s_add_u32 s90, s90, s3
    s_lshl_b32 s90, s90, 6
    s_add_u32 s90, s90, {WS_ST}
    v_mov_b32 v166, s90""")
    for i in range(10):
        a(f"v_mov_b32 v167, s{70+2*i}\nglobal_store_dword v166, v167, s[24:25] offset:{4*i}")

def transpose8(I, O, sLO, sHI):
    for c in range(8):
        for t in range(4):
            a(f"v_perm_b32 v{O+4*c+t}, v{I+4*(2*t+1)+(c>>1)}, v{I+4*(2*t)+(c>>1)}, s{sHI if c&1 else sLO}")

def flag_set(soff, t):
    a(f"""v_mov_b32 v{t}, {WS_FL}
    v_mov_b32 v{t+1}, s92
    s_mov_b64 exec, 1
    buffer_store_dword v{t+1}, v{t}, s[36:39], {soff} offen sc1
    s_mov_b64 exec, -1""")
def poll_issue(n, t):
    for i in range(n): a(f"buffer_load_dword v{t+4+i}, v{t+i}, s[36:39], s93 offen sc1")
def flag_poll(tag, n, t, issued=False):
    a("s_mov_b32 s91, 0")
    if issued: a(f"s_branch {tag}_c")
    a(f"{tag}:")
    poll_issue(n, t)
    a(f"{tag}_c:\ns_add_u32 s91, s91, 1\ns_waitcnt vmcnt(0)")
    for i in range(n): a(f"v_xor_b32 v{t+4+i}, s92, v{t+4+i}")
    for i in range(1, n): a(f"v_or_b32 v{t+4}, v{t+4}, v{t+4+i}")
    a(f"""v_cmp_ne_u32 vcc, 0, v{t+4}
    s_cbranch_vccz {tag}_x
    s_mov_b64 exec, vcc
    s_sleep {OPT.get("slp", 2)}
    s_cmp_lt_u32 s91, 0x80000
    s_cbranch_scc1 {tag}
    {tag}_x:
    s_mov_b64 exec, -1""")
def lds_wait(tag, vaddr, off, t):
    a(f"""{tag}:
    ds_read_b32 v{t}, v{vaddr} offset:{off}
    s_waitcnt lgkmcnt(0)
    v_cmp_eq_u32 vcc, 0, v{t}
    s_cbranch_vccz {tag}""")
def kargs():
    a(f"""s_waitcnt lgkmcnt(0)
    s_add_u32 s68, s24, {WS_FL + FL_E}
    s_addc_u32 s69, s25, 0
    s_load_dword s92, s[68:69], 0""")
    srd(36, 24, WS_END)

def utask():
    a(f"""
    s_mul_i32 s61, s44, {FS}
    s_add_u32 s61, s61, {FL_S}
    s_lshr_b32 s47, s44, 5
    s_bfe_u32 s46, s44, 0x40001          ; B
    s_and_b32 s44, s44, 1                ; es
    s_lshl_b32 s48, s46, 3
    s_add_u32 s48, s48, s44
    s_mul_i32 s48, s48, {16*1152}
    s_lshl_b32 s49, s47, 7
    s_add_u32 s48, s48, s49
    v_lshrrev_b32 v60, 3, v0
    v_and_b32 v61, 7, v0
    v_mul_u32_u24 v62, 1152, v60
    v_lshl_add_u32 v62, v61, 4, v62
    s_mov_b32 m0, s45
    """)
    srd(28, 10, 2359296)
    for p in range(8):
        a(f"""v_xor_b32 v63, {16*p}, v62
        s_add_u32 s49, s48, {((p>>1)*32 + (p&1)*8)*1152}
        buffer_load_dwordx4 v63, s[28:31], s49 offen lds
        s_add_u32 m0, m0, 1024""")
    a(f"""
    v_xor_b32 v62, v60, v61
    v_lshlrev_b32 v62, 4, v62
    v_lshl_add_u32 v62, v61, 10, v62
    v_add_u32 v62, s45, v62
    v_lshlrev_b32 v63, 15, v60
    v_lshl_add_u32 v63, v61, 4, v63
    s_lshl_b32 s60, s47, 18
    s_lshl_b32 s46, s46, 7
    s_lshl_b32 s44, s44, 11
    s_add_u32 s60, s60, s46
    s_add_u32 s60, s60, s44
    s_add_u32 s60, s60, {WS_U}
    s_mov_b32 s50, 0x05040100
    s_mov_b32 s51, 0x07060302
    s_waitcnt vmcnt(0)
    """)
    for j in range(8): a(f"ds_read_b128 {vr(64+4*j,4)}, v62 offset:{j*128}")
    a("s_waitcnt lgkmcnt(0)")
    transpose8(64, 96, 50, 51)
    for c in range(8):
        a(f"buffer_store_dwordx4 {vr(96+4*c,4)}, v63, s[36:39], s60 offen sc1\ns_add_u32 s60, s60, 4096")

def phaseA():
    mod9 = """
    s_mul_i32 s49, s48, 57
    s_lshr_b32 s49, s49, 9
    s_mul_i32 s49, s49, 9
    s_sub_u32 s48, s48, s49"""
    ROT = {"wg": "s_lshl_b32 s48, s40, 1\ns_add_u32 s48, s48, s41" + mod9, "none": "s_mov_b32 s48, 0",
           "xcd": "s_and_b32 s48, s26, 3\ns_lshl_b32 s48, s48, 1\ns_lshr_b32 s49, s26, 2\ns_mul_i32 s49, s49, 5\ns_add_u32 s48, s48, s49" + mod9}[OPT.get("rot", "xcd")]
    a(f"""
    s_cmp_ge_u32 s2, 256
    s_cbranch_scc1 k_done
    s_load_dwordx16 s[4:19], s[0:1], 0
    s_load_dwordx4 s[20:23], s[0:1], 64
    s_load_dwordx2 s[24:25], s[0:1], 96
    s_load_dwordx2 s[96:97], s[0:1], 80
    s_load_dwordx2 s[94:95], s[0:1], 16
    v_lshrrev_b32 v1, 6, v0
    v_and_b32 v0, 63, v0
    v_readfirstlane_b32 s3, v1
    s_and_b32 s26, s2, 7
    s_lshr_b32 s27, s2, 3
    s_and_b32 s40, s26, 3
    s_lshl_b32 s40, s40, 2
    s_and_b32 s44, s27, 3
    s_add_u32 s40, s40, s44
    s_lshr_b32 s41, s26, 2
    s_mul_i32 s41, s41, 7
    s_lshr_b32 s44, s27, 2
    s_add_u32 s41, s41, s44
    s_mov_b32 s93, {WS_FL}
    v_mov_b32 v23, {L_FL}
    s_cmp_lg_u32 s3, 0
    s_cbranch_scc1 a_noarm
    v_mov_b32 v14, -1
    v_mov_b32 v15, -1
    v_lshl_add_u32 v16, v0, 3, v23
    ds_write_b64 v16, v[14:15]
    s_waitcnt lgkmcnt(0)
    a_noarm:
    s_barrier
    s_cmp_lt_u32 s3, 4
    s_cbranch_scc1 a_ssm
    s_cmp_lt_u32 s3, 8
    s_cbranch_scc1 a_gemm
    s_cmp_ge_u32 s27, 28
    s_cbranch_scc1 a_task
    {ROT}
    s_bfe_u32 s56, s3, 0x10001
    s_bitcmp1_b32 s3, 0
    s_cbranch_scc1 a_ldw
    v_lshrrev_b32 v4, 3, v0
    v_lshrrev_b32 v5, 2, v4
    v_lshlrev_b32 v5, 3, v5
    v_and_b32 v6, 3, v4
    v_add_u32 v5, v5, v6
    s_lshl_b32 s44, s40, 7
    v_add_u32 v5, s44, v5
    v_mul_u32_u24 v5, 1152, v5
    v_lshrrev_b32 v6, 1, v4
    v_and_b32 v7, 7, v0
    v_xor_b32 v6, v6, v7
    v_lshl_add_u32 v2, v6, 4, v5
    v_xor_b32 v6, 4, v6
    v_lshl_add_u32 v3, v6, 4, v5
    v_add_u32 v3, {4608-1024}, v3
    s_mov_b32 s50, 128
    s_mov_b32 s51, 18432
    s_mov_b32 s52, 0
    s_waitcnt lgkmcnt(0)
    s_mov_b32 s28, s4
    s_mov_b32 s29, s5
    s_mov_b32 s30, 2359296
    s_branch a_ld
    a_ldw:
    v_lshrrev_b32 v5, 4, v0
    v_mul_u32_u24 v2, 3456, v5
    v_lshlrev_b32 v5, 2, v5
    v_and_b32 v6, 15, v0
    v_xor_b32 v5, v5, v6
    v_lshl_add_u32 v2, v5, 4, v2
    s_lshl_b32 s44, s41, 8
    v_add_u32 v2, s44, v2
    v_add_u32 v3, {13824-1024}, v2
    s_mov_b32 s50, 221184
    s_mov_b32 s51, 27648
    s_mov_b32 s52, 16384
    s_waitcnt lgkmcnt(0)
    s_mov_b32 s28, s6
    s_mov_b32 s29, s7
    s_mov_b32 s30, 1990656
    a_ld:
    s_mov_b32 s31, 0x20000
    s_mul_i32 s57, s56, s51
    s_lshl_b32 s57, s57, 2
    s_lshl_b32 s56, s56, 13
    s_add_u32 s52, s52, s56
    s_and_b32 s58, s3, 3
    s_lshl_b32 s58, s58, 2
    s_add_u32 s58, s58, {L_FL}
    v_mov_b32 v4, 0x7ffffff0
    s_mov_b32 s53, 0
    a_ld_loop:
    s_cmp_lt_u32 s53, 4
    s_cbranch_scc1 a_ld_go
    a_ld_poll:
    ds_read_b128 v[8:11], v23 offset:160
    s_waitcnt lgkmcnt(0)
    v_or_b32 v8, v8, v9
    v_or3_b32 v8, v8, v10, v11
    v_cmp_eq_u32 vcc, 0, v8
    s_cbranch_vccz a_ld_poll
    v_add_u32 v23, 16, v23
    a_ld_go:
    s_mul_i32 s47, s48, s50
    s_add_u32 s47, s47, s57
    s_and_b32 s55, s53, 3
    s_lshl_b32 s55, s55, 15
    s_add_u32 m0, s55, s52
    s_add_u32 s48, s48, 1
    """)
    for p in range(4):
        a("buffer_load_dwordx4 v2, s[28:31], s47 offen lds\nbuffer_load_dwordx4 v3, s[28:31], s47 offen offset:1024 lds")
        if p < 3: a("s_add_u32 m0, m0, 2048\ns_add_u32 s47, s47, s51")
    a(f"""
    s_cmp_eq_u32 s48, 9
    s_cselect_b32 s48, 0, s48
    s_mov_b32 m0, s58
    s_mov_b64 exec, 1
    buffer_load_dword v4, s[28:31], 0 offen lds
    s_mov_b64 exec, -1
    s_add_u32 s58, s58, 16
    s_add_u32 s53, s53, 1
    s_cmp_lt_u32 s53, 9
    s_cbranch_scc1 a_ld_loop
    """)
    kargs()
    a("s_waitcnt lgkmcnt(0)\ns_add_u32 s92, s92, 1\ns_branch a_end")
    a(f"""
    a_gemm:
    s_cmp_ge_u32 s27, 28
    s_cbranch_scc1 a_ssm
    """)
    kargs()
    a("""s_cmp_lg_u32 s3, 4
    s_cbranch_scc1 a_g0
    s_mov_b32 s44, s2
    s_mov_b32 s45, 131072""")
    utask()
    a(f"""
    a_g0:
    s_sub_u32 s45, s3, 4
    s_and_b32 s42, s45, 1                ; mw
    s_lshr_b32 s43, s45, 1               ; nw
    s_lshl_b32 s58, s45, 2
    s_add_u32 s58, s58, {L_FL + 160}
    v_mov_b32 v22, 0x7ffffff0
    v_and_b32 v5, 31, v0
    v_lshrrev_b32 v6, 5, v0
    s_lshl_b32 s44, s42, 6
    v_add_u32 v7, s44, v5
    v_lshlrev_b32 v7, 7, v7
    v_bfe_u32 v5, v5, 1, 3
    v_xor_b32 v5, v5, v6
    """)
    for j in range(4):
        a(f"v_xor_b32 v20, {2*j}, v5\nv_lshl_add_u32 v{8+j}, v20, 4, v7\nv_add_u32 v{12+j}, 0x10000, v{8+j}")
    a(f"""
    v_bfe_u32 v5, v0, 2, 2
    v_lshl_add_u32 v7, v6, 3, v5
    v_lshlrev_b32 v7, 8, v7
    v_bfe_u32 v20, v0, 4, 1
    v_lshl_add_u32 v7, v20, 5, v7
    v_and_b32 v20, 3, v0
    v_lshl_add_u32 v7, v20, 3, v7
    v_add_u32 v7, 16384, v7
    s_lshl_b32 s44, s43, 1
    v_xor_b32 v5, s44, v5
    v_lshl_add_u32 v16, v5, 6, v7
    v_xor_b32 v5, 1, v5
    v_lshl_add_u32 v17, v5, 6, v7
    v_add_u32 v18, 0x10000, v16
    v_add_u32 v19, 0x10000, v17
    s_setprio {OPT.get('gprio', 2)}
    s_waitcnt lgkmcnt(0)
    s_add_u32 s92, s92, 1
    s_lshl_b32 s46, s40, 1
    s_add_u32 s46, s46, s42
    s_lshl_b32 s47, s41, 1
    s_add_u32 s47, s47, s43
    s_lshl_b32 s59, s47, 5
    s_add_u32 s59, s59, s46
    s_mul_i32 s59, s59, {FS}
    s_cmp_ge_u32 s41, 9
    s_cbranch_scc1 a_gemm_v""")
    FB = [24, 40, 128]
    def reads(stage, j, fb):
        slot = stage & 3; hi = slot >> 1; base = (slot & 1) * 32768
        return [f"ds_read_b128 {vr(fb,4)}, v{8+4*hi+j} offset:{base}",
                f"ds_read_b64_tr_b16 {vr(fb+8,2)}, v{16+2*hi} offset:{base+j*4096}",
                f"ds_read_b64_tr_b16 {vr(fb+10,2)}, v{16+2*hi} offset:{base+j*4096+1024}",
                f"ds_read_b64_tr_b16 {vr(fb+12,2)}, v{17+2*hi} offset:{base+j*4096}",
                f"ds_read_b64_tr_b16 {vr(fb+14,2)}, v{17+2*hi} offset:{base+j*4096+1024}",
                f"ds_read_b128 {vr(fb+4,4)}, v{8+4*hi+j} offset:{base+4096}"]
    def mfmas(fb, vor, first):
        out = []
        for (ta, tb) in ((0,0),(0,1),(1,0),(1,1)):
            acc = vr(64 + 16*(2*ta+tb), 16); X = vr(fb+4*ta, 4); W = vr(fb+8+4*tb, 4)
            out.append(f"v_mfma_f32_32x32x16_bf16 {acc}, " + (f"{X}, {W}" if vor else f"{W}, {X}") + ", " + ("0" if first else acc))
        return out
    def check(tag, st, first_read):
        if not first_read:
            a(f"""v_or_b32 v56, v56, v57
            v_or3_b32 v56, v56, v58, v59
            v_cmp_eq_u32 vcc, 0, v56
            s_cbranch_vccnz {tag}_ok""")
        a(f"""{tag}_p:
        ds_read_b128 v[56:59], v23 offset:{16*st}
        s_waitcnt lgkmcnt(0)
        v_or_b32 v56, v56, v57
        v_or3_b32 v56, v56, v58, v59
        v_cmp_eq_u32 vcc, 0, v56
        s_cbranch_vccz {tag}_p
        {tag}_ok:""")
    def mainloop(vor):
        check(f"a_c{int(vor)}_0", 0, True)
        stamp("Afirst")
        a("\n".join(reads(0, 0, FB[0]) + reads(0, 1, FB[1])))
        for g in range(36):
            st, j = divmod(g, 4)
            a(f"s_waitcnt lgkmcnt({6 if g < 35 else 0})")
            m = mfmas(FB[g % 3], vor, g == 0)
            a(m[0])
            if j == 1 and st < 8: a(f"ds_read_b128 v[56:59], v23 offset:{16*(st+1)}")
            if j == 2 and st < 8: check(f"a_c{int(vor)}_{st+1}", st+1, False)
            if j == 3 and st < 5: a(f"s_add_u32 m0, s58, {16*st}\ns_mov_b64 exec, 1\nbuffer_load_dword v22, s[36:39], 0 offen lds\ns_mov_b64 exec, -1")
            if g == int(OPT.get("ug", 1)):
                a(f"s_cmp_lg_u32 s3, 4\ns_cbranch_scc1 a_uf{int(vor)}\ns_waitcnt vmcnt(0)")
                flag_set("s61", 60)
                a(f"a_uf{int(vor)}:")
            rd = reads((g+2)//4, (g+2)%4, FB[(g+2) % 3]) if g + 2 < 36 else []
            a("\n".join(rd[:3])); a(m[1]); a("\n".join(rd[3:])); a(m[2]); a(m[3])
        stamp("Aconv")
    a(f"""
    s_mul_i32 s44, s46, {2*QK_T}
    s_lshl_b32 s45, s47, 12
    s_add_u32 s44, s44, s45
    s_add_u32 s45, s44, {QK_T}
    v_lshlrev_b32 v2, 3, v0
    """)
    mainloop(False)
    for ta in range(2):
        for tb in range(2):
            acc = 64 + 16*(2*ta+tb); o = 24 + 8*(2*ta+tb)
            if ta + tb == 0: a("s_nop 8")
            for r in range(8): a(f"v_cvt_pk_bf16_f32 v{o+r}, v{acc+2*r}, v{acc+2*r+1}")
            for rq in range(4): a(f"buffer_store_dwordx2 {vr(o+2*rq,2)}, v2, s[36:39], s{44+ta} offen offset:{tb*2048+rq*512} sc1")
    a(f"""s_branch a_gemm_end
    a_gemm_v:
    s_sub_u32 s44, s47, 18
    s_lshl_b32 s44, s44, 6
    v_and_b32 v5, 31, v0
    v_add_u32 v5, s44, v5                ; V feature
    v_lshrrev_b32 v6, 5, v0
    v_mul_u32_u24 v6, 288, v6
    s_mov_b32 s45, {V_H - 18*16}
    """)
    for tb in range(2):
        a(f"""
        v_mul_u32_u24 v7, 3641, v5
        v_lshrrev_b32 v7, 16, v7             ; f/18
        v_mul_lo_u32 v7, v7, s45
        v_lshl_add_u32 v7, v5, 4, v7         ; h*V_H + d*16
        v_add_u32 v{2+tb}, v7, v6
        v_add_u32 v5, 32, v5
        """)
    a(f"s_mul_i32 s44, s46, 2304\ns_add_u32 s44, s44, {WS_V}")
    mainloop(True)
    a("s_cmp_ge_u32 s47, 27\ns_cbranch_scc1 a_end")
    for ta in range(2):
        for tb in range(2):
            acc = 64 + 16*(2*ta+tb); o = 24 + 8*(2*ta+tb)
            if ta + tb == 0: a("s_nop 8")
            for r in range(8): a(f"v_cvt_pk_bf16_f32 v{o+r}, v{acc+2*r}, v{acc+2*r+1}")
            for hh in range(2): a(f"buffer_store_dwordx4 {vr(o+4*hh,4)}, v{2+tb}, s[36:39], s44 offen offset:{ta*1152+hh*576} sc1")
    a("a_gemm_end:")
    stamp("Aend")
    a("s_waitcnt vmcnt(0)")
    stamp("Aack")
    flag_set("s59", 2)
    a("s_branch a_end\na_gemm_skip:\ns_add_u32 s92, s92, 1\ns_branch a_end")

    a("""a_task:
    s_cmp_ge_u32 s3, 10
    s_cbranch_scc1 a_idle
    s_sub_u32 s44, s3, 8
    s_lshl_b32 s45, s44, 13
    s_lshl_b32 s44, s44, 5
    s_add_u32 s44, s44, s2""")
    kargs()
    utask()
    a("s_mov_b32 s59, s61\ns_add_u32 s92, s92, 1\ns_branch a_gemm_end\na_idle:")
    kargs()
    a("s_waitcnt lgkmcnt(0)\ns_branch a_gemm_skip")

    L2E = f2u(1.4426950408889634); L2E_LO = f2u(1.4426950408889634 - struct.unpack("<f", struct.pack("<I", L2E))[0])
    LN2 = f2u(0.6931471805599453)
    z0 = list(range(9)) + [14,15,16,20,21,24,25]
    z1 = [9,9,10,11,11,11,12,13,13,17,18,19,22,23,26,27]
    def pack(z, lo):
        v = 0
        for r in range(lo, lo+8): v |= (z[r]-r) << (4*(r-lo))
        return v
    a(f"""
    a_ssm:
    s_and_b32 s41, s3, 1                 ; half
    s_bfe_u32 s45, s3, 0x10001
    s_lshl_b32 s40, s2, 1
    s_add_u32 s40, s40, s45
    s_add_u32 s46, s40, {512 - 448}
    s_mul_i32 s42, s45, {KAREA}
    s_add_u32 s47, s42, 98304
    s_add_u32 s42, s42, 131072
    s_cmp_ge_u32 s3, 4
    s_cselect_b32 s40, s46, s40          ; channel
    s_cselect_b32 s42, s47, s42
    s_lshr_b32 s43, s3, 1
    s_lshl_b32 s43, s43, 13
    s_add_u32 s47, s43, {81920 - 16384}
    s_add_u32 s43, s43, 147968
    s_cmp_ge_u32 s3, 4
    s_cselect_b32 s43, s47, s43
    s_lshl_b32 s45, s40, 7
    s_lshl_b32 s46, s41, 6
    s_add_u32 s45, s45, s46
    v_add_u32 v2, s45, v0
    v_lshlrev_b32 v2, 1, v2
    s_lshl_b32 s45, s40, 1
    v_mov_b32 v3, s45
    s_waitcnt lgkmcnt(0)
    global_load_ushort v4, v3, s[20:21]
    global_load_ushort v6, v2, s[12:13]
    global_load_ushort v7, v2, s[14:15]
    global_load_ushort v8, v2, s[16:17]
    global_load_ushort v9, v2, s[18:19]
    global_load_ushort v5, v3, s[22:23]
    """)
    kargs()
    a(f"""
    v_and_b32 v14, 31, v0
    v_and_b32 v16, 3, v14
    v_lshrrev_b32 v17, 3, v14
    v_lshl_add_u32 v16, v17, 2, v16
    v_mov_b32 v17, {pack(z0,0):#x}
    v_mov_b32 v18, {pack(z0,8):#x}
    v_mov_b32 v19, {pack(z1,0):#x}
    v_mov_b32 v20, {pack(z1,8):#x}
    v_cmp_lt_u32 vcc, 7, v16
    v_and_b32 v21, 4, v14
    v_and_b32 v22, 7, v16
    v_cndmask_b32 v17, v17, v18, vcc
    v_cndmask_b32 v19, v19, v20, vcc
    v_cmp_ne_u32 vcc, 0, v21
    v_lshlrev_b32 v22, 2, v22
    v_lshrrev_b32 v15, 5, v0
    v_cndmask_b32 v17, v17, v19, vcc
    v_bfe_u32 v17, v17, v22, 4
    v_add_u32 v17, v17, v16
    v_lshlrev_b32 v15, 2, v15
    s_mov_b32 s50, 0x3f80
    """)
    for (zr, dst) in ((14, 40), (17, 48)):
        a(f"""v_and_b32 v18, 1, v{zr}
        v_lshlrev_b32 v18, 4, v18
        v_lshlrev_b32 v18, v18, s50
        v_lshrrev_b32 v19, 1, v{zr}
        v_sub_u32 v19, v19, v15""")
        for d in range(8): a(f"v_cmp_eq_u32 s[{52+2*d}:{53+2*d}], {8*(d>>2) + (d&3)}, v19")
        for d in range(8): a(f"v_cndmask_b32 v{dst+d}, 0, v18, s[{52+2*d}:{53+2*d}]")
    a(f"""
    s_mov_b32 s50, {L2E:#x}
    s_mov_b32 s51, {L2E_LO:#x}
    s_mov_b32 s52, {LN2:#x}
    s_mov_b32 s53, {f2u(248.0):#x}
    s_mov_b32 s54, {f2u(8.0):#x}
    s_waitcnt vmcnt(0) lgkmcnt(0)
    s_add_u32 s92, s92, 1
    """)
    stamp("Afirst")
    def exp_bf16(x, t, lo):
        a(f"""v_mul_f32 v{t}, s50, v{x}
        v_fma_f32 v{lo}, v{x}, s50, -v{t}
        v_exp_f32 v{t}, v{t}
        v_fma_f32 v{lo}, v{x}, s51, v{lo}
        v_mul_f32 v{lo}, s52, v{lo}
        v_fma_f32 v{t}, v{t}, v{lo}, v{t}
        v_cvt_pk_bf16_f32 v{t}, v{t}, v{t}
        v_lshlrev_b32 v{x}, 16, v{t}""")
    for r in range(4, 10): a(f"v_lshlrev_b32 v{r}, 16, v{r}")
    exp_bf16(4, 20, 21)
    exp_bf16(6, 20, 21)
    a("""
    v_mul_f32 v6, v6, v4
    v_mul_f32 v7, v7, v4
    v_mul_f32 v8, v8, v4
    v_mul_f32 v9, v9, v4
    v_mul_f32 v6, s50, v6                ; -Re(z)*log2e
    v_mul_f32 v7, 0.15915494, v7         ; Im(z)/(2pi)
    v_add_f32 v8, v8, v8
    v_mul_f32 v9, -2.0, v9
    """)
    DL = [8, 1, 2, 4, 248]
    DS = {8: "s54", 1: "1.0", 2: "2.0", 4: "4.0", 248: "s53"}
    MR = {d: 24 + 2*i for i, d in enumerate(DL)}
    def mkE(d):
        a(f"""v_mul_f32 v21, {DS[d]}, v6
        v_mul_f32 v22, {DS[d]}, v7
        v_exp_f32 v21, -v21
        v_fract_f32 v22, v22
        v_cos_f32 v20, v22
        v_sin_f32 v22, v22
        v_mul_f32 v{MR[d]}, v21, v20
        v_mul_f32 v{MR[d]+1}, v21, v22""")
    P = 56; Dt = 88; YO = 120; ACC = 152
    R = lambda z: 34 + 2*(z % 3)
    def chain(dl, conj, mid=None):
        n = "-" if conj else ""; p = "" if conj else "-"
        for z in range(len(dl) + 1):
            cur, nxt = R(z), R(z+1)
            if z < len(dl):
                W = MR[dl[z]]
                a(f"v_mul_f32 v{nxt}, v{cur}, v{W}\nv_mul_f32 v{nxt+1}, v{cur+1}, v{W}")
            if z & 1: a(f"v_cvt_pk_bf16_f32 v{P+(z>>1)}, v{R(z-1)}, v{cur}")
            if z < len(dl): a(f"v_fma_f32 v{nxt}, {p}v{cur+1}, v{W+1}, v{nxt}\nv_fma_f32 v{nxt+1}, {n}v{cur}, v{W+1}, v{nxt+1}")
            if z & 1: a(f"v_cvt_pk_bf16_f32 v{P+16+(z>>1)}, v{R(z-1)+1}, v{cur+1}")
            if mid and z == 4: mid()
    def swaps(comp):
        for pr in range(2):
            for t in range(4): a(f"v_permlane32_swap_b32 v{P+16*comp+8*pr+t}, v{P+16*comp+8*pr+4+t}")
    def tmfma(comp, sel):
        for blk in range(2): a(f"v_mfma_f32_32x32x16_bf16 {vr(Dt+16*blk,16)}, {vr(P+16*comp+4*blk,4)}, {vr(sel,4)}, 0")
        for blk in range(2): a(f"v_mfma_f32_32x32x16_bf16 {vr(Dt+16*blk,16)}, {vr(P+16*comp+8+4*blk,4)}, {vr(sel+4,4)}, {vr(Dt+16*blk,16)}")
    def tcvt(dst):
        for i in range(16): a(f"v_cvt_pk_bf16_f32 v{dst+i}, v{Dt+2*i}, v{Dt+2*i+1}")
    mkE(8)
    a(f"v_mov_b32 v{R(0)}, 1.0\nv_mov_b32 v{R(0)+1}, 0")
    chain([8]*31, False)
    mkE(1); swaps(0); swaps(1); tmfma(0, 40); mkE(2); mkE(4); tcvt(YO); tmfma(1, 40); mkE(248)
    a(f"v_mov_b32 v{R(0)}, v8\nv_mov_b32 v{R(0)+1}, v9")
    deltas = [1]*8 + [248] + [2]*4 + [248] + [4]*2 + [248] + [4]*2 + [248, 8, 248, 8, 248, 8, 248, 8]
    chain(deltas, True, mid=lambda: tcvt(YO+16))
    a("v_cmp_eq_u32 vcc, 0, v0\nv_sub_u32 v21, 63, v0")
    swaps(0); swaps(1); tmfma(0, 48)
    a(f"""
    v_cndmask_b32 v5, 0, v5, vcc
    v_lshl_add_u32 v21, v21, 4, s42
    s_lshl_b32 s46, s3, 4
    v_add_u32 v22, s46, v23
    v_xor_b32 v20, 16, v22               ; partner's
    v_mov_b32 v19, 0
    s_lshr_b32 s46, s40, 6
    s_mul_i32 s46, s46, {32*FS}
    s_add_u32 s46, s46, {FL_S}
    v_and_b32 v10, 31, v0
    v_mul_u32_u24 v10, {FS}, v10
    v_add_u32 v10, s46, v10
    """)
    tcvt(P); tmfma(1, 48)
    for i in range(4): a(f"v_mfma_f32_32x32x16_bf16 {vr(ACC,16)}, {vr(P+4*i,4)}, {vr(YO+4*i,4)}, " + ("0" if i == 0 else vr(ACC,16)))
    a("s_nop 7")
    tcvt(P+16)
    a("s_nop 1")
    for i in range(4, 8): a(f"v_mfma_f32_32x32x16_bf16 {vr(ACC,16)}, {vr(P+4*i,4)}, {vr(YO+4*i,4)}, {vr(ACC,16)}")
    stamp("Akgen")
    CA = 24; CU = 68; CF = 132
    for i in range(44): a(f"v_mov_b32 v{CA+i}, 0")
    a(f"""
    s_lshl_b32 s44, s40, 12
    s_add_u32 s44, s44, {WS_X}
    v_lshlrev_b32 v12, 4, v0
    s_cmp_eq_u32 s41, 0
    s_cbranch_scc1 a_s_even
    """)
    for i in range(4): a(f"buffer_store_dwordx4 {vr(ACC+4*i,4)}, v12, s[36:39], s44 offen offset:{1024*i} {OPT.get('stx','sc1')}")
    a(f"""s_lshl_b32 s46, s3, 4
    s_add_u32 m0, s46, {L_FL + 256}
    v_mov_b32 v13, 0x7ffffff0
    s_mov_b64 exec, 1
    s_waitcnt vmcnt(0)
    buffer_load_dword v13, s[36:39], 0 offen lds
    s_mov_b64 exec, -1
    s_branch a_s_p
    a_s_even:""")
    lds_wait("a_s_e1", 20, 256, 13)
    for i in range(4): a(f"buffer_load_dwordx4 {vr(68+4*i,4)}, v12, s[36:39], s44 offen offset:{1024*i} sc1")
    a("""v_and_b32 v13, 1, v0
    v_cmp_eq_u32 vcc, 1, v13             ; b odd
    s_waitcnt vmcnt(0)""")
    for i in range(16): a(f"v_add_f32 v{ACC+i}, v{ACC+i}, v{68+i}")
    d = lambda r: f"v{ACC+r}" if r < 16 else f"v{r-16}"
    a(f"v_add_f32 {d(0)}, {d(0)}, v5")
    a(f"v_cndmask_b32 v16, {d(12)}, {d(13)}, vcc\nv_cndmask_b32 v17, {d(14)}, {d(15)}, vcc")
    units = [
      (0, 0, [(7,6),(5,4),(3,2),(1,0)]), (0, 1, [(8,7),(6,5),(4,3),(2,1)]),
      (1, 0, [(11,11),(10,10),(10,9),(9,9)]), (1, 1, [(11,11),(11,10),(10,10),(9,9)]),
      (2, 0, [(13,13),(13,32),(12,12),(12,12)]), (2, 1, [(13,13),(13,13),(32,12),(12,12)]),
      (3, 0, [(15,15),(15,33),(14,14),(14,14)]), (3, 1, [(15,15),(15,15),(33,14),(14,14)])]
    for ui, (G, cp, prs) in enumerate(units):
        for t, (lo, hi) in enumerate(prs): a(f"v_cvt_pk_bf16_f32 v{100+4*ui+t}, {d(lo)}, {d(hi)}")
    a(f"""
    v_cvt_pk_bf16_f32 v132, {d(0)}, v19
    v_cmp_eq_u32 vcc, 0, v0
    v_lshl_add_u32 v133, v0, 2, s42
    """)
    for G in range(4): a(f"v_add_u32 v{134+G}, {(3-G)*1024 + KC}, v21")
    a(f"""
    v_cndmask_b32 v132, 0, v132, vcc
    a_s_p:
    s_cmp_ge_u32 s27, 28
    s_cbranch_scc1 a_s_g1
    """)
    def wait_stage(tag, st):
        a(f"""{tag}:
        ds_read_b128 v[16:19], v23 offset:{16*st}
        s_waitcnt lgkmcnt(0)
        v_or_b32 v16, v16, v17
        v_or3_b32 v16, v16, v18, v19
        v_cmp_eq_u32 vcc, 0, v16
        s_cbranch_vccnz {tag}_x
        s_sleep 1
        s_branch {tag}
        {tag}_x:""")
    wait_stage("a_s_w1", int(OPT.get("ust", 6)))
    a("a_s_g1:")
    flag_poll("a_s_pu", 1, 10)
    a(f"""
    s_lshl_b32 s44, s40, 12
    s_lshl_b32 s45, s41, 11
    s_add_u32 s44, s44, s45
    s_add_u32 s44, s44, {WS_U}
    s_add_u32 m0, s43, s45
    s_nop 0
    buffer_load_dwordx4 v12, s[36:39], s44 offen sc1 lds
    buffer_load_dwordx4 v12, s[36:39], s44 offen offset:1024 sc1 lds
    s_cmp_ge_u32 s27, 28
    s_cbranch_scc1 a_s_g2
    """)
    wait_stage("a_s_w2", 8)
    a("""a_s_g2:
    v_mov_b32 v19, 0
    s_cmp_lg_u32 s41, 0
    s_cbranch_scc1 a_s_u""")
    for ui, (G, cp, prs) in enumerate(units):
        o = 100 + 4*ui
        if cp == 0: a(f"ds_write_b128 v21, {vr(o,4)} offset:{(3-G)*1024}")
        else: a(f"ds_write2_b32 v{134+G}, v{o}, v{o+1} offset0:0 offset1:1\nds_write2_b32 v{134+G}, v{o+2}, v{o+3} offset0:2 offset1:3")
    a(f"""
    s_mov_b64 exec, 0x7fff
    ds_write_b32 v133, v19 offset:4096   ; zeros behind both copies; the odd copy ends with K[0]
    s_mov_b64 exec, 0xffff
    ds_write_b32 v133, v132 offset:{4096 + KC}
    s_mov_b64 exec, -1
    a_s_u:
    s_waitcnt vmcnt(0)
    ds_write_b32 v22, v19 offset:268
    """)
    for i in range(32): a(f"v_mov_b32 v{CU+i}, 0")
    a(f"""
    v_and_b32 v12, 31, v0
    v_lshrrev_b32 v13, 5, v0             ; h
    v_lshlrev_b32 v16, 5, v12
    v_lshl_add_u32 v16, v13, 4, v16
    s_lshl_b32 s45, s41, 7
    s_sub_u32 s44, s43, s45
    s_sub_u32 s44, s44, 96
    v_add_u32 v16, s44, v16
    s_lshl_b32 s45, s41, 2
    v_lshlrev_b32 v17, 3, v13
    v_sub_u32 v17, v17, v12
    v_lshlrev_b32 v17, 1, v17            ; 2*(8h - b)
    v_and_b32 v18, 1, v12
    v_xor_b32 v18, 1, v18
    v_mul_u32_u24 v18, {KC + 2}, v18
    s_lshl_b32 s46, s41, 8
    s_sub_u32 s46, s42, s46
    s_add_u32 s46, s46, {62 + 120*32}
    v_add3_u32 v17, v17, v18, s46
    v_subrev_u32 v18, 2048, v17
    """)
    lds_wait("a_s_o1", 20, 268, 12)
    for q in range(4):
        a(f"s_add_u32 s46, s45, {q}\ns_lshl_b32 exec_lo, -1, s46\ns_mov_b32 exec_hi, exec_lo")
        for es in range(2): a(f"ds_read_b128 {vr(CU+8*q+4*es,4)}, v16 offset:{es*2048 + (3-q)*32}")
        a("s_mov_b64 exec, -1")
        for es in range(2): a(f"ds_read_b128 {vr(CU+32+8*q+4*es,4)}, v16 offset:{es*2048 + 1024 + (3-q)*32}")
        if q == 2: a("s_waitcnt lgkmcnt(4)")
    a("s_waitcnt lgkmcnt(2)")
    stamp("Abuilt")
    steps = [(k, q, es) for k in range(4) for q in range(4) for es in range(2)]
    def frd(i):
        k, q, es = steps[i]; b = CF + 8*(i & 3); o = (6 - 2*q + es) * 8
        if q == 0 and es == 0 and k: a("v_subrev_u32 v17, 512, v17\nv_subrev_u32 v18, 512, v18")
        a(f"""ds_read2_b32 {vr(b,2)}, v17 offset0:{o} offset1:{o+1}
        ds_read2_b32 {vr(b+2,2)}, v17 offset0:{o+2} offset1:{o+3}
        ds_read2_b32 {vr(b+4,2)}, v18 offset0:{o} offset1:{o+1}
        ds_read2_b32 {vr(b+6,2)}, v18 offset0:{o+2} offset1:{o+3}""")
    for i in range(3): frd(i)
    for i, (k, q, es) in enumerate(steps):
        b = CF + 8*(i & 3); U0 = vr(CU+8*q+4*es, 4); U1 = vr(CU+32+8*q+4*es, 4)
        lo = vr(CA+4*k, 16); hi = vr(CA+16+4*k, 16)
        w = f"s_waitcnt lgkmcnt({4*min(2, 31-i)})"
        a(w)
        if q == 0 and es == 0 and k: a("s_nop 9")
        a(f"v_mfma_f32_32x32x16_bf16 {lo}, {U0}, {vr(b,4)}, {lo}")
        a(f"v_mfma_f32_32x32x16_bf16 {hi}, {U1}, {vr(b,4)}, {hi}")
        if i + 3 < 32: frd(i+3)
        a(f"v_mfma_f32_32x32x16_bf16 {hi}, {U0}, {vr(b+4,4)}, {hi}")
    stamp("Aconv")
    a(f"""
    ds_write_b32 v22, v19 offset:260
    s_lshl_b32 s46, s41, 12
    s_add_u32 s46, s46, s42
    v_lshl_add_u32 v16, v0, 4, s46
    s_lshl_b32 s46, s41, 13
    s_sub_u32 s46, 4096, s46
    v_add_u32 v17, s46, v16              ; partner's
    v_lshlrev_b32 v18, 4, v0
    s_lshl_b32 s44, s40, 12
    s_lshl_b32 s45, s41, 11
    s_add_u32 s44, s44, s45
    s_add_u32 s44, s44, {WS_Y}
    s_lshl_b32 s59, s40, 1
    s_add_u32 s59, s59, s41
    s_mul_i32 s59, s59, {FS}
    s_add_u32 s59, s59, {FL_Y}
    """)
    lds_wait("a_s_y1", 20, 260, 12)
    a("s_cmp_eq_u32 s41, 0\ns_cbranch_scc1 a_s_y0")
    for i in range(4): a(f"ds_write_b128 v16, {vr(CA+4*i,4)} offset:{1024*i}")
    a("ds_write_b32 v22, v19 offset:264\ns_waitcnt lgkmcnt(0)")
    for i in range(16): a(f"v_mov_b32 v{CA+i}, v{CA+16+i}")
    a("s_branch a_s_y2\na_s_y0:")
    for i in range(4): a(f"ds_write_b128 v16, {vr(CA+16+4*i,4)} offset:{1024*i}")
    a("ds_write_b32 v22, v19 offset:264\na_s_y2:")
    lds_wait("a_s_y3", 20, 264, 12)
    for i in range(4): a(f"ds_read_b128 {vr(CU+4*i,4)}, v17 offset:{1024*i}")
    a("s_waitcnt lgkmcnt(0)")
    for i in range(16): a(f"v_add_f32 v{CA+i}, v{CA+i}, v{CU+i}")
    for i in range(8): a(f"v_cvt_pk_bf16_f32 v{CF+i}, v{CA+2*i}, v{CA+2*i+1}")
    for g in range(2): a(f"buffer_store_dwordx4 {vr(CF+4*g,4)}, v18, s[36:39], s44 offen offset:{1024*g} sc1")
    stamp("Aend")
    a("s_mov_b32 s62, s59\ns_branch a_end1")
    a(f"""a_end:
    s_mov_b32 s62, 0
    a_end1:
    v_mov_b32 v116, v0
    s_cmp_lg_u32 s3, 4
    s_cbranch_scc1 a_end2
    v_mov_b32 v4, {L_FL}
    v_mov_b32 v5, 0
    ds_write_b32 v4, v5 offset:240
    a_end2:""")

S = [0, 16]; O = 32; NEG = 48; P = 64; KF = [72, 76]; TF = [80, 84]; VF = [88, 96]; Q = 104; QL = 108; QH = 110
vK, vT, vV = 112, 113, 114
def rdK(buf, t): a(f"ds_read2st64_b64 {vr(KF[buf],4)}, v{vK} offset0:{2*t} offset1:{2*t+1}")
def rdT(buf, q): a(f"ds_read2st64_b64 {vr(TF[buf],4)}, v{vT} offset0:{2*q} offset1:{2*q+1}")
def rdV(buf, t):
    a(f"""s_mov_b64 exec, s[18:19]
    ds_read_b128 {vr(VF[buf],4)}, v{vV} offset:{t*1152}
    ds_read_b128 {vr(VF[buf]+4,4)}, v{vV} offset:{t*1152+576}
    s_mov_b64 exec, -1""")
def qk_tail(t, tb):
    tt = t & 3
    a(f"v_mfma_f32_32x32x8_bf16 {vr(S[t&1],16)}, {vr(TF[tb]+2*(tt>>1),2)}, {vr(QH if tt&1 else QL,2)}, {vr(S[t&1],16)}")
def pv(t, half): a(f"v_mfma_f32_32x32x16_bf16 {vr(O,16)}, {vr(VF[t&1]+4*half,4)}, {vr(P+4*half,4)}, {vr(O,16)}")
def ex(t, r0, r1):
    for r in range(r0, r1): a(f"v_exp_f32 v{S[t&1]+r}, v{S[t&1]+r}")
def cv(t, c0, c1):
    for c in range(c0, c1): a(f"v_cvt_pk_bf16_f32 v{P+c}, v{S[t&1]+2*c}, v{S[t&1]+2*c+1}")
def att_run(fast):
    tag = "b_f" if fast else "b_s"
    def qk_main(t): a(f"v_mfma_f32_32x32x16_bf16 {vr(S[t&1],16)}, {vr(KF[t&1],4)}, {vr(Q,4)}, " + ("0" if fast else vr(NEG,16)))
    rdK(0, 0); rdT(0, 0); rdK(1, 1); rdV(0, 0)
    if not fast:
        for i in range(16): a(f"v_mov_b32 v{O+i}, 0")
        for i in range(4): a(f"v_mov_b32 v{P+4+i}, 0")
    a("s_mov_b32 s26, 0\ns_waitcnt lgkmcnt(3)")
    qk_main(0); qk_tail(0, 0)
    a(f"s_nop 7\ns_nop 3\n.p2align 6\n{tag}_loop:")
    for t in range(8):
        if fast and t == 2:
            a(f"s_cmp_lg_u32 s26, 1\ns_cbranch_scc1 {tag}_np2\ns_setprio 2\n{tag}_np2:")
        if fast and t == 4:
            a(f"s_cmp_lg_u32 s26, 1\ns_cbranch_scc1 {tag}_nobar\ns_barrier\n{tag}_nobar:")
            a(f"s_cmp_lg_u32 s26, 6\ns_cbranch_scc1 {tag}_np1\ns_setprio 1\n{tag}_np1:")
        if fast and t == 6:
            a(f"s_cmp_lg_u32 s26, 7\ns_cbranch_scc1 {tag}_np0\ns_setprio 0\n{tag}_np0:")
        a("s_waitcnt lgkmcnt(0)")
        qk_main(t+1)
        rdK(t&1, t+2)
        if (t & 3) == 1: rdT(((t>>2)+1)&1, (t>>2)+1)
        ex(t, 0, 4)
        pv(t-1, 1)
        rdV((t+1)&1, t+1)
        ex(t, 4, 8); cv(t, 0, 4)
        qk_tail(t+1, ((t+1)>>2)&1)
        ex(t, 8, 12)
        pv(t, 0)
        if t == 7:
            a(f"""v_add_u32 v{vK}, 8192, v{vK}
            v_add_u32 v{vT}, 2048, v{vT}
            v_add_u32 v{vV}, 9216, v{vV}
            s_add_u32 s26, s26, 1
            s_cmp_lt_u32 s26, 8""")
        ex(t, 12, 16); cv(t, 4, 8)
    a(f"s_cbranch_scc1 {tag}_loop")
    if fast: stamp("Bloop")
    a("s_nop 1")
    pv(7, 1)

def phaseB():
    a(f"""
    s_cmp_ge_u32 s3, 8
    s_cbranch_scc1 b_aux
    s_and_b32 s4, s2, 31                 ; head
    s_lshr_b32 s5, s2, 5
    s_lshl_b32 s5, s5, 3
    s_add_u32 s5, s5, s3
    s_lshr_b32 s6, s4, 1
    s_mul_i32 s6, s6, 2304
    s_and_b32 s7, s4, 1
    s_mul_i32 s8, s7, 1280
    s_add_u32 s8, s8, s6
    s_add_u32 s9, s6, 1024
    s_mul_i32 s10, s5, {QK_T}
    s_add_u32 s11, s10, s8
    s_add_u32 s12, s10, s9
    v_lshlrev_b32 v{vK}, 3, v116
    v_and_b32 v117, 31, v116
    v_lshlrev_b32 v118, 3, v117
    v_lshlrev_b32 v119, 4, v116
    v_lshrrev_b32 v120, 4, v116
    s_mov_b32 s13, {QK_T}
    v_mul_lo_u32 v120, v120, s13
    v_and_b32 v121, 15, v116
    v_lshl_add_u32 v120, v121, 4, v120
    s_mul_i32 s14, s3, {QK_T}
    s_add_u32 s14, s14, s8
    s_add_u32 s14, s14, {144*256}
    s_mul_i32 s15, s4, {V_H}
    s_lshl_b32 s16, s3, 10
    s_add_u32 s15, s15, s16
    s_add_u32 s15, s15, {WS_V}
    s_mul_i32 s17, s3, {4*QK_T}
    s_add_u32 s17, s17, s9
    s_add_u32 s17, s17, {144*256}
    """)
    for i in range(16): a(f"v_mov_b32 v{O+i}, 0")
    for i in range(4): a(f"v_mov_b32 v{P+4+i}, 0")
    a(f"""v_and_b32 v121, 27, v116
    v_cmp_eq_u32 vcc, 18, v121
    v_mov_b32 v121, 0x3f803f80
    s_nop 0
    v_cndmask_b32 v{VF[0]}, 0, v121, vcc""")
    for i in range(1, 16): a(f"v_mov_b32 v{VF[0]+i}, v{VF[0]}")
    a(f"""
    v_add_u32 v{vT}, {L_KT}, v{vK}
    v_lshrrev_b32 v121, 5, v116
    v_mul_u32_u24 v121, 288, v121
    v_lshl_add_u32 v{vV}, v117, 4, v121
    v_add_u32 v{vV}, {L_V}, v{vV}
    s_mov_b32 s18, 0x3ffff
    s_mov_b32 s19, 0x3ffff
    s_mov_b32 s21, {f2u(18**-0.5 * 1.4426950408889634):#x}
    v_cmp_lt_u32 s[22:23], 31, v116
    s_setprio 3
    s_barrier
    """)
    stamp("Bflag")
    a(f"""
    buffer_load_dwordx2 v[{Q}:{Q+1}], v{vK}, s[36:39], s11 offen sc1
    buffer_load_dwordx2 v[{Q+2}:{Q+3}], v{vK}, s[36:39], s11 offen offset:512 sc1
    buffer_load_dwordx2 v[{QL}:{QL+1}], v118, s[36:39], s12 offen sc1
    """)
    def dK(j): a(f"s_add_u32 m0, s16, {j*8192}\n" + (f"s_add_u32 s14, s14, {8*QK_T}\n" if j else "s_nop 0\n") + "buffer_load_dwordx4 v119, s[36:39], s14 offen sc1 lds")
    def dV(j): a(f"s_add_u32 m0, s16, {L_V + j*8192}\n" + ("s_add_u32 s15, s15, 8192\n" if j else "s_nop 0\n") + "buffer_load_dwordx4 v119, s[36:39], s15 offen sc1 lds")
    def dT(j): a(f"s_add_u32 m0, s16, {L_KT + j*8192}\ns_nop 0\nbuffer_load_dwordx4 v120, s[36:39], s17 offen sc1 lds")
    dK(0); dV(0); dT(0); dV(1); dK(1)
    a("s_waitcnt vmcnt(5)")
    for r in list(range(Q, Q+4)) + [QL, QL+1]:
        a(f"""v_lshlrev_b32 v121, 16, v{r}
        v_and_b32 v{r}, 0xffff0000, v{r}
        v_mul_f32 v121, s21, v121
        v_mul_f32 v{r}, s21, v{r}
        v_cvt_pk_bf16_f32 v{r}, v121, v{r}""")
    a(f"""
    s_cmp_eq_u32 s7, 0
    s_cselect_b64 vcc, -1, 0
    v_cndmask_b32 v{QL}, 0, v{QL}, vcc
    v_cndmask_b32 v{QL+1}, v{QL+1}, 0, vcc
    v_cndmask_b32 v{QH}, 0, v{QL}, s[22:23]
    v_cndmask_b32 v{QH+1}, 0, v{QL+1}, s[22:23]
    v_cndmask_b32 v{QL}, v{QL}, 0, s[22:23]
    v_cndmask_b32 v{QL+1}, v{QL+1}, 0, s[22:23]
    s_waitcnt vmcnt(0)
    s_barrier
    s_cmp_eq_u32 s62, 0
    s_cbranch_scc1 b_nyf
    """)
    flag_set("s62", 122)
    a("b_nyf:")
    stamp("Bgo")
    att_run(True)
    a(f"""
    s_mul_i32 s10, s5, {O_T}
    s_add_u32 s10, s10, {WS_O}
    s_lshl_b32 s11, s4, 10
    s_add_u32 s11, s11, s10
    s_lshl_b32 s12, s4, 7
    s_add_u32 s12, s12, s10
    s_add_u32 s12, s12, 32768
    s_lshl_b32 s59, s5, 5
    s_add_u32 s59, s59, s4
    s_mul_i32 s59, s59, {FS}
    s_add_u32 s59, s59, {FL_B}
    s_mov_b32 s27, {f2u(2.0**100):#x}
    v_lshlrev_b32 v127, 2, v116
    s_nop 1
    v_max3_f32 v121, abs(v{O}), abs(v{O+1}), abs(v{O+2})
    v_max3_f32 v121, abs(v{O+3}), abs(v{O+4}), v121
    v_max3_f32 v121, abs(v{O+5}), abs(v{O+6}), v121
    v_max3_f32 v121, abs(v{O+7}), abs(v{O+8}), v121
    v_add_f32 v122, v{O}, v{O+1}
    v_add_f32 v123, v{O+2}, v{O+3}
    v_add_f32 v124, v{O+4}, v{O+5}
    v_add_f32 v125, v{O+6}, v{O+7}
    v_add_f32 v126, v{O+8}, v{O+9}
    v_add_f32 v122, v122, v123
    v_add_f32 v124, v124, v125
    v_add_f32 v122, v122, v126
    v_add_f32 v122, v122, v124
    v_max3_f32 v121, abs(v{O+9}), v{O+10}, v121
    v_cmp_ngt_f32 vcc, s27, v121
    v_cmp_nle_f32 s[28:29], 1.0, v{O+10}
    v_cmp_u_f32 s[30:31], v122, v122
    s_or_b64 vcc, vcc, s[28:29]
    s_or_b64 vcc, vcc, s[30:31]
    s_cbranch_vccnz b_slow
    b_fin:
    v_rcp_f32 v121, v{O+10}
    s_nop 0
    """)
    for r in range(10): a(f"v_mul_f32 v{O+r}, v{O+r}, v121")
    for c in range(5): a(f"v_cvt_pk_bf16_f32 v{P+c}, v{O+2*c}, v{O+2*c+1}")
    a(f"""
    buffer_store_dwordx4 {vr(P,4)}, v119, s[36:39], s11 offen sc1
    s_mov_b32 exec_hi, 0
    buffer_store_dword v{P+4}, v127, s[36:39], s12 offen sc1
    s_mov_b32 exec_hi, -1
    v_mov_b32 v0, v116
    s_waitcnt lgkmcnt(0)
    s_barrier
    s_waitcnt vmcnt(0)
    """)
    stamp("Back")
    flag_set("s59", 2)
    a("s_branch c_start")
    a(f"""
    b_aux:
    s_and_b32 s4, s2, 31
    s_lshr_b32 s6, s4, 1
    s_and_b32 s7, s4, 1
    s_cmp_lg_u32 s3, 8
    s_cbranch_scc1 b_nopoll
    s_mul_i32 s8, s6, 36
    s_lshl_b32 s9, s7, 4
    s_add_u32 s8, s8, s9
    s_mul_i32 s9, s4, 18
    v_lshrrev_b32 v8, 5, v116
    v_mul_u32_u24 v9, 19, v8
    v_add_u32 v9, s8, v9
    v_add_u32 v10, 576, v9
    v_lshrrev_b32 v10, 6, v10
    v_and_b32 v11, 31, v116
    v_lshl_add_u32 v10, v10, 5, v11
    v_mul_u32_u24 v120, {FS}, v10
    v_mul_u32_u24 v10, 17, v8
    v_add_u32 v10, s9, v10
    v_add_u32 v10, 1152, v10
    v_lshrrev_b32 v10, 6, v10
    v_lshl_add_u32 v10, v10, 5, v11
    v_mul_u32_u24 v121, {FS}, v10
    v_lshrrev_b32 v10, 6, v9
    s_lshr_b32 s9, s2, 5
    s_lshl_b32 s9, s9, 2
    v_and_b32 v11, 3, v116
    v_add_u32 v11, s9, v11
    v_lshl_add_u32 v10, v10, 5, v11
    v_mul_u32_u24 v122, {FS}, v10
    v_mov_b32 v8, {L_FL}
    b_pw:
    s_sleep 1
    ds_read_b32 v9, v8 offset:240
    s_waitcnt lgkmcnt(0)
    v_cmp_eq_u32 vcc, 0, v9
    s_cbranch_vccz b_pw
    """)
    flag_poll("b_pa", 3, 120)
    a(f"""
    b_nopoll:
    s_barrier
    s_mul_i32 s6, s6, 2304
    s_mul_i32 s8, s7, 1280
    s_add_u32 s8, s8, s6
    s_add_u32 s8, s8, {144*256 + 16*QK_T}
    s_add_u32 s9, s6, {1024 + 144*256 + 32*QK_T}
    s_mul_i32 s10, s4, {V_H}
    s_add_u32 s10, s10, {WS_V + 16384}
    v_lshlrev_b32 v119, 4, v116
    v_lshrrev_b32 v120, 4, v116
    s_mov_b32 s13, {QK_T}
    v_mul_lo_u32 v120, v120, s13
    v_and_b32 v121, 15, v116
    v_lshl_add_u32 v120, v121, 4, v120
    s_mov_b32 s11, {QK_T}
    s_mov_b32 s12, 48
    s_mov_b32 m0, 16384
    s_sub_u32 s14, s3, 9
    s_mul_i32 s14, s14, {14*1024}
    s_add_u32 s10, s10, s14
    s_add_u32 s14, s14, {L_V + 16384}
    s_bitcmp1_b32 s3, 0
    s_cselect_b32 s8, s10, s8
    s_cselect_b32 s11, 1024, s11
    s_cselect_b32 s12, 28, s12
    s_cselect_b32 m0, s14, m0
    s_cmp_eq_u32 s3, 10
    s_cselect_b32 s8, s9, s8
    s_cselect_b32 s11, {4*QK_T}, s11
    s_cselect_b32 s12, 8, s12
    s_cselect_b32 m0, {L_KT + 8192}, m0
    s_cselect_b64 vcc, -1, 0
    v_cndmask_b32 v119, v119, v120, vcc
    s_setprio 3
    s_barrier
    b_ld:
    buffer_load_dwordx4 v119, s[36:39], s8 offen sc1 lds
    s_add_u32 m0, m0, 1024
    s_add_u32 s8, s8, s11
    s_sub_u32 s12, s12, 1
    s_cmp_lg_u32 s12, 0
    s_cbranch_scc1 b_ld
    s_waitcnt vmcnt(0)
    s_barrier
    """)
    srd(28, 94, 663552)
    srd(32, 96, 4718592)
    a(f"""
    s_lshr_b32 s12, s2, 3
    s_lshl_b32 s12, s12, 2
    s_add_u32 s12, s12, s3
    s_sub_u32 s12, s12, 8
    s_lshl_b32 s12, s12, 13
    v_lshlrev_b32 v121, 7, v116
    buffer_load_dword v115, v121, s[28:31], s12 offen
    s_cmp_lg_u32 s3, 9
    s_cbranch_scc1 b_noy
    ; ---- SSM output: 64 channels x 64 positions per task, through the spare LDS
    s_mov_b32 s4, s2
    v_lshrrev_b32 v10, 3, v116
    v_and_b32 v9, 7, v116
    v_lshlrev_b32 v11, 12, v10
    v_lshl_add_u32 v11, v9, 4, v11
    v_xor_b32 v12, v10, v9
    v_lshlrev_b32 v12, 4, v12
    v_lshl_add_u32 v12, v9, 10, v12
    v_add_u32 v12, {L_BOUNCE}, v12
    s_mov_b32 s50, 0x05040100
    s_mov_b32 s51, 0x07060302
    """)
    for p in range(8): a(f"v_xor_b32 v{24+p}, {16*p}, v11")
    a(f"""
    b_y:
    s_lshr_b32 s5, s4, 5
    s_and_b32 s6, s4, 31                 ; sub
    s_lshl_b32 s7, s5, 7
    s_lshr_b32 s8, s6, 4
    s_add_u32 s7, s7, s8
    v_lshl_add_u32 v120, v116, 1, s7
    v_mul_u32_u24 v120, {FS}, v120
    v_add_u32 v120, {FL_Y}, v120
    """)
    flag_poll("b_py", 1, 120)
    a(f"""
    s_lshl_b32 s7, s5, 18
    s_lshl_b32 s8, s6, 7
    s_add_u32 s7, s7, s8
    s_add_u32 s7, s7, {WS_Y}
    s_mov_b32 m0, {L_BOUNCE}
    """)
    for p in range(8):
        a(f"s_nop 0\nbuffer_load_dwordx4 v{24+p}, s[36:39], s7 offen sc1 lds\ns_add_u32 m0, m0, 1024\ns_add_u32 s7, s7, 32768")
    a(f"""
    s_and_b32 s8, s6, 3
    s_lshl_b32 s8, s8, 3
    s_bfe_u32 s9, s6, 0x10002
    s_lshl_b32 s9, s9, 7
    s_add_u32 s8, s8, s9
    s_lshr_b32 s9, s6, 3
    s_lshl_b32 s9, s9, 9
    s_add_u32 s8, s8, s9
    v_add_u32 v17, s8, v10
    v_mul_u32_u24 v17, 2304, v17
    v_lshl_add_u32 v17, v9, 4, v17
    s_lshl_b32 s8, s5, 7
    s_add_u32 s8, s8, 1152
    s_waitcnt vmcnt(0)
    """)
    for j in range(8): a(f"ds_read_b128 {vr(32+4*j,4)}, v12 offset:{j*128}")
    a("s_waitcnt lgkmcnt(0)")
    transpose8(32, 64, 50, 51)
    for c in range(8):
        a(f"s_add_u32 s9, s8, {((c&3)*32 + (c>>2)*256)*2304}\nbuffer_store_dwordx4 {vr(64+4*c,4)}, v17, s[32:35], s9 offen {OPT.get('sty','sc1')}")
    a(f"""
    s_add_u32 s4, s4, 256
    s_cmp_lt_u32 s4, 288
    s_cbranch_scc1 b_y
    b_noy:
    s_setprio 0
    v_mov_b32 v0, v116
    s_lshr_b32 s5, s2, 5                 ; tn
    s_mul_i32 s17, s5, 192
    """)
    for t in range(3):
        a(f"""v_add_u32 v5, {64*t}, v0
        v_mul_u32_u24 v6, 5462, v5
        v_lshrrev_b32 v6, 16, v6             ; row
        v_mul_u32_u24 v7, 12, v6
        v_sub_u32 v7, v5, v7
        v_lshl_add_u32 v7, v7, 4, s17
        v_mul_u32_u24 v8, 1152, v6
        v_add_u32 v{12+t}, v8, v7
        v_and_b32 v9, 4, v6
        v_lshrrev_b32 v10, 3, v6
        v_lshl_add_u32 v9, v10, 1, v9
        v_bfe_u32 v10, v6, 1, 1
        v_add_u32 v9, v9, v10
        v_mul_u32_u24 v9, 18, v9
        v_and_b32 v10, 1, v6
        v_add3_u32 v9, v9, v10, 16
        v_mul_u32_u24 v9, 1152, v9
        v_add_u32 v{16+t}, v9, v7""")
    a(f"""
    s_sub_u32 s8, s3, 8
    s_mul_i32 s10, s8, {9*20736}
    s_mul_i32 m0, s8, {9*3072}
    s_mov_b32 s12, 20736
    s_mov_b32 s13, 0
    s_barrier
    s_cmp_ge_u32 s2, 192
    s_cbranch_scc1 c_idle
    b_w:
    s_cmp_lg_u32 s13, 5
    s_cbranch_scc1 b_w1
    s_cmp_lg_u32 s8, 3
    s_cbranch_scc1 b_w1
    v_mov_b32 v12, v16
    v_mov_b32 v13, v17
    v_mov_b32 v14, v18
    s_mov_b32 s10, 0
    s_mov_b32 s12, {8*20736}
    b_w1:
    buffer_load_dwordx4 v12, s[28:31], s10 offen lds
    s_add_u32 m0, m0, 1024
    s_add_u32 s13, s13, 1
    buffer_load_dwordx4 v13, s[28:31], s10 offen lds
    s_add_u32 m0, m0, 1024
    s_cmp_lt_u32 s13, 9
    buffer_load_dwordx4 v14, s[28:31], s10 offen lds
    s_cbranch_scc0 c_start
    s_add_u32 m0, m0, 1024
    s_add_u32 s10, s10, s12
    s_branch b_w
    """)

def phaseC():
    a(f"""
    c_start:
    s_cmp_ge_u32 s2, 192
    s_cbranch_scc1 k_done2
    """)
    srd(32, 96, 4718592)
    a(f"""
    s_and_b32 s4, s2, 7
    s_bfe_u32 s6, s2, 0x20003
    s_lshl_b32 s7, s4, 2
    s_add_u32 s7, s7, s6                 ; tm
    s_lshr_b32 s5, s2, 5                 ; tn
    s_mul_i32 s8, s3, 43
    s_lshr_b32 s8, s8, 7                 ; w/3
    s_mul_i32 s9, s8, 3
    s_sub_u32 s9, s3, s9                 ; tb = w%3
    s_lshr_b32 s13, s8, 1                ; kh
    s_and_b32 s14, s8, 1                 ; ta
    v_lshrrev_b32 v5, 5, v0
    v_bfe_u32 v6, v0, 2, 2
    v_lshl_add_u32 v6, v5, 2, v6
    v_mul_u32_u24 v4, 192, v6
    v_bfe_u32 v6, v0, 4, 1
    v_lshl_add_u32 v4, v6, 5, v4
    v_and_b32 v6, 3, v0
    v_lshl_add_u32 v4, v6, 3, v4
    s_lshl_b32 s17, s9, 6
    s_mul_i32 s18, s13, {18*3072}
    s_add_u32 s17, s17, s18
    v_add_u32 v4, s17, v4
    v_lshlrev_b32 v2, 4, v0
    s_mul_i32 s17, s8, {18*1024}
    v_add_u32 v3, s17, v2
    v_and_b32 v11, 31, v0
    v_lshlrev_b32 v11, 2, v11
    v_lshl_add_u32 v11, v5, 9, v11
    v_add_u32 v11, s17, v11
    v_add_u32 v11, {14*1024}, v11
    s_lshl_b32 s15, s7, 1
    s_add_u32 s15, s15, s14
    s_mul_i32 s16, s15, {O_T}
    s_mul_i32 s18, s13, {18*1024}
    s_add_u32 s16, s16, s18
    s_lshl_b32 s18, s9, 10
    s_add_u32 s16, s16, s18
    s_add_u32 s16, s16, {WS_O}
    s_add_u32 s17, s17, s18
    s_mul_i32 s18, s7, {64*FS}
    s_add_u32 s18, s18, {FL_B}
    v_mul_u32_u24 v120, {FS}, v0
    v_add_u32 v120, s18, v120
    s_cmp_lt_u32 s3, 8
    s_cbranch_scc1 c_nw
    s_waitcnt vmcnt(0)
    c_nw:
    s_barrier
    """)
    stamp("CW")
    a("s_cmp_lg_u32 s3, 8\ns_cbranch_scc1 c_ni")
    poll_issue(1, 120)
    a("c_ni:")
    for k in range(18):
        a(f"ds_read_b64_tr_b16 {vr(32+4*k,2)}, v4 offset:{k*3072}\nds_read_b64_tr_b16 {vr(34+4*k,2)}, v4 offset:{k*3072+8*192}")
        if k % 4 == 3: a("s_waitcnt lgkmcnt(6)")
    a("s_cmp_lg_u32 s3, 8\ns_cbranch_scc1 c_np")
    flag_poll("c_pb", 1, 120, issued=True)
    a("c_np:\ns_mov_b32 m0, s17\ns_waitcnt lgkmcnt(0)\ns_barrier")
    stamp("Cflag")
    for i in range(6):
        a("buffer_load_dwordx4 v2, s[36:39], s16 offen sc1 lds")
        if i < 5: a("s_add_u32 m0, m0, 3072\ns_add_u32 s16, s16, 3072")
    a(f"""
    s_mul_i32 s18, s3, 2048
    s_add_u32 s18, s18, 81920
    v_add_u32 v6, s18, v2
    s_mov_b32 s19, {-6*2048 & 0xffffffff:#x}
    s_cmp_eq_u32 s13, 0
    s_cselect_b32 s19, {6*2048}, s19
    v_add_u32 v7, s19, v6                ; partner's
    v_mul_u32_u24 v5, {8*2304}, v5
    v_and_b32 v8, 31, v0
    v_lshl_add_u32 v5, v8, 1, v5
    s_mul_i32 s17, s15, {32*2304}
    s_mul_i32 s18, s5, 192
    s_add_u32 s17, s17, s18
    s_lshl_b32 s18, s9, 6
    s_add_u32 s17, s17, s18
    s_mul_i32 s18, s13, {16*2304}
    s_add_u32 s17, s17, s18
    """)
    for c in range(3):
        a(f"s_waitcnt vmcnt({4-2*c})\ns_barrier")
        if c == 0: stamp("Cfirst")
        if c < 2:
            for k in range(6): a(f"ds_read_b128 {vr(104+4*k,4)}, v3 offset:{(6*c+k)*1024}")
        else:
            for k in range(2): a(f"ds_read_b128 {vr(104+4*k,4)}, v3 offset:{(6*c+k)*1024}")
            a("s_cmp_eq_u32 s13, 1\ns_cbranch_scc1 c_tl")
            for k in range(2, 6): a(f"ds_read_b128 {vr(104+4*k,4)}, v3 offset:{(6*c+k)*1024}")
            a("s_branch c_tm\nc_tl:")
            for k in range(2, 6):
                a(f"""ds_read2_b32 {vr(104+4*k,2)}, v11 offset0:0 offset1:32
                ds_read2_b32 {vr(106+4*k,2)}, v11 offset0:64 offset1:96
                v_add_u32 v11, 1024, v11""")
            a("s_waitcnt lgkmcnt(0)\nc_tm:")
        for k in range(6):
            a(f"s_waitcnt lgkmcnt({5-k})")
            a(f"v_mfma_f32_32x32x16_bf16 v[16:31], {vr(104+4*k,4)}, {vr(32+4*(6*c+k),4)}, " + ("0" if c == 0 and k == 0 else "v[16:31]"))
    stamp("Cmfma")
    a("""
    s_nop 10
    s_cmp_eq_u32 s13, 0
    s_cbranch_scc1 c_x0
    ds_write_b128 v6, v[16:19]
    ds_write_b128 v6, v[20:23] offset:1024
    s_waitcnt lgkmcnt(0)
    """)
    for r in range(8): a(f"v_mov_b32 v{16+r}, v{24+r}")
    a("""s_branch c_x1
    c_x0:
    ds_write_b128 v6, v[24:27]
    ds_write_b128 v6, v[28:31] offset:1024
    c_x1:
    s_waitcnt lgkmcnt(0)
    s_barrier
    ds_read_b128 v[32:35], v7
    ds_read_b128 v[36:39], v7 offset:1024
    s_waitcnt lgkmcnt(0)""")
    for r in range(8): a(f"v_add_f32 v{16+r}, v{16+r}, v{32+r}")
    for c in range(4): a(f"v_cvt_pk_bf16_f32 v{40+c}, v{16+2*c}, v{16+2*c+1}")
    for c in range(4):
        a(f"""s_add_u32 s18, s17, {2*c*2304}
        buffer_store_short v{40+c}, v5, s[32:35], s18 offen {OPT.get('sto','')}
        buffer_store_short_d16_hi v{40+c}, v5, s[32:35], s18 offen offset:2304 {OPT.get('sto','')}""")
    if DIAG:
        a(f"""s_cmp_lg_u32 s2, {OPT.get("dwg", 0)}
        s_cbranch_scc1 k_done2
        s_cmp_lg_u32 s3, 4
        s_cbranch_scc1 k_done2
        s_waitcnt vmcnt(0)
        s_memrealtime s[74:75]
        s_waitcnt lgkmcnt(0)
        {"s_mov_b32 s72, s74" if DIAG == "end" else "s_mov_b32 s72, s70" if DIAG == "none" else ""}
        s_sub_u32 s76, s72, s70
        s_min_u32 s76, s76, 10000
        s_lshl_b32 s76, s76, 2
        dg_spin:
        s_memrealtime s[78:79]
        s_waitcnt lgkmcnt(0)
        s_sub_u32 s77, s78, s74
        s_cmp_lt_u32 s77, s76
        s_cbranch_scc1 dg_spin""")
    a("k_done2:")
    stamp_out()
    a(f"""k_done:
    s_endpgm
    c_idle:
    s_cmp_lg_u32 s2, 255
    s_cbranch_scc1 k_done2
    s_cmp_lg_u32 s3, 8
    s_cbranch_scc1 k_done2
    v_lshrrev_b32 v120, 5, v116
    v_lshlrev_b32 v120, 8, v120
    v_and_b32 v121, 31, v116
    v_add_u32 v120, v120, v121
    v_mul_u32_u24 v120, {FS}, v120
    v_add_u32 v120, {FL_B}, v120
    v_add_u32 v121, {512*FS}, v120
    v_add_u32 v122, {1024*FS}, v120
    v_add_u32 v123, {1536*FS}, v120
    """)
    flag_poll("c_pe", 4, 120)
    a(f"s_mov_b32 s6, {FL_E}")
    flag_set("s6", 2)
    a("s_branch k_done2")
    a(f"""
    b_slow:
    v_subrev_u32 v{vK}, 65536, v{vK}
    v_subrev_u32 v{vT}, 16384, v{vT}
    v_subrev_u32 v{vV}, {8*9216}, v{vV}
    s_mov_b32 s26, 0
    v_mov_b32 v121, 0xff800000
    s_waitcnt lgkmcnt(0)
    b_mx:
    """)
    rdT(0, 0)
    for t in range(4):
        rdK(0, t)
        a("s_waitcnt lgkmcnt(0)")
        a(f"v_mfma_f32_32x32x16_bf16 {vr(S[0],16)}, {vr(KF[0],4)}, {vr(Q,4)}, 0")
        a(f"v_mfma_f32_32x32x8_bf16 {vr(S[0],16)}, {vr(TF[0]+2*(t>>1),2)}, {vr(QH if t&1 else QL,2)}, {vr(S[0],16)}")
        a("s_nop 15")
        for r in range(8): a(f"v_max3_f32 v121, v{S[0]+2*r}, v{S[0]+2*r+1}, v121")
    a(f"""
    v_add_u32 v{vK}, 4096, v{vK}
    v_add_u32 v{vT}, 1024, v{vT}
    s_add_u32 s26, s26, 1
    s_cmp_lt_u32 s26, 16
    s_cbranch_scc1 b_mx
    v_subrev_u32 v{vK}, 65536, v{vK}
    v_subrev_u32 v{vT}, 16384, v{vT}
    v_mov_b32 v122, v121
    s_nop 1
    v_permlane32_swap_b32 v121, v122
    s_nop 1
    v_max_f32 v121, v121, v122
    """)
    for i in range(16): a(f"v_sub_f32 v{NEG+i}, 0, v121")
    att_run(False)
    a("s_nop 15\ns_branch b_fin")

def main():
    ref = open("concat_heads__mha_block__ssm_conv_s4d__prompt.s.ref").read().split("\n")
    head = [l for l in ref if l.startswith(";") and "@launch" not in l and "Override launch" not in l and "grid=ceil" not in l]
    head += ["; @launch grid=(256,1,1) block=(768,1,1) lds=163840"]
    a(f".text\n.globl {KN}\n.p2align 8\n.type {KN},@function\n{KN}:")
    if INSTR:
        for i in range(70, 90): a(f"s_mov_b32 s{i}, 0")
        a("s_memtime s[70:71]\ns_memrealtime s[86:87]")
    if DIAG: a("s_memrealtime s[70:71]")
    phaseA(); phaseB(); phaseC()
    desc = f""".section .rodata,"a"
.p2align 6
.amdhsa_kernel {KN}
  .amdhsa_next_free_vgpr 168
  .amdhsa_next_free_sgpr 102
  .amdhsa_accum_offset 168
  .amdhsa_group_segment_fixed_size 0
  .amdhsa_kernarg_size 104
  .amdhsa_user_sgpr_count 2
  .amdhsa_user_sgpr_kernarg_segment_ptr 1
  .amdhsa_system_sgpr_workgroup_id_x 1
.end_amdhsa_kernel
"""
    out = "\n".join(head) + "\n.amdgcn_target \"amdgcn-amd-amdhsa--gfx950\"\n" + a.text() + desc
    path = sys.argv[1] if len(sys.argv) > 1 and sys.argv[1].endswith(".s") else "concat_heads__mha_block__ssm_conv_s4d__prompt.s"
    open(path, "w").write(out)
main()
```

```python
import sys, struct
KN = "concat_heads__mha_block__ssm_conv_s4d__prompt_kernel"
def f2u(x): return struct.unpack("<I", struct.pack("<f", x))[0]
INSTR = "instr" in sys.argv
OPT = dict(x.split("=") for x in sys.argv if "=" in x)

WS_QK = 0; QK_T = 73728
WS_V = WS_QK + 64 * QK_T
WS_O = WS_V + 256 * 9216; O_T = 36864
WS_U = WS_O + 64 * O_T
WS_Y = WS_U + 576 * 4096
WS_FL = WS_Y + 576 * 4096
FS = 128
FL_A = 0; FL_S = 864 * FS; FL_Y = FL_S + 288 * FS; FL_B = FL_Y + 1152 * FS; FL_E = FL_B + 2048 * FS
WS_END = WS_FL + FL_E + FS
WS_ST = 24 << 20
L_FL = 155648
KC = 4156
KAREA = 8448
L_KT = 65536; L_V = 81920; L_BOUNCE = 155648; L_Q = 102400

class A:
    def __init__(s): s.l = []
    def __call__(s, t):
        for line in t.strip("\n").split("\n"):
            q = line.strip()
            if not q: continue
            s.l.append(q if q.endswith(":") else "    " + q)
    def text(s): return "\n".join(s.l) + "\n"
a = A()
def vr(b, n): return f"v[{b}:{b+n-1}]"
def srd(d, lo, size):
    a(f"""s_mov_b32 s{d}, s{lo}
    s_mov_b32 s{d+1}, s{lo+1}
    s_mov_b32 s{d+2}, {size}
    s_mov_b32 s{d+3}, 0x20000""")

SSETS = {"1": ["Aend", "Aack", "Bflag", "Bgo", "Bloop", "Back"],
         "2": ["Bloop", "Back", "CW", "Cflag", "Cfirst", "Cmfma"],
         "4": ["Aack", "Xpw", "Xpoll", "Xiss", "Xland", "Bgo"],
         "3": ["Afirst", "Akgen", "Abuilt", "Aconv", "Aend", "Aack"]}
DIAG = OPT.get("diag")
def stamp(name):
    if DIAG == name: a("s_memrealtime s[72:73]")
    if INSTR and name in SSETS[OPT.get("sset", "1")]:
        i = SSETS[OPT.get("sset", "1")].index(name) + 1
        a(f"s_memtime s[{70+2*i}:{71+2*i}]")
def stamp_out():
    if not INSTR: return
    a(f"""s_waitcnt vmcnt(0)
    s_memtime s[84:85]
    s_memrealtime s[88:89]
    s_waitcnt lgkmcnt(0)
    s_mov_b64 exec, 1
    s_lshl_b32 s90, s2, 4
    s_add_u32 s90, s90, s3
    s_lshl_b32 s90, s90, 6
    s_add_u32 s90, s90, {WS_ST}
    v_mov_b32 v166, s90""")
    for i in range(10):
        a(f"v_mov_b32 v167, s{70+2*i}\nglobal_store_dword v166, v167, s[24:25] offset:{4*i}")

def transpose8(I, O, sLO, sHI):
    for c in range(8):
        for t in range(4):
            a(f"v_perm_b32 v{O+4*c+t}, v{I+4*(2*t+1)+(c>>1)}, v{I+4*(2*t)+(c>>1)}, s{sHI if c&1 else sLO}")

def flag_set(soff, t):
    a(f"""v_mov_b32 v{t}, {WS_FL}
    v_mov_b32 v{t+1}, s92
    s_mov_b64 exec, 1
    buffer_store_dword v{t+1}, v{t}, s[36:39], {soff} offen sc1
    s_mov_b64 exec, -1""")
def poll_issue(n, t):
    for i in range(n): a(f"buffer_load_dword v{t+4+i}, v{t+i}, s[36:39], s93 offen sc1")
def flag_poll(tag, n, t, issued=False):
    a("s_mov_b32 s91, 0")
    if issued: a(f"s_branch {tag}_c")
    a(f"{tag}:")
    poll_issue(n, t)
    a(f"{tag}_c:\ns_add_u32 s91, s91, 1\ns_waitcnt vmcnt(0)")
    for i in range(n): a(f"v_xor_b32 v{t+4+i}, s92, v{t+4+i}")
    for i in range(1, n): a(f"v_or_b32 v{t+4}, v{t+4}, v{t+4+i}")
    a(f"""v_cmp_ne_u32 vcc, 0, v{t+4}
    s_cbranch_vccz {tag}_x
    s_mov_b64 exec, vcc
    s_sleep {OPT.get("slp", 2)}
    s_cmp_lt_u32 s91, 0x80000
    s_cbranch_scc1 {tag}
    {tag}_x:
    s_mov_b64 exec, -1""")
def lds_wait(tag, vaddr, off, t, slp=False):
    a(f"""{tag}:
    {"s_sleep 1" if slp else ""}
    ds_read_b32 v{t}, v{vaddr} offset:{off}
    s_waitcnt lgkmcnt(0)
    v_cmp_eq_u32 vcc, 0, v{t}
    s_cbranch_vccz {tag}""")
def kargs():
    a(f"""s_waitcnt lgkmcnt(0)
    s_add_u32 s68, s24, {WS_FL + FL_E}
    s_addc_u32 s69, s25, 0
    s_load_dword s92, s[68:69], 0""")
    srd(36, 24, WS_END)

def ufetch(tag):
    a(f"""
    s_sub_u32 s43, s3, 8
    s_sub_u32 s45, 11, s3
    s_cmp_ge_u32 s2, 224
    s_cselect_b32 s43, s45, s43
    s_and_b32 s45, s43, 1
    s_lshl_b32 s40, s2, 1
    s_add_u32 s40, s40, s45
    s_add_u32 s46, s40, {512 - 448}
    s_lshl_b32 s44, s43, 13
    s_add_u32 s47, s44, {40960 - 16384}
    s_add_u32 s44, s44, 147968
    s_cmp_ge_u32 s43, 2
    s_cselect_b32 s40, s46, s40          ; channel
    s_cselect_b32 m0, s47, s44
    s_lshr_b32 s46, s40, 6
    s_mul_i32 s46, s46, {32*FS}
    s_add_u32 s46, s46, {FL_S}
    v_and_b32 v10, 31, v0
    v_mul_u32_u24 v10, {FS}, v10
    v_add_u32 v10, s46, v10
    v_lshlrev_b32 v12, 4, v0
    v_mov_b32 v13, 0x7ffffff0
    s_lshl_b32 s44, s40, 12
    s_add_u32 s44, s44, {WS_U}
    s_mov_b32 exec_hi, 0
    """)
    flag_poll(tag, 1, 10)
    for i in range(4): a(f"buffer_load_dwordx4 v12, s[36:39], s44 offen offset:{1024*i} sc1 lds")
    a(f"""s_lshl_b32 s43, s43, 2
    s_add_u32 m0, s43, {L_FL + 448}
    s_mov_b64 exec, 1
    buffer_load_dword v13, s[36:39], 0 offen lds
    s_mov_b64 exec, -1""")

def phaseA():
    mod9 = """
    s_mul_i32 s49, s48, 57
    s_lshr_b32 s49, s49, 9
    s_mul_i32 s49, s49, 9
    s_sub_u32 s48, s48, s49"""
    ROT = {"wg": "s_lshl_b32 s48, s40, 1\ns_add_u32 s48, s48, s41" + mod9, "none": "s_mov_b32 s48, 0",
           "xcd": "s_and_b32 s48, s26, 3\ns_lshl_b32 s48, s48, 1\ns_lshr_b32 s49, s26, 2\ns_mul_i32 s49, s49, 5\ns_add_u32 s48, s48, s49" + mod9}[OPT.get("rot", "xcd")]
    a(f"""
    s_cmp_ge_u32 s2, 256
    s_cbranch_scc1 k_done
    v_lshrrev_b32 v1, 6, v0
    v_and_b32 v0, 63, v0
    v_readfirstlane_b32 s3, v1
    v_mov_b32 v23, {L_FL}
    s_cmp_lg_u32 s3, 9
    s_cbranch_scc1 a_noarm
    v_mov_b32 v14, -1
    v_mov_b32 v15, -1
    v_lshl_add_u32 v16, v0, 3, v23
    ds_write_b64 v16, v[14:15]
    s_waitcnt lgkmcnt(0)
    a_noarm:
    s_load_dwordx16 s[4:19], s[0:1], 0
    s_load_dwordx4 s[20:23], s[0:1], 64
    s_load_dwordx2 s[24:25], s[0:1], 96
    s_load_dwordx2 s[96:97], s[0:1], 80
    s_load_dwordx2 s[94:95], s[0:1], 16
    s_add_u32 s26, s3, 8
    s_sub_u32 s27, s3, 4
    s_cmp_lt_u32 s3, 4
    {"" if OPT.get("remap", "1") == "0" else "s_cselect_b32 s3, s26, s27           ; the waves that start first take the loader role (8..11)"}
    s_and_b32 s26, s2, 7
    s_lshr_b32 s27, s2, 3
    s_and_b32 s40, s26, 3
    s_lshl_b32 s40, s40, 2
    s_and_b32 s44, s27, 3
    s_add_u32 s40, s40, s44
    s_lshr_b32 s41, s26, 2
    s_mul_i32 s41, s41, 7
    s_lshr_b32 s44, s27, 2
    s_add_u32 s41, s41, s44
    s_mov_b32 s93, {WS_FL}
    s_cmp_ge_u32 s3, 8
    s_cbranch_scc1 a_aux
    s_cmp_lt_u32 s3, 4
    s_cbranch_scc1 a_ssm
    s_branch a_gemm
    a_aux:
    s_cmp_ge_u32 s27, 28
    s_cbranch_scc1 a_task
    {ROT}
    s_bfe_u32 s56, s3, 0x10001
    s_bitcmp1_b32 s3, 0
    s_cbranch_scc1 a_ldw
    v_lshrrev_b32 v4, 3, v0
    v_lshrrev_b32 v5, 2, v4
    v_lshlrev_b32 v5, 3, v5
    v_and_b32 v6, 3, v4
    v_add_u32 v5, v5, v6
    s_lshl_b32 s44, s40, 7
    v_add_u32 v5, s44, v5
    v_mul_u32_u24 v5, 1152, v5
    v_lshrrev_b32 v6, 1, v4
    v_and_b32 v7, 7, v0
    v_xor_b32 v6, v6, v7
    v_lshl_add_u32 v2, v6, 4, v5
    v_xor_b32 v6, 4, v6
    v_lshl_add_u32 v3, v6, 4, v5
    v_add_u32 v3, {4608-1024}, v3
    s_mov_b32 s50, 128
    s_mov_b32 s51, 18432
    s_mov_b32 s52, 0
    s_waitcnt lgkmcnt(0)
    s_mov_b32 s28, s4
    s_mov_b32 s29, s5
    s_mov_b32 s30, 2359296
    s_branch a_ld
    a_ldw:
    v_lshrrev_b32 v5, 4, v0
    v_mul_u32_u24 v2, 3456, v5
    v_lshlrev_b32 v5, 2, v5
    v_and_b32 v6, 15, v0
    v_xor_b32 v5, v5, v6
    v_lshl_add_u32 v2, v5, 4, v2
    s_lshl_b32 s44, s41, 8
    v_add_u32 v2, s44, v2
    v_add_u32 v3, {13824-1024}, v2
    s_mov_b32 s50, 221184
    s_mov_b32 s51, 27648
    s_mov_b32 s52, 16384
    s_waitcnt lgkmcnt(0)
    s_mov_b32 s28, s6
    s_mov_b32 s29, s7
    s_mov_b32 s30, 1990656
    a_ld:
    s_setprio {OPT.get("lprio", 0)}
    s_mov_b32 s31, 0x20000
    s_mul_i32 s57, s56, s51
    s_lshl_b32 s57, s57, 2
    s_lshl_b32 s56, s56, 13
    s_add_u32 s52, s52, s56
    s_and_b32 s58, s3, 3
    s_lshl_b32 s58, s58, 2
    s_add_u32 s58, s58, {L_FL}
    v_mov_b32 v4, 0x7ffffff0
    s_mov_b32 s53, 0
    """)
    kargs()
    a(f"""
    a_ld_loop:
    s_cmp_lt_u32 s53, 4
    s_cbranch_scc1 a_ld_go
    a_ld_poll:
    ds_read_b128 v[8:11], v23 offset:160
    s_waitcnt lgkmcnt(0)
    v_or_b32 v8, v8, v9
    v_or3_b32 v8, v8, v10, v11
    v_cmp_eq_u32 vcc, 0, v8
    s_cbranch_vccz a_ld_poll
    v_add_u32 v23, 16, v23
    a_ld_go:
    s_mul_i32 s47, s48, s50
    s_add_u32 s47, s47, s57
    s_and_b32 s55, s53, 3
    s_lshl_b32 s55, s55, 15
    s_add_u32 m0, s55, s52
    s_add_u32 s48, s48, 1
    """)
    for p in range(4):
        a("buffer_load_dwordx4 v2, s[28:31], s47 offen lds\nbuffer_load_dwordx4 v3, s[28:31], s47 offen offset:1024 lds")
        if p < 3: a("s_add_u32 m0, m0, 2048\ns_add_u32 s47, s47, s51")
    a(f"""
    s_cmp_eq_u32 s48, 9
    s_cselect_b32 s48, 0, s48
    s_cmp_lg_u32 s53, 0
    s_cbranch_scc1 a_ld_nb
    s_barrier
    a_ld_nb:
    s_mov_b32 m0, s58
    s_mov_b64 exec, 1
    buffer_load_dword v4, s[28:31], 0 offen lds
    s_mov_b64 exec, -1
    s_add_u32 s58, s58, 16
    s_add_u32 s53, s53, 1
    s_cmp_lt_u32 s53, 9
    s_cbranch_scc1 a_ld_loop
    """)
    a("v_mov_b32 v116, v0\ns_waitcnt lgkmcnt(0)\ns_add_u32 s92, s92, 1\ns_cmp_ge_u32 s3, 10\ns_cbranch_scc1 b_aux\na_uf:")
    ufetch("a_pu")
    a("s_branch b_aux")
    a(f"""
    a_gemm:
    s_cmp_ge_u32 s27, 28
    s_cbranch_scc1 a_ssm
    s_barrier
    """)
    kargs()
    a(f"""
    s_sub_u32 s45, s3, 4
    s_and_b32 s42, s45, 1                ; mw
    s_lshr_b32 s43, s45, 1               ; nw
    s_lshl_b32 s58, s45, 2
    s_add_u32 s58, s58, {L_FL + 160}
    v_mov_b32 v22, 0x7ffffff0
    v_and_b32 v5, 31, v0
    v_lshrrev_b32 v6, 5, v0
    s_lshl_b32 s44, s42, 6
    v_add_u32 v7, s44, v5
    v_lshlrev_b32 v7, 7, v7
    v_bfe_u32 v5, v5, 1, 3
    v_xor_b32 v5, v5, v6
    """)
    for j in range(4):
        a(f"v_xor_b32 v20, {2*j}, v5\nv_lshl_add_u32 v{8+j}, v20, 4, v7\nv_add_u32 v{12+j}, 0x10000, v{8+j}")
    a(f"""
    v_bfe_u32 v5, v0, 2, 2
    v_lshl_add_u32 v7, v6, 3, v5
    v_lshlrev_b32 v7, 8, v7
    v_bfe_u32 v20, v0, 4, 1
    v_lshl_add_u32 v7, v20, 5, v7
    v_and_b32 v20, 1, v0
    v_lshl_add_u32 v7, v20, 4, v7
    v_and_b32 v20, 2, v0
    v_lshl_add_u32 v7, v20, 2, v7
    v_add_u32 v7, 16384, v7
    s_lshl_b32 s44, s43, 1
    v_xor_b32 v5, s44, v5
    v_lshl_add_u32 v16, v5, 6, v7
    v_xor_b32 v5, 1, v5
    v_lshl_add_u32 v17, v5, 6, v7
    v_add_u32 v18, 0x10000, v16
    v_add_u32 v19, 0x10000, v17
    s_setprio {OPT.get('gprio', 2)}
    s_waitcnt lgkmcnt(0)
    s_add_u32 s92, s92, 1
    s_lshl_b32 s46, s40, 1
    s_add_u32 s46, s46, s42
    s_lshl_b32 s47, s41, 1
    s_add_u32 s47, s47, s43
    s_lshl_b32 s59, s47, 5
    s_add_u32 s59, s59, s46
    s_mul_i32 s59, s59, {FS}
    s_cmp_ge_u32 s41, 9
    s_cbranch_scc1 a_gemm_v""")
    FB = [24, 40, 128]
    def reads(stage, j, fb):
        slot = stage & 3; hi = slot >> 1; base = (slot & 1) * 32768
        return [f"ds_read_b128 {vr(fb,4)}, v{8+4*hi+j} offset:{base}",
                f"ds_read_b64_tr_b16 {vr(fb+8,2)}, v{16+2*hi} offset:{base+j*4096}",
                f"ds_read_b64_tr_b16 {vr(fb+10,2)}, v{16+2*hi} offset:{base+j*4096+1024}",
                f"ds_read_b64_tr_b16 {vr(fb+12,2)}, v{17+2*hi} offset:{base+j*4096}",
                f"ds_read_b64_tr_b16 {vr(fb+14,2)}, v{17+2*hi} offset:{base+j*4096+1024}",
                f"ds_read_b128 {vr(fb+4,4)}, v{8+4*hi+j} offset:{base+4096}"]
    def mfmas(fb, vor, first):
        out = []
        for (ta, tb) in ((0,0),(0,1),(1,0),(1,1)):
            acc = vr(64 + 16*(2*ta+tb), 16); X = vr(fb+4*ta, 4); W = vr(fb+8+4*tb, 4)
            out.append(f"v_mfma_f32_32x32x16_bf16 {acc}, " + (f"{X}, {W}" if vor else f"{W}, {X}") + ", " + ("0" if first else acc))
        return out
    def check(tag, st, first_read):
        if not first_read:
            a(f"""v_or_b32 v56, v56, v57
            v_or3_b32 v56, v56, v58, v59
            v_cmp_eq_u32 vcc, 0, v56
            s_cbranch_vccnz {tag}_ok""")
        a(f"""{tag}_p:
        ds_read_b128 v[56:59], v23 offset:{16*st}
        s_waitcnt lgkmcnt(0)
        v_or_b32 v56, v56, v57
        v_or3_b32 v56, v56, v58, v59
        v_cmp_eq_u32 vcc, 0, v56
        s_cbranch_vccz {tag}_p
        {tag}_ok:""")
    def mainloop(vor):
        check(f"a_c{int(vor)}_0", 0, True)
        stamp("Afirst")
        a("\n".join(reads(0, 0, FB[0]) + reads(0, 1, FB[1])))
        for g in range(36):
            st, j = divmod(g, 4)
            a(f"s_waitcnt lgkmcnt({6 if g < 35 else 0})")
            m = mfmas(FB[g % 3], vor, g == 0)
            a(m[0])
            if j == 1 and st < 8: a(f"ds_read_b128 v[56:59], v23 offset:{16*(st+1)}")
            if j == 2 and st < 8: check(f"a_c{int(vor)}_{st+1}", st+1, False)
            if j == 3 and st < 5: a(f"s_add_u32 m0, s58, {16*st}\ns_mov_b64 exec, 1\nbuffer_load_dword v22, s[36:39], 0 offen lds\ns_mov_b64 exec, -1")
            rd = reads((g+2)//4, (g+2)%4, FB[(g+2) % 3]) if g + 2 < 36 else []
            a("\n".join(rd[:3])); a(m[1]); a("\n".join(rd[3:])); a(m[2]); a(m[3])
        stamp("Aconv")
    a(f"""
    s_mul_i32 s44, s46, {2*QK_T}
    s_lshl_b32 s45, s47, 12
    s_add_u32 s44, s44, s45
    s_add_u32 s45, s44, {QK_T}
    v_lshlrev_b32 v2, 4, v0
    """)
    mainloop(False)
    for ta in range(2):
        for tb in range(2):
            acc = 64 + 16*(2*ta+tb); o = 24 + 8*(2*ta+tb)
            if ta + tb == 0: a("s_nop 8")
            for r in range(8): a(f"v_cvt_pk_bf16_f32 v{o+r}, v{acc+2*r}, v{acc+2*r+1}")
            for hh in range(2): a(f"buffer_store_dwordx4 {vr(o+4*hh,4)}, v2, s[36:39], s{44+ta} offen offset:{tb*2048+hh*1024} sc1")
    a(f"""s_branch a_gemm_end
    a_gemm_v:
    v_and_b32 v5, 19, v0
    v_bfe_u32 v6, v0, 2, 1
    v_lshl_add_u32 v5, v6, 3, v5
    v_bfe_u32 v6, v0, 3, 1
    v_lshl_add_u32 v5, v6, 2, v5
    v_lshrrev_b32 v6, 5, v0
    v_mul_u32_u24 v6, 9216, v6
    v_lshl_add_u32 v2, v5, 4, v6
    s_sub_u32 s45, s47, 18
    s_lshl_b32 s45, s45, 10
    s_mul_i32 s44, s46, {8*9216}
    s_add_u32 s44, s44, s45
    s_add_u32 s44, s44, {WS_V}
    """)
    mainloop(True)
    a("s_cmp_ge_u32 s47, 27\ns_cbranch_scc1 a_end")
    for ta in range(2):
        for tb in range(2):
            acc = 64 + 16*(2*ta+tb); o = 24 + 8*(2*ta+tb)
            if ta + tb == 0: a("s_nop 8")
            for r in range(8): a(f"v_cvt_pk_bf16_f32 v{o+r}, v{acc+2*r}, v{acc+2*r+1}")
            for hh in range(2): a(f"s_add_u32 s45, s44, {(4*ta+2*hh)*9216}\nbuffer_store_dwordx4 {vr(o+4*hh,4)}, v2, s[36:39], s45 offen offset:{tb*512} sc1")
    a("a_gemm_end:")
    stamp("Aend")
    a("s_waitcnt vmcnt(0)")
    stamp("Aack")
    flag_set("s59", 2)
    a("s_branch a_end")

    a(f"""
    a_task:
    s_sub_u32 s44, s2, 224
    s_lshr_b32 s45, s44, 1               ; B
    s_and_b32 s46, s44, 1                ; es
    s_sub_u32 s47, 16, s3
    s_lshl_b32 s59, s47, 5
    s_add_u32 s59, s59, s44
    s_mul_i32 s59, s59, {FS}
    s_add_u32 s59, s59, {FL_S}
    s_lshl_b32 s48, s45, 3
    s_add_u32 s48, s48, s46
    s_mul_i32 s48, s48, {16*1152}
    s_lshl_b32 s49, s47, 7
    s_add_u32 s48, s48, s49
    v_lshrrev_b32 v10, 3, v0
    v_and_b32 v9, 7, v0
    v_mul_u32_u24 v11, 1152, v10
    v_lshl_add_u32 v11, v9, 4, v11
    v_xor_b32 v12, v10, v9
    v_lshlrev_b32 v12, 4, v12
    v_lshl_add_u32 v12, v9, 10, v12
    s_sub_u32 s49, 11, s3
    s_lshl_b32 s49, s49, 14
    s_add_u32 s49, s49, 57344
    v_add_u32 v12, s49, v12
    s_mov_b32 m0, s49
    v_lshlrev_b32 v17, 15, v10
    v_lshl_add_u32 v17, v9, 4, v17
    s_lshl_b32 s60, s47, 18
    s_lshl_b32 s45, s45, 7
    s_lshl_b32 s46, s46, 11
    s_add_u32 s60, s60, s45
    s_add_u32 s60, s60, s46
    s_add_u32 s60, s60, {WS_U}
    s_mov_b32 s50, 0x05040100
    s_mov_b32 s51, 0x07060302
    """)
    for p in range(8): a(f"v_xor_b32 v{24+p}, {16*p}, v11")
    kargs()
    srd(28, 10, 2359296)
    for i in range(3):
        if i == 1: a("s_barrier")
        if i == 2: a("s_cmp_lg_u32 s3, 8\ns_cbranch_scc1 a_t2")
        for p in range(8):
            a(f"""s_add_u32 s49, s48, {((p>>1)*32 + (p&1)*8)*1152}
            buffer_load_dwordx4 v{24+p}, s[28:31], s49 offen lds
            s_add_u32 m0, m0, 1024""")
        a("s_sub_u32 s48, s48, 512")
    a("s_waitcnt vmcnt(16)\ns_branch a_t3\na_t2:\ns_waitcnt vmcnt(8)\na_t3:")
    for i in range(3):
        if i == 1: a("s_waitcnt vmcnt(8)")
        for j in range(8): a(f"ds_read_b128 {vr(32+4*j,4)}, v12 offset:{i*8192 + j*128}")
        a("s_waitcnt lgkmcnt(0)")
        if i == 0: a("s_add_u32 s92, s92, 1")
        O_ = [64, 96, 128][i]
        transpose8(32, O_, 50, 51)
        if i:
            a("s_waitcnt vmcnt(0)")
            flag_set("s59", 2)
            a(f"s_sub_u32 s59, s59, {128*FS}")
        for c in range(8):
            a(f"s_add_u32 s49, s60, {c*4096}\nbuffer_store_dwordx4 {vr(O_+4*c,4)}, v17, s[36:39], s49 offen sc1")
        a(f"s_sub_u32 s60, s60, {4<<18}")
        if i == 1: a("s_cmp_lg_u32 s3, 8\ns_cbranch_scc1 a_gemm_end")
    a("s_branch a_gemm_end")

    L2E = f2u(1.4426950408889634); L2E_LO = f2u(1.4426950408889634 - struct.unpack("<f", struct.pack("<I", L2E))[0])
    LN2 = f2u(0.6931471805599453)
    z0 = list(range(9)) + [14,15,16,20,21,24,25]
    z1 = [9,9,10,11,11,11,12,13,13,17,18,19,22,23,26,27]
    def pack(z, lo):
        v = 0
        for r in range(lo, lo+8): v |= (z[r]-r) << (4*(r-lo))
        return v
    a(f"""
    a_ssm:
    s_and_b32 s41, s3, 1                 ; half
    s_bfe_u32 s45, s3, 0x10001
    s_lshl_b32 s40, s2, 1
    s_add_u32 s40, s40, s45
    s_add_u32 s46, s40, {512 - 448}
    s_mul_i32 s42, s45, {KAREA}
    s_add_u32 s47, s42, 16384
    s_add_u32 s42, s42, 131072
    s_cmp_ge_u32 s3, 4
    s_cselect_b32 s40, s46, s40          ; channel
    s_cselect_b32 s42, s47, s42
    s_lshr_b32 s43, s3, 1
    s_lshl_b32 s43, s43, 13
    s_add_u32 s47, s43, {40960 - 16384}
    s_add_u32 s43, s43, 147968
    s_cmp_ge_u32 s3, 4
    s_cselect_b32 s43, s47, s43
    s_lshl_b32 s45, s40, 7
    s_lshl_b32 s46, s41, 6
    s_add_u32 s45, s45, s46
    v_add_u32 v2, s45, v0
    v_lshlrev_b32 v2, 1, v2
    s_lshl_b32 s45, s40, 1
    v_mov_b32 v3, s45
    s_waitcnt lgkmcnt(0)
    global_load_ushort v4, v3, s[20:21]
    global_load_ushort v6, v2, s[12:13]
    global_load_ushort v7, v2, s[14:15]
    global_load_ushort v8, v2, s[16:17]
    global_load_ushort v9, v2, s[18:19]
    global_load_ushort v5, v3, s[22:23]
    s_barrier
    """)
    kargs()
    a(f"""
    v_and_b32 v14, 31, v0
    v_and_b32 v16, 3, v14
    v_lshrrev_b32 v17, 3, v14
    v_lshl_add_u32 v16, v17, 2, v16
    v_mov_b32 v17, {pack(z0,0):#x}
    v_mov_b32 v18, {pack(z0,8):#x}
    v_mov_b32 v19, {pack(z1,0):#x}
    v_mov_b32 v20, {pack(z1,8):#x}
    v_cmp_lt_u32 vcc, 7, v16
    v_and_b32 v21, 4, v14
    v_and_b32 v22, 7, v16
    v_cndmask_b32 v17, v17, v18, vcc
    v_cndmask_b32 v19, v19, v20, vcc
    v_cmp_ne_u32 vcc, 0, v21
    v_lshlrev_b32 v22, 2, v22
    v_lshrrev_b32 v15, 5, v0
    v_cndmask_b32 v17, v17, v19, vcc
    v_bfe_u32 v17, v17, v22, 4
    v_add_u32 v17, v17, v16
    v_lshlrev_b32 v15, 2, v15
    s_mov_b32 s50, 0x3f80
    """)
    for (zr, dst) in ((14, 40), (17, 48)):
        a(f"""v_and_b32 v18, 1, v{zr}
        v_lshlrev_b32 v18, 4, v18
        v_lshlrev_b32 v18, v18, s50
        v_lshrrev_b32 v19, 1, v{zr}
        v_sub_u32 v19, v19, v15""")
        for d in range(8): a(f"v_cmp_eq_u32 s[{52+2*d}:{53+2*d}], {8*(d>>2) + (d&3)}, v19")
        for d in range(8): a(f"v_cndmask_b32 v{dst+d}, 0, v18, s[{52+2*d}:{53+2*d}]")
    a(f"""
    s_mov_b32 s50, {L2E:#x}
    s_mov_b32 s51, {L2E_LO:#x}
    s_mov_b32 s52, {LN2:#x}
    s_mov_b32 s53, {f2u(248.0):#x}
    s_mov_b32 s54, {f2u(8.0):#x}
    s_waitcnt vmcnt(0) lgkmcnt(0)
    s_add_u32 s92, s92, 1
    """)
    stamp("Afirst")
    if "nossm" in OPT: a("s_branch a_end")
    def exp_bf16(x, t, lo):
        a(f"""v_mul_f32 v{t}, s50, v{x}
        v_fma_f32 v{lo}, v{x}, s50, -v{t}
        v_exp_f32 v{t}, v{t}
        v_fma_f32 v{lo}, v{x}, s51, v{lo}
        v_mul_f32 v{lo}, s52, v{lo}
        v_fma_f32 v{t}, v{t}, v{lo}, v{t}
        v_cvt_pk_bf16_f32 v{t}, v{t}, v{t}
        v_lshlrev_b32 v{x}, 16, v{t}""")
    for r in range(4, 10): a(f"v_lshlrev_b32 v{r}, 16, v{r}")
    exp_bf16(4, 20, 21)
    exp_bf16(6, 20, 21)
    a("""
    v_mul_f32 v6, v6, v4
    v_mul_f32 v7, v7, v4
    v_mul_f32 v8, v8, v4
    v_mul_f32 v9, v9, v4
    v_mul_f32 v6, s50, v6                ; -Re(z)*log2e
    v_mul_f32 v7, 0.15915494, v7         ; Im(z)/(2pi)
    v_add_f32 v8, v8, v8
    v_mul_f32 v9, -2.0, v9
    """)
    DL = [8, 1, 2, 4, 248]
    DS = {8: "s54", 1: "1.0", 2: "2.0", 4: "4.0", 248: "s53"}
    MR = {d: 24 + 2*i for i, d in enumerate(DL)}
    def mkE(d):
        a(f"""v_mul_f32 v21, {DS[d]}, v6
        v_mul_f32 v22, {DS[d]}, v7
        v_exp_f32 v21, -v21
        v_fract_f32 v22, v22
        v_cos_f32 v20, v22
        v_sin_f32 v22, v22
        v_mul_f32 v{MR[d]}, v21, v20
        v_mul_f32 v{MR[d]+1}, v21, v22""")
    P = 56; Dt = 88; YO = 120; ACC = 152
    R = lambda z: 34 + 2*(z % 3)
    def chain(dl, conj, mid=None):
        n = "-" if conj else ""; p = "" if conj else "-"
        for z in range(len(dl) + 1):
            cur, nxt = R(z), R(z+1)
            if z < len(dl):
                W = MR[dl[z]]
                a(f"v_mul_f32 v{nxt}, v{cur}, v{W}\nv_mul_f32 v{nxt+1}, v{cur+1}, v{W}")
            if z & 1: a(f"v_cvt_pk_bf16_f32 v{P+(z>>1)}, v{R(z-1)}, v{cur}")
            if z < len(dl): a(f"v_fma_f32 v{nxt}, {p}v{cur+1}, v{W+1}, v{nxt}\nv_fma_f32 v{nxt+1}, {n}v{cur}, v{W+1}, v{nxt+1}")
            if z & 1: a(f"v_cvt_pk_bf16_f32 v{P+16+(z>>1)}, v{R(z-1)+1}, v{cur+1}")
            if mid and z == 4: mid()
    def swaps(comp):
        for pr in range(2):
            for t in range(4): a(f"v_permlane32_swap_b32 v{P+16*comp+8*pr+t}, v{P+16*comp+8*pr+4+t}")
    def tmfma(comp, sel):
        for blk in range(2): a(f"v_mfma_f32_32x32x16_bf16 {vr(Dt+16*blk,16)}, {vr(P+16*comp+4*blk,4)}, {vr(sel,4)}, 0")
        for blk in range(2): a(f"v_mfma_f32_32x32x16_bf16 {vr(Dt+16*blk,16)}, {vr(P+16*comp+8+4*blk,4)}, {vr(sel+4,4)}, {vr(Dt+16*blk,16)}")
    def tcvt(dst):
        for i in range(16): a(f"v_cvt_pk_bf16_f32 v{dst+i}, v{Dt+2*i}, v{Dt+2*i+1}")
    mkE(8)
    a(f"v_mov_b32 v{R(0)}, 1.0\nv_mov_b32 v{R(0)+1}, 0")
    chain([8]*31, False)
    mkE(1); swaps(0); swaps(1); tmfma(0, 40); mkE(2); mkE(4); tcvt(YO); tmfma(1, 40); mkE(248)
    a(f"v_mov_b32 v{R(0)}, v8\nv_mov_b32 v{R(0)+1}, v9")
    deltas = [1]*8 + [248] + [2]*4 + [248] + [4]*2 + [248] + [4]*2 + [248, 8, 248, 8, 248, 8, 248, 8]
    chain(deltas, True, mid=lambda: tcvt(YO+16))
    a("v_lshl_add_u32 v21, s41, 6, v0\nv_cmp_eq_u32 vcc, 0, v21\nv_sub_u32 v21, 63, v0")
    swaps(0); swaps(1); tmfma(0, 48)
    a(f"""
    v_cndmask_b32 v5, 0, v5, vcc
    v_lshl_add_u32 v21, v21, 4, s42
    s_lshl_b32 s46, s3, 4
    v_add_u32 v22, s46, v23
    v_xor_b32 v20, 16, v22               ; partner's
    v_mov_b32 v19, 0
    s_nop 5
    """)
    tcvt(P); tmfma(1, 48)
    for i in range(4): a(f"v_mfma_f32_32x32x16_bf16 {vr(ACC,16)}, {vr(P+4*i,4)}, {vr(YO+4*i,4)}, " + ("0" if i == 0 else vr(ACC,16)))
    a("s_nop 7")
    tcvt(P+16)
    a("s_nop 1")
    for i in range(4, 8): a(f"v_mfma_f32_32x32x16_bf16 {vr(ACC,16)}, {vr(P+4*i,4)}, {vr(YO+4*i,4)}, {vr(ACC,16)}")
    stamp("Akgen")
    if "noconv" in OPT: a("s_branch a_end")
    CA = 24; CU = 68; CF = 132
    for i in range(44): a(f"v_mov_b32 v{CA+i}, 0")
    for i in range(32): a(f"v_mov_b32 v{CU+i}, 0")
    a(f"""
    v_and_b32 v12, 31, v0
    v_lshrrev_b32 v13, 5, v0             ; h
    v_lshlrev_b32 v16, 5, v12
    v_lshl_add_u32 v16, v13, 4, v16
    s_lshl_b32 s45, s41, 7
    s_sub_u32 s44, s43, s45
    s_sub_u32 s44, s44, 96
    v_add_u32 v16, s44, v16
    s_lshl_b32 s45, s41, 2
    v_lshlrev_b32 v17, 3, v13
    v_sub_u32 v17, v17, v12
    v_lshlrev_b32 v17, 1, v17            ; 2*(8h - b)
    v_and_b32 v18, 1, v12
    v_cmp_eq_u32 s[56:57], 1, v18        ; b odd
    v_xor_b32 v18, 1, v18
    v_mul_u32_u24 v18, {KC + 2}, v18
    s_lshl_b32 s46, s41, 8
    s_sub_u32 s46, s42, s46
    s_add_u32 s46, s46, {62 + 120*32}
    v_add3_u32 v17, v17, v18, s46
    v_subrev_u32 v18, 2048, v17
    v_add_f32 v{ACC}, v{ACC}, v5
    v_lshl_add_u32 v133, v0, 2, s42
    s_add_u32 s46, s43, 4096
    v_lshl_add_u32 v138, v0, 4, s46
    """)
    for G in range(4): a(f"v_add_u32 v{134+G}, {(3-G)*1024 + KC}, v21")
    a(f"""
    s_cmp_ge_u32 s27, 28
    s_cbranch_scc1 a_s_g2
    a_s_w2:
    ds_read_b128 v[8:11], v23 offset:128
    s_waitcnt lgkmcnt(0)
    v_or_b32 v8, v8, v9
    v_or3_b32 v8, v8, v10, v11
    v_cmp_eq_u32 vcc, 0, v8
    s_cbranch_vccnz a_s_g2
    s_sleep 1
    s_branch a_s_w2
    a_s_g2:
    s_setprio 3
    s_cmp_eq_u32 s41, 0
    s_cbranch_scc1 a_s_even
    """)
    d = lambda r: f"v{ACC+r}" if r < 16 else f"v{r-24}"
    units = [
      (0, 0, [(7,6),(5,4),(3,2),(1,0)]), (0, 1, [(8,7),(6,5),(4,3),(2,1)]),
      (1, 0, [(11,11),(10,10),(10,9),(9,9)]), (1, 1, [(11,11),(11,10),(10,10),(9,9)]),
      (2, 0, [(13,13),(13,32),(12,12),(12,12)]), (2, 1, [(13,13),(13,13),(32,12),(12,12)]),
      (3, 0, [(15,15),(15,33),(14,14),(14,14)]), (3, 1, [(15,15),(15,15),(33,14),(14,14)])]
    def build(us):
        for ui in us:
            G, cp, prs = units[ui]; o = 100 + 4*ui
            for t, (lo, hi) in enumerate(prs): a(f"v_cvt_pk_bf16_f32 v{o+t}, {d(lo)}, {d(hi)}")
            if cp == 0: a(f"ds_write_b128 v21, {vr(o,4)} offset:{(3-G)*1024}")
            else: a(f"ds_write2_b32 v{134+G}, v{o}, v{o+1} offset0:0 offset1:1\nds_write2_b32 v{134+G}, v{o+2}, v{o+3} offset0:2 offset1:3")
    for i in range(3): a(f"ds_write_b128 v138, {vr(ACC+4*i,4)} offset:{1024*i}")
    a("ds_write_b32 v22, v19 offset:256")
    lds_wait("a_s_o0", 20, 256, 8)
    a("ds_read_b128 v[140:143], v21\ns_waitcnt lgkmcnt(0)")
    for i in range(4): a(f"v_add_f32 v{ACC+12+i}, v{ACC+12+i}, v{140+i}")
    a(f"v_cndmask_b32 v8, {d(12)}, {d(13)}, s[56:57]\nv_cndmask_b32 v9, {d(14)}, {d(15)}, s[56:57]")
    build([4, 5, 6, 7])
    a(f"s_branch a_s_u\na_s_even:\nds_write_b128 v21, {vr(ACC+12,4)}\nds_write_b32 v22, v19 offset:256")
    lds_wait("a_s_e0", 20, 256, 8)
    for i in range(3): a(f"ds_read_b128 {vr(140+4*i,4)}, v138 offset:{1024*i}")
    a("v_cmp_eq_u32 vcc, 0, v0\ns_waitcnt lgkmcnt(0)")
    for i in range(12): a(f"v_add_f32 v{ACC+i}, v{ACC+i}, v{140+i}")
    build([0, 1, 2, 3])
    a(f"""
    v_cvt_pk_bf16_f32 v132, {d(0)}, v19
    s_mov_b64 exec, 0x7fff
    ds_write_b32 v133, v19 offset:4096   ; zeros behind both copies; the odd copy ends with K[0]
    s_mov_b64 exec, 0xffff
    v_cndmask_b32 v132, 0, v132, vcc
    ds_write_b32 v133, v132 offset:{4096 + KC}
    s_mov_b64 exec, -1
    a_s_u:
    ds_write_b32 v22, v19 offset:268
    s_setprio 0
    s_lshr_b32 s46, s3, 1
    s_lshl_b32 s46, s46, 2
    v_add_u32 v9, s46, v23
    """)
    lds_wait("a_s_uw", 9, 448, 8)
    for q in range(4):
        a(f"s_add_u32 s46, s45, {q}\ns_lshl_b32 exec_lo, -1, s46\ns_mov_b32 exec_hi, exec_lo")
        for es in range(2): a(f"ds_read_b128 {vr(CU+8*q+4*es,4)}, v16 offset:{es*2048 + (3-q)*32}")
        a("s_mov_b64 exec, -1")
        for es in range(2): a(f"ds_read_b128 {vr(CU+32+8*q+4*es,4)}, v16 offset:{es*2048 + 1024 + (3-q)*32}")
        if q == 2: a("s_waitcnt lgkmcnt(4)")
    lds_wait("a_s_o1", 20, 268, 8)
    stamp("Abuilt")
    steps = [(k, q, es) for k in range(4) for q in range(4) for es in range(2)]
    def frd(i):
        k, q, es = steps[i]; b = CF + 8*(i & 3); o = (6 - 2*q + es) * 8
        if q == 0 and es == 0 and k: a("v_subrev_u32 v17, 512, v17\nv_subrev_u32 v18, 512, v18")
        a(f"""ds_read2_b32 {vr(b,2)}, v17 offset0:{o} offset1:{o+1}
        ds_read2_b32 {vr(b+2,2)}, v17 offset0:{o+2} offset1:{o+3}
        ds_read2_b32 {vr(b+4,2)}, v18 offset0:{o} offset1:{o+1}
        ds_read2_b32 {vr(b+6,2)}, v18 offset0:{o+2} offset1:{o+3}""")
    for i in range(3): frd(i)
    for i, (k, q, es) in enumerate(steps):
        b = CF + 8*(i & 3); U0 = vr(CU+8*q+4*es, 4); U1 = vr(CU+32+8*q+4*es, 4)
        lo = vr(CA+4*k, 16); hi = vr(CA+16+4*k, 16)
        w = f"s_waitcnt lgkmcnt({4*min(2, 31-i)})"
        a(w)
        if q == 0 and es == 0 and k: a("s_nop 9")
        a(f"v_mfma_f32_32x32x16_bf16 {lo}, {U0}, {vr(b,4)}, {lo}")
        a(f"v_mfma_f32_32x32x16_bf16 {hi}, {U1}, {vr(b,4)}, {hi}")
        if i + 3 < 32: frd(i+3)
        a(f"v_mfma_f32_32x32x16_bf16 {hi}, {U0}, {vr(b+4,4)}, {hi}")
    stamp("Aconv")
    a(f"""
    ds_write_b32 v22, v19 offset:260
    s_lshl_b32 s46, s41, 12
    s_add_u32 s46, s46, s42
    v_lshl_add_u32 v16, v0, 4, s46
    s_lshl_b32 s46, s41, 13
    s_sub_u32 s46, 4096, s46
    v_add_u32 v17, s46, v16              ; partner's
    v_lshlrev_b32 v18, 4, v0
    s_lshl_b32 s44, s40, 12
    s_lshl_b32 s45, s41, 11
    s_add_u32 s44, s44, s45
    s_add_u32 s44, s44, {WS_Y}
    s_lshl_b32 s59, s40, 1
    s_add_u32 s59, s59, s41
    s_mul_i32 s59, s59, {FS}
    s_add_u32 s59, s59, {FL_Y}
    """)
    lds_wait("a_s_y1", 20, 260, 12)
    a("s_cmp_eq_u32 s41, 0\ns_cbranch_scc1 a_s_y0")
    for i in range(4): a(f"ds_write_b128 v16, {vr(CA+4*i,4)} offset:{1024*i}")
    a("ds_write_b32 v22, v19 offset:264\ns_waitcnt lgkmcnt(0)")
    for i in range(16): a(f"v_mov_b32 v{CA+i}, v{CA+16+i}")
    a("s_branch a_s_y2\na_s_y0:")
    for i in range(4): a(f"ds_write_b128 v16, {vr(CA+16+4*i,4)} offset:{1024*i}")
    a("ds_write_b32 v22, v19 offset:264\na_s_y2:")
    lds_wait("a_s_y3", 20, 264, 12)
    for i in range(4): a(f"ds_read_b128 {vr(CU+4*i,4)}, v17 offset:{1024*i}")
    a("s_waitcnt lgkmcnt(0)")
    for i in range(16): a(f"v_add_f32 v{CA+i}, v{CA+i}, v{CU+i}")
    for i in range(8): a(f"v_cvt_pk_bf16_f32 v{CF+i}, v{CA+2*i}, v{CA+2*i+1}")
    for g in range(2): a(f"buffer_store_dwordx4 {vr(CF+4*g,4)}, v18, s[36:39], s44 offen offset:{1024*g} sc1")
    stamp("Aend")
    a("s_mov_b32 s62, s59\ns_branch a_end1")
    a(f"""a_end:
    s_mov_b32 s62, 0
    a_end1:
    v_mov_b32 v116, v0
    s_lshl_b32 s44, s3, 2
    s_add_u32 s44, s44, {L_FL}
    v_mov_b32 v4, s44
    v_mov_b32 v5, 0
    ds_write_b32 v4, v5 offset:400
    s_cmp_ge_u32 s3, 8
    s_cbranch_scc1 a_uf""")

S = [0, 16]; O = 32; NEG = 48; P = 64; KF = [72, 76]; TF = [80, 84]; VF = [88, 96]; Q = 104; QL = 108; QH = 110
vK, vT, vV = 112, 113, 114
def rdK(buf, t): a(f"ds_read_b128 {vr(KF[buf],4)}, v{vK} offset:{1024*t}")
def rdT(buf, q): a(f"ds_read2st64_b64 {vr(TF[buf],4)}, v{vT} offset0:{2*q} offset1:{2*q+1}")
def rdV(buf, t):
    a(f"""s_mov_b64 exec, s[18:19]
    ds_read_b128 {vr(VF[buf],4)}, v{vV} offset:{t*1152}
    ds_read_b128 {vr(VF[buf]+4,4)}, v{vV} offset:{t*1152+576}
    s_mov_b64 exec, -1""")
def qk_tail(t, tb):
    tt = t & 3
    a(f"v_mfma_f32_32x32x8_bf16 {vr(S[t&1],16)}, {vr(TF[tb]+2*(tt>>1),2)}, {vr(QH if tt&1 else QL,2)}, {vr(S[t&1],16)}")
def pv(t, half): a(f"v_mfma_f32_32x32x16_bf16 {vr(O,16)}, {vr(VF[t&1]+4*half,4)}, {vr(P+4*half,4)}, {vr(O,16)}")
def ex(t, r0, r1):
    for r in range(r0, r1): a(f"v_exp_f32 v{S[t&1]+r}, v{S[t&1]+r}")
def cv(t, c0, c1):
    for c in range(c0, c1): a(f"v_cvt_pk_bf16_f32 v{P+c}, v{S[t&1]+2*c}, v{S[t&1]+2*c+1}")
def att_run(fast):
    tag = "b_f" if fast else "b_s"
    def qk_main(t): a(f"v_mfma_f32_32x32x16_bf16 {vr(S[t&1],16)}, {vr(KF[t&1],4)}, {vr(Q,4)}, " + ("0" if fast else vr(NEG,16)))
    rdK(0, 0); rdT(0, 0); rdK(1, 1); rdV(0, 0)
    if not fast:
        for i in range(16): a(f"v_mov_b32 v{O+i}, 0")
        for i in range(4): a(f"v_mov_b32 v{P+4+i}, 0")
    a("s_mov_b32 s26, 0\ns_waitcnt lgkmcnt(3)")
    qk_main(0); qk_tail(0, 0)
    a(f"s_nop 7\ns_nop 3\n.p2align 6\n{tag}_loop:")
    for t in range(8):
        if fast and t == 2:
            a(f"s_cmp_lg_u32 s26, 1\ns_cbranch_scc1 {tag}_np2\ns_setprio 2\n{tag}_np2:")
        if fast and t == 4:
            a(f"s_cmp_lg_u32 s26, 1\ns_cbranch_scc1 {tag}_nobar\ns_cmp_eq_u32 s62, 0\ns_cbranch_scc1 b_nyf\ns_waitcnt vmcnt(0)")
            flag_set("s62", 122)
            a(f"b_nyf:\ns_barrier\n{tag}_nobar:")
            a(f"s_cmp_lg_u32 s26, 6\ns_cbranch_scc1 {tag}_np1\ns_setprio 1\n{tag}_np1:")
        if fast and t == 5:
            a(f"""s_cmp_lg_u32 s26, 0
            s_cbranch_scc1 {tag}_nf1
            v_mov_b32 v121, {L_FL}
            {tag}_f1:
            ds_read_b96 v[124:126], v121 offset:464
            s_waitcnt lgkmcnt(0)
            v_or3_b32 v124, v124, v125, v126
            v_cmp_eq_u32 vcc, 0, v124
            s_cbranch_vccz {tag}_f1
            {tag}_nf1:""")
        if fast and t == 6:
            a(f"s_cmp_lg_u32 s26, 7\ns_cbranch_scc1 {tag}_np0\ns_setprio 0\n{tag}_np0:")
        def adv():
            if t == 7:
                a(f"""v_add_u32 v{vK}, 8192, v{vK}
                v_add_u32 v{vT}, 2048, v{vT}
                v_add_u32 v{vV}, 9216, v{vV}
                s_add_u32 s26, s26, 1
                s_cmp_lt_u32 s26, 8""")
        def rK():
            rdK(t&1, t+2)
            if (t & 3) == 1: rdT(((t>>2)+1)&1, (t>>2)+1)
        M1 = lambda: qk_main(t+1); M2 = lambda: pv(t-1, 1); M3 = lambda: qk_tail(t+1, ((t+1)>>2)&1); M4 = lambda: pv(t, 0)
        rV = lambda: rdV((t+1)&1, t+1)
        E = lambda i, j: ex(t, i, j); C = lambda i, j: cv(t, i, j)
        a("s_waitcnt lgkmcnt(0)")
        o = OPT.get("ord", "a")
        if o == "a":
            M1(); rK(); E(0,4); M2(); rV(); E(4,8); C(0,4); M3(); E(8,12); M4(); adv(); E(12,16); C(4,8)
        elif o == "b":
            M1(); rK(); M2(); rV(); E(0,8); C(0,4); M3(); E(8,9); M4(); adv(); E(9,16); C(4,8)
        elif o == "c":
            M1(); rK(); E(0,5); M2(); rV(); E(5,8); C(0,4); M3(); E(8,13); M4(); adv(); E(13,16); C(4,8)
        elif o == "d":
            M1(); rK(); E(0,4); C(0,1); M2(); rV(); E(4,8); C(1,3); M3(); E(8,12); C(3,5); E(12,13); M4(); adv(); E(13,16); C(5,8)
        elif o == "e":
            M1(); rK(); M2(); rV(); M3(); E(0,8); C(0,4); E(8,10); M4(); adv(); E(10,16); C(4,8)
        elif o == "f":
            M1(); E(0,2); rK(); E(2,4); M2(); E(4,6); rV(); E(6,8); C(0,4); M3(); E(8,12); M4(); adv(); E(12,16); C(4,8)
    a(f"s_cbranch_scc1 {tag}_loop")
    if fast: stamp("Bloop")
    a("s_nop 1")
    pv(7, 1)

def phaseB():
    a(f"""
    s_cmp_ge_u32 s3, 8
    s_cbranch_scc1 b_aux
    s_and_b32 s4, s2, 31                 ; head
    s_lshr_b32 s5, s2, 5
    s_lshl_b32 s5, s5, 3
    s_add_u32 s5, s5, s3
    s_and_b32 s7, s4, 3
    v_lshlrev_b32 v{vK}, 4, v116
    v_and_b32 v117, 31, v116
    v_lshlrev_b32 v119, 4, v116
    s_lshl_b32 s8, s3, 10
    s_add_u32 s8, s8, {L_Q}
    v_add_u32 v120, s8, v{vK}
    s_lshl_b32 s8, s3, 8
    s_add_u32 s8, s8, {L_Q + 8192}
    v_lshl_add_u32 v118, v117, 3, s8
    """)
    for i in range(16): a(f"v_mov_b32 v{O+i}, 0")
    for i in range(4): a(f"v_mov_b32 v{P+4+i}, 0")
    a(f"""v_and_b32 v121, 27, v116
    v_cmp_eq_u32 vcc, 18, v121
    v_mov_b32 v121, 0x3f803f80
    s_nop 0
    v_cndmask_b32 v{VF[0]}, 0, v121, vcc""")
    for i in range(1, 16): a(f"v_mov_b32 v{VF[0]+i}, v{VF[0]}")
    a(f"""
    v_lshlrev_b32 v{vT}, 3, v116
    v_add_u32 v{vT}, {L_KT}, v{vT}
    v_lshrrev_b32 v121, 5, v116
    v_mul_u32_u24 v121, 288, v121
    v_lshl_add_u32 v{vV}, v117, 4, v121
    v_add_u32 v{vV}, {L_V}, v{vV}
    s_mov_b32 s18, 0x3ffff
    s_mov_b32 s19, 0x3ffff
    s_mov_b32 s21, {f2u(18**-0.5 * 1.4426950408889634):#x}
    v_cmp_lt_u32 s[22:23], 31, v116
    s_setprio 3
    """)
    stamp("Bflag")
    a(f"""
    s_barrier
    ds_read_b128 {vr(Q,4)}, v120
    ds_read_b64 {vr(QL,2)}, v118
    s_waitcnt lgkmcnt(0)
    s_barrier
    """)
    for r in list(range(Q, Q+4)) + [QL, QL+1]:
        a(f"""v_lshlrev_b32 v121, 16, v{r}
        v_and_b32 v{r}, 0xffff0000, v{r}
        v_mul_f32 v121, s21, v121
        v_mul_f32 v{r}, s21, v{r}
        v_cvt_pk_bf16_f32 v{r}, v121, v{r}""")
    a(f"""
    s_cmp_eq_u32 s7, 1
    s_cselect_b32 vcc_lo, -1, 0
    s_mov_b32 vcc_hi, 0
    v_cndmask_b32 v{Q}, v{Q}, 0, vcc
    s_cmp_eq_u32 s7, 2
    s_cselect_b32 vcc_hi, -1, 0
    s_mov_b32 vcc_lo, 0
    v_cndmask_b32 v{Q+3}, v{Q+3}, 0, vcc
    s_cmp_eq_u32 s7, 3
    s_cselect_b64 vcc, -1, 0
    v_cndmask_b32 v{QL}, v{QL}, 0, vcc
    s_cmp_eq_u32 s7, 0
    s_cselect_b64 vcc, -1, 0
    v_cndmask_b32 v{QL+1}, v{QL+1}, 0, vcc
    v_cndmask_b32 v{QH}, 0, v{QL}, s[22:23]
    v_cndmask_b32 v{QH+1}, 0, v{QL+1}, s[22:23]
    v_cndmask_b32 v{QL}, v{QL}, 0, s[22:23]
    v_cndmask_b32 v{QL+1}, v{QL+1}, 0, s[22:23]
    """)
    stamp("Bgo")
    att_run(True)
    a(f"""
    s_mul_i32 s10, s5, {O_T}
    s_add_u32 s10, s10, {WS_O}
    s_lshl_b32 s11, s4, 10
    s_add_u32 s11, s11, s10
    s_lshl_b32 s12, s4, 7
    s_add_u32 s12, s12, s10
    s_add_u32 s12, s12, 32768
    s_lshl_b32 s59, s5, 5
    s_add_u32 s59, s59, s4
    s_mul_i32 s59, s59, {FS}
    s_add_u32 s59, s59, {FL_B}
    s_mov_b32 s27, {f2u(2.0**100):#x}
    v_lshlrev_b32 v127, 2, v116
    s_nop 1
    v_max3_f32 v121, abs(v{O}), abs(v{O+1}), abs(v{O+2})
    v_max3_f32 v121, abs(v{O+3}), abs(v{O+4}), v121
    v_max3_f32 v121, abs(v{O+5}), abs(v{O+6}), v121
    v_max3_f32 v121, abs(v{O+7}), abs(v{O+8}), v121
    v_add_f32 v122, v{O}, v{O+1}
    v_add_f32 v123, v{O+2}, v{O+3}
    v_add_f32 v124, v{O+4}, v{O+5}
    v_add_f32 v125, v{O+6}, v{O+7}
    v_add_f32 v126, v{O+8}, v{O+9}
    v_add_f32 v122, v122, v123
    v_add_f32 v124, v124, v125
    v_add_f32 v122, v122, v126
    v_add_f32 v122, v122, v124
    v_max3_f32 v121, abs(v{O+9}), v{O+10}, v121
    v_cmp_ngt_f32 vcc, s27, v121
    v_cmp_nle_f32 s[28:29], 1.0, v{O+10}
    v_cmp_u_f32 s[30:31], v122, v122
    s_or_b64 vcc, vcc, s[28:29]
    s_or_b64 vcc, vcc, s[30:31]
    s_cbranch_vccnz b_slow
    b_fin:
    v_rcp_f32 v121, v{O+10}
    s_nop 0
    """)
    for r in range(10): a(f"v_mul_f32 v{O+r}, v{O+r}, v121")
    for c in range(5): a(f"v_cvt_pk_bf16_f32 v{P+c}, v{O+2*c}, v{O+2*c+1}")
    a(f"""
    buffer_store_dwordx4 {vr(P,4)}, v119, s[36:39], s11 offen sc1
    s_mov_b32 exec_hi, 0
    buffer_store_dword v{P+4}, v127, s[36:39], s12 offen sc1
    s_mov_b32 exec_hi, -1
    v_mov_b32 v0, v116
    s_waitcnt lgkmcnt(0)
    s_barrier
    s_waitcnt vmcnt(0)
    """)
    stamp("Back")
    flag_set("s59", 2)
    a("s_branch c_start")
    a(f"""
    b_aux:
    s_and_b32 s4, s2, 31
    s_mul_i32 s6, s4, 9
    s_lshr_b32 s6, s6, 2
    v_mov_b32 v8, {L_FL}
    s_setprio 3
    s_cmp_lg_u32 s3, 11
    s_cbranch_scc1 b_nopoll
    s_mul_i32 s9, s4, 18
    v_lshrrev_b32 v7, 5, v116
    v_lshl_add_u32 v9, v7, 1, s6
    v_add_u32 v10, 72, v9
    v_lshrrev_b32 v10, 3, v10
    v_and_b32 v11, 31, v116
    v_lshl_add_u32 v10, v10, 5, v11
    v_mul_u32_u24 v120, {FS}, v10
    v_mul_u32_u24 v10, 17, v7
    v_add_u32 v10, s9, v10
    v_add_u32 v10, 1152, v10
    v_lshrrev_b32 v10, 6, v10
    v_lshl_add_u32 v10, v10, 5, v11
    v_mul_u32_u24 v121, {FS}, v10
    v_lshrrev_b32 v10, 3, v9
    s_lshr_b32 s9, s2, 5
    s_lshl_b32 s9, s9, 2
    v_and_b32 v11, 3, v116
    v_add_u32 v11, s9, v11
    v_lshl_add_u32 v10, v10, 5, v11
    v_mul_u32_u24 v122, {FS}, v10
    s_cmp_ge_u32 s2, 224
    s_cselect_b32 s9, 16, 0
    v_add_u32 v9, s9, v8
    b_pw:
    s_sleep 1
    ds_read_b128 v[12:15], v9 offset:416
    s_waitcnt lgkmcnt(0)
    v_or_b32 v12, v12, v13
    v_or3_b32 v12, v12, v14, v15
    v_cmp_eq_u32 vcc, 0, v12
    s_cbranch_vccz b_pw
    """)
    stamp("Xpw")
    flag_poll("b_pa", 3, 120)
    stamp("Xpoll")
    a(f"""
    v_mov_b32 v9, 0
    ds_write_b32 v8, v9 offset:244
    b_nopoll:
    s_bitcmp1_b32 s3, 0
    s_cbranch_scc1 b_ldv
    s_bfe_u32 s7, s4, 0x10001
    s_add_u32 s8, s6, s7
    s_lshl_b32 s8, s8, 9
    s_lshl_b32 s9, s6, 9
    s_mul_i32 s10, s7, {1024 - 8}
    s_sub_u32 s9, s9, s10
    s_add_u32 s9, s9, 1024
    v_lshlrev_b32 v118, 4, v116
    v_lshrrev_b32 v119, 1, v116
    v_lshlrev_b32 v119, 4, v119
    v_and_b32 v120, 1, v116
    v_lshl_add_u32 v119, v120, 2, v119
    s_lshr_b32 s15, s2, 5
    s_mul_i32 s15, s15, {8*QK_T}
    s_cmp_eq_u32 s3, 10
    s_cbranch_scc1 b_ldt
    """)
    def zflag(off):
        a(f"""s_mov_b32 s13, m0
        s_mov_b32 m0, {L_FL + off}
        v_mov_b32 v13, 0x7ffffff0
        s_mov_b64 exec, 1
        buffer_load_dword v13, s[36:39], 0 offen lds
        s_mov_b64 exec, -1
        s_mov_b32 m0, s13""")
    def stream(tag, op, vreg, sbase, lq, lk, step, fl):
        a(f"s_add_u32 s15, s15, {sbase}\ns_add_u32 s16, {sbase}, {72*512}\ns_mov_b32 m0, {lq}\ns_mov_b32 s12, 8")
        lds_wait(f"{tag}_go", 8, 244, 9, True)
        def loop(t, sreg):
            a(f"""{t}:
            {op} v{vreg}, s[36:39], {sreg} offen sc1 lds
            s_add_u32 m0, m0, {step}
            s_add_u32 {sreg}, {sreg}, {QK_T}
            s_sub_u32 s12, s12, 1
            s_cmp_lg_u32 s12, 0
            s_cbranch_scc1 {t}""")
        loop(f"{tag}_q", "s15")
        a(f"s_mov_b32 m0, {lk}\ns_mov_b32 s12, 8")
        loop(f"{tag}_1", "s16")
        stamp("Xiss")
        a("s_mov_b32 s12, 8\ns_waitcnt vmcnt(0)")
        stamp("Xland")
        a("s_barrier\ns_barrier")
        loop(f"{tag}_2", "s16")
        zflag(fl)
        a("s_mov_b32 s12, 48")
        loop(f"{tag}_3", "s16")
        a("s_branch b_lend")
    stream("b_k", "buffer_load_dwordx4", 118, "s8", L_Q, 0, 1024, 464)
    a("b_ldt:")
    stream("b_t", "buffer_load_dword", 119, "s9", L_Q + 8192, L_KT, 256, 468)
    a(f"""
    b_ldv:
    s_mov_b32 s10, {9216 - 288}
    """)
    for p in range(9):
        a(f"""v_add_u32 v10, {64*p}, v116
        v_mul_u32_u24 v11, 3641, v10
        v_lshrrev_b32 v11, 16, v11
        v_mul_lo_u32 v11, v11, s10
        v_lshl_add_u32 v{24+p}, v10, 4, v11""")
    a(f"""
    s_bfe_u32 s9, s3, 0x10001
    s_mul_i32 s8, s9, {32*9216}
    s_mul_i32 s10, s4, 288
    s_add_u32 s8, s8, s10
    s_add_u32 s8, s8, {WS_V}
    s_mul_i32 s9, s9, 9216
    s_add_u32 m0, s9, {L_V}
    s_mov_b32 s12, 0
    """)
    a("s_cmp_eq_u32 s3, 9\ns_cbranch_scc1 b_v_go\ns_barrier\ns_barrier\ns_branch b_v")
    lds_wait("b_v_go", 8, 244, 9, True)
    a("b_v:")
    for p in range(9): a(f"buffer_load_dwordx4 v{24+p}, s[36:39], s8 offen sc1 lds\ns_add_u32 m0, m0, {1024 if p < 8 else 1024 + 9216}\ns_nop 0")
    a(f"""
    s_add_u32 s8, s8, {64*9216}
    s_cmp_lg_u32 s12, 0
    s_cbranch_scc1 b_v1
    s_cmp_eq_u32 s3, 9
    s_cbranch_scc1 b_v0
    """)
    zflag(472)
    a(f"""
    s_branch b_v1
    b_v0:
    s_waitcnt vmcnt(0)
    s_barrier
    s_barrier
    b_v1:
    s_add_u32 s12, s12, 1
    s_cmp_lt_u32 s12, 4
    s_cbranch_scc1 b_v
    b_lend:
    s_waitcnt vmcnt(0)
    s_barrier
    """)
    srd(28, 94, 663552)
    srd(32, 96, 4718592)
    a(f"""
    s_lshr_b32 s12, s2, 3
    s_lshl_b32 s12, s12, 2
    s_add_u32 s12, s12, s3
    s_sub_u32 s12, s12, 8
    s_lshl_b32 s12, s12, 13
    v_lshlrev_b32 v121, 7, v116
    buffer_load_dword v115, v121, s[28:31], s12 offen
    s_cmp_lg_u32 s3, {99 if ("nossm" in OPT or "noconv" in OPT) else 9}
    s_cbranch_scc1 b_noy
    s_mov_b32 s4, s2
    v_lshrrev_b32 v10, 3, v116
    v_and_b32 v9, 7, v116
    v_lshlrev_b32 v11, 12, v10
    v_lshl_add_u32 v11, v9, 4, v11
    v_xor_b32 v12, v10, v9
    v_lshlrev_b32 v12, 4, v12
    v_lshl_add_u32 v12, v9, 10, v12
    v_add_u32 v12, {L_BOUNCE}, v12
    s_mov_b32 s50, 0x05040100
    s_mov_b32 s51, 0x07060302
    """)
    for p in range(8): a(f"v_xor_b32 v{24+p}, {16*p}, v11")
    a(f"""
    b_y:
    s_lshr_b32 s5, s4, 5
    s_and_b32 s6, s4, 31                 ; sub
    s_lshl_b32 s7, s5, 7
    s_lshr_b32 s8, s6, 4
    s_add_u32 s7, s7, s8
    v_lshl_add_u32 v120, v116, 1, s7
    v_mul_u32_u24 v120, {FS}, v120
    v_add_u32 v120, {FL_Y}, v120
    """)
    flag_poll("b_py", 1, 120)
    a(f"""
    s_lshl_b32 s7, s5, 18
    s_lshl_b32 s8, s6, 7
    s_add_u32 s7, s7, s8
    s_add_u32 s7, s7, {WS_Y}
    s_mov_b32 m0, {L_BOUNCE}
    """)
    for p in range(8):
        a(f"s_nop 0\nbuffer_load_dwordx4 v{24+p}, s[36:39], s7 offen sc1 lds\ns_add_u32 m0, m0, 1024\ns_add_u32 s7, s7, 32768")
    a(f"""
    s_and_b32 s8, s6, 3
    s_lshl_b32 s8, s8, 3
    s_bfe_u32 s9, s6, 0x10002
    s_lshl_b32 s9, s9, 7
    s_add_u32 s8, s8, s9
    s_lshr_b32 s9, s6, 3
    s_lshl_b32 s9, s9, 9
    s_add_u32 s8, s8, s9
    v_add_u32 v17, s8, v10
    v_mul_u32_u24 v17, 2304, v17
    v_lshl_add_u32 v17, v9, 4, v17
    s_lshl_b32 s8, s5, 7
    s_add_u32 s8, s8, 1152
    s_waitcnt vmcnt(0)
    """)
    for j in range(8): a(f"ds_read_b128 {vr(32+4*j,4)}, v12 offset:{j*128}")
    a("s_waitcnt lgkmcnt(0)")
    transpose8(32, 64, 50, 51)
    for c in range(8):
        a(f"s_add_u32 s9, s8, {((c&3)*32 + (c>>2)*256)*2304}\nbuffer_store_dwordx4 {vr(64+4*c,4)}, v17, s[32:35], s9 offen {OPT.get('sty','sc1')}")
    a(f"""
    s_add_u32 s4, s4, 256
    s_cmp_lt_u32 s4, 288
    s_cbranch_scc1 b_y
    b_noy:
    s_setprio 0
    v_mov_b32 v0, v116
    s_lshr_b32 s5, s2, 5                 ; tn
    s_mul_i32 s17, s5, 192
    """)
    for t in range(3):
        a(f"""v_add_u32 v5, {64*t}, v0
        v_mul_u32_u24 v6, 5462, v5
        v_lshrrev_b32 v6, 16, v6             ; row
        v_mul_u32_u24 v7, 12, v6
        v_sub_u32 v7, v5, v7
        v_lshl_add_u32 v7, v7, 4, s17
        v_mul_u32_u24 v8, 1152, v6
        v_add_u32 v{12+t}, v8, v7
        v_and_b32 v9, 4, v6
        v_lshrrev_b32 v10, 3, v6
        v_lshl_add_u32 v9, v10, 1, v9
        v_bfe_u32 v10, v6, 1, 1
        v_add_u32 v9, v9, v10
        v_mul_u32_u24 v9, 18, v9
        v_and_b32 v10, 1, v6
        v_add3_u32 v9, v9, v10, 16
        v_mul_u32_u24 v9, 1152, v9
        v_add_u32 v{16+t}, v9, v7""")
    a(f"""
    s_sub_u32 s8, s3, 8
    s_mul_i32 s10, s8, {9*20736}
    s_mul_i32 m0, s8, {9*3072}
    s_mov_b32 s12, 20736
    s_mov_b32 s13, 0
    s_barrier
    s_cmp_ge_u32 s2, 192
    s_cbranch_scc1 c_idle
    b_w:
    s_cmp_lg_u32 s13, 5
    s_cbranch_scc1 b_w1
    s_cmp_lg_u32 s8, 3
    s_cbranch_scc1 b_w1
    v_mov_b32 v12, v16
    v_mov_b32 v13, v17
    v_mov_b32 v14, v18
    s_mov_b32 s10, 0
    s_mov_b32 s12, {8*20736}
    b_w1:
    buffer_load_dwordx4 v12, s[28:31], s10 offen lds
    s_add_u32 m0, m0, 1024
    s_add_u32 s13, s13, 1
    buffer_load_dwordx4 v13, s[28:31], s10 offen lds
    s_add_u32 m0, m0, 1024
    s_cmp_lt_u32 s13, 9
    buffer_load_dwordx4 v14, s[28:31], s10 offen lds
    s_cbranch_scc0 c_start
    s_add_u32 m0, m0, 1024
    s_add_u32 s10, s10, s12
    s_branch b_w
    """)

def phaseC():
    a(f"""
    c_start:
    s_cmp_ge_u32 s2, 192
    s_cbranch_scc1 k_done2
    """)
    srd(32, 96, 4718592)
    a(f"""
    s_and_b32 s4, s2, 7
    s_bfe_u32 s6, s2, 0x20003
    s_lshl_b32 s7, s4, 2
    s_add_u32 s7, s7, s6                 ; tm
    s_lshr_b32 s5, s2, 5                 ; tn
    s_mul_i32 s8, s3, 43
    s_lshr_b32 s8, s8, 7                 ; w/3
    s_mul_i32 s9, s8, 3
    s_sub_u32 s9, s3, s9                 ; tb = w%3
    s_lshr_b32 s13, s8, 1                ; kh
    s_and_b32 s14, s8, 1                 ; ta
    v_lshrrev_b32 v5, 5, v0
    v_bfe_u32 v6, v0, 2, 2
    v_lshl_add_u32 v6, v5, 2, v6
    v_mul_u32_u24 v4, 192, v6
    v_bfe_u32 v6, v0, 4, 1
    v_lshl_add_u32 v4, v6, 5, v4
    v_and_b32 v6, 3, v0
    v_lshl_add_u32 v4, v6, 3, v4
    s_lshl_b32 s17, s9, 6
    s_mul_i32 s18, s13, {18*3072}
    s_add_u32 s17, s17, s18
    v_add_u32 v4, s17, v4
    v_lshlrev_b32 v2, 4, v0
    s_mul_i32 s17, s8, {18*1024}
    v_add_u32 v3, s17, v2
    v_and_b32 v11, 31, v0
    v_lshlrev_b32 v11, 2, v11
    v_lshl_add_u32 v11, v5, 9, v11
    v_add_u32 v11, s17, v11
    v_add_u32 v11, {14*1024}, v11
    s_lshl_b32 s15, s7, 1
    s_add_u32 s15, s15, s14
    s_mul_i32 s16, s15, {O_T}
    s_mul_i32 s18, s13, {18*1024}
    s_add_u32 s16, s16, s18
    s_lshl_b32 s18, s9, 10
    s_add_u32 s16, s16, s18
    s_add_u32 s16, s16, {WS_O}
    s_add_u32 s17, s17, s18
    s_mul_i32 s18, s7, {64*FS}
    s_add_u32 s18, s18, {FL_B}
    v_mul_u32_u24 v120, {FS}, v0
    v_add_u32 v120, s18, v120
    s_cmp_lt_u32 s3, 8
    s_cbranch_scc1 c_nw
    s_waitcnt vmcnt(0)
    c_nw:
    s_barrier
    """)
    stamp("CW")
    a("s_cmp_lg_u32 s3, 8\ns_cbranch_scc1 c_ni")
    poll_issue(1, 120)
    a("c_ni:")
    for k in range(18):
        a(f"ds_read_b64_tr_b16 {vr(32+4*k,2)}, v4 offset:{k*3072}\nds_read_b64_tr_b16 {vr(34+4*k,2)}, v4 offset:{k*3072+8*192}")
        if k % 4 == 3: a("s_waitcnt lgkmcnt(6)")
    a("s_cmp_lg_u32 s3, 8\ns_cbranch_scc1 c_np")
    flag_poll("c_pb", 1, 120, issued=True)
    a("c_np:\ns_mov_b32 m0, s17\ns_waitcnt lgkmcnt(0)\ns_barrier")
    stamp("Cflag")
    for i in range(6):
        a("buffer_load_dwordx4 v2, s[36:39], s16 offen sc1 lds")
        if i < 5: a("s_add_u32 m0, m0, 3072\ns_add_u32 s16, s16, 3072")
    a(f"""
    s_mul_i32 s18, s3, 2048
    s_add_u32 s18, s18, 81920
    v_add_u32 v6, s18, v2
    s_mov_b32 s19, {-6*2048 & 0xffffffff:#x}
    s_cmp_eq_u32 s13, 0
    s_cselect_b32 s19, {6*2048}, s19
    v_add_u32 v7, s19, v6                ; partner's
    v_mul_u32_u24 v5, {8*2304}, v5
    v_and_b32 v8, 31, v0
    v_lshl_add_u32 v5, v8, 1, v5
    s_mul_i32 s17, s15, {32*2304}
    s_mul_i32 s18, s5, 192
    s_add_u32 s17, s17, s18
    s_lshl_b32 s18, s9, 6
    s_add_u32 s17, s17, s18
    s_mul_i32 s18, s13, {16*2304}
    s_add_u32 s17, s17, s18
    """)
    for c in range(3):
        a(f"s_waitcnt vmcnt({4-2*c})\ns_barrier")
        if c == 0: stamp("Cfirst")
        if c < 2:
            for k in range(6): a(f"ds_read_b128 {vr(104+4*k,4)}, v3 offset:{(6*c+k)*1024}")
        else:
            for k in range(2): a(f"ds_read_b128 {vr(104+4*k,4)}, v3 offset:{(6*c+k)*1024}")
            a("s_cmp_eq_u32 s13, 1\ns_cbranch_scc1 c_tl")
            for k in range(2, 6): a(f"ds_read_b128 {vr(104+4*k,4)}, v3 offset:{(6*c+k)*1024}")
            a("s_branch c_tm\nc_tl:")
            for k in range(2, 6):
                a(f"""ds_read2_b32 {vr(104+4*k,2)}, v11 offset0:0 offset1:32
                ds_read2_b32 {vr(106+4*k,2)}, v11 offset0:64 offset1:96
                v_add_u32 v11, 1024, v11""")
            a("s_waitcnt lgkmcnt(0)\nc_tm:")
        for k in range(6):
            a(f"s_waitcnt lgkmcnt({5-k})")
            a(f"v_mfma_f32_32x32x16_bf16 v[16:31], {vr(104+4*k,4)}, {vr(32+4*(6*c+k),4)}, " + ("0" if c == 0 and k == 0 else "v[16:31]"))
    stamp("Cmfma")
    a("""
    s_nop 10
    s_cmp_eq_u32 s13, 0
    s_cbranch_scc1 c_x0
    ds_write_b128 v6, v[16:19]
    ds_write_b128 v6, v[20:23] offset:1024
    s_waitcnt lgkmcnt(0)
    """)
    for r in range(8): a(f"v_mov_b32 v{16+r}, v{24+r}")
    a("""s_branch c_x1
    c_x0:
    ds_write_b128 v6, v[24:27]
    ds_write_b128 v6, v[28:31] offset:1024
    c_x1:
    s_waitcnt lgkmcnt(0)
    s_barrier
    ds_read_b128 v[32:35], v7
    ds_read_b128 v[36:39], v7 offset:1024
    s_waitcnt lgkmcnt(0)""")
    for r in range(8): a(f"v_add_f32 v{16+r}, v{16+r}, v{32+r}")
    for c in range(4): a(f"v_cvt_pk_bf16_f32 v{40+c}, v{16+2*c}, v{16+2*c+1}")
    for c in range(4):
        a(f"""s_add_u32 s18, s17, {2*c*2304}
        buffer_store_short v{40+c}, v5, s[32:35], s18 offen {OPT.get('sto','')}
        buffer_store_short_d16_hi v{40+c}, v5, s[32:35], s18 offen offset:2304 {OPT.get('sto','')}""")
    if DIAG:
        a(f"""s_cmp_lg_u32 s2, {OPT.get("dwg", 0)}
        s_cbranch_scc1 k_done2
        s_cmp_lg_u32 s3, {OPT.get("dw", 4)}
        s_cbranch_scc1 k_done2
        s_waitcnt vmcnt(0)
        s_memrealtime s[74:75]
        s_waitcnt lgkmcnt(0)
        {"s_mov_b32 s72, s74" if DIAG == "end" else "s_mov_b32 s72, s70" if DIAG == "none" else ""}
        s_sub_u32 s76, s72, s70
        s_min_u32 s76, s76, 10000
        s_lshl_b32 s76, s76, 2
        dg_spin:
        s_memrealtime s[78:79]
        s_waitcnt lgkmcnt(0)
        s_sub_u32 s77, s78, s74
        s_cmp_lt_u32 s77, s76
        s_cbranch_scc1 dg_spin""")
    a("k_done2:")
    stamp_out()
    a(f"""k_done:
    s_endpgm
    c_idle:
    s_cmp_lg_u32 s2, 255
    s_cbranch_scc1 k_done2
    s_cmp_lg_u32 s3, 8
    s_cbranch_scc1 k_done2
    v_lshrrev_b32 v120, 5, v116
    v_lshlrev_b32 v120, 8, v120
    v_and_b32 v121, 31, v116
    v_add_u32 v120, v120, v121
    v_mul_u32_u24 v120, {FS}, v120
    v_add_u32 v120, {FL_B}, v120
    v_add_u32 v121, {512*FS}, v120
    v_add_u32 v122, {1024*FS}, v120
    v_add_u32 v123, {1536*FS}, v120
    """)
    flag_poll("c_pe", 4, 120)
    a(f"s_mov_b32 s6, {FL_E}")
    flag_set("s6", 2)
    a("s_branch k_done2")
    a(f"""
    b_slow:
    v_subrev_u32 v{vK}, 65536, v{vK}
    v_subrev_u32 v{vT}, 16384, v{vT}
    v_subrev_u32 v{vV}, {8*9216}, v{vV}
    s_mov_b32 s26, 0
    v_mov_b32 v121, 0xff800000
    s_waitcnt lgkmcnt(0)
    b_mx:
    """)
    rdT(0, 0)
    for t in range(4):
        rdK(0, t)
        a("s_waitcnt lgkmcnt(0)")
        a(f"v_mfma_f32_32x32x16_bf16 {vr(S[0],16)}, {vr(KF[0],4)}, {vr(Q,4)}, 0")
        a(f"v_mfma_f32_32x32x8_bf16 {vr(S[0],16)}, {vr(TF[0]+2*(t>>1),2)}, {vr(QH if t&1 else QL,2)}, {vr(S[0],16)}")
        a("s_nop 15")
        for r in range(8): a(f"v_max3_f32 v121, v{S[0]+2*r}, v{S[0]+2*r+1}, v121")
    a(f"""
    v_add_u32 v{vK}, 4096, v{vK}
    v_add_u32 v{vT}, 1024, v{vT}
    s_add_u32 s26, s26, 1
    s_cmp_lt_u32 s26, 16
    s_cbranch_scc1 b_mx
    v_subrev_u32 v{vK}, 65536, v{vK}
    v_subrev_u32 v{vT}, 16384, v{vT}
    v_mov_b32 v122, v121
    s_nop 1
    v_permlane32_swap_b32 v121, v122
    s_nop 1
    v_max_f32 v121, v121, v122
    """)
    for i in range(16): a(f"v_sub_f32 v{NEG+i}, 0, v121")
    att_run(False)
    a("s_nop 15\ns_branch b_fin")

def main():
    ref = open("concat_heads__mha_block__ssm_conv_s4d__prompt.s.ref").read().split("\n")
    head = [l for l in ref if l.startswith(";") and "@launch" not in l and "Override launch" not in l and "grid=ceil" not in l]
    head += ["; @launch grid=(256,1,1) block=(768,1,1) lds=163840"]
    a(f".text\n.globl {KN}\n.p2align 8\n.type {KN},@function\n{KN}:")
    if INSTR:
        for i in range(70, 90): a(f"s_mov_b32 s{i}, 0")
        a("s_memtime s[70:71]\ns_memrealtime s[86:87]")
    if DIAG: a("s_memrealtime s[70:71]")
    phaseA(); phaseB(); phaseC()
    desc = f""".section .rodata,"a"
.p2align 6
.amdhsa_kernel {KN}
  .amdhsa_next_free_vgpr 168
  .amdhsa_next_free_sgpr 102
  .amdhsa_accum_offset 168
  .amdhsa_group_segment_fixed_size 0
  .amdhsa_kernarg_size 104
  .amdhsa_user_sgpr_count 2
  .amdhsa_user_sgpr_kernarg_segment_ptr 1
  .amdhsa_system_sgpr_workgroup_id_x 1
.end_amdhsa_kernel
"""
    out = "\n".join(head) + "\n.amdgcn_target \"amdgcn-amd-amdhsa--gfx950\"\n" + a.text() + desc
    path = sys.argv[1] if len(sys.argv) > 1 and sys.argv[1].endswith(".s") else "concat_heads__mha_block__ssm_conv_s4d__prompt.s"
    open(path, "w").write(out)
main()
```

```python
import sys, struct
KN = "concat_heads__mha_block__ssm_conv_s4d__prompt_kernel"
def f2u(x): return struct.unpack("<I", struct.pack("<f", x))[0]
INSTR = "instr" in sys.argv
OPT = dict(x.split("=") for x in sys.argv if "=" in x)

WS_QK = 0; QK_T = 73728
WS_V = WS_QK + 64 * QK_T
WS_O = WS_V + 256 * 9216; O_T = 36864
WS_U = WS_O + 64 * O_T
WS_Y = WS_U + 576 * 4096
WS_FL = WS_Y + 576 * 4096
FS = 128
FL_A = 0; FL_S = 864 * FS; FL_Y = FL_S + 288 * FS; FL_B = FL_Y + 1152 * FS; FL_E = FL_B + 2048 * FS
WS_END = WS_FL + FL_E + FS
WS_ST = 24 << 20
L_FL = 155648
KC = 4156
KAREA = 8448
L_KT = 65536; L_V = 81920; L_BOUNCE = 155648; L_Q = 102400

class A:
    def __init__(s): s.l = []
    def __call__(s, t):
        for line in t.strip("\n").split("\n"):
            q = line.strip()
            if not q: continue
            s.l.append(q if q.endswith(":") else "    " + q)
    def text(s): return "\n".join(s.l) + "\n"
a = A()
def vr(b, n): return f"v[{b}:{b+n-1}]"
def srd(d, lo, size):
    a(f"""s_mov_b32 s{d}, s{lo}
    s_mov_b32 s{d+1}, s{lo+1}
    s_mov_b32 s{d+2}, {size}
    s_mov_b32 s{d+3}, 0x20000""")

SSETS = {"1": ["Aend", "Aack", "Bflag", "Bgo", "Bloop", "Back"],
         "2": ["Bloop", "Back", "CW", "Cflag", "Cfirst", "Cmfma"],
         "4": ["Aack", "Xpw", "Xpoll", "Xiss", "Xland", "Bgo"],
         "3": ["Afirst", "Akgen", "Abuilt", "Aconv", "Aend", "Aack"]}
DIAG = OPT.get("diag")
def stamp(name):
    if DIAG == name: a("s_memrealtime s[72:73]")
    if INSTR and name in SSETS[OPT.get("sset", "1")]:
        i = SSETS[OPT.get("sset", "1")].index(name) + 1
        a(f"s_memtime s[{70+2*i}:{71+2*i}]")
def stamp_out():
    if not INSTR: return
    a(f"""s_waitcnt vmcnt(0)
    s_memtime s[84:85]
    s_memrealtime s[88:89]
    s_waitcnt lgkmcnt(0)
    s_mov_b64 exec, 1
    s_lshl_b32 s90, s2, 4
    s_add_u32 s90, s90, s3
    s_lshl_b32 s90, s90, 6
    s_add_u32 s90, s90, {WS_ST}
    v_mov_b32 v166, s90""")
    for i in range(10):
        a(f"v_mov_b32 v167, s{70+2*i}\nglobal_store_dword v166, v167, s[24:25] offset:{4*i}")

def transpose8(I, O, sLO, sHI):
    for c in range(8):
        for t in range(4):
            a(f"v_perm_b32 v{O+4*c+t}, v{I+4*(2*t+1)+(c>>1)}, v{I+4*(2*t)+(c>>1)}, s{sHI if c&1 else sLO}")

def flag_set(soff, t):
    a(f"""v_mov_b32 v{t}, {WS_FL}
    v_mov_b32 v{t+1}, s92
    s_mov_b64 exec, 1
    buffer_store_dword v{t+1}, v{t}, s[36:39], {soff} offen sc1
    s_mov_b64 exec, -1""")
def poll_issue(n, t):
    for i in range(n): a(f"buffer_load_dword v{t+4+i}, v{t+i}, s[36:39], s93 offen sc1")
def flag_poll(tag, n, t, issued=False):
    a("s_mov_b32 s91, 0")
    if issued: a(f"s_branch {tag}_c")
    a(f"{tag}:")
    poll_issue(n, t)
    a(f"{tag}_c:\ns_add_u32 s91, s91, 1\ns_waitcnt vmcnt(0)")
    for i in range(n): a(f"v_xor_b32 v{t+4+i}, s92, v{t+4+i}")
    for i in range(1, n): a(f"v_or_b32 v{t+4}, v{t+4}, v{t+4+i}")
    a(f"""v_cmp_ne_u32 vcc, 0, v{t+4}
    s_cbranch_vccz {tag}_x
    s_mov_b64 exec, vcc
    s_sleep {OPT.get("slp", 2)}
    s_cmp_lt_u32 s91, 0x80000
    s_cbranch_scc1 {tag}
    {tag}_x:
    s_mov_b64 exec, -1""")
def lds_wait(tag, vaddr, off, t, slp=False):
    a(f"""{tag}:
    {"s_sleep 1" if slp else ""}
    ds_read_b32 v{t}, v{vaddr} offset:{off}
    s_waitcnt lgkmcnt(0)
    v_cmp_eq_u32 vcc, 0, v{t}
    s_cbranch_vccz {tag}""")
def kargs():
    a(f"""s_waitcnt lgkmcnt(0)
    s_add_u32 s68, s24, {WS_FL + FL_E}
    s_addc_u32 s69, s25, 0
    s_load_dword s92, s[68:69], 0""")
    srd(36, 24, WS_END)

def ufetch(tag):
    a(f"""
    s_sub_u32 s43, s3, 8
    s_sub_u32 s45, 11, s3
    s_cmp_ge_u32 s2, 224
    s_cselect_b32 s43, s45, s43
    s_and_b32 s45, s43, 1
    s_lshl_b32 s40, s2, 1
    s_add_u32 s40, s40, s45
    s_add_u32 s46, s40, {512 - 448}
    s_lshl_b32 s44, s43, 13
    s_add_u32 s47, s44, {40960 - 16384}
    s_add_u32 s44, s44, 147968
    s_cmp_ge_u32 s43, 2
    s_cselect_b32 s40, s46, s40          ; channel
    s_cselect_b32 m0, s47, s44
    s_lshr_b32 s46, s40, 6
    s_mul_i32 s46, s46, {32*FS}
    s_add_u32 s46, s46, {FL_S}
    v_and_b32 v10, 31, v0
    v_mul_u32_u24 v10, {FS}, v10
    v_add_u32 v10, s46, v10
    v_lshlrev_b32 v12, 4, v0
    v_mov_b32 v13, 0x7ffffff0
    s_lshl_b32 s44, s40, 12
    s_add_u32 s44, s44, {WS_U}
    s_mov_b32 exec_hi, 0
    """)
    flag_poll(tag, 1, 10)
    for i in range(4): a(f"buffer_load_dwordx4 v12, s[36:39], s44 offen offset:{1024*i} sc1 lds")
    a(f"""s_lshl_b32 s43, s43, 2
    s_add_u32 m0, s43, {L_FL + 448}
    s_mov_b64 exec, 1
    buffer_load_dword v13, s[36:39], 0 offen lds
    s_mov_b64 exec, -1""")

def phaseA():
    mod9 = """
    s_mul_i32 s49, s48, 57
    s_lshr_b32 s49, s49, 9
    s_mul_i32 s49, s49, 9
    s_sub_u32 s48, s48, s49"""
    ROT = {"wg": "s_lshl_b32 s48, s40, 1\ns_add_u32 s48, s48, s41" + mod9, "none": "s_mov_b32 s48, 0",
           "xcd": "s_and_b32 s48, s26, 3\ns_lshl_b32 s48, s48, 1\ns_lshr_b32 s49, s26, 2\ns_mul_i32 s49, s49, 5\ns_add_u32 s48, s48, s49" + mod9}[OPT.get("rot", "xcd")]
    a(f"""
    s_cmp_ge_u32 s2, 256
    s_cbranch_scc1 k_done
    v_lshrrev_b32 v1, 6, v0
    v_and_b32 v0, 63, v0
    v_readfirstlane_b32 s3, v1
    v_mov_b32 v23, {L_FL}
    s_cmp_lg_u32 s3, 9
    s_cbranch_scc1 a_noarm
    v_mov_b32 v14, -1
    v_mov_b32 v15, -1
    v_lshl_add_u32 v16, v0, 3, v23
    ds_write_b64 v16, v[14:15]
    s_waitcnt lgkmcnt(0)
    a_noarm:
    s_load_dwordx16 s[4:19], s[0:1], 0
    s_load_dwordx4 s[20:23], s[0:1], 64
    s_load_dwordx2 s[24:25], s[0:1], 96
    s_load_dwordx2 s[96:97], s[0:1], 80
    s_load_dwordx2 s[94:95], s[0:1], 16
    s_add_u32 s26, s3, 8
    s_sub_u32 s27, s3, 4
    s_cmp_lt_u32 s3, 4
    {"" if OPT.get("remap", "1") == "0" else "s_cselect_b32 s3, s26, s27           ; the waves that start first take the loader role (8..11)"}
    s_and_b32 s26, s2, 7
    s_lshr_b32 s27, s2, 3
    s_and_b32 s40, s26, 3
    s_lshl_b32 s40, s40, 2
    s_and_b32 s44, s27, 3
    s_add_u32 s40, s40, s44
    s_lshr_b32 s41, s26, 2
    s_mul_i32 s41, s41, 7
    s_lshr_b32 s44, s27, 2
    s_add_u32 s41, s41, s44
    s_mov_b32 s93, {WS_FL}
    s_cmp_ge_u32 s3, 8
    s_cbranch_scc1 a_aux
    s_cmp_lt_u32 s3, 4
    s_cbranch_scc1 a_ssm
    s_branch a_gemm
    a_aux:
    s_cmp_ge_u32 s27, 28
    s_cbranch_scc1 a_task
    {ROT}
    s_bfe_u32 s56, s3, 0x10001
    s_bitcmp1_b32 s3, 0
    s_cbranch_scc1 a_ldw
    v_lshrrev_b32 v4, 3, v0
    v_lshrrev_b32 v5, 2, v4
    v_lshlrev_b32 v5, 3, v5
    v_and_b32 v6, 3, v4
    v_add_u32 v5, v5, v6
    s_lshl_b32 s44, s40, 7
    v_add_u32 v5, s44, v5
    v_mul_u32_u24 v5, 1152, v5
    v_lshrrev_b32 v6, 1, v4
    v_and_b32 v7, 7, v0
    v_xor_b32 v6, v6, v7
    v_lshl_add_u32 v2, v6, 4, v5
    v_xor_b32 v6, 4, v6
    v_lshl_add_u32 v3, v6, 4, v5
    v_add_u32 v3, {4608-1024}, v3
    s_mov_b32 s50, 128
    s_mov_b32 s51, 18432
    s_mov_b32 s52, 0
    s_waitcnt lgkmcnt(0)
    s_mov_b32 s28, s4
    s_mov_b32 s29, s5
    s_mov_b32 s30, 2359296
    s_branch a_ld
    a_ldw:
    v_lshrrev_b32 v5, 4, v0
    v_mul_u32_u24 v2, 3456, v5
    v_lshlrev_b32 v5, 2, v5
    v_and_b32 v6, 15, v0
    v_xor_b32 v5, v5, v6
    v_lshl_add_u32 v2, v5, 4, v2
    s_lshl_b32 s44, s41, 8
    v_add_u32 v2, s44, v2
    v_add_u32 v3, {13824-1024}, v2
    s_mov_b32 s50, 221184
    s_mov_b32 s51, 27648
    s_mov_b32 s52, 16384
    s_waitcnt lgkmcnt(0)
    s_mov_b32 s28, s6
    s_mov_b32 s29, s7
    s_mov_b32 s30, 1990656
    a_ld:
    s_setprio {OPT.get("lprio", 0)}
    s_mov_b32 s31, 0x20000
    s_mul_i32 s57, s56, s51
    s_lshl_b32 s57, s57, 2
    s_lshl_b32 s56, s56, 13
    s_add_u32 s52, s52, s56
    s_and_b32 s58, s3, 3
    s_lshl_b32 s58, s58, 2
    s_add_u32 s58, s58, {L_FL}
    v_mov_b32 v4, 0x7ffffff0
    s_mov_b32 s53, 0
    """)
    kargs()
    a(f"""
    a_ld_loop:
    s_cmp_lt_u32 s53, 4
    s_cbranch_scc1 a_ld_go
    a_ld_poll:
    ds_read_b128 v[8:11], v23 offset:160
    s_waitcnt lgkmcnt(0)
    v_or_b32 v8, v8, v9
    v_or3_b32 v8, v8, v10, v11
    v_cmp_eq_u32 vcc, 0, v8
    s_cbranch_vccz a_ld_poll
    v_add_u32 v23, 16, v23
    a_ld_go:
    s_mul_i32 s47, s48, s50
    s_add_u32 s47, s47, s57
    s_and_b32 s55, s53, 3
    s_lshl_b32 s55, s55, 15
    s_add_u32 m0, s55, s52
    s_add_u32 s48, s48, 1
    """)
    for p in range(4):
        a("buffer_load_dwordx4 v2, s[28:31], s47 offen lds\nbuffer_load_dwordx4 v3, s[28:31], s47 offen offset:1024 lds")
        if p < 3: a("s_add_u32 m0, m0, 2048\ns_add_u32 s47, s47, s51")
    a(f"""
    s_cmp_eq_u32 s48, 9
    s_cselect_b32 s48, 0, s48
    s_cmp_lg_u32 s53, 0
    s_cbranch_scc1 a_ld_nb
    s_barrier
    a_ld_nb:
    s_mov_b32 m0, s58
    s_mov_b64 exec, 1
    buffer_load_dword v4, s[28:31], 0 offen lds
    s_mov_b64 exec, -1
    s_add_u32 s58, s58, 16
    s_add_u32 s53, s53, 1
    s_cmp_lt_u32 s53, 9
    s_cbranch_scc1 a_ld_loop
    """)
    a("v_mov_b32 v116, v0\ns_waitcnt lgkmcnt(0)\ns_add_u32 s92, s92, 1\ns_cmp_ge_u32 s3, 10\ns_cbranch_scc1 b_aux\na_uf:")
    ufetch("a_pu")
    a("s_branch b_aux")
    a(f"""
    a_gemm:
    s_cmp_ge_u32 s27, 28
    s_cbranch_scc1 a_ssm
    s_barrier
    """)
    kargs()
    a(f"""
    s_sub_u32 s45, s3, 4
    s_and_b32 s42, s45, 1                ; mw
    s_lshr_b32 s43, s45, 1               ; nw
    s_lshl_b32 s58, s45, 2
    s_add_u32 s58, s58, {L_FL + 160}
    v_mov_b32 v22, 0x7ffffff0
    v_and_b32 v5, 31, v0
    v_lshrrev_b32 v6, 5, v0
    s_lshl_b32 s44, s42, 6
    v_add_u32 v7, s44, v5
    v_lshlrev_b32 v7, 7, v7
    v_bfe_u32 v5, v5, 1, 3
    v_xor_b32 v5, v5, v6
    """)
    for j in range(4):
        a(f"v_xor_b32 v20, {2*j}, v5\nv_lshl_add_u32 v{8+j}, v20, 4, v7\nv_add_u32 v{12+j}, 0x10000, v{8+j}")
    a(f"""
    v_bfe_u32 v5, v0, 2, 2
    v_lshl_add_u32 v7, v6, 3, v5
    v_lshlrev_b32 v7, 8, v7
    v_bfe_u32 v20, v0, 4, 1
    v_lshl_add_u32 v7, v20, 5, v7
    v_and_b32 v20, 1, v0
    v_lshl_add_u32 v7, v20, 4, v7
    v_and_b32 v20, 2, v0
    v_lshl_add_u32 v7, v20, 2, v7
    v_add_u32 v7, 16384, v7
    s_lshl_b32 s44, s43, 1
    v_xor_b32 v5, s44, v5
    v_lshl_add_u32 v16, v5, 6, v7
    v_xor_b32 v5, 1, v5
    v_lshl_add_u32 v17, v5, 6, v7
    v_add_u32 v18, 0x10000, v16
    v_add_u32 v19, 0x10000, v17
    s_setprio {OPT.get('gprio', 2)}
    s_waitcnt lgkmcnt(0)
    s_add_u32 s92, s92, 1
    s_lshl_b32 s46, s40, 1
    s_add_u32 s46, s46, s42
    s_lshl_b32 s47, s41, 1
    s_add_u32 s47, s47, s43
    s_lshl_b32 s59, s47, 5
    s_add_u32 s59, s59, s46
    s_mul_i32 s59, s59, {FS}
    s_cmp_ge_u32 s41, 9
    s_cbranch_scc1 a_gemm_v""")
    FB = [24, 40, 128]
    def reads(stage, j, fb):
        slot = stage & 3; hi = slot >> 1; base = (slot & 1) * 32768
        return [f"ds_read_b128 {vr(fb,4)}, v{8+4*hi+j} offset:{base}",
                f"ds_read_b64_tr_b16 {vr(fb+8,2)}, v{16+2*hi} offset:{base+j*4096}",
                f"ds_read_b64_tr_b16 {vr(fb+10,2)}, v{16+2*hi} offset:{base+j*4096+1024}",
                f"ds_read_b64_tr_b16 {vr(fb+12,2)}, v{17+2*hi} offset:{base+j*4096}",
                f"ds_read_b64_tr_b16 {vr(fb+14,2)}, v{17+2*hi} offset:{base+j*4096+1024}",
                f"ds_read_b128 {vr(fb+4,4)}, v{8+4*hi+j} offset:{base+4096}"]
    def mfmas(fb, vor, first):
        out = []
        for (ta, tb) in ((0,0),(0,1),(1,0),(1,1)):
            acc = vr(64 + 16*(2*ta+tb), 16); X = vr(fb+4*ta, 4); W = vr(fb+8+4*tb, 4)
            out.append(f"v_mfma_f32_32x32x16_bf16 {acc}, " + (f"{X}, {W}" if vor else f"{W}, {X}") + ", " + ("0" if first else acc))
        return out
    def check(tag, st, first_read):
        if not first_read:
            a(f"""v_or_b32 v56, v56, v57
            v_or3_b32 v56, v56, v58, v59
            v_cmp_eq_u32 vcc, 0, v56
            s_cbranch_vccnz {tag}_ok""")
        a(f"""{tag}_p:
        ds_read_b128 v[56:59], v23 offset:{16*st}
        s_waitcnt lgkmcnt(0)
        v_or_b32 v56, v56, v57
        v_or3_b32 v56, v56, v58, v59
        v_cmp_eq_u32 vcc, 0, v56
        s_cbranch_vccz {tag}_p
        {tag}_ok:""")
    def mainloop(vor):
        check(f"a_c{int(vor)}_0", 0, True)
        stamp("Afirst")
        a("\n".join(reads(0, 0, FB[0]) + reads(0, 1, FB[1])))
        for g in range(36):
            st, j = divmod(g, 4)
            a(f"s_waitcnt lgkmcnt({6 if g < 35 else 0})")
            m = mfmas(FB[g % 3], vor, g == 0)
            a(m[0])
            if j == 1 and st < 8: a(f"ds_read_b128 v[56:59], v23 offset:{16*(st+1)}")
            if j == 2 and st < 8: check(f"a_c{int(vor)}_{st+1}", st+1, False)
            if j == 3 and st < 5: a(f"s_add_u32 m0, s58, {16*st}\ns_mov_b64 exec, 1\nbuffer_load_dword v22, s[36:39], 0 offen lds\ns_mov_b64 exec, -1")
            rd = reads((g+2)//4, (g+2)%4, FB[(g+2) % 3]) if g + 2 < 36 else []
            a("\n".join(rd[:3])); a(m[1]); a("\n".join(rd[3:])); a(m[2]); a(m[3])
        stamp("Aconv")
    a(f"""
    s_mul_i32 s44, s46, {2*QK_T}
    s_lshl_b32 s45, s47, 12
    s_add_u32 s44, s44, s45
    s_add_u32 s45, s44, {QK_T}
    v_lshlrev_b32 v2, 4, v0
    """)
    mainloop(False)
    for ta in range(2):
        for tb in range(2):
            acc = 64 + 16*(2*ta+tb); o = 24 + 8*(2*ta+tb)
            if ta + tb == 0: a("s_nop 8")
            for r in range(8): a(f"v_cvt_pk_bf16_f32 v{o+r}, v{acc+2*r}, v{acc+2*r+1}")
            for hh in range(2): a(f"buffer_store_dwordx4 {vr(o+4*hh,4)}, v2, s[36:39], s{44+ta} offen offset:{tb*2048+hh*1024} sc1")
    a(f"""s_branch a_gemm_end
    a_gemm_v:
    v_and_b32 v5, 19, v0
    v_bfe_u32 v6, v0, 2, 1
    v_lshl_add_u32 v5, v6, 3, v5
    v_bfe_u32 v6, v0, 3, 1
    v_lshl_add_u32 v5, v6, 2, v5
    v_lshrrev_b32 v6, 5, v0
    v_mul_u32_u24 v6, 9216, v6
    v_lshl_add_u32 v2, v5, 4, v6
    s_sub_u32 s45, s47, 18
    s_lshl_b32 s45, s45, 10
    s_mul_i32 s44, s46, {8*9216}
    s_add_u32 s44, s44, s45
    s_add_u32 s44, s44, {WS_V}
    """)
    mainloop(True)
    a("s_cmp_ge_u32 s47, 27\ns_cbranch_scc1 a_end")
    for ta in range(2):
        for tb in range(2):
            acc = 64 + 16*(2*ta+tb); o = 24 + 8*(2*ta+tb)
            if ta + tb == 0: a("s_nop 8")
            for r in range(8): a(f"v_cvt_pk_bf16_f32 v{o+r}, v{acc+2*r}, v{acc+2*r+1}")
            for hh in range(2): a(f"s_add_u32 s45, s44, {(4*ta+2*hh)*9216}\nbuffer_store_dwordx4 {vr(o+4*hh,4)}, v2, s[36:39], s45 offen offset:{tb*512} sc1")
    a("a_gemm_end:")
    stamp("Aend")
    a("s_waitcnt vmcnt(0)")
    stamp("Aack")
    flag_set("s59", 2)
    a("s_branch a_end")

    a(f"""
    a_task:
    s_sub_u32 s44, s2, 224
    s_lshr_b32 s45, s44, 1               ; B
    s_and_b32 s46, s44, 1                ; es
    s_sub_u32 s47, 16, s3
    s_lshl_b32 s59, s47, 5
    s_add_u32 s59, s59, s44
    s_mul_i32 s59, s59, {FS}
    s_add_u32 s59, s59, {FL_S}
    s_lshl_b32 s48, s45, 3
    s_add_u32 s48, s48, s46
    s_mul_i32 s48, s48, {16*1152}
    s_lshl_b32 s49, s47, 7
    s_add_u32 s48, s48, s49
    v_lshrrev_b32 v10, 3, v0
    v_and_b32 v9, 7, v0
    v_mul_u32_u24 v11, 1152, v10
    v_lshl_add_u32 v11, v9, 4, v11
    v_xor_b32 v12, v10, v9
    v_lshlrev_b32 v12, 4, v12
    v_lshl_add_u32 v12, v9, 10, v12
    s_sub_u32 s49, 11, s3
    s_lshl_b32 s49, s49, 14
    s_add_u32 s49, s49, 57344
    v_add_u32 v12, s49, v12
    s_mov_b32 m0, s49
    v_lshlrev_b32 v17, 15, v10
    v_lshl_add_u32 v17, v9, 4, v17
    s_lshl_b32 s60, s47, 18
    s_lshl_b32 s45, s45, 7
    s_lshl_b32 s46, s46, 11
    s_add_u32 s60, s60, s45
    s_add_u32 s60, s60, s46
    s_add_u32 s60, s60, {WS_U}
    s_mov_b32 s50, 0x05040100
    s_mov_b32 s51, 0x07060302
    """)
    for p in range(8): a(f"v_xor_b32 v{24+p}, {16*p}, v11")
    kargs()
    srd(28, 10, 2359296)
    for i in range(3):
        if i == 1: a("s_barrier")
        if i == 2: a("s_cmp_lg_u32 s3, 8\ns_cbranch_scc1 a_t2")
        for p in range(8):
            a(f"""s_add_u32 s49, s48, {((p>>1)*32 + (p&1)*8)*1152}
            buffer_load_dwordx4 v{24+p}, s[28:31], s49 offen lds
            s_add_u32 m0, m0, 1024""")
        a("s_sub_u32 s48, s48, 512")
    a("s_waitcnt vmcnt(16)\ns_branch a_t3\na_t2:\ns_waitcnt vmcnt(8)\na_t3:")
    for i in range(3):
        if i == 1: a("s_waitcnt vmcnt(8)")
        for j in range(8): a(f"ds_read_b128 {vr(32+4*j,4)}, v12 offset:{i*8192 + j*128}")
        a("s_waitcnt lgkmcnt(0)")
        if i == 0: a("s_add_u32 s92, s92, 1")
        O_ = [64, 96, 128][i]
        transpose8(32, O_, 50, 51)
        if i:
            a("s_waitcnt vmcnt(0)")
            flag_set("s59", 2)
            a(f"s_sub_u32 s59, s59, {128*FS}")
        for c in range(8):
            a(f"s_add_u32 s49, s60, {c*4096}\nbuffer_store_dwordx4 {vr(O_+4*c,4)}, v17, s[36:39], s49 offen sc1")
        a(f"s_sub_u32 s60, s60, {4<<18}")
        if i == 1: a("s_cmp_lg_u32 s3, 8\ns_cbranch_scc1 a_gemm_end")
    a("s_branch a_gemm_end")

    L2E = f2u(1.4426950408889634); L2E_LO = f2u(1.4426950408889634 - struct.unpack("<f", struct.pack("<I", L2E))[0])
    LN2 = f2u(0.6931471805599453)
    z0 = list(range(9)) + [14,15,16,20,21,24,25]
    z1 = [9,9,10,11,11,11,12,13,13,17,18,19,22,23,26,27]
    def pack(z, lo):
        v = 0
        for r in range(lo, lo+8): v |= (z[r]-r) << (4*(r-lo))
        return v
    a(f"""
    a_ssm:
    s_and_b32 s41, s3, 1                 ; half
    s_bfe_u32 s45, s3, 0x10001
    s_lshl_b32 s40, s2, 1
    s_add_u32 s40, s40, s45
    s_add_u32 s46, s40, {512 - 448}
    s_mul_i32 s42, s45, {KAREA}
    s_add_u32 s47, s42, 16384
    s_add_u32 s42, s42, 131072
    s_cmp_ge_u32 s3, 4
    s_cselect_b32 s40, s46, s40          ; channel
    s_cselect_b32 s42, s47, s42
    s_lshr_b32 s43, s3, 1
    s_lshl_b32 s43, s43, 13
    s_add_u32 s47, s43, {40960 - 16384}
    s_add_u32 s43, s43, 147968
    s_cmp_ge_u32 s3, 4
    s_cselect_b32 s43, s47, s43
    s_lshl_b32 s45, s40, 7
    s_lshl_b32 s46, s41, 6
    s_add_u32 s45, s45, s46
    v_add_u32 v2, s45, v0
    v_lshlrev_b32 v2, 1, v2
    s_lshl_b32 s45, s40, 1
    v_mov_b32 v3, s45
    s_waitcnt lgkmcnt(0)
    global_load_ushort v4, v3, s[20:21]
    global_load_ushort v6, v2, s[12:13]
    global_load_ushort v7, v2, s[14:15]
    global_load_ushort v8, v2, s[16:17]
    global_load_ushort v9, v2, s[18:19]
    global_load_ushort v5, v3, s[22:23]
    s_barrier
    """)
    kargs()
    a(f"""
    v_and_b32 v14, 31, v0
    v_and_b32 v16, 3, v14
    v_lshrrev_b32 v17, 3, v14
    v_lshl_add_u32 v16, v17, 2, v16
    v_mov_b32 v17, {pack(z0,0):#x}
    v_mov_b32 v18, {pack(z0,8):#x}
    v_mov_b32 v19, {pack(z1,0):#x}
    v_mov_b32 v20, {pack(z1,8):#x}
    v_cmp_lt_u32 vcc, 7, v16
    v_and_b32 v21, 4, v14
    v_and_b32 v22, 7, v16
    v_cndmask_b32 v17, v17, v18, vcc
    v_cndmask_b32 v19, v19, v20, vcc
    v_cmp_ne_u32 vcc, 0, v21
    v_lshlrev_b32 v22, 2, v22
    v_lshrrev_b32 v15, 5, v0
    v_cndmask_b32 v17, v17, v19, vcc
    v_bfe_u32 v17, v17, v22, 4
    v_add_u32 v17, v17, v16
    v_lshlrev_b32 v15, 2, v15
    s_mov_b32 s50, 0x3f80
    """)
    for (zr, dst) in ((14, 40), (17, 48)):
        a(f"""v_and_b32 v18, 1, v{zr}
        v_lshlrev_b32 v18, 4, v18
        v_lshlrev_b32 v18, v18, s50
        v_lshrrev_b32 v19, 1, v{zr}
        v_sub_u32 v19, v19, v15""")
        for d in range(8): a(f"v_cmp_eq_u32 s[{52+2*d}:{53+2*d}], {8*(d>>2) + (d&3)}, v19")
        for d in range(8): a(f"v_cndmask_b32 v{dst+d}, 0, v18, s[{52+2*d}:{53+2*d}]")
    a(f"""
    s_mov_b32 s50, {L2E:#x}
    s_mov_b32 s51, {L2E_LO:#x}
    s_mov_b32 s52, {LN2:#x}
    s_mov_b32 s53, {f2u(248.0):#x}
    s_mov_b32 s54, {f2u(8.0):#x}
    s_waitcnt vmcnt(0) lgkmcnt(0)
    s_add_u32 s92, s92, 1
    """)
    stamp("Afirst")
    if "nossm" in OPT: a("s_branch a_end")
    def exp_bf16(x, t, lo):
        a(f"""v_mul_f32 v{t}, s50, v{x}
        v_fma_f32 v{lo}, v{x}, s50, -v{t}
        v_exp_f32 v{t}, v{t}
        v_fma_f32 v{lo}, v{x}, s51, v{lo}
        v_mul_f32 v{lo}, s52, v{lo}
        v_fma_f32 v{t}, v{t}, v{lo}, v{t}
        v_cvt_pk_bf16_f32 v{t}, v{t}, v{t}
        v_lshlrev_b32 v{x}, 16, v{t}""")
    for r in range(4, 10): a(f"v_lshlrev_b32 v{r}, 16, v{r}")
    exp_bf16(4, 20, 21)
    exp_bf16(6, 20, 21)
    a("""
    v_mul_f32 v6, v6, v4
    v_mul_f32 v7, v7, v4
    v_mul_f32 v8, v8, v4
    v_mul_f32 v9, v9, v4
    v_mul_f32 v6, s50, v6                ; -Re(z)*log2e
    v_mul_f32 v7, 0.15915494, v7         ; Im(z)/(2pi)
    v_add_f32 v8, v8, v8
    v_mul_f32 v9, -2.0, v9
    """)
    DL = [8, 1, 2, 4, 248]
    DS = {8: "s54", 1: "1.0", 2: "2.0", 4: "4.0", 248: "s53"}
    MR = {d: 24 + 2*i for i, d in enumerate(DL)}
    def mkE(d):
        a(f"""v_mul_f32 v21, {DS[d]}, v6
        v_mul_f32 v22, {DS[d]}, v7
        v_exp_f32 v21, -v21
        v_fract_f32 v22, v22
        v_cos_f32 v20, v22
        v_sin_f32 v22, v22
        v_mul_f32 v{MR[d]}, v21, v20
        v_mul_f32 v{MR[d]+1}, v21, v22""")
    P = 56; Dt = 88; YO = 120; ACC = 152
    R = lambda z: 34 + 2*(z % 3)
    def chain(dl, conj, mid=None):
        n = "-" if conj else ""; p = "" if conj else "-"
        for z in range(len(dl) + 1):
            cur, nxt = R(z), R(z+1)
            if z < len(dl):
                W = MR[dl[z]]
                a(f"v_mul_f32 v{nxt}, v{cur}, v{W}\nv_mul_f32 v{nxt+1}, v{cur+1}, v{W}")
            if z & 1: a(f"v_cvt_pk_bf16_f32 v{P+(z>>1)}, v{R(z-1)}, v{cur}")
            if z < len(dl): a(f"v_fma_f32 v{nxt}, {p}v{cur+1}, v{W+1}, v{nxt}\nv_fma_f32 v{nxt+1}, {n}v{cur}, v{W+1}, v{nxt+1}")
            if z & 1: a(f"v_cvt_pk_bf16_f32 v{P+16+(z>>1)}, v{R(z-1)+1}, v{cur+1}")
            if mid and z == 4: mid()
    def swaps(comp):
        for pr in range(2):
            for t in range(4): a(f"v_permlane32_swap_b32 v{P+16*comp+8*pr+t}, v{P+16*comp+8*pr+4+t}")
    def tmfma(comp, sel):
        for blk in range(2): a(f"v_mfma_f32_32x32x16_bf16 {vr(Dt+16*blk,16)}, {vr(P+16*comp+4*blk,4)}, {vr(sel,4)}, 0")
        for blk in range(2): a(f"v_mfma_f32_32x32x16_bf16 {vr(Dt+16*blk,16)}, {vr(P+16*comp+8+4*blk,4)}, {vr(sel+4,4)}, {vr(Dt+16*blk,16)}")
    def tcvt(dst):
        for i in range(16): a(f"v_cvt_pk_bf16_f32 v{dst+i}, v{Dt+2*i}, v{Dt+2*i+1}")
    mkE(8)
    a(f"v_mov_b32 v{R(0)}, 1.0\nv_mov_b32 v{R(0)+1}, 0")
    chain([8]*31, False)
    mkE(1); swaps(0); swaps(1); tmfma(0, 40); mkE(2); mkE(4); tcvt(YO); tmfma(1, 40); mkE(248)
    a(f"v_mov_b32 v{R(0)}, v8\nv_mov_b32 v{R(0)+1}, v9")
    deltas = [1]*8 + [248] + [2]*4 + [248] + [4]*2 + [248] + [4]*2 + [248, 8, 248, 8, 248, 8, 248, 8]
    chain(deltas, True, mid=lambda: tcvt(YO+16))
    a("v_lshl_add_u32 v21, s41, 6, v0\nv_cmp_eq_u32 vcc, 0, v21\nv_sub_u32 v21, 63, v0")
    swaps(0); swaps(1); tmfma(0, 48)
    a(f"""
    v_cndmask_b32 v5, 0, v5, vcc
    v_lshl_add_u32 v21, v21, 4, s42
    s_lshl_b32 s46, s3, 4
    v_add_u32 v22, s46, v23
    v_xor_b32 v20, 16, v22               ; partner's
    v_mov_b32 v19, 0
    s_nop 5
    """)
    tcvt(P); tmfma(1, 48)
    for i in range(4): a(f"v_mfma_f32_32x32x16_bf16 {vr(ACC,16)}, {vr(P+4*i,4)}, {vr(YO+4*i,4)}, " + ("0" if i == 0 else vr(ACC,16)))
    a("s_nop 7")
    tcvt(P+16)
    a("s_nop 1")
    for i in range(4, 8): a(f"v_mfma_f32_32x32x16_bf16 {vr(ACC,16)}, {vr(P+4*i,4)}, {vr(YO+4*i,4)}, {vr(ACC,16)}")
    stamp("Akgen")
    if "noconv" in OPT: a("s_branch a_end")
    CA = 24; CU = 68; CF = 132
    for i in range(44): a(f"v_mov_b32 v{CA+i}, 0")
    for i in range(32): a(f"v_mov_b32 v{CU+i}, 0")
    a(f"""
    v_and_b32 v12, 31, v0
    v_lshrrev_b32 v13, 5, v0             ; h
    v_lshlrev_b32 v16, 5, v12
    v_lshl_add_u32 v16, v13, 4, v16
    s_lshl_b32 s45, s41, 7
    s_sub_u32 s44, s43, s45
    s_sub_u32 s44, s44, 96
    v_add_u32 v16, s44, v16
    s_lshl_b32 s45, s41, 2
    v_lshlrev_b32 v17, 3, v13
    v_sub_u32 v17, v17, v12
    v_lshlrev_b32 v17, 1, v17            ; 2*(8h - b)
    v_and_b32 v18, 1, v12
    v_cmp_eq_u32 s[56:57], 1, v18        ; b odd
    v_xor_b32 v18, 1, v18
    v_mul_u32_u24 v18, {KC + 2}, v18
    s_lshl_b32 s46, s41, 8
    s_sub_u32 s46, s42, s46
    s_add_u32 s46, s46, {62 + 120*32}
    v_add3_u32 v17, v17, v18, s46
    v_subrev_u32 v18, 2048, v17
    v_add_f32 v{ACC}, v{ACC}, v5
    v_lshl_add_u32 v133, v0, 2, s42
    s_add_u32 s46, s43, 4096
    v_lshl_add_u32 v138, v0, 4, s46
    """)
    for G in range(4): a(f"v_add_u32 v{134+G}, {(3-G)*1024 + KC}, v21")
    a(f"""
    s_cmp_ge_u32 s27, 28
    s_cbranch_scc1 a_s_g2
    a_s_w2:
    ds_read_b128 v[8:11], v23 offset:128
    s_waitcnt lgkmcnt(0)
    v_or_b32 v8, v8, v9
    v_or3_b32 v8, v8, v10, v11
    v_cmp_eq_u32 vcc, 0, v8
    s_cbranch_vccnz a_s_g2
    s_sleep 1
    s_branch a_s_w2
    a_s_g2:
    s_setprio 3
    s_cmp_eq_u32 s41, 0
    s_cbranch_scc1 a_s_even
    """)
    d = lambda r: f"v{ACC+r}" if r < 16 else f"v{r-24}"
    units = [
      (0, 0, [(7,6),(5,4),(3,2),(1,0)]), (0, 1, [(8,7),(6,5),(4,3),(2,1)]),
      (1, 0, [(11,11),(10,10),(10,9),(9,9)]), (1, 1, [(11,11),(11,10),(10,10),(9,9)]),
      (2, 0, [(13,13),(13,32),(12,12),(12,12)]), (2, 1, [(13,13),(13,13),(32,12),(12,12)]),
      (3, 0, [(15,15),(15,33),(14,14),(14,14)]), (3, 1, [(15,15),(15,15),(33,14),(14,14)])]
    def build(us):
        for ui in us:
            G, cp, prs = units[ui]; o = 100 + 4*ui
            for t, (lo, hi) in enumerate(prs): a(f"v_cvt_pk_bf16_f32 v{o+t}, {d(lo)}, {d(hi)}")
            if cp == 0: a(f"ds_write_b128 v21, {vr(o,4)} offset:{(3-G)*1024}")
            else: a(f"ds_write2_b32 v{134+G}, v{o}, v{o+1} offset0:0 offset1:1\nds_write2_b32 v{134+G}, v{o+2}, v{o+3} offset0:2 offset1:3")
    for i in range(3): a(f"ds_write_b128 v138, {vr(ACC+4*i,4)} offset:{1024*i}")
    a("ds_write_b32 v22, v19 offset:256")
    lds_wait("a_s_o0", 20, 256, 8)
    a("ds_read_b128 v[140:143], v21\ns_waitcnt lgkmcnt(0)")
    for i in range(4): a(f"v_add_f32 v{ACC+12+i}, v{ACC+12+i}, v{140+i}")
    a(f"v_cndmask_b32 v8, {d(12)}, {d(13)}, s[56:57]\nv_cndmask_b32 v9, {d(14)}, {d(15)}, s[56:57]")
    build([4, 5, 6, 7])
    a(f"s_branch a_s_u\na_s_even:\nds_write_b128 v21, {vr(ACC+12,4)}\nds_write_b32 v22, v19 offset:256")
    lds_wait("a_s_e0", 20, 256, 8)
    for i in range(3): a(f"ds_read_b128 {vr(140+4*i,4)}, v138 offset:{1024*i}")
    a("v_cmp_eq_u32 vcc, 0, v0\ns_waitcnt lgkmcnt(0)")
    for i in range(12): a(f"v_add_f32 v{ACC+i}, v{ACC+i}, v{140+i}")
    build([0, 1, 2, 3])
    a(f"""
    v_cvt_pk_bf16_f32 v132, {d(0)}, v19
    s_mov_b64 exec, 0x7fff
    ds_write_b32 v133, v19 offset:4096   ; zeros behind both copies; the odd copy ends with K[0]
    s_mov_b64 exec, 0xffff
    v_cndmask_b32 v132, 0, v132, vcc
    ds_write_b32 v133, v132 offset:{4096 + KC}
    s_mov_b64 exec, -1
    a_s_u:
    ds_write_b32 v22, v19 offset:268
    s_setprio 0
    s_lshr_b32 s46, s3, 1
    s_lshl_b32 s46, s46, 2
    v_add_u32 v9, s46, v23
    """)
    lds_wait("a_s_uw", 9, 448, 8)
    for q in range(4):
        a(f"s_add_u32 s46, s45, {q}\ns_lshl_b32 exec_lo, -1, s46\ns_mov_b32 exec_hi, exec_lo")
        for es in range(2): a(f"ds_read_b128 {vr(CU+8*q+4*es,4)}, v16 offset:{es*2048 + (3-q)*32}")
        a("s_mov_b64 exec, -1")
        for es in range(2): a(f"ds_read_b128 {vr(CU+32+8*q+4*es,4)}, v16 offset:{es*2048 + 1024 + (3-q)*32}")
        if q == 2: a("s_waitcnt lgkmcnt(4)")
    lds_wait("a_s_o1", 20, 268, 8)
    stamp("Abuilt")
    steps = [(k, q, es) for k in range(4) for q in range(4) for es in range(2)]
    def frd(i):
        k, q, es = steps[i]; b = CF + 8*(i & 3); o = (6 - 2*q + es) * 8
        if q == 0 and es == 0 and k: a("v_subrev_u32 v17, 512, v17\nv_subrev_u32 v18, 512, v18")
        a(f"""ds_read2_b32 {vr(b,2)}, v17 offset0:{o} offset1:{o+1}
        ds_read2_b32 {vr(b+2,2)}, v17 offset0:{o+2} offset1:{o+3}
        ds_read2_b32 {vr(b+4,2)}, v18 offset0:{o} offset1:{o+1}
        ds_read2_b32 {vr(b+6,2)}, v18 offset0:{o+2} offset1:{o+3}""")
    for i in range(3): frd(i)
    for i, (k, q, es) in enumerate(steps):
        b = CF + 8*(i & 3); U0 = vr(CU+8*q+4*es, 4); U1 = vr(CU+32+8*q+4*es, 4)
        lo = vr(CA+4*k, 16); hi = vr(CA+16+4*k, 16)
        w = f"s_waitcnt lgkmcnt({4*min(2, 31-i)})"
        a(w)
        if q == 0 and es == 0 and k: a("s_nop 9")
        a(f"v_mfma_f32_32x32x16_bf16 {lo}, {U0}, {vr(b,4)}, {lo}")
        a(f"v_mfma_f32_32x32x16_bf16 {hi}, {U1}, {vr(b,4)}, {hi}")
        if i + 3 < 32: frd(i+3)
        a(f"v_mfma_f32_32x32x16_bf16 {hi}, {U0}, {vr(b+4,4)}, {hi}")
    stamp("Aconv")
    a(f"""
    ds_write_b32 v22, v19 offset:260
    s_lshl_b32 s46, s41, 12
    s_add_u32 s46, s46, s42
    v_lshl_add_u32 v16, v0, 4, s46
    s_lshl_b32 s46, s41, 13
    s_sub_u32 s46, 4096, s46
    v_add_u32 v17, s46, v16              ; partner's
    v_lshlrev_b32 v18, 4, v0
    s_lshl_b32 s44, s40, 12
    s_lshl_b32 s45, s41, 11
    s_add_u32 s44, s44, s45
    s_add_u32 s44, s44, {WS_Y}
    s_lshl_b32 s59, s40, 1
    s_add_u32 s59, s59, s41
    s_mul_i32 s59, s59, {FS}
    s_add_u32 s59, s59, {FL_Y}
    """)
    lds_wait("a_s_y1", 20, 260, 12)
    a("s_cmp_eq_u32 s41, 0\ns_cbranch_scc1 a_s_y0")
    for i in range(4): a(f"ds_write_b128 v16, {vr(CA+4*i,4)} offset:{1024*i}")
    a("ds_write_b32 v22, v19 offset:264\ns_waitcnt lgkmcnt(0)")
    for i in range(16): a(f"v_mov_b32 v{CA+i}, v{CA+16+i}")
    a("s_branch a_s_y2\na_s_y0:")
    for i in range(4): a(f"ds_write_b128 v16, {vr(CA+16+4*i,4)} offset:{1024*i}")
    a("ds_write_b32 v22, v19 offset:264\na_s_y2:")
    lds_wait("a_s_y3", 20, 264, 12)
    for i in range(4): a(f"ds_read_b128 {vr(CU+4*i,4)}, v17 offset:{1024*i}")
    a("s_waitcnt lgkmcnt(0)")
    for i in range(16): a(f"v_add_f32 v{CA+i}, v{CA+i}, v{CU+i}")
    for i in range(8): a(f"v_cvt_pk_bf16_f32 v{CF+i}, v{CA+2*i}, v{CA+2*i+1}")
    for g in range(2): a(f"buffer_store_dwordx4 {vr(CF+4*g,4)}, v18, s[36:39], s44 offen offset:{1024*g} sc1")
    stamp("Aend")
    a("s_mov_b32 s62, s59\ns_branch a_end1")
    a(f"""a_end:
    s_mov_b32 s62, 0
    a_end1:
    v_mov_b32 v116, v0
    s_lshl_b32 s44, s3, 2
    s_add_u32 s44, s44, {L_FL}
    v_mov_b32 v4, s44
    v_mov_b32 v5, 0
    ds_write_b32 v4, v5 offset:400
    s_cmp_ge_u32 s3, 8
    s_cbranch_scc1 a_uf""")

S = [0, 16]; O = 32; NEG = 48; P = 64; KF = [72, 76]; TF = [80, 84]; VF = [88, 96]; Q = 104; QL = 108; QH = 110
vK, vT, vV = 112, 113, 114
def rdK(buf, t): a(f"ds_read_b128 {vr(KF[buf],4)}, v{vK} offset:{1024*t}")
def rdT(buf, q): a(f"ds_read2st64_b64 {vr(TF[buf],4)}, v{vT} offset0:{2*q} offset1:{2*q+1}")
def rdV(buf, t):
    a(f"""s_mov_b64 exec, s[18:19]
    ds_read_b128 {vr(VF[buf],4)}, v{vV} offset:{t*1152}
    ds_read_b128 {vr(VF[buf]+4,4)}, v{vV} offset:{t*1152+576}
    s_mov_b64 exec, -1""")
def qk_tail(t, tb):
    tt = t & 3
    a(f"v_mfma_f32_32x32x8_bf16 {vr(S[t&1],16)}, {vr(TF[tb]+2*(tt>>1),2)}, {vr(QH if tt&1 else QL,2)}, {vr(S[t&1],16)}")
def pv(t, half): a(f"v_mfma_f32_32x32x16_bf16 {vr(O,16)}, {vr(VF[t&1]+4*half,4)}, {vr(P+4*half,4)}, {vr(O,16)}")
def ex(t, r0, r1):
    for r in range(r0, r1): a(f"v_exp_f32 v{S[t&1]+r}, v{S[t&1]+r}")
def cv(t, c0, c1):
    for c in range(c0, c1): a(f"v_cvt_pk_bf16_f32 v{P+c}, v{S[t&1]+2*c}, v{S[t&1]+2*c+1}")
def att_run(fast):
    tag = "b_f" if fast else "b_s"
    def qk_main(t): a(f"v_mfma_f32_32x32x16_bf16 {vr(S[t&1],16)}, {vr(KF[t&1],4)}, {vr(Q,4)}, " + ("0" if fast else vr(NEG,16)))
    rdK(0, 0); rdT(0, 0); rdK(1, 1); rdV(0, 0)
    if not fast:
        for i in range(16): a(f"v_mov_b32 v{O+i}, 0")
        for i in range(4): a(f"v_mov_b32 v{P+4+i}, 0")
    a("s_mov_b32 s26, 0\ns_waitcnt lgkmcnt(3)")
    qk_main(0); qk_tail(0, 0)
    a(f"s_nop 7\ns_nop 3\n.p2align 6\n{tag}_loop:")
    for t in range(8):
        if fast and t == 2:
            a(f"s_cmp_lg_u32 s26, 1\ns_cbranch_scc1 {tag}_np2\ns_setprio 2\n{tag}_np2:")
        if fast and t == 4:
            a(f"s_cmp_lg_u32 s26, 1\ns_cbranch_scc1 {tag}_nobar\ns_cmp_eq_u32 s62, 0\ns_cbranch_scc1 b_nyf\ns_waitcnt vmcnt(0)")
            flag_set("s62", 122)
            a(f"b_nyf:\ns_barrier\n{tag}_nobar:")
            a(f"s_cmp_lg_u32 s26, 6\ns_cbranch_scc1 {tag}_np1\ns_setprio 1\n{tag}_np1:")
        if fast and t == 5:
            a(f"""s_cmp_lg_u32 s26, 0
            s_cbranch_scc1 {tag}_nf1
            v_mov_b32 v121, {L_FL}
            {tag}_f1:
            ds_read_b96 v[124:126], v121 offset:464
            s_waitcnt lgkmcnt(0)
            v_or3_b32 v124, v124, v125, v126
            v_cmp_eq_u32 vcc, 0, v124
            s_cbranch_vccz {tag}_f1
            {tag}_nf1:""")
        if fast and t == 6:
            a(f"s_cmp_lg_u32 s26, 7\ns_cbranch_scc1 {tag}_np0\ns_setprio 0\n{tag}_np0:")
        def adv():
            if t == 7:
                a(f"""v_add_u32 v{vK}, 8192, v{vK}
                v_add_u32 v{vT}, 2048, v{vT}
                v_add_u32 v{vV}, 9216, v{vV}
                s_add_u32 s26, s26, 1
                s_cmp_lt_u32 s26, 8""")
        def rK():
            rdK(t&1, t+2)
            if (t & 3) == 1: rdT(((t>>2)+1)&1, (t>>2)+1)
        M1 = lambda: qk_main(t+1); M2 = lambda: pv(t-1, 1); M3 = lambda: qk_tail(t+1, ((t+1)>>2)&1); M4 = lambda: pv(t, 0)
        rV = lambda: rdV((t+1)&1, t+1)
        E = lambda i, j: ex(t, i, j); C = lambda i, j: cv(t, i, j)
        a("s_waitcnt lgkmcnt(0)")
        o = OPT.get("ord", "a")
        if o == "a":
            M1(); rK(); E(0,4); M2(); rV(); E(4,8); C(0,4); M3(); E(8,12); M4(); adv(); E(12,16); C(4,8)
        elif o == "b":
            M1(); rK(); M2(); rV(); E(0,8); C(0,4); M3(); E(8,9); M4(); adv(); E(9,16); C(4,8)
        elif o == "c":
            M1(); rK(); E(0,5); M2(); rV(); E(5,8); C(0,4); M3(); E(8,13); M4(); adv(); E(13,16); C(4,8)
        elif o == "d":
            M1(); rK(); E(0,4); C(0,1); M2(); rV(); E(4,8); C(1,3); M3(); E(8,12); C(3,5); E(12,13); M4(); adv(); E(13,16); C(5,8)
        elif o == "e":
            M1(); rK(); M2(); rV(); M3(); E(0,8); C(0,4); E(8,10); M4(); adv(); E(10,16); C(4,8)
        elif o == "f":
            M1(); E(0,2); rK(); E(2,4); M2(); E(4,6); rV(); E(6,8); C(0,4); M3(); E(8,12); M4(); adv(); E(12,16); C(4,8)
    a(f"s_cbranch_scc1 {tag}_loop")
    if fast: stamp("Bloop")
    a("s_nop 1")
    pv(7, 1)

def phaseB():
    a(f"""
    s_cmp_ge_u32 s3, 8
    s_cbranch_scc1 b_aux
    s_and_b32 s4, s2, 31                 ; head
    s_lshr_b32 s5, s2, 5
    s_lshl_b32 s5, s5, 3
    s_add_u32 s5, s5, s3
    s_and_b32 s7, s4, 3
    v_lshlrev_b32 v{vK}, 4, v116
    v_and_b32 v117, 31, v116
    v_lshlrev_b32 v119, 4, v116
    s_lshl_b32 s8, s3, 10
    s_add_u32 s8, s8, {L_Q}
    v_add_u32 v120, s8, v{vK}
    s_lshl_b32 s8, s3, 8
    s_add_u32 s8, s8, {L_Q + 8192}
    v_lshl_add_u32 v118, v117, 3, s8
    """)
    for i in range(16): a(f"v_mov_b32 v{O+i}, 0")
    for i in range(4): a(f"v_mov_b32 v{P+4+i}, 0")
    a(f"""v_and_b32 v121, 27, v116
    v_cmp_eq_u32 vcc, 18, v121
    v_mov_b32 v121, 0x3f803f80
    s_nop 0
    v_cndmask_b32 v{VF[0]}, 0, v121, vcc""")
    for i in range(1, 16): a(f"v_mov_b32 v{VF[0]+i}, v{VF[0]}")
    a(f"""
    v_lshlrev_b32 v{vT}, 3, v116
    v_add_u32 v{vT}, {L_KT}, v{vT}
    v_lshrrev_b32 v121, 5, v116
    v_mul_u32_u24 v121, 288, v121
    v_lshl_add_u32 v{vV}, v117, 4, v121
    v_add_u32 v{vV}, {L_V}, v{vV}
    s_mov_b32 s18, 0x3ffff
    s_mov_b32 s19, 0x3ffff
    s_mov_b32 s21, {f2u(18**-0.5 * 1.4426950408889634):#x}
    v_cmp_lt_u32 s[22:23], 31, v116
    s_setprio 3
    """)
    stamp("Bflag")
    a(f"""
    s_barrier
    ds_read_b128 {vr(Q,4)}, v120
    ds_read_b64 {vr(QL,2)}, v118
    s_waitcnt lgkmcnt(0)
    s_barrier
    """)
    for r in list(range(Q, Q+4)) + [QL, QL+1]:
        a(f"""v_lshlrev_b32 v121, 16, v{r}
        v_and_b32 v{r}, 0xffff0000, v{r}
        v_mul_f32 v121, s21, v121
        v_mul_f32 v{r}, s21, v{r}
        v_cvt_pk_bf16_f32 v{r}, v121, v{r}""")
    a(f"""
    s_cmp_eq_u32 s7, 1
    s_cselect_b32 vcc_lo, -1, 0
    s_mov_b32 vcc_hi, 0
    v_cndmask_b32 v{Q}, v{Q}, 0, vcc
    s_cmp_eq_u32 s7, 2
    s_cselect_b32 vcc_hi, -1, 0
    s_mov_b32 vcc_lo, 0
    v_cndmask_b32 v{Q+3}, v{Q+3}, 0, vcc
    s_cmp_eq_u32 s7, 3
    s_cselect_b64 vcc, -1, 0
    v_cndmask_b32 v{QL}, v{QL}, 0, vcc
    s_cmp_eq_u32 s7, 0
    s_cselect_b64 vcc, -1, 0
    v_cndmask_b32 v{QL+1}, v{QL+1}, 0, vcc
    v_cndmask_b32 v{QH}, 0, v{QL}, s[22:23]
    v_cndmask_b32 v{QH+1}, 0, v{QL+1}, s[22:23]
    v_cndmask_b32 v{QL}, v{QL}, 0, s[22:23]
    v_cndmask_b32 v{QL+1}, v{QL+1}, 0, s[22:23]
    """)
    stamp("Bgo")
    att_run(True)
    a(f"""
    s_mul_i32 s10, s5, {O_T}
    s_add_u32 s10, s10, {WS_O}
    s_lshl_b32 s11, s4, 10
    s_add_u32 s11, s11, s10
    s_lshl_b32 s12, s4, 7
    s_add_u32 s12, s12, s10
    s_add_u32 s12, s12, 32768
    s_lshl_b32 s59, s5, 5
    s_add_u32 s59, s59, s4
    s_mul_i32 s59, s59, {FS}
    s_add_u32 s59, s59, {FL_B}
    s_mov_b32 s27, {f2u(2.0**100):#x}
    v_lshlrev_b32 v127, 2, v116
    s_nop 1
    v_max3_f32 v121, abs(v{O}), abs(v{O+1}), abs(v{O+2})
    v_max3_f32 v121, abs(v{O+3}), abs(v{O+4}), v121
    v_max3_f32 v121, abs(v{O+5}), abs(v{O+6}), v121
    v_max3_f32 v121, abs(v{O+7}), abs(v{O+8}), v121
    v_add_f32 v122, v{O}, v{O+1}
    v_add_f32 v123, v{O+2}, v{O+3}
    v_add_f32 v124, v{O+4}, v{O+5}
    v_add_f32 v125, v{O+6}, v{O+7}
    v_add_f32 v126, v{O+8}, v{O+9}
    v_add_f32 v122, v122, v123
    v_add_f32 v124, v124, v125
    v_add_f32 v122, v122, v126
    v_add_f32 v122, v122, v124
    v_max3_f32 v121, abs(v{O+9}), v{O+10}, v121
    v_cmp_ngt_f32 vcc, s27, v121
    v_cmp_nle_f32 s[28:29], 1.0, v{O+10}
    v_cmp_u_f32 s[30:31], v122, v122
    s_or_b64 vcc, vcc, s[28:29]
    s_or_b64 vcc, vcc, s[30:31]
    s_cbranch_vccnz b_slow
    b_fin:
    v_rcp_f32 v121, v{O+10}
    s_nop 0
    """)
    for r in range(10): a(f"v_mul_f32 v{O+r}, v{O+r}, v121")
    for c in range(5): a(f"v_cvt_pk_bf16_f32 v{P+c}, v{O+2*c}, v{O+2*c+1}")
    a(f"""
    buffer_store_dwordx4 {vr(P,4)}, v119, s[36:39], s11 offen sc1
    s_mov_b32 exec_hi, 0
    buffer_store_dword v{P+4}, v127, s[36:39], s12 offen sc1
    s_mov_b32 exec_hi, -1
    v_mov_b32 v0, v116
    s_waitcnt lgkmcnt(0)
    s_barrier
    s_waitcnt vmcnt(0)
    """)
    stamp("Back")
    flag_set("s59", 2)
    a("s_branch c_start")
    a(f"""
    b_aux:
    s_and_b32 s4, s2, 31
    s_mul_i32 s6, s4, 9
    s_lshr_b32 s6, s6, 2
    v_mov_b32 v8, {L_FL}
    s_setprio 3
    s_cmp_lg_u32 s3, 11
    s_cbranch_scc1 b_nopoll
    s_mul_i32 s9, s4, 18
    v_lshrrev_b32 v7, 5, v116
    v_lshl_add_u32 v9, v7, 1, s6
    v_add_u32 v10, 72, v9
    v_lshrrev_b32 v10, 3, v10
    v_and_b32 v11, 31, v116
    v_lshl_add_u32 v10, v10, 5, v11
    v_mul_u32_u24 v120, {FS}, v10
    v_mul_u32_u24 v10, 17, v7
    v_add_u32 v10, s9, v10
    v_add_u32 v10, 1152, v10
    v_lshrrev_b32 v10, 6, v10
    v_lshl_add_u32 v10, v10, 5, v11
    v_mul_u32_u24 v121, {FS}, v10
    v_lshrrev_b32 v10, 3, v9
    s_lshr_b32 s9, s2, 5
    s_lshl_b32 s9, s9, 2
    v_and_b32 v11, 3, v116
    v_add_u32 v11, s9, v11
    v_lshl_add_u32 v10, v10, 5, v11
    v_mul_u32_u24 v122, {FS}, v10
    s_cmp_ge_u32 s2, 224
    s_cselect_b32 s9, 16, 0
    v_add_u32 v9, s9, v8
    b_pw:
    s_sleep 1
    ds_read_b128 v[12:15], v9 offset:416
    s_waitcnt lgkmcnt(0)
    v_or_b32 v12, v12, v13
    v_or3_b32 v12, v12, v14, v15
    v_cmp_eq_u32 vcc, 0, v12
    s_cbranch_vccz b_pw
    """)
    stamp("Xpw")
    flag_poll("b_pa", 3, 120)
    stamp("Xpoll")
    a(f"""
    v_mov_b32 v9, 0
    ds_write_b32 v8, v9 offset:244
    b_nopoll:
    s_bitcmp1_b32 s3, 0
    s_cbranch_scc1 b_ldv
    s_bfe_u32 s7, s4, 0x10001
    s_add_u32 s8, s6, s7
    s_lshl_b32 s8, s8, 9
    s_lshl_b32 s9, s6, 9
    s_mul_i32 s10, s7, {1024 - 8}
    s_sub_u32 s9, s9, s10
    s_add_u32 s9, s9, 1024
    v_lshlrev_b32 v118, 4, v116
    v_lshrrev_b32 v119, 1, v116
    v_lshlrev_b32 v119, 4, v119
    v_and_b32 v120, 1, v116
    v_lshl_add_u32 v119, v120, 2, v119
    s_lshr_b32 s15, s2, 5
    s_mul_i32 s15, s15, {8*QK_T}
    s_cmp_eq_u32 s3, 10
    s_cbranch_scc1 b_ldt
    """)
    def zflag(off):
        a(f"""s_mov_b32 s13, m0
        s_mov_b32 m0, {L_FL + off}
        v_mov_b32 v13, 0x7ffffff0
        s_mov_b64 exec, 1
        buffer_load_dword v13, s[36:39], 0 offen lds
        s_mov_b64 exec, -1
        s_mov_b32 m0, s13""")
    def stream(tag, op, vreg, sbase, lq, lk, step, fl):
        a(f"s_add_u32 s15, s15, {sbase}\ns_add_u32 s16, {sbase}, {72*512}\ns_mov_b32 m0, {lq}\ns_mov_b32 s12, 8")
        lds_wait(f"{tag}_go", 8, 244, 9, True)
        def loop(t, sreg):
            a(f"""{t}:
            {op} v{vreg}, s[36:39], {sreg} offen sc1 lds
            s_add_u32 m0, m0, {step}
            s_add_u32 {sreg}, {sreg}, {QK_T}
            s_sub_u32 s12, s12, 1
            s_cmp_lg_u32 s12, 0
            s_cbranch_scc1 {t}""")
        loop(f"{tag}_q", "s15")
        a(f"s_mov_b32 m0, {lk}\ns_mov_b32 s12, 8")
        loop(f"{tag}_1", "s16")
        stamp("Xiss")
        a("s_mov_b32 s12, 8\ns_waitcnt vmcnt(0)")
        stamp("Xland")
        a("s_barrier\ns_barrier")
        loop(f"{tag}_2", "s16")
        zflag(fl)
        a("s_mov_b32 s12, 48")
        loop(f"{tag}_3", "s16")
        a("s_branch b_lend")
    stream("b_k", "buffer_load_dwordx4", 118, "s8", L_Q, 0, 1024, 464)
    a("b_ldt:")
    stream("b_t", "buffer_load_dword", 119, "s9", L_Q + 8192, L_KT, 256, 468)
    a(f"""
    b_ldv:
    s_mov_b32 s10, {9216 - 288}
    """)
    for p in range(9):
        a(f"""v_add_u32 v10, {64*p}, v116
        v_mul_u32_u24 v11, 3641, v10
        v_lshrrev_b32 v11, 16, v11
        v_mul_lo_u32 v11, v11, s10
        v_lshl_add_u32 v{24+p}, v10, 4, v11""")
    a(f"""
    s_bfe_u32 s9, s3, 0x10001
    s_mul_i32 s8, s9, {32*9216}
    s_mul_i32 s10, s4, 288
    s_add_u32 s8, s8, s10
    s_add_u32 s8, s8, {WS_V}
    s_mul_i32 s9, s9, 9216
    s_add_u32 m0, s9, {L_V}
    s_mov_b32 s12, 0
    """)
    a("s_cmp_eq_u32 s3, 9\ns_cbranch_scc1 b_v_go\ns_barrier\ns_barrier\ns_branch b_v")
    lds_wait("b_v_go", 8, 244, 9, True)
    a("b_v:")
    for p in range(9): a(f"buffer_load_dwordx4 v{24+p}, s[36:39], s8 offen sc1 lds\ns_add_u32 m0, m0, {1024 if p < 8 else 1024 + 9216}\ns_nop 0")
    a(f"""
    s_add_u32 s8, s8, {64*9216}
    s_cmp_lg_u32 s12, 0
    s_cbranch_scc1 b_v1
    s_cmp_eq_u32 s3, 9
    s_cbranch_scc1 b_v0
    """)
    zflag(472)
    a(f"""
    s_branch b_v1
    b_v0:
    s_waitcnt vmcnt(0)
    s_barrier
    s_barrier
    b_v1:
    s_add_u32 s12, s12, 1
    s_cmp_lt_u32 s12, 4
    s_cbranch_scc1 b_v
    b_lend:
    s_waitcnt vmcnt(0)
    s_barrier
    """)
    srd(28, 94, 663552)
    srd(32, 96, 4718592)
    a(f"""
    s_lshr_b32 s12, s2, 3
    s_lshl_b32 s12, s12, 2
    s_add_u32 s12, s12, s3
    s_sub_u32 s12, s12, 8
    s_lshl_b32 s12, s12, 13
    v_lshlrev_b32 v121, 7, v116
    buffer_load_dword v115, v121, s[28:31], s12 offen
    s_cmp_lg_u32 s3, {99 if ("nossm" in OPT or "noconv" in OPT) else 9}
    s_cbranch_scc1 b_noy
    s_mov_b32 s4, s2
    v_lshrrev_b32 v10, 3, v116
    v_and_b32 v9, 7, v116
    v_lshlrev_b32 v11, 12, v10
    v_lshl_add_u32 v11, v9, 4, v11
    v_xor_b32 v12, v10, v9
    v_lshlrev_b32 v12, 4, v12
    v_lshl_add_u32 v12, v9, 10, v12
    v_add_u32 v12, {L_BOUNCE}, v12
    s_mov_b32 s50, 0x05040100
    s_mov_b32 s51, 0x07060302
    """)
    for p in range(8): a(f"v_xor_b32 v{24+p}, {16*p}, v11")
    a(f"""
    b_y:
    s_lshr_b32 s5, s4, 5
    s_and_b32 s6, s4, 31                 ; sub
    s_lshl_b32 s7, s5, 7
    s_lshr_b32 s8, s6, 4
    s_add_u32 s7, s7, s8
    v_lshl_add_u32 v120, v116, 1, s7
    v_mul_u32_u24 v120, {FS}, v120
    v_add_u32 v120, {FL_Y}, v120
    """)
    flag_poll("b_py", 1, 120)
    a(f"""
    s_lshl_b32 s7, s5, 18
    s_lshl_b32 s8, s6, 7
    s_add_u32 s7, s7, s8
    s_add_u32 s7, s7, {WS_Y}
    s_mov_b32 m0, {L_BOUNCE}
    """)
    for p in range(8):
        a(f"s_nop 0\nbuffer_load_dwordx4 v{24+p}, s[36:39], s7 offen sc1 lds\ns_add_u32 m0, m0, 1024\ns_add_u32 s7, s7, 32768")
    a(f"""
    s_and_b32 s8, s6, 3
    s_lshl_b32 s8, s8, 3
    s_bfe_u32 s9, s6, 0x10002
    s_lshl_b32 s9, s9, 7
    s_add_u32 s8, s8, s9
    s_lshr_b32 s9, s6, 3
    s_lshl_b32 s9, s9, 9
    s_add_u32 s8, s8, s9
    v_add_u32 v17, s8, v10
    v_mul_u32_u24 v17, 2304, v17
    v_lshl_add_u32 v17, v9, 4, v17
    s_lshl_b32 s8, s5, 7
    s_add_u32 s8, s8, 1152
    s_waitcnt vmcnt(0)
    """)
    for j in range(8): a(f"ds_read_b128 {vr(32+4*j,4)}, v12 offset:{j*128}")
    a("s_waitcnt lgkmcnt(0)")
    transpose8(32, 64, 50, 51)
    for c in range(8):
        a(f"s_add_u32 s9, s8, {((c&3)*32 + (c>>2)*256)*2304}\nbuffer_store_dwordx4 {vr(64+4*c,4)}, v17, s[32:35], s9 offen {OPT.get('sty','sc1')}")
    a(f"""
    s_add_u32 s4, s4, 256
    s_cmp_lt_u32 s4, 288
    s_cbranch_scc1 b_y
    b_noy:
    s_setprio 0
    v_mov_b32 v0, v116
    s_lshr_b32 s5, s2, 5                 ; tn
    s_mul_i32 s17, s5, 192
    """)
    for t in range(3):
        a(f"""v_add_u32 v5, {64*t}, v0
        v_mul_u32_u24 v6, 5462, v5
        v_lshrrev_b32 v6, 16, v6             ; row
        v_mul_u32_u24 v7, 12, v6
        v_sub_u32 v7, v5, v7
        v_lshl_add_u32 v7, v7, 4, s17
        v_mul_u32_u24 v8, 1152, v6
        v_add_u32 v{12+t}, v8, v7
        v_and_b32 v9, 4, v6
        v_lshrrev_b32 v10, 3, v6
        v_lshl_add_u32 v9, v10, 1, v9
        v_bfe_u32 v10, v6, 1, 1
        v_add_u32 v9, v9, v10
        v_mul_u32_u24 v9, 18, v9
        v_and_b32 v10, 1, v6
        v_add3_u32 v9, v9, v10, 16
        v_mul_u32_u24 v9, 1152, v9
        v_add_u32 v{16+t}, v9, v7""")
    a(f"""
    s_sub_u32 s8, s3, 8
    s_mul_i32 s10, s8, {9*20736}
    s_mul_i32 m0, s8, {9*3072}
    s_mov_b32 s12, 20736
    s_mov_b32 s13, 0
    s_barrier
    s_cmp_ge_u32 s2, 192
    s_cbranch_scc1 c_idle
    b_w:
    s_cmp_lg_u32 s13, 5
    s_cbranch_scc1 b_w1
    s_cmp_lg_u32 s8, 3
    s_cbranch_scc1 b_w1
    v_mov_b32 v12, v16
    v_mov_b32 v13, v17
    v_mov_b32 v14, v18
    s_mov_b32 s10, 0
    s_mov_b32 s12, {8*20736}
    b_w1:
    buffer_load_dwordx4 v12, s[28:31], s10 offen lds
    s_add_u32 m0, m0, 1024
    s_add_u32 s13, s13, 1
    buffer_load_dwordx4 v13, s[28:31], s10 offen lds
    s_add_u32 m0, m0, 1024
    s_cmp_lt_u32 s13, 9
    buffer_load_dwordx4 v14, s[28:31], s10 offen lds
    s_cbranch_scc0 c_start
    s_add_u32 m0, m0, 1024
    s_add_u32 s10, s10, s12
    s_branch b_w
    """)

def phaseC():
    a(f"""
    c_start:
    s_cmp_ge_u32 s2, 192
    s_cbranch_scc1 k_done2
    """)
    srd(32, 96, 4718592)
    a(f"""
    s_and_b32 s4, s2, 7
    s_bfe_u32 s6, s2, 0x20003
    s_lshl_b32 s7, s4, 2
    s_add_u32 s7, s7, s6                 ; tm
    s_lshr_b32 s5, s2, 5                 ; tn
    s_mul_i32 s8, s3, 43
    s_lshr_b32 s8, s8, 7                 ; w/3
    s_mul_i32 s9, s8, 3
    s_sub_u32 s9, s3, s9                 ; tb = w%3
    s_lshr_b32 s13, s8, 1                ; kh
    s_and_b32 s14, s8, 1                 ; ta
    v_lshrrev_b32 v5, 5, v0
    v_bfe_u32 v6, v0, 2, 2
    v_lshl_add_u32 v6, v5, 2, v6
    v_mul_u32_u24 v4, 192, v6
    v_bfe_u32 v6, v0, 4, 1
    v_lshl_add_u32 v4, v6, 5, v4
    v_and_b32 v6, 3, v0
    v_lshl_add_u32 v4, v6, 3, v4
    s_lshl_b32 s17, s9, 6
    s_mul_i32 s18, s13, {18*3072}
    s_add_u32 s17, s17, s18
    v_add_u32 v4, s17, v4
    v_lshlrev_b32 v2, 4, v0
    s_mul_i32 s17, s8, {18*1024}
    v_add_u32 v3, s17, v2
    v_and_b32 v11, 31, v0
    v_lshlrev_b32 v11, 2, v11
    v_lshl_add_u32 v11, v5, 9, v11
    v_add_u32 v11, s17, v11
    v_add_u32 v11, {14*1024}, v11
    s_lshl_b32 s15, s7, 1
    s_add_u32 s15, s15, s14
    s_mul_i32 s16, s15, {O_T}
    s_mul_i32 s18, s13, {18*1024}
    s_add_u32 s16, s16, s18
    s_lshl_b32 s18, s9, 10
    s_add_u32 s16, s16, s18
    s_add_u32 s16, s16, {WS_O}
    s_add_u32 s17, s17, s18
    s_mul_i32 s18, s7, {64*FS}
    s_add_u32 s18, s18, {FL_B}
    v_mul_u32_u24 v120, {FS}, v0
    v_add_u32 v120, s18, v120
    s_cmp_lt_u32 s3, 8
    s_cbranch_scc1 c_nw
    s_waitcnt vmcnt(0)
    c_nw:
    s_barrier
    """)
    stamp("CW")
    a("s_cmp_lg_u32 s3, 8\ns_cbranch_scc1 c_ni")
    poll_issue(1, 120)
    a("c_ni:")
    for k in range(18):
        a(f"ds_read_b64_tr_b16 {vr(32+4*k,2)}, v4 offset:{k*3072}\nds_read_b64_tr_b16 {vr(34+4*k,2)}, v4 offset:{k*3072+8*192}")
        if k % 4 == 3: a("s_waitcnt lgkmcnt(6)")
    a("s_cmp_lg_u32 s3, 8\ns_cbranch_scc1 c_np")
    flag_poll("c_pb", 1, 120, issued=True)
    a("c_np:\ns_mov_b32 m0, s17\ns_waitcnt lgkmcnt(0)\ns_barrier")
    stamp("Cflag")
    for i in range(6):
        a("buffer_load_dwordx4 v2, s[36:39], s16 offen sc1 lds")
        if i < 5: a("s_add_u32 m0, m0, 3072\ns_add_u32 s16, s16, 3072")
    a(f"""
    s_mul_i32 s18, s3, 2048
    s_add_u32 s18, s18, 81920
    v_add_u32 v6, s18, v2
    s_mov_b32 s19, {-6*2048 & 0xffffffff:#x}
    s_cmp_eq_u32 s13, 0
    s_cselect_b32 s19, {6*2048}, s19
    v_add_u32 v7, s19, v6                ; partner's
    v_mul_u32_u24 v5, {8*2304}, v5
    v_and_b32 v8, 31, v0
    v_lshl_add_u32 v5, v8, 1, v5
    s_mul_i32 s17, s15, {32*2304}
    s_mul_i32 s18, s5, 192
    s_add_u32 s17, s17, s18
    s_lshl_b32 s18, s9, 6
    s_add_u32 s17, s17, s18
    s_mul_i32 s18, s13, {16*2304}
    s_add_u32 s17, s17, s18
    """)
    for c in range(3):
        a(f"s_waitcnt vmcnt({4-2*c})\ns_barrier")
        if c == 0: stamp("Cfirst")
        if c < 2:
            for k in range(6): a(f"ds_read_b128 {vr(104+4*k,4)}, v3 offset:{(6*c+k)*1024}")
        else:
            for k in range(2): a(f"ds_read_b128 {vr(104+4*k,4)}, v3 offset:{(6*c+k)*1024}")
            a("s_cmp_eq_u32 s13, 1\ns_cbranch_scc1 c_tl")
            for k in range(2, 6): a(f"ds_read_b128 {vr(104+4*k,4)}, v3 offset:{(6*c+k)*1024}")
            a("s_branch c_tm\nc_tl:")
            for k in range(2, 6):
                a(f"""ds_read2_b32 {vr(104+4*k,2)}, v11 offset0:0 offset1:32
                ds_read2_b32 {vr(106+4*k,2)}, v11 offset0:64 offset1:96
                v_add_u32 v11, 1024, v11""")
            a("s_waitcnt lgkmcnt(0)\nc_tm:")
        for k in range(6):
            a(f"s_waitcnt lgkmcnt({5-k})")
            a(f"v_mfma_f32_32x32x16_bf16 v[16:31], {vr(104+4*k,4)}, {vr(32+4*(6*c+k),4)}, " + ("0" if c == 0 and k == 0 else "v[16:31]"))
    stamp("Cmfma")
    a("""
    s_nop 10
    s_cmp_eq_u32 s13, 0
    s_cbranch_scc1 c_x0
    ds_write_b128 v6, v[16:19]
    ds_write_b128 v6, v[20:23] offset:1024
    s_waitcnt lgkmcnt(0)
    """)
    for r in range(8): a(f"v_mov_b32 v{16+r}, v{24+r}")
    a("""s_branch c_x1
    c_x0:
    ds_write_b128 v6, v[24:27]
    ds_write_b128 v6, v[28:31] offset:1024
    c_x1:
    s_waitcnt lgkmcnt(0)
    s_barrier
    ds_read_b128 v[32:35], v7
    ds_read_b128 v[36:39], v7 offset:1024
    s_waitcnt lgkmcnt(0)""")
    for r in range(8): a(f"v_add_f32 v{16+r}, v{16+r}, v{32+r}")
    for c in range(4): a(f"v_cvt_pk_bf16_f32 v{40+c}, v{16+2*c}, v{16+2*c+1}")
    for c in range(4):
        a(f"""s_add_u32 s18, s17, {2*c*2304}
        buffer_store_short v{40+c}, v5, s[32:35], s18 offen {OPT.get('sto','')}
        buffer_store_short_d16_hi v{40+c}, v5, s[32:35], s18 offen offset:2304 {OPT.get('sto','')}""")
    a("k_done2:")
    if DIAG:
        a(f"""s_cmp_lg_u32 s2, {OPT.get("dwg", 0)}
        s_cbranch_scc1 k_done
        s_cmp_lg_u32 s3, {OPT.get("dw", 4)}
        s_cbranch_scc1 k_done
        s_waitcnt vmcnt(0)
        s_memrealtime s[74:75]
        s_waitcnt lgkmcnt(0)
        {"s_mov_b32 s72, s74" if DIAG == "end" else "s_mov_b32 s72, s70" if DIAG == "none" else ""}
        s_sub_u32 s76, s72, s70
        s_min_u32 s76, s76, 10000
        s_lshl_b32 s76, s76, 2
        s_add_u32 s76, s76, 5000
        dg_spin:
        s_memrealtime s[78:79]
        s_waitcnt lgkmcnt(0)
        s_sub_u32 s77, s78, s70
        s_cmp_lt_u32 s77, s76
        s_cbranch_scc1 dg_spin""")
    stamp_out()
    a(f"""k_done:
    s_endpgm
    c_idle:
    s_cmp_lg_u32 s2, 255
    s_cbranch_scc1 k_done2
    s_cmp_lg_u32 s3, 8
    s_cbranch_scc1 k_done2
    v_lshrrev_b32 v120, 5, v116
    v_lshlrev_b32 v120, 8, v120
    v_and_b32 v121, 31, v116
    v_add_u32 v120, v120, v121
    v_mul_u32_u24 v120, {FS}, v120
    v_add_u32 v120, {FL_B}, v120
    v_add_u32 v121, {512*FS}, v120
    v_add_u32 v122, {1024*FS}, v120
    v_add_u32 v123, {1536*FS}, v120
    """)
    flag_poll("c_pe", 4, 120)
    a(f"s_mov_b32 s6, {FL_E}")
    flag_set("s6", 2)
    a("s_branch k_done2")
    a(f"""
    b_slow:
    v_subrev_u32 v{vK}, 65536, v{vK}
    v_subrev_u32 v{vT}, 16384, v{vT}
    v_subrev_u32 v{vV}, {8*9216}, v{vV}
    s_mov_b32 s26, 0
    v_mov_b32 v121, 0xff800000
    s_waitcnt lgkmcnt(0)
    b_mx:
    """)
    rdT(0, 0)
    for t in range(4):
        rdK(0, t)
        a("s_waitcnt lgkmcnt(0)")
        a(f"v_mfma_f32_32x32x16_bf16 {vr(S[0],16)}, {vr(KF[0],4)}, {vr(Q,4)}, 0")
        a(f"v_mfma_f32_32x32x8_bf16 {vr(S[0],16)}, {vr(TF[0]+2*(t>>1),2)}, {vr(QH if t&1 else QL,2)}, {vr(S[0],16)}")
        a("s_nop 15")
        for r in range(8): a(f"v_max3_f32 v121, v{S[0]+2*r}, v{S[0]+2*r+1}, v121")
    a(f"""
    v_add_u32 v{vK}, 4096, v{vK}
    v_add_u32 v{vT}, 1024, v{vT}
    s_add_u32 s26, s26, 1
    s_cmp_lt_u32 s26, 16
    s_cbranch_scc1 b_mx
    v_subrev_u32 v{vK}, 65536, v{vK}
    v_subrev_u32 v{vT}, 16384, v{vT}
    v_mov_b32 v122, v121
    s_nop 1
    v_permlane32_swap_b32 v121, v122
    s_nop 1
    v_max_f32 v121, v121, v122
    """)
    for i in range(16): a(f"v_sub_f32 v{NEG+i}, 0, v121")
    att_run(False)
    a("s_nop 15\ns_branch b_fin")

def main():
    ref = open("concat_heads__mha_block__ssm_conv_s4d__prompt.s.ref").read().split("\n")
    head = [l for l in ref if l.startswith(";") and "@launch" not in l and "Override launch" not in l and "grid=ceil" not in l]
    head += ["; @launch grid=(256,1,1) block=(768,1,1) lds=163840"]
    a(f".text\n.globl {KN}\n.p2align 8\n.type {KN},@function\n{KN}:")
    if INSTR:
        for i in range(70, 90): a(f"s_mov_b32 s{i}, 0")
        a("s_memtime s[70:71]\ns_memrealtime s[86:87]")
    if DIAG: a("s_memrealtime s[70:71]")
    phaseA(); phaseB(); phaseC()
    desc = f""".section .rodata,"a"
.p2align 6
.amdhsa_kernel {KN}
  .amdhsa_next_free_vgpr 168
  .amdhsa_next_free_sgpr 102
  .amdhsa_accum_offset 168
  .amdhsa_group_segment_fixed_size 0
  .amdhsa_kernarg_size 104
  .amdhsa_user_sgpr_count 2
  .amdhsa_user_sgpr_kernarg_segment_ptr 1
  .amdhsa_system_sgpr_workgroup_id_x 1
.end_amdhsa_kernel
"""
    out = "\n".join(head) + "\n.amdgcn_target \"amdgcn-amd-amdhsa--gfx950\"\n" + a.text() + desc
    path = sys.argv[1] if len(sys.argv) > 1 and sys.argv[1].endswith(".s") else "concat_heads__mha_block__ssm_conv_s4d__prompt.s"
    open(path, "w").write(out)
main()
```

```python
import sys, struct
KN = "concat_heads__mha_block__ssm_conv_s4d__prompt_kernel"
def f2u(x): return struct.unpack("<I", struct.pack("<f", x))[0]
INSTR = "instr" in sys.argv
OPT = dict(x.split("=") for x in sys.argv if "=" in x)

WS_QK = 0; QK_T = 73728
WS_V = WS_QK + 64 * QK_T
WS_O = WS_V + 256 * 9216; O_T = 36864
WS_U = WS_O + 64 * O_T
WS_Y = WS_U + 576 * 4096
WS_FL = WS_Y + 576 * 4096
FS = 128
FL_A = 0; FL_S = 864 * FS; FL_Y = FL_S + 288 * FS; FL_B = FL_Y + 1152 * FS; FL_E = FL_B + 2048 * FS
WS_END = WS_FL + FL_E + FS
WS_ST = 24 << 20
L_FL = 155648
KC = 4156
KAREA = 8448
L_KT = 65536; L_V = 81920; L_BOUNCE = 155648; L_Q = 102400

class A:
    def __init__(s): s.l = []
    def __call__(s, t):
        for line in t.strip("\n").split("\n"):
            q = line.strip()
            if not q: continue
            s.l.append(q if q.endswith(":") else "    " + q)
    def text(s): return "\n".join(s.l) + "\n"
a = A()
def vr(b, n): return f"v[{b}:{b+n-1}]"
def srd(d, lo, size):
    a(f"""s_mov_b32 s{d}, s{lo}
    s_mov_b32 s{d+1}, s{lo+1}
    s_mov_b32 s{d+2}, {size}
    s_mov_b32 s{d+3}, 0x20000""")

SSETS = {"1": ["Aend", "Aack", "Bflag", "Bgo", "Bloop", "Back"],
         "2": ["Bloop", "Back", "CW", "Cflag", "Cfirst", "Cmfma"],
         "4": ["Aack", "Xpw", "Xpoll", "Xiss", "Xland", "Bgo"],
         "3": ["Afirst", "Akgen", "Abuilt", "Aconv", "Aend", "Aack"]}
DIAG = OPT.get("diag")
def stamp(name):
    if DIAG == name: a("s_memrealtime s[72:73]")
    if INSTR and name in SSETS[OPT.get("sset", "1")]:
        i = SSETS[OPT.get("sset", "1")].index(name) + 1
        a(f"s_memtime s[{70+2*i}:{71+2*i}]")
def stamp_out():
    if not INSTR: return
    a(f"""s_waitcnt vmcnt(0)
    s_memtime s[84:85]
    s_memrealtime s[88:89]
    s_waitcnt lgkmcnt(0)
    s_mov_b64 exec, 1
    s_lshl_b32 s90, s2, 4
    s_add_u32 s90, s90, s3
    s_lshl_b32 s90, s90, 6
    s_add_u32 s90, s90, {WS_ST}
    v_mov_b32 v166, s90""")
    for i in range(10):
        a(f"v_mov_b32 v167, s{70+2*i}\nglobal_store_dword v166, v167, s[24:25] offset:{4*i}")

def transpose8(I, O, sLO, sHI):
    for c in range(8):
        for t in range(4):
            a(f"v_perm_b32 v{O+4*c+t}, v{I+4*(2*t+1)+(c>>1)}, v{I+4*(2*t)+(c>>1)}, s{sHI if c&1 else sLO}")

def flag_set(soff, t):
    a(f"""v_mov_b32 v{t}, {WS_FL}
    v_mov_b32 v{t+1}, s92
    s_mov_b64 exec, 1
    buffer_store_dword v{t+1}, v{t}, s[36:39], {soff} offen sc1
    s_mov_b64 exec, -1""")
def poll_issue(n, t):
    for i in range(n): a(f"buffer_load_dword v{t+4+i}, v{t+i}, s[36:39], s93 offen sc1")
def flag_poll(tag, n, t, issued=False):
    a("s_mov_b32 s91, 0")
    if issued: a(f"s_branch {tag}_c")
    a(f"{tag}:")
    poll_issue(n, t)
    a(f"{tag}_c:\ns_add_u32 s91, s91, 1\ns_waitcnt vmcnt(0)")
    for i in range(n): a(f"v_xor_b32 v{t+4+i}, s92, v{t+4+i}")
    for i in range(1, n): a(f"v_or_b32 v{t+4}, v{t+4}, v{t+4+i}")
    a(f"""v_cmp_ne_u32 vcc, 0, v{t+4}
    s_cbranch_vccz {tag}_x
    s_mov_b64 exec, vcc
    s_sleep {OPT.get("slp", 2)}
    s_cmp_lt_u32 s91, 0x80000
    s_cbranch_scc1 {tag}
    {tag}_x:
    s_mov_b64 exec, -1""")
def lds_wait(tag, vaddr, off, t, slp=False):
    a(f"""{tag}:
    {"s_sleep 1" if slp else ""}
    ds_read_b32 v{t}, v{vaddr} offset:{off}
    s_waitcnt lgkmcnt(0)
    v_cmp_eq_u32 vcc, 0, v{t}
    s_cbranch_vccz {tag}""")
def kargs():
    a(f"""s_waitcnt lgkmcnt(0)
    s_add_u32 s68, s24, {WS_FL + FL_E}
    s_addc_u32 s69, s25, 0
    s_load_dword s92, s[68:69], 0""")
    srd(36, 24, WS_END)

def ufetch(tag):
    a(f"""
    s_sub_u32 s43, s3, 8
    s_sub_u32 s45, 11, s3
    s_cmp_ge_u32 s2, 224
    s_cselect_b32 s43, s45, s43
    s_and_b32 s45, s43, 1
    s_lshl_b32 s40, s2, 1
    s_add_u32 s40, s40, s45
    s_add_u32 s46, s40, {512 - 448}
    s_lshl_b32 s44, s43, 13
    s_add_u32 s47, s44, {40960 - 16384}
    s_add_u32 s44, s44, 147968
    s_cmp_ge_u32 s43, 2
    s_cselect_b32 s40, s46, s40          ; channel
    s_cselect_b32 m0, s47, s44
    s_lshr_b32 s46, s40, 6
    s_mul_i32 s46, s46, {32*FS}
    s_add_u32 s46, s46, {FL_S}
    v_and_b32 v10, 31, v0
    v_mul_u32_u24 v10, {FS}, v10
    v_add_u32 v10, s46, v10
    v_lshlrev_b32 v12, 4, v0
    v_mov_b32 v13, 0x7ffffff0
    s_lshl_b32 s44, s40, 12
    s_add_u32 s44, s44, {WS_U}
    s_mov_b32 exec_hi, 0
    """)
    flag_poll(tag, 1, 10)
    for i in range(4): a(f"buffer_load_dwordx4 v12, s[36:39], s44 offen offset:{1024*i} sc1 lds")
    a(f"""s_lshl_b32 s43, s43, 2
    s_add_u32 m0, s43, {L_FL + 448}
    s_mov_b64 exec, 1
    buffer_load_dword v13, s[36:39], 0 offen lds
    s_mov_b64 exec, -1""")

def phaseA():
    mod9 = """
    s_mul_i32 s49, s48, 57
    s_lshr_b32 s49, s49, 9
    s_mul_i32 s49, s49, 9
    s_sub_u32 s48, s48, s49"""
    ROT = {"wg": "s_lshl_b32 s48, s40, 1\ns_add_u32 s48, s48, s41" + mod9, "none": "s_mov_b32 s48, 0",
           "xcd": "s_and_b32 s48, s26, 3\ns_lshl_b32 s48, s48, 1\ns_lshr_b32 s49, s26, 2\ns_mul_i32 s49, s49, 5\ns_add_u32 s48, s48, s49" + mod9}[OPT.get("rot", "xcd")]
    a(f"""
    s_cmp_ge_u32 s2, 256
    s_cbranch_scc1 k_done
    v_lshrrev_b32 v1, 6, v0
    v_and_b32 v0, 63, v0
    v_readfirstlane_b32 s3, v1
    v_mov_b32 v23, {L_FL}
    s_cmp_lg_u32 s3, 9
    s_cbranch_scc1 a_noarm
    v_mov_b32 v14, -1
    v_mov_b32 v15, -1
    v_lshl_add_u32 v16, v0, 3, v23
    ds_write_b64 v16, v[14:15]
    s_waitcnt lgkmcnt(0)
    a_noarm:
    s_load_dwordx16 s[4:19], s[0:1], 0
    s_load_dwordx4 s[20:23], s[0:1], 64
    s_load_dwordx2 s[24:25], s[0:1], 96
    s_load_dwordx2 s[96:97], s[0:1], 80
    s_load_dwordx2 s[94:95], s[0:1], 16
    s_add_u32 s26, s3, 8
    s_sub_u32 s27, s3, 4
    s_cmp_lt_u32 s3, 4
    {"" if OPT.get("remap", "1") == "0" else "s_cselect_b32 s3, s26, s27           ; the waves that start first take the loader role (8..11)"}
    s_and_b32 s26, s2, 7
    s_lshr_b32 s27, s2, 3
    s_and_b32 s40, s26, 3
    s_lshl_b32 s40, s40, 2
    s_and_b32 s44, s27, 3
    s_add_u32 s40, s40, s44
    s_lshr_b32 s41, s26, 2
    s_mul_i32 s41, s41, 7
    s_lshr_b32 s44, s27, 2
    s_add_u32 s41, s41, s44
    s_mov_b32 s93, {WS_FL}
    s_cmp_ge_u32 s3, 8
    s_cbranch_scc1 a_aux
    s_cmp_lt_u32 s3, 4
    s_cbranch_scc1 a_ssm
    s_branch a_gemm
    a_aux:
    s_cmp_ge_u32 s27, 28
    s_cbranch_scc1 a_task
    {ROT}
    s_bfe_u32 s56, s3, 0x10001
    s_bitcmp1_b32 s3, 0
    s_cbranch_scc1 a_ldw
    v_lshrrev_b32 v4, 3, v0
    v_lshrrev_b32 v5, 2, v4
    v_lshlrev_b32 v5, 3, v5
    v_and_b32 v6, 3, v4
    v_add_u32 v5, v5, v6
    s_lshl_b32 s44, s40, 7
    v_add_u32 v5, s44, v5
    v_mul_u32_u24 v5, 1152, v5
    v_lshrrev_b32 v6, 1, v4
    v_and_b32 v7, 7, v0
    v_xor_b32 v6, v6, v7
    v_lshl_add_u32 v2, v6, 4, v5
    v_xor_b32 v6, 4, v6
    v_lshl_add_u32 v3, v6, 4, v5
    v_add_u32 v3, {4608-1024}, v3
    s_mov_b32 s50, 128
    s_mov_b32 s51, 18432
    s_mov_b32 s52, 0
    s_waitcnt lgkmcnt(0)
    s_mov_b32 s28, s4
    s_mov_b32 s29, s5
    s_mov_b32 s30, 2359296
    s_branch a_ld
    a_ldw:
    v_lshrrev_b32 v5, 4, v0
    v_mul_u32_u24 v2, 3456, v5
    v_lshlrev_b32 v5, 2, v5
    v_and_b32 v6, 15, v0
    v_xor_b32 v5, v5, v6
    v_lshl_add_u32 v2, v5, 4, v2
    s_lshl_b32 s44, s41, 8
    v_add_u32 v2, s44, v2
    v_add_u32 v3, {13824-1024}, v2
    s_mov_b32 s50, 221184
    s_mov_b32 s51, 27648
    s_mov_b32 s52, 16384
    s_waitcnt lgkmcnt(0)
    s_mov_b32 s28, s6
    s_mov_b32 s29, s7
    s_mov_b32 s30, 1990656
    a_ld:
    s_setprio {OPT.get("lprio", 0)}
    s_mov_b32 s31, 0x20000
    s_mul_i32 s57, s56, s51
    s_lshl_b32 s57, s57, 2
    s_lshl_b32 s56, s56, 13
    s_add_u32 s52, s52, s56
    s_and_b32 s58, s3, 3
    s_lshl_b32 s58, s58, 2
    s_add_u32 s58, s58, {L_FL}
    v_mov_b32 v4, 0x7ffffff0
    s_mov_b32 s53, 0
    """)
    kargs()
    a(f"""
    a_ld_loop:
    s_cmp_lt_u32 s53, 4
    s_cbranch_scc1 a_ld_go
    a_ld_poll:
    ds_read_b128 v[8:11], v23 offset:160
    s_waitcnt lgkmcnt(0)
    v_or_b32 v8, v8, v9
    v_or3_b32 v8, v8, v10, v11
    v_cmp_eq_u32 vcc, 0, v8
    s_cbranch_vccz a_ld_poll
    v_add_u32 v23, 16, v23
    a_ld_go:
    s_mul_i32 s47, s48, s50
    s_add_u32 s47, s47, s57
    s_and_b32 s55, s53, 3
    s_lshl_b32 s55, s55, 15
    s_add_u32 m0, s55, s52
    s_add_u32 s48, s48, 1
    """)
    for p in range(4):
        a("buffer_load_dwordx4 v2, s[28:31], s47 offen lds\nbuffer_load_dwordx4 v3, s[28:31], s47 offen offset:1024 lds")
        if p < 3: a("s_add_u32 m0, m0, 2048\ns_add_u32 s47, s47, s51")
    a(f"""
    s_cmp_eq_u32 s48, 9
    s_cselect_b32 s48, 0, s48
    s_cmp_lg_u32 s53, 0
    s_cbranch_scc1 a_ld_nb
    s_barrier
    a_ld_nb:
    s_mov_b32 m0, s58
    s_mov_b64 exec, 1
    buffer_load_dword v4, s[28:31], 0 offen lds
    s_mov_b64 exec, -1
    s_add_u32 s58, s58, 16
    s_add_u32 s53, s53, 1
    s_cmp_lt_u32 s53, 9
    s_cbranch_scc1 a_ld_loop
    """)
    a("v_mov_b32 v116, v0\ns_waitcnt lgkmcnt(0)\ns_add_u32 s92, s92, 1\ns_cmp_ge_u32 s3, 10\ns_cbranch_scc1 b_aux\na_uf:")
    ufetch("a_pu")
    a("s_branch b_aux")
    CPF = "" if OPT.get("cpf", "1") == "0" else f"""
    ; read this kernel's own code once per XCD so that later instruction fetches find it in L2 (speed only)
    s_getpc_b64 s[44:45]
    a_pc:
    s_lshl_b32 s46, s27, 2
    s_add_u32 s46, s46, s3
    s_sub_u32 s46, s46, 4
    s_lshl_b32 s46, s46, 8
    s_min_u32 s46, s46, k_last - {KN} - 256
    s_sub_u32 s44, s44, a_pc - {KN}
    s_subb_u32 s45, s45, 0
    s_add_u32 s44, s44, s46
    s_addc_u32 s45, s45, 0
    v_lshlrev_b32 v60, 6, v0
    v_mov_b32 v61, s45
    v_add_co_u32 v60, vcc, s44, v60
    s_mov_b64 exec, 15
    s_nop 0
    v_addc_co_u32 v61, vcc, 0, v61, vcc
    global_load_dword v62, v[60:61], off
    s_mov_b64 exec, -1"""
    a(f"""
    a_gemm:
    {CPF}
    s_cmp_ge_u32 s27, 28
    s_cbranch_scc1 a_ssm
    s_barrier
    """)
    kargs()
    a(f"""
    s_sub_u32 s45, s3, 4
    s_and_b32 s42, s45, 1                ; mw
    s_lshr_b32 s43, s45, 1               ; nw
    s_lshl_b32 s58, s45, 2
    s_add_u32 s58, s58, {L_FL + 160}
    v_mov_b32 v22, 0x7ffffff0
    v_and_b32 v5, 31, v0
    v_lshrrev_b32 v6, 5, v0
    s_lshl_b32 s44, s42, 6
    v_add_u32 v7, s44, v5
    v_lshlrev_b32 v7, 7, v7
    v_bfe_u32 v5, v5, 1, 3
    v_xor_b32 v5, v5, v6
    """)
    for j in range(4):
        a(f"v_xor_b32 v20, {2*j}, v5\nv_lshl_add_u32 v{8+j}, v20, 4, v7\nv_add_u32 v{12+j}, 0x10000, v{8+j}")
    a(f"""
    v_bfe_u32 v5, v0, 2, 2
    v_lshl_add_u32 v7, v6, 3, v5
    v_lshlrev_b32 v7, 8, v7
    v_bfe_u32 v20, v0, 4, 1
    v_lshl_add_u32 v7, v20, 5, v7
    v_and_b32 v20, 1, v0
    v_lshl_add_u32 v7, v20, 4, v7
    v_and_b32 v20, 2, v0
    v_lshl_add_u32 v7, v20, 2, v7
    v_add_u32 v7, 16384, v7
    s_lshl_b32 s44, s43, 1
    v_xor_b32 v5, s44, v5
    v_lshl_add_u32 v16, v5, 6, v7
    v_xor_b32 v5, 1, v5
    v_lshl_add_u32 v17, v5, 6, v7
    v_add_u32 v18, 0x10000, v16
    v_add_u32 v19, 0x10000, v17
    s_setprio {OPT.get('gprio', 2)}
    s_waitcnt lgkmcnt(0)
    s_add_u32 s92, s92, 1
    s_lshl_b32 s46, s40, 1
    s_add_u32 s46, s46, s42
    s_lshl_b32 s47, s41, 1
    s_add_u32 s47, s47, s43
    s_lshl_b32 s59, s47, 5
    s_add_u32 s59, s59, s46
    s_mul_i32 s59, s59, {FS}
    s_cmp_ge_u32 s41, 9
    s_cbranch_scc1 a_gemm_v""")
    FB = [24, 40, 128]
    def reads(stage, j, fb):
        slot = stage & 3; hi = slot >> 1; base = (slot & 1) * 32768
        return [f"ds_read_b128 {vr(fb,4)}, v{8+4*hi+j} offset:{base}",
                f"ds_read_b64_tr_b16 {vr(fb+8,2)}, v{16+2*hi} offset:{base+j*4096}",
                f"ds_read_b64_tr_b16 {vr(fb+10,2)}, v{16+2*hi} offset:{base+j*4096+1024}",
                f"ds_read_b64_tr_b16 {vr(fb+12,2)}, v{17+2*hi} offset:{base+j*4096}",
                f"ds_read_b64_tr_b16 {vr(fb+14,2)}, v{17+2*hi} offset:{base+j*4096+1024}",
                f"ds_read_b128 {vr(fb+4,4)}, v{8+4*hi+j} offset:{base+4096}"]
    def mfmas(fb, vor, first):
        out = []
        for (ta, tb) in ((0,0),(0,1),(1,0),(1,1)):
            acc = vr(64 + 16*(2*ta+tb), 16); X = vr(fb+4*ta, 4); W = vr(fb+8+4*tb, 4)
            out.append(f"v_mfma_f32_32x32x16_bf16 {acc}, " + (f"{X}, {W}" if vor else f"{W}, {X}") + ", " + ("0" if first else acc))
        return out
    def check(tag, st, first_read):
        if not first_read:
            a(f"""v_or_b32 v56, v56, v57
            v_or3_b32 v56, v56, v58, v59
            v_cmp_eq_u32 vcc, 0, v56
            s_cbranch_vccnz {tag}_ok""")
        a(f"""{tag}_p:
        ds_read_b128 v[56:59], v23 offset:{16*st}
        s_waitcnt lgkmcnt(0)
        v_or_b32 v56, v56, v57
        v_or3_b32 v56, v56, v58, v59
        v_cmp_eq_u32 vcc, 0, v56
        s_cbranch_vccz {tag}_p
        {tag}_ok:""")
    def mainloop(vor):
        check(f"a_c{int(vor)}_0", 0, True)
        stamp("Afirst")
        a("\n".join(reads(0, 0, FB[0]) + reads(0, 1, FB[1])))
        for g in range(36):
            st, j = divmod(g, 4)
            a(f"s_waitcnt lgkmcnt({6 if g < 35 else 0})")
            m = mfmas(FB[g % 3], vor, g == 0)
            a(m[0])
            if j == 1 and st < 8: a(f"ds_read_b128 v[56:59], v23 offset:{16*(st+1)}")
            if j == 2 and st < 8: check(f"a_c{int(vor)}_{st+1}", st+1, False)
            if j == 3 and st < 5: a(f"s_add_u32 m0, s58, {16*st}\ns_mov_b64 exec, 1\nbuffer_load_dword v22, s[36:39], 0 offen lds\ns_mov_b64 exec, -1")
            rd = reads((g+2)//4, (g+2)%4, FB[(g+2) % 3]) if g + 2 < 36 else []
            a("\n".join(rd[:3])); a(m[1]); a("\n".join(rd[3:])); a(m[2]); a(m[3])
        stamp("Aconv")
    a(f"""
    s_mul_i32 s44, s46, {2*QK_T}
    s_lshl_b32 s45, s47, 12
    s_add_u32 s44, s44, s45
    s_add_u32 s45, s44, {QK_T}
    v_lshlrev_b32 v2, 4, v0
    """)
    mainloop(False)
    for ta in range(2):
        for tb in range(2):
            acc = 64 + 16*(2*ta+tb); o = 24 + 8*(2*ta+tb)
            if ta + tb == 0: a("s_nop 8")
            for r in range(8): a(f"v_cvt_pk_bf16_f32 v{o+r}, v{acc+2*r}, v{acc+2*r+1}")
            for hh in range(2): a(f"buffer_store_dwordx4 {vr(o+4*hh,4)}, v2, s[36:39], s{44+ta} offen offset:{tb*2048+hh*1024} sc1")
    a(f"""s_branch a_gemm_end
    a_gemm_v:
    v_and_b32 v5, 19, v0
    v_bfe_u32 v6, v0, 2, 1
    v_lshl_add_u32 v5, v6, 3, v5
    v_bfe_u32 v6, v0, 3, 1
    v_lshl_add_u32 v5, v6, 2, v5
    v_lshrrev_b32 v6, 5, v0
    v_mul_u32_u24 v6, 9216, v6
    v_lshl_add_u32 v2, v5, 4, v6
    s_sub_u32 s45, s47, 18
    s_lshl_b32 s45, s45, 10
    s_mul_i32 s44, s46, {8*9216}
    s_add_u32 s44, s44, s45
    s_add_u32 s44, s44, {WS_V}
    """)
    mainloop(True)
    a("s_cmp_ge_u32 s47, 27\ns_cbranch_scc1 a_end")
    for ta in range(2):
        for tb in range(2):
            acc = 64 + 16*(2*ta+tb); o = 24 + 8*(2*ta+tb)
            if ta + tb == 0: a("s_nop 8")
            for r in range(8): a(f"v_cvt_pk_bf16_f32 v{o+r}, v{acc+2*r}, v{acc+2*r+1}")
            for hh in range(2): a(f"s_add_u32 s45, s44, {(4*ta+2*hh)*9216}\nbuffer_store_dwordx4 {vr(o+4*hh,4)}, v2, s[36:39], s45 offen offset:{tb*512} sc1")
    a("a_gemm_end:")
    stamp("Aend")
    a("s_waitcnt vmcnt(0)")
    stamp("Aack")
    flag_set("s59", 2)
    a("s_branch a_end")

    a(f"""
    a_task:
    s_sub_u32 s44, s2, 224
    s_lshr_b32 s45, s44, 1               ; B
    s_and_b32 s46, s44, 1                ; es
    s_sub_u32 s47, 16, s3
    s_lshl_b32 s59, s47, 5
    s_add_u32 s59, s59, s44
    s_mul_i32 s59, s59, {FS}
    s_add_u32 s59, s59, {FL_S}
    s_lshl_b32 s48, s45, 3
    s_add_u32 s48, s48, s46
    s_mul_i32 s48, s48, {16*1152}
    s_lshl_b32 s49, s47, 7
    s_add_u32 s48, s48, s49
    v_lshrrev_b32 v10, 3, v0
    v_and_b32 v9, 7, v0
    v_mul_u32_u24 v11, 1152, v10
    v_lshl_add_u32 v11, v9, 4, v11
    v_xor_b32 v12, v10, v9
    v_lshlrev_b32 v12, 4, v12
    v_lshl_add_u32 v12, v9, 10, v12
    s_sub_u32 s49, 11, s3
    s_lshl_b32 s49, s49, 14
    s_add_u32 s49, s49, 57344
    v_add_u32 v12, s49, v12
    s_mov_b32 m0, s49
    v_lshlrev_b32 v17, 15, v10
    v_lshl_add_u32 v17, v9, 4, v17
    s_lshl_b32 s60, s47, 18
    s_lshl_b32 s45, s45, 7
    s_lshl_b32 s46, s46, 11
    s_add_u32 s60, s60, s45
    s_add_u32 s60, s60, s46
    s_add_u32 s60, s60, {WS_U}
    s_mov_b32 s50, 0x05040100
    s_mov_b32 s51, 0x07060302
    """)
    for p in range(8): a(f"v_xor_b32 v{24+p}, {16*p}, v11")
    kargs()
    srd(28, 10, 2359296)
    for i in range(3):
        if i == 1: a("s_barrier")
        if i == 2: a("s_cmp_lg_u32 s3, 8\ns_cbranch_scc1 a_t2")
        for p in range(8):
            a(f"""s_add_u32 s49, s48, {((p>>1)*32 + (p&1)*8)*1152}
            buffer_load_dwordx4 v{24+p}, s[28:31], s49 offen lds
            s_add_u32 m0, m0, 1024""")
        a("s_sub_u32 s48, s48, 512")
    a("s_waitcnt vmcnt(16)\ns_branch a_t3\na_t2:\ns_waitcnt vmcnt(8)\na_t3:")
    for i in range(3):
        if i == 1: a("s_waitcnt vmcnt(8)")
        for j in range(8): a(f"ds_read_b128 {vr(32+4*j,4)}, v12 offset:{i*8192 + j*128}")
        a("s_waitcnt lgkmcnt(0)")
        if i == 0: a("s_add_u32 s92, s92, 1")
        O_ = [64, 96, 128][i]
        transpose8(32, O_, 50, 51)
        if i:
            a("s_waitcnt vmcnt(0)")
            flag_set("s59", 2)
            a(f"s_sub_u32 s59, s59, {128*FS}")
        for c in range(8):
            a(f"s_add_u32 s49, s60, {c*4096}\nbuffer_store_dwordx4 {vr(O_+4*c,4)}, v17, s[36:39], s49 offen sc1")
        a(f"s_sub_u32 s60, s60, {4<<18}")
        if i == 1: a("s_cmp_lg_u32 s3, 8\ns_cbranch_scc1 a_gemm_end")
    a("s_branch a_gemm_end")

    L2E = f2u(1.4426950408889634); L2E_LO = f2u(1.4426950408889634 - struct.unpack("<f", struct.pack("<I", L2E))[0])
    LN2 = f2u(0.6931471805599453)
    z0 = list(range(9)) + [14,15,16,20,21,24,25]
    z1 = [9,9,10,11,11,11,12,13,13,17,18,19,22,23,26,27]
    def pack(z, lo):
        v = 0
        for r in range(lo, lo+8): v |= (z[r]-r) << (4*(r-lo))
        return v
    a(f"""
    a_ssm:
    s_and_b32 s41, s3, 1                 ; half
    s_bfe_u32 s45, s3, 0x10001
    s_lshl_b32 s40, s2, 1
    s_add_u32 s40, s40, s45
    s_add_u32 s46, s40, {512 - 448}
    s_mul_i32 s42, s45, {KAREA}
    s_add_u32 s47, s42, 16384
    s_add_u32 s42, s42, 131072
    s_cmp_ge_u32 s3, 4
    s_cselect_b32 s40, s46, s40          ; channel
    s_cselect_b32 s42, s47, s42
    s_lshr_b32 s43, s3, 1
    s_lshl_b32 s43, s43, 13
    s_add_u32 s47, s43, {40960 - 16384}
    s_add_u32 s43, s43, 147968
    s_cmp_ge_u32 s3, 4
    s_cselect_b32 s43, s47, s43
    s_lshl_b32 s45, s40, 7
    s_lshl_b32 s46, s41, 6
    s_add_u32 s45, s45, s46
    v_add_u32 v2, s45, v0
    v_lshlrev_b32 v2, 1, v2
    s_lshl_b32 s45, s40, 1
    v_mov_b32 v3, s45
    s_waitcnt lgkmcnt(0)
    global_load_ushort v4, v3, s[20:21]
    global_load_ushort v6, v2, s[12:13]
    global_load_ushort v7, v2, s[14:15]
    global_load_ushort v8, v2, s[16:17]
    global_load_ushort v9, v2, s[18:19]
    global_load_ushort v5, v3, s[22:23]
    s_barrier
    """)
    kargs()
    a(f"""
    v_and_b32 v14, 31, v0
    v_and_b32 v16, 3, v14
    v_lshrrev_b32 v17, 3, v14
    v_lshl_add_u32 v16, v17, 2, v16
    v_mov_b32 v17, {pack(z0,0):#x}
    v_mov_b32 v18, {pack(z0,8):#x}
    v_mov_b32 v19, {pack(z1,0):#x}
    v_mov_b32 v20, {pack(z1,8):#x}
    v_cmp_lt_u32 vcc, 7, v16
    v_and_b32 v21, 4, v14
    v_and_b32 v22, 7, v16
    v_cndmask_b32 v17, v17, v18, vcc
    v_cndmask_b32 v19, v19, v20, vcc
    v_cmp_ne_u32 vcc, 0, v21
    v_lshlrev_b32 v22, 2, v22
    v_lshrrev_b32 v15, 5, v0
    v_cndmask_b32 v17, v17, v19, vcc
    v_bfe_u32 v17, v17, v22, 4
    v_add_u32 v17, v17, v16
    v_lshlrev_b32 v15, 2, v15
    s_mov_b32 s50, 0x3f80
    """)
    for (zr, dst) in ((14, 40), (17, 48)):
        a(f"""v_and_b32 v18, 1, v{zr}
        v_lshlrev_b32 v18, 4, v18
        v_lshlrev_b32 v18, v18, s50
        v_lshrrev_b32 v19, 1, v{zr}
        v_sub_u32 v19, v19, v15""")
        for d in range(8): a(f"v_cmp_eq_u32 s[{52+2*d}:{53+2*d}], {8*(d>>2) + (d&3)}, v19")
        for d in range(8): a(f"v_cndmask_b32 v{dst+d}, 0, v18, s[{52+2*d}:{53+2*d}]")
    a(f"""
    s_mov_b32 s50, {L2E:#x}
    s_mov_b32 s51, {L2E_LO:#x}
    s_mov_b32 s52, {LN2:#x}
    s_mov_b32 s53, {f2u(248.0):#x}
    s_mov_b32 s54, {f2u(8.0):#x}
    s_waitcnt vmcnt(0) lgkmcnt(0)
    s_add_u32 s92, s92, 1
    """)
    stamp("Afirst")
    if "nossm" in OPT: a("s_branch a_end")
    def exp_bf16(x, t, lo):
        a(f"""v_mul_f32 v{t}, s50, v{x}
        v_fma_f32 v{lo}, v{x}, s50, -v{t}
        v_exp_f32 v{t}, v{t}
        v_fma_f32 v{lo}, v{x}, s51, v{lo}
        v_mul_f32 v{lo}, s52, v{lo}
        v_fma_f32 v{t}, v{t}, v{lo}, v{t}
        v_cvt_pk_bf16_f32 v{t}, v{t}, v{t}
        v_lshlrev_b32 v{x}, 16, v{t}""")
    for r in range(4, 10): a(f"v_lshlrev_b32 v{r}, 16, v{r}")
    exp_bf16(4, 20, 21)
    exp_bf16(6, 20, 21)
    a("""
    v_mul_f32 v6, v6, v4
    v_mul_f32 v7, v7, v4
    v_mul_f32 v8, v8, v4
    v_mul_f32 v9, v9, v4
    v_mul_f32 v6, s50, v6                ; -Re(z)*log2e
    v_mul_f32 v7, 0.15915494, v7         ; Im(z)/(2pi)
    v_add_f32 v8, v8, v8
    v_mul_f32 v9, -2.0, v9
    """)
    DL = [8, 1, 2, 4, 248]
    DS = {8: "s54", 1: "1.0", 2: "2.0", 4: "4.0", 248: "s53"}
    MR = {d: 24 + 2*i for i, d in enumerate(DL)}
    def mkE(d):
        a(f"""v_mul_f32 v21, {DS[d]}, v6
        v_mul_f32 v22, {DS[d]}, v7
        v_exp_f32 v21, -v21
        v_fract_f32 v22, v22
        v_cos_f32 v20, v22
        v_sin_f32 v22, v22
        v_mul_f32 v{MR[d]}, v21, v20
        v_mul_f32 v{MR[d]+1}, v21, v22""")
    P = 56; Dt = 88; YO = 120; ACC = 152
    R = lambda z: 34 + 2*(z % 3)
    def chain(dl, conj, mid=None):
        n = "-" if conj else ""; p = "" if conj else "-"
        for z in range(len(dl) + 1):
            cur, nxt = R(z), R(z+1)
            if z < len(dl):
                W = MR[dl[z]]
                a(f"v_mul_f32 v{nxt}, v{cur}, v{W}\nv_mul_f32 v{nxt+1}, v{cur+1}, v{W}")
            if z & 1: a(f"v_cvt_pk_bf16_f32 v{P+(z>>1)}, v{R(z-1)}, v{cur}")
            if z < len(dl): a(f"v_fma_f32 v{nxt}, {p}v{cur+1}, v{W+1}, v{nxt}\nv_fma_f32 v{nxt+1}, {n}v{cur}, v{W+1}, v{nxt+1}")
            if z & 1: a(f"v_cvt_pk_bf16_f32 v{P+16+(z>>1)}, v{R(z-1)+1}, v{cur+1}")
            if mid and z == 4: mid()
    def swaps(comp):
        for pr in range(2):
            for t in range(4): a(f"v_permlane32_swap_b32 v{P+16*comp+8*pr+t}, v{P+16*comp+8*pr+4+t}")
    def tmfma(comp, sel):
        for blk in range(2): a(f"v_mfma_f32_32x32x16_bf16 {vr(Dt+16*blk,16)}, {vr(P+16*comp+4*blk,4)}, {vr(sel,4)}, 0")
        for blk in range(2): a(f"v_mfma_f32_32x32x16_bf16 {vr(Dt+16*blk,16)}, {vr(P+16*comp+8+4*blk,4)}, {vr(sel+4,4)}, {vr(Dt+16*blk,16)}")
    def tcvt(dst):
        for i in range(16): a(f"v_cvt_pk_bf16_f32 v{dst+i}, v{Dt+2*i}, v{Dt+2*i+1}")
    mkE(8)
    a(f"v_mov_b32 v{R(0)}, 1.0\nv_mov_b32 v{R(0)+1}, 0")
    chain([8]*31, False)
    mkE(1); swaps(0); swaps(1); tmfma(0, 40); mkE(2); mkE(4); tcvt(YO); tmfma(1, 40); mkE(248)
    a(f"v_mov_b32 v{R(0)}, v8\nv_mov_b32 v{R(0)+1}, v9")
    deltas = [1]*8 + [248] + [2]*4 + [248] + [4]*2 + [248] + [4]*2 + [248, 8, 248, 8, 248, 8, 248, 8]
    chain(deltas, True, mid=lambda: tcvt(YO+16))
    a("v_lshl_add_u32 v21, s41, 6, v0\nv_cmp_eq_u32 vcc, 0, v21\nv_sub_u32 v21, 63, v0")
    swaps(0); swaps(1); tmfma(0, 48)
    a(f"""
    v_cndmask_b32 v5, 0, v5, vcc
    v_lshl_add_u32 v21, v21, 4, s42
    s_lshl_b32 s46, s3, 4
    v_add_u32 v22, s46, v23
    v_xor_b32 v20, 16, v22               ; partner's
    v_mov_b32 v19, 0
    s_nop 5
    """)
    tcvt(P); tmfma(1, 48)
    for i in range(4): a(f"v_mfma_f32_32x32x16_bf16 {vr(ACC,16)}, {vr(P+4*i,4)}, {vr(YO+4*i,4)}, " + ("0" if i == 0 else vr(ACC,16)))
    a("s_nop 7")
    tcvt(P+16)
    a("s_nop 1")
    for i in range(4, 8): a(f"v_mfma_f32_32x32x16_bf16 {vr(ACC,16)}, {vr(P+4*i,4)}, {vr(YO+4*i,4)}, {vr(ACC,16)}")
    stamp("Akgen")
    if "noconv" in OPT: a("s_branch a_end")
    CA = 24; CU = 68; CF = 132
    for i in range(44): a(f"v_mov_b32 v{CA+i}, 0")
    for i in range(32): a(f"v_mov_b32 v{CU+i}, 0")
    a(f"""
    v_and_b32 v12, 31, v0
    v_lshrrev_b32 v13, 5, v0             ; h
    v_lshlrev_b32 v16, 5, v12
    v_lshl_add_u32 v16, v13, 4, v16
    s_lshl_b32 s45, s41, 7
    s_sub_u32 s44, s43, s45
    s_sub_u32 s44, s44, 96
    v_add_u32 v16, s44, v16
    s_lshl_b32 s45, s41, 2
    v_lshlrev_b32 v17, 3, v13
    v_sub_u32 v17, v17, v12
    v_lshlrev_b32 v17, 1, v17            ; 2*(8h - b)
    v_and_b32 v18, 1, v12
    v_cmp_eq_u32 s[56:57], 1, v18        ; b odd
    v_xor_b32 v18, 1, v18
    v_mul_u32_u24 v18, {KC + 2}, v18
    s_lshl_b32 s46, s41, 8
    s_sub_u32 s46, s42, s46
    s_add_u32 s46, s46, {62 + 120*32}
    v_add3_u32 v17, v17, v18, s46
    v_subrev_u32 v18, 2048, v17
    v_add_f32 v{ACC}, v{ACC}, v5
    v_lshl_add_u32 v133, v0, 2, s42
    s_add_u32 s46, s43, 4096
    v_lshl_add_u32 v138, v0, 4, s46
    """)
    for G in range(4): a(f"v_add_u32 v{134+G}, {(3-G)*1024 + KC}, v21")
    a(f"""
    s_cmp_ge_u32 s27, 28
    s_cbranch_scc1 a_s_g2
    a_s_w2:
    ds_read_b128 v[8:11], v23 offset:128
    s_waitcnt lgkmcnt(0)
    v_or_b32 v8, v8, v9
    v_or3_b32 v8, v8, v10, v11
    v_cmp_eq_u32 vcc, 0, v8
    s_cbranch_vccnz a_s_g2
    s_sleep 1
    s_branch a_s_w2
    a_s_g2:
    s_setprio 3
    s_cmp_eq_u32 s41, 0
    s_cbranch_scc1 a_s_even
    """)
    d = lambda r: f"v{ACC+r}" if r < 16 else f"v{r-24}"
    units = [
      (0, 0, [(7,6),(5,4),(3,2),(1,0)]), (0, 1, [(8,7),(6,5),(4,3),(2,1)]),
      (1, 0, [(11,11),(10,10),(10,9),(9,9)]), (1, 1, [(11,11),(11,10),(10,10),(9,9)]),
      (2, 0, [(13,13),(13,32),(12,12),(12,12)]), (2, 1, [(13,13),(13,13),(32,12),(12,12)]),
      (3, 0, [(15,15),(15,33),(14,14),(14,14)]), (3, 1, [(15,15),(15,15),(33,14),(14,14)])]
    def build(us):
        for ui in us:
            G, cp, prs = units[ui]; o = 100 + 4*ui
            for t, (lo, hi) in enumerate(prs): a(f"v_cvt_pk_bf16_f32 v{o+t}, {d(lo)}, {d(hi)}")
            if cp == 0: a(f"ds_write_b128 v21, {vr(o,4)} offset:{(3-G)*1024}")
            else: a(f"ds_write2_b32 v{134+G}, v{o}, v{o+1} offset0:0 offset1:1\nds_write2_b32 v{134+G}, v{o+2}, v{o+3} offset0:2 offset1:3")
    for i in range(3): a(f"ds_write_b128 v138, {vr(ACC+4*i,4)} offset:{1024*i}")
    a("ds_write_b32 v22, v19 offset:256")
    lds_wait("a_s_o0", 20, 256, 8)
    a("ds_read_b128 v[140:143], v21\ns_waitcnt lgkmcnt(0)")
    for i in range(4): a(f"v_add_f32 v{ACC+12+i}, v{ACC+12+i}, v{140+i}")
    a(f"v_cndmask_b32 v8, {d(12)}, {d(13)}, s[56:57]\nv_cndmask_b32 v9, {d(14)}, {d(15)}, s[56:57]")
    build([4, 5, 6, 7])
    a(f"s_branch a_s_u\na_s_even:\nds_write_b128 v21, {vr(ACC+12,4)}\nds_write_b32 v22, v19 offset:256")
    lds_wait("a_s_e0", 20, 256, 8)
    for i in range(3): a(f"ds_read_b128 {vr(140+4*i,4)}, v138 offset:{1024*i}")
    a("v_cmp_eq_u32 vcc, 0, v0\ns_waitcnt lgkmcnt(0)")
    for i in range(12): a(f"v_add_f32 v{ACC+i}, v{ACC+i}, v{140+i}")
    build([0, 1, 2, 3])
    a(f"""
    v_cvt_pk_bf16_f32 v132, {d(0)}, v19
    s_mov_b64 exec, 0x7fff
    ds_write_b32 v133, v19 offset:4096   ; zeros behind both copies; the odd copy ends with K[0]
    s_mov_b64 exec, 0xffff
    v_cndmask_b32 v132, 0, v132, vcc
    ds_write_b32 v133, v132 offset:{4096 + KC}
    s_mov_b64 exec, -1
    a_s_u:
    ds_write_b32 v22, v19 offset:268
    s_setprio 0
    s_lshr_b32 s46, s3, 1
    s_lshl_b32 s46, s46, 2
    v_add_u32 v9, s46, v23
    """)
    lds_wait("a_s_uw", 9, 448, 8)
    for q in range(4):
        a(f"s_add_u32 s46, s45, {q}\ns_lshl_b32 exec_lo, -1, s46\ns_mov_b32 exec_hi, exec_lo")
        for es in range(2): a(f"ds_read_b128 {vr(CU+8*q+4*es,4)}, v16 offset:{es*2048 + (3-q)*32}")
        a("s_mov_b64 exec, -1")
        for es in range(2): a(f"ds_read_b128 {vr(CU+32+8*q+4*es,4)}, v16 offset:{es*2048 + 1024 + (3-q)*32}")
        if q == 2: a("s_waitcnt lgkmcnt(4)")
    lds_wait("a_s_o1", 20, 268, 8)
    stamp("Abuilt")
    steps = [(k, q, es) for k in range(4) for q in range(4) for es in range(2)]
    def frd(i):
        k, q, es = steps[i]; b = CF + 8*(i & 3); o = (6 - 2*q + es) * 8
        if q == 0 and es == 0 and k: a("v_subrev_u32 v17, 512, v17\nv_subrev_u32 v18, 512, v18")
        a(f"""ds_read2_b32 {vr(b,2)}, v17 offset0:{o} offset1:{o+1}
        ds_read2_b32 {vr(b+2,2)}, v17 offset0:{o+2} offset1:{o+3}
        ds_read2_b32 {vr(b+4,2)}, v18 offset0:{o} offset1:{o+1}
        ds_read2_b32 {vr(b+6,2)}, v18 offset0:{o+2} offset1:{o+3}""")
    for i in range(3): frd(i)
    for i, (k, q, es) in enumerate(steps):
        b = CF + 8*(i & 3); U0 = vr(CU+8*q+4*es, 4); U1 = vr(CU+32+8*q+4*es, 4)
        lo = vr(CA+4*k, 16); hi = vr(CA+16+4*k, 16)
        w = f"s_waitcnt lgkmcnt({4*min(2, 31-i)})"
        a(w)
        if q == 0 and es == 0 and k: a("s_nop 9")
        a(f"v_mfma_f32_32x32x16_bf16 {lo}, {U0}, {vr(b,4)}, {lo}")
        a(f"v_mfma_f32_32x32x16_bf16 {hi}, {U1}, {vr(b,4)}, {hi}")
        if i + 3 < 32: frd(i+3)
        a(f"v_mfma_f32_32x32x16_bf16 {hi}, {U0}, {vr(b+4,4)}, {hi}")
    stamp("Aconv")
    a(f"""
    ds_write_b32 v22, v19 offset:260
    s_lshl_b32 s46, s41, 12
    s_add_u32 s46, s46, s42
    v_lshl_add_u32 v16, v0, 4, s46
    s_lshl_b32 s46, s41, 13
    s_sub_u32 s46, 4096, s46
    v_add_u32 v17, s46, v16              ; partner's
    v_lshlrev_b32 v18, 4, v0
    s_lshl_b32 s44, s40, 12
    s_lshl_b32 s45, s41, 11
    s_add_u32 s44, s44, s45
    s_add_u32 s44, s44, {WS_Y}
    s_lshl_b32 s59, s40, 1
    s_add_u32 s59, s59, s41
    s_mul_i32 s59, s59, {FS}
    s_add_u32 s59, s59, {FL_Y}
    """)
    lds_wait("a_s_y1", 20, 260, 12)
    a("s_cmp_eq_u32 s41, 0\ns_cbranch_scc1 a_s_y0")
    for i in range(4): a(f"ds_write_b128 v16, {vr(CA+4*i,4)} offset:{1024*i}")
    a("ds_write_b32 v22, v19 offset:264\ns_waitcnt lgkmcnt(0)")
    for i in range(16): a(f"v_mov_b32 v{CA+i}, v{CA+16+i}")
    a("s_branch a_s_y2\na_s_y0:")
    for i in range(4): a(f"ds_write_b128 v16, {vr(CA+16+4*i,4)} offset:{1024*i}")
    a("ds_write_b32 v22, v19 offset:264\na_s_y2:")
    lds_wait("a_s_y3", 20, 264, 12)
    for i in range(4): a(f"ds_read_b128 {vr(CU+4*i,4)}, v17 offset:{1024*i}")
    a("s_waitcnt lgkmcnt(0)")
    for i in range(16): a(f"v_add_f32 v{CA+i}, v{CA+i}, v{CU+i}")
    for i in range(8): a(f"v_cvt_pk_bf16_f32 v{CF+i}, v{CA+2*i}, v{CA+2*i+1}")
    for g in range(2): a(f"buffer_store_dwordx4 {vr(CF+4*g,4)}, v18, s[36:39], s44 offen offset:{1024*g} sc1")
    stamp("Aend")
    a("s_mov_b32 s62, s59\ns_branch a_end1")
    a(f"""a_end:
    s_mov_b32 s62, 0
    a_end1:
    v_mov_b32 v116, v0
    s_lshl_b32 s44, s3, 2
    s_add_u32 s44, s44, {L_FL}
    v_mov_b32 v4, s44
    v_mov_b32 v5, 0
    ds_write_b32 v4, v5 offset:400
    s_cmp_ge_u32 s3, 8
    s_cbranch_scc1 a_uf""")

S = [0, 16]; O = 32; NEG = 48; P = 64; KF = [72, 76]; TF = [80, 84]; VF = [88, 96]; Q = 104; QL = 108; QH = 110
vK, vT, vV = 112, 113, 114
def rdK(buf, t): a(f"ds_read_b128 {vr(KF[buf],4)}, v{vK} offset:{1024*t}")
def rdT(buf, q): a(f"ds_read2st64_b64 {vr(TF[buf],4)}, v{vT} offset0:{2*q} offset1:{2*q+1}")
def rdV(buf, t):
    a(f"""s_mov_b64 exec, s[18:19]
    ds_read_b128 {vr(VF[buf],4)}, v{vV} offset:{t*1152}
    ds_read_b128 {vr(VF[buf]+4,4)}, v{vV} offset:{t*1152+576}
    s_mov_b64 exec, -1""")
def qk_tail(t, tb):
    tt = t & 3
    a(f"v_mfma_f32_32x32x8_bf16 {vr(S[t&1],16)}, {vr(TF[tb]+2*(tt>>1),2)}, {vr(QH if tt&1 else QL,2)}, {vr(S[t&1],16)}")
def pv(t, half): a(f"v_mfma_f32_32x32x16_bf16 {vr(O,16)}, {vr(VF[t&1]+4*half,4)}, {vr(P+4*half,4)}, {vr(O,16)}")
def ex(t, r0, r1):
    for r in range(r0, r1): a(f"v_exp_f32 v{S[t&1]+r}, v{S[t&1]+r}")
def cv(t, c0, c1):
    for c in range(c0, c1): a(f"v_cvt_pk_bf16_f32 v{P+c}, v{S[t&1]+2*c}, v{S[t&1]+2*c+1}")
def att_run(fast):
    tag = "b_f" if fast else "b_s"
    def qk_main(t): a(f"v_mfma_f32_32x32x16_bf16 {vr(S[t&1],16)}, {vr(KF[t&1],4)}, {vr(Q,4)}, " + ("0" if fast else vr(NEG,16)))
    rdK(0, 0); rdT(0, 0); rdK(1, 1); rdV(0, 0)
    if not fast:
        for i in range(16): a(f"v_mov_b32 v{O+i}, 0")
        for i in range(4): a(f"v_mov_b32 v{P+4+i}, 0")
    a("s_mov_b32 s26, 0\ns_waitcnt lgkmcnt(3)")
    qk_main(0); qk_tail(0, 0)
    a(f"s_nop 7\ns_nop 3\n.p2align 6\n{tag}_loop:")
    for t in range(8):
        if fast and t == 2:
            a(f"s_cmp_lg_u32 s26, 1\ns_cbranch_scc1 {tag}_np2\ns_setprio 2\n{tag}_np2:")
        if fast and t == 4:
            a(f"s_cmp_lg_u32 s26, 1\ns_cbranch_scc1 {tag}_nobar\ns_cmp_eq_u32 s62, 0\ns_cbranch_scc1 b_nyf\ns_waitcnt vmcnt(0)")
            flag_set("s62", 122)
            a(f"b_nyf:\ns_barrier\n{tag}_nobar:")
            a(f"s_cmp_lg_u32 s26, 6\ns_cbranch_scc1 {tag}_np1\ns_setprio 1\n{tag}_np1:")
        if fast and t == 5:
            a(f"""s_cmp_lg_u32 s26, 0
            s_cbranch_scc1 {tag}_nf1
            v_mov_b32 v121, {L_FL}
            {tag}_f1:
            ds_read_b96 v[124:126], v121 offset:464
            s_waitcnt lgkmcnt(0)
            v_or3_b32 v124, v124, v125, v126
            v_cmp_eq_u32 vcc, 0, v124
            s_cbranch_vccz {tag}_f1
            {tag}_nf1:""")
        if fast and t == 6:
            a(f"s_cmp_lg_u32 s26, 7\ns_cbranch_scc1 {tag}_np0\ns_setprio 0\n{tag}_np0:")
        def adv():
            if t == 7:
                a(f"""v_add_u32 v{vK}, 8192, v{vK}
                v_add_u32 v{vT}, 2048, v{vT}
                v_add_u32 v{vV}, 9216, v{vV}
                s_add_u32 s26, s26, 1
                s_cmp_lt_u32 s26, 8""")
        def rK():
            rdK(t&1, t+2)
            if (t & 3) == 1: rdT(((t>>2)+1)&1, (t>>2)+1)
        M1 = lambda: qk_main(t+1); M2 = lambda: pv(t-1, 1); M3 = lambda: qk_tail(t+1, ((t+1)>>2)&1); M4 = lambda: pv(t, 0)
        rV = lambda: rdV((t+1)&1, t+1)
        E = lambda i, j: ex(t, i, j); C = lambda i, j: cv(t, i, j)
        a("s_waitcnt lgkmcnt(0)")
        o = OPT.get("ord", "a")
        if o == "a":
            M1(); rK(); E(0,4); M2(); rV(); E(4,8); C(0,4); M3(); E(8,12); M4(); adv(); E(12,16); C(4,8)
        elif o == "b":
            M1(); rK(); M2(); rV(); E(0,8); C(0,4); M3(); E(8,9); M4(); adv(); E(9,16); C(4,8)
        elif o == "c":
            M1(); rK(); E(0,5); M2(); rV(); E(5,8); C(0,4); M3(); E(8,13); M4(); adv(); E(13,16); C(4,8)
        elif o == "d":
            M1(); rK(); E(0,4); C(0,1); M2(); rV(); E(4,8); C(1,3); M3(); E(8,12); C(3,5); E(12,13); M4(); adv(); E(13,16); C(5,8)
        elif o == "e":
            M1(); rK(); M2(); rV(); M3(); E(0,8); C(0,4); E(8,10); M4(); adv(); E(10,16); C(4,8)
        elif o == "f":
            M1(); E(0,2); rK(); E(2,4); M2(); E(4,6); rV(); E(6,8); C(0,4); M3(); E(8,12); M4(); adv(); E(12,16); C(4,8)
    a(f"s_cbranch_scc1 {tag}_loop")
    if fast: stamp("Bloop")
    a("s_nop 1")
    pv(7, 1)

def phaseB():
    a(f"""
    s_cmp_ge_u32 s3, 8
    s_cbranch_scc1 b_aux
    s_and_b32 s4, s2, 31                 ; head
    s_lshr_b32 s5, s2, 5
    s_lshl_b32 s5, s5, 3
    s_add_u32 s5, s5, s3
    s_and_b32 s7, s4, 3
    v_lshlrev_b32 v{vK}, 4, v116
    v_and_b32 v117, 31, v116
    v_lshlrev_b32 v119, 4, v116
    s_lshl_b32 s8, s3, 10
    s_add_u32 s8, s8, {L_Q}
    v_add_u32 v120, s8, v{vK}
    s_lshl_b32 s8, s3, 8
    s_add_u32 s8, s8, {L_Q + 8192}
    v_lshl_add_u32 v118, v117, 3, s8
    """)
    for i in range(16): a(f"v_mov_b32 v{O+i}, 0")
    for i in range(4): a(f"v_mov_b32 v{P+4+i}, 0")
    a(f"""v_and_b32 v121, 27, v116
    v_cmp_eq_u32 vcc, 18, v121
    v_mov_b32 v121, 0x3f803f80
    s_nop 0
    v_cndmask_b32 v{VF[0]}, 0, v121, vcc""")
    for i in range(1, 16): a(f"v_mov_b32 v{VF[0]+i}, v{VF[0]}")
    a(f"""
    v_lshlrev_b32 v{vT}, 3, v116
    v_add_u32 v{vT}, {L_KT}, v{vT}
    v_lshrrev_b32 v121, 5, v116
    v_mul_u32_u24 v121, 288, v121
    v_lshl_add_u32 v{vV}, v117, 4, v121
    v_add_u32 v{vV}, {L_V}, v{vV}
    s_mov_b32 s18, 0x3ffff
    s_mov_b32 s19, 0x3ffff
    s_mov_b32 s21, {f2u(18**-0.5 * 1.4426950408889634):#x}
    v_cmp_lt_u32 s[22:23], 31, v116
    s_setprio 3
    """)
    stamp("Bflag")
    a(f"""
    s_barrier
    ds_read_b128 {vr(Q,4)}, v120
    ds_read_b64 {vr(QL,2)}, v118
    s_waitcnt lgkmcnt(0)
    s_barrier
    """)
    for r in list(range(Q, Q+4)) + [QL, QL+1]:
        a(f"""v_lshlrev_b32 v121, 16, v{r}
        v_and_b32 v{r}, 0xffff0000, v{r}
        v_mul_f32 v121, s21, v121
        v_mul_f32 v{r}, s21, v{r}
        v_cvt_pk_bf16_f32 v{r}, v121, v{r}""")
    a(f"""
    s_cmp_eq_u32 s7, 1
    s_cselect_b32 vcc_lo, -1, 0
    s_mov_b32 vcc_hi, 0
    v_cndmask_b32 v{Q}, v{Q}, 0, vcc
    s_cmp_eq_u32 s7, 2
    s_cselect_b32 vcc_hi, -1, 0
    s_mov_b32 vcc_lo, 0
    v_cndmask_b32 v{Q+3}, v{Q+3}, 0, vcc
    s_cmp_eq_u32 s7, 3
    s_cselect_b64 vcc, -1, 0
    v_cndmask_b32 v{QL}, v{QL}, 0, vcc
    s_cmp_eq_u32 s7, 0
    s_cselect_b64 vcc, -1, 0
    v_cndmask_b32 v{QL+1}, v{QL+1}, 0, vcc
    v_cndmask_b32 v{QH}, 0, v{QL}, s[22:23]
    v_cndmask_b32 v{QH+1}, 0, v{QL+1}, s[22:23]
    v_cndmask_b32 v{QL}, v{QL}, 0, s[22:23]
    v_cndmask_b32 v{QL+1}, v{QL+1}, 0, s[22:23]
    """)
    stamp("Bgo")
    att_run(True)
    a(f"""
    s_mul_i32 s10, s5, {O_T}
    s_add_u32 s10, s10, {WS_O}
    s_lshl_b32 s11, s4, 10
    s_add_u32 s11, s11, s10
    s_lshl_b32 s12, s4, 7
    s_add_u32 s12, s12, s10
    s_add_u32 s12, s12, 32768
    s_lshl_b32 s59, s5, 5
    s_add_u32 s59, s59, s4
    s_mul_i32 s59, s59, {FS}
    s_add_u32 s59, s59, {FL_B}
    s_mov_b32 s27, {f2u(2.0**100):#x}
    v_lshlrev_b32 v127, 2, v116
    s_nop 1
    v_max3_f32 v121, abs(v{O}), abs(v{O+1}), abs(v{O+2})
    v_max3_f32 v121, abs(v{O+3}), abs(v{O+4}), v121
    v_max3_f32 v121, abs(v{O+5}), abs(v{O+6}), v121
    v_max3_f32 v121, abs(v{O+7}), abs(v{O+8}), v121
    v_add_f32 v122, v{O}, v{O+1}
    v_add_f32 v123, v{O+2}, v{O+3}
    v_add_f32 v124, v{O+4}, v{O+5}
    v_add_f32 v125, v{O+6}, v{O+7}
    v_add_f32 v126, v{O+8}, v{O+9}
    v_add_f32 v122, v122, v123
    v_add_f32 v124, v124, v125
    v_add_f32 v122, v122, v126
    v_add_f32 v122, v122, v124
    v_max3_f32 v121, abs(v{O+9}), v{O+10}, v121
    v_cmp_ngt_f32 vcc, s27, v121
    v_cmp_nle_f32 s[28:29], 1.0, v{O+10}
    v_cmp_u_f32 s[30:31], v122, v122
    s_or_b64 vcc, vcc, s[28:29]
    s_or_b64 vcc, vcc, s[30:31]
    s_cbranch_vccnz b_slow
    b_fin:
    v_rcp_f32 v121, v{O+10}
    s_nop 0
    """)
    for r in range(10): a(f"v_mul_f32 v{O+r}, v{O+r}, v121")
    for c in range(5): a(f"v_cvt_pk_bf16_f32 v{P+c}, v{O+2*c}, v{O+2*c+1}")
    a(f"""
    buffer_store_dwordx4 {vr(P,4)}, v119, s[36:39], s11 offen sc1
    s_mov_b32 exec_hi, 0
    buffer_store_dword v{P+4}, v127, s[36:39], s12 offen sc1
    s_mov_b32 exec_hi, -1
    v_mov_b32 v0, v116
    s_waitcnt lgkmcnt(0)
    s_barrier
    s_waitcnt vmcnt(0)
    """)
    stamp("Back")
    flag_set("s59", 2)
    a("s_branch c_start")
    a(f"""
    b_aux:
    s_and_b32 s4, s2, 31
    s_mul_i32 s6, s4, 9
    s_lshr_b32 s6, s6, 2
    v_mov_b32 v8, {L_FL}
    s_setprio 3
    s_cmp_lg_u32 s3, 11
    s_cbranch_scc1 b_nopoll
    s_mul_i32 s9, s4, 18
    v_lshrrev_b32 v7, 5, v116
    v_lshl_add_u32 v9, v7, 1, s6
    v_add_u32 v10, 72, v9
    v_lshrrev_b32 v10, 3, v10
    v_and_b32 v11, 31, v116
    v_lshl_add_u32 v10, v10, 5, v11
    v_mul_u32_u24 v120, {FS}, v10
    v_mul_u32_u24 v10, 17, v7
    v_add_u32 v10, s9, v10
    v_add_u32 v10, 1152, v10
    v_lshrrev_b32 v10, 6, v10
    v_lshl_add_u32 v10, v10, 5, v11
    v_mul_u32_u24 v121, {FS}, v10
    v_lshrrev_b32 v10, 3, v9
    s_lshr_b32 s9, s2, 5
    s_lshl_b32 s9, s9, 2
    v_and_b32 v11, 3, v116
    v_add_u32 v11, s9, v11
    v_lshl_add_u32 v10, v10, 5, v11
    v_mul_u32_u24 v122, {FS}, v10
    s_cmp_ge_u32 s2, 224
    s_cselect_b32 s9, 16, 0
    v_add_u32 v9, s9, v8
    b_pw:
    s_sleep 1
    ds_read_b128 v[12:15], v9 offset:416
    s_waitcnt lgkmcnt(0)
    v_or_b32 v12, v12, v13
    v_or3_b32 v12, v12, v14, v15
    v_cmp_eq_u32 vcc, 0, v12
    s_cbranch_vccz b_pw
    """)
    stamp("Xpw")
    flag_poll("b_pa", 3, 120)
    stamp("Xpoll")
    a(f"""
    v_mov_b32 v9, 0
    ds_write_b32 v8, v9 offset:244
    b_nopoll:
    s_bitcmp1_b32 s3, 0
    s_cbranch_scc1 b_ldv
    s_bfe_u32 s7, s4, 0x10001
    s_add_u32 s8, s6, s7
    s_lshl_b32 s8, s8, 9
    s_lshl_b32 s9, s6, 9
    s_mul_i32 s10, s7, {1024 - 8}
    s_sub_u32 s9, s9, s10
    s_add_u32 s9, s9, 1024
    v_lshlrev_b32 v118, 4, v116
    v_lshrrev_b32 v119, 1, v116
    v_lshlrev_b32 v119, 4, v119
    v_and_b32 v120, 1, v116
    v_lshl_add_u32 v119, v120, 2, v119
    s_lshr_b32 s15, s2, 5
    s_mul_i32 s15, s15, {8*QK_T}
    s_cmp_eq_u32 s3, 10
    s_cbranch_scc1 b_ldt
    """)
    def zflag(off):
        a(f"""s_mov_b32 s13, m0
        s_mov_b32 m0, {L_FL + off}
        v_mov_b32 v13, 0x7ffffff0
        s_mov_b64 exec, 1
        buffer_load_dword v13, s[36:39], 0 offen lds
        s_mov_b64 exec, -1
        s_mov_b32 m0, s13""")
    def stream(tag, op, vreg, sbase, lq, lk, step, fl):
        a(f"s_add_u32 s15, s15, {sbase}\ns_add_u32 s16, {sbase}, {72*512}\ns_mov_b32 m0, {lq}\ns_mov_b32 s12, 8")
        lds_wait(f"{tag}_go", 8, 244, 9, True)
        def loop(t, sreg):
            a(f"""{t}:
            {op} v{vreg}, s[36:39], {sreg} offen sc1 lds
            s_add_u32 m0, m0, {step}
            s_add_u32 {sreg}, {sreg}, {QK_T}
            s_sub_u32 s12, s12, 1
            s_cmp_lg_u32 s12, 0
            s_cbranch_scc1 {t}""")
        loop(f"{tag}_q", "s15")
        a(f"s_mov_b32 m0, {lk}\ns_mov_b32 s12, 8")
        loop(f"{tag}_1", "s16")
        stamp("Xiss")
        a("s_mov_b32 s12, 8\ns_waitcnt vmcnt(0)")
        stamp("Xland")
        a("s_barrier\ns_barrier")
        loop(f"{tag}_2", "s16")
        zflag(fl)
        a("s_mov_b32 s12, 48")
        loop(f"{tag}_3", "s16")
        a("s_branch b_lend")
    stream("b_k", "buffer_load_dwordx4", 118, "s8", L_Q, 0, 1024, 464)
    a("b_ldt:")
    stream("b_t", "buffer_load_dword", 119, "s9", L_Q + 8192, L_KT, 256, 468)
    a(f"""
    b_ldv:
    s_mov_b32 s10, {9216 - 288}
    """)
    for p in range(9):
        a(f"""v_add_u32 v10, {64*p}, v116
        v_mul_u32_u24 v11, 3641, v10
        v_lshrrev_b32 v11, 16, v11
        v_mul_lo_u32 v11, v11, s10
        v_lshl_add_u32 v{24+p}, v10, 4, v11""")
    a(f"""
    s_bfe_u32 s9, s3, 0x10001
    s_mul_i32 s8, s9, {32*9216}
    s_mul_i32 s10, s4, 288
    s_add_u32 s8, s8, s10
    s_add_u32 s8, s8, {WS_V}
    s_mul_i32 s9, s9, 9216
    s_add_u32 m0, s9, {L_V}
    s_mov_b32 s12, 0
    """)
    a("s_cmp_eq_u32 s3, 9\ns_cbranch_scc1 b_v_go\ns_barrier\ns_barrier\ns_branch b_v")
    lds_wait("b_v_go", 8, 244, 9, True)
    a("b_v:")
    for p in range(9): a(f"buffer_load_dwordx4 v{24+p}, s[36:39], s8 offen sc1 lds\ns_add_u32 m0, m0, {1024 if p < 8 else 1024 + 9216}\ns_nop 0")
    a(f"""
    s_add_u32 s8, s8, {64*9216}
    s_cmp_lg_u32 s12, 0
    s_cbranch_scc1 b_v1
    s_cmp_eq_u32 s3, 9
    s_cbranch_scc1 b_v0
    """)
    zflag(472)
    a(f"""
    s_branch b_v1
    b_v0:
    s_waitcnt vmcnt(0)
    s_barrier
    s_barrier
    b_v1:
    s_add_u32 s12, s12, 1
    s_cmp_lt_u32 s12, 4
    s_cbranch_scc1 b_v
    b_lend:
    s_waitcnt vmcnt(0)
    s_barrier
    """)
    srd(28, 94, 663552)
    srd(32, 96, 4718592)
    a(f"""
    s_lshr_b32 s12, s2, 3
    s_lshl_b32 s12, s12, 2
    s_add_u32 s12, s12, s3
    s_sub_u32 s12, s12, 8
    s_lshl_b32 s12, s12, 13
    v_lshlrev_b32 v121, 7, v116
    buffer_load_dword v115, v121, s[28:31], s12 offen
    s_cmp_lg_u32 s3, {99 if ("nossm" in OPT or "noconv" in OPT) else 9}
    s_cbranch_scc1 b_noy
    s_mov_b32 s4, s2
    v_lshrrev_b32 v10, 3, v116
    v_and_b32 v9, 7, v116
    v_lshlrev_b32 v11, 12, v10
    v_lshl_add_u32 v11, v9, 4, v11
    v_xor_b32 v12, v10, v9
    v_lshlrev_b32 v12, 4, v12
    v_lshl_add_u32 v12, v9, 10, v12
    v_add_u32 v12, {L_BOUNCE}, v12
    s_mov_b32 s50, 0x05040100
    s_mov_b32 s51, 0x07060302
    """)
    for p in range(8): a(f"v_xor_b32 v{24+p}, {16*p}, v11")
    a(f"""
    b_y:
    s_lshr_b32 s5, s4, 5
    s_and_b32 s6, s4, 31                 ; sub
    s_lshl_b32 s7, s5, 7
    s_lshr_b32 s8, s6, 4
    s_add_u32 s7, s7, s8
    v_lshl_add_u32 v120, v116, 1, s7
    v_mul_u32_u24 v120, {FS}, v120
    v_add_u32 v120, {FL_Y}, v120
    """)
    flag_poll("b_py", 1, 120)
    a(f"""
    s_lshl_b32 s7, s5, 18
    s_lshl_b32 s8, s6, 7
    s_add_u32 s7, s7, s8
    s_add_u32 s7, s7, {WS_Y}
    s_mov_b32 m0, {L_BOUNCE}
    """)
    for p in range(8):
        a(f"s_nop 0\nbuffer_load_dwordx4 v{24+p}, s[36:39], s7 offen sc1 lds\ns_add_u32 m0, m0, 1024\ns_add_u32 s7, s7, 32768")
    a(f"""
    s_and_b32 s8, s6, 3
    s_lshl_b32 s8, s8, 3
    s_bfe_u32 s9, s6, 0x10002
    s_lshl_b32 s9, s9, 7
    s_add_u32 s8, s8, s9
    s_lshr_b32 s9, s6, 3
    s_lshl_b32 s9, s9, 9
    s_add_u32 s8, s8, s9
    v_add_u32 v17, s8, v10
    v_mul_u32_u24 v17, 2304, v17
    v_lshl_add_u32 v17, v9, 4, v17
    s_lshl_b32 s8, s5, 7
    s_add_u32 s8, s8, 1152
    s_waitcnt vmcnt(0)
    """)
    for j in range(8): a(f"ds_read_b128 {vr(32+4*j,4)}, v12 offset:{j*128}")
    a("s_waitcnt lgkmcnt(0)")
    transpose8(32, 64, 50, 51)
    for c in range(8):
        a(f"s_add_u32 s9, s8, {((c&3)*32 + (c>>2)*256)*2304}\nbuffer_store_dwordx4 {vr(64+4*c,4)}, v17, s[32:35], s9 offen {OPT.get('sty','sc1')}")
    a(f"""
    s_add_u32 s4, s4, 256
    s_cmp_lt_u32 s4, 288
    s_cbranch_scc1 b_y
    b_noy:
    s_setprio 0
    v_mov_b32 v0, v116
    s_lshr_b32 s5, s2, 5                 ; tn
    s_mul_i32 s17, s5, 192
    """)
    for t in range(3):
        a(f"""v_add_u32 v5, {64*t}, v0
        v_mul_u32_u24 v6, 5462, v5
        v_lshrrev_b32 v6, 16, v6             ; row
        v_mul_u32_u24 v7, 12, v6
        v_sub_u32 v7, v5, v7
        v_lshl_add_u32 v7, v7, 4, s17
        v_mul_u32_u24 v8, 1152, v6
        v_add_u32 v{12+t}, v8, v7
        v_and_b32 v9, 4, v6
        v_lshrrev_b32 v10, 3, v6
        v_lshl_add_u32 v9, v10, 1, v9
        v_bfe_u32 v10, v6, 1, 1
        v_add_u32 v9, v9, v10
        v_mul_u32_u24 v9, 18, v9
        v_and_b32 v10, 1, v6
        v_add3_u32 v9, v9, v10, 16
        v_mul_u32_u24 v9, 1152, v9
        v_add_u32 v{16+t}, v9, v7""")
    a(f"""
    s_sub_u32 s8, s3, 8
    s_mul_i32 s10, s8, {9*20736}
    s_mul_i32 m0, s8, {9*3072}
    s_mov_b32 s12, 20736
    s_mov_b32 s13, 0
    s_barrier
    s_cmp_ge_u32 s2, 192
    s_cbranch_scc1 c_idle
    b_w:
    s_cmp_lg_u32 s13, 5
    s_cbranch_scc1 b_w1
    s_cmp_lg_u32 s8, 3
    s_cbranch_scc1 b_w1
    v_mov_b32 v12, v16
    v_mov_b32 v13, v17
    v_mov_b32 v14, v18
    s_mov_b32 s10, 0
    s_mov_b32 s12, {8*20736}
    b_w1:
    buffer_load_dwordx4 v12, s[28:31], s10 offen lds
    s_add_u32 m0, m0, 1024
    s_add_u32 s13, s13, 1
    buffer_load_dwordx4 v13, s[28:31], s10 offen lds
    s_add_u32 m0, m0, 1024
    s_cmp_lt_u32 s13, 9
    buffer_load_dwordx4 v14, s[28:31], s10 offen lds
    s_cbranch_scc0 c_start
    s_add_u32 m0, m0, 1024
    s_add_u32 s10, s10, s12
    s_branch b_w
    """)

def phaseC():
    a(f"""
    c_start:
    s_cmp_ge_u32 s2, 192
    s_cbranch_scc1 k_done2
    """)
    srd(32, 96, 4718592)
    a(f"""
    s_and_b32 s4, s2, 7
    s_bfe_u32 s6, s2, 0x20003
    s_lshl_b32 s7, s4, 2
    s_add_u32 s7, s7, s6                 ; tm
    s_lshr_b32 s5, s2, 5                 ; tn
    s_mul_i32 s8, s3, 43
    s_lshr_b32 s8, s8, 7                 ; w/3
    s_mul_i32 s9, s8, 3
    s_sub_u32 s9, s3, s9                 ; tb = w%3
    s_lshr_b32 s13, s8, 1                ; kh
    s_and_b32 s14, s8, 1                 ; ta
    v_lshrrev_b32 v5, 5, v0
    v_bfe_u32 v6, v0, 2, 2
    v_lshl_add_u32 v6, v5, 2, v6
    v_mul_u32_u24 v4, 192, v6
    v_bfe_u32 v6, v0, 4, 1
    v_lshl_add_u32 v4, v6, 5, v4
    v_and_b32 v6, 3, v0
    v_lshl_add_u32 v4, v6, 3, v4
    s_lshl_b32 s17, s9, 6
    s_mul_i32 s18, s13, {18*3072}
    s_add_u32 s17, s17, s18
    v_add_u32 v4, s17, v4
    v_lshlrev_b32 v2, 4, v0
    s_mul_i32 s17, s8, {18*1024}
    v_add_u32 v3, s17, v2
    v_and_b32 v11, 31, v0
    v_lshlrev_b32 v11, 2, v11
    v_lshl_add_u32 v11, v5, 9, v11
    v_add_u32 v11, s17, v11
    v_add_u32 v11, {14*1024}, v11
    s_lshl_b32 s15, s7, 1
    s_add_u32 s15, s15, s14
    s_mul_i32 s16, s15, {O_T}
    s_mul_i32 s18, s13, {18*1024}
    s_add_u32 s16, s16, s18
    s_lshl_b32 s18, s9, 10
    s_add_u32 s16, s16, s18
    s_add_u32 s16, s16, {WS_O}
    s_add_u32 s17, s17, s18
    s_mul_i32 s18, s7, {64*FS}
    s_add_u32 s18, s18, {FL_B}
    v_mul_u32_u24 v120, {FS}, v0
    v_add_u32 v120, s18, v120
    s_cmp_lt_u32 s3, 8
    s_cbranch_scc1 c_nw
    s_waitcnt vmcnt(0)
    c_nw:
    s_barrier
    """)
    stamp("CW")
    a("s_cmp_lg_u32 s3, 8\ns_cbranch_scc1 c_ni")
    poll_issue(1, 120)
    a("c_ni:")
    for k in range(18):
        a(f"ds_read_b64_tr_b16 {vr(32+4*k,2)}, v4 offset:{k*3072}\nds_read_b64_tr_b16 {vr(34+4*k,2)}, v4 offset:{k*3072+8*192}")
        if k % 4 == 3: a("s_waitcnt lgkmcnt(6)")
    a("s_cmp_lg_u32 s3, 8\ns_cbranch_scc1 c_np")
    flag_poll("c_pb", 1, 120, issued=True)
    a("c_np:\ns_mov_b32 m0, s17\ns_waitcnt lgkmcnt(0)\ns_barrier")
    stamp("Cflag")
    for i in range(6):
        a("buffer_load_dwordx4 v2, s[36:39], s16 offen sc1 lds")
        if i < 5: a("s_add_u32 m0, m0, 3072\ns_add_u32 s16, s16, 3072")
    a(f"""
    s_mul_i32 s18, s3, 2048
    s_add_u32 s18, s18, 81920
    v_add_u32 v6, s18, v2
    s_mov_b32 s19, {-6*2048 & 0xffffffff:#x}
    s_cmp_eq_u32 s13, 0
    s_cselect_b32 s19, {6*2048}, s19
    v_add_u32 v7, s19, v6                ; partner's
    v_mul_u32_u24 v5, {8*2304}, v5
    v_and_b32 v8, 31, v0
    v_lshl_add_u32 v5, v8, 1, v5
    s_mul_i32 s17, s15, {32*2304}
    s_mul_i32 s18, s5, 192
    s_add_u32 s17, s17, s18
    s_lshl_b32 s18, s9, 6
    s_add_u32 s17, s17, s18
    s_mul_i32 s18, s13, {16*2304}
    s_add_u32 s17, s17, s18
    """)
    for c in range(3):
        a(f"s_waitcnt vmcnt({4-2*c})\ns_barrier")
        if c == 0: stamp("Cfirst")
        if c < 2:
            for k in range(6): a(f"ds_read_b128 {vr(104+4*k,4)}, v3 offset:{(6*c+k)*1024}")
        else:
            for k in range(2): a(f"ds_read_b128 {vr(104+4*k,4)}, v3 offset:{(6*c+k)*1024}")
            a("s_cmp_eq_u32 s13, 1\ns_cbranch_scc1 c_tl")
            for k in range(2, 6): a(f"ds_read_b128 {vr(104+4*k,4)}, v3 offset:{(6*c+k)*1024}")
            a("s_branch c_tm\nc_tl:")
            for k in range(2, 6):
                a(f"""ds_read2_b32 {vr(104+4*k,2)}, v11 offset0:0 offset1:32
                ds_read2_b32 {vr(106+4*k,2)}, v11 offset0:64 offset1:96
                v_add_u32 v11, 1024, v11""")
            a("s_waitcnt lgkmcnt(0)\nc_tm:")
        for k in range(6):
            a(f"s_waitcnt lgkmcnt({5-k})")
            a(f"v_mfma_f32_32x32x16_bf16 v[16:31], {vr(104+4*k,4)}, {vr(32+4*(6*c+k),4)}, " + ("0" if c == 0 and k == 0 else "v[16:31]"))
    stamp("Cmfma")
    a("""
    s_nop 10
    s_cmp_eq_u32 s13, 0
    s_cbranch_scc1 c_x0
    ds_write_b128 v6, v[16:19]
    ds_write_b128 v6, v[20:23] offset:1024
    s_waitcnt lgkmcnt(0)
    """)
    for r in range(8): a(f"v_mov_b32 v{16+r}, v{24+r}")
    a("""s_branch c_x1
    c_x0:
    ds_write_b128 v6, v[24:27]
    ds_write_b128 v6, v[28:31] offset:1024
    c_x1:
    s_waitcnt lgkmcnt(0)
    s_barrier
    ds_read_b128 v[32:35], v7
    ds_read_b128 v[36:39], v7 offset:1024
    s_waitcnt lgkmcnt(0)""")
    for r in range(8): a(f"v_add_f32 v{16+r}, v{16+r}, v{32+r}")
    for c in range(4): a(f"v_cvt_pk_bf16_f32 v{40+c}, v{16+2*c}, v{16+2*c+1}")
    for c in range(4):
        a(f"""s_add_u32 s18, s17, {2*c*2304}
        buffer_store_short v{40+c}, v5, s[32:35], s18 offen {OPT.get('sto','')}
        buffer_store_short_d16_hi v{40+c}, v5, s[32:35], s18 offen offset:2304 {OPT.get('sto','')}""")
    a("k_done2:")
    if DIAG:
        a(f"""s_cmp_lg_u32 s2, {OPT.get("dwg", 0)}
        s_cbranch_scc1 k_done
        s_cmp_lg_u32 s3, {OPT.get("dw", 4)}
        s_cbranch_scc1 k_done
        s_waitcnt vmcnt(0)
        s_memrealtime s[74:75]
        s_waitcnt lgkmcnt(0)
        {"s_mov_b32 s72, s74" if DIAG == "end" else "s_mov_b32 s72, s70" if DIAG == "none" else ""}
        s_sub_u32 s76, s72, s70
        s_min_u32 s76, s76, 10000
        s_lshl_b32 s76, s76, 2
        s_add_u32 s76, s76, 5000
        dg_spin:
        s_memrealtime s[78:79]
        s_waitcnt lgkmcnt(0)
        s_sub_u32 s77, s78, s70
        s_cmp_lt_u32 s77, s76
        s_cbranch_scc1 dg_spin""")
    stamp_out()
    a(f"""k_done:
    s_endpgm
    c_idle:
    s_cmp_lg_u32 s2, 255
    s_cbranch_scc1 k_done2
    s_cmp_lg_u32 s3, 8
    s_cbranch_scc1 k_done2
    v_lshrrev_b32 v120, 5, v116
    v_lshlrev_b32 v120, 8, v120
    v_and_b32 v121, 31, v116
    v_add_u32 v120, v120, v121
    v_mul_u32_u24 v120, {FS}, v120
    v_add_u32 v120, {FL_B}, v120
    v_add_u32 v121, {512*FS}, v120
    v_add_u32 v122, {1024*FS}, v120
    v_add_u32 v123, {1536*FS}, v120
    """)
    flag_poll("c_pe", 4, 120)
    a(f"s_mov_b32 s6, {FL_E}")
    flag_set("s6", 2)
    a("s_branch k_done2")
    a(f"""
    b_slow:
    v_subrev_u32 v{vK}, 65536, v{vK}
    v_subrev_u32 v{vT}, 16384, v{vT}
    v_subrev_u32 v{vV}, {8*9216}, v{vV}
    s_mov_b32 s26, 0
    v_mov_b32 v121, 0xff800000
    s_waitcnt lgkmcnt(0)
    b_mx:
    """)
    rdT(0, 0)
    for t in range(4):
        rdK(0, t)
        a("s_waitcnt lgkmcnt(0)")
        a(f"v_mfma_f32_32x32x16_bf16 {vr(S[0],16)}, {vr(KF[0],4)}, {vr(Q,4)}, 0")
        a(f"v_mfma_f32_32x32x8_bf16 {vr(S[0],16)}, {vr(TF[0]+2*(t>>1),2)}, {vr(QH if t&1 else QL,2)}, {vr(S[0],16)}")
        a("s_nop 15")
        for r in range(8): a(f"v_max3_f32 v121, v{S[0]+2*r}, v{S[0]+2*r+1}, v121")
    a(f"""
    v_add_u32 v{vK}, 4096, v{vK}
    v_add_u32 v{vT}, 1024, v{vT}
    s_add_u32 s26, s26, 1
    s_cmp_lt_u32 s26, 16
    s_cbranch_scc1 b_mx
    v_subrev_u32 v{vK}, 65536, v{vK}
    v_subrev_u32 v{vT}, 16384, v{vT}
    v_mov_b32 v122, v121
    s_nop 1
    v_permlane32_swap_b32 v121, v122
    s_nop 1
    v_max_f32 v121, v121, v122
    """)
    for i in range(16): a(f"v_sub_f32 v{NEG+i}, 0, v121")
    att_run(False)
    a("s_nop 15\ns_branch b_fin\nk_last:")

def main():
    ref = open("concat_heads__mha_block__ssm_conv_s4d__prompt.s.ref").read().split("\n")
    head = [l for l in ref if l.startswith(";") and "@launch" not in l and "Override launch" not in l and "grid=ceil" not in l]
    head += ["; @launch grid=(256,1,1) block=(768,1,1) lds=163840"]
    a(f".text\n.globl {KN}\n.p2align 8\n.type {KN},@function\n{KN}:")
    if INSTR:
        for i in range(70, 90): a(f"s_mov_b32 s{i}, 0")
        a("s_memtime s[70:71]\ns_memrealtime s[86:87]")
    if DIAG: a("s_memrealtime s[70:71]")
    phaseA(); phaseB(); phaseC()
    desc = f""".section .rodata,"a"
.p2align 6
.amdhsa_kernel {KN}
  .amdhsa_next_free_vgpr 168
  .amdhsa_next_free_sgpr 102
  .amdhsa_accum_offset 168
  .amdhsa_group_segment_fixed_size 0
  .amdhsa_kernarg_size 104
  .amdhsa_user_sgpr_count 2
  .amdhsa_user_sgpr_kernarg_segment_ptr 1
  .amdhsa_system_sgpr_workgroup_id_x 1
.end_amdhsa_kernel
"""
    out = "\n".join(head) + "\n.amdgcn_target \"amdgcn-amd-amdhsa--gfx950\"\n" + a.text() + desc
    path = sys.argv[1] if len(sys.argv) > 1 and sys.argv[1].endswith(".s") else "concat_heads__mha_block__ssm_conv_s4d__prompt.s"
    open(path, "w").write(out)
main()
```

```python
import sys, struct
KN = "concat_heads__mha_block__ssm_conv_s4d__prompt_kernel"
def f2u(x): return struct.unpack("<I", struct.pack("<f", x))[0]
INSTR = "instr" in sys.argv
OPT = dict(x.split("=") for x in sys.argv if "=" in x)

WS_QK = 0; QK_T = 73728
WS_V = WS_QK + 64 * QK_T
WS_O = WS_V + 256 * 9216; O_T = 36864
WS_U = WS_O + 64 * O_T
WS_Y = WS_U + 576 * 4096
WS_FL = WS_Y + 576 * 4096
FS = 128
FL_A = 0; FL_S = 864 * FS; FL_Y = FL_S + 288 * FS; FL_B = FL_Y + 1152 * FS; FL_E = FL_B + 2048 * FS
WS_END = WS_FL + FL_E + FS
WS_ST = 24 << 20
L_FL = 155648
KC = 4156
KAREA = 8448
L_KT = 65536; L_V = 81920; L_BOUNCE = 155648; L_Q = 102400

class A:
    def __init__(s): s.l = []
    def __call__(s, t):
        for line in t.strip("\n").split("\n"):
            q = line.strip()
            if not q: continue
            s.l.append(q if q.endswith(":") else "    " + q)
    def text(s): return "\n".join(s.l) + "\n"
a = A()
def vr(b, n): return f"v[{b}:{b+n-1}]"
def srd(d, lo, size):
    a(f"""s_mov_b32 s{d}, s{lo}
    s_mov_b32 s{d+1}, s{lo+1}
    s_mov_b32 s{d+2}, {size}
    s_mov_b32 s{d+3}, 0x20000""")

SSETS = {"1": ["Aend", "Aack", "Bflag", "Bgo", "Bloop", "Back"],
         "2": ["Bloop", "Back", "CW", "Cflag", "Cfirst", "Cmfma"],
         "4": ["Aack", "Xpw", "Xpoll", "Xiss", "Xland", "Bgo"],
         "3": ["Afirst", "Akgen", "Abuilt", "Aconv", "Aend", "Aack"]}
DIAG = OPT.get("diag")
def stamp(name):
    if DIAG == name: a("s_memrealtime s[72:73]")
    if INSTR and name in SSETS[OPT.get("sset", "1")]:
        i = SSETS[OPT.get("sset", "1")].index(name) + 1
        a(f"s_memtime s[{70+2*i}:{71+2*i}]")
def stamp_out():
    if not INSTR: return
    a(f"""s_waitcnt vmcnt(0)
    s_memtime s[84:85]
    s_memrealtime s[88:89]
    s_waitcnt lgkmcnt(0)
    s_mov_b64 exec, 1
    s_lshl_b32 s90, s2, 4
    s_add_u32 s90, s90, s3
    s_lshl_b32 s90, s90, 6
    s_add_u32 s90, s90, {WS_ST}
    v_mov_b32 v166, s90""")
    for i in range(10):
        a(f"v_mov_b32 v167, s{70+2*i}\nglobal_store_dword v166, v167, s[24:25] offset:{4*i}")

def transpose8(I, O, sLO, sHI):
    for c in range(8):
        for t in range(4):
            a(f"v_perm_b32 v{O+4*c+t}, v{I+4*(2*t+1)+(c>>1)}, v{I+4*(2*t)+(c>>1)}, s{sHI if c&1 else sLO}")

def flag_set(soff, t):
    if OPT.get("ffl", "1") == "1":
        a(f"""v_mbcnt_lo_u32_b32 v{t}, -1, 0
        v_mov_b32 v{t+1}, s92
        v_lshl_add_u32 v{t}, v{t}, 2, s93
        s_mov_b32 exec_hi, 0
        buffer_store_dword v{t+1}, v{t}, s[36:39], {soff} offen sc1
        s_mov_b32 exec_hi, -1""")
    else:
        a(f"""v_mov_b32 v{t}, {WS_FL}
        v_mov_b32 v{t+1}, s92
        s_mov_b64 exec, 1
        buffer_store_dword v{t+1}, v{t}, s[36:39], {soff} offen sc1
        s_mov_b64 exec, -1""")
def poll_issue(n, t):
    for i in range(n): a(f"buffer_load_dword v{t+4+i}, v{t+i}, s[36:39], s93 offen sc1")
def flag_poll(tag, n, t, issued=False):
    a("s_mov_b32 s91, 0")
    if issued: a(f"s_branch {tag}_c")
    a(f"{tag}:")
    poll_issue(n, t)
    a(f"{tag}_c:\ns_add_u32 s91, s91, 1\ns_waitcnt vmcnt(0)")
    for i in range(n): a(f"v_xor_b32 v{t+4+i}, s92, v{t+4+i}")
    for i in range(1, n): a(f"v_or_b32 v{t+4}, v{t+4}, v{t+4+i}")
    a(f"""v_cmp_ne_u32 vcc, 0, v{t+4}
    s_cbranch_vccz {tag}_x
    s_mov_b64 exec, vcc
    s_sleep {OPT.get("slp", 2)}
    s_cmp_lt_u32 s91, 0x80000
    s_cbranch_scc1 {tag}
    {tag}_x:
    s_mov_b64 exec, -1""")
def lds_wait(tag, vaddr, off, t, slp=False):
    a(f"""{tag}:
    {"s_sleep 1" if slp else ""}
    ds_read_b32 v{t}, v{vaddr} offset:{off}
    s_waitcnt lgkmcnt(0)
    v_cmp_eq_u32 vcc, 0, v{t}
    s_cbranch_vccz {tag}""")
def kargs():
    a(f"""s_waitcnt lgkmcnt(0)
    s_add_u32 s68, s24, {WS_FL + FL_E}
    s_addc_u32 s69, s25, 0
    s_load_dword s92, s[68:69], 0""")
    srd(36, 24, WS_END)

def ufetch(tag):
    a(f"""
    s_sub_u32 s43, s3, 8
    s_sub_u32 s45, 11, s3
    s_cmp_ge_u32 s2, 224
    s_cselect_b32 s43, s45, s43
    s_and_b32 s45, s43, 1
    s_lshl_b32 s40, s2, 1
    s_add_u32 s40, s40, s45
    s_add_u32 s46, s40, {512 - 448}
    s_lshl_b32 s44, s43, 13
    s_add_u32 s47, s44, {40960 - 16384}
    s_add_u32 s44, s44, 147968
    s_cmp_ge_u32 s43, 2
    s_cselect_b32 s40, s46, s40          ; channel
    s_cselect_b32 m0, s47, s44
    s_lshr_b32 s46, s40, 6
    s_mul_i32 s46, s46, {32*FS}
    s_add_u32 s46, s46, {FL_S}
    v_and_b32 v10, 31, v0
    v_mul_u32_u24 v10, {FS}, v10
    v_add_u32 v10, s46, v10
    v_lshlrev_b32 v12, 4, v0
    v_mov_b32 v13, 0x7ffffff0
    s_lshl_b32 s44, s40, 12
    s_add_u32 s44, s44, {WS_U}
    s_mov_b32 exec_hi, 0
    """)
    flag_poll(tag, 1, 10)
    for i in range(4): a(f"buffer_load_dwordx4 v12, s[36:39], s44 offen offset:{1024*i} sc1 lds")
    a(f"""s_lshl_b32 s43, s43, 2
    s_add_u32 m0, s43, {L_FL + 448}
    s_mov_b64 exec, 1
    buffer_load_dword v13, s[36:39], 0 offen lds
    s_mov_b64 exec, -1""")

def phaseA():
    mod9 = """
    s_mul_i32 s49, s48, 57
    s_lshr_b32 s49, s49, 9
    s_mul_i32 s49, s49, 9
    s_sub_u32 s48, s48, s49"""
    ROT = {"wg": "s_lshl_b32 s48, s40, 1\ns_add_u32 s48, s48, s41" + mod9, "none": "s_mov_b32 s48, 0",
           "xcd": "s_and_b32 s48, s26, 3\ns_lshl_b32 s48, s48, 1\ns_lshr_b32 s49, s26, 2\ns_mul_i32 s49, s49, 5\ns_add_u32 s48, s48, s49" + mod9}[OPT.get("rot", "xcd")]
    a(f"""
    s_cmp_ge_u32 s2, 256
    s_cbranch_scc1 k_done
    v_lshrrev_b32 v1, 6, v0
    v_and_b32 v0, 63, v0
    v_readfirstlane_b32 s3, v1
    v_mov_b32 v23, {L_FL}
    s_cmp_lg_u32 s3, 9
    s_cbranch_scc1 a_noarm
    v_mov_b32 v14, -1
    v_mov_b32 v15, -1
    v_lshl_add_u32 v16, v0, 3, v23
    ds_write_b64 v16, v[14:15]
    s_waitcnt lgkmcnt(0)
    a_noarm:
    s_load_dwordx16 s[4:19], s[0:1], 0
    s_load_dwordx4 s[20:23], s[0:1], 64
    s_load_dwordx2 s[24:25], s[0:1], 96
    s_load_dwordx2 s[96:97], s[0:1], 80
    s_load_dwordx2 s[94:95], s[0:1], 16
    s_add_u32 s26, s3, 8
    s_sub_u32 s27, s3, 4
    s_cmp_lt_u32 s3, 4
    {"" if OPT.get("remap", "1") == "0" else "s_cselect_b32 s3, s26, s27           ; the waves that start first take the loader role (8..11)"}
    s_and_b32 s26, s2, 7
    s_lshr_b32 s27, s2, 3
    s_and_b32 s40, s26, 3
    s_lshl_b32 s40, s40, 2
    s_and_b32 s44, s27, 3
    s_add_u32 s40, s40, s44
    s_lshr_b32 s41, s26, 2
    s_mul_i32 s41, s41, 7
    s_lshr_b32 s44, s27, 2
    s_add_u32 s41, s41, s44
    s_mov_b32 s93, {WS_FL}
    s_cmp_ge_u32 s3, 8
    s_cbranch_scc1 a_aux
    s_cmp_lt_u32 s3, 4
    s_cbranch_scc1 a_ssm
    s_branch a_gemm
    a_aux:
    s_cmp_ge_u32 s27, 28
    s_cbranch_scc1 a_task
    {ROT}
    s_bfe_u32 s56, s3, 0x10001
    s_bitcmp1_b32 s3, 0
    s_cbranch_scc1 a_ldw
    v_lshrrev_b32 v4, 3, v0
    v_lshrrev_b32 v5, 2, v4
    v_lshlrev_b32 v5, 3, v5
    v_and_b32 v6, 3, v4
    v_add_u32 v5, v5, v6
    s_lshl_b32 s44, s40, 7
    v_add_u32 v5, s44, v5
    v_mul_u32_u24 v5, 1152, v5
    v_lshrrev_b32 v6, 1, v4
    v_and_b32 v7, 7, v0
    v_xor_b32 v6, v6, v7
    v_lshl_add_u32 v2, v6, 4, v5
    v_xor_b32 v6, 4, v6
    v_lshl_add_u32 v3, v6, 4, v5
    v_add_u32 v3, {4608-1024}, v3
    s_mov_b32 s50, 128
    s_mov_b32 s51, 18432
    s_mov_b32 s52, 0
    s_waitcnt lgkmcnt(0)
    s_mov_b32 s28, s4
    s_mov_b32 s29, s5
    s_mov_b32 s30, 2359296
    s_branch a_ld
    a_ldw:
    v_lshrrev_b32 v5, 4, v0
    v_mul_u32_u24 v2, 3456, v5
    v_lshlrev_b32 v5, 2, v5
    v_and_b32 v6, 15, v0
    v_xor_b32 v5, v5, v6
    v_lshl_add_u32 v2, v5, 4, v2
    s_lshl_b32 s44, s41, 8
    v_add_u32 v2, s44, v2
    v_add_u32 v3, {13824-1024}, v2
    s_mov_b32 s50, 221184
    s_mov_b32 s51, 27648
    s_mov_b32 s52, 16384
    s_waitcnt lgkmcnt(0)
    s_mov_b32 s28, s6
    s_mov_b32 s29, s7
    s_mov_b32 s30, 1990656
    a_ld:
    s_setprio {OPT.get("lprio", 0)}
    s_mov_b32 s31, 0x20000
    s_mul_i32 s57, s56, s51
    s_lshl_b32 s57, s57, 2
    s_lshl_b32 s56, s56, 13
    s_add_u32 s52, s52, s56
    s_and_b32 s58, s3, 3
    s_lshl_b32 s58, s58, 2
    s_add_u32 s58, s58, {L_FL}
    v_mov_b32 v4, 0x7ffffff0
    s_mov_b32 s53, 0
    """)
    kargs()
    a(f"""
    a_ld_loop:
    s_cmp_lt_u32 s53, 4
    s_cbranch_scc1 a_ld_go
    a_ld_poll:
    ds_read_b128 v[8:11], v23 offset:160
    s_waitcnt lgkmcnt(0)
    v_or_b32 v8, v8, v9
    v_or3_b32 v8, v8, v10, v11
    v_cmp_eq_u32 vcc, 0, v8
    s_cbranch_vccz a_ld_poll
    v_add_u32 v23, 16, v23
    a_ld_go:
    s_mul_i32 s47, s48, s50
    s_add_u32 s47, s47, s57
    s_and_b32 s55, s53, 3
    s_lshl_b32 s55, s55, 15
    s_add_u32 m0, s55, s52
    s_add_u32 s48, s48, 1
    """)
    for p in range(4):
        a("buffer_load_dwordx4 v2, s[28:31], s47 offen lds\nbuffer_load_dwordx4 v3, s[28:31], s47 offen offset:1024 lds")
        if p < 3: a("s_add_u32 m0, m0, 2048\ns_add_u32 s47, s47, s51")
    a(f"""
    s_cmp_eq_u32 s48, 9
    s_cselect_b32 s48, 0, s48
    s_cmp_lg_u32 s53, 0
    s_cbranch_scc1 a_ld_nb
    s_barrier
    a_ld_nb:
    s_mov_b32 m0, s58
    s_mov_b64 exec, 1
    buffer_load_dword v4, s[28:31], 0 offen lds
    s_mov_b64 exec, -1
    s_add_u32 s58, s58, 16
    s_add_u32 s53, s53, 1
    s_cmp_lt_u32 s53, 9
    s_cbranch_scc1 a_ld_loop
    """)
    a("v_mov_b32 v116, v0\ns_waitcnt lgkmcnt(0)\ns_add_u32 s92, s92, 1\ns_cmp_ge_u32 s3, 10\ns_cbranch_scc1 b_aux\na_uf:")
    ufetch("a_pu")
    a("s_branch b_aux")
    CPF = "" if OPT.get("cpf", "1") == "0" else f"""
    ; read this kernel's own code once per XCD so that later instruction fetches find it in L2 (speed only)
    s_getpc_b64 s[44:45]
    a_pc:
    s_lshl_b32 s46, s27, 2
    s_add_u32 s46, s46, s3
    s_sub_u32 s46, s46, 4
    s_lshl_b32 s46, s46, 8
    s_min_u32 s46, s46, k_last - {KN} - 256
    s_sub_u32 s44, s44, a_pc - {KN}
    s_subb_u32 s45, s45, 0
    s_add_u32 s44, s44, s46
    s_addc_u32 s45, s45, 0
    v_lshlrev_b32 v60, 6, v0
    v_mov_b32 v61, s45
    v_add_co_u32 v60, vcc, s44, v60
    s_mov_b64 exec, 15
    s_nop 0
    v_addc_co_u32 v61, vcc, 0, v61, vcc
    global_load_dword v62, v[60:61], off
    s_mov_b64 exec, -1"""
    a(f"""
    a_gemm:
    {CPF}
    s_cmp_ge_u32 s27, 28
    s_cbranch_scc1 a_ssm
    s_barrier
    """)
    kargs()
    if OPT.get("tcha", "0") == "1":
        a(f"""s_cmp_lg_u32 s3, 5
        s_cbranch_scc1 a_ntch
        v_lshlrev_b32 v60, 18, v0
        buffer_load_dword v63, v60, s[36:39], 0 offen
        a_ntch:""")
    a(f"""
    s_sub_u32 s45, s3, 4
    s_and_b32 s42, s45, 1                ; mw
    s_lshr_b32 s43, s45, 1               ; nw
    s_lshl_b32 s58, s45, 2
    s_add_u32 s58, s58, {L_FL + 160}
    v_mov_b32 v22, 0x7ffffff0
    v_and_b32 v5, 31, v0
    v_lshrrev_b32 v6, 5, v0
    s_lshl_b32 s44, s42, 6
    v_add_u32 v7, s44, v5
    v_lshlrev_b32 v7, 7, v7
    v_bfe_u32 v5, v5, 1, 3
    v_xor_b32 v5, v5, v6
    """)
    for j in range(4):
        a(f"v_xor_b32 v20, {2*j}, v5\nv_lshl_add_u32 v{8+j}, v20, 4, v7\nv_add_u32 v{12+j}, 0x10000, v{8+j}")
    a(f"""
    v_bfe_u32 v5, v0, 2, 2
    v_lshl_add_u32 v7, v6, 3, v5
    v_lshlrev_b32 v7, 8, v7
    v_bfe_u32 v20, v0, 4, 1
    v_lshl_add_u32 v7, v20, 5, v7
    v_and_b32 v20, 1, v0
    v_lshl_add_u32 v7, v20, 4, v7
    v_and_b32 v20, 2, v0
    v_lshl_add_u32 v7, v20, 2, v7
    v_add_u32 v7, 16384, v7
    s_lshl_b32 s44, s43, 1
    v_xor_b32 v5, s44, v5
    v_lshl_add_u32 v16, v5, 6, v7
    v_xor_b32 v5, 1, v5
    v_lshl_add_u32 v17, v5, 6, v7
    v_add_u32 v18, 0x10000, v16
    v_add_u32 v19, 0x10000, v17
    s_setprio {OPT.get('gprio', 2)}
    s_waitcnt lgkmcnt(0)
    s_add_u32 s92, s92, 1
    s_lshl_b32 s46, s40, 1
    s_add_u32 s46, s46, s42
    s_lshl_b32 s47, s41, 1
    s_add_u32 s47, s47, s43
    s_lshl_b32 s59, s47, 5
    s_add_u32 s59, s59, s46
    s_mul_i32 s59, s59, {FS}
    s_cmp_ge_u32 s41, 9
    s_cbranch_scc1 a_gemm_v""")
    FB = [24, 40, 128]
    def reads(stage, j, fb):
        slot = stage & 3; hi = slot >> 1; base = (slot & 1) * 32768
        return [f"ds_read_b128 {vr(fb,4)}, v{8+4*hi+j} offset:{base}",
                f"ds_read_b64_tr_b16 {vr(fb+8,2)}, v{16+2*hi} offset:{base+j*4096}",
                f"ds_read_b64_tr_b16 {vr(fb+10,2)}, v{16+2*hi} offset:{base+j*4096+1024}",
                f"ds_read_b64_tr_b16 {vr(fb+12,2)}, v{17+2*hi} offset:{base+j*4096}",
                f"ds_read_b64_tr_b16 {vr(fb+14,2)}, v{17+2*hi} offset:{base+j*4096+1024}",
                f"ds_read_b128 {vr(fb+4,4)}, v{8+4*hi+j} offset:{base+4096}"]
    def mfmas(fb, vor, first):
        out = []
        for (ta, tb) in ((0,0),(0,1),(1,0),(1,1)):
            acc = vr(64 + 16*(2*ta+tb), 16); X = vr(fb+4*ta, 4); W = vr(fb+8+4*tb, 4)
            out.append(f"v_mfma_f32_32x32x16_bf16 {acc}, " + (f"{X}, {W}" if vor else f"{W}, {X}") + ", " + ("0" if first else acc))
        return out
    def check(tag, st, first_read):
        if not first_read:
            a(f"""v_or_b32 v56, v56, v57
            v_or3_b32 v56, v56, v58, v59
            v_cmp_eq_u32 vcc, 0, v56
            s_cbranch_vccnz {tag}_ok""")
        a(f"""{tag}_p:
        ds_read_b128 v[56:59], v23 offset:{16*st}
        s_waitcnt lgkmcnt(0)
        v_or_b32 v56, v56, v57
        v_or3_b32 v56, v56, v58, v59
        v_cmp_eq_u32 vcc, 0, v56
        s_cbranch_vccz {tag}_p
        {tag}_ok:""")
    def mainloop(vor):
        check(f"a_c{int(vor)}_0", 0, True)
        stamp("Afirst")
        a("\n".join(reads(0, 0, FB[0]) + reads(0, 1, FB[1])))
        for g in range(36):
            st, j = divmod(g, 4)
            a(f"s_waitcnt lgkmcnt({6 if g < 35 else 0})")
            m = mfmas(FB[g % 3], vor, g == 0)
            a(m[0])
            if j == 1 and st < 8: a(f"ds_read_b128 v[56:59], v23 offset:{16*(st+1)}")
            if j == 2 and st < 8: check(f"a_c{int(vor)}_{st+1}", st+1, False)
            if j == 3 and st < 5: a(f"s_add_u32 m0, s58, {16*st}\ns_mov_b64 exec, 1\nbuffer_load_dword v22, s[36:39], 0 offen lds\ns_mov_b64 exec, -1")
            rd = reads((g+2)//4, (g+2)%4, FB[(g+2) % 3]) if g + 2 < 36 else []
            a("\n".join(rd[:3])); a(m[1]); a("\n".join(rd[3:])); a(m[2]); a(m[3])
        stamp("Aconv")
    a(f"""
    s_mul_i32 s44, s46, {2*QK_T}
    s_lshl_b32 s45, s47, 12
    s_add_u32 s44, s44, s45
    s_add_u32 s45, s44, {QK_T}
    v_lshlrev_b32 v2, 4, v0
    """)
    mainloop(False)
    for ta in range(2):
        for tb in range(2):
            acc = 64 + 16*(2*ta+tb); o = 24 + 8*(2*ta+tb)
            if ta + tb == 0: a("s_nop 8")
            for r in range(8): a(f"v_cvt_pk_bf16_f32 v{o+r}, v{acc+2*r}, v{acc+2*r+1}")
            for hh in range(2): a(f"buffer_store_dwordx4 {vr(o+4*hh,4)}, v2, s[36:39], s{44+ta} offen offset:{tb*2048+hh*1024} sc1")
    a(f"""s_branch a_gemm_end
    a_gemm_v:
    v_and_b32 v5, 19, v0
    v_bfe_u32 v6, v0, 2, 1
    v_lshl_add_u32 v5, v6, 3, v5
    v_bfe_u32 v6, v0, 3, 1
    v_lshl_add_u32 v5, v6, 2, v5
    v_lshrrev_b32 v6, 5, v0
    v_mul_u32_u24 v6, 9216, v6
    v_lshl_add_u32 v2, v5, 4, v6
    s_sub_u32 s45, s47, 18
    s_lshl_b32 s45, s45, 10
    s_mul_i32 s44, s46, {8*9216}
    s_add_u32 s44, s44, s45
    s_add_u32 s44, s44, {WS_V}
    """)
    mainloop(True)
    a("s_cmp_ge_u32 s47, 27\ns_cbranch_scc1 a_end")
    for ta in range(2):
        for tb in range(2):
            acc = 64 + 16*(2*ta+tb); o = 24 + 8*(2*ta+tb)
            if ta + tb == 0: a("s_nop 8")
            for r in range(8): a(f"v_cvt_pk_bf16_f32 v{o+r}, v{acc+2*r}, v{acc+2*r+1}")
            for hh in range(2): a(f"s_add_u32 s45, s44, {(4*ta+2*hh)*9216}\nbuffer_store_dwordx4 {vr(o+4*hh,4)}, v2, s[36:39], s45 offen offset:{tb*512} sc1")
    a("a_gemm_end:")
    stamp("Aend")
    a("s_waitcnt vmcnt(0)")
    stamp("Aack")
    flag_set("s59", 2)
    a("s_branch a_end")

    a(f"""
    a_task:
    s_sub_u32 s44, s2, 224
    s_lshr_b32 s45, s44, 1               ; B
    s_and_b32 s46, s44, 1                ; es
    s_sub_u32 s47, 16, s3
    s_lshl_b32 s59, s47, 5
    s_add_u32 s59, s59, s44
    s_mul_i32 s59, s59, {FS}
    s_add_u32 s59, s59, {FL_S}
    s_lshl_b32 s48, s45, 3
    s_add_u32 s48, s48, s46
    s_mul_i32 s48, s48, {16*1152}
    s_lshl_b32 s49, s47, 7
    s_add_u32 s48, s48, s49
    v_lshrrev_b32 v10, 3, v0
    v_and_b32 v9, 7, v0
    v_mul_u32_u24 v11, 1152, v10
    v_lshl_add_u32 v11, v9, 4, v11
    v_xor_b32 v12, v10, v9
    v_lshlrev_b32 v12, 4, v12
    v_lshl_add_u32 v12, v9, 10, v12
    s_sub_u32 s49, 11, s3
    s_lshl_b32 s49, s49, 14
    s_add_u32 s49, s49, 57344
    v_add_u32 v12, s49, v12
    s_mov_b32 m0, s49
    v_lshlrev_b32 v17, 15, v10
    v_lshl_add_u32 v17, v9, 4, v17
    s_lshl_b32 s60, s47, 18
    s_lshl_b32 s45, s45, 7
    s_lshl_b32 s46, s46, 11
    s_add_u32 s60, s60, s45
    s_add_u32 s60, s60, s46
    s_add_u32 s60, s60, {WS_U}
    s_mov_b32 s50, 0x05040100
    s_mov_b32 s51, 0x07060302
    """)
    for p in range(8): a(f"v_xor_b32 v{24+p}, {16*p}, v11")
    kargs()
    srd(28, 10, 2359296)
    for i in range(3):
        if i == 1: a("s_barrier")
        if i == 2: a("s_cmp_lg_u32 s3, 8\ns_cbranch_scc1 a_t2")
        for p in range(8):
            a(f"""s_add_u32 s49, s48, {((p>>1)*32 + (p&1)*8)*1152}
            buffer_load_dwordx4 v{24+p}, s[28:31], s49 offen lds
            s_add_u32 m0, m0, 1024""")
        a("s_sub_u32 s48, s48, 512")
    a("s_waitcnt vmcnt(16)\ns_branch a_t3\na_t2:\ns_waitcnt vmcnt(8)\na_t3:")
    for i in range(3):
        if i == 1: a("s_waitcnt vmcnt(8)")
        for j in range(8): a(f"ds_read_b128 {vr(32+4*j,4)}, v12 offset:{i*8192 + j*128}")
        a("s_waitcnt lgkmcnt(0)")
        if i == 0: a("s_add_u32 s92, s92, 1")
        O_ = [64, 96, 128][i]
        transpose8(32, O_, 50, 51)
        if i:
            a("s_waitcnt vmcnt(0)")
            flag_set("s59", 2)
            a(f"s_sub_u32 s59, s59, {128*FS}")
        for c in range(8):
            a(f"s_add_u32 s49, s60, {c*4096}\nbuffer_store_dwordx4 {vr(O_+4*c,4)}, v17, s[36:39], s49 offen sc1")
        a(f"s_sub_u32 s60, s60, {4<<18}")
        if i == 1: a("s_cmp_lg_u32 s3, 8\ns_cbranch_scc1 a_gemm_end")
    a("s_branch a_gemm_end")

    L2E = f2u(1.4426950408889634); L2E_LO = f2u(1.4426950408889634 - struct.unpack("<f", struct.pack("<I", L2E))[0])
    LN2 = f2u(0.6931471805599453)
    z0 = list(range(9)) + [14,15,16,20,21,24,25]
    z1 = [9,9,10,11,11,11,12,13,13,17,18,19,22,23,26,27]
    def pack(z, lo):
        v = 0
        for r in range(lo, lo+8): v |= (z[r]-r) << (4*(r-lo))
        return v
    a(f"""
    a_ssm:
    s_and_b32 s41, s3, 1                 ; half
    s_bfe_u32 s45, s3, 0x10001
    s_lshl_b32 s40, s2, 1
    s_add_u32 s40, s40, s45
    s_add_u32 s46, s40, {512 - 448}
    s_mul_i32 s42, s45, {KAREA}
    s_add_u32 s47, s42, 16384
    s_add_u32 s42, s42, 131072
    s_cmp_ge_u32 s3, 4
    s_cselect_b32 s40, s46, s40          ; channel
    s_cselect_b32 s42, s47, s42
    s_lshr_b32 s43, s3, 1
    s_lshl_b32 s43, s43, 13
    s_add_u32 s47, s43, {40960 - 16384}
    s_add_u32 s43, s43, 147968
    s_cmp_ge_u32 s3, 4
    s_cselect_b32 s43, s47, s43
    s_lshl_b32 s45, s40, 7
    s_lshl_b32 s46, s41, 6
    s_add_u32 s45, s45, s46
    v_add_u32 v2, s45, v0
    v_lshlrev_b32 v2, 1, v2
    s_lshl_b32 s45, s40, 1
    v_mov_b32 v3, s45
    s_waitcnt lgkmcnt(0)
    global_load_ushort v4, v3, s[20:21]
    global_load_ushort v6, v2, s[12:13]
    global_load_ushort v7, v2, s[14:15]
    global_load_ushort v8, v2, s[16:17]
    global_load_ushort v9, v2, s[18:19]
    global_load_ushort v5, v3, s[22:23]
    s_barrier
    """)
    kargs()
    a(f"""
    v_and_b32 v14, 31, v0
    v_and_b32 v16, 3, v14
    v_lshrrev_b32 v17, 3, v14
    v_lshl_add_u32 v16, v17, 2, v16
    v_mov_b32 v17, {pack(z0,0):#x}
    v_mov_b32 v18, {pack(z0,8):#x}
    v_mov_b32 v19, {pack(z1,0):#x}
    v_mov_b32 v20, {pack(z1,8):#x}
    v_cmp_lt_u32 vcc, 7, v16
    v_and_b32 v21, 4, v14
    v_and_b32 v22, 7, v16
    v_cndmask_b32 v17, v17, v18, vcc
    v_cndmask_b32 v19, v19, v20, vcc
    v_cmp_ne_u32 vcc, 0, v21
    v_lshlrev_b32 v22, 2, v22
    v_lshrrev_b32 v15, 5, v0
    v_cndmask_b32 v17, v17, v19, vcc
    v_bfe_u32 v17, v17, v22, 4
    v_add_u32 v17, v17, v16
    v_lshlrev_b32 v15, 2, v15
    s_mov_b32 s50, 0x3f80
    """)
    for (zr, dst) in ((14, 40), (17, 48)):
        a(f"""v_and_b32 v18, 1, v{zr}
        v_lshlrev_b32 v18, 4, v18
        v_lshlrev_b32 v18, v18, s50
        v_lshrrev_b32 v19, 1, v{zr}
        v_sub_u32 v19, v19, v15""")
        for d in range(8): a(f"v_cmp_eq_u32 s[{52+2*d}:{53+2*d}], {8*(d>>2) + (d&3)}, v19")
        for d in range(8): a(f"v_cndmask_b32 v{dst+d}, 0, v18, s[{52+2*d}:{53+2*d}]")
    a(f"""
    s_mov_b32 s50, {L2E:#x}
    s_mov_b32 s51, {L2E_LO:#x}
    s_mov_b32 s52, {LN2:#x}
    s_mov_b32 s53, {f2u(248.0):#x}
    s_mov_b32 s54, {f2u(8.0):#x}
    s_waitcnt vmcnt(0) lgkmcnt(0)
    s_add_u32 s92, s92, 1
    """)
    stamp("Afirst")
    if "nossm" in OPT: a("s_branch a_end")
    def exp_bf16(x, t, lo):
        a(f"""v_mul_f32 v{t}, s50, v{x}
        v_fma_f32 v{lo}, v{x}, s50, -v{t}
        v_exp_f32 v{t}, v{t}
        v_fma_f32 v{lo}, v{x}, s51, v{lo}
        v_mul_f32 v{lo}, s52, v{lo}
        v_fma_f32 v{t}, v{t}, v{lo}, v{t}
        v_cvt_pk_bf16_f32 v{t}, v{t}, v{t}
        v_lshlrev_b32 v{x}, 16, v{t}""")
    for r in range(4, 10): a(f"v_lshlrev_b32 v{r}, 16, v{r}")
    exp_bf16(4, 20, 21)
    exp_bf16(6, 20, 21)
    a("""
    v_mul_f32 v6, v6, v4
    v_mul_f32 v7, v7, v4
    v_mul_f32 v8, v8, v4
    v_mul_f32 v9, v9, v4
    v_mul_f32 v6, s50, v6                ; -Re(z)*log2e
    v_mul_f32 v7, 0.15915494, v7         ; Im(z)/(2pi)
    v_add_f32 v8, v8, v8
    v_mul_f32 v9, -2.0, v9
    """)
    DL = [8, 1, 2, 4, 248]
    DS = {8: "s54", 1: "1.0", 2: "2.0", 4: "4.0", 248: "s53"}
    MR = {d: 24 + 2*i for i, d in enumerate(DL)}
    def mkE(d):
        a(f"""v_mul_f32 v21, {DS[d]}, v6
        v_mul_f32 v22, {DS[d]}, v7
        v_exp_f32 v21, -v21
        v_fract_f32 v22, v22
        v_cos_f32 v20, v22
        v_sin_f32 v22, v22
        v_mul_f32 v{MR[d]}, v21, v20
        v_mul_f32 v{MR[d]+1}, v21, v22""")
    P = 56; Dt = 88; YO = 120; ACC = 152
    R = lambda z: 34 + 2*(z % 3)
    def chain(dl, conj, mid=None):
        n = "-" if conj else ""; p = "" if conj else "-"
        for z in range(len(dl) + 1):
            cur, nxt = R(z), R(z+1)
            if z < len(dl):
                W = MR[dl[z]]
                a(f"v_mul_f32 v{nxt}, v{cur}, v{W}\nv_mul_f32 v{nxt+1}, v{cur+1}, v{W}")
            if z & 1: a(f"v_cvt_pk_bf16_f32 v{P+(z>>1)}, v{R(z-1)}, v{cur}")
            if z < len(dl): a(f"v_fma_f32 v{nxt}, {p}v{cur+1}, v{W+1}, v{nxt}\nv_fma_f32 v{nxt+1}, {n}v{cur}, v{W+1}, v{nxt+1}")
            if z & 1: a(f"v_cvt_pk_bf16_f32 v{P+16+(z>>1)}, v{R(z-1)+1}, v{cur+1}")
            if mid and z == 4: mid()
    def swaps(comp):
        for pr in range(2):
            for t in range(4): a(f"v_permlane32_swap_b32 v{P+16*comp+8*pr+t}, v{P+16*comp+8*pr+4+t}")
    def tmfma(comp, sel):
        for blk in range(2): a(f"v_mfma_f32_32x32x16_bf16 {vr(Dt+16*blk,16)}, {vr(P+16*comp+4*blk,4)}, {vr(sel,4)}, 0")
        for blk in range(2): a(f"v_mfma_f32_32x32x16_bf16 {vr(Dt+16*blk,16)}, {vr(P+16*comp+8+4*blk,4)}, {vr(sel+4,4)}, {vr(Dt+16*blk,16)}")
    def tcvt(dst):
        for i in range(16): a(f"v_cvt_pk_bf16_f32 v{dst+i}, v{Dt+2*i}, v{Dt+2*i+1}")
    mkE(8)
    a(f"v_mov_b32 v{R(0)}, 1.0\nv_mov_b32 v{R(0)+1}, 0")
    chain([8]*31, False)
    mkE(1); swaps(0); swaps(1); tmfma(0, 40); mkE(2); mkE(4); tcvt(YO); tmfma(1, 40); mkE(248)
    a(f"v_mov_b32 v{R(0)}, v8\nv_mov_b32 v{R(0)+1}, v9")
    deltas = [1]*8 + [248] + [2]*4 + [248] + [4]*2 + [248] + [4]*2 + [248, 8, 248, 8, 248, 8, 248, 8]
    chain(deltas, True, mid=lambda: tcvt(YO+16))
    a("v_lshl_add_u32 v21, s41, 6, v0\nv_cmp_eq_u32 vcc, 0, v21\nv_sub_u32 v21, 63, v0")
    swaps(0); swaps(1); tmfma(0, 48)
    a(f"""
    v_cndmask_b32 v5, 0, v5, vcc
    v_lshl_add_u32 v21, v21, 4, s42
    s_lshl_b32 s46, s3, 4
    v_add_u32 v22, s46, v23
    v_xor_b32 v20, 16, v22               ; partner's
    v_mov_b32 v19, 0
    s_nop 5
    """)
    tcvt(P); tmfma(1, 48)
    for i in range(4): a(f"v_mfma_f32_32x32x16_bf16 {vr(ACC,16)}, {vr(P+4*i,4)}, {vr(YO+4*i,4)}, " + ("0" if i == 0 else vr(ACC,16)))
    a("s_nop 7")
    tcvt(P+16)
    a("s_nop 1")
    for i in range(4, 8): a(f"v_mfma_f32_32x32x16_bf16 {vr(ACC,16)}, {vr(P+4*i,4)}, {vr(YO+4*i,4)}, {vr(ACC,16)}")
    stamp("Akgen")
    if "noconv" in OPT: a("s_branch a_end")
    CA = 24; CU = 68; CF = 132
    for i in range(44): a(f"v_mov_b32 v{CA+i}, 0")
    for i in range(32): a(f"v_mov_b32 v{CU+i}, 0")
    a(f"""
    v_and_b32 v12, 31, v0
    v_lshrrev_b32 v13, 5, v0             ; h
    v_lshlrev_b32 v16, 5, v12
    v_lshl_add_u32 v16, v13, 4, v16
    s_lshl_b32 s45, s41, 7
    s_sub_u32 s44, s43, s45
    s_sub_u32 s44, s44, 96
    v_add_u32 v16, s44, v16
    s_lshl_b32 s45, s41, 2
    v_lshlrev_b32 v17, 3, v13
    v_sub_u32 v17, v17, v12
    v_lshlrev_b32 v17, 1, v17            ; 2*(8h - b)
    v_and_b32 v18, 1, v12
    v_cmp_eq_u32 s[56:57], 1, v18        ; b odd
    v_xor_b32 v18, 1, v18
    v_mul_u32_u24 v18, {KC + 2}, v18
    s_lshl_b32 s46, s41, 8
    s_sub_u32 s46, s42, s46
    s_add_u32 s46, s46, {62 + 120*32}
    v_add3_u32 v17, v17, v18, s46
    v_subrev_u32 v18, 2048, v17
    v_add_f32 v{ACC}, v{ACC}, v5
    v_lshl_add_u32 v133, v0, 2, s42
    s_add_u32 s46, s43, 4096
    v_lshl_add_u32 v138, v0, 4, s46
    """)
    for G in range(4): a(f"v_add_u32 v{134+G}, {(3-G)*1024 + KC}, v21")
    a(f"""
    s_cmp_ge_u32 s27, 28
    s_cbranch_scc1 a_s_g2
    a_s_w2:
    ds_read_b128 v[8:11], v23 offset:128
    s_waitcnt lgkmcnt(0)
    v_or_b32 v8, v8, v9
    v_or3_b32 v8, v8, v10, v11
    v_cmp_eq_u32 vcc, 0, v8
    s_cbranch_vccnz a_s_g2
    s_sleep 1
    s_branch a_s_w2
    a_s_g2:
    s_setprio 3
    s_cmp_eq_u32 s41, 0
    s_cbranch_scc1 a_s_even
    """)
    d = lambda r: f"v{ACC+r}" if r < 16 else f"v{r-24}"
    units = [
      (0, 0, [(7,6),(5,4),(3,2),(1,0)]), (0, 1, [(8,7),(6,5),(4,3),(2,1)]),
      (1, 0, [(11,11),(10,10),(10,9),(9,9)]), (1, 1, [(11,11),(11,10),(10,10),(9,9)]),
      (2, 0, [(13,13),(13,32),(12,12),(12,12)]), (2, 1, [(13,13),(13,13),(32,12),(12,12)]),
      (3, 0, [(15,15),(15,33),(14,14),(14,14)]), (3, 1, [(15,15),(15,15),(33,14),(14,14)])]
    def build(us):
        for ui in us:
            G, cp, prs = units[ui]; o = 100 + 4*ui
            for t, (lo, hi) in enumerate(prs): a(f"v_cvt_pk_bf16_f32 v{o+t}, {d(lo)}, {d(hi)}")
            if cp == 0: a(f"ds_write_b128 v21, {vr(o,4)} offset:{(3-G)*1024}")
            else: a(f"ds_write2_b32 v{134+G}, v{o}, v{o+1} offset0:0 offset1:1\nds_write2_b32 v{134+G}, v{o+2}, v{o+3} offset0:2 offset1:3")
    for i in range(3): a(f"ds_write_b128 v138, {vr(ACC+4*i,4)} offset:{1024*i}")
    a("ds_write_b32 v22, v19 offset:256")
    lds_wait("a_s_o0", 20, 256, 8)
    a("ds_read_b128 v[140:143], v21\ns_waitcnt lgkmcnt(0)")
    for i in range(4): a(f"v_add_f32 v{ACC+12+i}, v{ACC+12+i}, v{140+i}")
    a(f"v_cndmask_b32 v8, {d(12)}, {d(13)}, s[56:57]\nv_cndmask_b32 v9, {d(14)}, {d(15)}, s[56:57]")
    build([4, 5, 6, 7])
    a(f"s_branch a_s_u\na_s_even:\nds_write_b128 v21, {vr(ACC+12,4)}\nds_write_b32 v22, v19 offset:256")
    lds_wait("a_s_e0", 20, 256, 8)
    for i in range(3): a(f"ds_read_b128 {vr(140+4*i,4)}, v138 offset:{1024*i}")
    a("v_cmp_eq_u32 vcc, 0, v0\ns_waitcnt lgkmcnt(0)")
    for i in range(12): a(f"v_add_f32 v{ACC+i}, v{ACC+i}, v{140+i}")
    build([0, 1, 2, 3])
    a(f"""
    v_cvt_pk_bf16_f32 v132, {d(0)}, v19
    s_mov_b64 exec, 0x7fff
    ds_write_b32 v133, v19 offset:4096   ; zeros behind both copies; the odd copy ends with K[0]
    s_mov_b64 exec, 0xffff
    v_cndmask_b32 v132, 0, v132, vcc
    ds_write_b32 v133, v132 offset:{4096 + KC}
    s_mov_b64 exec, -1
    a_s_u:
    ds_write_b32 v22, v19 offset:268
    s_setprio 0
    s_lshr_b32 s46, s3, 1
    s_lshl_b32 s46, s46, 2
    v_add_u32 v9, s46, v23
    """)
    lds_wait("a_s_uw", 9, 448, 8)
    for q in range(4):
        a(f"s_add_u32 s46, s45, {q}\ns_lshl_b32 exec_lo, -1, s46\ns_mov_b32 exec_hi, exec_lo")
        for es in range(2): a(f"ds_read_b128 {vr(CU+8*q+4*es,4)}, v16 offset:{es*2048 + (3-q)*32}")
        a("s_mov_b64 exec, -1")
        for es in range(2): a(f"ds_read_b128 {vr(CU+32+8*q+4*es,4)}, v16 offset:{es*2048 + 1024 + (3-q)*32}")
        if q == 2: a("s_waitcnt lgkmcnt(4)")
    lds_wait("a_s_o1", 20, 268, 8)
    stamp("Abuilt")
    steps = [(k, q, es) for k in range(4) for q in range(4) for es in range(2)]
    def frd(i):
        k, q, es = steps[i]; b = CF + 8*(i & 3); o = (6 - 2*q + es) * 8
        if q == 0 and es == 0 and k: a("v_subrev_u32 v17, 512, v17\nv_subrev_u32 v18, 512, v18")
        a(f"""ds_read2_b32 {vr(b,2)}, v17 offset0:{o} offset1:{o+1}
        ds_read2_b32 {vr(b+2,2)}, v17 offset0:{o+2} offset1:{o+3}
        ds_read2_b32 {vr(b+4,2)}, v18 offset0:{o} offset1:{o+1}
        ds_read2_b32 {vr(b+6,2)}, v18 offset0:{o+2} offset1:{o+3}""")
    for i in range(3): frd(i)
    for i, (k, q, es) in enumerate(steps):
        b = CF + 8*(i & 3); U0 = vr(CU+8*q+4*es, 4); U1 = vr(CU+32+8*q+4*es, 4)
        lo = vr(CA+4*k, 16); hi = vr(CA+16+4*k, 16)
        w = f"s_waitcnt lgkmcnt({4*min(2, 31-i)})"
        a(w)
        if q == 0 and es == 0 and k: a("s_nop 9")
        a(f"v_mfma_f32_32x32x16_bf16 {lo}, {U0}, {vr(b,4)}, {lo}")
        a(f"v_mfma_f32_32x32x16_bf16 {hi}, {U1}, {vr(b,4)}, {hi}")
        if i + 3 < 32: frd(i+3)
        a(f"v_mfma_f32_32x32x16_bf16 {hi}, {U0}, {vr(b+4,4)}, {hi}")
    stamp("Aconv")
    a(f"""
    ds_write_b32 v22, v19 offset:260
    s_lshl_b32 s46, s41, 12
    s_add_u32 s46, s46, s42
    v_lshl_add_u32 v16, v0, 4, s46
    s_lshl_b32 s46, s41, 13
    s_sub_u32 s46, 4096, s46
    v_add_u32 v17, s46, v16              ; partner's
    v_lshlrev_b32 v18, 4, v0
    s_lshl_b32 s44, s40, 12
    s_lshl_b32 s45, s41, 11
    s_add_u32 s44, s44, s45
    s_add_u32 s44, s44, {WS_Y}
    s_lshl_b32 s59, s40, 1
    s_add_u32 s59, s59, s41
    s_mul_i32 s59, s59, {FS}
    s_add_u32 s59, s59, {FL_Y}
    """)
    lds_wait("a_s_y1", 20, 260, 12)
    a("s_cmp_eq_u32 s41, 0\ns_cbranch_scc1 a_s_y0")
    for i in range(4): a(f"ds_write_b128 v16, {vr(CA+4*i,4)} offset:{1024*i}")
    a("ds_write_b32 v22, v19 offset:264\ns_waitcnt lgkmcnt(0)")
    for i in range(16): a(f"v_mov_b32 v{CA+i}, v{CA+16+i}")
    a("s_branch a_s_y2\na_s_y0:")
    for i in range(4): a(f"ds_write_b128 v16, {vr(CA+16+4*i,4)} offset:{1024*i}")
    a("ds_write_b32 v22, v19 offset:264\na_s_y2:")
    lds_wait("a_s_y3", 20, 264, 12)
    for i in range(4): a(f"ds_read_b128 {vr(CU+4*i,4)}, v17 offset:{1024*i}")
    a("s_waitcnt lgkmcnt(0)")
    for i in range(16): a(f"v_add_f32 v{CA+i}, v{CA+i}, v{CU+i}")
    for i in range(8): a(f"v_cvt_pk_bf16_f32 v{CF+i}, v{CA+2*i}, v{CA+2*i+1}")
    for g in range(2): a(f"buffer_store_dwordx4 {vr(CF+4*g,4)}, v18, s[36:39], s44 offen offset:{1024*g} sc1")
    stamp("Aend")
    a("s_mov_b32 s62, s59\ns_branch a_end1")
    a(f"""a_end:
    s_mov_b32 s62, 0
    a_end1:
    v_mov_b32 v116, v0
    s_lshl_b32 s44, s3, 2
    s_add_u32 s44, s44, {L_FL}
    v_mov_b32 v4, s44
    v_mov_b32 v5, 0
    ds_write_b32 v4, v5 offset:400
    s_cmp_ge_u32 s3, 8
    s_cbranch_scc1 a_uf""")

S = [0, 16]; O = 32; NEG = 48; P = 64; KF = [72, 76]; TF = [80, 84]; VF = [88, 96]; Q = 104; QL = 108; QH = 110
vK, vT, vV = 112, 113, 114
def rdK(buf, t): a(f"ds_read_b128 {vr(KF[buf],4)}, v{vK} offset:{1024*t}")
def rdT(buf, q): a(f"ds_read2st64_b64 {vr(TF[buf],4)}, v{vT} offset0:{2*q} offset1:{2*q+1}")
def rdV(buf, t):
    a(f"""s_mov_b64 exec, s[18:19]
    ds_read_b128 {vr(VF[buf],4)}, v{vV} offset:{t*1152}
    ds_read_b128 {vr(VF[buf]+4,4)}, v{vV} offset:{t*1152+576}
    s_mov_b64 exec, -1""")
def qk_tail(t, tb):
    tt = t & 3
    a(f"v_mfma_f32_32x32x8_bf16 {vr(S[t&1],16)}, {vr(TF[tb]+2*(tt>>1),2)}, {vr(QH if tt&1 else QL,2)}, {vr(S[t&1],16)}")
def pv(t, half): a(f"v_mfma_f32_32x32x16_bf16 {vr(O,16)}, {vr(VF[t&1]+4*half,4)}, {vr(P+4*half,4)}, {vr(O,16)}")
def ex(t, r0, r1):
    for r in range(r0, r1): a(f"v_exp_f32 v{S[t&1]+r}, v{S[t&1]+r}")
def cv(t, c0, c1):
    for c in range(c0, c1): a(f"v_cvt_pk_bf16_f32 v{P+c}, v{S[t&1]+2*c}, v{S[t&1]+2*c+1}")
def att_run(fast):
    tag = "b_f" if fast else "b_s"
    def qk_main(t): a(f"v_mfma_f32_32x32x16_bf16 {vr(S[t&1],16)}, {vr(KF[t&1],4)}, {vr(Q,4)}, " + ("0" if fast else vr(NEG,16)))
    rdK(0, 0); rdT(0, 0); rdK(1, 1); rdV(0, 0)
    if not fast:
        for i in range(16): a(f"v_mov_b32 v{O+i}, 0")
        for i in range(4): a(f"v_mov_b32 v{P+4+i}, 0")
    a("s_mov_b32 s26, 0\ns_waitcnt lgkmcnt(3)")
    qk_main(0); qk_tail(0, 0)
    a(f"s_nop 7\ns_nop 3\n.p2align 6\n{tag}_loop:")
    for t in range(8):
        if fast and t == 2:
            a(f"s_cmp_lg_u32 s26, 1\ns_cbranch_scc1 {tag}_np2\ns_setprio 2\n{tag}_np2:")
        if fast and t == 4:
            a(f"s_cmp_lg_u32 s26, 1\ns_cbranch_scc1 {tag}_nobar\ns_cmp_eq_u32 s62, 0\ns_cbranch_scc1 b_nyf\ns_waitcnt vmcnt(0)")
            flag_set("s62", 122)
            a(f"b_nyf:\ns_barrier\n{tag}_nobar:")
            a(f"s_cmp_lg_u32 s26, 6\ns_cbranch_scc1 {tag}_np1\ns_setprio 1\n{tag}_np1:")
        if fast and t == 5:
            a(f"""s_cmp_lg_u32 s26, 0
            s_cbranch_scc1 {tag}_nf1
            v_mov_b32 v121, {L_FL}
            {tag}_f1:
            ds_read_b96 v[124:126], v121 offset:464
            s_waitcnt lgkmcnt(0)
            v_or3_b32 v124, v124, v125, v126
            v_cmp_eq_u32 vcc, 0, v124
            s_cbranch_vccz {tag}_f1
            {tag}_nf1:""")
        if fast and t == 6:
            a(f"s_cmp_lg_u32 s26, 7\ns_cbranch_scc1 {tag}_np0\ns_setprio 0\n{tag}_np0:")
        def adv():
            if t == 7:
                a(f"""v_add_u32 v{vK}, 8192, v{vK}
                v_add_u32 v{vT}, 2048, v{vT}
                v_add_u32 v{vV}, 9216, v{vV}
                s_add_u32 s26, s26, 1
                s_cmp_lt_u32 s26, 8""")
        def rK():
            rdK(t&1, t+2)
            if (t & 3) == 1: rdT(((t>>2)+1)&1, (t>>2)+1)
        M1 = lambda: qk_main(t+1); M2 = lambda: pv(t-1, 1); M3 = lambda: qk_tail(t+1, ((t+1)>>2)&1); M4 = lambda: pv(t, 0)
        rV = lambda: rdV((t+1)&1, t+1)
        E = lambda i, j: ex(t, i, j); C = lambda i, j: cv(t, i, j)
        a("s_waitcnt lgkmcnt(0)")
        o = OPT.get("ord", "a")
        if o == "a":
            M1(); rK(); E(0,4); M2(); rV(); E(4,8); C(0,4); M3(); E(8,12); M4(); adv(); E(12,16); C(4,8)
        elif o == "b":
            M1(); rK(); M2(); rV(); E(0,8); C(0,4); M3(); E(8,9); M4(); adv(); E(9,16); C(4,8)
        elif o == "c":
            M1(); rK(); E(0,5); M2(); rV(); E(5,8); C(0,4); M3(); E(8,13); M4(); adv(); E(13,16); C(4,8)
        elif o == "d":
            M1(); rK(); E(0,4); C(0,1); M2(); rV(); E(4,8); C(1,3); M3(); E(8,12); C(3,5); E(12,13); M4(); adv(); E(13,16); C(5,8)
        elif o == "e":
            M1(); rK(); M2(); rV(); M3(); E(0,8); C(0,4); E(8,10); M4(); adv(); E(10,16); C(4,8)
        elif o == "f":
            M1(); E(0,2); rK(); E(2,4); M2(); E(4,6); rV(); E(6,8); C(0,4); M3(); E(8,12); M4(); adv(); E(12,16); C(4,8)
    a(f"s_cbranch_scc1 {tag}_loop")
    if fast: stamp("Bloop")
    a("s_nop 1")
    pv(7, 1)

def phaseB():
    TOUCH = "" if OPT.get("tch", "1") == "0" else f"""s_cmp_lg_u32 s3, 10
    s_cbranch_scc1 b_ntch
    v_lshlrev_b32 v121, 16, v116
    s_mov_b32 s12, {WS_O}
    buffer_load_dword v114, v121, s[36:39], s12 offen
    s_mov_b32 s12, {WS_FL}
    buffer_load_dword v113, v121, s[36:39], s12 offen
    buffer_load_dword v112, v121, s[32:35], 0 offen
    s_mov_b32 s12, {64 << 16}
    buffer_load_dword v111, v121, s[32:35], s12 offen
    b_ntch:"""
    a(f"""
    s_cmp_ge_u32 s3, 8
    s_cbranch_scc1 b_aux
    s_and_b32 s4, s2, 31                 ; head
    s_lshr_b32 s5, s2, 5
    s_lshl_b32 s5, s5, 3
    s_add_u32 s5, s5, s3
    s_and_b32 s7, s4, 3
    v_lshlrev_b32 v{vK}, 4, v116
    v_and_b32 v117, 31, v116
    v_lshlrev_b32 v119, 4, v116
    s_lshl_b32 s8, s3, 10
    s_add_u32 s8, s8, {L_Q}
    v_add_u32 v120, s8, v{vK}
    s_lshl_b32 s8, s3, 8
    s_add_u32 s8, s8, {L_Q + 8192}
    v_lshl_add_u32 v118, v117, 3, s8
    """)
    for i in range(16): a(f"v_mov_b32 v{O+i}, 0")
    for i in range(4): a(f"v_mov_b32 v{P+4+i}, 0")
    a(f"""v_and_b32 v121, 27, v116
    v_cmp_eq_u32 vcc, 18, v121
    v_mov_b32 v121, 0x3f803f80
    s_nop 0
    v_cndmask_b32 v{VF[0]}, 0, v121, vcc""")
    for i in range(1, 16): a(f"v_mov_b32 v{VF[0]+i}, v{VF[0]}")
    a(f"""
    v_lshlrev_b32 v{vT}, 3, v116
    v_add_u32 v{vT}, {L_KT}, v{vT}
    v_lshrrev_b32 v121, 5, v116
    v_mul_u32_u24 v121, 288, v121
    v_lshl_add_u32 v{vV}, v117, 4, v121
    v_add_u32 v{vV}, {L_V}, v{vV}
    s_mov_b32 s18, 0x3ffff
    s_mov_b32 s19, 0x3ffff
    s_mov_b32 s21, {f2u(18**-0.5 * 1.4426950408889634):#x}
    v_cmp_lt_u32 s[22:23], 31, v116
    s_setprio 3
    """)
    stamp("Bflag")
    a(f"""
    s_barrier
    ds_read_b128 {vr(Q,4)}, v120
    ds_read_b64 {vr(QL,2)}, v118
    s_waitcnt lgkmcnt(0)
    s_barrier
    """)
    for r in list(range(Q, Q+4)) + [QL, QL+1]:
        a(f"""v_lshlrev_b32 v121, 16, v{r}
        v_and_b32 v{r}, 0xffff0000, v{r}
        v_mul_f32 v121, s21, v121
        v_mul_f32 v{r}, s21, v{r}
        v_cvt_pk_bf16_f32 v{r}, v121, v{r}""")
    a(f"""
    s_cmp_eq_u32 s7, 1
    s_cselect_b32 vcc_lo, -1, 0
    s_mov_b32 vcc_hi, 0
    v_cndmask_b32 v{Q}, v{Q}, 0, vcc
    s_cmp_eq_u32 s7, 2
    s_cselect_b32 vcc_hi, -1, 0
    s_mov_b32 vcc_lo, 0
    v_cndmask_b32 v{Q+3}, v{Q+3}, 0, vcc
    s_cmp_eq_u32 s7, 3
    s_cselect_b64 vcc, -1, 0
    v_cndmask_b32 v{QL}, v{QL}, 0, vcc
    s_cmp_eq_u32 s7, 0
    s_cselect_b64 vcc, -1, 0
    v_cndmask_b32 v{QL+1}, v{QL+1}, 0, vcc
    v_cndmask_b32 v{QH}, 0, v{QL}, s[22:23]
    v_cndmask_b32 v{QH+1}, 0, v{QL+1}, s[22:23]
    v_cndmask_b32 v{QL}, v{QL}, 0, s[22:23]
    v_cndmask_b32 v{QL+1}, v{QL+1}, 0, s[22:23]
    """)
    stamp("Bgo")
    att_run(True)
    a(f"""
    s_mul_i32 s10, s5, {O_T}
    s_add_u32 s10, s10, {WS_O}
    s_lshl_b32 s11, s4, 10
    s_add_u32 s11, s11, s10
    s_lshl_b32 s12, s4, 7
    s_add_u32 s12, s12, s10
    s_add_u32 s12, s12, 32768
    s_lshl_b32 s59, s5, 5
    s_add_u32 s59, s59, s4
    s_mul_i32 s59, s59, {FS}
    s_add_u32 s59, s59, {FL_B}
    s_mov_b32 s27, {f2u(2.0**100):#x}
    v_lshlrev_b32 v127, 2, v116
    s_nop 1
    v_max3_f32 v121, abs(v{O}), abs(v{O+1}), abs(v{O+2})
    v_max3_f32 v121, abs(v{O+3}), abs(v{O+4}), v121
    v_max3_f32 v121, abs(v{O+5}), abs(v{O+6}), v121
    v_max3_f32 v121, abs(v{O+7}), abs(v{O+8}), v121
    v_add_f32 v122, v{O}, v{O+1}
    v_add_f32 v123, v{O+2}, v{O+3}
    v_add_f32 v124, v{O+4}, v{O+5}
    v_add_f32 v125, v{O+6}, v{O+7}
    v_add_f32 v126, v{O+8}, v{O+9}
    v_add_f32 v122, v122, v123
    v_add_f32 v124, v124, v125
    v_add_f32 v122, v122, v126
    v_add_f32 v122, v122, v124
    v_max3_f32 v121, abs(v{O+9}), v{O+10}, v121
    v_cmp_ngt_f32 vcc, s27, v121
    v_cmp_nle_f32 s[28:29], 1.0, v{O+10}
    v_cmp_u_f32 s[30:31], v122, v122
    s_or_b64 vcc, vcc, s[28:29]
    s_or_b64 vcc, vcc, s[30:31]
    s_cbranch_vccnz b_slow
    b_fin:
    v_rcp_f32 v121, v{O+10}
    s_nop 0
    """)
    for r in range(10): a(f"v_mul_f32 v{O+r}, v{O+r}, v121")
    for c in range(5): a(f"v_cvt_pk_bf16_f32 v{P+c}, v{O+2*c}, v{O+2*c+1}")
    a(f"""
    buffer_store_dwordx4 {vr(P,4)}, v119, s[36:39], s11 offen sc1
    s_mov_b32 exec_hi, 0
    buffer_store_dword v{P+4}, v127, s[36:39], s12 offen sc1
    s_mov_b32 exec_hi, -1
    v_mov_b32 v0, v116
    s_waitcnt lgkmcnt(0)
    s_barrier
    s_waitcnt vmcnt(0)
    """)
    stamp("Back")
    flag_set("s59", 2)
    a("s_branch c_start")
    a(f"""
    b_aux:
    s_and_b32 s4, s2, 31
    s_mul_i32 s6, s4, 9
    s_lshr_b32 s6, s6, 2
    v_mov_b32 v8, {L_FL}
    s_setprio 3
    s_cmp_lg_u32 s3, 11
    s_cbranch_scc1 b_nopoll
    s_mul_i32 s9, s4, 18
    v_lshrrev_b32 v7, 5, v116
    v_lshl_add_u32 v9, v7, 1, s6
    v_add_u32 v10, 72, v9
    v_lshrrev_b32 v10, 3, v10
    v_and_b32 v11, 31, v116
    v_lshl_add_u32 v10, v10, 5, v11
    v_mul_u32_u24 v120, {FS}, v10
    v_mul_u32_u24 v10, 17, v7
    v_add_u32 v10, s9, v10
    v_add_u32 v10, 1152, v10
    v_lshrrev_b32 v10, 6, v10
    v_lshl_add_u32 v10, v10, 5, v11
    v_mul_u32_u24 v121, {FS}, v10
    v_lshrrev_b32 v10, 3, v9
    s_lshr_b32 s9, s2, 5
    s_lshl_b32 s9, s9, 2
    v_and_b32 v11, 3, v116
    v_add_u32 v11, s9, v11
    v_lshl_add_u32 v10, v10, 5, v11
    v_mul_u32_u24 v122, {FS}, v10
    s_cmp_ge_u32 s2, 224
    s_cselect_b32 s9, 16, 0
    v_add_u32 v9, s9, v8
    b_pw:
    s_sleep 1
    ds_read_b128 v[12:15], v9 offset:416
    s_waitcnt lgkmcnt(0)
    v_or_b32 v12, v12, v13
    v_or3_b32 v12, v12, v14, v15
    v_cmp_eq_u32 vcc, 0, v12
    s_cbranch_vccz b_pw
    """)
    stamp("Xpw")
    flag_poll("b_pa", 3, 120)
    stamp("Xpoll")
    a(f"""
    v_mov_b32 v9, 0
    ds_write_b32 v8, v9 offset:244
    b_nopoll:
    s_bitcmp1_b32 s3, 0
    s_cbranch_scc1 b_ldv
    s_bfe_u32 s7, s4, 0x10001
    s_add_u32 s8, s6, s7
    s_lshl_b32 s8, s8, 9
    s_lshl_b32 s9, s6, 9
    s_mul_i32 s10, s7, {1024 - 8}
    s_sub_u32 s9, s9, s10
    s_add_u32 s9, s9, 1024
    v_lshlrev_b32 v118, 4, v116
    v_lshrrev_b32 v119, 1, v116
    v_lshlrev_b32 v119, 4, v119
    v_and_b32 v120, 1, v116
    v_lshl_add_u32 v119, v120, 2, v119
    s_lshr_b32 s15, s2, 5
    s_mul_i32 s15, s15, {8*QK_T}
    s_cmp_eq_u32 s3, 10
    s_cbranch_scc1 b_ldt
    """)
    def zflag(off):
        a(f"""s_mov_b32 s13, m0
        s_mov_b32 m0, {L_FL + off}
        v_mov_b32 v13, 0x7ffffff0
        s_mov_b64 exec, 1
        buffer_load_dword v13, s[36:39], 0 offen lds
        s_mov_b64 exec, -1
        s_mov_b32 m0, s13""")
    def stream(tag, op, vreg, sbase, lq, lk, step, fl):
        a(f"s_add_u32 s15, s15, {sbase}\ns_add_u32 s16, {sbase}, {72*512}\ns_mov_b32 m0, {lq}\ns_mov_b32 s12, 8")
        lds_wait(f"{tag}_go", 8, 244, 9, True)
        def loop(t, sreg):
            a(f"""{t}:
            {op} v{vreg}, s[36:39], {sreg} offen sc1 lds
            s_add_u32 m0, m0, {step}
            s_add_u32 {sreg}, {sreg}, {QK_T}
            s_sub_u32 s12, s12, 1
            s_cmp_lg_u32 s12, 0
            s_cbranch_scc1 {t}""")
        loop(f"{tag}_q", "s15")
        a(f"s_mov_b32 m0, {lk}\ns_mov_b32 s12, 8")
        loop(f"{tag}_1", "s16")
        stamp("Xiss")
        a("s_mov_b32 s12, 8\ns_waitcnt vmcnt(0)")
        stamp("Xland")
        a("s_barrier\ns_barrier")
        loop(f"{tag}_2", "s16")
        zflag(fl)
        a("s_mov_b32 s12, 48")
        loop(f"{tag}_3", "s16")
        a("s_branch b_lend")
    stream("b_k", "buffer_load_dwordx4", 118, "s8", L_Q, 0, 1024, 464)
    a("b_ldt:")
    stream("b_t", "buffer_load_dword", 119, "s9", L_Q + 8192, L_KT, 256, 468)
    a(f"""
    b_ldv:
    s_mov_b32 s10, {9216 - 288}
    """)
    for p in range(9):
        a(f"""v_add_u32 v10, {64*p}, v116
        v_mul_u32_u24 v11, 3641, v10
        v_lshrrev_b32 v11, 16, v11
        v_mul_lo_u32 v11, v11, s10
        v_lshl_add_u32 v{24+p}, v10, 4, v11""")
    a(f"""
    s_bfe_u32 s9, s3, 0x10001
    s_mul_i32 s8, s9, {32*9216}
    s_mul_i32 s10, s4, 288
    s_add_u32 s8, s8, s10
    s_add_u32 s8, s8, {WS_V}
    s_mul_i32 s9, s9, 9216
    s_add_u32 m0, s9, {L_V}
    s_mov_b32 s12, 0
    """)
    a("s_cmp_eq_u32 s3, 9\ns_cbranch_scc1 b_v_go\ns_barrier\ns_barrier\ns_branch b_v")
    lds_wait("b_v_go", 8, 244, 9, True)
    a("b_v:")
    for p in range(9): a(f"buffer_load_dwordx4 v{24+p}, s[36:39], s8 offen sc1 lds\ns_add_u32 m0, m0, {1024 if p < 8 else 1024 + 9216}\ns_nop 0")
    a(f"""
    s_add_u32 s8, s8, {64*9216}
    s_cmp_lg_u32 s12, 0
    s_cbranch_scc1 b_v1
    s_cmp_eq_u32 s3, 9
    s_cbranch_scc1 b_v0
    """)
    zflag(472)
    a(f"""
    s_branch b_v1
    b_v0:
    s_waitcnt vmcnt(0)
    s_barrier
    s_barrier
    b_v1:
    s_add_u32 s12, s12, 1
    s_cmp_lt_u32 s12, 4
    s_cbranch_scc1 b_v
    b_lend:
    s_waitcnt vmcnt(0)
    s_barrier
    """)
    srd(28, 94, 663552)
    srd(32, 96, 4718592)
    a(f"""
    s_lshr_b32 s12, s2, 3
    s_lshl_b32 s12, s12, 2
    s_add_u32 s12, s12, s3
    s_sub_u32 s12, s12, 8
    s_lshl_b32 s12, s12, 13
    v_lshlrev_b32 v121, 7, v116
    buffer_load_dword v115, v121, s[28:31], s12 offen
    {TOUCH}
    s_cmp_lg_u32 s3, {99 if ("nossm" in OPT or "noconv" in OPT) else 9}
    s_cbranch_scc1 b_noy
    s_mov_b32 s4, s2
    v_lshrrev_b32 v10, 3, v116
    v_and_b32 v9, 7, v116
    v_lshlrev_b32 v11, 12, v10
    v_lshl_add_u32 v11, v9, 4, v11
    v_xor_b32 v12, v10, v9
    v_lshlrev_b32 v12, 4, v12
    v_lshl_add_u32 v12, v9, 10, v12
    v_add_u32 v12, {L_BOUNCE}, v12
    s_mov_b32 s50, 0x05040100
    s_mov_b32 s51, 0x07060302
    """)
    for p in range(8): a(f"v_xor_b32 v{24+p}, {16*p}, v11")
    a(f"""
    b_y:
    s_lshr_b32 s5, s4, 5
    s_and_b32 s6, s4, 31                 ; sub
    s_lshl_b32 s7, s5, 7
    s_lshr_b32 s8, s6, 4
    s_add_u32 s7, s7, s8
    v_lshl_add_u32 v120, v116, 1, s7
    v_mul_u32_u24 v120, {FS}, v120
    v_add_u32 v120, {FL_Y}, v120
    """)
    flag_poll("b_py", 1, 120)
    a(f"""
    s_lshl_b32 s7, s5, 18
    s_lshl_b32 s8, s6, 7
    s_add_u32 s7, s7, s8
    s_add_u32 s7, s7, {WS_Y}
    s_mov_b32 m0, {L_BOUNCE}
    """)
    for p in range(8):
        a(f"s_nop 0\nbuffer_load_dwordx4 v{24+p}, s[36:39], s7 offen sc1 lds\ns_add_u32 m0, m0, 1024\ns_add_u32 s7, s7, 32768")
    a(f"""
    s_and_b32 s8, s6, 3
    s_lshl_b32 s8, s8, 3
    s_bfe_u32 s9, s6, 0x10002
    s_lshl_b32 s9, s9, 7
    s_add_u32 s8, s8, s9
    s_lshr_b32 s9, s6, 3
    s_lshl_b32 s9, s9, 9
    s_add_u32 s8, s8, s9
    v_add_u32 v17, s8, v10
    v_mul_u32_u24 v17, 2304, v17
    v_lshl_add_u32 v17, v9, 4, v17
    s_lshl_b32 s8, s5, 7
    s_add_u32 s8, s8, 1152
    s_waitcnt vmcnt(0)
    """)
    for j in range(8): a(f"ds_read_b128 {vr(32+4*j,4)}, v12 offset:{j*128}")
    a("s_waitcnt lgkmcnt(0)")
    transpose8(32, 64, 50, 51)
    for c in range(8):
        a(f"s_add_u32 s9, s8, {((c&3)*32 + (c>>2)*256)*2304}\nbuffer_store_dwordx4 {vr(64+4*c,4)}, v17, s[32:35], s9 offen {OPT.get('sty','sc1')}")
    a(f"""
    s_add_u32 s4, s4, 256
    s_cmp_lt_u32 s4, 288
    s_cbranch_scc1 b_y
    b_noy:
    s_setprio 0
    v_mov_b32 v0, v116
    s_lshr_b32 s5, s2, 5                 ; tn
    s_mul_i32 s17, s5, 192
    """)
    for t in range(3):
        a(f"""v_add_u32 v5, {64*t}, v0
        v_mul_u32_u24 v6, 5462, v5
        v_lshrrev_b32 v6, 16, v6             ; row
        v_mul_u32_u24 v7, 12, v6
        v_sub_u32 v7, v5, v7
        v_lshl_add_u32 v7, v7, 4, s17
        v_mul_u32_u24 v8, 1152, v6
        v_add_u32 v{12+t}, v8, v7
        v_and_b32 v9, 4, v6
        v_lshrrev_b32 v10, 3, v6
        v_lshl_add_u32 v9, v10, 1, v9
        v_bfe_u32 v10, v6, 1, 1
        v_add_u32 v9, v9, v10
        v_mul_u32_u24 v9, 18, v9
        v_and_b32 v10, 1, v6
        v_add3_u32 v9, v9, v10, 16
        v_mul_u32_u24 v9, 1152, v9
        v_add_u32 v{16+t}, v9, v7""")
    a(f"""
    s_sub_u32 s8, s3, 8
    s_mul_i32 s10, s8, {9*20736}
    s_mul_i32 m0, s8, {9*3072}
    s_mov_b32 s12, 20736
    s_mov_b32 s13, 0
    s_barrier
    s_cmp_ge_u32 s2, 192
    s_cbranch_scc1 c_idle
    b_w:
    s_cmp_lg_u32 s13, 5
    s_cbranch_scc1 b_w1
    s_cmp_lg_u32 s8, 3
    s_cbranch_scc1 b_w1
    v_mov_b32 v12, v16
    v_mov_b32 v13, v17
    v_mov_b32 v14, v18
    s_mov_b32 s10, 0
    s_mov_b32 s12, {8*20736}
    b_w1:
    buffer_load_dwordx4 v12, s[28:31], s10 offen lds
    s_add_u32 m0, m0, 1024
    s_add_u32 s13, s13, 1
    buffer_load_dwordx4 v13, s[28:31], s10 offen lds
    s_add_u32 m0, m0, 1024
    s_cmp_lt_u32 s13, 9
    buffer_load_dwordx4 v14, s[28:31], s10 offen lds
    s_cbranch_scc0 c_start
    s_add_u32 m0, m0, 1024
    s_add_u32 s10, s10, s12
    s_branch b_w
    """)

def phaseC():
    a(f"""
    c_start:
    s_cmp_ge_u32 s2, 192
    s_cbranch_scc1 k_done2
    """)
    srd(32, 96, 4718592)
    a(f"""
    s_and_b32 s4, s2, 7
    s_bfe_u32 s6, s2, 0x20003
    s_lshl_b32 s7, s4, 2
    s_add_u32 s7, s7, s6                 ; tm
    s_lshr_b32 s5, s2, 5                 ; tn
    s_mul_i32 s8, s3, 43
    s_lshr_b32 s8, s8, 7                 ; w/3
    s_mul_i32 s9, s8, 3
    s_sub_u32 s9, s3, s9                 ; tb = w%3
    s_lshr_b32 s13, s8, 1                ; kh
    s_and_b32 s14, s8, 1                 ; ta
    v_lshrrev_b32 v5, 5, v0
    v_bfe_u32 v6, v0, 2, 2
    v_lshl_add_u32 v6, v5, 2, v6
    v_mul_u32_u24 v4, 192, v6
    v_bfe_u32 v6, v0, 4, 1
    v_lshl_add_u32 v4, v6, 5, v4
    v_and_b32 v6, 3, v0
    v_lshl_add_u32 v4, v6, 3, v4
    s_lshl_b32 s17, s9, 6
    s_mul_i32 s18, s13, {18*3072}
    s_add_u32 s17, s17, s18
    v_add_u32 v4, s17, v4
    v_lshlrev_b32 v2, 4, v0
    s_mul_i32 s17, s8, {18*1024}
    v_add_u32 v3, s17, v2
    v_and_b32 v11, 31, v0
    v_lshlrev_b32 v11, 2, v11
    v_lshl_add_u32 v11, v5, 9, v11
    v_add_u32 v11, s17, v11
    v_add_u32 v11, {14*1024}, v11
    s_lshl_b32 s15, s7, 1
    s_add_u32 s15, s15, s14
    s_mul_i32 s16, s15, {O_T}
    s_mul_i32 s18, s13, {18*1024}
    s_add_u32 s16, s16, s18
    s_lshl_b32 s18, s9, 10
    s_add_u32 s16, s16, s18
    s_add_u32 s16, s16, {WS_O}
    s_add_u32 s17, s17, s18
    s_mul_i32 s18, s7, {64*FS}
    s_add_u32 s18, s18, {FL_B}
    v_mul_u32_u24 v120, {FS}, v0
    v_add_u32 v120, s18, v120
    s_cmp_lt_u32 s3, 8
    s_cbranch_scc1 c_nw
    s_waitcnt vmcnt(0)
    c_nw:
    s_barrier
    """)
    stamp("CW")
    a("s_cmp_lg_u32 s3, 8\ns_cbranch_scc1 c_ni")
    poll_issue(1, 120)
    a("c_ni:")
    for k in range(18):
        a(f"ds_read_b64_tr_b16 {vr(32+4*k,2)}, v4 offset:{k*3072}\nds_read_b64_tr_b16 {vr(34+4*k,2)}, v4 offset:{k*3072+8*192}")
        if k % 4 == 3: a("s_waitcnt lgkmcnt(6)")
    a("s_cmp_lg_u32 s3, 8\ns_cbranch_scc1 c_np")
    flag_poll("c_pb", 1, 120, issued=True)
    a("c_np:\ns_mov_b32 m0, s17\ns_waitcnt lgkmcnt(0)\ns_barrier")
    stamp("Cflag")
    for i in range(6):
        a("buffer_load_dwordx4 v2, s[36:39], s16 offen sc1 lds")
        if i < 5: a("s_add_u32 m0, m0, 3072\ns_add_u32 s16, s16, 3072")
    a(f"""
    s_mul_i32 s18, s3, 2048
    s_add_u32 s18, s18, 81920
    v_add_u32 v6, s18, v2
    s_mov_b32 s19, {-6*2048 & 0xffffffff:#x}
    s_cmp_eq_u32 s13, 0
    s_cselect_b32 s19, {6*2048}, s19
    v_add_u32 v7, s19, v6                ; partner's
    v_mul_u32_u24 v5, {8*2304}, v5
    v_and_b32 v8, 31, v0
    v_lshl_add_u32 v5, v8, 1, v5
    s_mul_i32 s17, s15, {32*2304}
    s_mul_i32 s18, s5, 192
    s_add_u32 s17, s17, s18
    s_lshl_b32 s18, s9, 6
    s_add_u32 s17, s17, s18
    s_mul_i32 s18, s13, {16*2304}
    s_add_u32 s17, s17, s18
    """)
    for c in range(3):
        a(f"s_waitcnt vmcnt({4-2*c})\ns_barrier")
        if c == 0: stamp("Cfirst")
        if c < 2:
            for k in range(6): a(f"ds_read_b128 {vr(104+4*k,4)}, v3 offset:{(6*c+k)*1024}")
        else:
            for k in range(2): a(f"ds_read_b128 {vr(104+4*k,4)}, v3 offset:{(6*c+k)*1024}")
            a("s_cmp_eq_u32 s13, 1\ns_cbranch_scc1 c_tl")
            for k in range(2, 6): a(f"ds_read_b128 {vr(104+4*k,4)}, v3 offset:{(6*c+k)*1024}")
            a("s_branch c_tm\nc_tl:")
            for k in range(2, 6):
                a(f"""ds_read2_b32 {vr(104+4*k,2)}, v11 offset0:0 offset1:32
                ds_read2_b32 {vr(106+4*k,2)}, v11 offset0:64 offset1:96
                v_add_u32 v11, 1024, v11""")
            a("s_waitcnt lgkmcnt(0)\nc_tm:")
        for k in range(6):
            a(f"s_waitcnt lgkmcnt({5-k})")
            a(f"v_mfma_f32_32x32x16_bf16 v[16:31], {vr(104+4*k,4)}, {vr(32+4*(6*c+k),4)}, " + ("0" if c == 0 and k == 0 else "v[16:31]"))
    stamp("Cmfma")
    a("""
    s_nop 10
    s_cmp_eq_u32 s13, 0
    s_cbranch_scc1 c_x0
    ds_write_b128 v6, v[16:19]
    ds_write_b128 v6, v[20:23] offset:1024
    s_waitcnt lgkmcnt(0)
    """)
    for r in range(8): a(f"v_mov_b32 v{16+r}, v{24+r}")
    a("""s_branch c_x1
    c_x0:
    ds_write_b128 v6, v[24:27]
    ds_write_b128 v6, v[28:31] offset:1024
    c_x1:
    s_waitcnt lgkmcnt(0)
    s_barrier
    ds_read_b128 v[32:35], v7
    ds_read_b128 v[36:39], v7 offset:1024
    s_waitcnt lgkmcnt(0)""")
    for r in range(8): a(f"v_add_f32 v{16+r}, v{16+r}, v{32+r}")
    for c in range(4): a(f"v_cvt_pk_bf16_f32 v{40+c}, v{16+2*c}, v{16+2*c+1}")
    for c in range(4):
        a(f"""s_add_u32 s18, s17, {2*c*2304}
        buffer_store_short v{40+c}, v5, s[32:35], s18 offen {OPT.get('sto','')}
        buffer_store_short_d16_hi v{40+c}, v5, s[32:35], s18 offen offset:2304 {OPT.get('sto','')}""")
    a("k_done2:")
    if DIAG:
        a(f"""s_cmp_lg_u32 s2, {OPT.get("dwg", 0)}
        s_cbranch_scc1 k_done
        s_cmp_lg_u32 s3, {OPT.get("dw", 4)}
        s_cbranch_scc1 k_done
        s_waitcnt vmcnt(0)
        s_memrealtime s[74:75]
        s_waitcnt lgkmcnt(0)
        {"s_mov_b32 s72, s74" if DIAG == "end" else "s_mov_b32 s72, s70" if DIAG == "none" else ""}
        s_sub_u32 s76, s72, s70
        s_min_u32 s76, s76, 10000
        s_lshl_b32 s76, s76, 2
        s_add_u32 s76, s76, 5000
        dg_spin:
        s_memrealtime s[78:79]
        s_waitcnt lgkmcnt(0)
        s_sub_u32 s77, s78, s70
        s_cmp_lt_u32 s77, s76
        s_cbranch_scc1 dg_spin""")
    stamp_out()
    a(f"""k_done:
    s_endpgm
    c_idle:
    s_cmp_lg_u32 s2, 255
    s_cbranch_scc1 k_done2
    s_cmp_lg_u32 s3, 8
    s_cbranch_scc1 k_done2
    v_lshrrev_b32 v120, 5, v116
    v_lshlrev_b32 v120, 8, v120
    v_and_b32 v121, 31, v116
    v_add_u32 v120, v120, v121
    v_mul_u32_u24 v120, {FS}, v120
    v_add_u32 v120, {FL_B}, v120
    v_add_u32 v121, {512*FS}, v120
    v_add_u32 v122, {1024*FS}, v120
    v_add_u32 v123, {1536*FS}, v120
    """)
    flag_poll("c_pe", 4, 120)
    a(f"s_mov_b32 s6, {FL_E}")
    flag_set("s6", 2)
    a("s_branch k_done2")
    a(f"""
    b_slow:
    v_subrev_u32 v{vK}, 65536, v{vK}
    v_subrev_u32 v{vT}, 16384, v{vT}
    v_subrev_u32 v{vV}, {8*9216}, v{vV}
    s_mov_b32 s26, 0
    v_mov_b32 v121, 0xff800000
    s_waitcnt lgkmcnt(0)
    b_mx:
    """)
    rdT(0, 0)
    for t in range(4):
        rdK(0, t)
        a("s_waitcnt lgkmcnt(0)")
        a(f"v_mfma_f32_32x32x16_bf16 {vr(S[0],16)}, {vr(KF[0],4)}, {vr(Q,4)}, 0")
        a(f"v_mfma_f32_32x32x8_bf16 {vr(S[0],16)}, {vr(TF[0]+2*(t>>1),2)}, {vr(QH if t&1 else QL,2)}, {vr(S[0],16)}")
        a("s_nop 15")
        for r in range(8): a(f"v_max3_f32 v121, v{S[0]+2*r}, v{S[0]+2*r+1}, v121")
    a(f"""
    v_add_u32 v{vK}, 4096, v{vK}
    v_add_u32 v{vT}, 1024, v{vT}
    s_add_u32 s26, s26, 1
    s_cmp_lt_u32 s26, 16
    s_cbranch_scc1 b_mx
    v_subrev_u32 v{vK}, 65536, v{vK}
    v_subrev_u32 v{vT}, 16384, v{vT}
    v_mov_b32 v122, v121
    s_nop 1
    v_permlane32_swap_b32 v121, v122
    s_nop 1
    v_max_f32 v121, v121, v122
    """)
    for i in range(16): a(f"v_sub_f32 v{NEG+i}, 0, v121")
    att_run(False)
    a("s_nop 15\ns_branch b_fin\nk_last:")

def main():
    ref = open("concat_heads__mha_block__ssm_conv_s4d__prompt.s.ref").read().split("\n")
    head = [l for l in ref if l.startswith(";") and "@launch" not in l and "Override launch" not in l and "grid=ceil" not in l]
    head += ["; @launch grid=(256,1,1) block=(768,1,1) lds=163840"]
    a(f".text\n.globl {KN}\n.p2align 8\n.type {KN},@function\n{KN}:")
    if INSTR:
        for i in range(70, 90): a(f"s_mov_b32 s{i}, 0")
        a("s_memtime s[70:71]\ns_memrealtime s[86:87]")
    if DIAG: a("s_memrealtime s[70:71]")
    phaseA(); phaseB(); phaseC()
    desc = f""".section .rodata,"a"
.p2align 6
.amdhsa_kernel {KN}
  .amdhsa_next_free_vgpr 168
  .amdhsa_next_free_sgpr 102
  .amdhsa_accum_offset 168
  .amdhsa_group_segment_fixed_size 0
  .amdhsa_kernarg_size 104
  .amdhsa_user_sgpr_count 2
  .amdhsa_user_sgpr_kernarg_segment_ptr 1
  .amdhsa_system_sgpr_workgroup_id_x 1
.end_amdhsa_kernel
"""
    out = "\n".join(head) + "\n.amdgcn_target \"amdgcn-amd-amdhsa--gfx950\"\n" + a.text() + desc
    path = sys.argv[1] if len(sys.argv) > 1 and sys.argv[1].endswith(".s") else "concat_heads__mha_block__ssm_conv_s4d__prompt.s"
    open(path, "w").write(out)
main()
```

```python
import sys, struct
KN = "concat_heads__mha_block__ssm_conv_s4d__prompt_kernel"
def f2u(x): return struct.unpack("<I", struct.pack("<f", x))[0]
INSTR = "instr" in sys.argv
OPT = dict(x.split("=") for x in sys.argv if "=" in x)

WS_QK = 0; QK_T = 73728
WS_V = WS_QK + 64 * QK_T
WS_O = WS_V + 256 * 9216; O_T = 36864
WS_U = WS_O + 64 * O_T
WS_Y = WS_U + 576 * 4096
WS_FL = WS_Y + 576 * 4096
FS = 128
FL_A = 0; FL_S = 864 * FS; FL_Y = FL_S + 288 * FS; FL_B = FL_Y + 1152 * FS; FL_E = FL_B + 2048 * FS
WS_END = WS_FL + FL_E + FS
WS_ST = 24 << 20
L_FL = 155648
KC = 4156
KAREA = 8448
L_KT = 65536; L_V = 81920; L_BOUNCE = 155648; L_Q = 102400

class A:
    def __init__(s): s.l = []
    def __call__(s, t):
        for line in t.strip("\n").split("\n"):
            q = line.strip()
            if not q: continue
            s.l.append(q if q.endswith(":") else "    " + q)
    def text(s): return "\n".join(s.l) + "\n"
a = A()
def vr(b, n): return f"v[{b}:{b+n-1}]"
def srd(d, lo, size):
    a(f"""s_mov_b32 s{d}, s{lo}
    s_mov_b32 s{d+1}, s{lo+1}
    s_mov_b32 s{d+2}, {size}
    s_mov_b32 s{d+3}, 0x20000""")

SSETS = {"1": ["Aend", "Aack", "Bflag", "Bgo", "Bloop", "Back"],
         "2": ["Bgo", "Bloop", "Back", "Cflag", "Cfirst", "Cmfma"],
         "5": ["Bloop", "Bbar", "Cmfma", "Cx", "Ccvt", "Cst"],
         "4": ["Aack", "Xpw", "Xpoll", "Xiss", "Xland", "Bgo"],
         "3": ["Afirst", "Akgen", "Abuilt", "Aconv", "Aend", "Aack"]}
DIAG = OPT.get("diag")
def stamp(name):
    if DIAG == name: a("s_memrealtime s[72:73]")
    if INSTR and name in SSETS[OPT.get("sset", "1")]:
        i = SSETS[OPT.get("sset", "1")].index(name) + 1
        a(f"s_memtime s[{70+2*i}:{71+2*i}]")
def stamp_out():
    if not INSTR: return
    a(f"""s_waitcnt vmcnt(0)
    s_memtime s[84:85]
    s_memrealtime s[88:89]
    s_waitcnt lgkmcnt(0)
    s_mov_b64 exec, 1
    s_lshl_b32 s90, s2, 4
    s_add_u32 s90, s90, s3
    s_lshl_b32 s90, s90, 6
    s_add_u32 s90, s90, {WS_ST}
    v_mov_b32 v166, s90""")
    for i in range(10):
        a(f"v_mov_b32 v167, s{70+2*i}\nglobal_store_dword v166, v167, s[24:25] offset:{4*i}")

def transpose8(I, O, sLO, sHI):
    for c in range(8):
        for t in range(4):
            a(f"v_perm_b32 v{O+4*c+t}, v{I+4*(2*t+1)+(c>>1)}, v{I+4*(2*t)+(c>>1)}, s{sHI if c&1 else sLO}")

def flag_set(soff, t):
    if OPT.get("ffl", "0") == "1":
        a(f"""v_mbcnt_lo_u32_b32 v{t}, -1, 0
        v_mov_b32 v{t+1}, s92
        v_lshl_add_u32 v{t}, v{t}, 2, s93
        s_mov_b32 exec_hi, 0
        buffer_store_dword v{t+1}, v{t}, s[36:39], {soff} offen sc1
        s_mov_b32 exec_hi, -1""")
    else:
        a(f"""v_mov_b32 v{t}, {WS_FL}
        v_mov_b32 v{t+1}, s92
        s_mov_b64 exec, 1
        buffer_store_dword v{t+1}, v{t}, s[36:39], {soff} offen {OPT.get('sfl', 'sc1').replace('+', ' ')}
        s_mov_b64 exec, -1""")
def poll_issue(n, t):
    for i in range(n): a(f"buffer_load_dword v{t+4+i}, v{t+i}, s[36:39], s93 offen {OPT.get('pfl', 'sc1').replace('+', ' ')}")
def flag_poll(tag, n, t, issued=False):
    a("s_mov_b32 s91, 0")
    if issued: a(f"s_branch {tag}_c")
    a(f"{tag}:")
    poll_issue(n, t)
    a(f"{tag}_c:\ns_add_u32 s91, s91, 1\ns_waitcnt vmcnt(0)")
    for i in range(n): a(f"v_xor_b32 v{t+4+i}, s92, v{t+4+i}")
    for i in range(1, n): a(f"v_or_b32 v{t+4}, v{t+4}, v{t+4+i}")
    a(f"""v_cmp_ne_u32 vcc, 0, v{t+4}
    s_cbranch_vccz {tag}_x
    s_mov_b64 exec, vcc
    s_sleep {OPT.get("slp", 2)}
    s_cmp_lt_u32 s91, 0x80000
    s_cbranch_scc1 {tag}
    {tag}_x:
    s_mov_b64 exec, -1""")
def lds_wait(tag, vaddr, off, t, slp=False):
    a(f"""{tag}:
    {"s_sleep 1" if slp else ""}
    ds_read_b32 v{t}, v{vaddr} offset:{off}
    s_waitcnt lgkmcnt(0)
    v_cmp_eq_u32 vcc, 0, v{t}
    s_cbranch_vccz {tag}""")
def kargs():
    a(f"""s_waitcnt lgkmcnt(0)
    s_add_u32 s68, s24, {WS_FL + FL_E}
    s_addc_u32 s69, s25, 0
    s_load_dword s92, s[68:69], 0""")
    srd(36, 24, WS_END)

def ufetch(tag):
    a(f"""
    s_sub_u32 s43, s3, 8
    s_sub_u32 s45, 11, s3
    s_cmp_ge_u32 s2, 224
    s_cselect_b32 s43, s45, s43
    s_and_b32 s45, s43, 1
    s_lshl_b32 s40, s2, 1
    s_add_u32 s40, s40, s45
    s_add_u32 s46, s40, {512 - 448}
    s_lshl_b32 s44, s43, 13
    s_add_u32 s47, s44, {40960 - 16384}
    s_add_u32 s44, s44, 147968
    s_cmp_ge_u32 s43, 2
    s_cselect_b32 s40, s46, s40          ; channel
    s_cselect_b32 m0, s47, s44
    s_lshr_b32 s46, s40, 6
    s_mul_i32 s46, s46, {32*FS}
    s_add_u32 s46, s46, {FL_S}
    v_and_b32 v10, 31, v0
    v_mul_u32_u24 v10, {FS}, v10
    v_add_u32 v10, s46, v10
    v_lshlrev_b32 v12, 4, v0
    v_mov_b32 v13, 0x7ffffff0
    s_lshl_b32 s44, s40, 12
    s_add_u32 s44, s44, {WS_U}
    s_mov_b32 exec_hi, 0
    """)
    flag_poll(tag, 1, 10)
    for i in range(4): a(f"buffer_load_dwordx4 v12, s[36:39], s44 offen offset:{1024*i} sc1 lds")
    a(f"""s_lshl_b32 s43, s43, 2
    s_add_u32 m0, s43, {L_FL + 448}
    s_mov_b64 exec, 1
    buffer_load_dword v13, s[36:39], 0 offen lds
    s_mov_b64 exec, -1""")

def phaseA():
    mod9 = """
    s_mul_i32 s49, s48, 57
    s_lshr_b32 s49, s49, 9
    s_mul_i32 s49, s49, 9
    s_sub_u32 s48, s48, s49"""
    ROT = {"wg": "s_lshl_b32 s48, s40, 1\ns_add_u32 s48, s48, s41" + mod9, "none": "s_mov_b32 s48, 0",
           "wgb": "s_and_b32 s48, s27, 3\ns_mul_i32 s48, s48, 9\ns_lshr_b32 s48, s48, 2\ns_lshr_b32 s49, s27, 2\ns_mul_i32 s49, s49, 4\ns_add_u32 s48, s48, s49\ns_add_u32 s48, s48, s26" + mod9,
           "wgm": "s_and_b32 s48, s27, 3\ns_mul_i32 s48, s48, 9\ns_lshr_b32 s48, s48, 2\ns_add_u32 s48, s48, s26" + mod9,
           "two": "s_and_b32 s48, s27, 1\ns_lshr_b32 s49, s27, 2\ns_xor_b32 s48, s48, s49\ns_and_b32 s48, s48, 1\ns_lshl_b32 s48, s48, 2\ns_add_u32 s48, s48, s26" + mod9,
           "xcd": "s_and_b32 s48, s26, 3\ns_lshl_b32 s48, s48, 1\ns_lshr_b32 s49, s26, 2\ns_mul_i32 s49, s49, 5\ns_add_u32 s48, s48, s49" + mod9}[OPT.get("rot", "two")]
    a(f"""
    s_cmp_ge_u32 s2, 256
    s_cbranch_scc1 k_done
    v_lshrrev_b32 v1, 6, v0
    v_and_b32 v0, 63, v0
    v_readfirstlane_b32 s3, v1
    v_mov_b32 v23, {L_FL}
    s_cmp_lg_u32 s3, 9
    s_cbranch_scc1 a_noarm
    v_mov_b32 v14, -1
    v_mov_b32 v15, -1
    v_lshl_add_u32 v16, v0, 3, v23
    ds_write_b64 v16, v[14:15]
    s_waitcnt lgkmcnt(0)
    a_noarm:
    s_load_dwordx16 s[4:19], s[0:1], 0
    s_load_dwordx4 s[20:23], s[0:1], 64
    s_load_dwordx2 s[24:25], s[0:1], 96
    s_load_dwordx2 s[96:97], s[0:1], 80
    s_load_dwordx2 s[94:95], s[0:1], 16
    s_add_u32 s26, s3, 8
    s_sub_u32 s27, s3, 4
    s_cmp_lt_u32 s3, 4
    {"" if OPT.get("remap", "1") == "0" else "s_cselect_b32 s3, s26, s27           ; the waves that start first take the loader role (8..11)"}
    s_and_b32 s26, s2, 7
    s_lshr_b32 s27, s2, 3
    s_and_b32 s40, s26, 3
    s_lshl_b32 s40, s40, 2
    s_and_b32 s44, s27, 3
    s_add_u32 s40, s40, s44
    s_lshr_b32 s41, s26, 2
    s_mul_i32 s41, s41, 7
    s_lshr_b32 s44, s27, 2
    s_add_u32 s41, s41, s44
    s_mov_b32 s93, {WS_FL}
    s_cmp_ge_u32 s3, 8
    s_cbranch_scc1 a_aux
    s_cmp_lt_u32 s3, 4
    s_cbranch_scc1 a_ssm
    s_branch a_gemm
    a_aux:
    s_cmp_ge_u32 s27, 28
    s_cbranch_scc1 a_task
    {ROT}
    s_bfe_u32 s56, s3, 0x10001
    s_bitcmp1_b32 s3, 0
    s_cbranch_scc1 a_ldw
    v_lshrrev_b32 v4, 3, v0
    v_lshrrev_b32 v5, 2, v4
    v_lshlrev_b32 v5, 3, v5
    v_and_b32 v6, 3, v4
    v_add_u32 v5, v5, v6
    s_lshl_b32 s44, s40, 7
    v_add_u32 v5, s44, v5
    v_mul_u32_u24 v5, 1152, v5
    v_lshrrev_b32 v6, 1, v4
    v_and_b32 v7, 7, v0
    v_xor_b32 v6, v6, v7
    v_lshl_add_u32 v2, v6, 4, v5
    v_xor_b32 v6, 4, v6
    v_lshl_add_u32 v3, v6, 4, v5
    v_add_u32 v3, {4608-1024}, v3
    s_mov_b32 s50, 128
    s_mov_b32 s51, 18432
    s_mov_b32 s52, 0
    s_waitcnt lgkmcnt(0)
    s_mov_b32 s28, s4
    s_mov_b32 s29, s5
    s_mov_b32 s30, 2359296
    s_branch a_ld
    a_ldw:
    v_lshrrev_b32 v5, 4, v0
    v_mul_u32_u24 v2, 3456, v5
    v_lshlrev_b32 v5, 2, v5
    v_and_b32 v6, 15, v0
    v_xor_b32 v5, v5, v6
    v_lshl_add_u32 v2, v5, 4, v2
    s_lshl_b32 s44, s41, 8
    v_add_u32 v2, s44, v2
    v_add_u32 v3, {13824-1024}, v2
    s_mov_b32 s50, 221184
    s_mov_b32 s51, 27648
    s_mov_b32 s52, 16384
    s_waitcnt lgkmcnt(0)
    s_mov_b32 s28, s6
    s_mov_b32 s29, s7
    s_mov_b32 s30, 1990656
    a_ld:
    s_setprio {OPT.get("lprio", 0)}
    s_mov_b32 s31, 0x20000
    s_mul_i32 s57, s56, s51
    s_lshl_b32 s57, s57, 2
    s_lshl_b32 s56, s56, 13
    s_add_u32 s52, s52, s56
    s_and_b32 s58, s3, 3
    s_lshl_b32 s58, s58, 2
    s_add_u32 s58, s58, {L_FL}
    v_mov_b32 v4, 0x7ffffff0
    s_mov_b32 s53, 0
    """)
    kargs()
    a(f"""
    a_ld_loop:
    s_cmp_lt_u32 s53, 4
    s_cbranch_scc1 a_ld_go
    a_ld_poll:
    ds_read_b128 v[8:11], v23 offset:160
    s_waitcnt lgkmcnt(0)
    v_or_b32 v8, v8, v9
    v_or3_b32 v8, v8, v10, v11
    v_cmp_eq_u32 vcc, 0, v8
    s_cbranch_vccz a_ld_poll
    v_add_u32 v23, 16, v23
    a_ld_go:
    s_mul_i32 s47, s48, s50
    s_add_u32 s47, s47, s57
    s_and_b32 s55, s53, 3
    s_lshl_b32 s55, s55, 15
    s_add_u32 m0, s55, s52
    s_add_u32 s48, s48, 1
    """)
    for p in range(4):
        a("buffer_load_dwordx4 v2, s[28:31], s47 offen lds\nbuffer_load_dwordx4 v3, s[28:31], s47 offen offset:1024 lds")
        if p < 3: a("s_add_u32 m0, m0, 2048\ns_add_u32 s47, s47, s51")
    a(f"""
    s_cmp_eq_u32 s48, 9
    s_cselect_b32 s48, 0, s48
    s_cmp_lg_u32 s53, 0
    s_cbranch_scc1 a_ld_nb
    s_barrier
    a_ld_nb:
    s_mov_b32 m0, s58
    s_mov_b64 exec, 1
    buffer_load_dword v4, s[28:31], 0 offen lds
    s_mov_b64 exec, -1
    s_add_u32 s58, s58, 16
    s_add_u32 s53, s53, 1
    s_cmp_lt_u32 s53, 9
    s_cbranch_scc1 a_ld_loop
    """)
    a("v_mov_b32 v116, v0\ns_waitcnt lgkmcnt(0)\ns_add_u32 s92, s92, 0x9e3779b1\ns_cmp_ge_u32 s3, 10\ns_cbranch_scc1 b_aux\na_uf:")
    ufetch("a_pu")
    a("s_branch b_aux")
    CPF = "" if OPT.get("cpf", "1") == "0" else f"""
    ; read this kernel's own code once per XCD so that later instruction fetches find it in L2 (speed only)
    s_getpc_b64 s[44:45]
    a_pc:
    s_lshl_b32 s46, s27, 2
    s_add_u32 s46, s46, s3
    s_sub_u32 s46, s46, 4
    s_lshl_b32 s46, s46, 8
    s_min_u32 s46, s46, k_last - {KN} - 256
    s_sub_u32 s44, s44, a_pc - {KN}
    s_subb_u32 s45, s45, 0
    s_add_u32 s44, s44, s46
    s_addc_u32 s45, s45, 0
    v_lshlrev_b32 v60, 6, v0
    v_mov_b32 v61, s45
    v_add_co_u32 v60, vcc, s44, v60
    s_mov_b64 exec, 15
    s_nop 0
    v_addc_co_u32 v61, vcc, 0, v61, vcc
    global_load_dword v62, v[60:61], off
    s_mov_b64 exec, -1"""
    a(f"""
    a_gemm:
    {CPF}
    s_cmp_ge_u32 s27, 28
    s_cbranch_scc1 a_ssm
    s_barrier
    """)
    kargs()
    if OPT.get("tcha", "0") == "1":
        a(f"""s_cmp_lg_u32 s3, 5
        s_cbranch_scc1 a_ntch
        v_lshlrev_b32 v60, 18, v0
        buffer_load_dword v63, v60, s[36:39], 0 offen
        a_ntch:""")
    a(f"""
    s_sub_u32 s45, s3, 4
    s_and_b32 s42, s45, 1                ; mw
    s_lshr_b32 s43, s45, 1               ; nw
    s_lshl_b32 s58, s45, 2
    s_add_u32 s58, s58, {L_FL + 160}
    v_mov_b32 v22, 0x7ffffff0
    v_and_b32 v5, 31, v0
    v_lshrrev_b32 v6, 5, v0
    s_lshl_b32 s44, s42, 6
    v_add_u32 v7, s44, v5
    v_lshlrev_b32 v7, 7, v7
    v_bfe_u32 v5, v5, 1, 3
    v_xor_b32 v5, v5, v6
    """)
    for j in range(4):
        a(f"v_xor_b32 v20, {2*j}, v5\nv_lshl_add_u32 v{8+j}, v20, 4, v7\nv_add_u32 v{12+j}, 0x10000, v{8+j}")
    a(f"""
    v_bfe_u32 v5, v0, 2, 2
    v_lshl_add_u32 v7, v6, 3, v5
    v_lshlrev_b32 v7, 8, v7
    v_bfe_u32 v20, v0, 4, 1
    v_lshl_add_u32 v7, v20, 5, v7
    v_and_b32 v20, 1, v0
    v_lshl_add_u32 v7, v20, 4, v7
    v_and_b32 v20, 2, v0
    v_lshl_add_u32 v7, v20, 2, v7
    v_add_u32 v7, 16384, v7
    s_lshl_b32 s44, s43, 1
    v_xor_b32 v5, s44, v5
    v_lshl_add_u32 v16, v5, 6, v7
    v_xor_b32 v5, 1, v5
    v_lshl_add_u32 v17, v5, 6, v7
    v_add_u32 v18, 0x10000, v16
    v_add_u32 v19, 0x10000, v17
    s_setprio {OPT.get('gprio', 2)}
    s_waitcnt lgkmcnt(0)
    s_add_u32 s92, s92, 0x9e3779b1
    s_lshl_b32 s46, s40, 1
    s_add_u32 s46, s46, s42
    s_lshl_b32 s47, s41, 1
    s_add_u32 s47, s47, s43
    s_lshl_b32 s59, s47, 5
    s_add_u32 s59, s59, s46
    s_mul_i32 s59, s59, {FS}
    s_cmp_ge_u32 s41, 9
    s_cbranch_scc1 a_gemm_v""")
    FB = [24, 40, 128]
    def reads(stage, j, fb):
        slot = stage & 3; hi = slot >> 1; base = (slot & 1) * 32768
        return [f"ds_read_b128 {vr(fb,4)}, v{8+4*hi+j} offset:{base}",
                f"ds_read_b64_tr_b16 {vr(fb+8,2)}, v{16+2*hi} offset:{base+j*4096}",
                f"ds_read_b64_tr_b16 {vr(fb+10,2)}, v{16+2*hi} offset:{base+j*4096+1024}",
                f"ds_read_b64_tr_b16 {vr(fb+12,2)}, v{17+2*hi} offset:{base+j*4096}",
                f"ds_read_b64_tr_b16 {vr(fb+14,2)}, v{17+2*hi} offset:{base+j*4096+1024}",
                f"ds_read_b128 {vr(fb+4,4)}, v{8+4*hi+j} offset:{base+4096}"]
    def mfmas(fb, vor, first):
        out = []
        for (ta, tb) in ((0,0),(0,1),(1,0),(1,1)):
            acc = vr(64 + 16*(2*ta+tb), 16); X = vr(fb+4*ta, 4); W = vr(fb+8+4*tb, 4)
            out.append(f"v_mfma_f32_32x32x16_bf16 {acc}, " + (f"{X}, {W}" if vor else f"{W}, {X}") + ", " + ("0" if first else acc))
        return out
    def check(tag, st, first_read):
        if not first_read:
            a(f"""v_or_b32 v56, v56, v57
            v_or3_b32 v56, v56, v58, v59
            v_cmp_eq_u32 vcc, 0, v56
            s_cbranch_vccnz {tag}_ok""")
        a(f"""{tag}_p:
        ds_read_b128 v[56:59], v23 offset:{16*st}
        s_waitcnt lgkmcnt(0)
        v_or_b32 v56, v56, v57
        v_or3_b32 v56, v56, v58, v59
        v_cmp_eq_u32 vcc, 0, v56
        s_cbranch_vccz {tag}_p
        {tag}_ok:""")
    def mainloop(vor):
        check(f"a_c{int(vor)}_0", 0, True)
        stamp("Afirst")
        a("\n".join(reads(0, 0, FB[0]) + reads(0, 1, FB[1])))
        for g in range(36):
            st, j = divmod(g, 4)
            a(f"s_waitcnt lgkmcnt({6 if g < 35 else 0})")
            m = mfmas(FB[g % 3], vor, g == 0)
            a(m[0])
            if j == 1 and st < 8: a(f"ds_read_b128 v[56:59], v23 offset:{16*(st+1)}")
            if j == 2 and st < 8: check(f"a_c{int(vor)}_{st+1}", st+1, False)
            if j == 3 and st < 5: a(f"s_add_u32 m0, s58, {16*st}\ns_mov_b64 exec, 1\nbuffer_load_dword v22, s[36:39], 0 offen lds\ns_mov_b64 exec, -1")
            rd = reads((g+2)//4, (g+2)%4, FB[(g+2) % 3]) if g + 2 < 36 else []
            a("\n".join(rd[:3])); a(m[1]); a("\n".join(rd[3:])); a(m[2]); a(m[3])
        stamp("Aconv")
    a(f"""
    s_mul_i32 s44, s46, {2*QK_T}
    s_lshl_b32 s45, s47, 12
    s_add_u32 s44, s44, s45
    s_add_u32 s45, s44, {QK_T}
    v_lshlrev_b32 v2, 4, v0
    """)
    mainloop(False)
    for ta in range(2):
        for tb in range(2):
            acc = 64 + 16*(2*ta+tb); o = 24 + 8*(2*ta+tb)
            if ta + tb == 0: a("s_nop 8")
            for r in range(8): a(f"v_cvt_pk_bf16_f32 v{o+r}, v{acc+2*r}, v{acc+2*r+1}")
            for hh in range(2): a(f"buffer_store_dwordx4 {vr(o+4*hh,4)}, v2, s[36:39], s{44+ta} offen offset:{tb*2048+hh*1024} sc1")
    a(f"""s_branch a_gemm_end
    a_gemm_v:
    v_and_b32 v5, 19, v0
    v_bfe_u32 v6, v0, 2, 1
    v_lshl_add_u32 v5, v6, 3, v5
    v_bfe_u32 v6, v0, 3, 1
    v_lshl_add_u32 v5, v6, 2, v5
    v_lshrrev_b32 v6, 5, v0
    v_mul_u32_u24 v6, 9216, v6
    v_lshl_add_u32 v2, v5, 4, v6
    s_sub_u32 s45, s47, 18
    s_lshl_b32 s45, s45, 10
    s_mul_i32 s44, s46, {8*9216}
    s_add_u32 s44, s44, s45
    s_add_u32 s44, s44, {WS_V}
    """)
    mainloop(True)
    a("s_cmp_ge_u32 s47, 27\ns_cbranch_scc1 a_end")
    for ta in range(2):
        for tb in range(2):
            acc = 64 + 16*(2*ta+tb); o = 24 + 8*(2*ta+tb)
            if ta + tb == 0: a("s_nop 8")
            for r in range(8): a(f"v_cvt_pk_bf16_f32 v{o+r}, v{acc+2*r}, v{acc+2*r+1}")
            for hh in range(2): a(f"s_add_u32 s45, s44, {(4*ta+2*hh)*9216}\nbuffer_store_dwordx4 {vr(o+4*hh,4)}, v2, s[36:39], s45 offen offset:{tb*512} sc1")
    a("a_gemm_end:")
    if OPT.get("early", "0") == "1":
        a(f"""s_lshl_b32 s44, s3, 2
        s_add_u32 s44, s44, {L_FL}
        v_mov_b32 v4, s44
        v_mov_b32 v5, 0
        ds_write_b32 v4, v5 offset:400""")
    stamp("Aend")
    a("s_waitcnt vmcnt(0)")
    stamp("Aack")
    flag_set("s59", 2)
    a("s_branch a_end")

    a(f"""
    a_task:
    s_sub_u32 s44, s2, 224
    s_lshr_b32 s45, s44, 1               ; B
    s_and_b32 s46, s44, 1                ; es
    s_sub_u32 s47, 16, s3
    s_lshl_b32 s59, s47, 5
    s_add_u32 s59, s59, s44
    s_mul_i32 s59, s59, {FS}
    s_add_u32 s59, s59, {FL_S}
    s_lshl_b32 s48, s45, 3
    s_add_u32 s48, s48, s46
    s_mul_i32 s48, s48, {16*1152}
    s_lshl_b32 s49, s47, 7
    s_add_u32 s48, s48, s49
    v_lshrrev_b32 v10, 3, v0
    v_and_b32 v9, 7, v0
    v_mul_u32_u24 v11, 1152, v10
    v_lshl_add_u32 v11, v9, 4, v11
    v_xor_b32 v12, v10, v9
    v_lshlrev_b32 v12, 4, v12
    v_lshl_add_u32 v12, v9, 10, v12
    s_sub_u32 s49, 11, s3
    s_lshl_b32 s49, s49, 14
    s_add_u32 s49, s49, 57344
    v_add_u32 v12, s49, v12
    s_mov_b32 m0, s49
    v_lshlrev_b32 v17, 15, v10
    v_lshl_add_u32 v17, v9, 4, v17
    s_lshl_b32 s60, s47, 18
    s_lshl_b32 s45, s45, 7
    s_lshl_b32 s46, s46, 11
    s_add_u32 s60, s60, s45
    s_add_u32 s60, s60, s46
    s_add_u32 s60, s60, {WS_U}
    s_mov_b32 s50, 0x05040100
    s_mov_b32 s51, 0x07060302
    """)
    for p in range(8): a(f"v_xor_b32 v{24+p}, {16*p}, v11")
    kargs()
    srd(28, 10, 2359296)
    for i in range(3):
        if i == 1: a("s_barrier")
        if i == 2: a("s_cmp_lg_u32 s3, 8\ns_cbranch_scc1 a_t2")
        for p in range(8):
            a(f"""s_add_u32 s49, s48, {((p>>1)*32 + (p&1)*8)*1152}
            buffer_load_dwordx4 v{24+p}, s[28:31], s49 offen lds
            s_add_u32 m0, m0, 1024""")
        a("s_sub_u32 s48, s48, 512")
    a("s_waitcnt vmcnt(16)\ns_branch a_t3\na_t2:\ns_waitcnt vmcnt(8)\na_t3:")
    for i in range(3):
        if i == 1: a("s_waitcnt vmcnt(8)")
        for j in range(8): a(f"ds_read_b128 {vr(32+4*j,4)}, v12 offset:{i*8192 + j*128}")
        a("s_waitcnt lgkmcnt(0)")
        if i == 0: a("s_add_u32 s92, s92, 0x9e3779b1")
        O_ = [64, 96, 128][i]
        transpose8(32, O_, 50, 51)
        if i:
            a("s_waitcnt vmcnt(0)")
            flag_set("s59", 2)
            a(f"s_sub_u32 s59, s59, {128*FS}")
        for c in range(8):
            a(f"s_add_u32 s49, s60, {c*4096}\nbuffer_store_dwordx4 {vr(O_+4*c,4)}, v17, s[36:39], s49 offen sc1")
        a(f"s_sub_u32 s60, s60, {4<<18}")
        if i == 1: a("s_cmp_lg_u32 s3, 8\ns_cbranch_scc1 a_gemm_end")
    a("s_branch a_gemm_end")

    L2E = f2u(1.4426950408889634); L2E_LO = f2u(1.4426950408889634 - struct.unpack("<f", struct.pack("<I", L2E))[0])
    LN2 = f2u(0.6931471805599453)
    z0 = list(range(9)) + [14,15,16,20,21,24,25]
    z1 = [9,9,10,11,11,11,12,13,13,17,18,19,22,23,26,27]
    def pack(z, lo):
        v = 0
        for r in range(lo, lo+8): v |= (z[r]-r) << (4*(r-lo))
        return v
    a(f"""
    a_ssm:
    s_and_b32 s41, s3, 1                 ; half
    s_bfe_u32 s45, s3, 0x10001
    s_lshl_b32 s40, s2, 1
    s_add_u32 s40, s40, s45
    s_add_u32 s46, s40, {512 - 448}
    s_mul_i32 s42, s45, {KAREA}
    s_add_u32 s47, s42, 16384
    s_add_u32 s42, s42, 131072
    s_cmp_ge_u32 s3, 4
    s_cselect_b32 s40, s46, s40          ; channel
    s_cselect_b32 s42, s47, s42
    s_lshr_b32 s43, s3, 1
    s_lshl_b32 s43, s43, 13
    s_add_u32 s47, s43, {40960 - 16384}
    s_add_u32 s43, s43, 147968
    s_cmp_ge_u32 s3, 4
    s_cselect_b32 s43, s47, s43
    s_lshl_b32 s45, s40, 7
    s_lshl_b32 s46, s41, 6
    s_add_u32 s45, s45, s46
    v_add_u32 v2, s45, v0
    v_lshlrev_b32 v2, 1, v2
    s_lshl_b32 s45, s40, 1
    v_mov_b32 v3, s45
    s_waitcnt lgkmcnt(0)
    global_load_ushort v4, v3, s[20:21]
    global_load_ushort v6, v2, s[12:13]
    global_load_ushort v7, v2, s[14:15]
    global_load_ushort v8, v2, s[16:17]
    global_load_ushort v9, v2, s[18:19]
    global_load_ushort v5, v3, s[22:23]
    s_barrier
    """)
    kargs()
    a(f"""
    v_and_b32 v14, 31, v0
    v_and_b32 v16, 3, v14
    v_lshrrev_b32 v17, 3, v14
    v_lshl_add_u32 v16, v17, 2, v16
    v_mov_b32 v17, {pack(z0,0):#x}
    v_mov_b32 v18, {pack(z0,8):#x}
    v_mov_b32 v19, {pack(z1,0):#x}
    v_mov_b32 v20, {pack(z1,8):#x}
    v_cmp_lt_u32 vcc, 7, v16
    v_and_b32 v21, 4, v14
    v_and_b32 v22, 7, v16
    v_cndmask_b32 v17, v17, v18, vcc
    v_cndmask_b32 v19, v19, v20, vcc
    v_cmp_ne_u32 vcc, 0, v21
    v_lshlrev_b32 v22, 2, v22
    v_lshrrev_b32 v15, 5, v0
    v_cndmask_b32 v17, v17, v19, vcc
    v_bfe_u32 v17, v17, v22, 4
    v_add_u32 v17, v17, v16
    v_lshlrev_b32 v15, 2, v15
    s_mov_b32 s50, 0x3f80
    """)
    for (zr, dst) in ((14, 40), (17, 48)):
        a(f"""v_and_b32 v18, 1, v{zr}
        v_lshlrev_b32 v18, 4, v18
        v_lshlrev_b32 v18, v18, s50
        v_lshrrev_b32 v19, 1, v{zr}
        v_sub_u32 v19, v19, v15""")
        for d in range(8): a(f"v_cmp_eq_u32 s[{52+2*d}:{53+2*d}], {8*(d>>2) + (d&3)}, v19")
        for d in range(8): a(f"v_cndmask_b32 v{dst+d}, 0, v18, s[{52+2*d}:{53+2*d}]")
    a(f"""
    s_mov_b32 s50, {L2E:#x}
    s_mov_b32 s51, {L2E_LO:#x}
    s_mov_b32 s52, {LN2:#x}
    s_mov_b32 s53, {f2u(248.0):#x}
    s_mov_b32 s54, {f2u(8.0):#x}
    s_waitcnt vmcnt(0) lgkmcnt(0)
    s_add_u32 s92, s92, 0x9e3779b1
    """)
    stamp("Afirst")
    if "nossm" in OPT: a("s_branch a_end")
    def exp_bf16(x, t, lo):
        a(f"""v_mul_f32 v{t}, s50, v{x}
        v_fma_f32 v{lo}, v{x}, s50, -v{t}
        v_exp_f32 v{t}, v{t}
        v_fma_f32 v{lo}, v{x}, s51, v{lo}
        v_mul_f32 v{lo}, s52, v{lo}
        v_fma_f32 v{t}, v{t}, v{lo}, v{t}
        v_cvt_pk_bf16_f32 v{t}, v{t}, v{t}
        v_lshlrev_b32 v{x}, 16, v{t}""")
    for r in range(4, 10): a(f"v_lshlrev_b32 v{r}, 16, v{r}")
    exp_bf16(4, 20, 21)
    exp_bf16(6, 20, 21)
    a("""
    v_mul_f32 v6, v6, v4
    v_mul_f32 v7, v7, v4
    v_mul_f32 v8, v8, v4
    v_mul_f32 v9, v9, v4
    v_mul_f32 v6, s50, v6                ; -Re(z)*log2e
    v_mul_f32 v7, 0.15915494, v7         ; Im(z)/(2pi)
    v_add_f32 v8, v8, v8
    v_mul_f32 v9, -2.0, v9
    """)
    DL = [8, 1, 2, 4, 248]
    DS = {8: "s54", 1: "1.0", 2: "2.0", 4: "4.0", 248: "s53"}
    MR = {d: 24 + 2*i for i, d in enumerate(DL)}
    def mkE(d):
        a(f"""v_mul_f32 v21, {DS[d]}, v6
        v_mul_f32 v22, {DS[d]}, v7
        v_exp_f32 v21, -v21
        v_fract_f32 v22, v22
        v_cos_f32 v20, v22
        v_sin_f32 v22, v22
        v_mul_f32 v{MR[d]}, v21, v20
        v_mul_f32 v{MR[d]+1}, v21, v22""")
    P = 56; Dt = 88; YO = 120; ACC = 152
    R = lambda z: 34 + 2*(z % 3)
    def chain(dl, conj, mid=None):
        n = "-" if conj else ""; p = "" if conj else "-"
        for z in range(len(dl) + 1):
            cur, nxt = R(z), R(z+1)
            if z < len(dl):
                W = MR[dl[z]]
                a(f"v_mul_f32 v{nxt}, v{cur}, v{W}\nv_mul_f32 v{nxt+1}, v{cur+1}, v{W}")
            if z & 1: a(f"v_cvt_pk_bf16_f32 v{P+(z>>1)}, v{R(z-1)}, v{cur}")
            if z < len(dl): a(f"v_fma_f32 v{nxt}, {p}v{cur+1}, v{W+1}, v{nxt}\nv_fma_f32 v{nxt+1}, {n}v{cur}, v{W+1}, v{nxt+1}")
            if z & 1: a(f"v_cvt_pk_bf16_f32 v{P+16+(z>>1)}, v{R(z-1)+1}, v{cur+1}")
            if mid and z == 4: mid()
    def swaps(comp):
        for pr in range(2):
            for t in range(4): a(f"v_permlane32_swap_b32 v{P+16*comp+8*pr+t}, v{P+16*comp+8*pr+4+t}")
    def tmfma(comp, sel):
        for blk in range(2): a(f"v_mfma_f32_32x32x16_bf16 {vr(Dt+16*blk,16)}, {vr(P+16*comp+4*blk,4)}, {vr(sel,4)}, 0")
        for blk in range(2): a(f"v_mfma_f32_32x32x16_bf16 {vr(Dt+16*blk,16)}, {vr(P+16*comp+8+4*blk,4)}, {vr(sel+4,4)}, {vr(Dt+16*blk,16)}")
    def tcvt(dst):
        for i in range(16): a(f"v_cvt_pk_bf16_f32 v{dst+i}, v{Dt+2*i}, v{Dt+2*i+1}")
    mkE(8)
    a(f"v_mov_b32 v{R(0)}, 1.0\nv_mov_b32 v{R(0)+1}, 0")
    chain([8]*31, False)
    mkE(1); swaps(0); swaps(1); tmfma(0, 40); mkE(2); mkE(4); tcvt(YO); tmfma(1, 40); mkE(248)
    a(f"v_mov_b32 v{R(0)}, v8\nv_mov_b32 v{R(0)+1}, v9")
    deltas = [1]*8 + [248] + [2]*4 + [248] + [4]*2 + [248] + [4]*2 + [248, 8, 248, 8, 248, 8, 248, 8]
    chain(deltas, True, mid=lambda: tcvt(YO+16))
    a("v_lshl_add_u32 v21, s41, 6, v0\nv_cmp_eq_u32 vcc, 0, v21\nv_sub_u32 v21, 63, v0")
    swaps(0); swaps(1); tmfma(0, 48)
    a(f"""
    v_cndmask_b32 v5, 0, v5, vcc
    v_lshl_add_u32 v21, v21, 4, s42
    s_lshl_b32 s46, s3, 4
    v_add_u32 v22, s46, v23
    v_xor_b32 v20, 16, v22               ; partner's
    v_mov_b32 v19, 0
    s_nop 5
    """)
    tcvt(P); tmfma(1, 48)
    for i in range(4): a(f"v_mfma_f32_32x32x16_bf16 {vr(ACC,16)}, {vr(P+4*i,4)}, {vr(YO+4*i,4)}, " + ("0" if i == 0 else vr(ACC,16)))
    a("s_nop 7")
    tcvt(P+16)
    a("s_nop 1")
    for i in range(4, 8): a(f"v_mfma_f32_32x32x16_bf16 {vr(ACC,16)}, {vr(P+4*i,4)}, {vr(YO+4*i,4)}, {vr(ACC,16)}")
    stamp("Akgen")
    if "noconv" in OPT: a("s_branch a_end")
    CA = 24; CU = 68; CF = 132
    for i in range(44): a(f"v_mov_b32 v{CA+i}, 0")
    for i in range(32): a(f"v_mov_b32 v{CU+i}, 0")
    a(f"""
    v_and_b32 v12, 31, v0
    v_lshrrev_b32 v13, 5, v0             ; h
    v_lshlrev_b32 v16, 5, v12
    v_lshl_add_u32 v16, v13, 4, v16
    s_lshl_b32 s45, s41, 7
    s_sub_u32 s44, s43, s45
    s_sub_u32 s44, s44, 96
    v_add_u32 v16, s44, v16
    s_lshl_b32 s45, s41, 2
    v_lshlrev_b32 v17, 3, v13
    v_sub_u32 v17, v17, v12
    v_lshlrev_b32 v17, 1, v17            ; 2*(8h - b)
    v_and_b32 v18, 1, v12
    v_cmp_eq_u32 s[56:57], 1, v18        ; b odd
    v_xor_b32 v18, 1, v18
    v_mul_u32_u24 v18, {KC + 2}, v18
    s_lshl_b32 s46, s41, 8
    s_sub_u32 s46, s42, s46
    s_add_u32 s46, s46, {62 + 120*32}
    v_add3_u32 v17, v17, v18, s46
    v_subrev_u32 v18, 2048, v17
    v_add_f32 v{ACC}, v{ACC}, v5
    v_lshl_add_u32 v133, v0, 2, s42
    s_add_u32 s46, s43, 4096
    v_lshl_add_u32 v138, v0, 4, s46
    """)
    for G in range(4): a(f"v_add_u32 v{134+G}, {(3-G)*1024 + KC}, v21")
    a(f"""
    s_cmp_ge_u32 s27, 28
    s_cbranch_scc1 a_s_g2
    a_s_w2:
    ds_read_b128 v[8:11], v23 offset:128
    s_waitcnt lgkmcnt(0)
    v_or_b32 v8, v8, v9
    v_or3_b32 v8, v8, v10, v11
    v_cmp_eq_u32 vcc, 0, v8
    s_cbranch_vccnz a_s_g2
    s_sleep 1
    s_branch a_s_w2
    a_s_g2:
    s_setprio 3
    s_cmp_eq_u32 s41, 0
    s_cbranch_scc1 a_s_even
    """)
    d = lambda r: f"v{ACC+r}" if r < 16 else f"v{r-24}"
    units = [
      (0, 0, [(7,6),(5,4),(3,2),(1,0)]), (0, 1, [(8,7),(6,5),(4,3),(2,1)]),
      (1, 0, [(11,11),(10,10),(10,9),(9,9)]), (1, 1, [(11,11),(11,10),(10,10),(9,9)]),
      (2, 0, [(13,13),(13,32),(12,12),(12,12)]), (2, 1, [(13,13),(13,13),(32,12),(12,12)]),
      (3, 0, [(15,15),(15,33),(14,14),(14,14)]), (3, 1, [(15,15),(15,15),(33,14),(14,14)])]
    def build(us):
        for ui in us:
            G, cp, prs = units[ui]; o = 100 + 4*ui
            for t, (lo, hi) in enumerate(prs): a(f"v_cvt_pk_bf16_f32 v{o+t}, {d(lo)}, {d(hi)}")
            if cp == 0: a(f"ds_write_b128 v21, {vr(o,4)} offset:{(3-G)*1024}")
            else: a(f"ds_write2_b32 v{134+G}, v{o}, v{o+1} offset0:0 offset1:1\nds_write2_b32 v{134+G}, v{o+2}, v{o+3} offset0:2 offset1:3")
    for i in range(3): a(f"ds_write_b128 v138, {vr(ACC+4*i,4)} offset:{1024*i}")
    a("ds_write_b32 v22, v19 offset:256")
    lds_wait("a_s_o0", 20, 256, 8)
    a("ds_read_b128 v[140:143], v21\ns_waitcnt lgkmcnt(0)")
    for i in range(4): a(f"v_add_f32 v{ACC+12+i}, v{ACC+12+i}, v{140+i}")
    a(f"v_cndmask_b32 v8, {d(12)}, {d(13)}, s[56:57]\nv_cndmask_b32 v9, {d(14)}, {d(15)}, s[56:57]")
    build([4, 5, 6, 7])
    a(f"s_branch a_s_u\na_s_even:\nds_write_b128 v21, {vr(ACC+12,4)}\nds_write_b32 v22, v19 offset:256")
    lds_wait("a_s_e0", 20, 256, 8)
    for i in range(3): a(f"ds_read_b128 {vr(140+4*i,4)}, v138 offset:{1024*i}")
    a("v_cmp_eq_u32 vcc, 0, v0\ns_waitcnt lgkmcnt(0)")
    for i in range(12): a(f"v_add_f32 v{ACC+i}, v{ACC+i}, v{140+i}")
    build([0, 1, 2, 3])
    a(f"""
    v_cvt_pk_bf16_f32 v132, {d(0)}, v19
    s_mov_b64 exec, 0x7fff
    ds_write_b32 v133, v19 offset:4096   ; zeros behind both copies; the odd copy ends with K[0]
    s_mov_b64 exec, 0xffff
    v_cndmask_b32 v132, 0, v132, vcc
    ds_write_b32 v133, v132 offset:{4096 + KC}
    s_mov_b64 exec, -1
    a_s_u:
    ds_write_b32 v22, v19 offset:268
    s_setprio 0
    s_lshr_b32 s46, s3, 1
    s_lshl_b32 s46, s46, 2
    v_add_u32 v9, s46, v23
    """)
    lds_wait("a_s_uw", 9, 448, 8)
    for q in range(4):
        a(f"s_add_u32 s46, s45, {q}\ns_lshl_b32 exec_lo, -1, s46\ns_mov_b32 exec_hi, exec_lo")
        for es in range(2): a(f"ds_read_b128 {vr(CU+8*q+4*es,4)}, v16 offset:{es*2048 + (3-q)*32}")
        a("s_mov_b64 exec, -1")
        for es in range(2): a(f"ds_read_b128 {vr(CU+32+8*q+4*es,4)}, v16 offset:{es*2048 + 1024 + (3-q)*32}")
        if q == 2: a("s_waitcnt lgkmcnt(4)")
    lds_wait("a_s_o1", 20, 268, 8)
    stamp("Abuilt")
    steps = [(k, q, es) for k in range(4) for q in range(4) for es in range(2)]
    def frd(i):
        k, q, es = steps[i]; b = CF + 8*(i & 3); o = (6 - 2*q + es) * 8
        if q == 0 and es == 0 and k: a("v_subrev_u32 v17, 512, v17\nv_subrev_u32 v18, 512, v18")
        a(f"""ds_read2_b32 {vr(b,2)}, v17 offset0:{o} offset1:{o+1}
        ds_read2_b32 {vr(b+2,2)}, v17 offset0:{o+2} offset1:{o+3}
        ds_read2_b32 {vr(b+4,2)}, v18 offset0:{o} offset1:{o+1}
        ds_read2_b32 {vr(b+6,2)}, v18 offset0:{o+2} offset1:{o+3}""")
    for i in range(3): frd(i)
    for i, (k, q, es) in enumerate(steps):
        b = CF + 8*(i & 3); U0 = vr(CU+8*q+4*es, 4); U1 = vr(CU+32+8*q+4*es, 4)
        lo = vr(CA+4*k, 16); hi = vr(CA+16+4*k, 16)
        w = f"s_waitcnt lgkmcnt({4*min(2, 31-i)})"
        a(w)
        if q == 0 and es == 0 and k: a("s_nop 9")
        a(f"v_mfma_f32_32x32x16_bf16 {lo}, {U0}, {vr(b,4)}, {lo}")
        a(f"v_mfma_f32_32x32x16_bf16 {hi}, {U1}, {vr(b,4)}, {hi}")
        if i + 3 < 32: frd(i+3)
        a(f"v_mfma_f32_32x32x16_bf16 {hi}, {U0}, {vr(b+4,4)}, {hi}")
    stamp("Aconv")
    a(f"""
    ds_write_b32 v22, v19 offset:260
    s_lshl_b32 s46, s41, 12
    s_add_u32 s46, s46, s42
    v_lshl_add_u32 v16, v0, 4, s46
    s_lshl_b32 s46, s41, 13
    s_sub_u32 s46, 4096, s46
    v_add_u32 v17, s46, v16              ; partner's
    v_lshlrev_b32 v18, 4, v0
    s_lshl_b32 s44, s40, 12
    s_lshl_b32 s45, s41, 11
    s_add_u32 s44, s44, s45
    s_add_u32 s44, s44, {WS_Y}
    s_lshl_b32 s59, s40, 1
    s_add_u32 s59, s59, s41
    s_mul_i32 s59, s59, {FS}
    s_add_u32 s59, s59, {FL_Y}
    """)
    lds_wait("a_s_y1", 20, 260, 12)
    a("s_cmp_eq_u32 s41, 0\ns_cbranch_scc1 a_s_y0")
    for i in range(4): a(f"ds_write_b128 v16, {vr(CA+4*i,4)} offset:{1024*i}")
    a("ds_write_b32 v22, v19 offset:264\ns_waitcnt lgkmcnt(0)")
    for i in range(16): a(f"v_mov_b32 v{CA+i}, v{CA+16+i}")
    a("s_branch a_s_y2\na_s_y0:")
    for i in range(4): a(f"ds_write_b128 v16, {vr(CA+16+4*i,4)} offset:{1024*i}")
    a("ds_write_b32 v22, v19 offset:264\na_s_y2:")
    lds_wait("a_s_y3", 20, 264, 12)
    for i in range(4): a(f"ds_read_b128 {vr(CU+4*i,4)}, v17 offset:{1024*i}")
    a("s_waitcnt lgkmcnt(0)")
    for i in range(16): a(f"v_add_f32 v{CA+i}, v{CA+i}, v{CU+i}")
    for i in range(8): a(f"v_cvt_pk_bf16_f32 v{CF+i}, v{CA+2*i}, v{CA+2*i+1}")
    for g in range(2): a(f"buffer_store_dwordx4 {vr(CF+4*g,4)}, v18, s[36:39], s44 offen offset:{1024*g} sc1")
    stamp("Aend")
    a("s_mov_b32 s62, s59\ns_branch a_end1")
    a(f"""a_end:
    s_mov_b32 s62, 0
    a_end1:
    v_mov_b32 v116, v0
    s_lshl_b32 s44, s3, 2
    s_add_u32 s44, s44, {L_FL}
    v_mov_b32 v4, s44
    v_mov_b32 v5, 0
    ds_write_b32 v4, v5 offset:400
    s_cmp_ge_u32 s3, 8
    s_cbranch_scc1 a_uf""")

S = [0, 16]; O = 32; NEG = 48; P = 64; KF = [72, 76]; TF = [80, 84]; VF = [88, 96]; Q = 104; QL = 108; QH = 110
vK, vT, vV = 112, 113, 114
def rdK(buf, t): a(f"ds_read_b128 {vr(KF[buf],4)}, v{vK} offset:{1024*t}")
def rdT(buf, q): a(f"ds_read2st64_b64 {vr(TF[buf],4)}, v{vT} offset0:{2*q} offset1:{2*q+1}")
def rdV(buf, t):
    a(f"""s_mov_b64 exec, s[18:19]
    ds_read_b128 {vr(VF[buf],4)}, v{vV} offset:{t*1152}
    ds_read_b128 {vr(VF[buf]+4,4)}, v{vV} offset:{t*1152+576}
    s_mov_b64 exec, -1""")
def qk_tail(t, tb):
    tt = t & 3
    a(f"v_mfma_f32_32x32x8_bf16 {vr(S[t&1],16)}, {vr(TF[tb]+2*(tt>>1),2)}, {vr(QH if tt&1 else QL,2)}, {vr(S[t&1],16)}")
def pv(t, half): a(f"v_mfma_f32_32x32x16_bf16 {vr(O,16)}, {vr(VF[t&1]+4*half,4)}, {vr(P+4*half,4)}, {vr(O,16)}")
def ex(t, r0, r1):
    for r in range(r0, r1): a(f"v_exp_f32 v{S[t&1]+r}, v{S[t&1]+r}")
def cv(t, c0, c1):
    for c in range(c0, c1): a(f"v_cvt_pk_bf16_f32 v{P+c}, v{S[t&1]+2*c}, v{S[t&1]+2*c+1}")
LATER = []
def att_run():
    tag = "b_f"
    def qk_main(t): a(f"v_mfma_f32_32x32x16_bf16 {vr(S[t&1],16)}, {vr(KF[t&1],4)}, {vr(Q,4)}, 0")
    rdK(0, 0); rdT(0, 0); rdK(1, 1); rdV(0, 0)
    a("s_mov_b32 s26, 0\ns_waitcnt lgkmcnt(3)")
    qk_main(0); qk_tail(0, 0)
    a(f"s_nop 7\ns_nop 3\n.p2align 6\n{tag}_loop:")
    def at(it, t, code):
        a(f"s_cmp_eq_u32 s26, {it}\ns_cbranch_scc1 {tag}_e{it}_{t}\n{tag}_n{it}_{t}:")
        def h():
            a(f"{tag}_e{it}_{t}:"); code(); a(f"s_branch {tag}_n{it}_{t}")
        LATER.append(h)
    def bar1():
        a("s_cmp_eq_u32 s62, 0\ns_cbranch_scc1 b_nyf\ns_waitcnt vmcnt(0)")
        flag_set("s62", 122)
        a("b_nyf:\ns_barrier\ns_setprio 3")
    def chk1():
        a(f"""v_mov_b32 v121, {L_FL}
        {tag}_f1:
        ds_read_b96 v[124:126], v121 offset:464
        s_waitcnt lgkmcnt(0)
        v_or3_b32 v124, v124, v125, v126
        v_cmp_eq_u32 vcc, 0, v124
        s_cbranch_vccz {tag}_f1""")
    def half():
        a(f"""s_lshl_b32 s27, s3, 2
        s_add_u32 s27, s27, {L_KT}
        v_mov_b32 v121, s27
        v_mov_b32 v122, s92
        ds_write_b32 v121, v122
        s_setprio 1""")
    EV = {(1,2): lambda: a("s_setprio 2"), (1,4): bar1, (0,5): chk1, (5,0): lambda: a("s_setprio 2"), (6,1): half, (7,5): lambda: a("s_setprio 0")}
    for t in range(8):
        for (it, tt), code in EV.items():
            if tt == t: at(it, t, code)
        def adv():
            if t == 7:
                a(f"""v_add_u32 v{vK}, 8192, v{vK}
                v_add_u32 v{vT}, 2048, v{vT}
                v_add_u32 v{vV}, 9216, v{vV}
                s_add_u32 s26, s26, 1
                s_cmp_lt_u32 s26, 8""")
        def rK():
            rdK(t&1, t+2)
            if (t & 3) == 1: rdT(((t>>2)+1)&1, (t>>2)+1)
        M1 = lambda: qk_main(t+1); M2 = lambda: pv(t-1, 1); M3 = lambda: qk_tail(t+1, ((t+1)>>2)&1); M4 = lambda: pv(t, 0)
        rV = lambda: rdV((t+1)&1, t+1)
        E = lambda i, j: ex(t, i, j); C = lambda i, j: cv(t, i, j)
        a("s_waitcnt lgkmcnt(0)")
        o = OPT.get("ord", "a")
        if o == "a":
            M1(); rK(); E(0,4); M2(); rV(); E(4,8); C(0,4); M3(); E(8,12); M4(); adv(); E(12,16); C(4,8)
        elif o == "b":
            M1(); rK(); M2(); rV(); E(0,8); C(0,4); M3(); E(8,9); M4(); adv(); E(9,16); C(4,8)
        elif o == "c":
            M1(); rK(); E(0,5); M2(); rV(); E(5,8); C(0,4); M3(); E(8,13); M4(); adv(); E(13,16); C(4,8)
        elif o == "d":
            M1(); rK(); E(0,4); C(0,1); M2(); rV(); E(4,8); C(1,3); M3(); E(8,12); C(3,5); E(12,13); M4(); adv(); E(13,16); C(5,8)
        elif o == "e":
            M1(); rK(); M2(); rV(); M3(); E(0,8); C(0,4); E(8,10); M4(); adv(); E(10,16); C(4,8)
        elif o == "f":
            M1(); E(0,2); rK(); E(2,4); M2(); E(4,6); rV(); E(6,8); C(0,4); M3(); E(8,12); M4(); adv(); E(12,16); C(4,8)
    a(f"s_cbranch_scc1 {tag}_loop")
    stamp("Bloop")
    a("s_nop 1")
    pv(7, 1)

def phaseB():
    TOUCH = "" if OPT.get("tch", "0") == "0" else f"""s_cmp_lg_u32 s3, 10
    s_cbranch_scc1 b_ntch
    v_lshlrev_b32 v121, 16, v116
    s_mov_b32 s12, {WS_O}
    buffer_load_dword v114, v121, s[36:39], s12 offen
    s_mov_b32 s12, {WS_FL}
    buffer_load_dword v113, v121, s[36:39], s12 offen
    buffer_load_dword v112, v121, s[32:35], 0 offen
    s_mov_b32 s12, {64 << 16}
    buffer_load_dword v111, v121, s[32:35], s12 offen
    b_ntch:"""
    a(f"""
    s_cmp_ge_u32 s3, 8
    s_cbranch_scc1 b_aux
    s_and_b32 s4, s2, 31                 ; head
    s_lshr_b32 s5, s2, 5
    s_lshl_b32 s5, s5, 3
    s_add_u32 s5, s5, s3
    s_and_b32 s7, s4, 3
    v_lshlrev_b32 v{vK}, 4, v116
    v_and_b32 v117, 31, v116
    v_lshlrev_b32 v119, 4, v116
    s_lshl_b32 s8, s3, 10
    s_add_u32 s8, s8, {L_Q}
    v_add_u32 v120, s8, v{vK}
    s_lshl_b32 s8, s3, 8
    s_add_u32 s8, s8, {L_Q + 8192}
    v_lshl_add_u32 v118, v117, 3, s8
    """)
    for i in range(16): a(f"v_mov_b32 v{O+i}, 0")
    for i in range(4): a(f"v_mov_b32 v{P+4+i}, 0")
    a(f"""v_and_b32 v121, 27, v116
    v_cmp_eq_u32 vcc, 18, v121
    v_mov_b32 v121, 0x3f803f80
    s_nop 0
    v_cndmask_b32 v{VF[0]}, 0, v121, vcc""")
    for i in range(1, 16): a(f"v_mov_b32 v{VF[0]+i}, v{VF[0]}")
    a(f"""
    v_lshlrev_b32 v{vT}, 3, v116
    v_add_u32 v{vT}, {L_KT}, v{vT}
    v_lshrrev_b32 v121, 5, v116
    v_mul_u32_u24 v121, 288, v121
    v_lshl_add_u32 v{vV}, v117, 4, v121
    v_add_u32 v{vV}, {L_V}, v{vV}
    s_mov_b32 s18, 0x3ffff
    s_mov_b32 s19, 0x3ffff
    s_mov_b32 s21, {f2u(18**-0.5 * 1.4426950408889634):#x}
    v_cmp_lt_u32 s[22:23], 31, v116
    s_setprio 3
    """)
    stamp("Bflag")
    a(f"""
    s_barrier
    ds_read_b128 {vr(Q,4)}, v120
    ds_read_b64 {vr(QL,2)}, v118
    s_waitcnt lgkmcnt(0)
    s_barrier
    """)
    for r in list(range(Q, Q+4)) + [QL, QL+1]:
        a(f"""v_lshlrev_b32 v121, 16, v{r}
        v_and_b32 v{r}, 0xffff0000, v{r}
        v_mul_f32 v121, s21, v121
        v_mul_f32 v{r}, s21, v{r}
        v_cvt_pk_bf16_f32 v{r}, v121, v{r}""")
    a(f"""
    s_cmp_eq_u32 s7, 1
    s_cselect_b32 vcc_lo, -1, 0
    s_mov_b32 vcc_hi, 0
    v_cndmask_b32 v{Q}, v{Q}, 0, vcc
    s_cmp_eq_u32 s7, 2
    s_cselect_b32 vcc_hi, -1, 0
    s_mov_b32 vcc_lo, 0
    v_cndmask_b32 v{Q+3}, v{Q+3}, 0, vcc
    s_cmp_eq_u32 s7, 3
    s_cselect_b64 vcc, -1, 0
    v_cndmask_b32 v{QL}, v{QL}, 0, vcc
    s_cmp_eq_u32 s7, 0
    s_cselect_b64 vcc, -1, 0
    v_cndmask_b32 v{QL+1}, v{QL+1}, 0, vcc
    v_cndmask_b32 v{QH}, 0, v{QL}, s[22:23]
    v_cndmask_b32 v{QH+1}, 0, v{QL+1}, s[22:23]
    v_cndmask_b32 v{QL}, v{QL}, 0, s[22:23]
    v_cndmask_b32 v{QL+1}, v{QL+1}, 0, s[22:23]
    """)
    stamp("Bgo")
    att_run()
    a(f"""
    s_mul_i32 s10, s5, {O_T}
    s_add_u32 s10, s10, {WS_O}
    s_lshl_b32 s11, s4, 10
    s_add_u32 s11, s11, s10
    s_lshl_b32 s12, s4, 7
    s_add_u32 s12, s12, s10
    s_add_u32 s12, s12, 32768
    s_lshl_b32 s59, s5, 5
    s_add_u32 s59, s59, s4
    s_mul_i32 s59, s59, {FS}
    s_add_u32 s59, s59, {FL_B}
    s_mov_b32 s27, {f2u(2.0**100):#x}
    v_lshlrev_b32 v127, 2, v116
    s_nop 1
    v_max3_f32 v121, abs(v{O}), abs(v{O+1}), abs(v{O+2})
    v_max3_f32 v121, abs(v{O+3}), abs(v{O+4}), v121
    v_max3_f32 v121, abs(v{O+5}), abs(v{O+6}), v121
    v_max3_f32 v121, abs(v{O+7}), abs(v{O+8}), v121
    v_add_f32 v122, v{O}, v{O+1}
    v_add_f32 v123, v{O+2}, v{O+3}
    v_add_f32 v124, v{O+4}, v{O+5}
    v_add_f32 v125, v{O+6}, v{O+7}
    v_add_f32 v126, v{O+8}, v{O+9}
    v_add_f32 v122, v122, v123
    v_add_f32 v124, v124, v125
    v_add_f32 v122, v122, v126
    v_add_f32 v122, v122, v124
    v_max3_f32 v121, abs(v{O+9}), v{O+10}, v121
    v_cmp_ngt_f32 vcc, s27, v121
    v_cmp_nle_f32 s[28:29], 1.0, v{O+10}
    v_cmp_u_f32 s[30:31], v122, v122
    s_or_b64 vcc, vcc, s[28:29]
    s_or_b64 vcc, vcc, s[30:31]
    s_cbranch_vccnz b_slow
    b_fin:
    v_rcp_f32 v121, v{O+10}
    s_nop 0
    """)
    for r in range(10): a(f"v_mul_f32 v{O+r}, v{O+r}, v121")
    for c in range(5): a(f"v_cvt_pk_bf16_f32 v{P+c}, v{O+2*c}, v{O+2*c+1}")
    a(f"""
    buffer_store_dwordx4 {vr(P,4)}, v119, s[36:39], s11 offen sc1
    s_mov_b32 exec_hi, 0
    buffer_store_dword v{P+4}, v127, s[36:39], s12 offen sc1
    s_mov_b32 exec_hi, -1
    v_mov_b32 v0, v116
    s_branch c_start
    """)
    for h in LATER: h()
    a(f"""
    b_aux:
    s_and_b32 s4, s2, 31
    s_mul_i32 s6, s4, 9
    s_lshr_b32 s6, s6, 2
    v_mov_b32 v8, {L_FL}
    s_setprio 3
    s_cmp_lg_u32 s3, 11
    s_cbranch_scc1 b_nopoll
    s_mul_i32 s9, s4, 18
    v_lshrrev_b32 v7, 5, v116
    v_lshl_add_u32 v9, v7, 1, s6
    v_add_u32 v10, 72, v9
    v_lshrrev_b32 v10, 3, v10
    v_and_b32 v11, 31, v116
    v_lshl_add_u32 v10, v10, 5, v11
    v_mul_u32_u24 v120, {FS}, v10
    v_mul_u32_u24 v10, 17, v7
    v_add_u32 v10, s9, v10
    v_add_u32 v10, 1152, v10
    v_lshrrev_b32 v10, 6, v10
    v_lshl_add_u32 v10, v10, 5, v11
    v_mul_u32_u24 v121, {FS}, v10
    v_lshrrev_b32 v10, 3, v9
    s_lshr_b32 s9, s2, 5
    s_lshl_b32 s9, s9, 2
    v_and_b32 v11, 3, v116
    v_add_u32 v11, s9, v11
    v_lshl_add_u32 v10, v10, 5, v11
    v_mul_u32_u24 v122, {FS}, v10
    s_cmp_ge_u32 s2, 224
    s_cselect_b32 s9, 16, 0
    v_add_u32 v9, s9, v8
    b_pw:
    s_sleep 1
    ds_read_b128 v[12:15], v9 offset:416
    s_waitcnt lgkmcnt(0)
    v_or_b32 v12, v12, v13
    v_or3_b32 v12, v12, v14, v15
    v_cmp_eq_u32 vcc, 0, v12
    s_cbranch_vccz b_pw
    """)
    if OPT.get("spw", "1") == "1":
        a("s_cmp_lt_u32 s2, 224\ns_cbranch_scc1 b_pw2_x")
        lds_wait("b_pw2", 8, 400, 12, True)
        a("b_pw2_x:")
    stamp("Xpw")
    flag_poll("b_pa", 3, 120)
    stamp("Xpoll")
    a(f"""
    v_mov_b32 v9, 0
    ds_write_b32 v8, v9 offset:244
    b_nopoll:
    s_bitcmp1_b32 s3, 0
    s_cbranch_scc1 b_ldv
    s_bfe_u32 s7, s4, 0x10001
    s_add_u32 s8, s6, s7
    s_lshl_b32 s8, s8, 9
    s_lshl_b32 s9, s6, 9
    s_mul_i32 s10, s7, {1024 - 8}
    s_sub_u32 s9, s9, s10
    s_add_u32 s9, s9, 1024
    v_lshlrev_b32 v118, 4, v116
    v_lshrrev_b32 v119, 1, v116
    v_lshlrev_b32 v119, 4, v119
    v_and_b32 v120, 1, v116
    v_lshl_add_u32 v119, v120, 2, v119
    s_lshr_b32 s15, s2, 5
    s_mul_i32 s15, s15, {8*QK_T}
    s_cmp_eq_u32 s3, 10
    s_cbranch_scc1 b_ldt
    """)
    def zflag(off):
        a(f"""s_mov_b32 s13, m0
        s_mov_b32 m0, {L_FL + off}
        v_mov_b32 v13, 0x7ffffff0
        s_mov_b64 exec, 1
        buffer_load_dword v13, s[36:39], 0 offen lds
        s_mov_b64 exec, -1
        s_mov_b32 m0, s13""")
    def stream(tag, op, vreg, sbase, lq, lk, step, fl):
        a(f"s_add_u32 s15, s15, {sbase}\ns_add_u32 s16, {sbase}, {72*512}\ns_mov_b32 m0, {lq}\ns_mov_b32 s12, 8")
        lds_wait(f"{tag}_go", 8, 244, 9, True)
        def loop(t, sreg):
            a(f"""{t}:
            {op} v{vreg}, s[36:39], {sreg} offen sc1 lds
            s_add_u32 m0, m0, {step}
            s_add_u32 {sreg}, {sreg}, {QK_T}
            s_sub_u32 s12, s12, 1
            s_cmp_lg_u32 s12, 0
            s_cbranch_scc1 {t}""")
        loop(f"{tag}_q", "s15")
        a(f"s_mov_b32 m0, {lk}\ns_mov_b32 s12, 8")
        loop(f"{tag}_1", "s16")
        stamp("Xiss")
        a("s_mov_b32 s12, 8\ns_waitcnt vmcnt(0)")
        stamp("Xland")
        a("s_barrier\ns_barrier")
        loop(f"{tag}_2", "s16")
        zflag(fl)
        a("s_mov_b32 s12, 48")
        loop(f"{tag}_3", "s16")
        a("s_branch b_lend")
    stream("b_k", "buffer_load_dwordx4", 118, "s8", L_Q, 0, 1024, 464)
    a("b_ldt:")
    stream("b_t", "buffer_load_dword", 119, "s9", L_Q + 8192, L_KT, 256, 468)
    a(f"""
    b_ldv:
    s_mov_b32 s10, {9216 - 288}
    """)
    for p in range(9):
        a(f"""v_add_u32 v10, {64*p}, v116
        v_mul_u32_u24 v11, 3641, v10
        v_lshrrev_b32 v11, 16, v11
        v_mul_lo_u32 v11, v11, s10
        v_lshl_add_u32 v{24+p}, v10, 4, v11""")
    a(f"""
    s_bfe_u32 s9, s3, 0x10001
    s_mul_i32 s8, s9, {32*9216}
    s_mul_i32 s10, s4, 288
    s_add_u32 s8, s8, s10
    s_add_u32 s8, s8, {WS_V}
    s_mul_i32 s9, s9, 9216
    s_add_u32 m0, s9, {L_V}
    s_mov_b32 s12, 0
    """)
    a("s_cmp_eq_u32 s3, 9\ns_cbranch_scc1 b_v_go\ns_barrier\ns_barrier\ns_branch b_v")
    lds_wait("b_v_go", 8, 244, 9, True)
    a("b_v:")
    for p in range(9): a(f"buffer_load_dwordx4 v{24+p}, s[36:39], s8 offen sc1 lds\ns_add_u32 m0, m0, {1024 if p < 8 else 1024 + 9216}\ns_nop 0")
    a(f"""
    s_add_u32 s8, s8, {64*9216}
    s_cmp_lg_u32 s12, 0
    s_cbranch_scc1 b_v1
    s_cmp_eq_u32 s3, 9
    s_cbranch_scc1 b_v0
    """)
    zflag(472)
    a(f"""
    s_branch b_v1
    b_v0:
    s_waitcnt vmcnt(0)
    s_barrier
    s_barrier
    b_v1:
    s_add_u32 s12, s12, 1
    s_cmp_lt_u32 s12, 4
    s_cbranch_scc1 b_v
    b_lend:
    s_waitcnt vmcnt(0)
    s_barrier
    s_setprio {OPT.get("aprio", 0)}
    """)
    srd(28, 94, 663552)
    srd(32, 96, 4718592)
    a(f"""
    s_lshr_b32 s12, s2, 3
    s_lshl_b32 s12, s12, 2
    s_add_u32 s12, s12, s3
    s_sub_u32 s12, s12, 8
    s_lshl_b32 s12, s12, 13
    v_lshlrev_b32 v121, 7, v116
    buffer_load_dword v115, v121, s[28:31], s12 offen
    {TOUCH}
    s_cmp_lg_u32 s3, {99 if ("nossm" in OPT or "noconv" in OPT) else 9}
    s_cbranch_scc1 b_noy
    s_mov_b32 s4, s2
    v_lshrrev_b32 v10, 3, v116
    v_and_b32 v9, 7, v116
    v_lshlrev_b32 v11, 12, v10
    v_lshl_add_u32 v11, v9, 4, v11
    v_xor_b32 v12, v10, v9
    v_lshlrev_b32 v12, 4, v12
    v_lshl_add_u32 v12, v9, 10, v12
    v_add_u32 v12, {L_BOUNCE}, v12
    s_mov_b32 s50, 0x05040100
    s_mov_b32 s51, 0x07060302
    """)
    for p in range(8): a(f"v_xor_b32 v{24+p}, {16*p}, v11")
    a(f"""
    b_y:
    s_lshr_b32 s5, s4, 5
    s_and_b32 s6, s4, 31                 ; sub
    s_lshl_b32 s7, s5, 7
    s_lshr_b32 s8, s6, 4
    s_add_u32 s7, s7, s8
    v_lshl_add_u32 v120, v116, 1, s7
    v_mul_u32_u24 v120, {FS}, v120
    v_add_u32 v120, {FL_Y}, v120
    """)
    flag_poll("b_py", 1, 120)
    a(f"""
    s_lshl_b32 s7, s5, 18
    s_lshl_b32 s8, s6, 7
    s_add_u32 s7, s7, s8
    s_add_u32 s7, s7, {WS_Y}
    s_mov_b32 m0, {L_BOUNCE}
    """)
    for p in range(8):
        a(f"s_nop 0\nbuffer_load_dwordx4 v{24+p}, s[36:39], s7 offen sc1 lds\ns_add_u32 m0, m0, 1024\ns_add_u32 s7, s7, 32768")
    a(f"""
    s_and_b32 s8, s6, 3
    s_lshl_b32 s8, s8, 3
    s_bfe_u32 s9, s6, 0x10002
    s_lshl_b32 s9, s9, 7
    s_add_u32 s8, s8, s9
    s_lshr_b32 s9, s6, 3
    s_lshl_b32 s9, s9, 9
    s_add_u32 s8, s8, s9
    v_add_u32 v17, s8, v10
    v_mul_u32_u24 v17, 2304, v17
    v_lshl_add_u32 v17, v9, 4, v17
    s_lshl_b32 s8, s5, 7
    s_add_u32 s8, s8, 1152
    s_waitcnt vmcnt(0)
    """)
    for j in range(8): a(f"ds_read_b128 {vr(32+4*j,4)}, v12 offset:{j*128}")
    a("s_waitcnt lgkmcnt(0)")
    transpose8(32, 64, 50, 51)
    for c in range(8):
        a(f"s_add_u32 s9, s8, {((c&3)*32 + (c>>2)*256)*2304}\nbuffer_store_dwordx4 {vr(64+4*c,4)}, v17, s[32:35], s9 offen {OPT.get('sty','sc1')}")
    a(f"""
    s_add_u32 s4, s4, 256
    s_cmp_lt_u32 s4, 288
    s_cbranch_scc1 b_y
    b_noy:
    s_setprio 0
    v_mov_b32 v0, v116
    s_lshr_b32 s5, s2, 5                 ; tn
    s_mul_i32 s17, s5, 192
    """)
    for t in range(3):
        a(f"""v_add_u32 v5, {64*t}, v0
        v_mul_u32_u24 v6, 5462, v5
        v_lshrrev_b32 v6, 16, v6             ; row
        v_mul_u32_u24 v7, 12, v6
        v_sub_u32 v7, v5, v7
        v_lshl_add_u32 v7, v7, 4, s17
        v_mul_u32_u24 v8, 1152, v6
        v_add_u32 v{12+t}, v8, v7
        v_and_b32 v9, 4, v6
        v_lshrrev_b32 v10, 3, v6
        v_lshl_add_u32 v9, v10, 1, v9
        v_bfe_u32 v10, v6, 1, 1
        v_add_u32 v9, v9, v10
        v_mul_u32_u24 v9, 18, v9
        v_and_b32 v10, 1, v6
        v_add3_u32 v9, v9, v10, 16
        v_mul_u32_u24 v9, 1152, v9
        v_add_u32 v{16+t}, v9, v7""")
    a(f"""
    s_sub_u32 s8, s3, 8
    s_mul_i32 s10, s8, {9*20736}
    s_mul_i32 s11, s8, {9*3072}
    s_add_u32 s12, s11, {L_V - 18*3072}
    s_cmp_ge_u32 s8, 2
    s_cselect_b32 m0, s12, s11
    s_mov_b32 s12, 20736
    s_mov_b32 s13, 0
    s_cmp_ge_u32 s2, 192
    s_cbranch_scc1 b_wend
    v_and_b32 v9, 7, v0
    v_lshlrev_b32 v9, 2, v9
    v_add_u32 v9, {L_KT}, v9
    s_setprio 3
    b_hw:
    s_sleep 4
    ds_read_b32 v10, v9
    s_waitcnt lgkmcnt(0)
    v_cmp_ne_u32 vcc, s92, v10
    s_cbranch_vccnz b_hw
    b_w:
    s_lshl_b32 s11, s8, 4
    s_add_u32 s11, s11, s13
    s_cmp_eq_u32 s11, {16 + 7}
    s_cselect_b32 m0, {L_KT + 6144}, m0
    s_cmp_lg_u32 s11, {48 + 5}
    s_cbranch_scc1 b_w1
    v_mov_b32 v12, v16
    v_mov_b32 v13, v17
    v_mov_b32 v14, v18
    s_mov_b32 s10, 0
    s_mov_b32 s12, {8*20736}
    b_w1:
    buffer_load_dwordx4 v12, s[28:31], s10 offen lds
    s_add_u32 m0, m0, 1024
    s_add_u32 s13, s13, 1
    buffer_load_dwordx4 v13, s[28:31], s10 offen lds
    s_add_u32 m0, m0, 1024
    s_nop 0
    buffer_load_dwordx4 v14, s[28:31], s10 offen lds
    s_add_u32 m0, m0, 1024
    s_add_u32 s10, s10, s12
    s_cmp_lt_u32 s13, 9
    s_cbranch_scc1 b_w
    b_wend:
    s_setprio 0
    s_mov_b32 s59, 0
    s_waitcnt vmcnt(0)
    """)

def phaseC():
    a("c_start:")
    srd(32, 96, 4718592)
    a(f"""
    s_and_b32 s4, s2, 7
    s_bfe_u32 s6, s2, 0x20003
    s_lshl_b32 s7, s4, 2
    s_add_u32 s7, s7, s6                 ; tm
    s_lshr_b32 s5, s2, 5                 ; tn
    s_mul_i32 s8, s3, 43
    s_lshr_b32 s8, s8, 7                 ; w/3
    s_mul_i32 s9, s8, 3
    s_sub_u32 s9, s3, s9                 ; tb = w%3
    s_lshr_b32 s13, s8, 1                ; kh
    s_and_b32 s14, s8, 1                 ; ta
    v_lshrrev_b32 v5, 5, v0
    v_bfe_u32 v6, v0, 2, 2
    v_lshl_add_u32 v6, v5, 2, v6
    v_mul_u32_u24 v4, 192, v6
    v_bfe_u32 v6, v0, 4, 1
    v_lshl_add_u32 v4, v6, 5, v4
    v_and_b32 v6, 3, v0
    v_lshl_add_u32 v4, v6, 3, v4
    s_lshl_b32 s17, s9, 6
    s_mul_i32 s18, s13, {L_V}
    s_add_u32 s17, s17, s18
    v_add_u32 v4, s17, v4
    s_mul_i32 s18, s13, {L_KT + 6144 - 16*3072}
    s_sub_u32 s18, {L_KT + 6144 - 16*3072}, s18
    v_add_u32 v9, s18, v4
    s_mul_i32 s18, s7, {64*FS}
    s_add_u32 s18, s18, {FL_B}
    v_mul_u32_u24 v120, {FS}, v0
    v_add_u32 v120, s18, v120
    s_waitcnt lgkmcnt(0)
    s_barrier
    """)
    stamp("Bbar")
    a("s_cmp_ge_u32 s2, 192\ns_cbranch_scc1 c_ntr")
    for k in range(18):
        va = 4 if k < 16 else 9
        a(f"ds_read_b64_tr_b16 {vr(128+4*k if k < 9 else 32+4*(k-9),2)}, v{va} offset:{k*3072}\nds_read_b64_tr_b16 {vr(130+4*k if k < 9 else 34+4*(k-9),2)}, v{va} offset:{k*3072+8*192}")
        if k % 4 == 3: a("s_waitcnt lgkmcnt(6)")
    a("c_ntr:\ns_cmp_eq_u32 s59, 0\ns_cbranch_scc1 c_nf\ns_waitcnt vmcnt(0)")
    stamp("Back")
    flag_set("s59", 2)
    a(f"""c_nf:
    s_cmp_ge_u32 s2, 192
    s_cbranch_scc1 c_idle
    v_lshlrev_b32 v2, 4, v0
    s_mul_i32 s17, s8, {18*1024}
    v_add_u32 v3, s17, v2
    v_and_b32 v11, 31, v0
    v_lshlrev_b32 v11, 2, v11
    v_lshl_add_u32 v11, v5, 9, v11
    v_add_u32 v11, s17, v11
    v_add_u32 v11, {14*1024}, v11
    s_lshl_b32 s15, s7, 1
    s_add_u32 s15, s15, s14
    s_mul_i32 s16, s15, {O_T}
    s_mul_i32 s18, s13, {18*1024}
    s_add_u32 s16, s16, s18
    s_lshl_b32 s18, s9, 10
    s_add_u32 s16, s16, s18
    s_add_u32 s16, s16, {WS_O}
    s_add_u32 m0, s17, s18
    s_cmp_lg_u32 s3, 8
    s_cbranch_scc1 c_np
    s_sleep {OPT.get("cslp", 0)}
    """)
    flag_poll("c_pb", 1, 120)
    a("c_np:\ns_waitcnt lgkmcnt(0)\ns_barrier")
    stamp("Cflag")
    for i in range(6):
        a("buffer_load_dwordx4 v2, s[36:39], s16 offen sc1 lds")
        if i < 5: a("s_add_u32 m0, m0, 3072\ns_add_u32 s16, s16, 3072")
    a(f"""
    v_and_b32 v6, 19, v0
    v_bfe_u32 v7, v0, 2, 1
    v_lshl_add_u32 v6, v7, 3, v6
    v_bfe_u32 v7, v0, 3, 1
    v_lshl_add_u32 v6, v7, 2, v6
    v_mul_u32_u24 v6, 400, v6
    v_lshl_add_u32 v6, v5, 4, v6
    s_mul_i32 s18, s8, {32*400}
    s_lshl_b32 s19, s9, 7
    s_add_u32 s18, s18, s19
    s_add_u32 s18, s18, 81920
    v_add_u32 v6, s18, v6
    s_lshl_b32 s18, s3, 6
    v_add_u32 v7, s18, v0
    v_mul_u32_u24 v8, 5462, v7
    v_lshrrev_b32 v8, 16, v8             ; row
    v_mul_u32_u24 v10, 12, v8
    v_sub_u32 v10, v7, v10
    v_mul_u32_u24 v7, 400, v8
    v_lshl_add_u32 v7, v10, 5, v7
    v_add_u32 v7, 81920, v7
    v_mul_u32_u24 v5, 2304, v8
    v_lshl_add_u32 v5, v10, 4, v5
    s_mul_i32 s17, s7, {64*2304}
    s_mul_i32 s18, s5, 192
    s_add_u32 s17, s17, s18
    """)
    wf = lambda k: vr(128+4*k if k < 9 else 32+4*(k-9), 4)
    NC = int(OPT.get("nc", 3)); CK = 18 // NC
    for c in range(NC):
        a(f"s_waitcnt vmcnt({6 - (c+1)*CK//3})\ns_barrier")
        if c == 0: stamp("Cfirst")
        ks = list(range(c*CK, (c+1)*CK))
        reg = lambda k: 72 + 4*(k % 6)
        plain = [k for k in ks if k < 14]; tail = [k for k in ks if k >= 14]
        for k in plain: a(f"ds_read_b128 {vr(reg(k),4)}, v3 offset:{k*1024}")
        if tail:
            a(f"s_cmp_eq_u32 s13, 1\ns_cbranch_scc1 c_tl{c}")
            for k in tail: a(f"ds_read_b128 {vr(reg(k),4)}, v3 offset:{k*1024}")
            a(f"s_branch c_tm{c}\nc_tl{c}:")
            for k in tail:
                a(f"""ds_read2_b32 {vr(reg(k),2)}, v11 offset0:0 offset1:32
                ds_read2_b32 {vr(reg(k)+2,2)}, v11 offset0:64 offset1:96
                v_add_u32 v11, 1024, v11""")
            a(f"s_waitcnt lgkmcnt(0)\nc_tm{c}:")
        for i, k in enumerate(ks):
            a(f"s_waitcnt lgkmcnt({CK-1-i})")
            a(f"v_mfma_f32_32x32x16_bf16 v[16:31], {wf(k)}, {vr(reg(k),4)}, " + ("0" if k == 0 else "v[16:31]"))
    stamp("Cmfma")
    a("s_nop 11")
    for rq in range(4): a(f"ds_write_b128 v6, {vr(16+4*rq,4)} offset:{32*rq}")
    a("s_waitcnt lgkmcnt(0)\ns_barrier")
    stamp("Cx")
    a(f"""ds_read_b128 v[32:35], v7
    ds_read_b128 v[36:39], v7 offset:16
    ds_read_b128 v[40:43], v7 offset:{64*400}
    ds_read_b128 v[44:47], v7 offset:{64*400+16}
    s_waitcnt lgkmcnt(0)""")
    for r in range(8): a(f"v_add_f32 v{32+r}, v{32+r}, v{40+r}")
    for c in range(4): a(f"v_cvt_pk_bf16_f32 v{48+c}, v{32+2*c}, v{32+2*c+1}")
    stamp("Ccvt")
    a(f"buffer_store_dwordx4 v[48:51], v5, s[32:35], s17 offen {OPT.get('sto','')}")
    stamp("Cst")
    a("k_done2:")
    if DIAG:
        a(f"""s_cmp_lg_u32 s2, {OPT.get("dwg", 0)}
        s_cbranch_scc1 k_done
        s_cmp_lg_u32 s3, {OPT.get("dw", 4)}
        s_cbranch_scc1 k_done
        s_waitcnt vmcnt(0)
        s_memrealtime s[74:75]
        s_waitcnt lgkmcnt(0)
        {"s_mov_b32 s72, s74" if DIAG == "end" else "s_mov_b32 s72, s70" if DIAG == "none" else ""}
        s_sub_u32 s76, s72, s70
        s_min_u32 s76, s76, 10000
        s_lshl_b32 s76, s76, 2
        s_add_u32 s76, s76, 5000
        dg_spin:
        s_memrealtime s[78:79]
        s_waitcnt lgkmcnt(0)
        s_sub_u32 s77, s78, s70
        s_cmp_lt_u32 s77, s76
        s_cbranch_scc1 dg_spin""")
    stamp_out()
    a(f"""k_done:
    s_endpgm
    c_idle:
    s_cmp_lg_u32 s2, 255
    s_cbranch_scc1 k_done2
    s_cmp_lg_u32 s3, 8
    s_cbranch_scc1 k_done2
    v_lshrrev_b32 v120, 5, v116
    v_lshlrev_b32 v120, 8, v120
    v_and_b32 v121, 31, v116
    v_add_u32 v120, v120, v121
    v_mul_u32_u24 v120, {FS}, v120
    v_add_u32 v120, {FL_B}, v120
    v_add_u32 v121, {512*FS}, v120
    v_add_u32 v122, {1024*FS}, v120
    v_add_u32 v123, {1536*FS}, v120
    """)
    flag_poll("c_pe", 4, 120)
    a(f"s_mov_b32 s6, {FL_E}")
    flag_set("s6", 2)
    a("s_branch k_done2")
    a(f"""
    b_slow:
    s_mul_i32 s6, s4, 9
    s_lshr_b32 s6, s6, 2
    s_bfe_u32 s7, s4, 0x10001
    s_add_u32 s8, s6, s7
    s_lshl_b32 s8, s8, 9
    s_add_u32 s8, s8, {72*512}
    s_lshl_b32 s9, s6, 9
    s_mul_i32 s13, s7, {1024 - 8}
    s_sub_u32 s9, s9, s13
    s_add_u32 s9, s9, {72*512 + 1024}
    s_mul_i32 s13, s4, 288
    s_add_u32 s13, s13, {WS_V}
    v_lshlrev_b32 v118, 4, v117
    v_lshrrev_b32 v120, 5, v116
    v_mul_u32_u24 v120, 9216, v120
    v_add_u32 v120, v120, v118
    v_mov_b32 v121, 0xff800000
    s_waitcnt lgkmcnt(0)
    """)
    def scores(c):
        a(f"""buffer_load_dwordx4 {vr(KF[0],4)}, v119, s[36:39], s14 offen sc1
        buffer_load_dwordx2 {vr(TF[0],2)}, v118, s[36:39], s15 offen sc1
        s_add_u32 s14, s14, {QK_T}
        s_add_u32 s15, s15, {QK_T}
        s_waitcnt vmcnt(0)
        v_mfma_f32_32x32x16_bf16 {vr(S[0],16)}, {vr(KF[0],4)}, {vr(Q,4)}, {c}
        v_mfma_f32_32x32x8_bf16 {vr(S[0],16)}, {vr(TF[0],2)}, {vr(QL,2)}, {vr(S[0],16)}
        s_nop 15""")
    a("s_mov_b32 s14, s8\ns_mov_b32 s15, s9\ns_mov_b32 s26, 0\nb_mx:")
    scores("0")
    for r in range(8): a(f"v_max3_f32 v121, v{S[0]+2*r}, v{S[0]+2*r+1}, v121")
    a(f"""
    s_add_u32 s26, s26, 1
    s_cmp_lt_u32 s26, 64
    s_cbranch_scc1 b_mx
    v_mov_b32 v122, v121
    s_nop 1
    v_permlane32_swap_b32 v121, v122
    s_nop 1
    v_max_f32 v121, v121, v122
    """)
    for i in range(16): a(f"v_sub_f32 v{NEG+i}, 0, v121\nv_mov_b32 v{O+i}, 0")
    a(f"""s_mov_b32 s14, s8
    s_mov_b32 s15, s9
    s_mov_b32 s26, 0
    b_sl:
    s_add_u32 s16, s13, {2*9216}
    s_mov_b64 exec, s[18:19]
    buffer_load_dwordx4 {vr(VF[0],4)}, v120, s[36:39], s13 offen sc1
    buffer_load_dwordx4 {vr(VF[0]+4,4)}, v120, s[36:39], s16 offen sc1
    s_mov_b64 exec, -1
    s_add_u32 s13, s13, {4*9216}""")
    scores(vr(NEG,16))
    ex(0, 0, 16); cv(0, 0, 8)
    a("s_nop 1")
    pv(0, 0); pv(0, 1)
    a("""s_add_u32 s26, s26, 1
    s_cmp_lt_u32 s26, 64
    s_cbranch_scc1 b_sl
    s_nop 15
    s_branch b_fin
    k_last:""")

def main():
    ref = open("concat_heads__mha_block__ssm_conv_s4d__prompt.s.ref").read().split("\n")
    head = [l for l in ref if l.startswith(";") and "@launch" not in l and "Override launch" not in l and "grid=ceil" not in l]
    head += ["; @launch grid=(256,1,1) block=(768,1,1) lds=163840"]
    a(f".text\n.globl {KN}\n.p2align 8\n.type {KN},@function\n{KN}:")
    if INSTR:
        for i in range(70, 90): a(f"s_mov_b32 s{i}, 0")
        a("s_memtime s[70:71]\ns_memrealtime s[86:87]")
    if DIAG: a("s_memrealtime s[70:71]")
    phaseA(); phaseB(); phaseC()
    desc = f""".section .rodata,"a"
.p2align 6
.amdhsa_kernel {KN}
  .amdhsa_next_free_vgpr 168
  .amdhsa_next_free_sgpr 102
  .amdhsa_accum_offset 168
  .amdhsa_group_segment_fixed_size 0
  .amdhsa_kernarg_size 104
  .amdhsa_user_sgpr_count 2
  .amdhsa_user_sgpr_kernarg_segment_ptr 1
  .amdhsa_system_sgpr_workgroup_id_x 1
.end_amdhsa_kernel
"""
    out = "\n".join(head) + "\n.amdgcn_target \"amdgcn-amd-amdhsa--gfx950\"\n" + a.text() + desc
    path = sys.argv[1] if len(sys.argv) > 1 and sys.argv[1].endswith(".s") else "concat_heads__mha_block__ssm_conv_s4d__prompt.s"
    open(path, "w").write(out)
main()
```

```python
import sys, struct
KN = "concat_heads__mha_block__ssm_conv_s4d__prompt_kernel"
def f2u(x): return struct.unpack("<I", struct.pack("<f", x))[0]
INSTR = "instr" in sys.argv
OPT = dict(x.split("=") for x in sys.argv if "=" in x)

WS_QK = 0; QK_T = 73728
WS_V = WS_QK + 64 * QK_T
WS_O = WS_V + 256 * 9216; O_T = 36864
WS_U = WS_O + 64 * O_T
WS_Y = WS_U + 576 * 4096
WS_FL = WS_Y + 576 * 4096
FS = 128
FL_A = 0; FL_S = 864 * FS; FL_Y = FL_S + 288 * FS; FL_B = FL_Y + 1152 * FS; FL_E = FL_B + 2048 * FS
WS_END = WS_FL + FL_E + FS
WS_ST = 24 << 20
L_FL = 155648
KC = 4156
KAREA = 8448
L_KT = 65536; L_V = 81920; L_BOUNCE = 155648; L_Q = 102400

class A:
    def __init__(s): s.l = []
    def __call__(s, t):
        for line in t.strip("\n").split("\n"):
            q = line.strip()
            if not q: continue
            s.l.append(q if q.endswith(":") else "    " + q)
    def text(s): return "\n".join(s.l) + "\n"
a = A()
def vr(b, n): return f"v[{b}:{b+n-1}]"
def srd(d, lo, size):
    a(f"""s_mov_b32 s{d}, s{lo}
    s_mov_b32 s{d+1}, s{lo+1}
    s_mov_b32 s{d+2}, {size}
    s_mov_b32 s{d+3}, 0x20000""")

SSETS = {"1": ["Aend", "Aack", "Bflag", "Bgo", "Bloop", "Back"],
         "2": ["Bgo", "Bloop", "Back", "Cflag", "Cfirst", "Cmfma"],
         "5": ["Bloop", "Bbar", "Cmfma", "Cx", "Ccvt", "Cst"],
         "4": ["Aack", "Xpw", "Xpoll", "Xiss", "Xland", "Bgo"],
         "3": ["Afirst", "Akgen", "Abuilt", "Aconv", "Aend", "Aack"]}
DIAG = OPT.get("diag")
def stamp(name):
    if DIAG == name: a("s_memrealtime s[72:73]")
    if INSTR and name in SSETS[OPT.get("sset", "1")]:
        i = SSETS[OPT.get("sset", "1")].index(name) + 1
        a(f"s_memtime s[{70+2*i}:{71+2*i}]")
def stamp_out():
    if not INSTR: return
    a(f"""s_waitcnt vmcnt(0)
    s_memtime s[84:85]
    s_memrealtime s[88:89]
    s_waitcnt lgkmcnt(0)
    s_mov_b64 exec, 1
    s_lshl_b32 s90, s2, 4
    s_add_u32 s90, s90, s3
    s_lshl_b32 s90, s90, 6
    s_add_u32 s90, s90, {WS_ST}
    v_mov_b32 v166, s90""")
    for i in range(10):
        a(f"v_mov_b32 v167, s{70+2*i}\nglobal_store_dword v166, v167, s[24:25] offset:{4*i}")

def transpose8(I, O, sLO, sHI):
    for c in range(8):
        for t in range(4):
            a(f"v_perm_b32 v{O+4*c+t}, v{I+4*(2*t+1)+(c>>1)}, v{I+4*(2*t)+(c>>1)}, s{sHI if c&1 else sLO}")

def flag_set(soff, t):
    if OPT.get("ffl", "0") == "1":
        a(f"""v_mbcnt_lo_u32_b32 v{t}, -1, 0
        v_mov_b32 v{t+1}, s92
        v_lshl_add_u32 v{t}, v{t}, 2, s93
        s_mov_b32 exec_hi, 0
        buffer_store_dword v{t+1}, v{t}, s[36:39], {soff} offen sc1
        s_mov_b32 exec_hi, -1""")
    else:
        a(f"""v_mov_b32 v{t}, {WS_FL}
        v_mov_b32 v{t+1}, s92
        s_mov_b64 exec, 1
        buffer_store_dword v{t+1}, v{t}, s[36:39], {soff} offen {OPT.get('sfl', 'sc1').replace('+', ' ')}
        s_mov_b64 exec, -1""")
def poll_issue(n, t):
    for i in range(n): a(f"buffer_load_dword v{t+4+i}, v{t+i}, s[36:39], s93 offen {OPT.get('pfl', 'sc1').replace('+', ' ')}")
def flag_poll(tag, n, t, issued=False):
    a("s_mov_b32 s91, 0")
    if issued: a(f"s_branch {tag}_c")
    a(f"{tag}:")
    poll_issue(n, t)
    a(f"{tag}_c:\ns_add_u32 s91, s91, 1\ns_waitcnt vmcnt(0)")
    for i in range(n): a(f"v_xor_b32 v{t+4+i}, s92, v{t+4+i}")
    for i in range(1, n): a(f"v_or_b32 v{t+4}, v{t+4}, v{t+4+i}")
    a(f"""v_cmp_ne_u32 vcc, 0, v{t+4}
    s_cbranch_vccz {tag}_x
    s_mov_b64 exec, vcc
    s_sleep {OPT.get("slp", 2)}
    s_cmp_lt_u32 s91, 0x80000
    s_cbranch_scc1 {tag}
    {tag}_x:
    s_mov_b64 exec, -1""")
def lds_wait(tag, vaddr, off, t, slp=False):
    a(f"""{tag}:
    {"s_sleep 1" if slp else ""}
    ds_read_b32 v{t}, v{vaddr} offset:{off}
    s_waitcnt lgkmcnt(0)
    v_cmp_eq_u32 vcc, 0, v{t}
    s_cbranch_vccz {tag}""")
def kargs():
    a(f"""s_waitcnt lgkmcnt(0)
    s_add_u32 s68, s24, {WS_FL + FL_E}
    s_addc_u32 s69, s25, 0
    s_load_dword s92, s[68:69], 0""")
    srd(36, 24, WS_END)

def ufetch(tag):
    a(f"""
    s_sub_u32 s43, s3, 8
    s_sub_u32 s45, 11, s3
    s_cmp_ge_u32 s2, 224
    s_cselect_b32 s43, s45, s43
    s_and_b32 s45, s43, 1
    s_lshl_b32 s40, s2, 1
    s_add_u32 s40, s40, s45
    s_add_u32 s46, s40, {512 - 448}
    s_lshl_b32 s44, s43, 13
    s_add_u32 s47, s44, {40960 - 16384}
    s_add_u32 s44, s44, 147968
    s_cmp_ge_u32 s43, 2
    s_cselect_b32 s40, s46, s40          ; channel
    s_cselect_b32 m0, s47, s44
    s_lshr_b32 s46, s40, 6
    s_mul_i32 s46, s46, {32*FS}
    s_add_u32 s46, s46, {FL_S}
    v_and_b32 v10, 31, v0
    v_mul_u32_u24 v10, {FS}, v10
    v_add_u32 v10, s46, v10
    v_lshlrev_b32 v12, 4, v0
    v_mov_b32 v13, 0x7ffffff0
    s_lshl_b32 s44, s40, 12
    s_add_u32 s44, s44, {WS_U}
    s_mov_b32 exec_hi, 0
    """)
    flag_poll(tag, 1, 10)
    for i in range(4): a(f"buffer_load_dwordx4 v12, s[36:39], s44 offen offset:{1024*i} sc1 lds")
    a(f"""s_lshl_b32 s43, s43, 2
    s_add_u32 m0, s43, {L_FL + 448}
    s_mov_b64 exec, 1
    buffer_load_dword v13, s[36:39], 0 offen lds
    s_mov_b64 exec, -1""")

def phaseA():
    mod9 = """
    s_mul_i32 s49, s48, 57
    s_lshr_b32 s49, s49, 9
    s_mul_i32 s49, s49, 9
    s_sub_u32 s48, s48, s49"""
    ROT = {"wg": "s_lshl_b32 s48, s40, 1\ns_add_u32 s48, s48, s41" + mod9, "none": "s_mov_b32 s48, 0",
           "wgb": "s_and_b32 s48, s27, 3\ns_mul_i32 s48, s48, 9\ns_lshr_b32 s48, s48, 2\ns_lshr_b32 s49, s27, 2\ns_mul_i32 s49, s49, 4\ns_add_u32 s48, s48, s49\ns_add_u32 s48, s48, s26" + mod9,
           "wgm": "s_and_b32 s48, s27, 3\ns_mul_i32 s48, s48, 9\ns_lshr_b32 s48, s48, 2\ns_add_u32 s48, s48, s26" + mod9,
           "two": "s_and_b32 s48, s27, 1\ns_lshr_b32 s49, s27, 2\ns_xor_b32 s48, s48, s49\ns_and_b32 s48, s48, 1\ns_lshl_b32 s48, s48, 2\ns_add_u32 s48, s48, s26" + mod9,
           "xcd": "s_and_b32 s48, s26, 3\ns_lshl_b32 s48, s48, 1\ns_lshr_b32 s49, s26, 2\ns_mul_i32 s49, s49, 5\ns_add_u32 s48, s48, s49" + mod9}[OPT.get("rot", "two")]
    a(f"""
    s_cmp_ge_u32 s2, 256
    s_cbranch_scc1 k_done
    v_lshrrev_b32 v1, 6, v0
    v_and_b32 v0, 63, v0
    v_readfirstlane_b32 s3, v1
    v_mov_b32 v23, {L_FL}
    s_cmp_lg_u32 s3, 9
    s_cbranch_scc1 a_noarm
    v_mov_b32 v14, -1
    v_mov_b32 v15, -1
    v_lshl_add_u32 v16, v0, 3, v23
    ds_write_b64 v16, v[14:15]
    s_waitcnt lgkmcnt(0)
    a_noarm:
    s_load_dwordx16 s[4:19], s[0:1], 0
    s_load_dwordx4 s[20:23], s[0:1], 64
    s_load_dwordx2 s[24:25], s[0:1], 96
    s_load_dwordx2 s[96:97], s[0:1], 80
    s_load_dwordx2 s[94:95], s[0:1], 16
    s_add_u32 s26, s3, 8
    s_sub_u32 s27, s3, 4
    s_cmp_lt_u32 s3, 4
    {"" if OPT.get("remap", "1") == "0" else "s_cselect_b32 s3, s26, s27           ; the waves that start first take the loader role (8..11)"}
    s_and_b32 s26, s2, 7
    s_lshr_b32 s27, s2, 3
    s_and_b32 s40, s26, 3
    s_lshl_b32 s40, s40, 2
    s_and_b32 s44, s27, 3
    s_add_u32 s40, s40, s44
    s_lshr_b32 s41, s26, 2
    s_mul_i32 s41, s41, 7
    s_lshr_b32 s44, s27, 2
    s_add_u32 s41, s41, s44
    s_mov_b32 s93, {WS_FL}
    s_cmp_ge_u32 s3, 8
    s_cbranch_scc1 a_aux
    s_cmp_lt_u32 s3, 4
    s_cbranch_scc1 a_ssm
    s_branch a_gemm
    a_aux:
    s_cmp_ge_u32 s27, 28
    s_cbranch_scc1 a_task
    {ROT}
    s_bfe_u32 s56, s3, 0x10001
    s_bitcmp1_b32 s3, 0
    s_cbranch_scc1 a_ldw
    v_lshrrev_b32 v4, 3, v0
    v_lshrrev_b32 v5, 2, v4
    v_lshlrev_b32 v5, 3, v5
    v_and_b32 v6, 3, v4
    v_add_u32 v5, v5, v6
    s_lshl_b32 s44, s40, 7
    v_add_u32 v5, s44, v5
    v_mul_u32_u24 v5, 1152, v5
    v_lshrrev_b32 v6, 1, v4
    v_and_b32 v7, 7, v0
    v_xor_b32 v6, v6, v7
    v_lshl_add_u32 v2, v6, 4, v5
    v_xor_b32 v6, 4, v6
    v_lshl_add_u32 v3, v6, 4, v5
    v_add_u32 v3, {4608-1024}, v3
    s_mov_b32 s50, 128
    s_mov_b32 s51, 18432
    s_mov_b32 s52, 0
    s_waitcnt lgkmcnt(0)
    s_mov_b32 s28, s4
    s_mov_b32 s29, s5
    s_mov_b32 s30, 2359296
    s_branch a_ld
    a_ldw:
    v_lshrrev_b32 v5, 4, v0
    v_mul_u32_u24 v2, 3456, v5
    v_lshlrev_b32 v5, 2, v5
    v_and_b32 v6, 15, v0
    v_xor_b32 v5, v5, v6
    v_lshl_add_u32 v2, v5, 4, v2
    s_lshl_b32 s44, s41, 8
    v_add_u32 v2, s44, v2
    v_add_u32 v3, {13824-1024}, v2
    s_mov_b32 s50, 221184
    s_mov_b32 s51, 27648
    s_mov_b32 s52, 16384
    s_waitcnt lgkmcnt(0)
    s_mov_b32 s28, s6
    s_mov_b32 s29, s7
    s_mov_b32 s30, 1990656
    a_ld:
    s_setprio {OPT.get("lprio", 0)}
    s_mov_b32 s31, 0x20000
    s_mul_i32 s57, s56, s51
    s_lshl_b32 s57, s57, 2
    s_lshl_b32 s56, s56, 13
    s_add_u32 s52, s52, s56
    s_and_b32 s58, s3, 3
    s_lshl_b32 s58, s58, 2
    s_add_u32 s58, s58, {L_FL}
    v_mov_b32 v4, 0x7ffffff0
    s_mov_b32 s53, 0
    """)
    kargs()
    a(f"""
    a_ld_loop:
    s_cmp_lt_u32 s53, 4
    s_cbranch_scc1 a_ld_go
    a_ld_poll:
    ds_read_b128 v[8:11], v23 offset:160
    s_waitcnt lgkmcnt(0)
    v_or_b32 v8, v8, v9
    v_or3_b32 v8, v8, v10, v11
    v_cmp_eq_u32 vcc, 0, v8
    s_cbranch_vccz a_ld_poll
    v_add_u32 v23, 16, v23
    a_ld_go:
    s_mul_i32 s47, s48, s50
    s_add_u32 s47, s47, s57
    s_and_b32 s55, s53, 3
    s_lshl_b32 s55, s55, 15
    s_add_u32 m0, s55, s52
    s_add_u32 s48, s48, 1
    """)
    for p in range(4):
        a("buffer_load_dwordx4 v2, s[28:31], s47 offen lds\nbuffer_load_dwordx4 v3, s[28:31], s47 offen offset:1024 lds")
        if p < 3: a("s_add_u32 m0, m0, 2048\ns_add_u32 s47, s47, s51")
    a(f"""
    s_cmp_eq_u32 s48, 9
    s_cselect_b32 s48, 0, s48
    s_cmp_lg_u32 s53, 0
    s_cbranch_scc1 a_ld_nb
    s_barrier
    a_ld_nb:
    s_mov_b32 m0, s58
    s_mov_b64 exec, 1
    buffer_load_dword v4, s[28:31], 0 offen lds
    s_mov_b64 exec, -1
    s_add_u32 s58, s58, 16
    s_add_u32 s53, s53, 1
    s_cmp_lt_u32 s53, 9
    s_cbranch_scc1 a_ld_loop
    """)
    a("v_mov_b32 v116, v0\ns_waitcnt lgkmcnt(0)\ns_add_u32 s92, s92, 0x9e3779b1\ns_cmp_ge_u32 s3, 10\ns_cbranch_scc1 b_aux\na_uf:")
    ufetch("a_pu")
    a("s_branch b_aux")
    CPF = "" if OPT.get("cpf", "1") == "0" else f"""
    ; read this kernel's own code once per XCD so that later instruction fetches find it in L2 (speed only)
    s_getpc_b64 s[44:45]
    a_pc:
    s_lshl_b32 s46, s27, 2
    s_add_u32 s46, s46, s3
    s_sub_u32 s46, s46, 4
    s_lshl_b32 s46, s46, 8
    s_min_u32 s46, s46, k_last - {KN} - 256
    s_sub_u32 s44, s44, a_pc - {KN}
    s_subb_u32 s45, s45, 0
    s_add_u32 s44, s44, s46
    s_addc_u32 s45, s45, 0
    v_lshlrev_b32 v60, 6, v0
    v_mov_b32 v61, s45
    v_add_co_u32 v60, vcc, s44, v60
    s_mov_b64 exec, 15
    s_nop 0
    v_addc_co_u32 v61, vcc, 0, v61, vcc
    global_load_dword v62, v[60:61], off
    s_mov_b64 exec, -1"""
    a(f"""
    a_gemm:
    {CPF}
    s_cmp_ge_u32 s27, 28
    s_cbranch_scc1 a_ssm
    s_barrier
    """)
    kargs()
    if OPT.get("tcha", "0") == "1":
        a(f"""s_cmp_lg_u32 s3, 5
        s_cbranch_scc1 a_ntch
        v_lshlrev_b32 v60, 18, v0
        buffer_load_dword v63, v60, s[36:39], 0 offen
        a_ntch:""")
    a(f"""
    s_sub_u32 s45, s3, 4
    s_and_b32 s42, s45, 1                ; mw
    s_lshr_b32 s43, s45, 1               ; nw
    s_lshl_b32 s58, s45, 2
    s_add_u32 s58, s58, {L_FL + 160}
    v_mov_b32 v22, 0x7ffffff0
    v_and_b32 v5, 31, v0
    v_lshrrev_b32 v6, 5, v0
    s_lshl_b32 s44, s42, 6
    v_add_u32 v7, s44, v5
    v_lshlrev_b32 v7, 7, v7
    v_bfe_u32 v5, v5, 1, 3
    v_xor_b32 v5, v5, v6
    """)
    for j in range(4):
        a(f"v_xor_b32 v20, {2*j}, v5\nv_lshl_add_u32 v{8+j}, v20, 4, v7\nv_add_u32 v{12+j}, 0x10000, v{8+j}")
    a(f"""
    v_bfe_u32 v5, v0, 2, 2
    v_lshl_add_u32 v7, v6, 3, v5
    v_lshlrev_b32 v7, 8, v7
    v_bfe_u32 v20, v0, 4, 1
    v_lshl_add_u32 v7, v20, 5, v7
    v_and_b32 v20, 1, v0
    v_lshl_add_u32 v7, v20, 4, v7
    v_and_b32 v20, 2, v0
    v_lshl_add_u32 v7, v20, 2, v7
    v_add_u32 v7, 16384, v7
    s_lshl_b32 s44, s43, 1
    v_xor_b32 v5, s44, v5
    v_lshl_add_u32 v16, v5, 6, v7
    v_xor_b32 v5, 1, v5
    v_lshl_add_u32 v17, v5, 6, v7
    v_add_u32 v18, 0x10000, v16
    v_add_u32 v19, 0x10000, v17
    s_setprio {OPT.get('gprio', 2)}
    s_waitcnt lgkmcnt(0)
    s_add_u32 s92, s92, 0x9e3779b1
    s_lshl_b32 s46, s40, 1
    s_add_u32 s46, s46, s42
    s_lshl_b32 s47, s41, 1
    s_add_u32 s47, s47, s43
    s_lshl_b32 s59, s47, 5
    s_add_u32 s59, s59, s46
    s_mul_i32 s59, s59, {FS}
    s_cmp_ge_u32 s41, 9
    s_cbranch_scc1 a_gemm_v""")
    FB = [24, 40, 128]
    def reads(stage, j, fb):
        slot = stage & 3; hi = slot >> 1; base = (slot & 1) * 32768
        return [f"ds_read_b128 {vr(fb,4)}, v{8+4*hi+j} offset:{base}",
                f"ds_read_b64_tr_b16 {vr(fb+8,2)}, v{16+2*hi} offset:{base+j*4096}",
                f"ds_read_b64_tr_b16 {vr(fb+10,2)}, v{16+2*hi} offset:{base+j*4096+1024}",
                f"ds_read_b64_tr_b16 {vr(fb+12,2)}, v{17+2*hi} offset:{base+j*4096}",
                f"ds_read_b64_tr_b16 {vr(fb+14,2)}, v{17+2*hi} offset:{base+j*4096+1024}",
                f"ds_read_b128 {vr(fb+4,4)}, v{8+4*hi+j} offset:{base+4096}"]
    def mfmas(fb, vor, first):
        out = []
        for (ta, tb) in ((0,0),(0,1),(1,0),(1,1)):
            acc = vr(64 + 16*(2*ta+tb), 16); X = vr(fb+4*ta, 4); W = vr(fb+8+4*tb, 4)
            out.append(f"v_mfma_f32_32x32x16_bf16 {acc}, " + (f"{X}, {W}" if vor else f"{W}, {X}") + ", " + ("0" if first else acc))
        return out
    def check(tag, st, first_read):
        if not first_read:
            a(f"""v_or_b32 v56, v56, v57
            v_or3_b32 v56, v56, v58, v59
            v_cmp_eq_u32 vcc, 0, v56
            s_cbranch_vccnz {tag}_ok""")
        a(f"""{tag}_p:
        ds_read_b128 v[56:59], v23 offset:{16*st}
        s_waitcnt lgkmcnt(0)
        v_or_b32 v56, v56, v57
        v_or3_b32 v56, v56, v58, v59
        v_cmp_eq_u32 vcc, 0, v56
        s_cbranch_vccz {tag}_p
        {tag}_ok:""")
    def mainloop(vor):
        check(f"a_c{int(vor)}_0", 0, True)
        stamp("Afirst")
        a("\n".join(reads(0, 0, FB[0]) + reads(0, 1, FB[1])))
        for g in range(36):
            st, j = divmod(g, 4)
            a(f"s_waitcnt lgkmcnt({6 if g < 35 else 0})")
            m = mfmas(FB[g % 3], vor, g == 0)
            a(m[0])
            if j == 1 and st < 8: a(f"ds_read_b128 v[56:59], v23 offset:{16*(st+1)}")
            if j == 2 and st < 8: check(f"a_c{int(vor)}_{st+1}", st+1, False)
            if j == 3 and st < 5: a(f"s_add_u32 m0, s58, {16*st}\ns_mov_b64 exec, 1\nbuffer_load_dword v22, s[36:39], 0 offen lds\ns_mov_b64 exec, -1")
            rd = reads((g+2)//4, (g+2)%4, FB[(g+2) % 3]) if g + 2 < 36 else []
            a("\n".join(rd[:3])); a(m[1]); a("\n".join(rd[3:])); a(m[2]); a(m[3])
        stamp("Aconv")
    a(f"""
    s_mul_i32 s44, s46, {2*QK_T}
    s_lshl_b32 s45, s47, 12
    s_add_u32 s44, s44, s45
    s_add_u32 s45, s44, {QK_T}
    v_lshlrev_b32 v2, 4, v0
    """)
    mainloop(False)
    for ta in range(2):
        for tb in range(2):
            acc = 64 + 16*(2*ta+tb); o = 24 + 8*(2*ta+tb)
            if ta + tb == 0: a("s_nop 8")
            for r in range(8): a(f"v_cvt_pk_bf16_f32 v{o+r}, v{acc+2*r}, v{acc+2*r+1}")
            for hh in range(2): a(f"buffer_store_dwordx4 {vr(o+4*hh,4)}, v2, s[36:39], s{44+ta} offen offset:{tb*2048+hh*1024} sc1")
    a(f"""s_branch a_gemm_end
    a_gemm_v:
    v_and_b32 v5, 19, v0
    v_bfe_u32 v6, v0, 2, 1
    v_lshl_add_u32 v5, v6, 3, v5
    v_bfe_u32 v6, v0, 3, 1
    v_lshl_add_u32 v5, v6, 2, v5         ; feature inside the tile
    v_lshrrev_b32 v6, 5, v0
    v_mul_u32_u24 v6, 9216, v6
    v_lshl_add_u32 v2, v5, 4, v6
    s_sub_u32 s45, s47, 18
    s_lshl_b32 s45, s45, 10
    s_mul_i32 s44, s46, {8*9216}
    s_add_u32 s44, s44, s45
    s_add_u32 s44, s44, {WS_V}
    """)
    mainloop(True)
    a("s_cmp_ge_u32 s47, 27\ns_cbranch_scc1 a_end")
    for ta in range(2):
        for tb in range(2):
            acc = 64 + 16*(2*ta+tb); o = 24 + 8*(2*ta+tb)
            if ta + tb == 0: a("s_nop 8")
            for r in range(8): a(f"v_cvt_pk_bf16_f32 v{o+r}, v{acc+2*r}, v{acc+2*r+1}")
            for hh in range(2): a(f"s_add_u32 s45, s44, {(4*ta+2*hh)*9216}\nbuffer_store_dwordx4 {vr(o+4*hh,4)}, v2, s[36:39], s45 offen offset:{tb*512} sc1")
    a("a_gemm_end:")
    if OPT.get("early", "0") == "1":
        a(f"""s_lshl_b32 s44, s3, 2
        s_add_u32 s44, s44, {L_FL}
        v_mov_b32 v4, s44
        v_mov_b32 v5, 0
        ds_write_b32 v4, v5 offset:400""")
    stamp("Aend")
    a("s_waitcnt vmcnt(0)")
    stamp("Aack")
    flag_set("s59", 2)
    a("s_branch a_end")

    a(f"""
    a_task:
    s_sub_u32 s44, s2, 224
    s_lshr_b32 s45, s44, 1               ; B
    s_and_b32 s46, s44, 1                ; es
    s_sub_u32 s47, 16, s3
    s_lshl_b32 s59, s47, 5
    s_add_u32 s59, s59, s44
    s_mul_i32 s59, s59, {FS}
    s_add_u32 s59, s59, {FL_S}
    s_lshl_b32 s48, s45, 3
    s_add_u32 s48, s48, s46
    s_mul_i32 s48, s48, {16*1152}
    s_lshl_b32 s49, s47, 7
    s_add_u32 s48, s48, s49
    v_lshrrev_b32 v10, 3, v0
    v_and_b32 v9, 7, v0
    v_mul_u32_u24 v11, 1152, v10
    v_lshl_add_u32 v11, v9, 4, v11
    v_xor_b32 v12, v10, v9
    v_lshlrev_b32 v12, 4, v12
    v_lshl_add_u32 v12, v9, 10, v12
    s_sub_u32 s49, 11, s3
    s_lshl_b32 s49, s49, 14
    s_add_u32 s49, s49, 57344
    v_add_u32 v12, s49, v12
    s_mov_b32 m0, s49
    v_lshlrev_b32 v17, 15, v10
    v_lshl_add_u32 v17, v9, 4, v17
    s_lshl_b32 s60, s47, 18
    s_lshl_b32 s45, s45, 7
    s_lshl_b32 s46, s46, 11
    s_add_u32 s60, s60, s45
    s_add_u32 s60, s60, s46
    s_add_u32 s60, s60, {WS_U}
    s_mov_b32 s50, 0x05040100
    s_mov_b32 s51, 0x07060302
    """)
    for p in range(8): a(f"v_xor_b32 v{24+p}, {16*p}, v11")
    kargs()
    srd(28, 10, 2359296)
    for i in range(3):
        if i == 1: a("s_barrier")
        if i == 2: a("s_cmp_lg_u32 s3, 8\ns_cbranch_scc1 a_t2")
        for p in range(8):
            a(f"""s_add_u32 s49, s48, {((p>>1)*32 + (p&1)*8)*1152}
            buffer_load_dwordx4 v{24+p}, s[28:31], s49 offen lds
            s_add_u32 m0, m0, 1024""")
        a("s_sub_u32 s48, s48, 512")
    a("s_waitcnt vmcnt(16)\ns_branch a_t3\na_t2:\ns_waitcnt vmcnt(8)\na_t3:")
    for i in range(3):
        if i == 1: a("s_waitcnt vmcnt(8)")
        for j in range(8): a(f"ds_read_b128 {vr(32+4*j,4)}, v12 offset:{i*8192 + j*128}")
        a("s_waitcnt lgkmcnt(0)")
        if i == 0: a("s_add_u32 s92, s92, 0x9e3779b1")
        O_ = [64, 96, 128][i]
        transpose8(32, O_, 50, 51)
        if i:
            a("s_waitcnt vmcnt(0)")
            flag_set("s59", 2)
            a(f"s_sub_u32 s59, s59, {128*FS}")
        for c in range(8):
            a(f"s_add_u32 s49, s60, {c*4096}\nbuffer_store_dwordx4 {vr(O_+4*c,4)}, v17, s[36:39], s49 offen sc1")
        a(f"s_sub_u32 s60, s60, {4<<18}")
        if i == 1: a("s_cmp_lg_u32 s3, 8\ns_cbranch_scc1 a_gemm_end")
    a("s_branch a_gemm_end")

    L2E = f2u(1.4426950408889634); L2E_LO = f2u(1.4426950408889634 - struct.unpack("<f", struct.pack("<I", L2E))[0])
    LN2 = f2u(0.6931471805599453)
    z0 = list(range(9)) + [14,15,16,20,21,24,25]
    z1 = [9,9,10,11,11,11,12,13,13,17,18,19,22,23,26,27]
    def pack(z, lo):
        v = 0
        for r in range(lo, lo+8): v |= (z[r]-r) << (4*(r-lo))
        return v
    a(f"""
    a_ssm:
    s_and_b32 s41, s3, 1                 ; half
    s_bfe_u32 s45, s3, 0x10001
    s_lshl_b32 s40, s2, 1
    s_add_u32 s40, s40, s45
    s_add_u32 s46, s40, {512 - 448}
    s_mul_i32 s42, s45, {KAREA}
    s_add_u32 s47, s42, 16384
    s_add_u32 s42, s42, 131072
    s_cmp_ge_u32 s3, 4
    s_cselect_b32 s40, s46, s40          ; channel
    s_cselect_b32 s42, s47, s42
    s_lshr_b32 s43, s3, 1
    s_lshl_b32 s43, s43, 13
    s_add_u32 s47, s43, {40960 - 16384}
    s_add_u32 s43, s43, 147968
    s_cmp_ge_u32 s3, 4
    s_cselect_b32 s43, s47, s43
    s_lshl_b32 s45, s40, 7
    s_lshl_b32 s46, s41, 6
    s_add_u32 s45, s45, s46
    v_add_u32 v2, s45, v0
    v_lshlrev_b32 v2, 1, v2
    s_lshl_b32 s45, s40, 1
    v_mov_b32 v3, s45
    s_waitcnt lgkmcnt(0)
    global_load_ushort v4, v3, s[20:21]
    global_load_ushort v6, v2, s[12:13]
    global_load_ushort v7, v2, s[14:15]
    global_load_ushort v8, v2, s[16:17]
    global_load_ushort v9, v2, s[18:19]
    global_load_ushort v5, v3, s[22:23]
    s_barrier
    """)
    kargs()
    a(f"""
    v_and_b32 v14, 31, v0
    v_and_b32 v16, 3, v14
    v_lshrrev_b32 v17, 3, v14
    v_lshl_add_u32 v16, v17, 2, v16
    v_mov_b32 v17, {pack(z0,0):#x}
    v_mov_b32 v18, {pack(z0,8):#x}
    v_mov_b32 v19, {pack(z1,0):#x}
    v_mov_b32 v20, {pack(z1,8):#x}
    v_cmp_lt_u32 vcc, 7, v16
    v_and_b32 v21, 4, v14
    v_and_b32 v22, 7, v16
    v_cndmask_b32 v17, v17, v18, vcc
    v_cndmask_b32 v19, v19, v20, vcc
    v_cmp_ne_u32 vcc, 0, v21
    v_lshlrev_b32 v22, 2, v22
    v_lshrrev_b32 v15, 5, v0
    v_cndmask_b32 v17, v17, v19, vcc
    v_bfe_u32 v17, v17, v22, 4
    v_add_u32 v17, v17, v16
    v_lshlrev_b32 v15, 2, v15
    s_mov_b32 s50, 0x3f80
    """)
    for (zr, dst) in ((14, 40), (17, 48)):
        a(f"""v_and_b32 v18, 1, v{zr}
        v_lshlrev_b32 v18, 4, v18
        v_lshlrev_b32 v18, v18, s50
        v_lshrrev_b32 v19, 1, v{zr}
        v_sub_u32 v19, v19, v15""")
        for d in range(8): a(f"v_cmp_eq_u32 s[{52+2*d}:{53+2*d}], {8*(d>>2) + (d&3)}, v19")
        for d in range(8): a(f"v_cndmask_b32 v{dst+d}, 0, v18, s[{52+2*d}:{53+2*d}]")
    a(f"""
    s_mov_b32 s50, {L2E:#x}
    s_mov_b32 s51, {L2E_LO:#x}
    s_mov_b32 s52, {LN2:#x}
    s_mov_b32 s53, {f2u(248.0):#x}
    s_mov_b32 s54, {f2u(8.0):#x}
    s_waitcnt vmcnt(0) lgkmcnt(0)
    s_add_u32 s92, s92, 0x9e3779b1
    """)
    stamp("Afirst")
    if "nossm" in OPT: a("s_branch a_end")
    def exp_bf16(x, t, lo):
        a(f"""v_mul_f32 v{t}, s50, v{x}
        v_fma_f32 v{lo}, v{x}, s50, -v{t}
        v_exp_f32 v{t}, v{t}
        v_fma_f32 v{lo}, v{x}, s51, v{lo}
        v_mul_f32 v{lo}, s52, v{lo}
        v_fma_f32 v{t}, v{t}, v{lo}, v{t}
        v_cvt_pk_bf16_f32 v{t}, v{t}, v{t}
        v_lshlrev_b32 v{x}, 16, v{t}""")
    for r in range(4, 10): a(f"v_lshlrev_b32 v{r}, 16, v{r}")
    exp_bf16(4, 20, 21)
    exp_bf16(6, 20, 21)
    a("""
    v_mul_f32 v6, v6, v4
    v_mul_f32 v7, v7, v4
    v_mul_f32 v8, v8, v4
    v_mul_f32 v9, v9, v4
    v_mul_f32 v6, s50, v6                ; -Re(z)*log2e
    v_mul_f32 v7, 0.15915494, v7         ; Im(z)/(2pi)
    v_add_f32 v8, v8, v8
    v_mul_f32 v9, -2.0, v9
    """)
    DL = [8, 1, 2, 4, 248]
    DS = {8: "s54", 1: "1.0", 2: "2.0", 4: "4.0", 248: "s53"}
    MR = {d: 24 + 2*i for i, d in enumerate(DL)}
    def mkE(d):
        a(f"""v_mul_f32 v21, {DS[d]}, v6
        v_mul_f32 v22, {DS[d]}, v7
        v_exp_f32 v21, -v21
        v_fract_f32 v22, v22
        v_cos_f32 v20, v22
        v_sin_f32 v22, v22
        v_mul_f32 v{MR[d]}, v21, v20
        v_mul_f32 v{MR[d]+1}, v21, v22""")
    P = 56; Dt = 88; YO = 120; ACC = 152
    R = lambda z: 34 + 2*(z % 3)
    def chain(dl, conj, mid=None):
        n = "-" if conj else ""; p = "" if conj else "-"
        for z in range(len(dl) + 1):
            cur, nxt = R(z), R(z+1)
            if z < len(dl):
                W = MR[dl[z]]
                a(f"v_mul_f32 v{nxt}, v{cur}, v{W}\nv_mul_f32 v{nxt+1}, v{cur+1}, v{W}")
            if z & 1: a(f"v_cvt_pk_bf16_f32 v{P+(z>>1)}, v{R(z-1)}, v{cur}")
            if z < len(dl): a(f"v_fma_f32 v{nxt}, {p}v{cur+1}, v{W+1}, v{nxt}\nv_fma_f32 v{nxt+1}, {n}v{cur}, v{W+1}, v{nxt+1}")
            if z & 1: a(f"v_cvt_pk_bf16_f32 v{P+16+(z>>1)}, v{R(z-1)+1}, v{cur+1}")
            if mid and z == 4: mid()
    def swaps(comp):
        for pr in range(2):
            for t in range(4): a(f"v_permlane32_swap_b32 v{P+16*comp+8*pr+t}, v{P+16*comp+8*pr+4+t}")
    def tmfma(comp, sel):
        for blk in range(2): a(f"v_mfma_f32_32x32x16_bf16 {vr(Dt+16*blk,16)}, {vr(P+16*comp+4*blk,4)}, {vr(sel,4)}, 0")
        for blk in range(2): a(f"v_mfma_f32_32x32x16_bf16 {vr(Dt+16*blk,16)}, {vr(P+16*comp+8+4*blk,4)}, {vr(sel+4,4)}, {vr(Dt+16*blk,16)}")
    def tcvt(dst):
        for i in range(16): a(f"v_cvt_pk_bf16_f32 v{dst+i}, v{Dt+2*i}, v{Dt+2*i+1}")
    mkE(8)
    a(f"v_mov_b32 v{R(0)}, 1.0\nv_mov_b32 v{R(0)+1}, 0")
    chain([8]*31, False)
    mkE(1); swaps(0); swaps(1); tmfma(0, 40); mkE(2); mkE(4); tcvt(YO); tmfma(1, 40); mkE(248)
    a(f"v_mov_b32 v{R(0)}, v8\nv_mov_b32 v{R(0)+1}, v9")
    deltas = [1]*8 + [248] + [2]*4 + [248] + [4]*2 + [248] + [4]*2 + [248, 8, 248, 8, 248, 8, 248, 8]
    chain(deltas, True, mid=lambda: tcvt(YO+16))
    a("v_lshl_add_u32 v21, s41, 6, v0\nv_cmp_eq_u32 vcc, 0, v21\nv_sub_u32 v21, 63, v0")
    swaps(0); swaps(1); tmfma(0, 48)
    a(f"""
    v_cndmask_b32 v5, 0, v5, vcc
    v_lshl_add_u32 v21, v21, 4, s42
    s_lshl_b32 s46, s3, 4
    v_add_u32 v22, s46, v23
    v_xor_b32 v20, 16, v22               ; partner's
    v_mov_b32 v19, 0
    s_nop 5
    """)
    tcvt(P); tmfma(1, 48)
    for i in range(4): a(f"v_mfma_f32_32x32x16_bf16 {vr(ACC,16)}, {vr(P+4*i,4)}, {vr(YO+4*i,4)}, " + ("0" if i == 0 else vr(ACC,16)))
    a("s_nop 7")
    tcvt(P+16)
    a("s_nop 1")
    for i in range(4, 8): a(f"v_mfma_f32_32x32x16_bf16 {vr(ACC,16)}, {vr(P+4*i,4)}, {vr(YO+4*i,4)}, {vr(ACC,16)}")
    stamp("Akgen")
    if "noconv" in OPT: a("s_branch a_end")
    CA = 24; CU = 68; CF = 132
    for i in range(44): a(f"v_mov_b32 v{CA+i}, 0")
    for i in range(32): a(f"v_mov_b32 v{CU+i}, 0")
    a(f"""
    v_and_b32 v12, 31, v0
    v_lshrrev_b32 v13, 5, v0             ; h
    v_lshlrev_b32 v16, 5, v12
    v_lshl_add_u32 v16, v13, 4, v16
    s_lshl_b32 s45, s41, 7
    s_sub_u32 s44, s43, s45
    s_sub_u32 s44, s44, 96
    v_add_u32 v16, s44, v16
    s_lshl_b32 s45, s41, 2
    v_lshlrev_b32 v17, 3, v13
    v_sub_u32 v17, v17, v12
    v_lshlrev_b32 v17, 1, v17            ; 2*(8h - b)
    v_and_b32 v18, 1, v12
    v_cmp_eq_u32 s[56:57], 1, v18        ; b odd
    v_xor_b32 v18, 1, v18
    v_mul_u32_u24 v18, {KC + 2}, v18
    s_lshl_b32 s46, s41, 8
    s_sub_u32 s46, s42, s46
    s_add_u32 s46, s46, {62 + 120*32}
    v_add3_u32 v17, v17, v18, s46
    v_subrev_u32 v18, 2048, v17
    v_add_f32 v{ACC}, v{ACC}, v5
    v_lshl_add_u32 v133, v0, 2, s42
    s_add_u32 s46, s43, 4096
    v_lshl_add_u32 v138, v0, 4, s46
    """)
    for G in range(4): a(f"v_add_u32 v{134+G}, {(3-G)*1024 + KC}, v21")
    a(f"""
    s_cmp_ge_u32 s27, 28
    s_cbranch_scc1 a_s_g2
    a_s_w2:
    ds_read_b128 v[8:11], v23 offset:128
    s_waitcnt lgkmcnt(0)
    v_or_b32 v8, v8, v9
    v_or3_b32 v8, v8, v10, v11
    v_cmp_eq_u32 vcc, 0, v8
    s_cbranch_vccnz a_s_g2
    s_sleep 1
    s_branch a_s_w2
    a_s_g2:
    s_setprio 3
    s_cmp_eq_u32 s41, 0
    s_cbranch_scc1 a_s_even
    """)
    d = lambda r: f"v{ACC+r}" if r < 16 else f"v{r-24}"
    units = [
      (0, 0, [(7,6),(5,4),(3,2),(1,0)]), (0, 1, [(8,7),(6,5),(4,3),(2,1)]),
      (1, 0, [(11,11),(10,10),(10,9),(9,9)]), (1, 1, [(11,11),(11,10),(10,10),(9,9)]),
      (2, 0, [(13,13),(13,32),(12,12),(12,12)]), (2, 1, [(13,13),(13,13),(32,12),(12,12)]),
      (3, 0, [(15,15),(15,33),(14,14),(14,14)]), (3, 1, [(15,15),(15,15),(33,14),(14,14)])]
    def build(us):
        for ui in us:
            G, cp, prs = units[ui]; o = 100 + 4*ui
            for t, (lo, hi) in enumerate(prs): a(f"v_cvt_pk_bf16_f32 v{o+t}, {d(lo)}, {d(hi)}")
            if cp == 0: a(f"ds_write_b128 v21, {vr(o,4)} offset:{(3-G)*1024}")
            else: a(f"ds_write2_b32 v{134+G}, v{o}, v{o+1} offset0:0 offset1:1\nds_write2_b32 v{134+G}, v{o+2}, v{o+3} offset0:2 offset1:3")
    for i in range(3): a(f"ds_write_b128 v138, {vr(ACC+4*i,4)} offset:{1024*i}")
    a("ds_write_b32 v22, v19 offset:256")
    lds_wait("a_s_o0", 20, 256, 8)
    a("ds_read_b128 v[140:143], v21\ns_waitcnt lgkmcnt(0)")
    for i in range(4): a(f"v_add_f32 v{ACC+12+i}, v{ACC+12+i}, v{140+i}")
    a(f"v_cndmask_b32 v8, {d(12)}, {d(13)}, s[56:57]\nv_cndmask_b32 v9, {d(14)}, {d(15)}, s[56:57]")
    build([4, 5, 6, 7])
    a(f"s_branch a_s_u\na_s_even:\nds_write_b128 v21, {vr(ACC+12,4)}\nds_write_b32 v22, v19 offset:256")
    lds_wait("a_s_e0", 20, 256, 8)
    for i in range(3): a(f"ds_read_b128 {vr(140+4*i,4)}, v138 offset:{1024*i}")
    a("v_cmp_eq_u32 vcc, 0, v0\ns_waitcnt lgkmcnt(0)")
    for i in range(12): a(f"v_add_f32 v{ACC+i}, v{ACC+i}, v{140+i}")
    build([0, 1, 2, 3])
    a(f"""
    v_cvt_pk_bf16_f32 v132, {d(0)}, v19
    s_mov_b64 exec, 0x7fff
    ds_write_b32 v133, v19 offset:4096   ; zeros behind both copies; the odd copy ends with K[0]
    s_mov_b64 exec, 0xffff
    v_cndmask_b32 v132, 0, v132, vcc
    ds_write_b32 v133, v132 offset:{4096 + KC}
    s_mov_b64 exec, -1
    a_s_u:
    ds_write_b32 v22, v19 offset:268
    s_setprio 0
    s_lshr_b32 s46, s3, 1
    s_lshl_b32 s46, s46, 2
    v_add_u32 v9, s46, v23
    """)
    lds_wait("a_s_uw", 9, 448, 8)
    for q in range(4):
        a(f"s_add_u32 s46, s45, {q}\ns_lshl_b32 exec_lo, -1, s46\ns_mov_b32 exec_hi, exec_lo")
        for es in range(2): a(f"ds_read_b128 {vr(CU+8*q+4*es,4)}, v16 offset:{es*2048 + (3-q)*32}")
        a("s_mov_b64 exec, -1")
        for es in range(2): a(f"ds_read_b128 {vr(CU+32+8*q+4*es,4)}, v16 offset:{es*2048 + 1024 + (3-q)*32}")
        if q == 2: a("s_waitcnt lgkmcnt(4)")
    lds_wait("a_s_o1", 20, 268, 8)
    stamp("Abuilt")
    steps = [(k, q, es) for k in range(4) for q in range(4) for es in range(2)]
    def frd(i):
        k, q, es = steps[i]; b = CF + 8*(i & 3); o = (6 - 2*q + es) * 8
        if q == 0 and es == 0 and k: a("v_subrev_u32 v17, 512, v17\nv_subrev_u32 v18, 512, v18")
        a(f"""ds_read2_b32 {vr(b,2)}, v17 offset0:{o} offset1:{o+1}
        ds_read2_b32 {vr(b+2,2)}, v17 offset0:{o+2} offset1:{o+3}
        ds_read2_b32 {vr(b+4,2)}, v18 offset0:{o} offset1:{o+1}
        ds_read2_b32 {vr(b+6,2)}, v18 offset0:{o+2} offset1:{o+3}""")
    for i in range(3): frd(i)
    for i, (k, q, es) in enumerate(steps):
        b = CF + 8*(i & 3); U0 = vr(CU+8*q+4*es, 4); U1 = vr(CU+32+8*q+4*es, 4)
        lo = vr(CA+4*k, 16); hi = vr(CA+16+4*k, 16)
        w = f"s_waitcnt lgkmcnt({4*min(2, 31-i)})"
        a(w)
        if q == 0 and es == 0 and k: a("s_nop 9")
        a(f"v_mfma_f32_32x32x16_bf16 {lo}, {U0}, {vr(b,4)}, {lo}")
        a(f"v_mfma_f32_32x32x16_bf16 {hi}, {U1}, {vr(b,4)}, {hi}")
        if i + 3 < 32: frd(i+3)
        a(f"v_mfma_f32_32x32x16_bf16 {hi}, {U0}, {vr(b+4,4)}, {hi}")
    stamp("Aconv")
    a(f"""
    ds_write_b32 v22, v19 offset:260
    s_lshl_b32 s46, s41, 12
    s_add_u32 s46, s46, s42
    v_lshl_add_u32 v16, v0, 4, s46
    s_lshl_b32 s46, s41, 13
    s_sub_u32 s46, 4096, s46
    v_add_u32 v17, s46, v16              ; partner's
    v_lshlrev_b32 v18, 4, v0
    s_lshl_b32 s44, s40, 12
    s_lshl_b32 s45, s41, 11
    s_add_u32 s44, s44, s45
    s_add_u32 s44, s44, {WS_Y}
    s_lshl_b32 s59, s40, 1
    s_add_u32 s59, s59, s41
    s_mul_i32 s59, s59, {FS}
    s_add_u32 s59, s59, {FL_Y}
    """)
    lds_wait("a_s_y1", 20, 260, 12)
    a("s_cmp_eq_u32 s41, 0\ns_cbranch_scc1 a_s_y0")
    for i in range(4): a(f"ds_write_b128 v16, {vr(CA+4*i,4)} offset:{1024*i}")
    a("ds_write_b32 v22, v19 offset:264\ns_waitcnt lgkmcnt(0)")
    for i in range(16): a(f"v_mov_b32 v{CA+i}, v{CA+16+i}")
    a("s_branch a_s_y2\na_s_y0:")
    for i in range(4): a(f"ds_write_b128 v16, {vr(CA+16+4*i,4)} offset:{1024*i}")
    a("ds_write_b32 v22, v19 offset:264\na_s_y2:")
    lds_wait("a_s_y3", 20, 264, 12)
    for i in range(4): a(f"ds_read_b128 {vr(CU+4*i,4)}, v17 offset:{1024*i}")
    a("s_waitcnt lgkmcnt(0)")
    for i in range(16): a(f"v_add_f32 v{CA+i}, v{CA+i}, v{CU+i}")
    for i in range(8): a(f"v_cvt_pk_bf16_f32 v{CF+i}, v{CA+2*i}, v{CA+2*i+1}")
    for g in range(2): a(f"buffer_store_dwordx4 {vr(CF+4*g,4)}, v18, s[36:39], s44 offen offset:{1024*g} sc1")
    stamp("Aend")
    a("s_mov_b32 s62, s59\ns_branch a_end1")
    a(f"""a_end:
    s_mov_b32 s62, 0
    a_end1:
    v_mov_b32 v116, v0
    s_lshl_b32 s44, s3, 2
    s_add_u32 s44, s44, {L_FL}
    v_mov_b32 v4, s44
    v_mov_b32 v5, 0
    ds_write_b32 v4, v5 offset:400
    s_cmp_ge_u32 s3, 8
    s_cbranch_scc1 a_uf""")

S = [0, 16]; O = 32; NEG = 48; P = 64; KF = [72, 76]; TF = [80, 84]; VF = [88, 96]; Q = 104; QL = 108; QH = 110
vK, vT, vV = 112, 113, 114
def rdK(buf, t): a(f"ds_read_b128 {vr(KF[buf],4)}, v{vK} offset:{1024*t}")
def rdT(buf, q): a(f"ds_read2st64_b64 {vr(TF[buf],4)}, v{vT} offset0:{2*q} offset1:{2*q+1}")
def rdV(buf, t):
    a(f"""s_mov_b64 exec, s[18:19]
    ds_read_b128 {vr(VF[buf],4)}, v{vV} offset:{t*1152}
    ds_read_b128 {vr(VF[buf]+4,4)}, v{vV} offset:{t*1152+576}
    s_mov_b64 exec, -1""")
def qk_tail(t, tb):
    tt = t & 3
    a(f"v_mfma_f32_32x32x8_bf16 {vr(S[t&1],16)}, {vr(TF[tb]+2*(tt>>1),2)}, {vr(QH if tt&1 else QL,2)}, {vr(S[t&1],16)}")
def pv(t, half): a(f"v_mfma_f32_32x32x16_bf16 {vr(O,16)}, {vr(VF[t&1]+4*half,4)}, {vr(P+4*half,4)}, {vr(O,16)}")
def ex(t, r0, r1):
    for r in range(r0, r1): a(f"v_exp_f32 v{S[t&1]+r}, v{S[t&1]+r}")
def cv(t, c0, c1):
    for c in range(c0, c1): a(f"v_cvt_pk_bf16_f32 v{P+c}, v{S[t&1]+2*c}, v{S[t&1]+2*c+1}")
LATER = []
def att_run():
    tag = "b_f"
    def qk_main(t): a(f"v_mfma_f32_32x32x16_bf16 {vr(S[t&1],16)}, {vr(KF[t&1],4)}, {vr(Q,4)}, 0")
    rdK(0, 0); rdT(0, 0); rdK(1, 1); rdV(0, 0)
    a("s_mov_b32 s26, 0\ns_waitcnt lgkmcnt(3)")
    qk_main(0); qk_tail(0, 0)
    a(f"s_nop 7\ns_nop 3\n.p2align 6\n{tag}_loop:")
    def at(it, t, code):
        a(f"s_cmp_eq_u32 s26, {it}\ns_cbranch_scc1 {tag}_e{it}_{t}\n{tag}_n{it}_{t}:")
        def h():
            a(f"{tag}_e{it}_{t}:"); code(); a(f"s_branch {tag}_n{it}_{t}")
        LATER.append(h)
    def bar1():
        a("s_cmp_eq_u32 s62, 0\ns_cbranch_scc1 b_nyf\ns_waitcnt vmcnt(0)")
        flag_set("s62", 122)
        a("b_nyf:\ns_barrier\ns_setprio 3")
    def chk1():
        a(f"""v_mov_b32 v121, {L_FL}
        {tag}_f1:
        ds_read_b96 v[124:126], v121 offset:464
        s_waitcnt lgkmcnt(0)
        v_or3_b32 v124, v124, v125, v126
        v_cmp_eq_u32 vcc, 0, v124
        s_cbranch_vccz {tag}_f1""")
    def half():
        a(f"""s_lshl_b32 s27, s3, 2
        s_add_u32 s27, s27, {L_KT}
        v_mov_b32 v121, s27
        v_mov_b32 v122, s92
        ds_write_b32 v121, v122
        s_setprio 1""")
    EV = {(1,2): lambda: a("s_setprio 2"), (1,4): bar1, (0,5): chk1, (5,0): lambda: a("s_setprio 2"), (6,1): half, (7,5): lambda: a("s_setprio 0")}
    for t in range(8):
        for (it, tt), code in EV.items():
            if tt == t: at(it, t, code)
        def adv():
            if t == 7:
                a(f"""v_add_u32 v{vK}, 8192, v{vK}
                v_add_u32 v{vT}, 2048, v{vT}
                v_add_u32 v{vV}, 9216, v{vV}
                s_add_u32 s26, s26, 1
                s_cmp_lt_u32 s26, 8""")
        def rK():
            rdK(t&1, t+2)
            if (t & 3) == 1: rdT(((t>>2)+1)&1, (t>>2)+1)
        M1 = lambda: qk_main(t+1); M2 = lambda: pv(t-1, 1); M3 = lambda: qk_tail(t+1, ((t+1)>>2)&1); M4 = lambda: pv(t, 0)
        rV = lambda: rdV((t+1)&1, t+1)
        E = lambda i, j: ex(t, i, j); C = lambda i, j: cv(t, i, j)
        a("s_waitcnt lgkmcnt(0)")
        o = OPT.get("ord", "a")
        if o == "a":
            M1(); rK(); E(0,4); M2(); rV(); E(4,8); C(0,4); M3(); E(8,12); M4(); adv(); E(12,16); C(4,8)
        elif o == "b":
            M1(); rK(); M2(); rV(); E(0,8); C(0,4); M3(); E(8,9); M4(); adv(); E(9,16); C(4,8)
        elif o == "c":
            M1(); rK(); E(0,5); M2(); rV(); E(5,8); C(0,4); M3(); E(8,13); M4(); adv(); E(13,16); C(4,8)
        elif o == "d":
            M1(); rK(); E(0,4); C(0,1); M2(); rV(); E(4,8); C(1,3); M3(); E(8,12); C(3,5); E(12,13); M4(); adv(); E(13,16); C(5,8)
        elif o == "e":
            M1(); rK(); M2(); rV(); M3(); E(0,8); C(0,4); E(8,10); M4(); adv(); E(10,16); C(4,8)
        elif o == "f":
            M1(); E(0,2); rK(); E(2,4); M2(); E(4,6); rV(); E(6,8); C(0,4); M3(); E(8,12); M4(); adv(); E(12,16); C(4,8)
    a(f"s_cbranch_scc1 {tag}_loop")
    stamp("Bloop")
    a("s_nop 1")
    pv(7, 1)

def phaseB():
    TOUCH = "" if OPT.get("tch", "0") == "0" else f"""s_cmp_lg_u32 s3, 10
    s_cbranch_scc1 b_ntch
    v_lshlrev_b32 v121, 16, v116
    s_mov_b32 s12, {WS_O}
    buffer_load_dword v114, v121, s[36:39], s12 offen
    s_mov_b32 s12, {WS_FL}
    buffer_load_dword v113, v121, s[36:39], s12 offen
    buffer_load_dword v112, v121, s[32:35], 0 offen
    s_mov_b32 s12, {64 << 16}
    buffer_load_dword v111, v121, s[32:35], s12 offen
    b_ntch:"""
    a(f"""
    s_cmp_ge_u32 s3, 8
    s_cbranch_scc1 b_aux
    s_and_b32 s4, s2, 31                 ; head
    s_lshr_b32 s5, s2, 5
    s_lshl_b32 s5, s5, 3
    s_add_u32 s5, s5, s3
    s_and_b32 s7, s4, 3
    v_lshlrev_b32 v{vK}, 4, v116
    v_and_b32 v117, 31, v116
    v_lshlrev_b32 v119, 4, v116
    s_lshl_b32 s8, s3, 10
    s_add_u32 s8, s8, {L_Q}
    v_add_u32 v120, s8, v{vK}
    s_lshl_b32 s8, s3, 8
    s_add_u32 s8, s8, {L_Q + 8192}
    v_lshl_add_u32 v118, v117, 3, s8
    """)
    for i in range(16): a(f"v_mov_b32 v{O+i}, 0")
    for i in range(4): a(f"v_mov_b32 v{P+4+i}, 0")
    a(f"""v_and_b32 v121, 27, v116
    v_cmp_eq_u32 vcc, 18, v121
    v_mov_b32 v121, 0x3f803f80
    s_nop 0
    v_cndmask_b32 v{VF[0]}, 0, v121, vcc""")
    for i in range(1, 16): a(f"v_mov_b32 v{VF[0]+i}, v{VF[0]}")
    a(f"""
    v_lshlrev_b32 v{vT}, 3, v116
    v_add_u32 v{vT}, {L_KT}, v{vT}
    v_lshrrev_b32 v121, 5, v116
    v_mul_u32_u24 v121, 288, v121
    v_lshl_add_u32 v{vV}, v117, 4, v121
    v_add_u32 v{vV}, {L_V}, v{vV}
    s_mov_b32 s18, 0x3ffff
    s_mov_b32 s19, 0x3ffff
    s_mov_b32 s21, {f2u(18**-0.5 * 1.4426950408889634):#x}
    v_cmp_lt_u32 s[22:23], 31, v116
    s_setprio 3
    """)
    stamp("Bflag")
    a(f"""
    s_barrier
    ds_read_b128 {vr(Q,4)}, v120
    ds_read_b64 {vr(QL,2)}, v118
    s_waitcnt lgkmcnt(0)
    s_barrier
    """)
    for r in list(range(Q, Q+4)) + [QL, QL+1]:
        a(f"""v_lshlrev_b32 v121, 16, v{r}
        v_and_b32 v{r}, 0xffff0000, v{r}
        v_mul_f32 v121, s21, v121
        v_mul_f32 v{r}, s21, v{r}
        v_cvt_pk_bf16_f32 v{r}, v121, v{r}""")
    a(f"""
    s_cmp_eq_u32 s7, 1
    s_cselect_b32 vcc_lo, -1, 0
    s_mov_b32 vcc_hi, 0
    v_cndmask_b32 v{Q}, v{Q}, 0, vcc
    s_cmp_eq_u32 s7, 2
    s_cselect_b32 vcc_hi, -1, 0
    s_mov_b32 vcc_lo, 0
    v_cndmask_b32 v{Q+3}, v{Q+3}, 0, vcc
    s_cmp_eq_u32 s7, 3
    s_cselect_b64 vcc, -1, 0
    v_cndmask_b32 v{QL}, v{QL}, 0, vcc
    s_cmp_eq_u32 s7, 0
    s_cselect_b64 vcc, -1, 0
    v_cndmask_b32 v{QL+1}, v{QL+1}, 0, vcc
    v_cndmask_b32 v{QH}, 0, v{QL}, s[22:23]
    v_cndmask_b32 v{QH+1}, 0, v{QL+1}, s[22:23]
    v_cndmask_b32 v{QL}, v{QL}, 0, s[22:23]
    v_cndmask_b32 v{QL+1}, v{QL+1}, 0, s[22:23]
    """)
    stamp("Bgo")
    att_run()
    a(f"""
    s_mul_i32 s10, s5, {O_T}
    s_add_u32 s10, s10, {WS_O}
    s_lshl_b32 s11, s4, 10
    s_add_u32 s11, s11, s10
    s_lshl_b32 s12, s4, 7
    s_add_u32 s12, s12, s10
    s_add_u32 s12, s12, 32768
    s_lshl_b32 s59, s5, 5
    s_add_u32 s59, s59, s4
    s_mul_i32 s59, s59, {FS}
    s_add_u32 s59, s59, {FL_B}
    s_mov_b32 s27, {f2u(2.0**100):#x}
    v_lshlrev_b32 v127, 2, v116
    s_nop 1
    v_max3_f32 v121, abs(v{O}), abs(v{O+1}), abs(v{O+2})
    v_max3_f32 v121, abs(v{O+3}), abs(v{O+4}), v121
    v_max3_f32 v121, abs(v{O+5}), abs(v{O+6}), v121
    v_max3_f32 v121, abs(v{O+7}), abs(v{O+8}), v121
    v_add_f32 v122, v{O}, v{O+1}
    v_add_f32 v123, v{O+2}, v{O+3}
    v_add_f32 v124, v{O+4}, v{O+5}
    v_add_f32 v125, v{O+6}, v{O+7}
    v_add_f32 v126, v{O+8}, v{O+9}
    v_add_f32 v122, v122, v123
    v_add_f32 v124, v124, v125
    v_add_f32 v122, v122, v126
    v_add_f32 v122, v122, v124
    v_max3_f32 v121, abs(v{O+9}), v{O+10}, v121
    v_cmp_ngt_f32 vcc, s27, v121
    v_cmp_nle_f32 s[28:29], 1.0, v{O+10}
    v_cmp_u_f32 s[30:31], v122, v122
    s_or_b64 vcc, vcc, s[28:29]
    s_or_b64 vcc, vcc, s[30:31]
    s_cbranch_vccnz b_slow
    b_fin:
    v_rcp_f32 v121, v{O+10}
    s_nop 0
    """)
    for r in range(10): a(f"v_mul_f32 v{O+r}, v{O+r}, v121")
    for c in range(5): a(f"v_cvt_pk_bf16_f32 v{P+c}, v{O+2*c}, v{O+2*c+1}")
    a(f"""
    buffer_store_dwordx4 {vr(P,4)}, v119, s[36:39], s11 offen sc1
    s_mov_b32 exec_hi, 0
    buffer_store_dword v{P+4}, v127, s[36:39], s12 offen sc1
    s_mov_b32 exec_hi, -1
    v_mov_b32 v0, v116
    s_branch c_start
    """)
    for h in LATER: h()
    a(f"""
    b_aux:
    s_and_b32 s4, s2, 31
    s_mul_i32 s6, s4, 9
    s_lshr_b32 s6, s6, 2
    v_mov_b32 v8, {L_FL}
    s_setprio 3
    s_cmp_lg_u32 s3, 11
    s_cbranch_scc1 b_nopoll
    s_mul_i32 s9, s4, 18
    v_lshrrev_b32 v7, 5, v116
    v_lshl_add_u32 v9, v7, 1, s6
    v_add_u32 v10, 72, v9
    v_lshrrev_b32 v10, 3, v10
    v_and_b32 v11, 31, v116
    v_lshl_add_u32 v10, v10, 5, v11
    v_mul_u32_u24 v120, {FS}, v10
    v_mul_u32_u24 v10, 17, v7
    v_add_u32 v10, s9, v10
    v_add_u32 v10, 1152, v10
    v_lshrrev_b32 v10, 6, v10
    v_lshl_add_u32 v10, v10, 5, v11
    v_mul_u32_u24 v121, {FS}, v10
    v_lshrrev_b32 v10, 3, v9
    s_lshr_b32 s9, s2, 5
    s_lshl_b32 s9, s9, 2
    v_and_b32 v11, 3, v116
    v_add_u32 v11, s9, v11
    v_lshl_add_u32 v10, v10, 5, v11
    v_mul_u32_u24 v122, {FS}, v10
    s_cmp_ge_u32 s2, 224
    s_cselect_b32 s9, 16, 0
    v_add_u32 v9, s9, v8
    b_pw:
    s_sleep 1
    ds_read_b128 v[12:15], v9 offset:416
    s_waitcnt lgkmcnt(0)
    v_or_b32 v12, v12, v13
    v_or3_b32 v12, v12, v14, v15
    v_cmp_eq_u32 vcc, 0, v12
    s_cbranch_vccz b_pw
    """)
    if OPT.get("spw", "1") == "1":
        a("s_cmp_lt_u32 s2, 224\ns_cbranch_scc1 b_pw2_x")
        lds_wait("b_pw2", 8, 400, 12, True)
        a("b_pw2_x:")
    stamp("Xpw")
    flag_poll("b_pa", 3, 120)
    stamp("Xpoll")
    a(f"""
    v_mov_b32 v9, 0
    ds_write_b32 v8, v9 offset:244
    b_nopoll:
    s_bitcmp1_b32 s3, 0
    s_cbranch_scc1 b_ldv
    s_bfe_u32 s7, s4, 0x10001
    s_add_u32 s8, s6, s7
    s_lshl_b32 s8, s8, 9
    s_lshl_b32 s9, s6, 9
    s_mul_i32 s10, s7, {1024 - 8}
    s_sub_u32 s9, s9, s10
    s_add_u32 s9, s9, 1024
    v_lshlrev_b32 v118, 4, v116
    v_lshrrev_b32 v119, 1, v116
    v_lshlrev_b32 v119, 4, v119
    v_and_b32 v120, 1, v116
    v_lshl_add_u32 v119, v120, 2, v119
    s_lshr_b32 s15, s2, 5
    s_mul_i32 s15, s15, {8*QK_T}
    s_cmp_eq_u32 s3, 10
    s_cbranch_scc1 b_ldt
    """)
    def zflag(off):
        a(f"""s_mov_b32 s13, m0
        s_mov_b32 m0, {L_FL + off}
        v_mov_b32 v13, 0x7ffffff0
        s_mov_b64 exec, 1
        buffer_load_dword v13, s[36:39], 0 offen lds
        s_mov_b64 exec, -1
        s_mov_b32 m0, s13""")
    def stream(tag, op, vreg, sbase, lq, lk, step, fl):
        a(f"s_add_u32 s15, s15, {sbase}\ns_add_u32 s16, {sbase}, {72*512}\ns_mov_b32 m0, {lq}\ns_mov_b32 s12, 8")
        lds_wait(f"{tag}_go", 8, 244, 9, True)
        def loop(t, sreg):
            a(f"""{t}:
            {op} v{vreg}, s[36:39], {sreg} offen sc1 lds
            s_add_u32 m0, m0, {step}
            s_add_u32 {sreg}, {sreg}, {QK_T}
            s_sub_u32 s12, s12, 1
            s_cmp_lg_u32 s12, 0
            s_cbranch_scc1 {t}""")
        loop(f"{tag}_q", "s15")
        a(f"s_mov_b32 m0, {lk}\ns_mov_b32 s12, 8")
        loop(f"{tag}_1", "s16")
        stamp("Xiss")
        a("s_mov_b32 s12, 8\ns_waitcnt vmcnt(0)")
        stamp("Xland")
        a("s_barrier\ns_barrier")
        loop(f"{tag}_2", "s16")
        zflag(fl)
        a("s_mov_b32 s12, 48")
        loop(f"{tag}_3", "s16")
        a("s_branch b_lend")
    stream("b_k", "buffer_load_dwordx4", 118, "s8", L_Q, 0, 1024, 464)
    a("b_ldt:")
    stream("b_t", "buffer_load_dword", 119, "s9", L_Q + 8192, L_KT, 256, 468)
    a(f"""
    b_ldv:
    s_mov_b32 s10, {9216 - 288}
    """)
    for p in range(9):
        a(f"""v_add_u32 v10, {64*p}, v116
        v_mul_u32_u24 v11, 3641, v10
        v_lshrrev_b32 v11, 16, v11
        v_mul_lo_u32 v11, v11, s10
        v_lshl_add_u32 v{24+p}, v10, 4, v11""")
    a(f"""
    s_bfe_u32 s9, s3, 0x10001
    s_mul_i32 s8, s9, {32*9216}
    s_mul_i32 s10, s4, 288
    s_add_u32 s8, s8, s10
    s_add_u32 s8, s8, {WS_V}
    s_mul_i32 s9, s9, 9216
    s_add_u32 m0, s9, {L_V}
    s_mov_b32 s12, 0
    """)
    a("s_cmp_eq_u32 s3, 9\ns_cbranch_scc1 b_v_go\ns_barrier\ns_barrier\ns_branch b_v")
    lds_wait("b_v_go", 8, 244, 9, True)
    a("b_v:")
    for p in range(9): a(f"buffer_load_dwordx4 v{24+p}, s[36:39], s8 offen sc1 lds\ns_add_u32 m0, m0, {1024 if p < 8 else 1024 + 9216}\ns_nop 0")
    a(f"""
    s_add_u32 s8, s8, {64*9216}
    s_cmp_lg_u32 s12, 0
    s_cbranch_scc1 b_v1
    s_cmp_eq_u32 s3, 9
    s_cbranch_scc1 b_v0
    """)
    zflag(472)
    a(f"""
    s_branch b_v1
    b_v0:
    s_waitcnt vmcnt(0)
    s_barrier
    s_barrier
    b_v1:
    s_add_u32 s12, s12, 1
    s_cmp_lt_u32 s12, 4
    s_cbranch_scc1 b_v
    b_lend:
    s_waitcnt vmcnt(0)
    s_barrier
    s_setprio {OPT.get("aprio", 0)}
    """)
    srd(28, 94, 663552)
    srd(32, 96, 4718592)
    a(f"""
    s_lshr_b32 s12, s2, 3
    s_lshl_b32 s12, s12, 2
    s_add_u32 s12, s12, s3
    s_sub_u32 s12, s12, 8
    s_lshl_b32 s12, s12, 13
    v_lshlrev_b32 v121, 7, v116
    buffer_load_dword v115, v121, s[28:31], s12 offen
    {TOUCH}
    s_cmp_lg_u32 s3, {99 if ("nossm" in OPT or "noconv" in OPT) else 9}
    s_cbranch_scc1 b_noy
    s_mov_b32 s4, s2
    v_lshrrev_b32 v10, 3, v116
    v_and_b32 v9, 7, v116
    v_lshlrev_b32 v11, 12, v10
    v_lshl_add_u32 v11, v9, 4, v11
    v_xor_b32 v12, v10, v9
    v_lshlrev_b32 v12, 4, v12
    v_lshl_add_u32 v12, v9, 10, v12
    v_add_u32 v12, {L_BOUNCE}, v12
    s_mov_b32 s50, 0x05040100
    s_mov_b32 s51, 0x07060302
    """)
    for p in range(8): a(f"v_xor_b32 v{24+p}, {16*p}, v11")
    a(f"""
    b_y:
    s_lshr_b32 s5, s4, 5
    s_and_b32 s6, s4, 31                 ; sub
    s_lshl_b32 s7, s5, 7
    s_lshr_b32 s8, s6, 4
    s_add_u32 s7, s7, s8
    v_lshl_add_u32 v120, v116, 1, s7
    v_mul_u32_u24 v120, {FS}, v120
    v_add_u32 v120, {FL_Y}, v120
    """)
    flag_poll("b_py", 1, 120)
    a(f"""
    s_lshl_b32 s7, s5, 18
    s_lshl_b32 s8, s6, 7
    s_add_u32 s7, s7, s8
    s_add_u32 s7, s7, {WS_Y}
    s_mov_b32 m0, {L_BOUNCE}
    """)
    for p in range(8):
        a(f"s_nop 0\nbuffer_load_dwordx4 v{24+p}, s[36:39], s7 offen sc1 lds\ns_add_u32 m0, m0, 1024\ns_add_u32 s7, s7, 32768")
    a(f"""
    s_and_b32 s8, s6, 3
    s_lshl_b32 s8, s8, 3
    s_bfe_u32 s9, s6, 0x10002
    s_lshl_b32 s9, s9, 7
    s_add_u32 s8, s8, s9
    s_lshr_b32 s9, s6, 3
    s_lshl_b32 s9, s9, 9
    s_add_u32 s8, s8, s9
    v_add_u32 v17, s8, v10
    v_mul_u32_u24 v17, 2304, v17
    v_lshl_add_u32 v17, v9, 4, v17
    s_lshl_b32 s8, s5, 7
    s_add_u32 s8, s8, 1152
    s_waitcnt vmcnt(0)
    """)
    for j in range(8): a(f"ds_read_b128 {vr(32+4*j,4)}, v12 offset:{j*128}")
    a("s_waitcnt lgkmcnt(0)")
    transpose8(32, 64, 50, 51)
    for c in range(8):
        a(f"s_add_u32 s9, s8, {((c&3)*32 + (c>>2)*256)*2304}\nbuffer_store_dwordx4 {vr(64+4*c,4)}, v17, s[32:35], s9 offen {OPT.get('sty','sc1')}")
    a(f"""
    s_add_u32 s4, s4, 256
    s_cmp_lt_u32 s4, 288
    s_cbranch_scc1 b_y
    b_noy:
    s_setprio 0
    v_mov_b32 v0, v116
    s_lshr_b32 s5, s2, 5                 ; tn
    s_mul_i32 s17, s5, 192
    """)
    for t in range(3):
        a(f"""v_add_u32 v5, {64*t}, v0
        v_mul_u32_u24 v6, 5462, v5
        v_lshrrev_b32 v6, 16, v6             ; row
        v_mul_u32_u24 v7, 12, v6
        v_sub_u32 v7, v5, v7
        v_lshl_add_u32 v7, v7, 4, s17
        v_mul_u32_u24 v8, 1152, v6
        v_add_u32 v{12+t}, v8, v7
        v_and_b32 v9, 4, v6
        v_lshrrev_b32 v10, 3, v6
        v_lshl_add_u32 v9, v10, 1, v9
        v_bfe_u32 v10, v6, 1, 1
        v_add_u32 v9, v9, v10
        v_mul_u32_u24 v9, 18, v9
        v_and_b32 v10, 1, v6
        v_add3_u32 v9, v9, v10, 16
        v_mul_u32_u24 v9, 1152, v9
        v_add_u32 v{16+t}, v9, v7""")
    a(f"""
    s_sub_u32 s8, s3, 8
    s_mul_i32 s10, s8, {9*20736}
    s_mul_i32 s11, s8, {9*3072}
    s_add_u32 s12, s11, {L_V - 18*3072}
    s_cmp_ge_u32 s8, 2
    s_cselect_b32 m0, s12, s11
    s_mov_b32 s12, 20736
    s_mov_b32 s13, 0
    s_cmp_ge_u32 s2, 192
    s_cbranch_scc1 b_wend
    v_and_b32 v9, 7, v0
    v_lshlrev_b32 v9, 2, v9
    v_add_u32 v9, {L_KT}, v9
    s_setprio 3
    b_hw:
    s_sleep 4
    ds_read_b32 v10, v9
    s_waitcnt lgkmcnt(0)
    v_cmp_ne_u32 vcc, s92, v10
    s_cbranch_vccnz b_hw
    b_w:
    s_lshl_b32 s11, s8, 4
    s_add_u32 s11, s11, s13
    s_cmp_eq_u32 s11, {16 + 7}
    s_cselect_b32 m0, {L_KT + 6144}, m0
    s_cmp_lg_u32 s11, {48 + 5}
    s_cbranch_scc1 b_w1
    v_mov_b32 v12, v16
    v_mov_b32 v13, v17
    v_mov_b32 v14, v18
    s_mov_b32 s10, 0
    s_mov_b32 s12, {8*20736}
    b_w1:
    buffer_load_dwordx4 v12, s[28:31], s10 offen lds
    s_add_u32 m0, m0, 1024
    s_add_u32 s13, s13, 1
    buffer_load_dwordx4 v13, s[28:31], s10 offen lds
    s_add_u32 m0, m0, 1024
    s_nop 0
    buffer_load_dwordx4 v14, s[28:31], s10 offen lds
    s_add_u32 m0, m0, 1024
    s_add_u32 s10, s10, s12
    s_cmp_lt_u32 s13, 9
    s_cbranch_scc1 b_w
    b_wend:
    s_setprio 0
    s_mov_b32 s59, 0
    s_waitcnt vmcnt(0)
    """)

def phaseC():
    a("c_start:")
    srd(32, 96, 4718592)
    a(f"""
    s_and_b32 s4, s2, 7
    s_bfe_u32 s6, s2, 0x20003
    s_lshl_b32 s7, s4, 2
    s_add_u32 s7, s7, s6                 ; tm
    s_lshr_b32 s5, s2, 5                 ; tn
    s_mul_i32 s8, s3, 43
    s_lshr_b32 s8, s8, 7                 ; w/3
    s_mul_i32 s9, s8, 3
    s_sub_u32 s9, s3, s9                 ; tb = w%3
    s_lshr_b32 s13, s8, 1                ; kh
    s_and_b32 s14, s8, 1                 ; ta
    v_lshrrev_b32 v5, 5, v0
    v_bfe_u32 v6, v0, 2, 2
    v_lshl_add_u32 v6, v5, 2, v6
    v_mul_u32_u24 v4, 192, v6
    v_bfe_u32 v6, v0, 4, 1
    v_lshl_add_u32 v4, v6, 5, v4
    v_and_b32 v6, 3, v0
    v_lshl_add_u32 v4, v6, 3, v4
    s_lshl_b32 s17, s9, 6
    s_mul_i32 s18, s13, {L_V}
    s_add_u32 s17, s17, s18
    v_add_u32 v4, s17, v4
    s_mul_i32 s18, s13, {L_KT + 6144 - 16*3072}
    s_sub_u32 s18, {L_KT + 6144 - 16*3072}, s18
    v_add_u32 v9, s18, v4
    s_mul_i32 s18, s7, {64*FS}
    s_add_u32 s18, s18, {FL_B}
    v_mul_u32_u24 v120, {FS}, v0
    v_add_u32 v120, s18, v120
    s_waitcnt lgkmcnt(0)
    s_barrier
    """)
    stamp("Bbar")
    a("s_cmp_ge_u32 s2, 192\ns_cbranch_scc1 c_ntr")
    for k in range(18):
        va = 4 if k < 16 else 9
        a(f"ds_read_b64_tr_b16 {vr(128+4*k if k < 9 else 32+4*(k-9),2)}, v{va} offset:{k*3072}\nds_read_b64_tr_b16 {vr(130+4*k if k < 9 else 34+4*(k-9),2)}, v{va} offset:{k*3072+8*192}")
        if k % 4 == 3: a("s_waitcnt lgkmcnt(6)")
    a("c_ntr:\ns_cmp_eq_u32 s59, 0\ns_cbranch_scc1 c_nf\ns_waitcnt vmcnt(0)")
    stamp("Back")
    flag_set("s59", 2)
    a(f"""c_nf:
    s_cmp_ge_u32 s2, 192
    s_cbranch_scc1 c_idle
    v_lshlrev_b32 v2, 4, v0
    s_mul_i32 s17, s8, {18*1024}
    v_add_u32 v3, s17, v2
    v_and_b32 v11, 31, v0
    v_lshlrev_b32 v11, 2, v11
    v_lshl_add_u32 v11, v5, 9, v11
    v_add_u32 v11, s17, v11
    v_add_u32 v11, {14*1024}, v11
    s_lshl_b32 s15, s7, 1
    s_add_u32 s15, s15, s14
    s_mul_i32 s16, s15, {O_T}
    s_mul_i32 s18, s13, {18*1024}
    s_add_u32 s16, s16, s18
    s_lshl_b32 s18, s9, 10
    s_add_u32 s16, s16, s18
    s_add_u32 s16, s16, {WS_O}
    s_add_u32 m0, s17, s18
    s_cmp_lg_u32 s3, 8
    s_cbranch_scc1 c_np
    s_sleep {OPT.get("cslp", 0)}
    """)
    flag_poll("c_pb", 1, 120)
    a("c_np:\ns_waitcnt lgkmcnt(0)\ns_barrier")
    stamp("Cflag")
    for i in range(6):
        a("buffer_load_dwordx4 v2, s[36:39], s16 offen sc1 lds")
        if i < 5: a("s_add_u32 m0, m0, 3072\ns_add_u32 s16, s16, 3072")
    a(f"""
    v_and_b32 v6, 19, v0
    v_bfe_u32 v7, v0, 2, 1
    v_lshl_add_u32 v6, v7, 3, v6
    v_bfe_u32 v7, v0, 3, 1
    v_lshl_add_u32 v6, v7, 2, v6         ; token inside the tile
    v_mul_u32_u24 v6, 400, v6
    v_lshl_add_u32 v6, v5, 4, v6
    s_mul_i32 s18, s8, {32*400}
    s_lshl_b32 s19, s9, 7
    s_add_u32 s18, s18, s19
    s_add_u32 s18, s18, 81920
    v_add_u32 v6, s18, v6
    s_lshl_b32 s18, s3, 6
    v_add_u32 v7, s18, v0
    v_mul_u32_u24 v8, 5462, v7
    v_lshrrev_b32 v8, 16, v8             ; row
    v_mul_u32_u24 v10, 12, v8
    v_sub_u32 v10, v7, v10
    v_mul_u32_u24 v7, 400, v8
    v_lshl_add_u32 v7, v10, 5, v7
    v_add_u32 v7, 81920, v7
    v_mul_u32_u24 v5, 2304, v8
    v_lshl_add_u32 v5, v10, 4, v5
    s_mul_i32 s17, s7, {64*2304}
    s_mul_i32 s18, s5, 192
    s_add_u32 s17, s17, s18
    """)
    wf = lambda k: vr(128+4*k if k < 9 else 32+4*(k-9), 4)
    NC = int(OPT.get("nc", 3)); CK = 18 // NC
    for c in range(NC):
        a(f"s_waitcnt vmcnt({6 - (c+1)*CK//3})\ns_barrier")
        if c == 0: stamp("Cfirst")
        ks = list(range(c*CK, (c+1)*CK))
        reg = lambda k: 72 + 4*(k % 6)
        plain = [k for k in ks if k < 14]; tail = [k for k in ks if k >= 14]
        for k in plain: a(f"ds_read_b128 {vr(reg(k),4)}, v3 offset:{k*1024}")
        if tail:
            a(f"s_cmp_eq_u32 s13, 1\ns_cbranch_scc1 c_tl{c}")
            for k in tail: a(f"ds_read_b128 {vr(reg(k),4)}, v3 offset:{k*1024}")
            a(f"s_branch c_tm{c}\nc_tl{c}:")
            for k in tail:
                a(f"""ds_read2_b32 {vr(reg(k),2)}, v11 offset0:0 offset1:32
                ds_read2_b32 {vr(reg(k)+2,2)}, v11 offset0:64 offset1:96
                v_add_u32 v11, 1024, v11""")
            a(f"s_waitcnt lgkmcnt(0)\nc_tm{c}:")
        for i, k in enumerate(ks):
            a(f"s_waitcnt lgkmcnt({CK-1-i})")
            a(f"v_mfma_f32_32x32x16_bf16 v[16:31], {wf(k)}, {vr(reg(k),4)}, " + ("0" if k == 0 else "v[16:31]"))
    stamp("Cmfma")
    a("s_nop 11")
    for rq in range(4): a(f"ds_write_b128 v6, {vr(16+4*rq,4)} offset:{32*rq}")
    a("s_waitcnt lgkmcnt(0)\ns_barrier")
    stamp("Cx")
    a(f"""ds_read_b128 v[32:35], v7
    ds_read_b128 v[36:39], v7 offset:16
    ds_read_b128 v[40:43], v7 offset:{64*400}
    ds_read_b128 v[44:47], v7 offset:{64*400+16}
    s_waitcnt lgkmcnt(0)""")
    for r in range(8): a(f"v_add_f32 v{32+r}, v{32+r}, v{40+r}")
    for c in range(4): a(f"v_cvt_pk_bf16_f32 v{48+c}, v{32+2*c}, v{32+2*c+1}")
    stamp("Ccvt")
    a(f"buffer_store_dwordx4 v[48:51], v5, s[32:35], s17 offen {OPT.get('sto','')}")
    stamp("Cst")
    a("k_done2:")
    if DIAG and "dmax" in OPT:
        a(f"""s_load_dwordx2 s[80:81], s[0:1], 88
        s_waitcnt vmcnt(0)
        s_memrealtime s[74:75]
        s_waitcnt lgkmcnt(0)
        {"s_mov_b32 s72, s74" if DIAG == "end" else ""}
        s_cmp_eq_u32 s72, 0
        s_cbranch_scc1 dg_n
        s_lshl_b32 s76, s72, 8
        s_or_b32 s76, s76, s2
        s_lshl_b32 s77, s70, 8
        s_not_b32 s77, s77
        v_mov_b32 v2, 0
        v_mov_b32 v3, s76
        v_mov_b32 v4, s77
        s_mov_b64 exec, 1
        global_atomic_umax v2, v3, s[80:81] sc1
        global_atomic_umax v2, v4, s[80:81] offset:128 sc1
        s_mov_b64 exec, -1
        dg_n:
        s_cmp_lg_u32 s2, 0
        s_cbranch_scc1 k_done
        s_cmp_lg_u32 s3, 4
        s_cbranch_scc1 k_done
        dg_w:
        s_memrealtime s[78:79]
        s_waitcnt lgkmcnt(0)
        s_sub_u32 s77, s78, s70
        s_cmp_lt_u32 s77, 9000
        s_cbranch_scc1 dg_w
        v_mov_b32 v2, 0
        global_load_dword v3, v2, s[80:81] sc1
        global_load_dword v4, v2, s[80:81] offset:128 sc1
        s_waitcnt vmcnt(0)
        v_readfirstlane_b32 s76, v3
        v_readfirstlane_b32 s77, v4
        s_nop 3
        s_not_b32 s77, s77
        {"s_and_b32 s76, s76, 255" if OPT["dmax"] == "id" else "s_sub_u32 s76, s76, s77"}
        {"s_mul_i32 s76, s76, 25" if OPT["dmax"] == "id" else "s_lshr_b32 s76, s76, 8"}
        s_min_u32 s76, s76, 10000
        s_lshl_b32 s76, s76, 2
        s_add_u32 s76, s76, 10000
        dg_spin:
        s_memrealtime s[78:79]
        s_waitcnt lgkmcnt(0)
        s_sub_u32 s77, s78, s70
        s_cmp_lt_u32 s77, s76
        s_cbranch_scc1 dg_spin""")
    elif DIAG:
        a(f"""s_cmp_lg_u32 s2, {OPT.get("dwg", 0)}
        s_cbranch_scc1 k_done
        s_cmp_lg_u32 s3, {OPT.get("dw", 4)}
        s_cbranch_scc1 k_done
        s_waitcnt vmcnt(0)
        s_memrealtime s[74:75]
        s_waitcnt lgkmcnt(0)
        {"s_mov_b32 s72, s74" if DIAG == "end" else "s_mov_b32 s72, s70" if DIAG == "none" else ""}
        s_sub_u32 s76, s72, s70
        s_min_u32 s76, s76, 10000
        s_lshl_b32 s76, s76, 2
        s_add_u32 s76, s76, 5000
        dg_spin:
        s_memrealtime s[78:79]
        s_waitcnt lgkmcnt(0)
        s_sub_u32 s77, s78, s70
        s_cmp_lt_u32 s77, s76
        s_cbranch_scc1 dg_spin""")
    stamp_out()
    a(f"""k_done:
    s_endpgm
    c_idle:
    s_cmp_lg_u32 s2, 255
    s_cbranch_scc1 k_done2
    s_cmp_lg_u32 s3, 8
    s_cbranch_scc1 k_done2
    v_lshrrev_b32 v120, 5, v116
    v_lshlrev_b32 v120, 8, v120
    v_and_b32 v121, 31, v116
    v_add_u32 v120, v120, v121
    v_mul_u32_u24 v120, {FS}, v120
    v_add_u32 v120, {FL_B}, v120
    v_add_u32 v121, {512*FS}, v120
    v_add_u32 v122, {1024*FS}, v120
    v_add_u32 v123, {1536*FS}, v120
    """)
    flag_poll("c_pe", 4, 120)
    a(f"s_mov_b32 s6, {FL_E}")
    flag_set("s6", 2)
    a("s_branch k_done2")
    a(f"""
    b_slow:
    s_mul_i32 s6, s4, 9
    s_lshr_b32 s6, s6, 2
    s_bfe_u32 s7, s4, 0x10001
    s_add_u32 s8, s6, s7
    s_lshl_b32 s8, s8, 9
    s_add_u32 s8, s8, {72*512}
    s_lshl_b32 s9, s6, 9
    s_mul_i32 s13, s7, {1024 - 8}
    s_sub_u32 s9, s9, s13
    s_add_u32 s9, s9, {72*512 + 1024}
    s_mul_i32 s13, s4, 288
    s_add_u32 s13, s13, {WS_V}
    v_lshlrev_b32 v118, 4, v117
    v_lshrrev_b32 v120, 5, v116
    v_mul_u32_u24 v120, 9216, v120
    v_add_u32 v120, v120, v118
    v_mov_b32 v121, 0xff800000
    s_waitcnt lgkmcnt(0)
    """)
    def scores(c):
        a(f"""buffer_load_dwordx4 {vr(KF[0],4)}, v119, s[36:39], s14 offen sc1
        buffer_load_dwordx2 {vr(TF[0],2)}, v118, s[36:39], s15 offen sc1
        s_add_u32 s14, s14, {QK_T}
        s_add_u32 s15, s15, {QK_T}
        s_waitcnt vmcnt(0)
        v_mfma_f32_32x32x16_bf16 {vr(S[0],16)}, {vr(KF[0],4)}, {vr(Q,4)}, {c}
        v_mfma_f32_32x32x8_bf16 {vr(S[0],16)}, {vr(TF[0],2)}, {vr(QL,2)}, {vr(S[0],16)}
        s_nop 15""")
    a("s_mov_b32 s14, s8\ns_mov_b32 s15, s9\ns_mov_b32 s26, 0\nb_mx:")
    scores("0")
    for r in range(8): a(f"v_max3_f32 v121, v{S[0]+2*r}, v{S[0]+2*r+1}, v121")
    a(f"""
    s_add_u32 s26, s26, 1
    s_cmp_lt_u32 s26, 64
    s_cbranch_scc1 b_mx
    v_mov_b32 v122, v121
    s_nop 1
    v_permlane32_swap_b32 v121, v122
    s_nop 1
    v_max_f32 v121, v121, v122
    """)
    for i in range(16): a(f"v_sub_f32 v{NEG+i}, 0, v121\nv_mov_b32 v{O+i}, 0")
    a(f"""s_mov_b32 s14, s8
    s_mov_b32 s15, s9
    s_mov_b32 s26, 0
    b_sl:
    s_add_u32 s16, s13, {2*9216}
    s_mov_b64 exec, s[18:19]
    buffer_load_dwordx4 {vr(VF[0],4)}, v120, s[36:39], s13 offen sc1
    buffer_load_dwordx4 {vr(VF[0]+4,4)}, v120, s[36:39], s16 offen sc1
    s_mov_b64 exec, -1
    s_add_u32 s13, s13, {4*9216}""")
    scores(vr(NEG,16))
    ex(0, 0, 16); cv(0, 0, 8)
    a("s_nop 1")
    pv(0, 0); pv(0, 1)
    a("""s_add_u32 s26, s26, 1
    s_cmp_lt_u32 s26, 64
    s_cbranch_scc1 b_sl
    s_nop 15
    s_branch b_fin
    k_last:""")

def main():
    ref = open("concat_heads__mha_block__ssm_conv_s4d__prompt.s.ref").read().split("\n")
    head = [l for l in ref if l.startswith(";") and "@launch" not in l and "Override launch" not in l and "grid=ceil" not in l]
    head += ["; @launch grid=(256,1,1) block=(768,1,1) lds=163840"]
    a(f".text\n.globl {KN}\n.p2align 8\n.type {KN},@function\n{KN}:")
    if INSTR:
        for i in range(70, 90): a(f"s_mov_b32 s{i}, 0")
        a("s_memtime s[70:71]\ns_memrealtime s[86:87]")
    if DIAG: a("s_mov_b32 s72, 0\ns_memrealtime s[70:71]")
    phaseA(); phaseB(); phaseC()
    desc = f""".section .rodata,"a"
.p2align 6
.amdhsa_kernel {KN}
  .amdhsa_next_free_vgpr 168
  .amdhsa_next_free_sgpr 102
  .amdhsa_accum_offset 168
  .amdhsa_group_segment_fixed_size 0
  .amdhsa_kernarg_size 104
  .amdhsa_user_sgpr_count 2
  .amdhsa_user_sgpr_kernarg_segment_ptr 1
  .amdhsa_system_sgpr_workgroup_id_x 1
.end_amdhsa_kernel
"""
    out = "\n".join(head) + "\n.amdgcn_target \"amdgcn-amd-amdhsa--gfx950\"\n" + a.text() + desc
    path = sys.argv[1] if len(sys.argv) > 1 and sys.argv[1].endswith(".s") else "concat_heads__mha_block__ssm_conv_s4d__prompt.s"
    open(path, "w").write(out)
main()
```

```python
import sys, struct
KN = "concat_heads__mha_block__ssm_conv_s4d__prompt_kernel"
def f2u(x): return struct.unpack("<I", struct.pack("<f", x))[0]
INSTR = "instr" in sys.argv
OPT = dict(x.split("=") for x in sys.argv if "=" in x)

WS_QK = 0; QK_T = 73728
WS_V = WS_QK + 64 * QK_T
WS_O = WS_V + 256 * 9216; O_T = 36864
WS_U = WS_O + 64 * O_T
WS_Y = WS_U + 576 * 4096
WS_FL = WS_Y + 576 * 4096
FS = 128
FL_A = 0; FL_S = 864 * FS; FL_Y = FL_S + 288 * FS; FL_B = FL_Y + 1152 * FS; FL_E = FL_B + 2048 * FS
WS_END = WS_FL + FL_E + FS
WS_ST = 24 << 20
L_FL = 155648
KC = 4156
KAREA = 8448
L_KT = 65536; L_V = 81920; L_BOUNCE = 155648; L_Q = 102400

class A:
    def __init__(s): s.l = []
    def __call__(s, t):
        for line in t.strip("\n").split("\n"):
            q = line.strip()
            if not q: continue
            s.l.append(q if q.endswith(":") else "    " + q)
    def text(s): return "\n".join(s.l) + "\n"
a = A()
def vr(b, n): return f"v[{b}:{b+n-1}]"
def srd(d, lo, size):
    a(f"""s_mov_b32 s{d}, s{lo}
    s_mov_b32 s{d+1}, s{lo+1}
    s_mov_b32 s{d+2}, {size}
    s_mov_b32 s{d+3}, 0x20000""")

SSETS = {"1": ["Aend", "Aack", "Bflag", "Bgo", "Bloop", "Back"],
         "2": ["Bgo", "Bloop", "Back", "Cflag", "Cfirst", "Cmfma"],
         "5": ["Bloop", "Bbar", "Cmfma", "Cx", "Ccvt", "Cst"],
         "4": ["Aack", "Xpw", "Xpoll", "Xiss", "Xland", "Bgo"],
         "3": ["Afirst", "Akgen", "Abuilt", "Aconv", "Aend", "Aack"]}
DIAG = OPT.get("diag")
def stamp(name):
    if DIAG == name: a("s_memrealtime s[72:73]")
    if INSTR and name in SSETS[OPT.get("sset", "1")]:
        i = SSETS[OPT.get("sset", "1")].index(name) + 1
        a(f"s_memtime s[{70+2*i}:{71+2*i}]")
def stamp_out():
    if not INSTR: return
    a(f"""s_waitcnt vmcnt(0)
    s_memtime s[84:85]
    s_memrealtime s[88:89]
    s_waitcnt lgkmcnt(0)
    s_mov_b64 exec, 1
    s_lshl_b32 s90, s2, 4
    s_add_u32 s90, s90, s3
    s_lshl_b32 s90, s90, 6
    s_add_u32 s90, s90, {WS_ST}
    v_mov_b32 v166, s90""")
    for i in range(10):
        a(f"v_mov_b32 v167, s{70+2*i}\nglobal_store_dword v166, v167, s[24:25] offset:{4*i}")

def transpose8(I, O, sLO, sHI):
    for c in range(8):
        for t in range(4):
            a(f"v_perm_b32 v{O+4*c+t}, v{I+4*(2*t+1)+(c>>1)}, v{I+4*(2*t)+(c>>1)}, s{sHI if c&1 else sLO}")

def flag_set(soff, t):
    if OPT.get("ffl", "0") == "1":
        a(f"""v_mbcnt_lo_u32_b32 v{t}, -1, 0
        v_mov_b32 v{t+1}, s92
        v_lshl_add_u32 v{t}, v{t}, 2, s93
        s_mov_b32 exec_hi, 0
        buffer_store_dword v{t+1}, v{t}, s[36:39], {soff} offen sc1
        s_mov_b32 exec_hi, -1""")
    else:
        a(f"""v_mov_b32 v{t}, {WS_FL}
        v_mov_b32 v{t+1}, s92
        s_mov_b64 exec, 1
        buffer_store_dword v{t+1}, v{t}, s[36:39], {soff} offen {OPT.get('sfl', 'sc1').replace('+', ' ')}
        s_mov_b64 exec, -1""")
def poll_issue(n, t):
    for i in range(n): a(f"buffer_load_dword v{t+4+i}, v{t+i}, s[36:39], s93 offen {OPT.get('pfl', 'sc1').replace('+', ' ')}")
def flag_poll(tag, n, t, issued=False):
    a("s_mov_b32 s91, 0")
    if issued: a(f"s_branch {tag}_c")
    a(f"{tag}:")
    poll_issue(n, t)
    a(f"{tag}_c:\ns_add_u32 s91, s91, 1\ns_waitcnt vmcnt(0)")
    for i in range(n): a(f"v_xor_b32 v{t+4+i}, s92, v{t+4+i}")
    for i in range(1, n): a(f"v_or_b32 v{t+4}, v{t+4}, v{t+4+i}")
    a(f"""v_cmp_ne_u32 vcc, 0, v{t+4}
    s_cbranch_vccz {tag}_x
    s_mov_b64 exec, vcc
    s_sleep {OPT.get("slp", 2)}
    s_cmp_lt_u32 s91, 0x80000
    s_cbranch_scc1 {tag}
    {tag}_x:
    s_mov_b64 exec, -1""")
def lds_wait(tag, vaddr, off, t, slp=False):
    a(f"""{tag}:
    {"s_sleep 1" if slp else ""}
    ds_read_b32 v{t}, v{vaddr} offset:{off}
    s_waitcnt lgkmcnt(0)
    v_cmp_eq_u32 vcc, 0, v{t}
    s_cbranch_vccz {tag}""")
def kargs():
    a(f"""s_waitcnt lgkmcnt(0)
    s_add_u32 s68, s24, {WS_FL + FL_E}
    s_addc_u32 s69, s25, 0
    s_load_dword s92, s[68:69], 0""")
    srd(36, 24, WS_END)

def ufetch(tag):
    a(f"""
    s_sub_u32 s43, s3, 8
    s_lshl_b32 s40, s2, 1
    s_add_u32 s40, s40, s43              ; channel
    s_lshl_b32 s44, s43, 13
    s_add_u32 m0, s44, 147968
    s_lshr_b32 s46, s40, 6
    s_mul_i32 s46, s46, {32*FS}
    s_add_u32 s46, s46, {FL_S}
    v_and_b32 v10, 31, v0
    v_mul_u32_u24 v10, {FS}, v10
    v_add_u32 v10, s46, v10
    v_lshlrev_b32 v12, 4, v0
    v_mov_b32 v13, 0x7ffffff0
    s_lshl_b32 s44, s40, 12
    s_add_u32 s44, s44, {WS_U}
    s_mov_b32 exec_hi, 0
    """)
    flag_poll(tag, 1, 10)
    for i in range(4): a(f"buffer_load_dwordx4 v12, s[36:39], s44 offen offset:{1024*i} sc1 lds")
    a(f"""s_lshl_b32 s43, s43, 2
    s_add_u32 m0, s43, {L_FL + 448}
    s_mov_b64 exec, 1
    buffer_load_dword v13, s[36:39], 0 offen lds
    s_mov_b64 exec, -1""")

def phaseA():
    mod9 = """
    s_mul_i32 s49, s48, 57
    s_lshr_b32 s49, s49, 9
    s_mul_i32 s49, s49, 9
    s_sub_u32 s48, s48, s49"""
    ROT = {"wg": "s_lshl_b32 s48, s40, 1\ns_add_u32 s48, s48, s41" + mod9, "none": "s_mov_b32 s48, 0",
           "wgb": "s_and_b32 s48, s27, 3\ns_mul_i32 s48, s48, 9\ns_lshr_b32 s48, s48, 2\ns_lshr_b32 s49, s27, 2\ns_mul_i32 s49, s49, 4\ns_add_u32 s48, s48, s49\ns_add_u32 s48, s48, s26" + mod9,
           "wgm": "s_and_b32 s48, s27, 3\ns_mul_i32 s48, s48, 9\ns_lshr_b32 s48, s48, 2\ns_add_u32 s48, s48, s26" + mod9,
           "two": "s_and_b32 s48, s27, 1\ns_lshr_b32 s49, s27, 2\ns_xor_b32 s48, s48, s49\ns_and_b32 s48, s48, 1\ns_lshl_b32 s48, s48, 2\ns_add_u32 s48, s48, s26" + mod9,
           "xcd": "s_and_b32 s48, s26, 3\ns_lshl_b32 s48, s48, 1\ns_lshr_b32 s49, s26, 2\ns_mul_i32 s49, s49, 5\ns_add_u32 s48, s48, s49" + mod9}[OPT.get("rot", "two")]
    a(f"""
    s_cmp_ge_u32 s2, 256
    s_cbranch_scc1 k_done
    v_lshrrev_b32 v1, 6, v0
    v_and_b32 v0, 63, v0
    v_readfirstlane_b32 s3, v1
    v_mov_b32 v23, {L_FL}
    s_cmp_lg_u32 s3, 9
    s_cbranch_scc1 a_noarm
    v_mov_b32 v14, -1
    v_mov_b32 v15, -1
    v_lshl_add_u32 v16, v0, 3, v23
    ds_write_b64 v16, v[14:15]
    s_waitcnt lgkmcnt(0)
    a_noarm:
    s_load_dwordx16 s[4:19], s[0:1], 0
    s_load_dwordx4 s[20:23], s[0:1], 64
    s_load_dwordx2 s[24:25], s[0:1], 96
    s_load_dwordx2 s[96:97], s[0:1], 80
    s_load_dwordx2 s[94:95], s[0:1], 16
    s_add_u32 s26, s3, 8
    s_sub_u32 s27, s3, 4
    s_cmp_lt_u32 s3, 4
    {"" if OPT.get("remap", "1") == "0" else "s_cselect_b32 s3, s26, s27           ; the waves that start first take the loader role (8..11)"}
    s_and_b32 s26, s2, 7
    s_lshr_b32 s27, s2, 3
    s_and_b32 s40, s26, 3
    s_lshl_b32 s40, s40, 2
    s_and_b32 s44, s27, 3
    s_add_u32 s40, s40, s44
    s_lshr_b32 s41, s26, 2
    s_mul_i32 s41, s41, 7
    s_lshr_b32 s44, s27, 2
    s_add_u32 s41, s41, s44
    s_mov_b32 s93, {WS_FL}
    s_cmp_ge_u32 s3, 8
    s_cbranch_scc1 a_aux
    s_cmp_lt_u32 s3, 4
    s_cbranch_scc1 a_ssm
    s_branch a_gemm
    a_aux:
    s_cmp_ge_u32 s27, 28
    s_cbranch_scc1 a_task
    {ROT}
    s_bfe_u32 s56, s3, 0x10001
    s_bitcmp1_b32 s3, 0
    s_cbranch_scc1 a_ldw
    v_lshrrev_b32 v4, 3, v0
    v_lshrrev_b32 v5, 2, v4
    v_lshlrev_b32 v5, 3, v5
    v_and_b32 v6, 3, v4
    v_add_u32 v5, v5, v6
    s_lshl_b32 s44, s40, 7
    v_add_u32 v5, s44, v5
    v_mul_u32_u24 v5, 1152, v5
    v_lshrrev_b32 v6, 1, v4
    v_and_b32 v7, 7, v0
    v_xor_b32 v6, v6, v7
    v_lshl_add_u32 v2, v6, 4, v5
    v_xor_b32 v6, 4, v6
    v_lshl_add_u32 v3, v6, 4, v5
    v_add_u32 v3, {4608-1024}, v3
    s_mov_b32 s50, 128
    s_mov_b32 s51, 18432
    s_mov_b32 s52, 0
    s_waitcnt lgkmcnt(0)
    s_mov_b32 s28, s4
    s_mov_b32 s29, s5
    s_mov_b32 s30, 2359296
    s_branch a_ld
    a_ldw:
    v_lshrrev_b32 v5, 4, v0
    v_mul_u32_u24 v2, 3456, v5
    v_lshlrev_b32 v5, 2, v5
    v_and_b32 v6, 15, v0
    v_xor_b32 v5, v5, v6
    v_lshl_add_u32 v2, v5, 4, v2
    s_lshl_b32 s44, s41, 8
    v_add_u32 v2, s44, v2
    v_add_u32 v3, {13824-1024}, v2
    s_mov_b32 s50, 221184
    s_mov_b32 s51, 27648
    s_mov_b32 s52, 16384
    s_waitcnt lgkmcnt(0)
    s_mov_b32 s28, s6
    s_mov_b32 s29, s7
    s_mov_b32 s30, 1990656
    a_ld:
    s_setprio {OPT.get("lprio", 0)}
    s_mov_b32 s31, 0x20000
    s_mul_i32 s57, s56, s51
    s_lshl_b32 s57, s57, 2
    s_lshl_b32 s56, s56, 13
    s_add_u32 s52, s52, s56
    s_and_b32 s58, s3, 3
    s_lshl_b32 s58, s58, 2
    s_add_u32 s58, s58, {L_FL}
    v_mov_b32 v4, 0x7ffffff0
    s_mov_b32 s53, 0
    """)
    kargs()
    a(f"""
    a_ld_loop:
    s_cmp_lt_u32 s53, 4
    s_cbranch_scc1 a_ld_go
    a_ld_poll:
    ds_read_b128 v[8:11], v23 offset:160
    s_waitcnt lgkmcnt(0)
    v_or_b32 v8, v8, v9
    v_or3_b32 v8, v8, v10, v11
    v_cmp_eq_u32 vcc, 0, v8
    s_cbranch_vccz a_ld_poll
    v_add_u32 v23, 16, v23
    a_ld_go:
    s_mul_i32 s47, s48, s50
    s_add_u32 s47, s47, s57
    s_and_b32 s55, s53, 3
    s_lshl_b32 s55, s55, 15
    s_add_u32 m0, s55, s52
    s_add_u32 s48, s48, 1
    """)
    for p in range(4):
        a("buffer_load_dwordx4 v2, s[28:31], s47 offen lds\nbuffer_load_dwordx4 v3, s[28:31], s47 offen offset:1024 lds")
        if p < 3: a("s_add_u32 m0, m0, 2048\ns_add_u32 s47, s47, s51")
    a(f"""
    s_cmp_eq_u32 s48, 9
    s_cselect_b32 s48, 0, s48
    s_cmp_lg_u32 s53, 0
    s_cbranch_scc1 a_ld_nb
    s_barrier
    a_ld_nb:
    s_mov_b32 m0, s58
    s_mov_b64 exec, 1
    buffer_load_dword v4, s[28:31], 0 offen lds
    s_mov_b64 exec, -1
    s_add_u32 s58, s58, 16
    s_add_u32 s53, s53, 1
    s_cmp_lt_u32 s53, 9
    s_cbranch_scc1 a_ld_loop
    """)
    a("v_mov_b32 v116, v0\ns_waitcnt lgkmcnt(0)\ns_add_u32 s92, s92, 0x9e3779b1\ns_cmp_ge_u32 s3, 10\ns_cbranch_scc1 b_aux\na_uf:")
    ufetch("a_pu")
    a("s_branch b_aux")
    CPF = "" if OPT.get("cpf", "1") == "0" else f"""
    ; read this kernel's own code once per XCD so that later instruction fetches find it in L2 (speed only)
    s_getpc_b64 s[44:45]
    a_pc:
    s_lshl_b32 s46, s27, 2
    s_add_u32 s46, s46, s3
    s_sub_u32 s46, s46, 4
    s_lshl_b32 s46, s46, 8
    s_min_u32 s46, s46, k_last - {KN} - 256
    s_sub_u32 s44, s44, a_pc - {KN}
    s_subb_u32 s45, s45, 0
    s_add_u32 s44, s44, s46
    s_addc_u32 s45, s45, 0
    v_lshlrev_b32 v60, 6, v0
    v_mov_b32 v61, s45
    v_add_co_u32 v60, vcc, s44, v60
    s_mov_b64 exec, 15
    s_nop 0
    v_addc_co_u32 v61, vcc, 0, v61, vcc
    global_load_dword v62, v[60:61], off
    s_mov_b64 exec, -1"""
    a(f"""
    a_gemm:
    {CPF}
    s_cmp_ge_u32 s27, 28
    s_cbranch_scc1 a_ssm
    s_barrier
    """)
    kargs()
    if OPT.get("tcha", "0") == "1":
        a(f"""s_cmp_lg_u32 s3, 5
        s_cbranch_scc1 a_ntch
        v_lshlrev_b32 v60, 18, v0
        buffer_load_dword v63, v60, s[36:39], 0 offen
        a_ntch:""")
    a(f"""
    s_sub_u32 s45, s3, 4
    s_and_b32 s42, s45, 1                ; mw
    s_lshr_b32 s43, s45, 1               ; nw
    s_lshl_b32 s58, s45, 2
    s_add_u32 s58, s58, {L_FL + 160}
    v_mov_b32 v22, 0x7ffffff0
    v_and_b32 v5, 31, v0
    v_lshrrev_b32 v6, 5, v0
    s_lshl_b32 s44, s42, 6
    v_add_u32 v7, s44, v5
    v_lshlrev_b32 v7, 7, v7
    v_bfe_u32 v5, v5, 1, 3
    v_xor_b32 v5, v5, v6
    """)
    for j in range(4):
        a(f"v_xor_b32 v20, {2*j}, v5\nv_lshl_add_u32 v{8+j}, v20, 4, v7\nv_add_u32 v{12+j}, 0x10000, v{8+j}")
    a(f"""
    v_bfe_u32 v5, v0, 2, 2
    v_lshl_add_u32 v7, v6, 3, v5
    v_lshlrev_b32 v7, 8, v7
    v_bfe_u32 v20, v0, 4, 1
    v_lshl_add_u32 v7, v20, 5, v7
    v_and_b32 v20, 1, v0
    v_lshl_add_u32 v7, v20, 4, v7
    v_and_b32 v20, 2, v0
    v_lshl_add_u32 v7, v20, 2, v7
    v_add_u32 v7, 16384, v7
    s_lshl_b32 s44, s43, 1
    v_xor_b32 v5, s44, v5
    v_lshl_add_u32 v16, v5, 6, v7
    v_xor_b32 v5, 1, v5
    v_lshl_add_u32 v17, v5, 6, v7
    v_add_u32 v18, 0x10000, v16
    v_add_u32 v19, 0x10000, v17
    s_setprio {OPT.get('gprio', 2)}
    s_waitcnt lgkmcnt(0)
    s_add_u32 s92, s92, 0x9e3779b1
    s_lshl_b32 s46, s40, 1
    s_add_u32 s46, s46, s42
    s_lshl_b32 s47, s41, 1
    s_add_u32 s47, s47, s43
    s_lshl_b32 s59, s47, 5
    s_add_u32 s59, s59, s46
    s_mul_i32 s59, s59, {FS}
    s_cmp_ge_u32 s41, 9
    s_cbranch_scc1 a_gemm_v""")
    FB = [24, 40, 128]
    def reads(stage, j, fb):
        slot = stage & 3; hi = slot >> 1; base = (slot & 1) * 32768
        return [f"ds_read_b128 {vr(fb,4)}, v{8+4*hi+j} offset:{base}",
                f"ds_read_b64_tr_b16 {vr(fb+8,2)}, v{16+2*hi} offset:{base+j*4096}",
                f"ds_read_b64_tr_b16 {vr(fb+10,2)}, v{16+2*hi} offset:{base+j*4096+1024}",
                f"ds_read_b64_tr_b16 {vr(fb+12,2)}, v{17+2*hi} offset:{base+j*4096}",
                f"ds_read_b64_tr_b16 {vr(fb+14,2)}, v{17+2*hi} offset:{base+j*4096+1024}",
                f"ds_read_b128 {vr(fb+4,4)}, v{8+4*hi+j} offset:{base+4096}"]
    def mfmas(fb, vor, first):
        out = []
        for (ta, tb) in ((0,0),(0,1),(1,0),(1,1)):
            acc = vr(64 + 16*(2*ta+tb), 16); X = vr(fb+4*ta, 4); W = vr(fb+8+4*tb, 4)
            out.append(f"v_mfma_f32_32x32x16_bf16 {acc}, " + (f"{X}, {W}" if vor else f"{W}, {X}") + ", " + ("0" if first else acc))
        return out
    def check(tag, st, first_read):
        if not first_read:
            a(f"""v_or_b32 v56, v56, v57
            v_or3_b32 v56, v56, v58, v59
            v_cmp_eq_u32 vcc, 0, v56
            s_cbranch_vccnz {tag}_ok""")
        a(f"""{tag}_p:
        ds_read_b128 v[56:59], v23 offset:{16*st}
        s_waitcnt lgkmcnt(0)
        v_or_b32 v56, v56, v57
        v_or3_b32 v56, v56, v58, v59
        v_cmp_eq_u32 vcc, 0, v56
        s_cbranch_vccz {tag}_p
        {tag}_ok:""")
    def mainloop(vor):
        check(f"a_c{int(vor)}_0", 0, True)
        stamp("Afirst")
        a("\n".join(reads(0, 0, FB[0]) + reads(0, 1, FB[1])))
        for g in range(36):
            st, j = divmod(g, 4)
            a(f"s_waitcnt lgkmcnt({6 if g < 35 else 0})")
            m = mfmas(FB[g % 3], vor, g == 0)
            a(m[0])
            if j == 1 and st < 8: a(f"ds_read_b128 v[56:59], v23 offset:{16*(st+1)}")
            if j == 2 and st < 8: check(f"a_c{int(vor)}_{st+1}", st+1, False)
            if j == 3 and st < 5: a(f"s_add_u32 m0, s58, {16*st}\ns_mov_b64 exec, 1\nbuffer_load_dword v22, s[36:39], 0 offen lds\ns_mov_b64 exec, -1")
            rd = reads((g+2)//4, (g+2)%4, FB[(g+2) % 3]) if g + 2 < 36 else []
            a("\n".join(rd[:3])); a(m[1]); a("\n".join(rd[3:])); a(m[2]); a(m[3])
        stamp("Aconv")
    a(f"""
    s_mul_i32 s44, s46, {2*QK_T}
    s_lshl_b32 s45, s47, 12
    s_add_u32 s44, s44, s45
    s_add_u32 s45, s44, {QK_T}
    v_lshlrev_b32 v2, 4, v0
    """)
    mainloop(False)
    for ta in range(2):
        for tb in range(2):
            acc = 64 + 16*(2*ta+tb); o = 24 + 8*(2*ta+tb)
            if ta + tb == 0: a("s_nop 8")
            for r in range(8): a(f"v_cvt_pk_bf16_f32 v{o+r}, v{acc+2*r}, v{acc+2*r+1}")
            for hh in range(2): a(f"buffer_store_dwordx4 {vr(o+4*hh,4)}, v2, s[36:39], s{44+ta} offen offset:{tb*2048+hh*1024} sc1")
    a(f"""s_branch a_gemm_end
    a_gemm_v:
    v_and_b32 v5, 19, v0
    v_bfe_u32 v6, v0, 2, 1
    v_lshl_add_u32 v5, v6, 3, v5
    v_bfe_u32 v6, v0, 3, 1
    v_lshl_add_u32 v5, v6, 2, v5         ; feature inside the tile
    v_lshrrev_b32 v6, 5, v0
    v_mul_u32_u24 v6, 9216, v6
    v_lshl_add_u32 v2, v5, 4, v6
    s_sub_u32 s45, s47, 18
    s_lshl_b32 s45, s45, 10
    s_mul_i32 s44, s46, {8*9216}
    s_add_u32 s44, s44, s45
    s_add_u32 s44, s44, {WS_V}
    """)
    mainloop(True)
    a("s_cmp_ge_u32 s47, 27\ns_cbranch_scc1 a_end")
    for ta in range(2):
        for tb in range(2):
            acc = 64 + 16*(2*ta+tb); o = 24 + 8*(2*ta+tb)
            if ta + tb == 0: a("s_nop 8")
            for r in range(8): a(f"v_cvt_pk_bf16_f32 v{o+r}, v{acc+2*r}, v{acc+2*r+1}")
            for hh in range(2): a(f"s_add_u32 s45, s44, {(4*ta+2*hh)*9216}\nbuffer_store_dwordx4 {vr(o+4*hh,4)}, v2, s[36:39], s45 offen offset:{tb*512} sc1")
    a("a_gemm_end:")
    if OPT.get("early", "0") == "1":
        a(f"""s_lshl_b32 s44, s3, 2
        s_add_u32 s44, s44, {L_FL}
        v_mov_b32 v4, s44
        v_mov_b32 v5, 0
        ds_write_b32 v4, v5 offset:400""")
    stamp("Aend")
    a("s_waitcnt vmcnt(0)")
    stamp("Aack")
    flag_set("s59", 2)
    a("s_branch a_end")

    a(f"""
    a_task:
    s_cmp_eq_u32 s3, 11
    s_cbranch_scc1 a_fetch
    s_sub_u32 s44, s2, 224
    s_lshr_b32 s45, s44, 1               ; B
    s_and_b32 s46, s44, 1                ; es
    s_sub_u32 s47, 16, s3
    s_lshl_b32 s59, s47, 5
    s_add_u32 s59, s59, s44
    s_mul_i32 s59, s59, {FS}
    s_add_u32 s59, s59, {FL_S}
    s_lshl_b32 s48, s45, 3
    s_add_u32 s48, s48, s46
    s_mul_i32 s48, s48, {16*1152}
    s_lshl_b32 s49, s47, 7
    s_add_u32 s48, s48, s49
    v_lshrrev_b32 v10, 3, v0
    v_and_b32 v9, 7, v0
    v_mul_u32_u24 v11, 1152, v10
    v_lshl_add_u32 v11, v9, 4, v11
    v_xor_b32 v12, v10, v9
    v_lshlrev_b32 v12, 4, v12
    v_lshl_add_u32 v12, v9, 10, v12
    s_mul_i32 s49, s3, 24576
    s_sub_u32 s49, s49, {8*24576 - 57344}
    v_add_u32 v12, s49, v12
    s_mov_b32 m0, s49
    v_lshlrev_b32 v17, 15, v10
    v_lshl_add_u32 v17, v9, 4, v17
    s_lshl_b32 s60, s47, 18
    s_lshl_b32 s45, s45, 7
    s_lshl_b32 s46, s46, 11
    s_add_u32 s60, s60, s45
    s_add_u32 s60, s60, s46
    s_add_u32 s60, s60, {WS_U}
    s_mov_b32 s50, 0x05040100
    s_mov_b32 s51, 0x07060302
    """)
    for p in range(8): a(f"v_xor_b32 v{24+p}, {16*p}, v11")
    kargs()
    srd(28, 10, 2359296)
    for i in range(3):
        if i == 1: a("s_barrier")
        for p in range(8):
            a(f"""s_add_u32 s49, s48, {((p>>1)*32 + (p&1)*8)*1152}
            buffer_load_dwordx4 v{24+p}, s[28:31], s49 offen lds
            s_add_u32 m0, m0, 1024""")
        a("s_sub_u32 s48, s48, 384")
    for i in range(3):
        if i < 2: a("s_waitcnt vmcnt(16)")
        for j in range(8): a(f"ds_read_b128 {vr(32+4*j,4)}, v12 offset:{i*8192 + j*128}")
        a("s_waitcnt lgkmcnt(0)")
        if i == 0: a("s_add_u32 s92, s92, 0x9e3779b1")
        O_ = [64, 96, 128][i]
        transpose8(32, O_, 50, 51)
        if i:
            a("s_waitcnt vmcnt(0)")
            flag_set("s59", 2)
            a(f"s_sub_u32 s59, s59, {96*FS}")
        for c in range(8):
            a(f"s_add_u32 s49, s60, {c*4096}\nbuffer_store_dwordx4 {vr(O_+4*c,4)}, v17, s[36:39], s49 offen sc1")
        a(f"s_sub_u32 s60, s60, {3<<18}")
    a("s_branch a_gemm_end\na_fetch:\ns_barrier")
    kargs()
    a(f"""
    v_mul_u32_u24 v10, {FS}, v0
    v_add_u32 v10, {FL_S + 224*FS}, v10
    v_lshlrev_b32 v12, 4, v0
    v_mov_b32 v13, 0x7ffffff0
    s_lshl_b32 s44, s2, 13
    s_add_u32 s44, s44, {WS_U}
    s_waitcnt lgkmcnt(0)
    s_add_u32 s92, s92, 0x9e3779b1
    s_sleep {OPT.get("fslp", 32)}
    """)
    flag_poll("a_pf", 1, 10)
    for p in range(4):
        a(f"s_mov_b32 m0, {[147968, 156160, 40960, 49152][p]}\ns_add_u32 s45, s44, {(p&1)*4096 + (p>>1)*64*4096}")
        for i in range(4): a(f"buffer_load_dwordx4 v12, s[36:39], s45 offen offset:{1024*i} sc1 lds")
        a(f"""s_mov_b32 m0, {L_FL + 448 + 4*p}
        s_mov_b64 exec, 1
        buffer_load_dword v13, s[36:39], 0 offen lds
        s_mov_b64 exec, -1""")
    a("s_branch a_end")

    L2E = f2u(1.4426950408889634); L2E_LO = f2u(1.4426950408889634 - struct.unpack("<f", struct.pack("<I", L2E))[0])
    LN2 = f2u(0.6931471805599453)
    z0 = list(range(9)) + [14,15,16,20,21,24,25]
    z1 = [9,9,10,11,11,11,12,13,13,17,18,19,22,23,26,27]
    def pack(z, lo):
        v = 0
        for r in range(lo, lo+8): v |= (z[r]-r) << (4*(r-lo))
        return v
    a(f"""
    a_ssm:
    s_and_b32 s41, s3, 1                 ; half
    s_bfe_u32 s45, s3, 0x10001
    s_lshl_b32 s40, s2, 1
    s_add_u32 s40, s40, s45
    s_add_u32 s46, s40, {512 - 448}
    s_mul_i32 s42, s45, {KAREA}
    s_add_u32 s47, s42, 16384
    s_add_u32 s42, s42, 131072
    s_cmp_ge_u32 s3, 4
    s_cselect_b32 s40, s46, s40          ; channel
    s_cselect_b32 s42, s47, s42
    s_lshr_b32 s43, s3, 1
    s_lshl_b32 s43, s43, 13
    s_add_u32 s47, s43, {40960 - 16384}
    s_add_u32 s43, s43, 147968
    s_cmp_ge_u32 s3, 4
    s_cselect_b32 s43, s47, s43
    s_lshl_b32 s45, s40, 7
    s_lshl_b32 s46, s41, 6
    s_add_u32 s45, s45, s46
    v_add_u32 v2, s45, v0
    v_lshlrev_b32 v2, 1, v2
    s_lshl_b32 s45, s40, 1
    v_mov_b32 v3, s45
    s_waitcnt lgkmcnt(0)
    global_load_ushort v4, v3, s[20:21]
    global_load_ushort v6, v2, s[12:13]
    global_load_ushort v7, v2, s[14:15]
    global_load_ushort v8, v2, s[16:17]
    global_load_ushort v9, v2, s[18:19]
    global_load_ushort v5, v3, s[22:23]
    s_barrier
    """)
    kargs()
    a(f"""
    v_and_b32 v14, 31, v0
    v_and_b32 v16, 3, v14
    v_lshrrev_b32 v17, 3, v14
    v_lshl_add_u32 v16, v17, 2, v16
    v_mov_b32 v17, {pack(z0,0):#x}
    v_mov_b32 v18, {pack(z0,8):#x}
    v_mov_b32 v19, {pack(z1,0):#x}
    v_mov_b32 v20, {pack(z1,8):#x}
    v_cmp_lt_u32 vcc, 7, v16
    v_and_b32 v21, 4, v14
    v_and_b32 v22, 7, v16
    v_cndmask_b32 v17, v17, v18, vcc
    v_cndmask_b32 v19, v19, v20, vcc
    v_cmp_ne_u32 vcc, 0, v21
    v_lshlrev_b32 v22, 2, v22
    v_lshrrev_b32 v15, 5, v0
    v_cndmask_b32 v17, v17, v19, vcc
    v_bfe_u32 v17, v17, v22, 4
    v_add_u32 v17, v17, v16
    v_lshlrev_b32 v15, 2, v15
    s_mov_b32 s50, 0x3f80
    """)
    for (zr, dst) in ((14, 40), (17, 48)):
        a(f"""v_and_b32 v18, 1, v{zr}
        v_lshlrev_b32 v18, 4, v18
        v_lshlrev_b32 v18, v18, s50
        v_lshrrev_b32 v19, 1, v{zr}
        v_sub_u32 v19, v19, v15""")
        for d in range(8): a(f"v_cmp_eq_u32 s[{52+2*d}:{53+2*d}], {8*(d>>2) + (d&3)}, v19")
        for d in range(8): a(f"v_cndmask_b32 v{dst+d}, 0, v18, s[{52+2*d}:{53+2*d}]")
    a(f"""
    s_mov_b32 s50, {L2E:#x}
    s_mov_b32 s51, {L2E_LO:#x}
    s_mov_b32 s52, {LN2:#x}
    s_mov_b32 s53, {f2u(248.0):#x}
    s_mov_b32 s54, {f2u(8.0):#x}
    s_waitcnt vmcnt(0) lgkmcnt(0)
    s_add_u32 s92, s92, 0x9e3779b1
    """)
    stamp("Afirst")
    if "nossm" in OPT: a("s_branch a_end")
    def exp_bf16(x, t, lo):
        a(f"""v_mul_f32 v{t}, s50, v{x}
        v_fma_f32 v{lo}, v{x}, s50, -v{t}
        v_exp_f32 v{t}, v{t}
        v_fma_f32 v{lo}, v{x}, s51, v{lo}
        v_mul_f32 v{lo}, s52, v{lo}
        v_fma_f32 v{t}, v{t}, v{lo}, v{t}
        v_cvt_pk_bf16_f32 v{t}, v{t}, v{t}
        v_lshlrev_b32 v{x}, 16, v{t}""")
    for r in range(4, 10): a(f"v_lshlrev_b32 v{r}, 16, v{r}")
    exp_bf16(4, 20, 21)
    exp_bf16(6, 20, 21)
    a("""
    v_mul_f32 v6, v6, v4
    v_mul_f32 v7, v7, v4
    v_mul_f32 v8, v8, v4
    v_mul_f32 v9, v9, v4
    v_mul_f32 v6, s50, v6                ; -Re(z)*log2e
    v_mul_f32 v7, 0.15915494, v7         ; Im(z)/(2pi)
    v_add_f32 v8, v8, v8
    v_mul_f32 v9, -2.0, v9
    """)
    DL = [8, 1, 2, 4, 248]
    DS = {8: "s54", 1: "1.0", 2: "2.0", 4: "4.0", 248: "s53"}
    MR = {d: 24 + 2*i for i, d in enumerate(DL)}
    def mkE(d):
        a(f"""v_mul_f32 v21, {DS[d]}, v6
        v_mul_f32 v22, {DS[d]}, v7
        v_exp_f32 v21, -v21
        v_fract_f32 v22, v22
        v_cos_f32 v20, v22
        v_sin_f32 v22, v22
        v_mul_f32 v{MR[d]}, v21, v20
        v_mul_f32 v{MR[d]+1}, v21, v22""")
    P = 56; Dt = 88; YO = 120; ACC = 152
    R = lambda z: 34 + 2*(z % 3)
    def chain(dl, conj, mid=None):
        n = "-" if conj else ""; p = "" if conj else "-"
        for z in range(len(dl) + 1):
            cur, nxt = R(z), R(z+1)
            if z < len(dl):
                W = MR[dl[z]]
                a(f"v_mul_f32 v{nxt}, v{cur}, v{W}\nv_mul_f32 v{nxt+1}, v{cur+1}, v{W}")
            if z & 1: a(f"v_cvt_pk_bf16_f32 v{P+(z>>1)}, v{R(z-1)}, v{cur}")
            if z < len(dl): a(f"v_fma_f32 v{nxt}, {p}v{cur+1}, v{W+1}, v{nxt}\nv_fma_f32 v{nxt+1}, {n}v{cur}, v{W+1}, v{nxt+1}")
            if z & 1: a(f"v_cvt_pk_bf16_f32 v{P+16+(z>>1)}, v{R(z-1)+1}, v{cur+1}")
            if mid and z == 4: mid()
    def swaps(comp):
        for pr in range(2):
            for t in range(4): a(f"v_permlane32_swap_b32 v{P+16*comp+8*pr+t}, v{P+16*comp+8*pr+4+t}")
    def tmfma(comp, sel):
        for blk in range(2): a(f"v_mfma_f32_32x32x16_bf16 {vr(Dt+16*blk,16)}, {vr(P+16*comp+4*blk,4)}, {vr(sel,4)}, 0")
        for blk in range(2): a(f"v_mfma_f32_32x32x16_bf16 {vr(Dt+16*blk,16)}, {vr(P+16*comp+8+4*blk,4)}, {vr(sel+4,4)}, {vr(Dt+16*blk,16)}")
    def tcvt(dst):
        for i in range(16): a(f"v_cvt_pk_bf16_f32 v{dst+i}, v{Dt+2*i}, v{Dt+2*i+1}")
    mkE(8)
    a(f"v_mov_b32 v{R(0)}, 1.0\nv_mov_b32 v{R(0)+1}, 0")
    chain([8]*31, False)
    mkE(1); swaps(0); swaps(1); tmfma(0, 40); mkE(2); mkE(4); tcvt(YO); tmfma(1, 40); mkE(248)
    a(f"v_mov_b32 v{R(0)}, v8\nv_mov_b32 v{R(0)+1}, v9")
    deltas = [1]*8 + [248] + [2]*4 + [248] + [4]*2 + [248] + [4]*2 + [248, 8, 248, 8, 248, 8, 248, 8]
    chain(deltas, True, mid=lambda: tcvt(YO+16))
    a("v_lshl_add_u32 v21, s41, 6, v0\nv_cmp_eq_u32 vcc, 0, v21\nv_sub_u32 v21, 63, v0")
    swaps(0); swaps(1); tmfma(0, 48)
    a(f"""
    v_cndmask_b32 v5, 0, v5, vcc
    v_lshl_add_u32 v21, v21, 4, s42
    s_lshl_b32 s46, s3, 4
    v_add_u32 v22, s46, v23
    v_xor_b32 v20, 16, v22               ; partner's
    v_mov_b32 v19, 0
    s_nop 5
    """)
    tcvt(P); tmfma(1, 48)
    for i in range(4): a(f"v_mfma_f32_32x32x16_bf16 {vr(ACC,16)}, {vr(P+4*i,4)}, {vr(YO+4*i,4)}, " + ("0" if i == 0 else vr(ACC,16)))
    a("s_nop 7")
    tcvt(P+16)
    a("s_nop 1")
    for i in range(4, 8): a(f"v_mfma_f32_32x32x16_bf16 {vr(ACC,16)}, {vr(P+4*i,4)}, {vr(YO+4*i,4)}, {vr(ACC,16)}")
    stamp("Akgen")
    if "noconv" in OPT: a("s_branch a_end")
    CA = 24; CU = 68; CF = 132
    for i in range(44): a(f"v_mov_b32 v{CA+i}, 0")
    for i in range(32): a(f"v_mov_b32 v{CU+i}, 0")
    a(f"""
    v_and_b32 v12, 31, v0
    v_lshrrev_b32 v13, 5, v0             ; h
    v_lshlrev_b32 v16, 5, v12
    v_lshl_add_u32 v16, v13, 4, v16
    s_lshl_b32 s45, s41, 7
    s_sub_u32 s44, s43, s45
    s_sub_u32 s44, s44, 96
    v_add_u32 v16, s44, v16
    s_lshl_b32 s45, s41, 2
    v_lshlrev_b32 v17, 3, v13
    v_sub_u32 v17, v17, v12
    v_lshlrev_b32 v17, 1, v17            ; 2*(8h - b)
    v_and_b32 v18, 1, v12
    v_cmp_eq_u32 s[56:57], 1, v18        ; b odd
    v_xor_b32 v18, 1, v18
    v_mul_u32_u24 v18, {KC + 2}, v18
    s_lshl_b32 s46, s41, 8
    s_sub_u32 s46, s42, s46
    s_add_u32 s46, s46, {62 + 120*32}
    v_add3_u32 v17, v17, v18, s46
    v_subrev_u32 v18, 2048, v17
    v_add_f32 v{ACC}, v{ACC}, v5
    v_lshl_add_u32 v133, v0, 2, s42
    s_add_u32 s46, s43, 4096
    v_lshl_add_u32 v138, v0, 4, s46
    """)
    for G in range(4): a(f"v_add_u32 v{134+G}, {(3-G)*1024 + KC}, v21")
    a(f"""
    s_cmp_ge_u32 s27, 28
    s_cbranch_scc1 a_s_g2
    a_s_w2:
    ds_read_b128 v[8:11], v23 offset:128
    s_waitcnt lgkmcnt(0)
    v_or_b32 v8, v8, v9
    v_or3_b32 v8, v8, v10, v11
    v_cmp_eq_u32 vcc, 0, v8
    s_cbranch_vccnz a_s_g2
    s_sleep 1
    s_branch a_s_w2
    a_s_g2:
    s_setprio 3
    s_cmp_eq_u32 s41, 0
    s_cbranch_scc1 a_s_even
    """)
    d = lambda r: f"v{ACC+r}" if r < 16 else f"v{r-24}"
    units = [
      (0, 0, [(7,6),(5,4),(3,2),(1,0)]), (0, 1, [(8,7),(6,5),(4,3),(2,1)]),
      (1, 0, [(11,11),(10,10),(10,9),(9,9)]), (1, 1, [(11,11),(11,10),(10,10),(9,9)]),
      (2, 0, [(13,13),(13,32),(12,12),(12,12)]), (2, 1, [(13,13),(13,13),(32,12),(12,12)]),
      (3, 0, [(15,15),(15,33),(14,14),(14,14)]), (3, 1, [(15,15),(15,15),(33,14),(14,14)])]
    def build(us):
        for ui in us:
            G, cp, prs = units[ui]; o = 100 + 4*ui
            for t, (lo, hi) in enumerate(prs): a(f"v_cvt_pk_bf16_f32 v{o+t}, {d(lo)}, {d(hi)}")
            if cp == 0: a(f"ds_write_b128 v21, {vr(o,4)} offset:{(3-G)*1024}")
            else: a(f"ds_write2_b32 v{134+G}, v{o}, v{o+1} offset0:0 offset1:1\nds_write2_b32 v{134+G}, v{o+2}, v{o+3} offset0:2 offset1:3")
    for i in range(3): a(f"ds_write_b128 v138, {vr(ACC+4*i,4)} offset:{1024*i}")
    a("ds_write_b32 v22, v19 offset:256")
    lds_wait("a_s_o0", 20, 256, 8)
    a("ds_read_b128 v[140:143], v21\ns_waitcnt lgkmcnt(0)")
    for i in range(4): a(f"v_add_f32 v{ACC+12+i}, v{ACC+12+i}, v{140+i}")
    a(f"v_cndmask_b32 v8, {d(12)}, {d(13)}, s[56:57]\nv_cndmask_b32 v9, {d(14)}, {d(15)}, s[56:57]")
    build([4, 5, 6, 7])
    a(f"s_branch a_s_u\na_s_even:\nds_write_b128 v21, {vr(ACC+12,4)}\nds_write_b32 v22, v19 offset:256")
    lds_wait("a_s_e0", 20, 256, 8)
    for i in range(3): a(f"ds_read_b128 {vr(140+4*i,4)}, v138 offset:{1024*i}")
    a("v_cmp_eq_u32 vcc, 0, v0\ns_waitcnt lgkmcnt(0)")
    for i in range(12): a(f"v_add_f32 v{ACC+i}, v{ACC+i}, v{140+i}")
    build([0, 1, 2, 3])
    a(f"""
    v_cvt_pk_bf16_f32 v132, {d(0)}, v19
    s_mov_b64 exec, 0x7fff
    ds_write_b32 v133, v19 offset:4096   ; zeros behind both copies; the odd copy ends with K[0]
    s_mov_b64 exec, 0xffff
    v_cndmask_b32 v132, 0, v132, vcc
    ds_write_b32 v133, v132 offset:{4096 + KC}
    s_mov_b64 exec, -1
    a_s_u:
    ds_write_b32 v22, v19 offset:268
    s_setprio 0
    s_lshr_b32 s46, s3, 1
    s_lshl_b32 s46, s46, 2
    v_add_u32 v9, s46, v23
    """)
    lds_wait("a_s_uw", 9, 448, 8)
    for q in range(4):
        a(f"s_add_u32 s46, s45, {q}\ns_lshl_b32 exec_lo, -1, s46\ns_mov_b32 exec_hi, exec_lo")
        for es in range(2): a(f"ds_read_b128 {vr(CU+8*q+4*es,4)}, v16 offset:{es*2048 + (3-q)*32}")
        a("s_mov_b64 exec, -1")
        for es in range(2): a(f"ds_read_b128 {vr(CU+32+8*q+4*es,4)}, v16 offset:{es*2048 + 1024 + (3-q)*32}")
        if q == 2: a("s_waitcnt lgkmcnt(4)")
    lds_wait("a_s_o1", 20, 268, 8)
    stamp("Abuilt")
    steps = [(k, q, es) for k in range(4) for q in range(4) for es in range(2)]
    def frd(i):
        k, q, es = steps[i]; b = CF + 8*(i & 3); o = (6 - 2*q + es) * 8
        if q == 0 and es == 0 and k: a("v_subrev_u32 v17, 512, v17\nv_subrev_u32 v18, 512, v18")
        a(f"""ds_read2_b32 {vr(b,2)}, v17 offset0:{o} offset1:{o+1}
        ds_read2_b32 {vr(b+2,2)}, v17 offset0:{o+2} offset1:{o+3}
        ds_read2_b32 {vr(b+4,2)}, v18 offset0:{o} offset1:{o+1}
        ds_read2_b32 {vr(b+6,2)}, v18 offset0:{o+2} offset1:{o+3}""")
    for i in range(3): frd(i)
    for i, (k, q, es) in enumerate(steps):
        b = CF + 8*(i & 3); U0 = vr(CU+8*q+4*es, 4); U1 = vr(CU+32+8*q+4*es, 4)
        lo = vr(CA+4*k, 16); hi = vr(CA+16+4*k, 16)
        w = f"s_waitcnt lgkmcnt({4*min(2, 31-i)})"
        a(w)
        if q == 0 and es == 0 and k: a("s_nop 9")
        a(f"v_mfma_f32_32x32x16_bf16 {lo}, {U0}, {vr(b,4)}, {lo}")
        a(f"v_mfma_f32_32x32x16_bf16 {hi}, {U1}, {vr(b,4)}, {hi}")
        if i + 3 < 32: frd(i+3)
        a(f"v_mfma_f32_32x32x16_bf16 {hi}, {U0}, {vr(b+4,4)}, {hi}")
    stamp("Aconv")
    a(f"""
    ds_write_b32 v22, v19 offset:260
    s_lshl_b32 s46, s41, 12
    s_add_u32 s46, s46, s42
    v_lshl_add_u32 v16, v0, 4, s46
    s_lshl_b32 s46, s41, 13
    s_sub_u32 s46, 4096, s46
    v_add_u32 v17, s46, v16              ; partner's
    v_lshlrev_b32 v18, 4, v0
    s_lshl_b32 s44, s40, 12
    s_lshl_b32 s45, s41, 11
    s_add_u32 s44, s44, s45
    s_add_u32 s44, s44, {WS_Y}
    s_lshl_b32 s59, s40, 1
    s_add_u32 s59, s59, s41
    s_mul_i32 s59, s59, {FS}
    s_add_u32 s59, s59, {FL_Y}
    """)
    lds_wait("a_s_y1", 20, 260, 12)
    a("s_cmp_eq_u32 s41, 0\ns_cbranch_scc1 a_s_y0")
    for i in range(4): a(f"ds_write_b128 v16, {vr(CA+4*i,4)} offset:{1024*i}")
    a("ds_write_b32 v22, v19 offset:264\ns_waitcnt lgkmcnt(0)")
    for i in range(16): a(f"v_mov_b32 v{CA+i}, v{CA+16+i}")
    a("s_branch a_s_y2\na_s_y0:")
    for i in range(4): a(f"ds_write_b128 v16, {vr(CA+16+4*i,4)} offset:{1024*i}")
    a("ds_write_b32 v22, v19 offset:264\na_s_y2:")
    lds_wait("a_s_y3", 20, 264, 12)
    for i in range(4): a(f"ds_read_b128 {vr(CU+4*i,4)}, v17 offset:{1024*i}")
    a("s_waitcnt lgkmcnt(0)")
    for i in range(16): a(f"v_add_f32 v{CA+i}, v{CA+i}, v{CU+i}")
    for i in range(8): a(f"v_cvt_pk_bf16_f32 v{CF+i}, v{CA+2*i}, v{CA+2*i+1}")
    for g in range(2): a(f"buffer_store_dwordx4 {vr(CF+4*g,4)}, v18, s[36:39], s44 offen offset:{1024*g} sc1")
    stamp("Aend")
    a("s_mov_b32 s62, s59\ns_branch a_end1")
    a(f"""a_end:
    s_mov_b32 s62, 0
    a_end1:
    v_mov_b32 v116, v0
    s_lshl_b32 s44, s3, 2
    s_add_u32 s44, s44, {L_FL}
    v_mov_b32 v4, s44
    v_mov_b32 v5, 0
    ds_write_b32 v4, v5 offset:400""")

S = [0, 16]; O = 32; NEG = 48; P = 64; KF = [72, 76]; TF = [80, 84]; VF = [88, 96]; Q = 104; QL = 108; QH = 110
vK, vT, vV = 112, 113, 114
def rdK(buf, t): a(f"ds_read_b128 {vr(KF[buf],4)}, v{vK} offset:{1024*t}")
def rdT(buf, q): a(f"ds_read2st64_b64 {vr(TF[buf],4)}, v{vT} offset0:{2*q} offset1:{2*q+1}")
def rdV(buf, t):
    a(f"""s_mov_b64 exec, s[18:19]
    ds_read_b128 {vr(VF[buf],4)}, v{vV} offset:{t*1152}
    ds_read_b128 {vr(VF[buf]+4,4)}, v{vV} offset:{t*1152+576}
    s_mov_b64 exec, -1""")
def qk_tail(t, tb):
    tt = t & 3
    a(f"v_mfma_f32_32x32x8_bf16 {vr(S[t&1],16)}, {vr(TF[tb]+2*(tt>>1),2)}, {vr(QH if tt&1 else QL,2)}, {vr(S[t&1],16)}")
def pv(t, half): a(f"v_mfma_f32_32x32x16_bf16 {vr(O,16)}, {vr(VF[t&1]+4*half,4)}, {vr(P+4*half,4)}, {vr(O,16)}")
def ex(t, r0, r1):
    for r in range(r0, r1): a(f"v_exp_f32 v{S[t&1]+r}, v{S[t&1]+r}")
def cv(t, c0, c1):
    for c in range(c0, c1): a(f"v_cvt_pk_bf16_f32 v{P+c}, v{S[t&1]+2*c}, v{S[t&1]+2*c+1}")
LATER = []
def att_run():
    tag = "b_f"
    def qk_main(t): a(f"v_mfma_f32_32x32x16_bf16 {vr(S[t&1],16)}, {vr(KF[t&1],4)}, {vr(Q,4)}, 0")
    rdK(0, 0); rdT(0, 0); rdK(1, 1); rdV(0, 0)
    a("s_mov_b32 s26, 0\ns_waitcnt lgkmcnt(3)")
    qk_main(0); qk_tail(0, 0)
    a(f"s_nop 7\ns_nop 3\n.p2align 6\n{tag}_loop:")
    def at(it, t, code):
        a(f"s_cmp_eq_u32 s26, {it}\ns_cbranch_scc1 {tag}_e{it}_{t}\n{tag}_n{it}_{t}:")
        def h():
            a(f"{tag}_e{it}_{t}:"); code(); a(f"s_branch {tag}_n{it}_{t}")
        LATER.append(h)
    def bar1():
        a("s_cmp_eq_u32 s62, 0\ns_cbranch_scc1 b_nyf\ns_waitcnt vmcnt(0)")
        flag_set("s62", 122)
        a("b_nyf:\ns_barrier\ns_setprio 3")
    def chk1():
        a(f"""v_mov_b32 v121, {L_FL}
        {tag}_f1:
        ds_read_b96 v[124:126], v121 offset:464
        s_waitcnt lgkmcnt(0)
        v_or3_b32 v124, v124, v125, v126
        v_cmp_eq_u32 vcc, 0, v124
        s_cbranch_vccz {tag}_f1""")
    def half():
        a(f"""s_lshl_b32 s27, s3, 2
        s_add_u32 s27, s27, {L_KT}
        v_mov_b32 v121, s27
        v_mov_b32 v122, s92
        ds_write_b32 v121, v122
        s_setprio 1""")
    EV = {(1,2): lambda: a("s_setprio 2"), (1,4): bar1, (0,5): chk1, (5,0): lambda: a("s_setprio 2"), (6,1): half, (7,5): lambda: a("s_setprio 0")}
    for t in range(8):
        for (it, tt), code in EV.items():
            if tt == t: at(it, t, code)
        def adv():
            if t == 7:
                a(f"""v_add_u32 v{vK}, 8192, v{vK}
                v_add_u32 v{vT}, 2048, v{vT}
                v_add_u32 v{vV}, 9216, v{vV}
                s_add_u32 s26, s26, 1
                s_cmp_lt_u32 s26, 8""")
        def rK():
            rdK(t&1, t+2)
            if (t & 3) == 1: rdT(((t>>2)+1)&1, (t>>2)+1)
        M1 = lambda: qk_main(t+1); M2 = lambda: pv(t-1, 1); M3 = lambda: qk_tail(t+1, ((t+1)>>2)&1); M4 = lambda: pv(t, 0)
        rV = lambda: rdV((t+1)&1, t+1)
        E = lambda i, j: ex(t, i, j); C = lambda i, j: cv(t, i, j)
        a("s_waitcnt lgkmcnt(0)")
        o = OPT.get("ord", "a")
        if o == "a":
            M1(); rK(); E(0,4); M2(); rV(); E(4,8); C(0,4); M3(); E(8,12); M4(); adv(); E(12,16); C(4,8)
        elif o == "b":
            M1(); rK(); M2(); rV(); E(0,8); C(0,4); M3(); E(8,9); M4(); adv(); E(9,16); C(4,8)
        elif o == "c":
            M1(); rK(); E(0,5); M2(); rV(); E(5,8); C(0,4); M3(); E(8,13); M4(); adv(); E(13,16); C(4,8)
        elif o == "d":
            M1(); rK(); E(0,4); C(0,1); M2(); rV(); E(4,8); C(1,3); M3(); E(8,12); C(3,5); E(12,13); M4(); adv(); E(13,16); C(5,8)
        elif o == "e":
            M1(); rK(); M2(); rV(); M3(); E(0,8); C(0,4); E(8,10); M4(); adv(); E(10,16); C(4,8)
        elif o == "f":
            M1(); E(0,2); rK(); E(2,4); M2(); E(4,6); rV(); E(6,8); C(0,4); M3(); E(8,12); M4(); adv(); E(12,16); C(4,8)
    a(f"s_cbranch_scc1 {tag}_loop")
    stamp("Bloop")
    a("s_nop 1")
    pv(7, 1)

def phaseB():
    TOUCH = "" if OPT.get("tch", "0") == "0" else f"""s_cmp_lg_u32 s3, 10
    s_cbranch_scc1 b_ntch
    v_lshlrev_b32 v121, 16, v116
    s_mov_b32 s12, {WS_O}
    buffer_load_dword v114, v121, s[36:39], s12 offen
    s_mov_b32 s12, {WS_FL}
    buffer_load_dword v113, v121, s[36:39], s12 offen
    buffer_load_dword v112, v121, s[32:35], 0 offen
    s_mov_b32 s12, {64 << 16}
    buffer_load_dword v111, v121, s[32:35], s12 offen
    b_ntch:"""
    a(f"""
    s_cmp_ge_u32 s3, 8
    s_cbranch_scc1 b_aux
    s_and_b32 s4, s2, 31                 ; head
    s_lshr_b32 s5, s2, 5
    s_lshl_b32 s5, s5, 3
    s_add_u32 s5, s5, s3
    s_and_b32 s7, s4, 3
    v_lshlrev_b32 v{vK}, 4, v116
    v_and_b32 v117, 31, v116
    v_lshlrev_b32 v119, 4, v116
    s_lshl_b32 s8, s3, 10
    s_add_u32 s8, s8, {L_Q}
    v_add_u32 v120, s8, v{vK}
    s_lshl_b32 s8, s3, 8
    s_add_u32 s8, s8, {L_Q + 8192}
    v_lshl_add_u32 v118, v117, 3, s8
    """)
    for i in range(16): a(f"v_mov_b32 v{O+i}, 0")
    for i in range(4): a(f"v_mov_b32 v{P+4+i}, 0")
    a(f"""v_and_b32 v121, 27, v116
    v_cmp_eq_u32 vcc, 18, v121
    v_mov_b32 v121, 0x3f803f80
    s_nop 0
    v_cndmask_b32 v{VF[0]}, 0, v121, vcc""")
    for i in range(1, 16): a(f"v_mov_b32 v{VF[0]+i}, v{VF[0]}")
    a(f"""
    v_lshlrev_b32 v{vT}, 3, v116
    v_add_u32 v{vT}, {L_KT}, v{vT}
    v_lshrrev_b32 v121, 5, v116
    v_mul_u32_u24 v121, 288, v121
    v_lshl_add_u32 v{vV}, v117, 4, v121
    v_add_u32 v{vV}, {L_V}, v{vV}
    s_mov_b32 s18, 0x3ffff
    s_mov_b32 s19, 0x3ffff
    s_mov_b32 s21, {f2u(18**-0.5 * 1.4426950408889634):#x}
    v_cmp_lt_u32 s[22:23], 31, v116
    s_setprio 3
    """)
    stamp("Bflag")
    a(f"""
    s_barrier
    ds_read_b128 {vr(Q,4)}, v120
    ds_read_b64 {vr(QL,2)}, v118
    s_waitcnt lgkmcnt(0)
    s_barrier
    """)
    for r in list(range(Q, Q+4)) + [QL, QL+1]:
        a(f"""v_lshlrev_b32 v121, 16, v{r}
        v_and_b32 v{r}, 0xffff0000, v{r}
        v_mul_f32 v121, s21, v121
        v_mul_f32 v{r}, s21, v{r}
        v_cvt_pk_bf16_f32 v{r}, v121, v{r}""")
    a(f"""
    s_cmp_eq_u32 s7, 1
    s_cselect_b32 vcc_lo, -1, 0
    s_mov_b32 vcc_hi, 0
    v_cndmask_b32 v{Q}, v{Q}, 0, vcc
    s_cmp_eq_u32 s7, 2
    s_cselect_b32 vcc_hi, -1, 0
    s_mov_b32 vcc_lo, 0
    v_cndmask_b32 v{Q+3}, v{Q+3}, 0, vcc
    s_cmp_eq_u32 s7, 3
    s_cselect_b64 vcc, -1, 0
    v_cndmask_b32 v{QL}, v{QL}, 0, vcc
    s_cmp_eq_u32 s7, 0
    s_cselect_b64 vcc, -1, 0
    v_cndmask_b32 v{QL+1}, v{QL+1}, 0, vcc
    v_cndmask_b32 v{QH}, 0, v{QL}, s[22:23]
    v_cndmask_b32 v{QH+1}, 0, v{QL+1}, s[22:23]
    v_cndmask_b32 v{QL}, v{QL}, 0, s[22:23]
    v_cndmask_b32 v{QL+1}, v{QL+1}, 0, s[22:23]
    """)
    stamp("Bgo")
    att_run()
    a(f"""
    s_mul_i32 s10, s5, {O_T}
    s_add_u32 s10, s10, {WS_O}
    s_lshl_b32 s11, s4, 10
    s_add_u32 s11, s11, s10
    s_lshl_b32 s12, s4, 7
    s_add_u32 s12, s12, s10
    s_add_u32 s12, s12, 32768
    s_lshl_b32 s59, s5, 5
    s_add_u32 s59, s59, s4
    s_mul_i32 s59, s59, {FS}
    s_add_u32 s59, s59, {FL_B}
    s_mov_b32 s27, {f2u(2.0**100):#x}
    v_lshlrev_b32 v127, 2, v116
    s_nop 1
    v_max3_f32 v121, abs(v{O}), abs(v{O+1}), abs(v{O+2})
    v_max3_f32 v121, abs(v{O+3}), abs(v{O+4}), v121
    v_max3_f32 v121, abs(v{O+5}), abs(v{O+6}), v121
    v_max3_f32 v121, abs(v{O+7}), abs(v{O+8}), v121
    v_add_f32 v122, v{O}, v{O+1}
    v_add_f32 v123, v{O+2}, v{O+3}
    v_add_f32 v124, v{O+4}, v{O+5}
    v_add_f32 v125, v{O+6}, v{O+7}
    v_add_f32 v126, v{O+8}, v{O+9}
    v_add_f32 v122, v122, v123
    v_add_f32 v124, v124, v125
    v_add_f32 v122, v122, v126
    v_add_f32 v122, v122, v124
    v_max3_f32 v121, abs(v{O+9}), v{O+10}, v121
    v_cmp_ngt_f32 vcc, s27, v121
    v_cmp_nle_f32 s[28:29], 1.0, v{O+10}
    v_cmp_u_f32 s[30:31], v122, v122
    s_or_b64 vcc, vcc, s[28:29]
    s_or_b64 vcc, vcc, s[30:31]
    s_cbranch_vccnz b_slow
    b_fin:
    v_rcp_f32 v121, v{O+10}
    s_nop 0
    """)
    for r in range(10): a(f"v_mul_f32 v{O+r}, v{O+r}, v121")
    for c in range(5): a(f"v_cvt_pk_bf16_f32 v{P+c}, v{O+2*c}, v{O+2*c+1}")
    a(f"""
    buffer_store_dwordx4 {vr(P,4)}, v119, s[36:39], s11 offen sc1
    s_mov_b32 exec_hi, 0
    buffer_store_dword v{P+4}, v127, s[36:39], s12 offen sc1
    s_mov_b32 exec_hi, -1
    v_mov_b32 v0, v116
    s_branch c_start
    """)
    for h in LATER: h()
    a(f"""
    b_aux:
    s_and_b32 s4, s2, 31
    s_mul_i32 s6, s4, 9
    s_lshr_b32 s6, s6, 2
    v_mov_b32 v8, {L_FL}
    s_setprio 3
    s_cmp_lg_u32 s3, 11
    s_cbranch_scc1 b_nopoll
    s_mul_i32 s9, s4, 18
    v_lshrrev_b32 v7, 5, v116
    v_lshl_add_u32 v9, v7, 1, s6
    v_add_u32 v10, 72, v9
    v_lshrrev_b32 v10, 3, v10
    v_and_b32 v11, 31, v116
    v_lshl_add_u32 v10, v10, 5, v11
    v_mul_u32_u24 v120, {FS}, v10
    v_mul_u32_u24 v10, 17, v7
    v_add_u32 v10, s9, v10
    v_add_u32 v10, 1152, v10
    v_lshrrev_b32 v10, 6, v10
    v_lshl_add_u32 v10, v10, 5, v11
    v_mul_u32_u24 v121, {FS}, v10
    v_lshrrev_b32 v10, 3, v9
    s_lshr_b32 s9, s2, 5
    s_lshl_b32 s9, s9, 2
    v_and_b32 v11, 3, v116
    v_add_u32 v11, s9, v11
    v_lshl_add_u32 v10, v10, 5, v11
    v_mul_u32_u24 v122, {FS}, v10
    s_cmp_ge_u32 s2, 224
    s_cselect_b32 s9, 16, 0
    v_add_u32 v9, s9, v8
    b_pw:
    s_sleep 1
    ds_read_b128 v[12:15], v9 offset:416
    s_waitcnt lgkmcnt(0)
    v_or_b32 v12, v12, v13
    v_or3_b32 v12, v12, v14, v15
    v_cmp_eq_u32 vcc, 0, v12
    s_cbranch_vccz b_pw
    """)
    if OPT.get("spw", "1") == "1":
        a("s_cmp_lt_u32 s2, 224\ns_cbranch_scc1 b_pw2_x")
        lds_wait("b_pw2", 8, 400, 12, True)
        a("b_pw2_x:")
    stamp("Xpw")
    flag_poll("b_pa", 3, 120)
    stamp("Xpoll")
    a(f"""
    v_mov_b32 v9, 0
    ds_write_b32 v8, v9 offset:244
    b_nopoll:
    s_bitcmp1_b32 s3, 0
    s_cbranch_scc1 b_ldv
    s_bfe_u32 s7, s4, 0x10001
    s_add_u32 s8, s6, s7
    s_lshl_b32 s8, s8, 9
    s_lshl_b32 s9, s6, 9
    s_mul_i32 s10, s7, {1024 - 8}
    s_sub_u32 s9, s9, s10
    s_add_u32 s9, s9, 1024
    v_lshlrev_b32 v118, 4, v116
    v_lshrrev_b32 v119, 1, v116
    v_lshlrev_b32 v119, 4, v119
    v_and_b32 v120, 1, v116
    v_lshl_add_u32 v119, v120, 2, v119
    s_lshr_b32 s15, s2, 5
    s_mul_i32 s15, s15, {8*QK_T}
    s_cmp_eq_u32 s3, 10
    s_cbranch_scc1 b_ldt
    """)
    def zflag(off):
        a(f"""s_mov_b32 s13, m0
        s_mov_b32 m0, {L_FL + off}
        v_mov_b32 v13, 0x7ffffff0
        s_mov_b64 exec, 1
        buffer_load_dword v13, s[36:39], 0 offen lds
        s_mov_b64 exec, -1
        s_mov_b32 m0, s13""")
    def stream(tag, op, vreg, sbase, lq, lk, step, fl):
        a(f"s_add_u32 s15, s15, {sbase}\ns_add_u32 s16, {sbase}, {72*512}\ns_mov_b32 m0, {lq}\ns_mov_b32 s12, 8")
        lds_wait(f"{tag}_go", 8, 244, 9, True)
        def loop(t, sreg):
            a(f"""{t}:
            {op} v{vreg}, s[36:39], {sreg} offen sc1 lds
            s_add_u32 m0, m0, {step}
            s_add_u32 {sreg}, {sreg}, {QK_T}
            s_sub_u32 s12, s12, 1
            s_cmp_lg_u32 s12, 0
            s_cbranch_scc1 {t}""")
        loop(f"{tag}_q", "s15")
        a(f"s_mov_b32 m0, {lk}\ns_mov_b32 s12, 8")
        loop(f"{tag}_1", "s16")
        stamp("Xiss")
        a("s_mov_b32 s12, 8\ns_waitcnt vmcnt(0)")
        stamp("Xland")
        a("s_barrier\ns_barrier")
        loop(f"{tag}_2", "s16")
        zflag(fl)
        a("s_mov_b32 s12, 48")
        loop(f"{tag}_3", "s16")
        a("s_branch b_lend")
    stream("b_k", "buffer_load_dwordx4", 118, "s8", L_Q, 0, 1024, 464)
    a("b_ldt:")
    stream("b_t", "buffer_load_dword", 119, "s9", L_Q + 8192, L_KT, 256, 468)
    a(f"""
    b_ldv:
    s_mov_b32 s10, {9216 - 288}
    """)
    for p in range(9):
        a(f"""v_add_u32 v10, {64*p}, v116
        v_mul_u32_u24 v11, 3641, v10
        v_lshrrev_b32 v11, 16, v11
        v_mul_lo_u32 v11, v11, s10
        v_lshl_add_u32 v{24+p}, v10, 4, v11""")
    a(f"""
    s_bfe_u32 s9, s3, 0x10001
    s_mul_i32 s8, s9, {32*9216}
    s_mul_i32 s10, s4, 288
    s_add_u32 s8, s8, s10
    s_add_u32 s8, s8, {WS_V}
    s_mul_i32 s9, s9, 9216
    s_add_u32 m0, s9, {L_V}
    s_mov_b32 s12, 0
    """)
    a("s_cmp_eq_u32 s3, 9\ns_cbranch_scc1 b_v_go\ns_barrier\ns_barrier\ns_branch b_v")
    lds_wait("b_v_go", 8, 244, 9, True)
    a("b_v:")
    for p in range(9): a(f"buffer_load_dwordx4 v{24+p}, s[36:39], s8 offen sc1 lds\ns_add_u32 m0, m0, {1024 if p < 8 else 1024 + 9216}\ns_nop 0")
    a(f"""
    s_add_u32 s8, s8, {64*9216}
    s_cmp_lg_u32 s12, 0
    s_cbranch_scc1 b_v1
    s_cmp_eq_u32 s3, 9
    s_cbranch_scc1 b_v0
    """)
    zflag(472)
    a(f"""
    s_branch b_v1
    b_v0:
    s_waitcnt vmcnt(0)
    s_barrier
    s_barrier
    b_v1:
    s_add_u32 s12, s12, 1
    s_cmp_lt_u32 s12, 4
    s_cbranch_scc1 b_v
    b_lend:
    s_waitcnt vmcnt(0)
    s_barrier
    s_setprio {OPT.get("aprio", 0)}
    """)
    srd(28, 94, 663552)
    srd(32, 96, 4718592)
    a(f"""
    s_lshr_b32 s12, s2, 3
    s_lshl_b32 s12, s12, 2
    s_add_u32 s12, s12, s3
    s_sub_u32 s12, s12, 8
    s_lshl_b32 s12, s12, 13
    v_lshlrev_b32 v121, 7, v116
    buffer_load_dword v115, v121, s[28:31], s12 offen
    {TOUCH}
    s_cmp_lg_u32 s3, {99 if ("nossm" in OPT or "noconv" in OPT) else 9}
    s_cbranch_scc1 b_noy
    s_mov_b32 s4, s2
    v_lshrrev_b32 v10, 3, v116
    v_and_b32 v9, 7, v116
    v_lshlrev_b32 v11, 12, v10
    v_lshl_add_u32 v11, v9, 4, v11
    v_xor_b32 v12, v10, v9
    v_lshlrev_b32 v12, 4, v12
    v_lshl_add_u32 v12, v9, 10, v12
    v_add_u32 v12, {L_BOUNCE}, v12
    s_mov_b32 s50, 0x05040100
    s_mov_b32 s51, 0x07060302
    """)
    for p in range(8): a(f"v_xor_b32 v{24+p}, {16*p}, v11")
    a(f"""
    b_y:
    s_lshr_b32 s5, s4, 5
    s_and_b32 s6, s4, 31                 ; sub
    s_lshl_b32 s7, s5, 7
    s_lshr_b32 s8, s6, 4
    s_add_u32 s7, s7, s8
    v_lshl_add_u32 v120, v116, 1, s7
    v_mul_u32_u24 v120, {FS}, v120
    v_add_u32 v120, {FL_Y}, v120
    """)
    flag_poll("b_py", 1, 120)
    a(f"""
    s_lshl_b32 s7, s5, 18
    s_lshl_b32 s8, s6, 7
    s_add_u32 s7, s7, s8
    s_add_u32 s7, s7, {WS_Y}
    s_mov_b32 m0, {L_BOUNCE}
    """)
    for p in range(8):
        a(f"s_nop 0\nbuffer_load_dwordx4 v{24+p}, s[36:39], s7 offen sc1 lds\ns_add_u32 m0, m0, 1024\ns_add_u32 s7, s7, 32768")
    a(f"""
    s_and_b32 s8, s6, 3
    s_lshl_b32 s8, s8, 3
    s_bfe_u32 s9, s6, 0x10002
    s_lshl_b32 s9, s9, 7
    s_add_u32 s8, s8, s9
    s_lshr_b32 s9, s6, 3
    s_lshl_b32 s9, s9, 9
    s_add_u32 s8, s8, s9
    v_add_u32 v17, s8, v10
    v_mul_u32_u24 v17, 2304, v17
    v_lshl_add_u32 v17, v9, 4, v17
    s_lshl_b32 s8, s5, 7
    s_add_u32 s8, s8, 1152
    s_waitcnt vmcnt(0)
    """)
    for j in range(8): a(f"ds_read_b128 {vr(32+4*j,4)}, v12 offset:{j*128}")
    a("s_waitcnt lgkmcnt(0)")
    transpose8(32, 64, 50, 51)
    for c in range(8):
        a(f"s_add_u32 s9, s8, {((c&3)*32 + (c>>2)*256)*2304}\nbuffer_store_dwordx4 {vr(64+4*c,4)}, v17, s[32:35], s9 offen {OPT.get('sty','sc1')}")
    a(f"""
    s_add_u32 s4, s4, 256
    s_cmp_lt_u32 s4, 288
    s_cbranch_scc1 b_y
    b_noy:
    s_setprio 0
    v_mov_b32 v0, v116
    s_lshr_b32 s5, s2, 5                 ; tn
    s_mul_i32 s17, s5, 192
    """)
    for t in range(3):
        a(f"""v_add_u32 v5, {64*t}, v0
        v_mul_u32_u24 v6, 5462, v5
        v_lshrrev_b32 v6, 16, v6             ; row
        v_mul_u32_u24 v7, 12, v6
        v_sub_u32 v7, v5, v7
        v_lshl_add_u32 v7, v7, 4, s17
        v_mul_u32_u24 v8, 1152, v6
        v_add_u32 v{12+t}, v8, v7
        v_and_b32 v9, 4, v6
        v_lshrrev_b32 v10, 3, v6
        v_lshl_add_u32 v9, v10, 1, v9
        v_bfe_u32 v10, v6, 1, 1
        v_add_u32 v9, v9, v10
        v_mul_u32_u24 v9, 18, v9
        v_and_b32 v10, 1, v6
        v_add3_u32 v9, v9, v10, 16
        v_mul_u32_u24 v9, 1152, v9
        v_add_u32 v{16+t}, v9, v7""")
    a(f"""
    s_sub_u32 s8, s3, 8
    s_mul_i32 s10, s8, {9*20736}
    s_mul_i32 s11, s8, {9*3072}
    s_add_u32 s12, s11, {L_V - 18*3072}
    s_cmp_ge_u32 s8, 2
    s_cselect_b32 m0, s12, s11
    s_mov_b32 s12, 20736
    s_mov_b32 s13, 0
    s_cmp_ge_u32 s2, 192
    s_cbranch_scc1 b_wend
    v_and_b32 v9, 7, v0
    v_lshlrev_b32 v9, 2, v9
    v_add_u32 v9, {L_KT}, v9
    s_setprio 3
    b_hw:
    s_sleep 4
    ds_read_b32 v10, v9
    s_waitcnt lgkmcnt(0)
    v_cmp_ne_u32 vcc, s92, v10
    s_cbranch_vccnz b_hw
    b_w:
    s_lshl_b32 s11, s8, 4
    s_add_u32 s11, s11, s13
    s_cmp_eq_u32 s11, {16 + 7}
    s_cselect_b32 m0, {L_KT + 6144}, m0
    s_cmp_lg_u32 s11, {48 + 5}
    s_cbranch_scc1 b_w1
    v_mov_b32 v12, v16
    v_mov_b32 v13, v17
    v_mov_b32 v14, v18
    s_mov_b32 s10, 0
    s_mov_b32 s12, {8*20736}
    b_w1:
    buffer_load_dwordx4 v12, s[28:31], s10 offen lds
    s_add_u32 m0, m0, 1024
    s_add_u32 s13, s13, 1
    buffer_load_dwordx4 v13, s[28:31], s10 offen lds
    s_add_u32 m0, m0, 1024
    s_nop 0
    buffer_load_dwordx4 v14, s[28:31], s10 offen lds
    s_add_u32 m0, m0, 1024
    s_add_u32 s10, s10, s12
    s_cmp_lt_u32 s13, 9
    s_cbranch_scc1 b_w
    b_wend:
    s_setprio 0
    s_mov_b32 s59, 0
    s_waitcnt vmcnt(0)
    """)

def phaseC():
    a("c_start:")
    srd(32, 96, 4718592)
    a(f"""
    s_and_b32 s4, s2, 7
    s_bfe_u32 s6, s2, 0x20003
    s_lshl_b32 s7, s4, 2
    s_add_u32 s7, s7, s6                 ; tm
    s_lshr_b32 s5, s2, 5                 ; tn
    s_mul_i32 s8, s3, 43
    s_lshr_b32 s8, s8, 7                 ; w/3
    s_mul_i32 s9, s8, 3
    s_sub_u32 s9, s3, s9                 ; tb = w%3
    s_lshr_b32 s13, s8, 1                ; kh
    s_and_b32 s14, s8, 1                 ; ta
    v_lshrrev_b32 v5, 5, v0
    v_bfe_u32 v6, v0, 2, 2
    v_lshl_add_u32 v6, v5, 2, v6
    v_mul_u32_u24 v4, 192, v6
    v_bfe_u32 v6, v0, 4, 1
    v_lshl_add_u32 v4, v6, 5, v4
    v_and_b32 v6, 3, v0
    v_lshl_add_u32 v4, v6, 3, v4
    s_lshl_b32 s17, s9, 6
    s_mul_i32 s18, s13, {L_V}
    s_add_u32 s17, s17, s18
    v_add_u32 v4, s17, v4
    s_mul_i32 s18, s13, {L_KT + 6144 - 16*3072}
    s_sub_u32 s18, {L_KT + 6144 - 16*3072}, s18
    v_add_u32 v9, s18, v4
    s_mul_i32 s18, s7, {64*FS}
    s_add_u32 s18, s18, {FL_B}
    v_mul_u32_u24 v120, {FS}, v0
    v_add_u32 v120, s18, v120
    s_waitcnt lgkmcnt(0)
    s_barrier
    """)
    stamp("Bbar")
    a("s_cmp_ge_u32 s2, 192\ns_cbranch_scc1 c_ntr")
    for k in range(18):
        va = 4 if k < 16 else 9
        a(f"ds_read_b64_tr_b16 {vr(128+4*k if k < 9 else 32+4*(k-9),2)}, v{va} offset:{k*3072}\nds_read_b64_tr_b16 {vr(130+4*k if k < 9 else 34+4*(k-9),2)}, v{va} offset:{k*3072+8*192}")
        if k % 4 == 3: a("s_waitcnt lgkmcnt(6)")
    a("c_ntr:\ns_cmp_eq_u32 s59, 0\ns_cbranch_scc1 c_nf\ns_waitcnt vmcnt(0)")
    stamp("Back")
    flag_set("s59", 2)
    a(f"""c_nf:
    s_cmp_ge_u32 s2, 192
    s_cbranch_scc1 c_idle
    v_lshlrev_b32 v2, 4, v0
    s_mul_i32 s17, s8, {18*1024}
    v_add_u32 v3, s17, v2
    v_and_b32 v11, 31, v0
    v_lshlrev_b32 v11, 2, v11
    v_lshl_add_u32 v11, v5, 9, v11
    v_add_u32 v11, s17, v11
    v_add_u32 v11, {14*1024}, v11
    s_lshl_b32 s15, s7, 1
    s_add_u32 s15, s15, s14
    s_mul_i32 s16, s15, {O_T}
    s_mul_i32 s18, s13, {18*1024}
    s_add_u32 s16, s16, s18
    s_lshl_b32 s18, s9, 10
    s_add_u32 s16, s16, s18
    s_add_u32 s16, s16, {WS_O}
    s_add_u32 m0, s17, s18
    s_cmp_lg_u32 s3, 8
    s_cbranch_scc1 c_np
    s_sleep {OPT.get("cslp", 0)}
    """)
    flag_poll("c_pb", 1, 120)
    a("c_np:\ns_waitcnt lgkmcnt(0)\ns_barrier")
    stamp("Cflag")
    for i in range(6):
        a("buffer_load_dwordx4 v2, s[36:39], s16 offen sc1 lds")
        if i < 5: a("s_add_u32 m0, m0, 3072\ns_add_u32 s16, s16, 3072")
    a(f"""
    v_and_b32 v6, 19, v0
    v_bfe_u32 v7, v0, 2, 1
    v_lshl_add_u32 v6, v7, 3, v6
    v_bfe_u32 v7, v0, 3, 1
    v_lshl_add_u32 v6, v7, 2, v6         ; token inside the tile
    v_mul_u32_u24 v6, 400, v6
    v_lshl_add_u32 v6, v5, 4, v6
    s_mul_i32 s18, s8, {32*400}
    s_lshl_b32 s19, s9, 7
    s_add_u32 s18, s18, s19
    s_add_u32 s18, s18, 81920
    v_add_u32 v6, s18, v6
    s_lshl_b32 s18, s3, 6
    v_add_u32 v7, s18, v0
    v_mul_u32_u24 v8, 5462, v7
    v_lshrrev_b32 v8, 16, v8             ; row
    v_mul_u32_u24 v10, 12, v8
    v_sub_u32 v10, v7, v10
    v_mul_u32_u24 v7, 400, v8
    v_lshl_add_u32 v7, v10, 5, v7
    v_add_u32 v7, 81920, v7
    v_mul_u32_u24 v5, 2304, v8
    v_lshl_add_u32 v5, v10, 4, v5
    s_mul_i32 s17, s7, {64*2304}
    s_mul_i32 s18, s5, 192
    s_add_u32 s17, s17, s18
    """)
    wf = lambda k: vr(128+4*k if k < 9 else 32+4*(k-9), 4)
    NC = int(OPT.get("nc", 3)); CK = 18 // NC
    for c in range(NC):
        a(f"s_waitcnt vmcnt({6 - (c+1)*CK//3})\ns_barrier")
        if c == 0: stamp("Cfirst")
        ks = list(range(c*CK, (c+1)*CK))
        reg = lambda k: 72 + 4*(k % 6)
        plain = [k for k in ks if k < 14]; tail = [k for k in ks if k >= 14]
        for k in plain: a(f"ds_read_b128 {vr(reg(k),4)}, v3 offset:{k*1024}")
        if tail:
            a(f"s_cmp_eq_u32 s13, 1\ns_cbranch_scc1 c_tl{c}")
            for k in tail: a(f"ds_read_b128 {vr(reg(k),4)}, v3 offset:{k*1024}")
            a(f"s_branch c_tm{c}\nc_tl{c}:")
            for k in tail:
                a(f"""ds_read2_b32 {vr(reg(k),2)}, v11 offset0:0 offset1:32
                ds_read2_b32 {vr(reg(k)+2,2)}, v11 offset0:64 offset1:96
                v_add_u32 v11, 1024, v11""")
            a(f"s_waitcnt lgkmcnt(0)\nc_tm{c}:")
        for i, k in enumerate(ks):
            a(f"s_waitcnt lgkmcnt({CK-1-i})")
            a(f"v_mfma_f32_32x32x16_bf16 v[16:31], {wf(k)}, {vr(reg(k),4)}, " + ("0" if k == 0 else "v[16:31]"))
    stamp("Cmfma")
    a("s_nop 11")
    for rq in range(4): a(f"ds_write_b128 v6, {vr(16+4*rq,4)} offset:{32*rq}")
    a("s_waitcnt lgkmcnt(0)\ns_barrier")
    stamp("Cx")
    a(f"""ds_read_b128 v[32:35], v7
    ds_read_b128 v[36:39], v7 offset:16
    ds_read_b128 v[40:43], v7 offset:{64*400}
    ds_read_b128 v[44:47], v7 offset:{64*400+16}
    s_waitcnt lgkmcnt(0)""")
    for r in range(8): a(f"v_add_f32 v{32+r}, v{32+r}, v{40+r}")
    for c in range(4): a(f"v_cvt_pk_bf16_f32 v{48+c}, v{32+2*c}, v{32+2*c+1}")
    stamp("Ccvt")
    a(f"buffer_store_dwordx4 v[48:51], v5, s[32:35], s17 offen {OPT.get('sto','')}")
    stamp("Cst")
    a("k_done2:")
    if DIAG and "dmax" in OPT:
        a(f"""s_load_dwordx2 s[80:81], s[0:1], 88
        s_waitcnt vmcnt(0)
        s_memrealtime s[74:75]
        s_waitcnt lgkmcnt(0)
        {"s_mov_b32 s72, s74" if DIAG == "end" else ""}
        s_cmp_eq_u32 s72, 0
        s_cbranch_scc1 dg_n
        s_lshl_b32 s76, s72, 8
        s_or_b32 s76, s76, s2
        s_lshl_b32 s77, s70, 8
        s_not_b32 s77, s77
        v_mov_b32 v2, 0
        v_mov_b32 v3, s76
        v_mov_b32 v4, s77
        s_mov_b64 exec, 1
        global_atomic_umax v2, v3, s[80:81] sc1
        global_atomic_umax v2, v4, s[80:81] offset:128 sc1
        s_mov_b64 exec, -1
        dg_n:
        s_cmp_lg_u32 s2, 0
        s_cbranch_scc1 k_done
        s_cmp_lg_u32 s3, 4
        s_cbranch_scc1 k_done
        dg_w:
        s_memrealtime s[78:79]
        s_waitcnt lgkmcnt(0)
        s_sub_u32 s77, s78, s70
        s_cmp_lt_u32 s77, 9000
        s_cbranch_scc1 dg_w
        v_mov_b32 v2, 0
        global_load_dword v3, v2, s[80:81] sc1
        global_load_dword v4, v2, s[80:81] offset:128 sc1
        s_waitcnt vmcnt(0)
        v_readfirstlane_b32 s76, v3
        v_readfirstlane_b32 s77, v4
        s_nop 3
        s_not_b32 s77, s77
        {"s_and_b32 s76, s76, 255" if OPT["dmax"] == "id" else "s_sub_u32 s76, s76, s77"}
        {"s_mul_i32 s76, s76, 25" if OPT["dmax"] == "id" else "s_lshr_b32 s76, s76, 8"}
        s_min_u32 s76, s76, 10000
        s_lshl_b32 s76, s76, 2
        s_add_u32 s76, s76, 10000
        dg_spin:
        s_memrealtime s[78:79]
        s_waitcnt lgkmcnt(0)
        s_sub_u32 s77, s78, s70
        s_cmp_lt_u32 s77, s76
        s_cbranch_scc1 dg_spin""")
    elif DIAG:
        a(f"""s_cmp_lg_u32 s2, {OPT.get("dwg", 0)}
        s_cbranch_scc1 k_done
        s_cmp_lg_u32 s3, {OPT.get("dw", 4)}
        s_cbranch_scc1 k_done
        s_waitcnt vmcnt(0)
        s_memrealtime s[74:75]
        s_waitcnt lgkmcnt(0)
        {"s_mov_b32 s72, s74" if DIAG == "end" else "s_mov_b32 s72, s70" if DIAG == "none" else ""}
        s_sub_u32 s76, s72, s70
        s_min_u32 s76, s76, 10000
        s_lshl_b32 s76, s76, 2
        s_add_u32 s76, s76, 5000
        dg_spin:
        s_memrealtime s[78:79]
        s_waitcnt lgkmcnt(0)
        s_sub_u32 s77, s78, s70
        s_cmp_lt_u32 s77, s76
        s_cbranch_scc1 dg_spin""")
    stamp_out()
    a(f"""k_done:
    s_endpgm
    c_idle:
    s_cmp_lg_u32 s2, 255
    s_cbranch_scc1 k_done2
    s_cmp_lg_u32 s3, 8
    s_cbranch_scc1 k_done2
    v_lshrrev_b32 v120, 5, v116
    v_lshlrev_b32 v120, 8, v120
    v_and_b32 v121, 31, v116
    v_add_u32 v120, v120, v121
    v_mul_u32_u24 v120, {FS}, v120
    v_add_u32 v120, {FL_B}, v120
    v_add_u32 v121, {512*FS}, v120
    v_add_u32 v122, {1024*FS}, v120
    v_add_u32 v123, {1536*FS}, v120
    """)
    flag_poll("c_pe", 4, 120)
    a(f"s_mov_b32 s6, {FL_E}")
    flag_set("s6", 2)
    a("s_branch k_done2")
    a(f"""
    b_slow:
    s_mul_i32 s6, s4, 9
    s_lshr_b32 s6, s6, 2
    s_bfe_u32 s7, s4, 0x10001
    s_add_u32 s8, s6, s7
    s_lshl_b32 s8, s8, 9
    s_add_u32 s8, s8, {72*512}
    s_lshl_b32 s9, s6, 9
    s_mul_i32 s13, s7, {1024 - 8}
    s_sub_u32 s9, s9, s13
    s_add_u32 s9, s9, {72*512 + 1024}
    s_mul_i32 s13, s4, 288
    s_add_u32 s13, s13, {WS_V}
    v_lshlrev_b32 v118, 4, v117
    v_lshrrev_b32 v120, 5, v116
    v_mul_u32_u24 v120, 9216, v120
    v_add_u32 v120, v120, v118
    v_mov_b32 v121, 0xff800000
    s_waitcnt lgkmcnt(0)
    """)
    def scores(c):
        a(f"""buffer_load_dwordx4 {vr(KF[0],4)}, v119, s[36:39], s14 offen sc1
        buffer_load_dwordx2 {vr(TF[0],2)}, v118, s[36:39], s15 offen sc1
        s_add_u32 s14, s14, {QK_T}
        s_add_u32 s15, s15, {QK_T}
        s_waitcnt vmcnt(0)
        v_mfma_f32_32x32x16_bf16 {vr(S[0],16)}, {vr(KF[0],4)}, {vr(Q,4)}, {c}
        v_mfma_f32_32x32x8_bf16 {vr(S[0],16)}, {vr(TF[0],2)}, {vr(QL,2)}, {vr(S[0],16)}
        s_nop 15""")
    a("s_mov_b32 s14, s8\ns_mov_b32 s15, s9\ns_mov_b32 s26, 0\nb_mx:")
    scores("0")
    for r in range(8): a(f"v_max3_f32 v121, v{S[0]+2*r}, v{S[0]+2*r+1}, v121")
    a(f"""
    s_add_u32 s26, s26, 1
    s_cmp_lt_u32 s26, 64
    s_cbranch_scc1 b_mx
    v_mov_b32 v122, v121
    s_nop 1
    v_permlane32_swap_b32 v121, v122
    s_nop 1
    v_max_f32 v121, v121, v122
    """)
    for i in range(16): a(f"v_sub_f32 v{NEG+i}, 0, v121\nv_mov_b32 v{O+i}, 0")
    a(f"""s_mov_b32 s14, s8
    s_mov_b32 s15, s9
    s_mov_b32 s26, 0
    b_sl:
    s_add_u32 s16, s13, {2*9216}
    s_mov_b64 exec, s[18:19]
    buffer_load_dwordx4 {vr(VF[0],4)}, v120, s[36:39], s13 offen sc1
    buffer_load_dwordx4 {vr(VF[0]+4,4)}, v120, s[36:39], s16 offen sc1
    s_mov_b64 exec, -1
    s_add_u32 s13, s13, {4*9216}""")
    scores(vr(NEG,16))
    ex(0, 0, 16); cv(0, 0, 8)
    a("s_nop 1")
    pv(0, 0); pv(0, 1)
    a("""s_add_u32 s26, s26, 1
    s_cmp_lt_u32 s26, 64
    s_cbranch_scc1 b_sl
    s_nop 15
    s_branch b_fin
    k_last:""")

def main():
    ref = open("concat_heads__mha_block__ssm_conv_s4d__prompt.s.ref").read().split("\n")
    head = [l for l in ref if l.startswith(";") and "@launch" not in l and "Override launch" not in l and "grid=ceil" not in l]
    head += ["; @launch grid=(256,1,1) block=(768,1,1) lds=163840"]
    a(f".text\n.globl {KN}\n.p2align 8\n.type {KN},@function\n{KN}:")
    if INSTR:
        for i in range(70, 90): a(f"s_mov_b32 s{i}, 0")
        a("s_memtime s[70:71]\ns_memrealtime s[86:87]")
    if DIAG: a("s_mov_b32 s72, 0\ns_memrealtime s[70:71]")
    phaseA(); phaseB(); phaseC()
    desc = f""".section .rodata,"a"
.p2align 6
.amdhsa_kernel {KN}
  .amdhsa_next_free_vgpr 168
  .amdhsa_next_free_sgpr 102
  .amdhsa_accum_offset 168
  .amdhsa_group_segment_fixed_size 0
  .amdhsa_kernarg_size 104
  .amdhsa_user_sgpr_count 2
  .amdhsa_user_sgpr_kernarg_segment_ptr 1
  .amdhsa_system_sgpr_workgroup_id_x 1
.end_amdhsa_kernel
"""
    out = "\n".join(head) + "\n.amdgcn_target \"amdgcn-amd-amdhsa--gfx950\"\n" + a.text() + desc
    path = sys.argv[1] if len(sys.argv) > 1 and sys.argv[1].endswith(".s") else "concat_heads__mha_block__ssm_conv_s4d__prompt.s"
    open(path, "w").write(out)
main()
```

```python
import sys, struct
KN = "concat_heads__mha_block__ssm_conv_s4d__prompt_kernel"
def f2u(x): return struct.unpack("<I", struct.pack("<f", x))[0]
INSTR = "instr" in sys.argv
OPT = dict(x.split("=") for x in sys.argv if "=" in x)

WS_QK = 0; QK_T = 73728
WS_V = WS_QK + 64 * QK_T
WS_O = WS_V + 256 * 9216; O_T = 36864
WS_U = WS_O + 64 * O_T
WS_Y = WS_U + 576 * 4096
WS_FL = WS_Y + 576 * 4096
FS = 128
FL_A = 0; FL_S = 864 * FS; FL_Y = FL_S + 288 * FS; FL_B = FL_Y + 1152 * FS; FL_E = FL_B + 2048 * FS
WS_END = WS_FL + FL_E + FS
WS_ST = 24 << 20
L_FL = 155648
KC = 4156
KAREA = 8448
L_KT = 65536; L_V = 81920; L_BOUNCE = 155648; L_Q = 102400

class A:
    def __init__(s): s.l = []
    def __call__(s, t):
        for line in t.strip("\n").split("\n"):
            q = line.strip()
            if not q: continue
            s.l.append(q if q.endswith(":") else "    " + q)
    def text(s): return "\n".join(s.l) + "\n"
a = A()
def vr(b, n): return f"v[{b}:{b+n-1}]"
def srd(d, lo, size):
    a(f"""s_mov_b32 s{d}, s{lo}
    s_mov_b32 s{d+1}, s{lo+1}
    s_mov_b32 s{d+2}, {size}
    s_mov_b32 s{d+3}, 0x20000""")

SSETS = {"1": ["Aend", "Aack", "Bflag", "Bgo", "Bloop", "Back"],
         "2": ["Bgo", "Bloop", "Back", "Cflag", "Cfirst", "Cmfma"],
         "5": ["Bloop", "Bbar", "Cmfma", "Cx", "Ccvt", "Cst"],
         "4": ["Aack", "Xpw", "Xpoll", "Xiss", "Xland", "Bgo"],
         "3": ["Afirst", "Akgen", "Abuilt", "Aconv", "Aend", "Aack"]}
DIAG = OPT.get("diag")
def stamp(name):
    if DIAG == name: a("s_memrealtime s[72:73]")
    if INSTR and name in SSETS[OPT.get("sset", "1")]:
        i = SSETS[OPT.get("sset", "1")].index(name) + 1
        a(f"s_memtime s[{70+2*i}:{71+2*i}]")
def stamp_out():
    if not INSTR: return
    a(f"""s_waitcnt vmcnt(0)
    s_memtime s[84:85]
    s_memrealtime s[88:89]
    s_waitcnt lgkmcnt(0)
    s_mov_b64 exec, 1
    s_lshl_b32 s90, s2, 4
    s_add_u32 s90, s90, s3
    s_lshl_b32 s90, s90, 6
    s_add_u32 s90, s90, {WS_ST}
    v_mov_b32 v166, s90""")
    for i in range(10):
        a(f"v_mov_b32 v167, s{70+2*i}\nglobal_store_dword v166, v167, s[24:25] offset:{4*i}")

def transpose8(I, O, sLO, sHI):
    for c in range(8):
        for t in range(4):
            a(f"v_perm_b32 v{O+4*c+t}, v{I+4*(2*t+1)+(c>>1)}, v{I+4*(2*t)+(c>>1)}, s{sHI if c&1 else sLO}")

def flag_set(soff, t):
    if OPT.get("ffl", "0") == "1":
        a(f"""v_mbcnt_lo_u32_b32 v{t}, -1, 0
        v_mov_b32 v{t+1}, s92
        v_lshl_add_u32 v{t}, v{t}, 2, s93
        s_mov_b32 exec_hi, 0
        buffer_store_dword v{t+1}, v{t}, s[36:39], {soff} offen sc1
        s_mov_b32 exec_hi, -1""")
    else:
        a(f"""v_mov_b32 v{t}, {WS_FL}
        v_mov_b32 v{t+1}, s92
        s_mov_b64 exec, 1
        buffer_store_dword v{t+1}, v{t}, s[36:39], {soff} offen {OPT.get('sfl', 'sc1').replace('+', ' ')}
        s_mov_b64 exec, -1""")
def poll_issue(n, t):
    for i in range(n): a(f"buffer_load_dword v{t+4+i}, v{t+i}, s[36:39], s93 offen {OPT.get('pfl', 'sc1').replace('+', ' ')}")
def flag_poll(tag, n, t, issued=False):
    a("s_mov_b32 s91, 0")
    if issued: a(f"s_branch {tag}_c")
    a(f"{tag}:")
    poll_issue(n, t)
    a(f"{tag}_c:\ns_add_u32 s91, s91, 1\ns_waitcnt vmcnt(0)")
    for i in range(n): a(f"v_xor_b32 v{t+4+i}, s92, v{t+4+i}")
    for i in range(1, n): a(f"v_or_b32 v{t+4}, v{t+4}, v{t+4+i}")
    a(f"""v_cmp_ne_u32 vcc, 0, v{t+4}
    s_cbranch_vccz {tag}_x
    s_mov_b64 exec, vcc
    s_sleep {OPT.get("slp", 2)}
    s_cmp_lt_u32 s91, 0x80000
    s_cbranch_scc1 {tag}
    {tag}_x:
    s_mov_b64 exec, -1""")
def lds_wait(tag, vaddr, off, t, slp=False):
    a(f"""{tag}:
    {"s_sleep 1" if slp else ""}
    ds_read_b32 v{t}, v{vaddr} offset:{off}
    s_waitcnt lgkmcnt(0)
    v_cmp_eq_u32 vcc, 0, v{t}
    s_cbranch_vccz {tag}""")
def kargs():
    a(f"""s_waitcnt lgkmcnt(0)
    s_add_u32 s68, s24, {WS_FL + FL_E}
    s_addc_u32 s69, s25, 0
    s_load_dword s92, s[68:69], 0""")
    srd(36, 24, WS_END)

def ufetch(tag):
    a(f"""
    s_sub_u32 s43, s3, 8
    s_lshl_b32 s40, s2, 1
    s_add_u32 s40, s40, s43              ; channel
    s_lshl_b32 s44, s43, 13
    s_add_u32 m0, s44, 147968
    s_lshr_b32 s46, s40, 6
    s_mul_i32 s46, s46, {32*FS}
    s_add_u32 s46, s46, {FL_S}
    v_and_b32 v10, 31, v0
    v_mul_u32_u24 v10, {FS}, v10
    v_add_u32 v10, s46, v10
    v_lshlrev_b32 v12, 4, v0
    v_mov_b32 v13, 0x7ffffff0
    s_lshl_b32 s44, s40, 12
    s_add_u32 s44, s44, {WS_U}
    s_mov_b32 exec_hi, 0
    """)
    flag_poll(tag, 1, 10)
    for i in range(4): a(f"buffer_load_dwordx4 v12, s[36:39], s44 offen offset:{1024*i} sc1 lds")
    a(f"""s_lshl_b32 s43, s43, 2
    s_add_u32 m0, s43, {L_FL + 448}
    s_mov_b64 exec, 1
    buffer_load_dword v13, s[36:39], 0 offen lds
    s_mov_b64 exec, -1""")

def phaseA():
    mod9 = """
    s_mul_i32 s49, s48, 57
    s_lshr_b32 s49, s49, 9
    s_mul_i32 s49, s49, 9
    s_sub_u32 s48, s48, s49"""
    ROT = {"wg": "s_lshl_b32 s48, s40, 1\ns_add_u32 s48, s48, s41" + mod9, "none": "s_mov_b32 s48, 0",
           "three": "s_and_b32 s48, s27, 3\ns_lshr_b32 s49, s27, 2\ns_add_u32 s48, s48, s49\ns_mul_i32 s48, s48, 3\ns_add_u32 s48, s48, s26" + mod9,
           "two5": "s_and_b32 s48, s27, 1\ns_lshr_b32 s49, s27, 2\ns_xor_b32 s48, s48, s49\ns_and_b32 s48, s48, 1\ns_mul_i32 s48, s48, 5\ns_add_u32 s48, s48, s26" + mod9,
           "twox": "s_and_b32 s48, s27, 1\ns_lshr_b32 s49, s27, 2\ns_xor_b32 s48, s48, s49\ns_and_b32 s48, s48, 1\ns_lshl_b32 s48, s48, 2\ns_and_b32 s49, s26, 3\ns_add_u32 s48, s48, s49\ns_lshr_b32 s49, s26, 2\ns_lshl_b32 s49, s49, 1\ns_add_u32 s48, s48, s49" + mod9,
           "wgb": "s_and_b32 s48, s27, 3\ns_mul_i32 s48, s48, 9\ns_lshr_b32 s48, s48, 2\ns_lshr_b32 s49, s27, 2\ns_mul_i32 s49, s49, 4\ns_add_u32 s48, s48, s49\ns_add_u32 s48, s48, s26" + mod9,
           "wgm": "s_and_b32 s48, s27, 3\ns_mul_i32 s48, s48, 9\ns_lshr_b32 s48, s48, 2\ns_add_u32 s48, s48, s26" + mod9,
           "two": "s_and_b32 s48, s27, 1\ns_lshr_b32 s49, s27, 2\ns_xor_b32 s48, s48, s49\ns_and_b32 s48, s48, 1\ns_lshl_b32 s48, s48, 2\ns_add_u32 s48, s48, s26" + mod9,
           "xcd": "s_and_b32 s48, s26, 3\ns_lshl_b32 s48, s48, 1\ns_lshr_b32 s49, s26, 2\ns_mul_i32 s49, s49, 5\ns_add_u32 s48, s48, s49" + mod9}[OPT.get("rot", "two")]
    a(f"""
    s_cmp_ge_u32 s2, 256
    s_cbranch_scc1 k_done
    v_lshrrev_b32 v1, 6, v0
    v_and_b32 v0, 63, v0
    v_readfirstlane_b32 s3, v1
    v_mov_b32 v23, {L_FL}
    s_cmp_lg_u32 s3, 9
    s_cbranch_scc1 a_noarm
    v_mov_b32 v14, -1
    v_mov_b32 v15, -1
    v_lshl_add_u32 v16, v0, 3, v23
    ds_write_b64 v16, v[14:15]
    s_waitcnt lgkmcnt(0)
    a_noarm:
    s_load_dwordx16 s[4:19], s[0:1], 0
    s_load_dwordx4 s[20:23], s[0:1], 64
    s_load_dwordx2 s[24:25], s[0:1], 96
    s_load_dwordx2 s[96:97], s[0:1], 80
    s_load_dwordx2 s[94:95], s[0:1], 16
    s_add_u32 s26, s3, 8
    s_sub_u32 s27, s3, 4
    s_cmp_lt_u32 s3, 4
    {"" if OPT.get("remap", "1") == "0" else "s_cselect_b32 s3, s26, s27           ; the waves that start first take the loader role (8..11)"}
    s_and_b32 s26, s2, 7
    s_lshr_b32 s27, s2, 3
    s_and_b32 s40, s26, 3
    s_lshl_b32 s40, s40, 2
    s_and_b32 s44, s27, 3
    s_add_u32 s40, s40, s44
    s_lshr_b32 s41, s26, 2
    s_mul_i32 s41, s41, 7
    s_lshr_b32 s44, s27, 2
    s_add_u32 s41, s41, s44
    s_mov_b32 s93, {WS_FL}
    s_cmp_ge_u32 s3, 8
    s_cbranch_scc1 a_aux
    s_cmp_lt_u32 s3, 4
    s_cbranch_scc1 a_ssm
    s_branch a_gemm
    a_aux:
    s_cmp_ge_u32 s27, 28
    s_cbranch_scc1 a_task
    {ROT}
    s_bfe_u32 s56, s3, 0x10001
    s_bitcmp1_b32 s3, 0
    s_cbranch_scc1 a_ldw
    v_lshrrev_b32 v4, 3, v0
    v_lshrrev_b32 v5, 2, v4
    v_lshlrev_b32 v5, 3, v5
    v_and_b32 v6, 3, v4
    v_add_u32 v5, v5, v6
    s_lshl_b32 s44, s40, 7
    v_add_u32 v5, s44, v5
    v_mul_u32_u24 v5, 1152, v5
    v_lshrrev_b32 v6, 1, v4
    v_and_b32 v7, 7, v0
    v_xor_b32 v6, v6, v7
    v_lshl_add_u32 v2, v6, 4, v5
    v_xor_b32 v6, 4, v6
    v_lshl_add_u32 v3, v6, 4, v5
    v_add_u32 v3, {4608-1024}, v3
    s_mov_b32 s50, 128
    s_mov_b32 s51, 18432
    s_mov_b32 s52, 0
    s_waitcnt lgkmcnt(0)
    s_mov_b32 s28, s4
    s_mov_b32 s29, s5
    s_mov_b32 s30, 2359296
    s_branch a_ld
    a_ldw:
    v_lshrrev_b32 v5, 4, v0
    v_mul_u32_u24 v2, 3456, v5
    v_lshlrev_b32 v5, 2, v5
    v_and_b32 v6, 15, v0
    v_xor_b32 v5, v5, v6
    v_lshl_add_u32 v2, v5, 4, v2
    s_lshl_b32 s44, s41, 8
    v_add_u32 v2, s44, v2
    v_add_u32 v3, {13824-1024}, v2
    s_mov_b32 s50, 221184
    s_mov_b32 s51, 27648
    s_mov_b32 s52, 16384
    s_waitcnt lgkmcnt(0)
    s_mov_b32 s28, s6
    s_mov_b32 s29, s7
    s_mov_b32 s30, 1990656
    a_ld:
    s_setprio {OPT.get("lprio", 0)}
    s_mov_b32 s31, 0x20000
    s_mul_i32 s57, s56, s51
    s_lshl_b32 s57, s57, 2
    s_lshl_b32 s56, s56, 13
    s_add_u32 s52, s52, s56
    s_and_b32 s58, s3, 3
    s_lshl_b32 s58, s58, 2
    s_add_u32 s58, s58, {L_FL}
    v_mov_b32 v4, 0x7ffffff0
    s_mov_b32 s53, 0
    """)
    kargs()
    a(f"""
    a_ld_loop:
    s_cmp_lt_u32 s53, 4
    s_cbranch_scc1 a_ld_go
    a_ld_poll:
    ds_read_b128 v[8:11], v23 offset:160
    s_waitcnt lgkmcnt(0)
    v_or_b32 v8, v8, v9
    v_or3_b32 v8, v8, v10, v11
    v_cmp_eq_u32 vcc, 0, v8
    s_cbranch_vccz a_ld_poll
    v_add_u32 v23, 16, v23
    a_ld_go:
    s_mul_i32 s47, s48, s50
    s_add_u32 s47, s47, s57
    s_and_b32 s55, s53, 3
    s_lshl_b32 s55, s55, 15
    s_add_u32 m0, s55, s52
    s_add_u32 s48, s48, 1
    """)
    for p in range(4):
        a(f"buffer_load_dwordx4 v2, s[28:31], s47 offen {OPT.get('ldf','')} lds\nbuffer_load_dwordx4 v3, s[28:31], s47 offen offset:1024 {OPT.get('ldf','')} lds")
        if p < 3: a("s_add_u32 m0, m0, 2048\ns_add_u32 s47, s47, s51")
    a(f"""
    s_cmp_eq_u32 s48, 9
    s_cselect_b32 s48, 0, s48
    s_cmp_lg_u32 s53, 0
    s_cbranch_scc1 a_ld_nb
    s_barrier
    a_ld_nb:
    s_mov_b32 m0, s58
    s_mov_b64 exec, 1
    buffer_load_dword v4, s[28:31], 0 offen lds
    s_mov_b64 exec, -1
    s_add_u32 s58, s58, 16
    s_add_u32 s53, s53, 1
    s_cmp_lt_u32 s53, 9
    s_cbranch_scc1 a_ld_loop
    """)
    a("v_mov_b32 v116, v0\ns_waitcnt lgkmcnt(0)\ns_add_u32 s92, s92, 0x9e3779b1\ns_cmp_ge_u32 s3, 10\ns_cbranch_scc1 b_aux\na_uf:")
    ufetch("a_pu")
    a("s_branch b_aux")
    CPF = "" if OPT.get("cpf", "1") == "0" else f"""
    ; read this kernel's own code once per XCD so that later instruction fetches find it in L2 (speed only)
    s_getpc_b64 s[44:45]
    a_pc:
    s_lshl_b32 s46, s27, 2
    s_add_u32 s46, s46, s3
    s_sub_u32 s46, s46, 4
    s_lshl_b32 s46, s46, 8
    s_min_u32 s46, s46, k_last - {KN} - 256
    s_sub_u32 s44, s44, a_pc - {KN}
    s_subb_u32 s45, s45, 0
    s_add_u32 s44, s44, s46
    s_addc_u32 s45, s45, 0
    v_lshlrev_b32 v60, 6, v0
    v_mov_b32 v61, s45
    v_add_co_u32 v60, vcc, s44, v60
    s_mov_b64 exec, 15
    s_nop 0
    v_addc_co_u32 v61, vcc, 0, v61, vcc
    global_load_dword v62, v[60:61], off
    s_mov_b64 exec, -1"""
    a(f"""
    a_gemm:
    {CPF}
    s_cmp_ge_u32 s27, 28
    s_cbranch_scc1 a_ssm
    s_barrier
    """)
    kargs()
    if OPT.get("tcha", "0") == "1":
        a(f"""s_cmp_lg_u32 s3, 5
        s_cbranch_scc1 a_ntch
        v_lshlrev_b32 v60, 18, v0
        buffer_load_dword v63, v60, s[36:39], 0 offen
        a_ntch:""")
    a(f"""
    s_sub_u32 s45, s3, 4
    s_and_b32 s42, s45, 1                ; mw
    s_lshr_b32 s43, s45, 1               ; nw
    s_lshl_b32 s58, s45, 2
    s_add_u32 s58, s58, {L_FL + 160}
    v_mov_b32 v22, 0x7ffffff0
    v_and_b32 v5, 31, v0
    v_lshrrev_b32 v6, 5, v0
    s_lshl_b32 s44, s42, 6
    v_add_u32 v7, s44, v5
    v_lshlrev_b32 v7, 7, v7
    v_bfe_u32 v5, v5, 1, 3
    v_xor_b32 v5, v5, v6
    """)
    for j in range(4):
        a(f"v_xor_b32 v20, {2*j}, v5\nv_lshl_add_u32 v{8+j}, v20, 4, v7\nv_add_u32 v{12+j}, 0x10000, v{8+j}")
    a(f"""
    v_bfe_u32 v5, v0, 2, 2
    v_lshl_add_u32 v7, v6, 3, v5
    v_lshlrev_b32 v7, 8, v7
    v_bfe_u32 v20, v0, 4, 1
    v_lshl_add_u32 v7, v20, 5, v7
    v_and_b32 v20, 1, v0
    v_lshl_add_u32 v7, v20, 4, v7
    v_and_b32 v20, 2, v0
    v_lshl_add_u32 v7, v20, 2, v7
    v_add_u32 v7, 16384, v7
    s_lshl_b32 s44, s43, 1
    v_xor_b32 v5, s44, v5
    v_lshl_add_u32 v16, v5, 6, v7
    v_xor_b32 v5, 1, v5
    v_lshl_add_u32 v17, v5, 6, v7
    v_add_u32 v18, 0x10000, v16
    v_add_u32 v19, 0x10000, v17
    s_setprio {OPT.get('gprio', 2)}
    s_waitcnt lgkmcnt(0)
    s_add_u32 s92, s92, 0x9e3779b1
    s_lshl_b32 s46, s40, 1
    s_add_u32 s46, s46, s42
    s_lshl_b32 s47, s41, 1
    s_add_u32 s47, s47, s43
    s_lshl_b32 s59, s47, 5
    s_add_u32 s59, s59, s46
    s_mul_i32 s59, s59, {FS}
    s_cmp_ge_u32 s41, 9
    s_cbranch_scc1 a_gemm_v""")
    FB = [24, 40, 128]
    def reads(stage, j, fb):
        slot = stage & 3; hi = slot >> 1; base = (slot & 1) * 32768
        return [f"ds_read_b128 {vr(fb,4)}, v{8+4*hi+j} offset:{base}",
                f"ds_read_b64_tr_b16 {vr(fb+8,2)}, v{16+2*hi} offset:{base+j*4096}",
                f"ds_read_b64_tr_b16 {vr(fb+10,2)}, v{16+2*hi} offset:{base+j*4096+1024}",
                f"ds_read_b64_tr_b16 {vr(fb+12,2)}, v{17+2*hi} offset:{base+j*4096}",
                f"ds_read_b64_tr_b16 {vr(fb+14,2)}, v{17+2*hi} offset:{base+j*4096+1024}",
                f"ds_read_b128 {vr(fb+4,4)}, v{8+4*hi+j} offset:{base+4096}"]
    def mfmas(fb, vor, first):
        out = []
        for (ta, tb) in ((0,0),(0,1),(1,0),(1,1)):
            acc = vr(64 + 16*(2*ta+tb), 16); X = vr(fb+4*ta, 4); W = vr(fb+8+4*tb, 4)
            out.append(f"v_mfma_f32_32x32x16_bf16 {acc}, " + (f"{X}, {W}" if vor else f"{W}, {X}") + ", " + ("0" if first else acc))
        return out
    def check(tag, st, first_read):
        if not first_read:
            a(f"""v_or_b32 v56, v56, v57
            v_or3_b32 v56, v56, v58, v59
            v_cmp_eq_u32 vcc, 0, v56
            s_cbranch_vccnz {tag}_ok""")
        a(f"""{tag}_p:
        ds_read_b128 v[56:59], v23 offset:{16*st}
        s_waitcnt lgkmcnt(0)
        v_or_b32 v56, v56, v57
        v_or3_b32 v56, v56, v58, v59
        v_cmp_eq_u32 vcc, 0, v56
        s_cbranch_vccz {tag}_p
        {tag}_ok:""")
    def mainloop(vor):
        check(f"a_c{int(vor)}_0", 0, True)
        stamp("Afirst")
        a("\n".join(reads(0, 0, FB[0]) + reads(0, 1, FB[1])))
        for g in range(36):
            st, j = divmod(g, 4)
            a(f"s_waitcnt lgkmcnt({6 if g < 35 else 0})")
            m = mfmas(FB[g % 3], vor, g == 0)
            a(m[0])
            if j == 1 and st < 8: a(f"ds_read_b128 v[56:59], v23 offset:{16*(st+1)}")
            if j == 2 and st < 8: check(f"a_c{int(vor)}_{st+1}", st+1, False)
            if j == 3 and st < 5: a(f"s_add_u32 m0, s58, {16*st}\ns_mov_b64 exec, 1\nbuffer_load_dword v22, s[36:39], 0 offen lds\ns_mov_b64 exec, -1")
            rd = reads((g+2)//4, (g+2)%4, FB[(g+2) % 3]) if g + 2 < 36 else []
            a("\n".join(rd[:3])); a(m[1]); a("\n".join(rd[3:])); a(m[2]); a(m[3])
        stamp("Aconv")
    a(f"""
    s_mul_i32 s44, s46, {2*QK_T}
    s_lshl_b32 s45, s47, 12
    s_add_u32 s44, s44, s45
    s_add_u32 s45, s44, {QK_T}
    v_lshlrev_b32 v2, 4, v0
    """)
    mainloop(False)
    for ta in range(2):
        for tb in range(2):
            acc = 64 + 16*(2*ta+tb); o = 24 + 8*(2*ta+tb)
            if ta + tb == 0: a("s_nop 8")
            for r in range(8): a(f"v_cvt_pk_bf16_f32 v{o+r}, v{acc+2*r}, v{acc+2*r+1}")
            for hh in range(2): a(f"buffer_store_dwordx4 {vr(o+4*hh,4)}, v2, s[36:39], s{44+ta} offen offset:{tb*2048+hh*1024} sc1")
    a(f"""s_branch a_gemm_end
    a_gemm_v:
    v_and_b32 v5, 19, v0
    v_bfe_u32 v6, v0, 2, 1
    v_lshl_add_u32 v5, v6, 3, v5
    v_bfe_u32 v6, v0, 3, 1
    v_lshl_add_u32 v5, v6, 2, v5         ; feature inside the tile
    v_lshrrev_b32 v6, 5, v0
    v_mul_u32_u24 v6, 9216, v6
    v_lshl_add_u32 v2, v5, 4, v6
    s_sub_u32 s45, s47, 18
    s_lshl_b32 s45, s45, 10
    s_mul_i32 s44, s46, {8*9216}
    s_add_u32 s44, s44, s45
    s_add_u32 s44, s44, {WS_V}
    """)
    mainloop(True)
    a("s_cmp_ge_u32 s47, 27\ns_cbranch_scc1 a_end")
    for ta in range(2):
        for tb in range(2):
            acc = 64 + 16*(2*ta+tb); o = 24 + 8*(2*ta+tb)
            if ta + tb == 0: a("s_nop 8")
            for r in range(8): a(f"v_cvt_pk_bf16_f32 v{o+r}, v{acc+2*r}, v{acc+2*r+1}")
            for hh in range(2): a(f"s_add_u32 s45, s44, {(4*ta+2*hh)*9216}\nbuffer_store_dwordx4 {vr(o+4*hh,4)}, v2, s[36:39], s45 offen offset:{tb*512} sc1")
    a("a_gemm_end:")
    if OPT.get("early", "0") == "1":
        a(f"""s_lshl_b32 s44, s3, 2
        s_add_u32 s44, s44, {L_FL}
        v_mov_b32 v4, s44
        v_mov_b32 v5, 0
        ds_write_b32 v4, v5 offset:400""")
    stamp("Aend")
    a("s_waitcnt vmcnt(0)")
    stamp("Aack")
    flag_set("s59", 2)
    a("s_branch a_end")

    a(f"""
    a_task:
    s_cmp_eq_u32 s3, 11
    s_cbranch_scc1 a_fetch
    s_sub_u32 s44, s2, 224
    s_lshr_b32 s45, s44, 1               ; B
    s_and_b32 s46, s44, 1                ; es
    s_sub_u32 s47, 16, s3
    s_lshl_b32 s59, s47, 5
    s_add_u32 s59, s59, s44
    s_mul_i32 s59, s59, {FS}
    s_add_u32 s59, s59, {FL_S}
    s_lshl_b32 s48, s45, 3
    s_add_u32 s48, s48, s46
    s_mul_i32 s48, s48, {16*1152}
    s_lshl_b32 s49, s47, 7
    s_add_u32 s48, s48, s49
    v_lshrrev_b32 v10, 3, v0
    v_and_b32 v9, 7, v0
    v_mul_u32_u24 v11, 1152, v10
    v_lshl_add_u32 v11, v9, 4, v11
    v_xor_b32 v12, v10, v9
    v_lshlrev_b32 v12, 4, v12
    v_lshl_add_u32 v12, v9, 10, v12
    s_mul_i32 s49, s3, 24576
    s_sub_u32 s49, s49, {8*24576 - 57344}
    v_add_u32 v12, s49, v12
    s_mov_b32 m0, s49
    v_lshlrev_b32 v17, 15, v10
    v_lshl_add_u32 v17, v9, 4, v17
    s_lshl_b32 s60, s47, 18
    s_lshl_b32 s45, s45, 7
    s_lshl_b32 s46, s46, 11
    s_add_u32 s60, s60, s45
    s_add_u32 s60, s60, s46
    s_add_u32 s60, s60, {WS_U}
    s_mov_b32 s50, 0x05040100
    s_mov_b32 s51, 0x07060302
    """)
    for p in range(8): a(f"v_xor_b32 v{24+p}, {16*p}, v11")
    kargs()
    srd(28, 10, 2359296)
    def uload():
        for p in range(8):
            a(f"""s_add_u32 s49, s48, {((p>>1)*32 + (p&1)*8)*1152}
            buffer_load_dwordx4 v{24+p}, s[28:31], s49 offen lds
            s_add_u32 m0, m0, 1024""")
        a("s_sub_u32 s48, s48, 384")
    def uproc(i):
        for j in range(8): a(f"ds_read_b128 {vr(32+4*j,4)}, v12 offset:{i*8192 + j*128}")
        a("s_waitcnt lgkmcnt(0)")
        transpose8(32, [64, 96, 128][i], 50, 51)
    def ustore(i):
        for c in range(8):
            a(f"s_add_u32 s49, s60, {c*4096}\nbuffer_store_dwordx4 {vr([64, 96, 128][i]+4*c,4)}, v17, s[36:39], s49 offen sc1")
        a(f"s_sub_u32 s60, s60, {3<<18}")
    def uflag():
        flag_set("s59", 2)
        a(f"s_sub_u32 s59, s59, {96*FS}")
    uload()
    a("s_barrier\ns_mov_b32 s52, 0\ns_cmp_eq_u32 s3, 10\ns_cbranch_scc1 a_t1\ns_setprio 3\ns_waitcnt vmcnt(0)\na_t0:")
    uproc(0); ustore(0)
    a("s_add_u32 s92, s92, 0x9e3779b1\ns_setprio 0\ns_cmp_eq_u32 s3, 10\ns_cbranch_scc1 a_t2\na_t1:")
    uload(); uload()
    a("s_waitcnt vmcnt(16)\ns_cmp_eq_u32 s3, 10\ns_cbranch_scc1 a_t0")
    uflag()
    a("s_mov_b32 s52, 1\na_t2:\ns_waitcnt vmcnt(8)")
    uproc(1)
    a("s_waitcnt vmcnt(0)\ns_cmp_eq_u32 s52, 1\ns_cbranch_scc1 a_t3")
    uflag()
    a("a_t3:")
    ustore(1); uproc(2)
    a("s_waitcnt vmcnt(0)")
    uflag(); ustore(2)
    a("s_branch a_gemm_end\na_fetch:\ns_barrier")
    kargs()
    a(f"""
    v_mul_u32_u24 v10, {FS}, v0
    v_add_u32 v10, {FL_S + 224*FS}, v10
    v_lshlrev_b32 v12, 4, v0
    v_mov_b32 v13, 0x7ffffff0
    s_lshl_b32 s44, s2, 13
    s_add_u32 s44, s44, {WS_U}
    s_waitcnt lgkmcnt(0)
    s_add_u32 s92, s92, 0x9e3779b1
    s_sleep {OPT.get("fslp", 32)}
    """)
    flag_poll("a_pf", 1, 10)
    for p in range(4):
        a(f"s_mov_b32 m0, {[147968, 156160, 40960, 49152][p]}\ns_add_u32 s45, s44, {(p&1)*4096 + (p>>1)*64*4096}")
        for i in range(4): a(f"buffer_load_dwordx4 v12, s[36:39], s45 offen offset:{1024*i} sc1 lds")
        a(f"""s_mov_b32 m0, {L_FL + 448 + 4*p}
        s_mov_b64 exec, 1
        buffer_load_dword v13, s[36:39], 0 offen lds
        s_mov_b64 exec, -1""")
    a("s_branch a_end")

    L2E = f2u(1.4426950408889634); L2E_LO = f2u(1.4426950408889634 - struct.unpack("<f", struct.pack("<I", L2E))[0])
    LN2 = f2u(0.6931471805599453)
    z0 = list(range(9)) + [14,15,16,20,21,24,25]
    z1 = [9,9,10,11,11,11,12,13,13,17,18,19,22,23,26,27]
    def pack(z, lo):
        v = 0
        for r in range(lo, lo+8): v |= (z[r]-r) << (4*(r-lo))
        return v
    a(f"""
    a_ssm:
    s_and_b32 s41, s3, 1                 ; half
    s_bfe_u32 s45, s3, 0x10001
    s_lshl_b32 s40, s2, 1
    s_add_u32 s40, s40, s45
    s_add_u32 s46, s40, {512 - 448}
    s_mul_i32 s42, s45, {KAREA}
    s_add_u32 s47, s42, 16384
    s_add_u32 s42, s42, 131072
    s_cmp_ge_u32 s3, 4
    s_cselect_b32 s40, s46, s40          ; channel
    s_cselect_b32 s42, s47, s42
    s_lshr_b32 s43, s3, 1
    s_lshl_b32 s43, s43, 13
    s_add_u32 s47, s43, {40960 - 16384}
    s_add_u32 s43, s43, 147968
    s_cmp_ge_u32 s3, 4
    s_cselect_b32 s43, s47, s43
    s_lshl_b32 s45, s40, 7
    s_lshl_b32 s46, s41, 6
    s_add_u32 s45, s45, s46
    v_add_u32 v2, s45, v0
    v_lshlrev_b32 v2, 1, v2
    s_lshl_b32 s45, s40, 1
    v_mov_b32 v3, s45
    s_waitcnt lgkmcnt(0)
    global_load_ushort v4, v3, s[20:21]
    global_load_ushort v6, v2, s[12:13]
    global_load_ushort v7, v2, s[14:15]
    global_load_ushort v8, v2, s[16:17]
    global_load_ushort v9, v2, s[18:19]
    global_load_ushort v5, v3, s[22:23]
    s_barrier
    """)
    kargs()
    a(f"""
    v_and_b32 v14, 31, v0
    v_and_b32 v16, 3, v14
    v_lshrrev_b32 v17, 3, v14
    v_lshl_add_u32 v16, v17, 2, v16
    v_mov_b32 v17, {pack(z0,0):#x}
    v_mov_b32 v18, {pack(z0,8):#x}
    v_mov_b32 v19, {pack(z1,0):#x}
    v_mov_b32 v20, {pack(z1,8):#x}
    v_cmp_lt_u32 vcc, 7, v16
    v_and_b32 v21, 4, v14
    v_and_b32 v22, 7, v16
    v_cndmask_b32 v17, v17, v18, vcc
    v_cndmask_b32 v19, v19, v20, vcc
    v_cmp_ne_u32 vcc, 0, v21
    v_lshlrev_b32 v22, 2, v22
    v_lshrrev_b32 v15, 5, v0
    v_cndmask_b32 v17, v17, v19, vcc
    v_bfe_u32 v17, v17, v22, 4
    v_add_u32 v17, v17, v16
    v_lshlrev_b32 v15, 2, v15
    s_mov_b32 s50, 0x3f80
    """)
    for (zr, dst) in ((14, 40), (17, 48)):
        a(f"""v_and_b32 v18, 1, v{zr}
        v_lshlrev_b32 v18, 4, v18
        v_lshlrev_b32 v18, v18, s50
        v_lshrrev_b32 v19, 1, v{zr}
        v_sub_u32 v19, v19, v15""")
        for d in range(8): a(f"v_cmp_eq_u32 s[{52+2*d}:{53+2*d}], {8*(d>>2) + (d&3)}, v19")
        for d in range(8): a(f"v_cndmask_b32 v{dst+d}, 0, v18, s[{52+2*d}:{53+2*d}]")
    a(f"""
    s_mov_b32 s50, {L2E:#x}
    s_mov_b32 s51, {L2E_LO:#x}
    s_mov_b32 s52, {LN2:#x}
    s_mov_b32 s53, {f2u(248.0):#x}
    s_mov_b32 s54, {f2u(8.0):#x}
    s_waitcnt vmcnt(0) lgkmcnt(0)
    s_add_u32 s92, s92, 0x9e3779b1
    """)
    stamp("Afirst")
    if "nossm" in OPT: a("s_branch a_end")
    def exp_bf16(x, t, lo):
        a(f"""v_mul_f32 v{t}, s50, v{x}
        v_fma_f32 v{lo}, v{x}, s50, -v{t}
        v_exp_f32 v{t}, v{t}
        v_fma_f32 v{lo}, v{x}, s51, v{lo}
        v_mul_f32 v{lo}, s52, v{lo}
        v_fma_f32 v{t}, v{t}, v{lo}, v{t}
        v_cvt_pk_bf16_f32 v{t}, v{t}, v{t}
        v_lshlrev_b32 v{x}, 16, v{t}""")
    for r in range(4, 10): a(f"v_lshlrev_b32 v{r}, 16, v{r}")
    exp_bf16(4, 20, 21)
    exp_bf16(6, 20, 21)
    a("""
    v_mul_f32 v6, v6, v4
    v_mul_f32 v7, v7, v4
    v_mul_f32 v8, v8, v4
    v_mul_f32 v9, v9, v4
    v_mul_f32 v6, s50, v6                ; -Re(z)*log2e
    v_mul_f32 v7, 0.15915494, v7         ; Im(z)/(2pi)
    v_add_f32 v8, v8, v8
    v_mul_f32 v9, -2.0, v9
    """)
    DL = [8, 1, 2, 4, 248]
    DS = {8: "s54", 1: "1.0", 2: "2.0", 4: "4.0", 248: "s53"}
    MR = {d: 24 + 2*i for i, d in enumerate(DL)}
    def mkE(d):
        a(f"""v_mul_f32 v21, {DS[d]}, v6
        v_mul_f32 v22, {DS[d]}, v7
        v_exp_f32 v21, -v21
        v_fract_f32 v22, v22
        v_cos_f32 v20, v22
        v_sin_f32 v22, v22
        v_mul_f32 v{MR[d]}, v21, v20
        v_mul_f32 v{MR[d]+1}, v21, v22""")
    P = 56; Dt = 88; YO = 120; ACC = 152
    R = lambda z: 34 + 2*(z % 3)
    def chain(dl, conj, mid=None):
        n = "-" if conj else ""; p = "" if conj else "-"
        for z in range(len(dl) + 1):
            cur, nxt = R(z), R(z+1)
            if z < len(dl):
                W = MR[dl[z]]
                a(f"v_mul_f32 v{nxt}, v{cur}, v{W}\nv_mul_f32 v{nxt+1}, v{cur+1}, v{W}")
            if z & 1: a(f"v_cvt_pk_bf16_f32 v{P+(z>>1)}, v{R(z-1)}, v{cur}")
            if z < len(dl): a(f"v_fma_f32 v{nxt}, {p}v{cur+1}, v{W+1}, v{nxt}\nv_fma_f32 v{nxt+1}, {n}v{cur}, v{W+1}, v{nxt+1}")
            if z & 1: a(f"v_cvt_pk_bf16_f32 v{P+16+(z>>1)}, v{R(z-1)+1}, v{cur+1}")
            if mid and z == 4: mid()
    def swaps(comp):
        for pr in range(2):
            for t in range(4): a(f"v_permlane32_swap_b32 v{P+16*comp+8*pr+t}, v{P+16*comp+8*pr+4+t}")
    def tmfma(comp, sel):
        for blk in range(2): a(f"v_mfma_f32_32x32x16_bf16 {vr(Dt+16*blk,16)}, {vr(P+16*comp+4*blk,4)}, {vr(sel,4)}, 0")
        for blk in range(2): a(f"v_mfma_f32_32x32x16_bf16 {vr(Dt+16*blk,16)}, {vr(P+16*comp+8+4*blk,4)}, {vr(sel+4,4)}, {vr(Dt+16*blk,16)}")
    def tcvt(dst):
        for i in range(16): a(f"v_cvt_pk_bf16_f32 v{dst+i}, v{Dt+2*i}, v{Dt+2*i+1}")
    mkE(8)
    a(f"v_mov_b32 v{R(0)}, 1.0\nv_mov_b32 v{R(0)+1}, 0")
    chain([8]*31, False)
    mkE(1); swaps(0); swaps(1); tmfma(0, 40); mkE(2); mkE(4); tcvt(YO); tmfma(1, 40); mkE(248)
    a(f"v_mov_b32 v{R(0)}, v8\nv_mov_b32 v{R(0)+1}, v9")
    deltas = [1]*8 + [248] + [2]*4 + [248] + [4]*2 + [248] + [4]*2 + [248, 8, 248, 8, 248, 8, 248, 8]
    chain(deltas, True, mid=lambda: tcvt(YO+16))
    a("v_lshl_add_u32 v21, s41, 6, v0\nv_cmp_eq_u32 vcc, 0, v21\nv_sub_u32 v21, 63, v0")
    swaps(0); swaps(1); tmfma(0, 48)
    a(f"""
    v_cndmask_b32 v5, 0, v5, vcc
    v_lshl_add_u32 v21, v21, 4, s42
    s_lshl_b32 s46, s3, 4
    v_add_u32 v22, s46, v23
    v_xor_b32 v20, 16, v22               ; partner's
    v_mov_b32 v19, 0
    s_nop 5
    """)
    tcvt(P); tmfma(1, 48)
    for i in range(4): a(f"v_mfma_f32_32x32x16_bf16 {vr(ACC,16)}, {vr(P+4*i,4)}, {vr(YO+4*i,4)}, " + ("0" if i == 0 else vr(ACC,16)))
    a("s_nop 7")
    tcvt(P+16)
    a("s_nop 1")
    for i in range(4, 8): a(f"v_mfma_f32_32x32x16_bf16 {vr(ACC,16)}, {vr(P+4*i,4)}, {vr(YO+4*i,4)}, {vr(ACC,16)}")
    stamp("Akgen")
    if "noconv" in OPT: a("s_branch a_end")
    CA = 24; CU = 68; CF = 132
    for i in range(44): a(f"v_mov_b32 v{CA+i}, 0")
    for i in range(32): a(f"v_mov_b32 v{CU+i}, 0")
    a(f"""
    v_and_b32 v12, 31, v0
    v_lshrrev_b32 v13, 5, v0             ; h
    v_lshlrev_b32 v16, 5, v12
    v_lshl_add_u32 v16, v13, 4, v16
    s_lshl_b32 s45, s41, 7
    s_sub_u32 s44, s43, s45
    s_sub_u32 s44, s44, 96
    v_add_u32 v16, s44, v16
    s_lshl_b32 s45, s41, 2
    v_lshlrev_b32 v17, 3, v13
    v_sub_u32 v17, v17, v12
    v_lshlrev_b32 v17, 1, v17            ; 2*(8h - b)
    v_and_b32 v18, 1, v12
    v_cmp_eq_u32 s[56:57], 1, v18        ; b odd
    v_xor_b32 v18, 1, v18
    v_mul_u32_u24 v18, {KC + 2}, v18
    s_lshl_b32 s46, s41, 8
    s_sub_u32 s46, s42, s46
    s_add_u32 s46, s46, {62 + 120*32}
    v_add3_u32 v17, v17, v18, s46
    v_subrev_u32 v18, 2048, v17
    v_add_f32 v{ACC}, v{ACC}, v5
    v_lshl_add_u32 v133, v0, 2, s42
    s_add_u32 s46, s43, 4096
    v_lshl_add_u32 v138, v0, 4, s46
    """)
    for G in range(4): a(f"v_add_u32 v{134+G}, {(3-G)*1024 + KC}, v21")
    a(f"""
    s_cmp_ge_u32 s27, 28
    s_cbranch_scc1 a_s_g2
    a_s_w2:
    ds_read_b128 v[8:11], v23 offset:128
    s_waitcnt lgkmcnt(0)
    v_or_b32 v8, v8, v9
    v_or3_b32 v8, v8, v10, v11
    v_cmp_eq_u32 vcc, 0, v8
    s_cbranch_vccnz a_s_g2
    s_sleep 1
    s_branch a_s_w2
    a_s_g2:
    s_setprio 3
    s_cmp_eq_u32 s41, 0
    s_cbranch_scc1 a_s_even
    """)
    d = lambda r: f"v{ACC+r}" if r < 16 else f"v{r-24}"
    units = [
      (0, 0, [(7,6),(5,4),(3,2),(1,0)]), (0, 1, [(8,7),(6,5),(4,3),(2,1)]),
      (1, 0, [(11,11),(10,10),(10,9),(9,9)]), (1, 1, [(11,11),(11,10),(10,10),(9,9)]),
      (2, 0, [(13,13),(13,32),(12,12),(12,12)]), (2, 1, [(13,13),(13,13),(32,12),(12,12)]),
      (3, 0, [(15,15),(15,33),(14,14),(14,14)]), (3, 1, [(15,15),(15,15),(33,14),(14,14)])]
    def build(us):
        for ui in us:
            G, cp, prs = units[ui]; o = 100 + 4*ui
            for t, (lo, hi) in enumerate(prs): a(f"v_cvt_pk_bf16_f32 v{o+t}, {d(lo)}, {d(hi)}")
            if cp == 0: a(f"ds_write_b128 v21, {vr(o,4)} offset:{(3-G)*1024}")
            else: a(f"ds_write2_b32 v{134+G}, v{o}, v{o+1} offset0:0 offset1:1\nds_write2_b32 v{134+G}, v{o+2}, v{o+3} offset0:2 offset1:3")
    for i in range(3): a(f"ds_write_b128 v138, {vr(ACC+4*i,4)} offset:{1024*i}")
    a("ds_write_b32 v22, v19 offset:256")
    lds_wait("a_s_o0", 20, 256, 8)
    a("ds_read_b128 v[140:143], v21\ns_waitcnt lgkmcnt(0)")
    for i in range(4): a(f"v_add_f32 v{ACC+12+i}, v{ACC+12+i}, v{140+i}")
    a(f"v_cndmask_b32 v8, {d(12)}, {d(13)}, s[56:57]\nv_cndmask_b32 v9, {d(14)}, {d(15)}, s[56:57]")
    build([4, 5, 6, 7])
    a(f"s_branch a_s_u\na_s_even:\nds_write_b128 v21, {vr(ACC+12,4)}\nds_write_b32 v22, v19 offset:256")
    lds_wait("a_s_e0", 20, 256, 8)
    for i in range(3): a(f"ds_read_b128 {vr(140+4*i,4)}, v138 offset:{1024*i}")
    a("v_cmp_eq_u32 vcc, 0, v0\ns_waitcnt lgkmcnt(0)")
    for i in range(12): a(f"v_add_f32 v{ACC+i}, v{ACC+i}, v{140+i}")
    build([0, 1, 2, 3])
    a(f"""
    v_cvt_pk_bf16_f32 v132, {d(0)}, v19
    s_mov_b64 exec, 0x7fff
    ds_write_b32 v133, v19 offset:4096   ; zeros behind both copies; the odd copy ends with K[0]
    s_mov_b64 exec, 0xffff
    v_cndmask_b32 v132, 0, v132, vcc
    ds_write_b32 v133, v132 offset:{4096 + KC}
    s_mov_b64 exec, -1
    a_s_u:
    ds_write_b32 v22, v19 offset:268
    s_setprio 0
    s_lshr_b32 s46, s3, 1
    s_lshl_b32 s46, s46, 2
    v_add_u32 v9, s46, v23
    """)
    lds_wait("a_s_uw", 9, 448, 8)
    for q in range(4):
        a(f"s_add_u32 s46, s45, {q}\ns_lshl_b32 exec_lo, -1, s46\ns_mov_b32 exec_hi, exec_lo")
        for es in range(2): a(f"ds_read_b128 {vr(CU+8*q+4*es,4)}, v16 offset:{es*2048 + (3-q)*32}")
        a("s_mov_b64 exec, -1")
        for es in range(2): a(f"ds_read_b128 {vr(CU+32+8*q+4*es,4)}, v16 offset:{es*2048 + 1024 + (3-q)*32}")
        if q == 2: a("s_waitcnt lgkmcnt(4)")
    lds_wait("a_s_o1", 20, 268, 8)
    stamp("Abuilt")
    steps = [(k, q, es) for k in range(4) for q in range(4) for es in range(2)]
    def frd(i):
        k, q, es = steps[i]; b = CF + 8*(i & 3); o = (6 - 2*q + es) * 8
        if q == 0 and es == 0 and k: a("v_subrev_u32 v17, 512, v17\nv_subrev_u32 v18, 512, v18")
        a(f"""ds_read2_b32 {vr(b,2)}, v17 offset0:{o} offset1:{o+1}
        ds_read2_b32 {vr(b+2,2)}, v17 offset0:{o+2} offset1:{o+3}
        ds_read2_b32 {vr(b+4,2)}, v18 offset0:{o} offset1:{o+1}
        ds_read2_b32 {vr(b+6,2)}, v18 offset0:{o+2} offset1:{o+3}""")
    for i in range(3): frd(i)
    for i, (k, q, es) in enumerate(steps):
        b = CF + 8*(i & 3); U0 = vr(CU+8*q+4*es, 4); U1 = vr(CU+32+8*q+4*es, 4)
        lo = vr(CA+4*k, 16); hi = vr(CA+16+4*k, 16)
        w = f"s_waitcnt lgkmcnt({4*min(2, 31-i)})"
        a(w)
        if q == 0 and es == 0 and k: a("s_nop 9")
        a(f"v_mfma_f32_32x32x16_bf16 {lo}, {U0}, {vr(b,4)}, {lo}")
        a(f"v_mfma_f32_32x32x16_bf16 {hi}, {U1}, {vr(b,4)}, {hi}")
        if i + 3 < 32: frd(i+3)
        a(f"v_mfma_f32_32x32x16_bf16 {hi}, {U0}, {vr(b+4,4)}, {hi}")
    stamp("Aconv")
    a(f"""
    ds_write_b32 v22, v19 offset:260
    s_lshl_b32 s46, s41, 12
    s_add_u32 s46, s46, s42
    v_lshl_add_u32 v16, v0, 4, s46
    s_lshl_b32 s46, s41, 13
    s_sub_u32 s46, 4096, s46
    v_add_u32 v17, s46, v16              ; partner's
    v_lshlrev_b32 v18, 4, v0
    s_lshl_b32 s44, s40, 12
    s_lshl_b32 s45, s41, 11
    s_add_u32 s44, s44, s45
    s_add_u32 s44, s44, {WS_Y}
    s_lshl_b32 s59, s40, 1
    s_add_u32 s59, s59, s41
    s_mul_i32 s59, s59, {FS}
    s_add_u32 s59, s59, {FL_Y}
    """)
    lds_wait("a_s_y1", 20, 260, 12)
    a("s_cmp_eq_u32 s41, 0\ns_cbranch_scc1 a_s_y0")
    for i in range(4): a(f"ds_write_b128 v16, {vr(CA+4*i,4)} offset:{1024*i}")
    a("ds_write_b32 v22, v19 offset:264\ns_waitcnt lgkmcnt(0)")
    for i in range(16): a(f"v_mov_b32 v{CA+i}, v{CA+16+i}")
    a("s_branch a_s_y2\na_s_y0:")
    for i in range(4): a(f"ds_write_b128 v16, {vr(CA+16+4*i,4)} offset:{1024*i}")
    a("ds_write_b32 v22, v19 offset:264\na_s_y2:")
    lds_wait("a_s_y3", 20, 264, 12)
    for i in range(4): a(f"ds_read_b128 {vr(CU+4*i,4)}, v17 offset:{1024*i}")
    a("s_waitcnt lgkmcnt(0)")
    for i in range(16): a(f"v_add_f32 v{CA+i}, v{CA+i}, v{CU+i}")
    for i in range(8): a(f"v_cvt_pk_bf16_f32 v{CF+i}, v{CA+2*i}, v{CA+2*i+1}")
    for g in range(2): a(f"buffer_store_dwordx4 {vr(CF+4*g,4)}, v18, s[36:39], s44 offen offset:{1024*g} sc1")
    stamp("Aend")
    a("s_mov_b32 s62, s59\ns_branch a_end1")
    a(f"""a_end:
    s_mov_b32 s62, 0
    a_end1:
    v_mov_b32 v116, v0
    s_lshl_b32 s44, s3, 2
    s_add_u32 s44, s44, {L_FL}
    v_mov_b32 v4, s44
    v_mov_b32 v5, 0
    ds_write_b32 v4, v5 offset:400""")

S = [0, 16]; O = 32; NEG = 48; P = 64; KF = [72, 76]; TF = [80, 84]; VF = [88, 96]; Q = 104; QL = 108; QH = 110
vK, vT, vV = 112, 113, 114
def rdK(buf, t): a(f"ds_read_b128 {vr(KF[buf],4)}, v{vK} offset:{1024*t}")
def rdT(buf, q): a(f"ds_read2st64_b64 {vr(TF[buf],4)}, v{vT} offset0:{2*q} offset1:{2*q+1}")
def rdV(buf, t):
    a(f"""s_mov_b64 exec, s[18:19]
    ds_read_b128 {vr(VF[buf],4)}, v{vV} offset:{t*1152}
    ds_read_b128 {vr(VF[buf]+4,4)}, v{vV} offset:{t*1152+576}
    s_mov_b64 exec, -1""")
def qk_tail(t, tb):
    tt = t & 3
    a(f"v_mfma_f32_32x32x8_bf16 {vr(S[t&1],16)}, {vr(TF[tb]+2*(tt>>1),2)}, {vr(QH if tt&1 else QL,2)}, {vr(S[t&1],16)}")
def pv(t, half): a(f"v_mfma_f32_32x32x16_bf16 {vr(O,16)}, {vr(VF[t&1]+4*half,4)}, {vr(P+4*half,4)}, {vr(O,16)}")
def ex(t, r0, r1):
    for r in range(r0, r1): a(f"v_exp_f32 v{S[t&1]+r}, v{S[t&1]+r}")
def cv(t, c0, c1):
    for c in range(c0, c1): a(f"v_cvt_pk_bf16_f32 v{P+c}, v{S[t&1]+2*c}, v{S[t&1]+2*c+1}")
LATER = []
def att_run():
    tag = "b_f"
    def qk_main(t): a(f"v_mfma_f32_32x32x16_bf16 {vr(S[t&1],16)}, {vr(KF[t&1],4)}, {vr(Q,4)}, 0")
    rdK(0, 0); rdT(0, 0); rdK(1, 1); rdV(0, 0)
    a("s_mov_b32 s26, 0\ns_waitcnt lgkmcnt(3)")
    qk_main(0); qk_tail(0, 0)
    a(f"s_nop 7\ns_nop 3\n.p2align 6\n{tag}_loop:")
    def at(it, t, code):
        a(f"s_cmp_eq_u32 s26, {it}\ns_cbranch_scc1 {tag}_e{it}_{t}\n{tag}_n{it}_{t}:")
        def h():
            a(f"{tag}_e{it}_{t}:"); code(); a(f"s_branch {tag}_n{it}_{t}")
        LATER.append(h)
    def bar1():
        a("s_cmp_eq_u32 s62, 0\ns_cbranch_scc1 b_nyf\ns_waitcnt vmcnt(0)")
        flag_set("s62", 122)
        a("b_nyf:\ns_barrier\ns_setprio 3")
    def chk1():
        a(f"""v_mov_b32 v121, {L_FL}
        {tag}_f1:
        ds_read_b96 v[124:126], v121 offset:464
        s_waitcnt lgkmcnt(0)
        v_or3_b32 v124, v124, v125, v126
        v_cmp_eq_u32 vcc, 0, v124
        s_cbranch_vccz {tag}_f1""")
    def half():
        a(f"""s_lshl_b32 s27, s3, 2
        s_add_u32 s27, s27, {L_KT}
        v_mov_b32 v121, s27
        v_mov_b32 v122, s92
        ds_write_b32 v121, v122
        s_setprio 1""")
    EV = {(1,2): lambda: a("s_setprio 2"), (1,4): bar1, (0,5): chk1, (5,0): lambda: a("s_setprio 2"), (6,1): half, (7,5): lambda: a("s_setprio 0")}
    for t in range(8):
        for (it, tt), code in EV.items():
            if tt == t: at(it, t, code)
        def adv():
            if t == 7:
                a(f"""v_add_u32 v{vK}, 8192, v{vK}
                v_add_u32 v{vT}, 2048, v{vT}
                v_add_u32 v{vV}, 9216, v{vV}
                s_add_u32 s26, s26, 1
                s_cmp_lt_u32 s26, 8""")
        def rK():
            rdK(t&1, t+2)
            if (t & 3) == 1: rdT(((t>>2)+1)&1, (t>>2)+1)
        M1 = lambda: qk_main(t+1); M2 = lambda: pv(t-1, 1); M3 = lambda: qk_tail(t+1, ((t+1)>>2)&1); M4 = lambda: pv(t, 0)
        rV = lambda: rdV((t+1)&1, t+1)
        E = lambda i, j: ex(t, i, j); C = lambda i, j: cv(t, i, j)
        a("s_waitcnt lgkmcnt(0)")
        o = OPT.get("ord", "a")
        if o == "a":
            M1(); rK(); E(0,4); M2(); rV(); E(4,8); C(0,4); M3(); E(8,12); M4(); adv(); E(12,16); C(4,8)
        elif o == "b":
            M1(); rK(); M2(); rV(); E(0,8); C(0,4); M3(); E(8,9); M4(); adv(); E(9,16); C(4,8)
        elif o == "c":
            M1(); rK(); E(0,5); M2(); rV(); E(5,8); C(0,4); M3(); E(8,13); M4(); adv(); E(13,16); C(4,8)
        elif o == "d":
            M1(); rK(); E(0,4); C(0,1); M2(); rV(); E(4,8); C(1,3); M3(); E(8,12); C(3,5); E(12,13); M4(); adv(); E(13,16); C(5,8)
        elif o == "e":
            M1(); rK(); M2(); rV(); M3(); E(0,8); C(0,4); E(8,10); M4(); adv(); E(10,16); C(4,8)
        elif o == "f":
            M1(); E(0,2); rK(); E(2,4); M2(); E(4,6); rV(); E(6,8); C(0,4); M3(); E(8,12); M4(); adv(); E(12,16); C(4,8)
    a(f"s_cbranch_scc1 {tag}_loop")
    stamp("Bloop")
    a("s_nop 1")
    pv(7, 1)

def phaseB():
    TOUCH = "" if OPT.get("tch", "0") == "0" else f"""s_cmp_lg_u32 s3, 10
    s_cbranch_scc1 b_ntch
    v_lshlrev_b32 v121, 16, v116
    s_mov_b32 s12, {WS_O}
    buffer_load_dword v114, v121, s[36:39], s12 offen
    s_mov_b32 s12, {WS_FL}
    buffer_load_dword v113, v121, s[36:39], s12 offen
    buffer_load_dword v112, v121, s[32:35], 0 offen
    s_mov_b32 s12, {64 << 16}
    buffer_load_dword v111, v121, s[32:35], s12 offen
    b_ntch:"""
    a(f"""
    s_cmp_ge_u32 s3, 8
    s_cbranch_scc1 b_aux
    s_and_b32 s4, s2, 31                 ; head
    s_lshr_b32 s5, s2, 5
    s_lshl_b32 s5, s5, 3
    s_add_u32 s5, s5, s3
    s_and_b32 s7, s4, 3
    v_lshlrev_b32 v{vK}, 4, v116
    v_and_b32 v117, 31, v116
    v_lshlrev_b32 v119, 4, v116
    s_lshl_b32 s8, s3, 10
    s_add_u32 s8, s8, {L_Q}
    v_add_u32 v120, s8, v{vK}
    s_lshl_b32 s8, s3, 8
    s_add_u32 s8, s8, {L_Q + 8192}
    v_lshl_add_u32 v118, v117, 3, s8
    """)
    for i in range(16): a(f"v_mov_b32 v{O+i}, 0")
    for i in range(4): a(f"v_mov_b32 v{P+4+i}, 0")
    a(f"""v_and_b32 v121, 27, v116
    v_cmp_eq_u32 vcc, 18, v121
    v_mov_b32 v121, 0x3f803f80
    s_nop 0
    v_cndmask_b32 v{VF[0]}, 0, v121, vcc""")
    for i in range(1, 16): a(f"v_mov_b32 v{VF[0]+i}, v{VF[0]}")
    a(f"""
    v_lshlrev_b32 v{vT}, 3, v116
    v_add_u32 v{vT}, {L_KT}, v{vT}
    v_lshrrev_b32 v121, 5, v116
    v_mul_u32_u24 v121, 288, v121
    v_lshl_add_u32 v{vV}, v117, 4, v121
    v_add_u32 v{vV}, {L_V}, v{vV}
    s_mov_b32 s18, 0x3ffff
    s_mov_b32 s19, 0x3ffff
    s_mov_b32 s21, {f2u(18**-0.5 * 1.4426950408889634):#x}
    v_cmp_lt_u32 s[22:23], 31, v116
    s_setprio 3
    """)
    stamp("Bflag")
    a(f"""
    s_barrier
    ds_read_b128 {vr(Q,4)}, v120
    ds_read_b64 {vr(QL,2)}, v118
    s_waitcnt lgkmcnt(0)
    s_barrier
    """)
    for r in list(range(Q, Q+4)) + [QL, QL+1]:
        a(f"""v_lshlrev_b32 v121, 16, v{r}
        v_and_b32 v{r}, 0xffff0000, v{r}
        v_mul_f32 v121, s21, v121
        v_mul_f32 v{r}, s21, v{r}
        v_cvt_pk_bf16_f32 v{r}, v121, v{r}""")
    a(f"""
    s_cmp_eq_u32 s7, 1
    s_cselect_b32 vcc_lo, -1, 0
    s_mov_b32 vcc_hi, 0
    v_cndmask_b32 v{Q}, v{Q}, 0, vcc
    s_cmp_eq_u32 s7, 2
    s_cselect_b32 vcc_hi, -1, 0
    s_mov_b32 vcc_lo, 0
    v_cndmask_b32 v{Q+3}, v{Q+3}, 0, vcc
    s_cmp_eq_u32 s7, 3
    s_cselect_b64 vcc, -1, 0
    v_cndmask_b32 v{QL}, v{QL}, 0, vcc
    s_cmp_eq_u32 s7, 0
    s_cselect_b64 vcc, -1, 0
    v_cndmask_b32 v{QL+1}, v{QL+1}, 0, vcc
    v_cndmask_b32 v{QH}, 0, v{QL}, s[22:23]
    v_cndmask_b32 v{QH+1}, 0, v{QL+1}, s[22:23]
    v_cndmask_b32 v{QL}, v{QL}, 0, s[22:23]
    v_cndmask_b32 v{QL+1}, v{QL+1}, 0, s[22:23]
    """)
    stamp("Bgo")
    att_run()
    a(f"""
    s_mul_i32 s10, s5, {O_T}
    s_add_u32 s10, s10, {WS_O}
    s_lshl_b32 s11, s4, 10
    s_add_u32 s11, s11, s10
    s_lshl_b32 s12, s4, 7
    s_add_u32 s12, s12, s10
    s_add_u32 s12, s12, 32768
    s_lshl_b32 s59, s5, 5
    s_add_u32 s59, s59, s4
    s_mul_i32 s59, s59, {FS}
    s_add_u32 s59, s59, {FL_B}
    s_mov_b32 s27, {f2u(2.0**100):#x}
    v_lshlrev_b32 v127, 2, v116
    s_nop 1
    v_max3_f32 v121, abs(v{O}), abs(v{O+1}), abs(v{O+2})
    v_max3_f32 v121, abs(v{O+3}), abs(v{O+4}), v121
    v_max3_f32 v121, abs(v{O+5}), abs(v{O+6}), v121
    v_max3_f32 v121, abs(v{O+7}), abs(v{O+8}), v121
    v_add_f32 v122, v{O}, v{O+1}
    v_add_f32 v123, v{O+2}, v{O+3}
    v_add_f32 v124, v{O+4}, v{O+5}
    v_add_f32 v125, v{O+6}, v{O+7}
    v_add_f32 v126, v{O+8}, v{O+9}
    v_add_f32 v122, v122, v123
    v_add_f32 v124, v124, v125
    v_add_f32 v122, v122, v126
    v_add_f32 v122, v122, v124
    v_max3_f32 v121, abs(v{O+9}), v{O+10}, v121
    v_cmp_ngt_f32 vcc, s27, v121
    v_cmp_nle_f32 s[28:29], 1.0, v{O+10}
    v_cmp_u_f32 s[30:31], v122, v122
    s_or_b64 vcc, vcc, s[28:29]
    s_or_b64 vcc, vcc, s[30:31]
    s_cbranch_vccnz b_slow
    b_fin:
    v_rcp_f32 v121, v{O+10}
    s_nop 0
    """)
    for r in range(10): a(f"v_mul_f32 v{O+r}, v{O+r}, v121")
    for c in range(5): a(f"v_cvt_pk_bf16_f32 v{P+c}, v{O+2*c}, v{O+2*c+1}")
    a(f"""
    buffer_store_dwordx4 {vr(P,4)}, v119, s[36:39], s11 offen sc1
    s_mov_b32 exec_hi, 0
    buffer_store_dword v{P+4}, v127, s[36:39], s12 offen sc1
    s_mov_b32 exec_hi, -1
    v_mov_b32 v0, v116
    s_branch c_start
    """)
    for h in LATER: h()
    a(f"""
    b_aux:
    s_and_b32 s4, s2, 31
    s_mul_i32 s6, s4, 9
    s_lshr_b32 s6, s6, 2
    v_mov_b32 v8, {L_FL}
    s_setprio 3
    s_cmp_lg_u32 s3, 11
    s_cbranch_scc1 b_nopoll
    s_mul_i32 s9, s4, 18
    v_lshrrev_b32 v7, 5, v116
    v_lshl_add_u32 v9, v7, 1, s6
    v_add_u32 v10, 72, v9
    v_lshrrev_b32 v10, 3, v10
    v_and_b32 v11, 31, v116
    v_lshl_add_u32 v10, v10, 5, v11
    v_mul_u32_u24 v120, {FS}, v10
    v_mul_u32_u24 v10, 17, v7
    v_add_u32 v10, s9, v10
    v_add_u32 v10, 1152, v10
    v_lshrrev_b32 v10, 6, v10
    v_lshl_add_u32 v10, v10, 5, v11
    v_mul_u32_u24 v121, {FS}, v10
    v_lshrrev_b32 v10, 3, v9
    s_lshr_b32 s9, s2, 5
    s_lshl_b32 s9, s9, 2
    v_and_b32 v11, 3, v116
    v_add_u32 v11, s9, v11
    v_lshl_add_u32 v10, v10, 5, v11
    v_mul_u32_u24 v122, {FS}, v10
    s_cmp_ge_u32 s2, 224
    s_cselect_b32 s9, 16, 0
    v_add_u32 v9, s9, v8
    b_pw:
    s_sleep 1
    ds_read_b128 v[12:15], v9 offset:416
    s_waitcnt lgkmcnt(0)
    v_or_b32 v12, v12, v13
    v_or3_b32 v12, v12, v14, v15
    v_cmp_eq_u32 vcc, 0, v12
    s_cbranch_vccz b_pw
    """)
    if OPT.get("spw", "1") == "1":
        a("s_cmp_lt_u32 s2, 224\ns_cbranch_scc1 b_pw2_x")
        lds_wait("b_pw2", 8, 400, 12, True)
        a("b_pw2_x:")
    stamp("Xpw")
    flag_poll("b_pa", 3, 120)
    stamp("Xpoll")
    a(f"""
    v_mov_b32 v9, 0
    ds_write_b32 v8, v9 offset:244
    b_nopoll:
    s_bitcmp1_b32 s3, 0
    s_cbranch_scc1 b_ldv
    s_bfe_u32 s7, s4, 0x10001
    s_add_u32 s8, s6, s7
    s_lshl_b32 s8, s8, 9
    s_lshl_b32 s9, s6, 9
    s_mul_i32 s10, s7, {1024 - 8}
    s_sub_u32 s9, s9, s10
    s_add_u32 s9, s9, 1024
    v_lshlrev_b32 v118, 4, v116
    v_lshrrev_b32 v119, 1, v116
    v_lshlrev_b32 v119, 4, v119
    v_and_b32 v120, 1, v116
    v_lshl_add_u32 v119, v120, 2, v119
    s_lshr_b32 s15, s2, 5
    s_mul_i32 s15, s15, {8*QK_T}
    s_cmp_eq_u32 s3, 10
    s_cbranch_scc1 b_ldt
    """)
    def zflag(off):
        a(f"""s_mov_b32 s13, m0
        s_mov_b32 m0, {L_FL + off}
        v_mov_b32 v13, 0x7ffffff0
        s_mov_b64 exec, 1
        buffer_load_dword v13, s[36:39], 0 offen lds
        s_mov_b64 exec, -1
        s_mov_b32 m0, s13""")
    def stream(tag, op, vreg, sbase, lq, lk, step, fl):
        a(f"s_add_u32 s15, s15, {sbase}\ns_add_u32 s16, {sbase}, {72*512}\ns_mov_b32 m0, {lq}\ns_mov_b32 s12, 8")
        lds_wait(f"{tag}_go", 8, 244, 9, True)
        def loop(t, sreg):
            a(f"""{t}:
            {op} v{vreg}, s[36:39], {sreg} offen sc1 lds
            s_add_u32 m0, m0, {step}
            s_add_u32 {sreg}, {sreg}, {QK_T}
            s_sub_u32 s12, s12, 1
            s_cmp_lg_u32 s12, 0
            s_cbranch_scc1 {t}""")
        loop(f"{tag}_q", "s15")
        a(f"s_mov_b32 m0, {lk}\ns_mov_b32 s12, 8")
        loop(f"{tag}_1", "s16")
        stamp("Xiss")
        a("s_mov_b32 s12, 8\ns_waitcnt vmcnt(0)")
        stamp("Xland")
        a("s_barrier\ns_barrier")
        loop(f"{tag}_2", "s16")
        zflag(fl)
        a("s_mov_b32 s12, 48")
        loop(f"{tag}_3", "s16")
        a("s_branch b_lend")
    stream("b_k", "buffer_load_dwordx4", 118, "s8", L_Q, 0, 1024, 464)
    a("b_ldt:")
    stream("b_t", "buffer_load_dword", 119, "s9", L_Q + 8192, L_KT, 256, 468)
    a(f"""
    b_ldv:
    s_mov_b32 s10, {9216 - 288}
    """)
    for p in range(9):
        a(f"""v_add_u32 v10, {64*p}, v116
        v_mul_u32_u24 v11, 3641, v10
        v_lshrrev_b32 v11, 16, v11
        v_mul_lo_u32 v11, v11, s10
        v_lshl_add_u32 v{24+p}, v10, 4, v11""")
    a(f"""
    s_bfe_u32 s9, s3, 0x10001
    s_mul_i32 s8, s9, {32*9216}
    s_mul_i32 s10, s4, 288
    s_add_u32 s8, s8, s10
    s_add_u32 s8, s8, {WS_V}
    s_mul_i32 s9, s9, 9216
    s_add_u32 m0, s9, {L_V}
    s_mov_b32 s12, 0
    """)
    a("s_cmp_eq_u32 s3, 9\ns_cbranch_scc1 b_v_go\ns_barrier\ns_barrier\ns_branch b_v")
    lds_wait("b_v_go", 8, 244, 9, True)
    a("b_v:")
    for p in range(9): a(f"buffer_load_dwordx4 v{24+p}, s[36:39], s8 offen sc1 lds\ns_add_u32 m0, m0, {1024 if p < 8 else 1024 + 9216}\ns_nop 0")
    a(f"""
    s_add_u32 s8, s8, {64*9216}
    s_cmp_lg_u32 s12, 0
    s_cbranch_scc1 b_v1
    s_cmp_eq_u32 s3, 9
    s_cbranch_scc1 b_v0
    """)
    zflag(472)
    a(f"""
    s_branch b_v1
    b_v0:
    s_waitcnt vmcnt(0)
    s_barrier
    s_barrier
    b_v1:
    s_add_u32 s12, s12, 1
    s_cmp_lt_u32 s12, 4
    s_cbranch_scc1 b_v
    b_lend:
    s_waitcnt vmcnt(0)
    s_barrier
    s_setprio {OPT.get("aprio", 0)}
    """)
    srd(28, 94, 663552)
    srd(32, 96, 4718592)
    a(f"""
    s_lshr_b32 s12, s2, 3
    s_lshl_b32 s12, s12, 2
    s_add_u32 s12, s12, s3
    s_sub_u32 s12, s12, 8
    s_lshl_b32 s12, s12, 13
    v_lshlrev_b32 v121, 7, v116
    buffer_load_dword v115, v121, s[28:31], s12 offen
    {TOUCH}
    s_cmp_lg_u32 s3, {99 if ("nossm" in OPT or "noconv" in OPT) else 9}
    s_cbranch_scc1 b_noy
    s_mov_b32 s4, s2
    v_lshrrev_b32 v10, 3, v116
    v_and_b32 v9, 7, v116
    v_lshlrev_b32 v11, 12, v10
    v_lshl_add_u32 v11, v9, 4, v11
    v_xor_b32 v12, v10, v9
    v_lshlrev_b32 v12, 4, v12
    v_lshl_add_u32 v12, v9, 10, v12
    v_add_u32 v12, {L_BOUNCE}, v12
    s_mov_b32 s50, 0x05040100
    s_mov_b32 s51, 0x07060302
    """)
    for p in range(8): a(f"v_xor_b32 v{24+p}, {16*p}, v11")
    a(f"""
    b_y:
    s_lshr_b32 s5, s4, 5
    s_and_b32 s6, s4, 31                 ; sub
    s_lshl_b32 s7, s5, 7
    s_lshr_b32 s8, s6, 4
    s_add_u32 s7, s7, s8
    v_lshl_add_u32 v120, v116, 1, s7
    v_mul_u32_u24 v120, {FS}, v120
    v_add_u32 v120, {FL_Y}, v120
    """)
    flag_poll("b_py", 1, 120)
    a(f"""
    s_lshl_b32 s7, s5, 18
    s_lshl_b32 s8, s6, 7
    s_add_u32 s7, s7, s8
    s_add_u32 s7, s7, {WS_Y}
    s_mov_b32 m0, {L_BOUNCE}
    """)
    for p in range(8):
        a(f"s_nop 0\nbuffer_load_dwordx4 v{24+p}, s[36:39], s7 offen sc1 lds\ns_add_u32 m0, m0, 1024\ns_add_u32 s7, s7, 32768")
    a(f"""
    s_and_b32 s8, s6, 3
    s_lshl_b32 s8, s8, 3
    s_bfe_u32 s9, s6, 0x10002
    s_lshl_b32 s9, s9, 7
    s_add_u32 s8, s8, s9
    s_lshr_b32 s9, s6, 3
    s_lshl_b32 s9, s9, 9
    s_add_u32 s8, s8, s9
    v_add_u32 v17, s8, v10
    v_mul_u32_u24 v17, 2304, v17
    v_lshl_add_u32 v17, v9, 4, v17
    s_lshl_b32 s8, s5, 7
    s_add_u32 s8, s8, 1152
    s_waitcnt vmcnt(0)
    """)
    for j in range(8): a(f"ds_read_b128 {vr(32+4*j,4)}, v12 offset:{j*128}")
    a("s_waitcnt lgkmcnt(0)")
    transpose8(32, 64, 50, 51)
    for c in range(8):
        a(f"s_add_u32 s9, s8, {((c&3)*32 + (c>>2)*256)*2304}\nbuffer_store_dwordx4 {vr(64+4*c,4)}, v17, s[32:35], s9 offen {OPT.get('sty','sc1')}")
    a(f"""
    s_add_u32 s4, s4, 256
    s_cmp_lt_u32 s4, 288
    s_cbranch_scc1 b_y
    b_noy:
    s_setprio 0
    v_mov_b32 v0, v116
    s_lshr_b32 s5, s2, 5                 ; tn
    s_mul_i32 s17, s5, 192
    """)
    for t in range(3):
        a(f"""v_add_u32 v5, {64*t}, v0
        v_mul_u32_u24 v6, 5462, v5
        v_lshrrev_b32 v6, 16, v6             ; row
        v_mul_u32_u24 v7, 12, v6
        v_sub_u32 v7, v5, v7
        v_lshl_add_u32 v7, v7, 4, s17
        v_mul_u32_u24 v8, 1152, v6
        v_add_u32 v{12+t}, v8, v7
        v_and_b32 v9, 4, v6
        v_lshrrev_b32 v10, 3, v6
        v_lshl_add_u32 v9, v10, 1, v9
        v_bfe_u32 v10, v6, 1, 1
        v_add_u32 v9, v9, v10
        v_mul_u32_u24 v9, 18, v9
        v_and_b32 v10, 1, v6
        v_add3_u32 v9, v9, v10, 16
        v_mul_u32_u24 v9, 1152, v9
        v_add_u32 v{16+t}, v9, v7""")
    a(f"""
    s_sub_u32 s8, s3, 8
    s_mul_i32 s10, s8, {9*20736}
    s_mul_i32 s11, s8, {9*3072}
    s_add_u32 s12, s11, {L_V - 18*3072}
    s_cmp_ge_u32 s8, 2
    s_cselect_b32 m0, s12, s11
    s_mov_b32 s12, 20736
    s_mov_b32 s13, 0
    s_cmp_ge_u32 s2, 192
    s_cbranch_scc1 b_wend
    v_and_b32 v9, 7, v0
    v_lshlrev_b32 v9, 2, v9
    v_add_u32 v9, {L_KT}, v9
    s_setprio 3
    b_hw:
    s_sleep 4
    ds_read_b32 v10, v9
    s_waitcnt lgkmcnt(0)
    v_cmp_ne_u32 vcc, s92, v10
    s_cbranch_vccnz b_hw
    b_w:
    s_lshl_b32 s11, s8, 4
    s_add_u32 s11, s11, s13
    s_cmp_eq_u32 s11, {16 + 7}
    s_cselect_b32 m0, {L_KT + 6144}, m0
    s_cmp_lg_u32 s11, {48 + 5}
    s_cbranch_scc1 b_w1
    v_mov_b32 v12, v16
    v_mov_b32 v13, v17
    v_mov_b32 v14, v18
    s_mov_b32 s10, 0
    s_mov_b32 s12, {8*20736}
    b_w1:
    buffer_load_dwordx4 v12, s[28:31], s10 offen lds
    s_add_u32 m0, m0, 1024
    s_add_u32 s13, s13, 1
    buffer_load_dwordx4 v13, s[28:31], s10 offen lds
    s_add_u32 m0, m0, 1024
    s_nop 0
    buffer_load_dwordx4 v14, s[28:31], s10 offen lds
    s_add_u32 m0, m0, 1024
    s_add_u32 s10, s10, s12
    s_cmp_lt_u32 s13, 9
    s_cbranch_scc1 b_w
    b_wend:
    s_setprio 0
    s_mov_b32 s59, 0
    s_waitcnt vmcnt(0)
    """)

def phaseC():
    a("c_start:")
    srd(32, 96, 4718592)
    a(f"""
    s_and_b32 s4, s2, 7
    s_bfe_u32 s6, s2, 0x20003
    s_lshl_b32 s7, s4, 2
    s_add_u32 s7, s7, s6                 ; tm
    s_lshr_b32 s5, s2, 5                 ; tn
    s_mul_i32 s8, s3, 43
    s_lshr_b32 s8, s8, 7                 ; w/3
    s_mul_i32 s9, s8, 3
    s_sub_u32 s9, s3, s9                 ; tb = w%3
    s_lshr_b32 s13, s8, 1                ; kh
    s_and_b32 s14, s8, 1                 ; ta
    v_lshrrev_b32 v5, 5, v0
    v_bfe_u32 v6, v0, 2, 2
    v_lshl_add_u32 v6, v5, 2, v6
    v_mul_u32_u24 v4, 192, v6
    v_bfe_u32 v6, v0, 4, 1
    v_lshl_add_u32 v4, v6, 5, v4
    v_and_b32 v6, 3, v0
    v_lshl_add_u32 v4, v6, 3, v4
    s_lshl_b32 s17, s9, 6
    s_mul_i32 s18, s13, {L_V}
    s_add_u32 s17, s17, s18
    v_add_u32 v4, s17, v4
    s_mul_i32 s18, s13, {L_KT + 6144 - 16*3072}
    s_sub_u32 s18, {L_KT + 6144 - 16*3072}, s18
    v_add_u32 v9, s18, v4
    s_mul_i32 s18, s7, {64*FS}
    s_add_u32 s18, s18, {FL_B}
    v_mul_u32_u24 v120, {FS}, v0
    v_add_u32 v120, s18, v120
    s_waitcnt lgkmcnt(0)
    s_barrier
    """)
    stamp("Bbar")
    a("s_cmp_ge_u32 s2, 192\ns_cbranch_scc1 c_ntr")
    for k in range(18):
        va = 4 if k < 16 else 9
        a(f"ds_read_b64_tr_b16 {vr(128+4*k if k < 9 else 32+4*(k-9),2)}, v{va} offset:{k*3072}\nds_read_b64_tr_b16 {vr(130+4*k if k < 9 else 34+4*(k-9),2)}, v{va} offset:{k*3072+8*192}")
        if k % 4 == 3: a("s_waitcnt lgkmcnt(6)")
    a("c_ntr:\ns_cmp_eq_u32 s59, 0\ns_cbranch_scc1 c_nf\ns_waitcnt vmcnt(0)")
    stamp("Back")
    flag_set("s59", 2)
    a(f"""c_nf:
    s_cmp_ge_u32 s2, 192
    s_cbranch_scc1 c_idle
    v_lshlrev_b32 v2, 4, v0
    s_mul_i32 s17, s8, {18*1024}
    v_add_u32 v3, s17, v2
    v_and_b32 v11, 31, v0
    v_lshlrev_b32 v11, 2, v11
    v_lshl_add_u32 v11, v5, 9, v11
    v_add_u32 v11, s17, v11
    v_add_u32 v11, {14*1024}, v11
    s_lshl_b32 s15, s7, 1
    s_add_u32 s15, s15, s14
    s_mul_i32 s16, s15, {O_T}
    s_mul_i32 s18, s13, {18*1024}
    s_add_u32 s16, s16, s18
    s_lshl_b32 s18, s9, 10
    s_add_u32 s16, s16, s18
    s_add_u32 s16, s16, {WS_O}
    s_add_u32 m0, s17, s18
    s_cmp_lg_u32 s3, 8
    s_cbranch_scc1 c_np
    s_sleep {OPT.get("cslp", 0)}
    """)
    flag_poll("c_pb", 1, 120)
    a("c_np:\ns_waitcnt lgkmcnt(0)\ns_barrier")
    stamp("Cflag")
    for i in range(6):
        a("buffer_load_dwordx4 v2, s[36:39], s16 offen sc1 lds")
        if i < 5: a("s_add_u32 m0, m0, 3072\ns_add_u32 s16, s16, 3072")
    a(f"""
    v_and_b32 v6, 19, v0
    v_bfe_u32 v7, v0, 2, 1
    v_lshl_add_u32 v6, v7, 3, v6
    v_bfe_u32 v7, v0, 3, 1
    v_lshl_add_u32 v6, v7, 2, v6         ; token inside the tile
    v_mul_u32_u24 v6, 400, v6
    v_lshl_add_u32 v6, v5, 4, v6
    s_mul_i32 s18, s8, {32*400}
    s_lshl_b32 s19, s9, 7
    s_add_u32 s18, s18, s19
    s_add_u32 s18, s18, 81920
    v_add_u32 v6, s18, v6
    s_lshl_b32 s18, s3, 6
    v_add_u32 v7, s18, v0
    v_mul_u32_u24 v8, 5462, v7
    v_lshrrev_b32 v8, 16, v8             ; row
    v_mul_u32_u24 v10, 12, v8
    v_sub_u32 v10, v7, v10
    v_mul_u32_u24 v7, 400, v8
    v_lshl_add_u32 v7, v10, 5, v7
    v_add_u32 v7, 81920, v7
    v_mul_u32_u24 v5, 2304, v8
    v_lshl_add_u32 v5, v10, 4, v5
    s_mul_i32 s17, s7, {64*2304}
    s_mul_i32 s18, s5, 192
    s_add_u32 s17, s17, s18
    """)
    wf = lambda k: vr(128+4*k if k < 9 else 32+4*(k-9), 4)
    NC = int(OPT.get("nc", 3)); CK = 18 // NC
    for c in range(NC):
        a(f"s_waitcnt vmcnt({6 - (c+1)*CK//3})\ns_barrier")
        if c == 0: stamp("Cfirst")
        ks = list(range(c*CK, (c+1)*CK))
        reg = lambda k: 72 + 4*(k % 6)
        plain = [k for k in ks if k < 14]; tail = [k for k in ks if k >= 14]
        for k in plain: a(f"ds_read_b128 {vr(reg(k),4)}, v3 offset:{k*1024}")
        if tail:
            a(f"s_cmp_eq_u32 s13, 1\ns_cbranch_scc1 c_tl{c}")
            for k in tail: a(f"ds_read_b128 {vr(reg(k),4)}, v3 offset:{k*1024}")
            a(f"s_branch c_tm{c}\nc_tl{c}:")
            for k in tail:
                a(f"""ds_read2_b32 {vr(reg(k),2)}, v11 offset0:0 offset1:32
                ds_read2_b32 {vr(reg(k)+2,2)}, v11 offset0:64 offset1:96
                v_add_u32 v11, 1024, v11""")
            a(f"s_waitcnt lgkmcnt(0)\nc_tm{c}:")
        for i, k in enumerate(ks):
            a(f"s_waitcnt lgkmcnt({CK-1-i})")
            a(f"v_mfma_f32_32x32x16_bf16 v[16:31], {wf(k)}, {vr(reg(k),4)}, " + ("0" if k == 0 else "v[16:31]"))
    stamp("Cmfma")
    a("s_nop 11")
    for rq in range(4): a(f"ds_write_b128 v6, {vr(16+4*rq,4)} offset:{32*rq}")
    a("s_waitcnt lgkmcnt(0)\ns_barrier")
    stamp("Cx")
    a(f"""ds_read_b128 v[32:35], v7
    ds_read_b128 v[36:39], v7 offset:16
    ds_read_b128 v[40:43], v7 offset:{64*400}
    ds_read_b128 v[44:47], v7 offset:{64*400+16}
    s_waitcnt lgkmcnt(0)""")
    for r in range(8): a(f"v_add_f32 v{32+r}, v{32+r}, v{40+r}")
    for c in range(4): a(f"v_cvt_pk_bf16_f32 v{48+c}, v{32+2*c}, v{32+2*c+1}")
    stamp("Ccvt")
    a(f"buffer_store_dwordx4 v[48:51], v5, s[32:35], s17 offen {OPT.get('sto','')}")
    stamp("Cst")
    a("k_done2:")
    if DIAG and "dmax" in OPT:
        a(f"""s_load_dwordx2 s[80:81], s[0:1], 88
        s_waitcnt vmcnt(0)
        s_memrealtime s[74:75]
        s_waitcnt lgkmcnt(0)
        {"s_mov_b32 s72, s74" if DIAG == "end" else ""}
        s_cmp_eq_u32 s72, 0
        s_cbranch_scc1 dg_n
        s_lshl_b32 s76, s72, 8
        s_or_b32 s76, s76, s2
        s_lshl_b32 s77, s70, 8
        s_not_b32 s77, s77
        v_mov_b32 v2, 0
        v_mov_b32 v3, s76
        v_mov_b32 v4, s77
        s_mov_b64 exec, 1
        global_atomic_umax v2, v3, s[80:81] sc1
        global_atomic_umax v2, v4, s[80:81] offset:128 sc1
        s_mov_b64 exec, -1
        dg_n:
        s_cmp_lg_u32 s2, 0
        s_cbranch_scc1 k_done
        s_cmp_lg_u32 s3, 4
        s_cbranch_scc1 k_done
        dg_w:
        s_memrealtime s[78:79]
        s_waitcnt lgkmcnt(0)
        s_sub_u32 s77, s78, s70
        s_cmp_lt_u32 s77, 9000
        s_cbranch_scc1 dg_w
        v_mov_b32 v2, 0
        global_load_dword v3, v2, s[80:81] sc1
        global_load_dword v4, v2, s[80:81] offset:128 sc1
        s_waitcnt vmcnt(0)
        v_readfirstlane_b32 s76, v3
        v_readfirstlane_b32 s77, v4
        s_nop 3
        s_not_b32 s77, s77
        {"s_and_b32 s76, s76, 255" if OPT["dmax"] == "id" else "s_sub_u32 s76, s76, s77"}
        {"s_mul_i32 s76, s76, 25" if OPT["dmax"] == "id" else "s_lshr_b32 s76, s76, 8"}
        s_min_u32 s76, s76, 10000
        s_lshl_b32 s76, s76, 2
        s_add_u32 s76, s76, 10000
        dg_spin:
        s_memrealtime s[78:79]
        s_waitcnt lgkmcnt(0)
        s_sub_u32 s77, s78, s70
        s_cmp_lt_u32 s77, s76
        s_cbranch_scc1 dg_spin""")
    elif DIAG:
        a(f"""s_cmp_lg_u32 s2, {OPT.get("dwg", 0)}
        s_cbranch_scc1 k_done
        s_cmp_lg_u32 s3, {OPT.get("dw", 4)}
        s_cbranch_scc1 k_done
        s_waitcnt vmcnt(0)
        s_memrealtime s[74:75]
        s_waitcnt lgkmcnt(0)
        {"s_mov_b32 s72, s74" if DIAG == "end" else "s_mov_b32 s72, s70" if DIAG == "none" else ""}
        s_sub_u32 s76, s72, s70
        s_min_u32 s76, s76, 10000
        s_lshl_b32 s76, s76, 2
        s_add_u32 s76, s76, 5000
        dg_spin:
        s_memrealtime s[78:79]
        s_waitcnt lgkmcnt(0)
        s_sub_u32 s77, s78, s70
        s_cmp_lt_u32 s77, s76
        s_cbranch_scc1 dg_spin""")
    stamp_out()
    a(f"""k_done:
    s_endpgm
    c_idle:
    s_cmp_lg_u32 s2, 255
    s_cbranch_scc1 k_done2
    s_cmp_lg_u32 s3, 8
    s_cbranch_scc1 k_done2
    v_lshrrev_b32 v120, 5, v116
    v_lshlrev_b32 v120, 8, v120
    v_and_b32 v121, 31, v116
    v_add_u32 v120, v120, v121
    v_mul_u32_u24 v120, {FS}, v120
    v_add_u32 v120, {FL_B}, v120
    v_add_u32 v121, {512*FS}, v120
    v_add_u32 v122, {1024*FS}, v120
    v_add_u32 v123, {1536*FS}, v120
    """)
    flag_poll("c_pe", 4, 120)
    a(f"s_mov_b32 s6, {FL_E}")
    flag_set("s6", 2)
    a("s_branch k_done2")
    a(f"""
    b_slow:
    s_mul_i32 s6, s4, 9
    s_lshr_b32 s6, s6, 2
    s_bfe_u32 s7, s4, 0x10001
    s_add_u32 s8, s6, s7
    s_lshl_b32 s8, s8, 9
    s_add_u32 s8, s8, {72*512}
    s_lshl_b32 s9, s6, 9
    s_mul_i32 s13, s7, {1024 - 8}
    s_sub_u32 s9, s9, s13
    s_add_u32 s9, s9, {72*512 + 1024}
    s_mul_i32 s13, s4, 288
    s_add_u32 s13, s13, {WS_V}
    v_lshlrev_b32 v118, 4, v117
    v_lshrrev_b32 v120, 5, v116
    v_mul_u32_u24 v120, 9216, v120
    v_add_u32 v120, v120, v118
    v_mov_b32 v121, 0xff800000
    s_waitcnt lgkmcnt(0)
    """)
    def scores(c):
        a(f"""buffer_load_dwordx4 {vr(KF[0],4)}, v119, s[36:39], s14 offen sc1
        buffer_load_dwordx2 {vr(TF[0],2)}, v118, s[36:39], s15 offen sc1
        s_add_u32 s14, s14, {QK_T}
        s_add_u32 s15, s15, {QK_T}
        s_waitcnt vmcnt(0)
        v_mfma_f32_32x32x16_bf16 {vr(S[0],16)}, {vr(KF[0],4)}, {vr(Q,4)}, {c}
        v_mfma_f32_32x32x8_bf16 {vr(S[0],16)}, {vr(TF[0],2)}, {vr(QL,2)}, {vr(S[0],16)}
        s_nop 15""")
    a("s_mov_b32 s14, s8\ns_mov_b32 s15, s9\ns_mov_b32 s26, 0\nb_mx:")
    scores("0")
    for r in range(8): a(f"v_max3_f32 v121, v{S[0]+2*r}, v{S[0]+2*r+1}, v121")
    a(f"""
    s_add_u32 s26, s26, 1
    s_cmp_lt_u32 s26, 64
    s_cbranch_scc1 b_mx
    v_mov_b32 v122, v121
    s_nop 1
    v_permlane32_swap_b32 v121, v122
    s_nop 1
    v_max_f32 v121, v121, v122
    """)
    for i in range(16): a(f"v_sub_f32 v{NEG+i}, 0, v121\nv_mov_b32 v{O+i}, 0")
    a(f"""s_mov_b32 s14, s8
    s_mov_b32 s15, s9
    s_mov_b32 s26, 0
    b_sl:
    s_add_u32 s16, s13, {2*9216}
    s_mov_b64 exec, s[18:19]
    buffer_load_dwordx4 {vr(VF[0],4)}, v120, s[36:39], s13 offen sc1
    buffer_load_dwordx4 {vr(VF[0]+4,4)}, v120, s[36:39], s16 offen sc1
    s_mov_b64 exec, -1
    s_add_u32 s13, s13, {4*9216}""")
    scores(vr(NEG,16))
    ex(0, 0, 16); cv(0, 0, 8)
    a("s_nop 1")
    pv(0, 0); pv(0, 1)
    a("""s_add_u32 s26, s26, 1
    s_cmp_lt_u32 s26, 64
    s_cbranch_scc1 b_sl
    s_nop 15
    s_branch b_fin
    k_last:""")

def main():
    ref = open("concat_heads__mha_block__ssm_conv_s4d__prompt.s.ref").read().split("\n")
    head = [l for l in ref if l.startswith(";") and "@launch" not in l and "Override launch" not in l and "grid=ceil" not in l]
    head += ["; @launch grid=(256,1,1) block=(768,1,1) lds=163840"]
    a(f".text\n.globl {KN}\n.p2align 8\n.type {KN},@function\n{KN}:")
    if INSTR:
        for i in range(70, 90): a(f"s_mov_b32 s{i}, 0")
        a("s_memtime s[70:71]\ns_memrealtime s[86:87]")
    if DIAG: a("s_mov_b32 s72, 0\ns_memrealtime s[70:71]")
    phaseA(); phaseB(); phaseC()
    desc = f""".section .rodata,"a"
.p2align 6
.amdhsa_kernel {KN}
  .amdhsa_next_free_vgpr 168
  .amdhsa_next_free_sgpr 102
  .amdhsa_accum_offset 168
  .amdhsa_group_segment_fixed_size 0
  .amdhsa_kernarg_size 104
  .amdhsa_user_sgpr_count 2
  .amdhsa_user_sgpr_kernarg_segment_ptr 1
  .amdhsa_system_sgpr_workgroup_id_x 1
.end_amdhsa_kernel
"""
    out = "\n".join(head) + "\n.amdgcn_target \"amdgcn-amd-amdhsa--gfx950\"\n" + a.text() + desc
    path = sys.argv[1] if len(sys.argv) > 1 and sys.argv[1].endswith(".s") else "concat_heads__mha_block__ssm_conv_s4d__prompt.s"
    open(path, "w").write(out)
main()
```

```python
import sys, struct
KN = "concat_heads__mha_block__ssm_conv_s4d__prompt_kernel"
def f2u(x): return struct.unpack("<I", struct.pack("<f", x))[0]
INSTR = "instr" in sys.argv
OPT = dict(x.split("=") for x in sys.argv if "=" in x)

WS_QK = 0; QK_T = 73728
WS_V = WS_QK + 64 * QK_T
WS_O = WS_V + 256 * 9216; O_T = 36864
WS_U = WS_O + 64 * O_T
WS_Y = WS_U + 576 * 4096
WS_FL = WS_Y + 576 * 4096
FS = 128
FL_A = 0; FL_S = 864 * FS; FL_Y = FL_S + 288 * FS; FL_B = FL_Y + 1152 * FS; FL_E = FL_B + 2048 * FS
WS_END = WS_FL + FL_E + FS
WS_ST = 24 << 20
L_FL = 155648
KC = 4156
KAREA = 8448
L_KT = 65536; L_V = 81920; L_BOUNCE = 155648; L_Q = 102400

class A:
    def __init__(s): s.l = []
    def __call__(s, t):
        for line in t.strip("\n").split("\n"):
            q = line.strip()
            if not q: continue
            s.l.append(q if q.endswith(":") else "    " + q)
    def text(s): return "\n".join(s.l) + "\n"
a = A()
def vr(b, n): return f"v[{b}:{b+n-1}]"
def srd(d, lo, size):
    a(f"""s_mov_b32 s{d}, s{lo}
    s_mov_b32 s{d+1}, s{lo+1}
    s_mov_b32 s{d+2}, {size}
    s_mov_b32 s{d+3}, 0x20000""")

SSETS = {"1": ["Aend", "Aack", "Bflag", "Bgo", "Bloop", "Back"],
         "2": ["Bgo", "Bloop", "Back", "Cflag", "Cfirst", "Cmfma"],
         "5": ["Bloop", "Bbar", "Cmfma", "Cx", "Ccvt", "Cst"],
         "4": ["Aack", "Xpw", "Xpoll", "Xiss", "Xland", "Bgo"],
         "3": ["Afirst", "Akgen", "Abuilt", "Aconv", "Aend", "Aack"]}
DIAG = OPT.get("diag")
def stamp(name):
    if DIAG == name: a("s_memrealtime s[72:73]")
    if INSTR and name in SSETS[OPT.get("sset", "1")]:
        i = SSETS[OPT.get("sset", "1")].index(name) + 1
        a(f"s_memtime s[{70+2*i}:{71+2*i}]")
def stamp_out():
    if not INSTR: return
    a(f"""s_waitcnt vmcnt(0)
    s_memtime s[84:85]
    s_memrealtime s[88:89]
    s_waitcnt lgkmcnt(0)
    s_mov_b64 exec, 1
    s_lshl_b32 s90, s2, 4
    s_add_u32 s90, s90, s3
    s_lshl_b32 s90, s90, 6
    s_add_u32 s90, s90, {WS_ST}
    v_mov_b32 v166, s90""")
    for i in range(10):
        a(f"v_mov_b32 v167, s{70+2*i}\nglobal_store_dword v166, v167, s[24:25] offset:{4*i}")

def transpose8(I, O, sLO, sHI):
    for c in range(8):
        for t in range(4):
            a(f"v_perm_b32 v{O+4*c+t}, v{I+4*(2*t+1)+(c>>1)}, v{I+4*(2*t)+(c>>1)}, s{sHI if c&1 else sLO}")

def flag_set(soff, t):
    if OPT.get("ffl", "0") == "1":
        a(f"""v_mbcnt_lo_u32_b32 v{t}, -1, 0
        v_mov_b32 v{t+1}, s92
        v_lshl_add_u32 v{t}, v{t}, 2, s93
        s_mov_b32 exec_hi, 0
        buffer_store_dword v{t+1}, v{t}, s[36:39], {soff} offen sc1
        s_mov_b32 exec_hi, -1""")
    else:
        a(f"""v_mov_b32 v{t}, {WS_FL}
        v_mov_b32 v{t+1}, s92
        s_mov_b64 exec, 1
        buffer_store_dword v{t+1}, v{t}, s[36:39], {soff} offen {OPT.get('sfl', 'sc1').replace('+', ' ')}
        s_mov_b64 exec, -1""")
def poll_issue(n, t):
    for i in range(n): a(f"buffer_load_dword v{t+4+i}, v{t+i}, s[36:39], s93 offen {OPT.get('pfl', 'sc1').replace('+', ' ')}")
def flag_poll(tag, n, t, issued=False):
    a("s_mov_b32 s91, 0")
    if issued: a(f"s_branch {tag}_c")
    a(f"{tag}:")
    poll_issue(n, t)
    a(f"{tag}_c:\ns_add_u32 s91, s91, 1\ns_waitcnt vmcnt(0)")
    for i in range(n): a(f"v_xor_b32 v{t+4+i}, s92, v{t+4+i}")
    for i in range(1, n): a(f"v_or_b32 v{t+4}, v{t+4}, v{t+4+i}")
    a(f"""v_cmp_ne_u32 vcc, 0, v{t+4}
    s_cbranch_vccz {tag}_x
    s_mov_b64 exec, vcc
    s_sleep {OPT.get("slp", 2)}
    s_cmp_lt_u32 s91, 0x80000
    s_cbranch_scc1 {tag}
    {tag}_x:
    s_mov_b64 exec, -1""")
def lds_wait(tag, vaddr, off, t, slp=False):
    a(f"""{tag}:
    {"s_sleep 1" if slp else ""}
    ds_read_b32 v{t}, v{vaddr} offset:{off}
    s_waitcnt lgkmcnt(0)
    v_cmp_eq_u32 vcc, 0, v{t}
    s_cbranch_vccz {tag}""")
def kargs():
    a(f"""s_waitcnt lgkmcnt(0)
    s_add_u32 s68, s24, {WS_FL + FL_E}
    s_addc_u32 s69, s25, 0
    s_load_dword s92, s[68:69], 0""")
    srd(36, 24, WS_END)

def ufetch(tag):
    a(f"""
    s_sub_u32 s43, s3, 8
    s_lshl_b32 s40, s2, 1
    s_add_u32 s40, s40, s43              ; channel
    s_lshl_b32 s44, s43, 13
    s_add_u32 m0, s44, 147968
    s_lshr_b32 s46, s40, 6
    s_mul_i32 s46, s46, {32*FS}
    s_add_u32 s46, s46, {FL_S}
    v_and_b32 v10, 31, v0
    v_mul_u32_u24 v10, {FS}, v10
    v_add_u32 v10, s46, v10
    v_lshlrev_b32 v12, 4, v0
    v_mov_b32 v13, 0x7ffffff0
    s_lshl_b32 s44, s40, 12
    s_add_u32 s44, s44, {WS_U}
    s_mov_b32 exec_hi, 0
    """)
    flag_poll(tag, 1, 10)
    for i in range(4): a(f"buffer_load_dwordx4 v12, s[36:39], s44 offen offset:{1024*i} sc1 lds")
    a(f"""s_lshl_b32 s43, s43, 2
    s_add_u32 m0, s43, {L_FL + 448}
    s_mov_b64 exec, 1
    buffer_load_dword v13, s[36:39], 0 offen lds
    s_mov_b64 exec, -1""")

def phaseA():
    mod9 = """
    s_mul_i32 s49, s48, 57
    s_lshr_b32 s49, s49, 9
    s_mul_i32 s49, s49, 9
    s_sub_u32 s48, s48, s49"""
    ROT = {"wg": "s_lshl_b32 s48, s40, 1\ns_add_u32 s48, s48, s41" + mod9, "none": "s_mov_b32 s48, 0",
           "three": "s_and_b32 s48, s27, 3\ns_lshr_b32 s49, s27, 2\ns_add_u32 s48, s48, s49\ns_mul_i32 s48, s48, 3\ns_add_u32 s48, s48, s26" + mod9,
           "two5": "s_and_b32 s48, s27, 1\ns_lshr_b32 s49, s27, 2\ns_xor_b32 s48, s48, s49\ns_and_b32 s48, s48, 1\ns_mul_i32 s48, s48, 5\ns_add_u32 s48, s48, s26" + mod9,
           "twox": "s_and_b32 s48, s27, 1\ns_lshr_b32 s49, s27, 2\ns_xor_b32 s48, s48, s49\ns_and_b32 s48, s48, 1\ns_lshl_b32 s48, s48, 2\ns_and_b32 s49, s26, 3\ns_add_u32 s48, s48, s49\ns_lshr_b32 s49, s26, 2\ns_lshl_b32 s49, s49, 1\ns_add_u32 s48, s48, s49" + mod9,
           "wgb": "s_and_b32 s48, s27, 3\ns_mul_i32 s48, s48, 9\ns_lshr_b32 s48, s48, 2\ns_lshr_b32 s49, s27, 2\ns_mul_i32 s49, s49, 4\ns_add_u32 s48, s48, s49\ns_add_u32 s48, s48, s26" + mod9,
           "wgm": "s_and_b32 s48, s27, 3\ns_mul_i32 s48, s48, 9\ns_lshr_b32 s48, s48, 2\ns_add_u32 s48, s48, s26" + mod9,
           "two": "s_and_b32 s48, s27, 1\ns_lshr_b32 s49, s27, 2\ns_xor_b32 s48, s48, s49\ns_and_b32 s48, s48, 1\ns_lshl_b32 s48, s48, 2\ns_add_u32 s48, s48, s26" + mod9,
           "xcd": "s_and_b32 s48, s26, 3\ns_lshl_b32 s48, s48, 1\ns_lshr_b32 s49, s26, 2\ns_mul_i32 s49, s49, 5\ns_add_u32 s48, s48, s49" + mod9}[OPT.get("rot", "two")]
    a(f"""
    s_cmp_ge_u32 s2, 256
    s_cbranch_scc1 k_done
    v_lshrrev_b32 v1, 6, v0
    v_and_b32 v0, 63, v0
    v_readfirstlane_b32 s3, v1
    v_mov_b32 v23, {L_FL}
    s_cmp_lg_u32 s3, 9
    s_cbranch_scc1 a_noarm
    v_mov_b32 v14, -1
    v_mov_b32 v15, -1
    v_lshl_add_u32 v16, v0, 3, v23
    ds_write_b64 v16, v[14:15]
    s_waitcnt lgkmcnt(0)
    a_noarm:
    s_load_dwordx16 s[4:19], s[0:1], 0
    s_load_dwordx4 s[20:23], s[0:1], 64
    s_load_dwordx2 s[24:25], s[0:1], 96
    s_load_dwordx2 s[96:97], s[0:1], 80
    s_load_dwordx2 s[94:95], s[0:1], 16
    s_add_u32 s26, s3, 8
    s_sub_u32 s27, s3, 4
    s_cmp_lt_u32 s3, 4
    {"" if OPT.get("remap", "1") == "0" else "s_cselect_b32 s3, s26, s27           ; the waves that start first take the loader role (8..11)"}
    s_and_b32 s26, s2, 7
    s_lshr_b32 s27, s2, 3
    s_and_b32 s40, s26, 3
    s_lshl_b32 s40, s40, 2
    s_and_b32 s44, s27, 3
    s_add_u32 s40, s40, s44
    s_lshr_b32 s41, s26, 2
    s_mul_i32 s41, s41, 7
    s_lshr_b32 s44, s27, 2
    s_add_u32 s41, s41, s44
    s_mov_b32 s93, {WS_FL}
    s_cmp_ge_u32 s3, 8
    s_cbranch_scc1 a_aux
    s_cmp_lt_u32 s3, 4
    s_cbranch_scc1 a_ssm
    s_branch a_gemm
    a_aux:
    s_cmp_ge_u32 s27, 28
    s_cbranch_scc1 a_task
    {ROT}
    s_bfe_u32 s56, s3, 0x10001
    s_bitcmp1_b32 s3, 0
    s_cbranch_scc1 a_ldw
    v_lshrrev_b32 v4, 3, v0
    v_lshrrev_b32 v5, 2, v4
    v_lshlrev_b32 v5, 3, v5
    v_and_b32 v6, 3, v4
    v_add_u32 v5, v5, v6
    s_lshl_b32 s44, s40, 7
    v_add_u32 v5, s44, v5
    v_mul_u32_u24 v5, 1152, v5
    v_lshrrev_b32 v6, 1, v4
    v_and_b32 v7, 7, v0
    v_xor_b32 v6, v6, v7
    v_lshl_add_u32 v2, v6, 4, v5
    v_xor_b32 v6, 4, v6
    v_lshl_add_u32 v3, v6, 4, v5
    v_add_u32 v3, {4608-1024}, v3
    s_mov_b32 s50, 128
    s_mov_b32 s51, 18432
    s_mov_b32 s52, 0
    s_waitcnt lgkmcnt(0)
    s_mov_b32 s28, s4
    s_mov_b32 s29, s5
    s_mov_b32 s30, 2359296
    s_branch a_ld
    a_ldw:
    v_lshrrev_b32 v5, 4, v0
    v_mul_u32_u24 v2, 3456, v5
    v_lshlrev_b32 v5, 2, v5
    v_and_b32 v6, 15, v0
    v_xor_b32 v5, v5, v6
    v_lshl_add_u32 v2, v5, 4, v2
    s_lshl_b32 s44, s41, 8
    v_add_u32 v2, s44, v2
    v_add_u32 v3, {13824-1024}, v2
    s_mov_b32 s50, 221184
    s_mov_b32 s51, 27648
    s_mov_b32 s52, 16384
    s_waitcnt lgkmcnt(0)
    s_mov_b32 s28, s6
    s_mov_b32 s29, s7
    s_mov_b32 s30, 1990656
    a_ld:
    s_setprio {OPT.get("lprio", 0)}
    s_mov_b32 s31, 0x20000
    s_mul_i32 s57, s56, s51
    s_lshl_b32 s57, s57, 2
    s_lshl_b32 s56, s56, 13
    s_add_u32 s52, s52, s56
    s_and_b32 s58, s3, 3
    s_lshl_b32 s58, s58, 2
    s_add_u32 s58, s58, {L_FL}
    v_mov_b32 v4, 0x7ffffff0
    s_mov_b32 s53, 0
    """)
    kargs()
    a(f"""
    a_ld_loop:
    s_cmp_lt_u32 s53, 4
    s_cbranch_scc1 a_ld_go
    a_ld_poll:
    ds_read_b128 v[8:11], v23 offset:160
    s_waitcnt lgkmcnt(0)
    v_or_b32 v8, v8, v9
    v_or3_b32 v8, v8, v10, v11
    v_cmp_eq_u32 vcc, 0, v8
    s_cbranch_vccz a_ld_poll
    v_add_u32 v23, 16, v23
    a_ld_go:
    s_mul_i32 s47, s48, s50
    s_add_u32 s47, s47, s57
    s_and_b32 s55, s53, 3
    s_lshl_b32 s55, s55, 15
    s_add_u32 m0, s55, s52
    s_add_u32 s48, s48, 1
    """)
    for p in range(4):
        a(f"buffer_load_dwordx4 v2, s[28:31], s47 offen {OPT.get('ldf','')} lds\nbuffer_load_dwordx4 v3, s[28:31], s47 offen offset:1024 {OPT.get('ldf','')} lds")
        if p < 3: a("s_add_u32 m0, m0, 2048\ns_add_u32 s47, s47, s51")
    a(f"""
    s_cmp_eq_u32 s48, 9
    s_cselect_b32 s48, 0, s48
    s_cmp_lg_u32 s53, 0
    s_cbranch_scc1 a_ld_nb
    s_barrier
    a_ld_nb:
    s_mov_b32 m0, s58
    s_mov_b64 exec, 1
    buffer_load_dword v4, s[28:31], 0 offen lds
    s_mov_b64 exec, -1
    s_add_u32 s58, s58, 16
    s_add_u32 s53, s53, 1
    s_cmp_lt_u32 s53, 9
    s_cbranch_scc1 a_ld_loop
    """)
    a("v_mov_b32 v116, v0\ns_waitcnt lgkmcnt(0)\ns_add_u32 s92, s92, 0x9e3779b1\ns_cmp_ge_u32 s3, 10\ns_cbranch_scc1 b_aux\na_uf:")
    ufetch("a_pu")
    a("s_branch b_aux")
    CPF = "" if OPT.get("cpf", "1") == "0" else f"""
    ; read this kernel's own code once per XCD so that later instruction fetches find it in L2 (speed only)
    s_getpc_b64 s[44:45]
    a_pc:
    s_lshl_b32 s46, s27, 2
    s_add_u32 s46, s46, s3
    s_sub_u32 s46, s46, 4
    s_lshl_b32 s46, s46, 8
    s_min_u32 s46, s46, k_last - {KN} - 256
    s_sub_u32 s44, s44, a_pc - {KN}
    s_subb_u32 s45, s45, 0
    s_add_u32 s44, s44, s46
    s_addc_u32 s45, s45, 0
    v_lshlrev_b32 v60, 6, v0
    v_mov_b32 v61, s45
    v_add_co_u32 v60, vcc, s44, v60
    s_mov_b64 exec, 15
    s_nop 0
    v_addc_co_u32 v61, vcc, 0, v61, vcc
    global_load_dword v62, v[60:61], off
    s_mov_b64 exec, -1"""
    a(f"""
    a_gemm:
    {CPF}
    s_cmp_ge_u32 s27, 28
    s_cbranch_scc1 a_ssm
    s_barrier
    """)
    kargs()
    if OPT.get("tcha", "0") == "1":
        a(f"""s_cmp_lg_u32 s3, 5
        s_cbranch_scc1 a_ntch
        v_lshlrev_b32 v60, 18, v0
        buffer_load_dword v63, v60, s[36:39], 0 offen
        a_ntch:""")
    a(f"""
    s_sub_u32 s45, s3, 4
    s_and_b32 s42, s45, 1                ; mw
    s_lshr_b32 s43, s45, 1               ; nw
    s_lshl_b32 s58, s45, 2
    s_add_u32 s58, s58, {L_FL + 160}
    v_mov_b32 v22, 0x7ffffff0
    v_and_b32 v5, 31, v0
    v_lshrrev_b32 v6, 5, v0
    s_lshl_b32 s44, s42, 6
    v_add_u32 v7, s44, v5
    v_lshlrev_b32 v7, 7, v7
    v_bfe_u32 v5, v5, 1, 3
    v_xor_b32 v5, v5, v6
    """)
    for j in range(4):
        a(f"v_xor_b32 v20, {2*j}, v5\nv_lshl_add_u32 v{8+j}, v20, 4, v7\nv_add_u32 v{12+j}, 0x10000, v{8+j}")
    a(f"""
    v_bfe_u32 v5, v0, 2, 2
    v_lshl_add_u32 v7, v6, 3, v5
    v_lshlrev_b32 v7, 8, v7
    v_bfe_u32 v20, v0, 4, 1
    v_lshl_add_u32 v7, v20, 5, v7
    v_and_b32 v20, 1, v0
    v_lshl_add_u32 v7, v20, 4, v7
    v_and_b32 v20, 2, v0
    v_lshl_add_u32 v7, v20, 2, v7
    v_add_u32 v7, 16384, v7
    s_lshl_b32 s44, s43, 1
    v_xor_b32 v5, s44, v5
    v_lshl_add_u32 v16, v5, 6, v7
    v_xor_b32 v5, 1, v5
    v_lshl_add_u32 v17, v5, 6, v7
    v_add_u32 v18, 0x10000, v16
    v_add_u32 v19, 0x10000, v17
    s_setprio {OPT.get('gprio', 2)}
    s_waitcnt lgkmcnt(0)
    s_add_u32 s92, s92, 0x9e3779b1
    s_lshl_b32 s46, s40, 1
    s_add_u32 s46, s46, s42
    s_lshl_b32 s47, s41, 1
    s_add_u32 s47, s47, s43
    s_lshl_b32 s59, s47, 5
    s_add_u32 s59, s59, s46
    s_mul_i32 s59, s59, {FS}
    s_cmp_ge_u32 s41, 9
    s_cbranch_scc1 a_gemm_v""")
    FB = [24, 40, 128]
    def reads(stage, j, fb):
        slot = stage & 3; hi = slot >> 1; base = (slot & 1) * 32768
        return [f"ds_read_b128 {vr(fb,4)}, v{8+4*hi+j} offset:{base}",
                f"ds_read_b64_tr_b16 {vr(fb+8,2)}, v{16+2*hi} offset:{base+j*4096}",
                f"ds_read_b64_tr_b16 {vr(fb+10,2)}, v{16+2*hi} offset:{base+j*4096+1024}",
                f"ds_read_b64_tr_b16 {vr(fb+12,2)}, v{17+2*hi} offset:{base+j*4096}",
                f"ds_read_b64_tr_b16 {vr(fb+14,2)}, v{17+2*hi} offset:{base+j*4096+1024}",
                f"ds_read_b128 {vr(fb+4,4)}, v{8+4*hi+j} offset:{base+4096}"]
    def mfmas(fb, vor, first):
        out = []
        for (ta, tb) in ((0,0),(0,1),(1,0),(1,1)):
            acc = vr(64 + 16*(2*ta+tb), 16); X = vr(fb+4*ta, 4); W = vr(fb+8+4*tb, 4)
            out.append(f"v_mfma_f32_32x32x16_bf16 {acc}, " + (f"{X}, {W}" if vor else f"{W}, {X}") + ", " + ("0" if first else acc))
        return out
    def check(tag, st, first_read):
        if not first_read:
            a(f"""v_or_b32 v56, v56, v57
            v_or3_b32 v56, v56, v58, v59
            v_cmp_eq_u32 vcc, 0, v56
            s_cbranch_vccnz {tag}_ok""")
        a(f"""{tag}_p:
        ds_read_b128 v[56:59], v23 offset:{16*st}
        s_waitcnt lgkmcnt(0)
        v_or_b32 v56, v56, v57
        v_or3_b32 v56, v56, v58, v59
        v_cmp_eq_u32 vcc, 0, v56
        s_cbranch_vccz {tag}_p
        {tag}_ok:""")
    def mainloop(vor):
        check(f"a_c{int(vor)}_0", 0, True)
        stamp("Afirst")
        a("\n".join(reads(0, 0, FB[0]) + reads(0, 1, FB[1])))
        for g in range(36):
            st, j = divmod(g, 4)
            a(f"s_waitcnt lgkmcnt({6 if g < 35 else 0})")
            m = mfmas(FB[g % 3], vor, g == 0)
            a(m[0])
            if j == 1 and st < 8: a(f"ds_read_b128 v[56:59], v23 offset:{16*(st+1)}")
            if j == 2 and st < 8: check(f"a_c{int(vor)}_{st+1}", st+1, False)
            if j == 3 and st < 5: a(f"s_add_u32 m0, s58, {16*st}\ns_mov_b64 exec, 1\nbuffer_load_dword v22, s[36:39], 0 offen lds\ns_mov_b64 exec, -1")
            rd = reads((g+2)//4, (g+2)%4, FB[(g+2) % 3]) if g + 2 < 36 else []
            a("\n".join(rd[:3])); a(m[1]); a("\n".join(rd[3:])); a(m[2]); a(m[3])
        stamp("Aconv")
    a(f"""
    s_mul_i32 s44, s46, {2*QK_T}
    s_lshl_b32 s45, s47, 12
    s_add_u32 s44, s44, s45
    s_add_u32 s45, s44, {QK_T}
    v_lshlrev_b32 v2, 4, v0
    """)
    mainloop(False)
    for ta in range(2):
        for tb in range(2):
            acc = 64 + 16*(2*ta+tb); o = 24 + 8*(2*ta+tb)
            if ta + tb == 0: a("s_nop 8")
            for r in range(8): a(f"v_cvt_pk_bf16_f32 v{o+r}, v{acc+2*r}, v{acc+2*r+1}")
            for hh in range(2): a(f"buffer_store_dwordx4 {vr(o+4*hh,4)}, v2, s[36:39], s{44+ta} offen offset:{tb*2048+hh*1024} sc1")
    a(f"""s_branch a_gemm_end
    a_gemm_v:
    v_and_b32 v5, 19, v0
    v_bfe_u32 v6, v0, 2, 1
    v_lshl_add_u32 v5, v6, 3, v5
    v_bfe_u32 v6, v0, 3, 1
    v_lshl_add_u32 v5, v6, 2, v5         ; feature inside the tile
    v_lshrrev_b32 v6, 5, v0
    v_mul_u32_u24 v6, 9216, v6
    v_lshl_add_u32 v2, v5, 4, v6
    s_sub_u32 s45, s47, 18
    s_lshl_b32 s45, s45, 10
    s_mul_i32 s44, s46, {8*9216}
    s_add_u32 s44, s44, s45
    s_add_u32 s44, s44, {WS_V}
    """)
    mainloop(True)
    a("s_cmp_ge_u32 s47, 27\ns_cbranch_scc1 a_end")
    for ta in range(2):
        for tb in range(2):
            acc = 64 + 16*(2*ta+tb); o = 24 + 8*(2*ta+tb)
            if ta + tb == 0: a("s_nop 8")
            for r in range(8): a(f"v_cvt_pk_bf16_f32 v{o+r}, v{acc+2*r}, v{acc+2*r+1}")
            for hh in range(2): a(f"s_add_u32 s45, s44, {(4*ta+2*hh)*9216}\nbuffer_store_dwordx4 {vr(o+4*hh,4)}, v2, s[36:39], s45 offen offset:{tb*512} sc1")
    a("a_gemm_end:")
    if OPT.get("early", "0") == "1":
        a(f"""s_lshl_b32 s44, s3, 2
        s_add_u32 s44, s44, {L_FL}
        v_mov_b32 v4, s44
        v_mov_b32 v5, 0
        ds_write_b32 v4, v5 offset:400""")
    stamp("Aend")
    a("s_waitcnt vmcnt(0)")
    stamp("Aack")
    flag_set("s59", 2)
    a("s_branch a_end")

    a(f"""
    a_task:
    s_cmp_eq_u32 s3, 11
    s_cbranch_scc1 a_fetch
    s_sub_u32 s44, s2, 224
    s_lshr_b32 s45, s44, 1               ; B
    s_and_b32 s46, s44, 1                ; es
    s_sub_u32 s47, 16, s3
    s_lshl_b32 s59, s47, 5
    s_add_u32 s59, s59, s44
    s_mul_i32 s59, s59, {FS}
    s_add_u32 s59, s59, {FL_S}
    s_lshl_b32 s48, s45, 3
    s_add_u32 s48, s48, s46
    s_mul_i32 s48, s48, {16*1152}
    s_lshl_b32 s49, s47, 7
    s_add_u32 s48, s48, s49
    v_lshrrev_b32 v10, 3, v0
    v_and_b32 v9, 7, v0
    v_mul_u32_u24 v11, 1152, v10
    v_lshl_add_u32 v11, v9, 4, v11
    v_xor_b32 v12, v10, v9
    v_lshlrev_b32 v12, 4, v12
    v_lshl_add_u32 v12, v9, 10, v12
    s_mul_i32 s49, s3, 24576
    s_sub_u32 s49, s49, {8*24576 - 57344}
    v_add_u32 v12, s49, v12
    s_mov_b32 m0, s49
    v_lshlrev_b32 v17, 15, v10
    v_lshl_add_u32 v17, v9, 4, v17
    s_lshl_b32 s60, s47, 18
    s_lshl_b32 s45, s45, 7
    s_lshl_b32 s46, s46, 11
    s_add_u32 s60, s60, s45
    s_add_u32 s60, s60, s46
    s_add_u32 s60, s60, {WS_U}
    s_mov_b32 s50, 0x05040100
    s_mov_b32 s51, 0x07060302
    """)
    for p in range(8): a(f"v_xor_b32 v{24+p}, {16*p}, v11")
    kargs()
    srd(28, 10, 2359296)
    def uload():
        for p in range(8):
            a(f"""s_add_u32 s49, s48, {((p>>1)*32 + (p&1)*8)*1152}
            buffer_load_dwordx4 v{24+p}, s[28:31], s49 offen lds
            s_add_u32 m0, m0, 1024""")
        a("s_sub_u32 s48, s48, 384")
    def uproc(i):
        for j in range(8): a(f"ds_read_b128 {vr(32+4*j,4)}, v12 offset:{i*8192 + j*128}")
        a("s_waitcnt lgkmcnt(0)")
        transpose8(32, [64, 96, 128][i], 50, 51)
    def ustore(i):
        for c in range(8):
            a(f"s_add_u32 s49, s60, {c*4096}\nbuffer_store_dwordx4 {vr([64, 96, 128][i]+4*c,4)}, v17, s[36:39], s49 offen sc1")
        a(f"s_sub_u32 s60, s60, {3<<18}")
    def uflag():
        flag_set("s59", 2)
        a(f"s_sub_u32 s59, s59, {96*FS}")
    uload()
    a("s_barrier\ns_mov_b32 s52, 0\ns_cmp_eq_u32 s3, 10\ns_cbranch_scc1 a_t1\ns_setprio 3\ns_waitcnt vmcnt(0)\na_t0:")
    uproc(0); ustore(0)
    a("s_add_u32 s92, s92, 0x9e3779b1\ns_setprio 0\ns_cmp_eq_u32 s3, 10\ns_cbranch_scc1 a_t2\na_t1:")
    uload(); uload()
    a("s_waitcnt vmcnt(16)\ns_cmp_eq_u32 s3, 10\ns_cbranch_scc1 a_t0")
    uflag()
    a("s_mov_b32 s52, 1\na_t2:\ns_waitcnt vmcnt(8)")
    uproc(1)
    a("s_waitcnt vmcnt(0)\ns_cmp_eq_u32 s52, 1\ns_cbranch_scc1 a_t3")
    uflag()
    a("a_t3:")
    ustore(1); uproc(2)
    a("s_waitcnt vmcnt(0)")
    uflag(); ustore(2)
    a("s_branch a_gemm_end\na_fetch:\ns_barrier")
    kargs()
    a(f"""
    v_mul_u32_u24 v10, {FS}, v0
    v_add_u32 v10, {FL_S + 224*FS}, v10
    v_lshlrev_b32 v12, 4, v0
    v_mov_b32 v13, 0x7ffffff0
    s_lshl_b32 s44, s2, 13
    s_add_u32 s44, s44, {WS_U}
    s_waitcnt lgkmcnt(0)
    s_add_u32 s92, s92, 0x9e3779b1
    s_sleep {OPT.get("fslp", 32)}
    """)
    flag_poll("a_pf", 1, 10)
    for p in range(4):
        a(f"s_mov_b32 m0, {[147968, 156160, 40960, 49152][p]}\ns_add_u32 s45, s44, {(p&1)*4096 + (p>>1)*64*4096}")
        for i in range(4): a(f"buffer_load_dwordx4 v12, s[36:39], s45 offen offset:{1024*i} sc1 lds")
        a(f"""s_mov_b32 m0, {L_FL + 448 + 4*p}
        s_mov_b64 exec, 1
        buffer_load_dword v13, s[36:39], 0 offen lds
        s_mov_b64 exec, -1""")
    a("s_branch a_end")

    L2E = f2u(1.4426950408889634); L2E_LO = f2u(1.4426950408889634 - struct.unpack("<f", struct.pack("<I", L2E))[0])
    LN2 = f2u(0.6931471805599453)
    z0 = list(range(9)) + [14,15,16,20,21,24,25]
    z1 = [9,9,10,11,11,11,12,13,13,17,18,19,22,23,26,27]
    def pack(z, lo):
        v = 0
        for r in range(lo, lo+8): v |= (z[r]-r) << (4*(r-lo))
        return v
    a(f"""
    a_ssm:
    s_and_b32 s41, s3, 1                 ; half
    s_bfe_u32 s45, s3, 0x10001
    s_lshl_b32 s40, s2, 1
    s_add_u32 s40, s40, s45
    s_add_u32 s46, s40, {512 - 448}
    s_mul_i32 s42, s45, {KAREA}
    s_add_u32 s47, s42, 16384
    s_add_u32 s42, s42, 131072
    s_cmp_ge_u32 s3, 4
    s_cselect_b32 s40, s46, s40          ; channel
    s_cselect_b32 s42, s47, s42
    s_lshr_b32 s43, s3, 1
    s_lshl_b32 s43, s43, 13
    s_add_u32 s47, s43, {40960 - 16384}
    s_add_u32 s43, s43, 147968
    s_cmp_ge_u32 s3, 4
    s_cselect_b32 s43, s47, s43
    s_lshl_b32 s45, s40, 7
    s_lshl_b32 s46, s41, 6
    s_add_u32 s45, s45, s46
    v_add_u32 v2, s45, v0
    v_lshlrev_b32 v2, 1, v2
    s_lshl_b32 s45, s40, 1
    v_mov_b32 v3, s45
    s_waitcnt lgkmcnt(0)
    global_load_ushort v4, v3, s[20:21]
    global_load_ushort v6, v2, s[12:13]
    global_load_ushort v7, v2, s[14:15]
    global_load_ushort v8, v2, s[16:17]
    global_load_ushort v9, v2, s[18:19]
    global_load_ushort v5, v3, s[22:23]
    s_barrier
    """)
    kargs()
    a(f"""
    v_and_b32 v14, 31, v0
    v_and_b32 v16, 3, v14
    v_lshrrev_b32 v17, 3, v14
    v_lshl_add_u32 v16, v17, 2, v16
    v_mov_b32 v17, {pack(z0,0):#x}
    v_mov_b32 v18, {pack(z0,8):#x}
    v_mov_b32 v19, {pack(z1,0):#x}
    v_mov_b32 v20, {pack(z1,8):#x}
    v_cmp_lt_u32 vcc, 7, v16
    v_and_b32 v21, 4, v14
    v_and_b32 v22, 7, v16
    v_cndmask_b32 v17, v17, v18, vcc
    v_cndmask_b32 v19, v19, v20, vcc
    v_cmp_ne_u32 vcc, 0, v21
    v_lshlrev_b32 v22, 2, v22
    v_lshrrev_b32 v15, 5, v0
    v_cndmask_b32 v17, v17, v19, vcc
    v_bfe_u32 v17, v17, v22, 4
    v_add_u32 v17, v17, v16
    v_lshlrev_b32 v15, 2, v15
    s_mov_b32 s50, 0x3f80
    """)
    for (zr, dst) in ((14, 40), (17, 48)):
        a(f"""v_and_b32 v18, 1, v{zr}
        v_lshlrev_b32 v18, 4, v18
        v_lshlrev_b32 v18, v18, s50
        v_lshrrev_b32 v19, 1, v{zr}
        v_sub_u32 v19, v19, v15""")
        for d in range(8): a(f"v_cmp_eq_u32 s[{52+2*d}:{53+2*d}], {8*(d>>2) + (d&3)}, v19")
        for d in range(8): a(f"v_cndmask_b32 v{dst+d}, 0, v18, s[{52+2*d}:{53+2*d}]")
    a(f"""
    s_mov_b32 s50, {L2E:#x}
    s_mov_b32 s51, {L2E_LO:#x}
    s_mov_b32 s52, {LN2:#x}
    s_mov_b32 s53, {f2u(248.0):#x}
    s_mov_b32 s54, {f2u(8.0):#x}
    s_waitcnt vmcnt(0) lgkmcnt(0)
    s_add_u32 s92, s92, 0x9e3779b1
    """)
    stamp("Afirst")
    if "nossm" in OPT: a("s_branch a_end")
    def exp_bf16(x, t, lo):
        a(f"""v_mul_f32 v{t}, s50, v{x}
        v_fma_f32 v{lo}, v{x}, s50, -v{t}
        v_exp_f32 v{t}, v{t}
        v_fma_f32 v{lo}, v{x}, s51, v{lo}
        v_mul_f32 v{lo}, s52, v{lo}
        v_fma_f32 v{t}, v{t}, v{lo}, v{t}
        v_cvt_pk_bf16_f32 v{t}, v{t}, v{t}
        v_lshlrev_b32 v{x}, 16, v{t}""")
    for r in range(4, 10): a(f"v_lshlrev_b32 v{r}, 16, v{r}")
    exp_bf16(4, 20, 21)
    exp_bf16(6, 20, 21)
    a("""
    v_mul_f32 v6, v6, v4
    v_mul_f32 v7, v7, v4
    v_mul_f32 v8, v8, v4
    v_mul_f32 v9, v9, v4
    v_mul_f32 v6, s50, v6                ; -Re(z)*log2e
    v_mul_f32 v7, 0.15915494, v7         ; Im(z)/(2pi)
    v_add_f32 v8, v8, v8
    v_mul_f32 v9, -2.0, v9
    """)
    DL = [8, 1, 2, 4, 248]
    DS = {8: "s54", 1: "1.0", 2: "2.0", 4: "4.0", 248: "s53"}
    MR = {d: 24 + 2*i for i, d in enumerate(DL)}
    def mkE(d):
        a(f"""v_mul_f32 v21, {DS[d]}, v6
        v_mul_f32 v22, {DS[d]}, v7
        v_exp_f32 v21, -v21
        v_fract_f32 v22, v22
        v_cos_f32 v20, v22
        v_sin_f32 v22, v22
        v_mul_f32 v{MR[d]}, v21, v20
        v_mul_f32 v{MR[d]+1}, v21, v22""")
    P = 56; Dt = 88; YO = 120; ACC = 152
    R = lambda z: 34 + 2*(z % 3)
    def chain(dl, conj, mid=None):
        n = "-" if conj else ""; p = "" if conj else "-"
        for z in range(len(dl) + 1):
            cur, nxt = R(z), R(z+1)
            if z < len(dl):
                W = MR[dl[z]]
                a(f"v_mul_f32 v{nxt}, v{cur}, v{W}\nv_mul_f32 v{nxt+1}, v{cur+1}, v{W}")
            if z & 1: a(f"v_cvt_pk_bf16_f32 v{P+(z>>1)}, v{R(z-1)}, v{cur}")
            if z < len(dl): a(f"v_fma_f32 v{nxt}, {p}v{cur+1}, v{W+1}, v{nxt}\nv_fma_f32 v{nxt+1}, {n}v{cur}, v{W+1}, v{nxt+1}")
            if z & 1: a(f"v_cvt_pk_bf16_f32 v{P+16+(z>>1)}, v{R(z-1)+1}, v{cur+1}")
            if mid and z == 4: mid()
    def swaps(comp):
        for pr in range(2):
            for t in range(4): a(f"v_permlane32_swap_b32 v{P+16*comp+8*pr+t}, v{P+16*comp+8*pr+4+t}")
    def tmfma(comp, sel):
        for blk in range(2): a(f"v_mfma_f32_32x32x16_bf16 {vr(Dt+16*blk,16)}, {vr(P+16*comp+4*blk,4)}, {vr(sel,4)}, 0")
        for blk in range(2): a(f"v_mfma_f32_32x32x16_bf16 {vr(Dt+16*blk,16)}, {vr(P+16*comp+8+4*blk,4)}, {vr(sel+4,4)}, {vr(Dt+16*blk,16)}")
    def tcvt(dst):
        for i in range(16): a(f"v_cvt_pk_bf16_f32 v{dst+i}, v{Dt+2*i}, v{Dt+2*i+1}")
    mkE(8)
    a(f"v_mov_b32 v{R(0)}, 1.0\nv_mov_b32 v{R(0)+1}, 0")
    chain([8]*31, False)
    mkE(1); swaps(0); swaps(1); tmfma(0, 40); mkE(2); mkE(4); tcvt(YO); tmfma(1, 40); mkE(248)
    a(f"v_mov_b32 v{R(0)}, v8\nv_mov_b32 v{R(0)+1}, v9")
    deltas = [1]*8 + [248] + [2]*4 + [248] + [4]*2 + [248] + [4]*2 + [248, 8, 248, 8, 248, 8, 248, 8]
    chain(deltas, True, mid=lambda: tcvt(YO+16))
    a("v_lshl_add_u32 v21, s41, 6, v0\nv_cmp_eq_u32 vcc, 0, v21\nv_sub_u32 v21, 63, v0")
    swaps(0); swaps(1); tmfma(0, 48)
    a(f"""
    v_cndmask_b32 v5, 0, v5, vcc
    v_lshl_add_u32 v21, v21, 4, s42
    s_lshl_b32 s46, s3, 4
    v_add_u32 v22, s46, v23
    v_xor_b32 v20, 16, v22               ; partner's
    v_mov_b32 v19, 0
    s_nop 5
    """)
    tcvt(P); tmfma(1, 48)
    for i in range(4): a(f"v_mfma_f32_32x32x16_bf16 {vr(ACC,16)}, {vr(P+4*i,4)}, {vr(YO+4*i,4)}, " + ("0" if i == 0 else vr(ACC,16)))
    a("s_nop 7")
    tcvt(P+16)
    a("s_nop 1")
    for i in range(4, 8): a(f"v_mfma_f32_32x32x16_bf16 {vr(ACC,16)}, {vr(P+4*i,4)}, {vr(YO+4*i,4)}, {vr(ACC,16)}")
    stamp("Akgen")
    if "noconv" in OPT: a("s_branch a_end")
    CA = 24; CU = 68; CF = 132
    for i in range(44): a(f"v_mov_b32 v{CA+i}, 0")
    for i in range(32): a(f"v_mov_b32 v{CU+i}, 0")
    a(f"""
    v_and_b32 v12, 31, v0
    v_lshrrev_b32 v13, 5, v0             ; h
    v_lshlrev_b32 v16, 5, v12
    v_lshl_add_u32 v16, v13, 4, v16
    s_lshl_b32 s45, s41, 7
    s_sub_u32 s44, s43, s45
    s_sub_u32 s44, s44, 96
    v_add_u32 v16, s44, v16
    s_lshl_b32 s45, s41, 2
    v_lshlrev_b32 v17, 3, v13
    v_sub_u32 v17, v17, v12
    v_lshlrev_b32 v17, 1, v17            ; 2*(8h - b)
    v_and_b32 v18, 1, v12
    v_cmp_eq_u32 s[56:57], 1, v18        ; b odd
    v_xor_b32 v18, 1, v18
    v_mul_u32_u24 v18, {KC + 2}, v18
    s_lshl_b32 s46, s41, 8
    s_sub_u32 s46, s42, s46
    s_add_u32 s46, s46, {62 + 120*32}
    v_add3_u32 v17, v17, v18, s46
    v_subrev_u32 v18, 2048, v17
    v_add_f32 v{ACC}, v{ACC}, v5
    v_lshl_add_u32 v133, v0, 2, s42
    s_add_u32 s46, s43, 4096
    v_lshl_add_u32 v138, v0, 4, s46
    """)
    for G in range(4): a(f"v_add_u32 v{134+G}, {(3-G)*1024 + KC}, v21")
    a(f"""
    s_cmp_ge_u32 s27, 28
    s_cbranch_scc1 a_s_g2
    a_s_w2:
    ds_read_b128 v[8:11], v23 offset:128
    s_waitcnt lgkmcnt(0)
    v_or_b32 v8, v8, v9
    v_or3_b32 v8, v8, v10, v11
    v_cmp_eq_u32 vcc, 0, v8
    s_cbranch_vccnz a_s_g2
    s_sleep 1
    s_branch a_s_w2
    a_s_g2:
    s_setprio 3
    s_cmp_eq_u32 s41, 0
    s_cbranch_scc1 a_s_even
    """)
    d = lambda r: f"v{ACC+r}" if r < 16 else f"v{r-24}"
    units = [
      (0, 0, [(7,6),(5,4),(3,2),(1,0)]), (0, 1, [(8,7),(6,5),(4,3),(2,1)]),
      (1, 0, [(11,11),(10,10),(10,9),(9,9)]), (1, 1, [(11,11),(11,10),(10,10),(9,9)]),
      (2, 0, [(13,13),(13,32),(12,12),(12,12)]), (2, 1, [(13,13),(13,13),(32,12),(12,12)]),
      (3, 0, [(15,15),(15,33),(14,14),(14,14)]), (3, 1, [(15,15),(15,15),(33,14),(14,14)])]
    def build(us):
        for ui in us:
            G, cp, prs = units[ui]; o = 100 + 4*ui
            for t, (lo, hi) in enumerate(prs): a(f"v_cvt_pk_bf16_f32 v{o+t}, {d(lo)}, {d(hi)}")
            if cp == 0: a(f"ds_write_b128 v21, {vr(o,4)} offset:{(3-G)*1024}")
            else: a(f"ds_write2_b32 v{134+G}, v{o}, v{o+1} offset0:0 offset1:1\nds_write2_b32 v{134+G}, v{o+2}, v{o+3} offset0:2 offset1:3")
    for i in range(3): a(f"ds_write_b128 v138, {vr(ACC+4*i,4)} offset:{1024*i}")
    a("ds_write_b32 v22, v19 offset:256")
    lds_wait("a_s_o0", 20, 256, 8)
    a("ds_read_b128 v[140:143], v21\ns_waitcnt lgkmcnt(0)")
    for i in range(4): a(f"v_add_f32 v{ACC+12+i}, v{ACC+12+i}, v{140+i}")
    a(f"v_cndmask_b32 v8, {d(12)}, {d(13)}, s[56:57]\nv_cndmask_b32 v9, {d(14)}, {d(15)}, s[56:57]")
    build([4, 5, 6, 7])
    a(f"s_branch a_s_u\na_s_even:\nds_write_b128 v21, {vr(ACC+12,4)}\nds_write_b32 v22, v19 offset:256")
    lds_wait("a_s_e0", 20, 256, 8)
    for i in range(3): a(f"ds_read_b128 {vr(140+4*i,4)}, v138 offset:{1024*i}")
    a("v_cmp_eq_u32 vcc, 0, v0\ns_waitcnt lgkmcnt(0)")
    for i in range(12): a(f"v_add_f32 v{ACC+i}, v{ACC+i}, v{140+i}")
    build([0, 1, 2, 3])
    a(f"""
    v_cvt_pk_bf16_f32 v132, {d(0)}, v19
    s_mov_b64 exec, 0x7fff
    ds_write_b32 v133, v19 offset:4096   ; zeros behind both copies; the odd copy ends with K[0]
    s_mov_b64 exec, 0xffff
    v_cndmask_b32 v132, 0, v132, vcc
    ds_write_b32 v133, v132 offset:{4096 + KC}
    s_mov_b64 exec, -1
    a_s_u:
    ds_write_b32 v22, v19 offset:268
    s_setprio 0
    s_lshr_b32 s46, s3, 1
    s_lshl_b32 s46, s46, 2
    v_add_u32 v9, s46, v23
    """)
    lds_wait("a_s_uw", 9, 448, 8)
    for q in range(4):
        a(f"s_add_u32 s46, s45, {q}\ns_lshl_b32 exec_lo, -1, s46\ns_mov_b32 exec_hi, exec_lo")
        for es in range(2): a(f"ds_read_b128 {vr(CU+8*q+4*es,4)}, v16 offset:{es*2048 + (3-q)*32}")
        a("s_mov_b64 exec, -1")
        for es in range(2): a(f"ds_read_b128 {vr(CU+32+8*q+4*es,4)}, v16 offset:{es*2048 + 1024 + (3-q)*32}")
        if q == 2: a("s_waitcnt lgkmcnt(4)")
    lds_wait("a_s_o1", 20, 268, 8)
    stamp("Abuilt")
    steps = [(k, q, es) for k in range(4) for q in range(4) for es in range(2)]
    def frd(i):
        k, q, es = steps[i]; b = CF + 8*(i & 3); o = (6 - 2*q + es) * 8
        if q == 0 and es == 0 and k: a("v_subrev_u32 v17, 512, v17\nv_subrev_u32 v18, 512, v18")
        a(f"""ds_read2_b32 {vr(b,2)}, v17 offset0:{o} offset1:{o+1}
        ds_read2_b32 {vr(b+2,2)}, v17 offset0:{o+2} offset1:{o+3}
        ds_read2_b32 {vr(b+4,2)}, v18 offset0:{o} offset1:{o+1}
        ds_read2_b32 {vr(b+6,2)}, v18 offset0:{o+2} offset1:{o+3}""")
    for i in range(3): frd(i)
    for i, (k, q, es) in enumerate(steps):
        b = CF + 8*(i & 3); U0 = vr(CU+8*q+4*es, 4); U1 = vr(CU+32+8*q+4*es, 4)
        lo = vr(CA+4*k, 16); hi = vr(CA+16+4*k, 16)
        w = f"s_waitcnt lgkmcnt({4*min(2, 31-i)})"
        a(w)
        if q == 0 and es == 0 and k: a("s_nop 9")
        a(f"v_mfma_f32_32x32x16_bf16 {lo}, {U0}, {vr(b,4)}, {lo}")
        a(f"v_mfma_f32_32x32x16_bf16 {hi}, {U1}, {vr(b,4)}, {hi}")
        if i + 3 < 32: frd(i+3)
        a(f"v_mfma_f32_32x32x16_bf16 {hi}, {U0}, {vr(b+4,4)}, {hi}")
    stamp("Aconv")
    a(f"""
    ds_write_b32 v22, v19 offset:260
    s_lshl_b32 s46, s41, 12
    s_add_u32 s46, s46, s42
    v_lshl_add_u32 v16, v0, 4, s46
    s_lshl_b32 s46, s41, 13
    s_sub_u32 s46, 4096, s46
    v_add_u32 v17, s46, v16              ; partner's
    v_lshlrev_b32 v18, 4, v0
    s_lshl_b32 s44, s40, 12
    s_lshl_b32 s45, s41, 11
    s_add_u32 s44, s44, s45
    s_add_u32 s44, s44, {WS_Y}
    s_lshl_b32 s59, s40, 1
    s_add_u32 s59, s59, s41
    s_mul_i32 s59, s59, {FS}
    s_add_u32 s59, s59, {FL_Y}
    """)
    lds_wait("a_s_y1", 20, 260, 12)
    a("s_cmp_eq_u32 s41, 0\ns_cbranch_scc1 a_s_y0")
    for i in range(4): a(f"ds_write_b128 v16, {vr(CA+4*i,4)} offset:{1024*i}")
    a("ds_write_b32 v22, v19 offset:264\ns_waitcnt lgkmcnt(0)")
    for i in range(16): a(f"v_mov_b32 v{CA+i}, v{CA+16+i}")
    a("s_branch a_s_y2\na_s_y0:")
    for i in range(4): a(f"ds_write_b128 v16, {vr(CA+16+4*i,4)} offset:{1024*i}")
    a("ds_write_b32 v22, v19 offset:264\na_s_y2:")
    lds_wait("a_s_y3", 20, 264, 12)
    for i in range(4): a(f"ds_read_b128 {vr(CU+4*i,4)}, v17 offset:{1024*i}")
    a("s_waitcnt lgkmcnt(0)")
    for i in range(16): a(f"v_add_f32 v{CA+i}, v{CA+i}, v{CU+i}")
    for i in range(8): a(f"v_cvt_pk_bf16_f32 v{CF+i}, v{CA+2*i}, v{CA+2*i+1}")
    for g in range(2): a(f"buffer_store_dwordx4 {vr(CF+4*g,4)}, v18, s[36:39], s44 offen offset:{1024*g} sc1")
    stamp("Aend")
    a("s_mov_b32 s62, s59\ns_branch a_end1")
    a(f"""a_end:
    s_mov_b32 s62, 0
    a_end1:
    v_mov_b32 v116, v0
    s_lshl_b32 s44, s3, 2
    s_add_u32 s44, s44, {L_FL}
    v_mov_b32 v4, s44
    v_mov_b32 v5, 0
    ds_write_b32 v4, v5 offset:400""")

S = [0, 16]; O = 32; NEG = 48; P = 64; KF = [72, 76]; TF = [80, 84]; VF = [88, 96]; Q = 104; QL = 108; QH = 110
vK, vT, vV = 112, 113, 114
def rdK(buf, t): a(f"ds_read_b128 {vr(KF[buf],4)}, v{vK} offset:{1024*t}")
def rdT(buf, q): a(f"ds_read2st64_b64 {vr(TF[buf],4)}, v{vT} offset0:{2*q} offset1:{2*q+1}")
def rdV(buf, t):
    a(f"""s_mov_b64 exec, s[18:19]
    ds_read_b128 {vr(VF[buf],4)}, v{vV} offset:{t*1152}
    ds_read_b128 {vr(VF[buf]+4,4)}, v{vV} offset:{t*1152+576}
    s_mov_b64 exec, -1""")
def qk_tail(t, tb):
    tt = t & 3
    a(f"v_mfma_f32_32x32x8_bf16 {vr(S[t&1],16)}, {vr(TF[tb]+2*(tt>>1),2)}, {vr(QH if tt&1 else QL,2)}, {vr(S[t&1],16)}")
def pv(t, half): a(f"v_mfma_f32_32x32x16_bf16 {vr(O,16)}, {vr(VF[t&1]+4*half,4)}, {vr(P+4*half,4)}, {vr(O,16)}")
def ex(t, r0, r1):
    for r in range(r0, r1): a(f"v_exp_f32 v{S[t&1]+r}, v{S[t&1]+r}")
def cv(t, c0, c1):
    for c in range(c0, c1): a(f"v_cvt_pk_bf16_f32 v{P+c}, v{S[t&1]+2*c}, v{S[t&1]+2*c+1}")
LATER = []
def att_run():
    tag = "b_f"
    def qk_main(t): a(f"v_mfma_f32_32x32x16_bf16 {vr(S[t&1],16)}, {vr(KF[t&1],4)}, {vr(Q,4)}, 0")
    rdK(0, 0); rdT(0, 0); rdK(1, 1); rdV(0, 0)
    a("s_mov_b32 s26, 0\ns_waitcnt lgkmcnt(3)")
    qk_main(0); qk_tail(0, 0)
    a(f"s_nop 7\ns_nop 3\n.p2align 6\n{tag}_loop:")
    def at(it, t, code):
        a(f"s_cmp_eq_u32 s26, {it}\ns_cbranch_scc1 {tag}_e{it}_{t}\n{tag}_n{it}_{t}:")
        def h():
            a(f"{tag}_e{it}_{t}:"); code(); a(f"s_branch {tag}_n{it}_{t}")
        LATER.append(h)
    def bar1():
        a("s_cmp_eq_u32 s62, 0\ns_cbranch_scc1 b_nyf\ns_waitcnt vmcnt(0)")
        flag_set("s62", 122)
        a("b_nyf:\ns_barrier\ns_setprio 3")
    def chk1():
        a(f"""v_mov_b32 v121, {L_FL}
        {tag}_f1:
        ds_read_b96 v[124:126], v121 offset:464
        s_waitcnt lgkmcnt(0)
        v_or3_b32 v124, v124, v125, v126
        v_cmp_eq_u32 vcc, 0, v124
        s_cbranch_vccz {tag}_f1""")
    def half():
        a(f"""s_lshl_b32 s27, s3, 2
        s_add_u32 s27, s27, {L_KT}
        v_mov_b32 v121, s27
        v_mov_b32 v122, s92
        ds_write_b32 v121, v122
        s_setprio 1""")
    EV = {(1,2): lambda: a("s_setprio 2"), (1,4): bar1, (0,5): chk1, (5,0): lambda: a("s_setprio 2"), (6,1): half, (7,5): lambda: a("s_setprio 0")}
    for t in range(8):
        for (it, tt), code in EV.items():
            if tt == t: at(it, t, code)
        def adv():
            if t == 7:
                a(f"""v_add_u32 v{vK}, 8192, v{vK}
                v_add_u32 v{vT}, 2048, v{vT}
                v_add_u32 v{vV}, 9216, v{vV}
                s_add_u32 s26, s26, 1
                s_cmp_lt_u32 s26, 8""")
        def rK():
            rdK(t&1, t+2)
            if (t & 3) == 1: rdT(((t>>2)+1)&1, (t>>2)+1)
        M1 = lambda: qk_main(t+1); M2 = lambda: pv(t-1, 1); M3 = lambda: qk_tail(t+1, ((t+1)>>2)&1); M4 = lambda: pv(t, 0)
        rV = lambda: rdV((t+1)&1, t+1)
        E = lambda i, j: ex(t, i, j); C = lambda i, j: cv(t, i, j)
        a("s_waitcnt lgkmcnt(0)")
        o = OPT.get("ord", "a")
        if o == "a":
            M1(); rK(); E(0,4); M2(); rV(); E(4,8); C(0,4); M3(); E(8,12); M4(); adv(); E(12,16); C(4,8)
        elif o == "b":
            M1(); rK(); M2(); rV(); E(0,8); C(0,4); M3(); E(8,9); M4(); adv(); E(9,16); C(4,8)
        elif o == "c":
            M1(); rK(); E(0,5); M2(); rV(); E(5,8); C(0,4); M3(); E(8,13); M4(); adv(); E(13,16); C(4,8)
        elif o == "d":
            M1(); rK(); E(0,4); C(0,1); M2(); rV(); E(4,8); C(1,3); M3(); E(8,12); C(3,5); E(12,13); M4(); adv(); E(13,16); C(5,8)
        elif o == "e":
            M1(); rK(); M2(); rV(); M3(); E(0,8); C(0,4); E(8,10); M4(); adv(); E(10,16); C(4,8)
        elif o == "f":
            M1(); E(0,2); rK(); E(2,4); M2(); E(4,6); rV(); E(6,8); C(0,4); M3(); E(8,12); M4(); adv(); E(12,16); C(4,8)
    a(f"s_cbranch_scc1 {tag}_loop")
    stamp("Bloop")
    a("s_nop 1")
    pv(7, 1)

def phaseB():
    TOUCH = "" if OPT.get("tch", "0") == "0" else f"""s_cmp_lg_u32 s3, 10
    s_cbranch_scc1 b_ntch
    v_lshlrev_b32 v121, 16, v116
    s_mov_b32 s12, {WS_O}
    buffer_load_dword v114, v121, s[36:39], s12 offen
    s_mov_b32 s12, {WS_FL}
    buffer_load_dword v113, v121, s[36:39], s12 offen
    buffer_load_dword v112, v121, s[32:35], 0 offen
    s_mov_b32 s12, {64 << 16}
    buffer_load_dword v111, v121, s[32:35], s12 offen
    b_ntch:"""
    a(f"""
    s_cmp_ge_u32 s3, 8
    s_cbranch_scc1 b_aux
    s_and_b32 s4, s2, 31                 ; head
    s_lshr_b32 s5, s2, 5
    s_lshl_b32 s5, s5, 3
    s_add_u32 s5, s5, s3
    s_and_b32 s7, s4, 3
    v_lshlrev_b32 v{vK}, 4, v116
    v_and_b32 v117, 31, v116
    v_lshlrev_b32 v119, 4, v116
    s_lshl_b32 s8, s3, 10
    s_add_u32 s8, s8, {L_Q}
    v_add_u32 v120, s8, v{vK}
    s_lshl_b32 s8, s3, 8
    s_add_u32 s8, s8, {L_Q + 8192}
    v_lshl_add_u32 v118, v117, 3, s8
    """)
    for i in range(16): a(f"v_mov_b32 v{O+i}, 0")
    for i in range(4): a(f"v_mov_b32 v{P+4+i}, 0")
    a(f"""v_and_b32 v121, 27, v116
    v_cmp_eq_u32 vcc, 18, v121
    v_mov_b32 v121, 0x3f803f80
    s_nop 0
    v_cndmask_b32 v{VF[0]}, 0, v121, vcc""")
    for i in range(1, 16): a(f"v_mov_b32 v{VF[0]+i}, v{VF[0]}")
    a(f"""
    v_lshlrev_b32 v{vT}, 3, v116
    v_add_u32 v{vT}, {L_KT}, v{vT}
    v_lshrrev_b32 v121, 5, v116
    v_mul_u32_u24 v121, 288, v121
    v_lshl_add_u32 v{vV}, v117, 4, v121
    v_add_u32 v{vV}, {L_V}, v{vV}
    s_mov_b32 s18, 0x3ffff
    s_mov_b32 s19, 0x3ffff
    s_mov_b32 s21, {f2u(18**-0.5 * 1.4426950408889634):#x}
    v_cmp_lt_u32 s[22:23], 31, v116
    s_setprio 3
    """)
    stamp("Bflag")
    a(f"""
    s_barrier
    ds_read_b128 {vr(Q,4)}, v120
    ds_read_b64 {vr(QL,2)}, v118
    s_waitcnt lgkmcnt(0)
    s_barrier
    """)
    for r in list(range(Q, Q+4)) + [QL, QL+1]:
        a(f"""v_lshlrev_b32 v121, 16, v{r}
        v_and_b32 v{r}, 0xffff0000, v{r}
        v_mul_f32 v121, s21, v121
        v_mul_f32 v{r}, s21, v{r}
        v_cvt_pk_bf16_f32 v{r}, v121, v{r}""")
    a(f"""
    s_cmp_eq_u32 s7, 1
    s_cselect_b32 vcc_lo, -1, 0
    s_mov_b32 vcc_hi, 0
    v_cndmask_b32 v{Q}, v{Q}, 0, vcc
    s_cmp_eq_u32 s7, 2
    s_cselect_b32 vcc_hi, -1, 0
    s_mov_b32 vcc_lo, 0
    v_cndmask_b32 v{Q+3}, v{Q+3}, 0, vcc
    s_cmp_eq_u32 s7, 3
    s_cselect_b64 vcc, -1, 0
    v_cndmask_b32 v{QL}, v{QL}, 0, vcc
    s_cmp_eq_u32 s7, 0
    s_cselect_b64 vcc, -1, 0
    v_cndmask_b32 v{QL+1}, v{QL+1}, 0, vcc
    v_cndmask_b32 v{QH}, 0, v{QL}, s[22:23]
    v_cndmask_b32 v{QH+1}, 0, v{QL+1}, s[22:23]
    v_cndmask_b32 v{QL}, v{QL}, 0, s[22:23]
    v_cndmask_b32 v{QL+1}, v{QL+1}, 0, s[22:23]
    """)
    stamp("Bgo")
    att_run()
    a(f"""
    s_mul_i32 s10, s5, {O_T}
    s_add_u32 s10, s10, {WS_O}
    s_lshl_b32 s11, s4, 10
    s_add_u32 s11, s11, s10
    s_lshl_b32 s12, s4, 7
    s_add_u32 s12, s12, s10
    s_add_u32 s12, s12, 32768
    s_lshl_b32 s59, s5, 5
    s_add_u32 s59, s59, s4
    s_mul_i32 s59, s59, {FS}
    s_add_u32 s59, s59, {FL_B}
    s_mov_b32 s27, {f2u(2.0**100):#x}
    v_lshlrev_b32 v127, 2, v116
    s_nop 1
    v_max3_f32 v121, abs(v{O}), abs(v{O+1}), abs(v{O+2})
    v_max3_f32 v121, abs(v{O+3}), abs(v{O+4}), v121
    v_max3_f32 v121, abs(v{O+5}), abs(v{O+6}), v121
    v_max3_f32 v121, abs(v{O+7}), abs(v{O+8}), v121
    v_add_f32 v122, v{O}, v{O+1}
    v_add_f32 v123, v{O+2}, v{O+3}
    v_add_f32 v124, v{O+4}, v{O+5}
    v_add_f32 v125, v{O+6}, v{O+7}
    v_add_f32 v126, v{O+8}, v{O+9}
    v_add_f32 v122, v122, v123
    v_add_f32 v124, v124, v125
    v_add_f32 v122, v122, v126
    v_add_f32 v122, v122, v124
    v_max3_f32 v121, abs(v{O+9}), v{O+10}, v121
    v_cmp_ngt_f32 vcc, s27, v121
    v_cmp_nle_f32 s[28:29], 1.0, v{O+10}
    v_cmp_u_f32 s[30:31], v122, v122
    s_or_b64 vcc, vcc, s[28:29]
    s_or_b64 vcc, vcc, s[30:31]
    s_cbranch_vccnz b_slow
    b_fin:
    v_rcp_f32 v121, v{O+10}
    s_nop 0
    """)
    for r in range(10): a(f"v_mul_f32 v{O+r}, v{O+r}, v121")
    for c in range(5): a(f"v_cvt_pk_bf16_f32 v{P+c}, v{O+2*c}, v{O+2*c+1}")
    a(f"""
    buffer_store_dwordx4 {vr(P,4)}, v119, s[36:39], s11 offen sc1
    s_mov_b32 exec_hi, 0
    buffer_store_dword v{P+4}, v127, s[36:39], s12 offen sc1
    s_mov_b32 exec_hi, -1
    v_mov_b32 v0, v116
    s_branch c_start
    """)
    for h in LATER: h()
    a(f"""
    b_aux:
    s_and_b32 s4, s2, 31
    s_mul_i32 s6, s4, 9
    s_lshr_b32 s6, s6, 2
    v_mov_b32 v8, {L_FL}
    s_setprio 3
    s_cmp_lg_u32 s3, 11
    s_cbranch_scc1 b_nopoll
    s_mul_i32 s9, s4, 18
    v_lshrrev_b32 v7, 5, v116
    v_lshl_add_u32 v9, v7, 1, s6
    v_add_u32 v10, 72, v9
    v_lshrrev_b32 v10, 3, v10
    v_and_b32 v11, 31, v116
    v_lshl_add_u32 v10, v10, 5, v11
    v_mul_u32_u24 v120, {FS}, v10
    v_mul_u32_u24 v10, 17, v7
    v_add_u32 v10, s9, v10
    v_add_u32 v10, 1152, v10
    v_lshrrev_b32 v10, 6, v10
    v_lshl_add_u32 v10, v10, 5, v11
    v_mul_u32_u24 v121, {FS}, v10
    v_lshrrev_b32 v10, 3, v9
    s_lshr_b32 s9, s2, 5
    s_lshl_b32 s9, s9, 2
    v_and_b32 v11, 3, v116
    v_add_u32 v11, s9, v11
    v_lshl_add_u32 v10, v10, 5, v11
    v_mul_u32_u24 v122, {FS}, v10
    s_cmp_ge_u32 s2, 224
    s_cselect_b32 s9, 16, 0
    v_add_u32 v9, s9, v8
    b_pw:
    s_sleep 1
    ds_read_b128 v[12:15], v9 offset:416
    s_waitcnt lgkmcnt(0)
    v_or_b32 v12, v12, v13
    v_or3_b32 v12, v12, v14, v15
    v_cmp_eq_u32 vcc, 0, v12
    s_cbranch_vccz b_pw
    """)
    if OPT.get("spw", "1") == "1":
        a("s_cmp_lt_u32 s2, 224\ns_cbranch_scc1 b_pw2_x")
        lds_wait("b_pw2", 8, 400, 12, True)
        a("b_pw2_x:")
    stamp("Xpw")
    flag_poll("b_pa", 3, 120)
    stamp("Xpoll")
    a(f"""
    v_mov_b32 v9, 0
    ds_write_b32 v8, v9 offset:244
    b_nopoll:
    s_bitcmp1_b32 s3, 0
    s_cbranch_scc1 b_ldv
    s_bfe_u32 s7, s4, 0x10001
    s_add_u32 s8, s6, s7
    s_lshl_b32 s8, s8, 9
    s_lshl_b32 s9, s6, 9
    s_mul_i32 s10, s7, {1024 - 8}
    s_sub_u32 s9, s9, s10
    s_add_u32 s9, s9, 1024
    v_lshlrev_b32 v118, 4, v116
    v_lshrrev_b32 v119, 1, v116
    v_lshlrev_b32 v119, 4, v119
    v_and_b32 v120, 1, v116
    v_lshl_add_u32 v119, v120, 2, v119
    s_lshr_b32 s15, s2, 5
    s_mul_i32 s15, s15, {8*QK_T}
    s_cmp_eq_u32 s3, 10
    s_cbranch_scc1 b_ldt
    """)
    def zflag(off):
        a(f"""s_mov_b32 s13, m0
        s_mov_b32 m0, {L_FL + off}
        v_mov_b32 v13, 0x7ffffff0
        s_mov_b64 exec, 1
        buffer_load_dword v13, s[36:39], 0 offen lds
        s_mov_b64 exec, -1
        s_mov_b32 m0, s13""")
    def stream(tag, op, vreg, sbase, lq, lk, step, fl):
        a(f"s_add_u32 s15, s15, {sbase}\ns_add_u32 s16, {sbase}, {72*512}\ns_mov_b32 m0, {lq}\ns_mov_b32 s12, 8")
        lds_wait(f"{tag}_go", 8, 244, 9, True)
        def loop(t, sreg):
            a(f"""{t}:
            {op} v{vreg}, s[36:39], {sreg} offen sc1 lds
            s_add_u32 m0, m0, {step}
            s_add_u32 {sreg}, {sreg}, {QK_T}
            s_sub_u32 s12, s12, 1
            s_cmp_lg_u32 s12, 0
            s_cbranch_scc1 {t}""")
        loop(f"{tag}_q", "s15")
        a(f"s_mov_b32 m0, {lk}\ns_mov_b32 s12, 8")
        loop(f"{tag}_1", "s16")
        stamp("Xiss")
        a("s_mov_b32 s12, 8\ns_waitcnt vmcnt(0)")
        stamp("Xland")
        a("s_barrier\ns_barrier")
        loop(f"{tag}_2", "s16")
        zflag(fl)
        a("s_mov_b32 s12, 48")
        loop(f"{tag}_3", "s16")
        a("s_branch b_lend")
    stream("b_k", "buffer_load_dwordx4", 118, "s8", L_Q, 0, 1024, 464)
    a("b_ldt:")
    stream("b_t", "buffer_load_dword", 119, "s9", L_Q + 8192, L_KT, 256, 468)
    a(f"""
    b_ldv:
    s_mov_b32 s10, {9216 - 288}
    """)
    for p in range(9):
        a(f"""v_add_u32 v10, {64*p}, v116
        v_mul_u32_u24 v11, 3641, v10
        v_lshrrev_b32 v11, 16, v11
        v_mul_lo_u32 v11, v11, s10
        v_lshl_add_u32 v{24+p}, v10, 4, v11""")
    a(f"""
    s_bfe_u32 s9, s3, 0x10001
    s_mul_i32 s8, s9, {32*9216}
    s_mul_i32 s10, s4, 288
    s_add_u32 s8, s8, s10
    s_add_u32 s8, s8, {WS_V}
    s_mul_i32 s9, s9, 9216
    s_add_u32 m0, s9, {L_V}
    s_mov_b32 s12, 0
    """)
    a("s_cmp_eq_u32 s3, 9\ns_cbranch_scc1 b_v_go\ns_barrier\ns_barrier\ns_branch b_v")
    lds_wait("b_v_go", 8, 244, 9, True)
    a("b_v:")
    for p in range(9): a(f"buffer_load_dwordx4 v{24+p}, s[36:39], s8 offen sc1 lds\ns_add_u32 m0, m0, {1024 if p < 8 else 1024 + 9216}\ns_nop 0")
    a(f"""
    s_add_u32 s8, s8, {64*9216}
    s_cmp_lg_u32 s12, 0
    s_cbranch_scc1 b_v1
    s_cmp_eq_u32 s3, 9
    s_cbranch_scc1 b_v0
    """)
    zflag(472)
    a(f"""
    s_branch b_v1
    b_v0:
    s_waitcnt vmcnt(0)
    s_barrier
    s_barrier
    b_v1:
    s_add_u32 s12, s12, 1
    s_cmp_lt_u32 s12, 4
    s_cbranch_scc1 b_v
    b_lend:
    s_waitcnt vmcnt(0)
    s_barrier
    s_setprio {OPT.get("aprio", 0)}
    """)
    srd(28, 94, 663552)
    srd(32, 96, 4718592)
    a(f"""
    s_lshr_b32 s12, s2, 3
    s_lshl_b32 s12, s12, 2
    s_add_u32 s12, s12, s3
    s_sub_u32 s12, s12, 8
    s_lshl_b32 s12, s12, 13
    v_lshlrev_b32 v121, 7, v116
    buffer_load_dword v115, v121, s[28:31], s12 offen
    {TOUCH}
    s_cmp_lg_u32 s3, {99 if ("nossm" in OPT or "noconv" in OPT) else 9}
    s_cbranch_scc1 b_noy
    s_mov_b32 s4, s2
    v_lshrrev_b32 v10, 3, v116
    v_and_b32 v9, 7, v116
    v_lshlrev_b32 v11, 12, v10
    v_lshl_add_u32 v11, v9, 4, v11
    v_xor_b32 v12, v10, v9
    v_lshlrev_b32 v12, 4, v12
    v_lshl_add_u32 v12, v9, 10, v12
    v_add_u32 v12, {L_BOUNCE}, v12
    s_mov_b32 s50, 0x05040100
    s_mov_b32 s51, 0x07060302
    """)
    for p in range(8): a(f"v_xor_b32 v{24+p}, {16*p}, v11")
    a(f"""
    b_y:
    s_lshr_b32 s5, s4, 5
    s_and_b32 s6, s4, 31                 ; sub
    s_lshl_b32 s7, s5, 7
    s_lshr_b32 s8, s6, 4
    s_add_u32 s7, s7, s8
    v_lshl_add_u32 v120, v116, 1, s7
    v_mul_u32_u24 v120, {FS}, v120
    v_add_u32 v120, {FL_Y}, v120
    """)
    flag_poll("b_py", 1, 120)
    a(f"""
    s_lshl_b32 s7, s5, 18
    s_lshl_b32 s8, s6, 7
    s_add_u32 s7, s7, s8
    s_add_u32 s7, s7, {WS_Y}
    s_mov_b32 m0, {L_BOUNCE}
    """)
    for p in range(8):
        a(f"s_nop 0\nbuffer_load_dwordx4 v{24+p}, s[36:39], s7 offen sc1 lds\ns_add_u32 m0, m0, 1024\ns_add_u32 s7, s7, 32768")
    a(f"""
    s_and_b32 s8, s6, 3
    s_lshl_b32 s8, s8, 3
    s_bfe_u32 s9, s6, 0x10002
    s_lshl_b32 s9, s9, 7
    s_add_u32 s8, s8, s9
    s_lshr_b32 s9, s6, 3
    s_lshl_b32 s9, s9, 9
    s_add_u32 s8, s8, s9
    v_add_u32 v17, s8, v10
    v_mul_u32_u24 v17, 2304, v17
    v_lshl_add_u32 v17, v9, 4, v17
    s_lshl_b32 s8, s5, 7
    s_add_u32 s8, s8, 1152
    s_waitcnt vmcnt(0)
    """)
    for j in range(8): a(f"ds_read_b128 {vr(32+4*j,4)}, v12 offset:{j*128}")
    a("s_waitcnt lgkmcnt(0)")
    transpose8(32, 64, 50, 51)
    for c in range(8):
        a(f"s_add_u32 s9, s8, {((c&3)*32 + (c>>2)*256)*2304}\nbuffer_store_dwordx4 {vr(64+4*c,4)}, v17, s[32:35], s9 offen {OPT.get('sty','sc1')}")
    a(f"""
    s_add_u32 s4, s4, 256
    s_cmp_lt_u32 s4, 288
    s_cbranch_scc1 b_y
    b_noy:
    s_setprio 0
    v_mov_b32 v0, v116
    s_lshr_b32 s5, s2, 5                 ; tn
    s_mul_i32 s17, s5, 192
    """)
    for t in range(3):
        a(f"""v_add_u32 v5, {64*t}, v0
        v_mul_u32_u24 v6, 5462, v5
        v_lshrrev_b32 v6, 16, v6             ; row
        v_mul_u32_u24 v7, 12, v6
        v_sub_u32 v7, v5, v7
        v_lshl_add_u32 v7, v7, 4, s17
        v_mul_u32_u24 v8, 1152, v6
        v_add_u32 v{12+t}, v8, v7
        v_and_b32 v9, 4, v6
        v_lshrrev_b32 v10, 3, v6
        v_lshl_add_u32 v9, v10, 1, v9
        v_bfe_u32 v10, v6, 1, 1
        v_add_u32 v9, v9, v10
        v_mul_u32_u24 v9, 18, v9
        v_and_b32 v10, 1, v6
        v_add3_u32 v9, v9, v10, 16
        v_mul_u32_u24 v9, 1152, v9
        v_add_u32 v{16+t}, v9, v7""")
    a(f"""
    s_sub_u32 s8, s3, 8
    s_mul_i32 s10, s8, {9*20736}
    s_mul_i32 s11, s8, {9*3072}
    s_add_u32 s12, s11, {L_V - 18*3072}
    s_cmp_ge_u32 s8, 2
    s_cselect_b32 m0, s12, s11
    s_mov_b32 s12, 20736
    s_mov_b32 s13, 0
    s_cmp_ge_u32 s2, 192
    s_cbranch_scc1 b_wend
    v_and_b32 v9, 7, v0
    v_lshlrev_b32 v9, 2, v9
    v_add_u32 v9, {L_KT}, v9
    s_setprio 3
    b_hw:
    s_sleep 4
    ds_read_b32 v10, v9
    s_waitcnt lgkmcnt(0)
    v_cmp_ne_u32 vcc, s92, v10
    s_cbranch_vccnz b_hw
    b_w:
    s_lshl_b32 s11, s8, 4
    s_add_u32 s11, s11, s13
    s_cmp_eq_u32 s11, {16 + 7}
    s_cselect_b32 m0, {L_KT + 6144}, m0
    s_cmp_lg_u32 s11, {48 + 5}
    s_cbranch_scc1 b_w1
    v_mov_b32 v12, v16
    v_mov_b32 v13, v17
    v_mov_b32 v14, v18
    s_mov_b32 s10, 0
    s_mov_b32 s12, {8*20736}
    b_w1:
    buffer_load_dwordx4 v12, s[28:31], s10 offen lds
    s_add_u32 m0, m0, 1024
    s_add_u32 s13, s13, 1
    buffer_load_dwordx4 v13, s[28:31], s10 offen lds
    s_add_u32 m0, m0, 1024
    s_nop 0
    buffer_load_dwordx4 v14, s[28:31], s10 offen lds
    s_add_u32 m0, m0, 1024
    s_add_u32 s10, s10, s12
    s_cmp_lt_u32 s13, 9
    s_cbranch_scc1 b_w
    b_wend:
    s_setprio 0
    s_mov_b32 s59, 0
    s_waitcnt vmcnt(0)
    """)

def phaseC():
    a("c_start:")
    srd(32, 96, 4718592)
    a(f"""
    s_and_b32 s4, s2, 7
    s_bfe_u32 s6, s2, 0x20003
    s_lshl_b32 s7, s4, 2
    s_add_u32 s7, s7, s6                 ; tm
    s_lshr_b32 s5, s2, 5                 ; tn
    s_mul_i32 s8, s3, 43
    s_lshr_b32 s8, s8, 7                 ; w/3
    s_mul_i32 s9, s8, 3
    s_sub_u32 s9, s3, s9                 ; tb = w%3
    s_lshr_b32 s13, s8, 1                ; kh
    s_and_b32 s14, s8, 1                 ; ta
    v_lshrrev_b32 v5, 5, v0
    v_bfe_u32 v6, v0, 2, 2
    v_lshl_add_u32 v6, v5, 2, v6
    v_mul_u32_u24 v4, 192, v6
    v_bfe_u32 v6, v0, 4, 1
    v_lshl_add_u32 v4, v6, 5, v4
    v_and_b32 v6, 3, v0
    v_lshl_add_u32 v4, v6, 3, v4
    s_lshl_b32 s17, s9, 6
    s_mul_i32 s18, s13, {L_V}
    s_add_u32 s17, s17, s18
    v_add_u32 v4, s17, v4
    s_mul_i32 s18, s13, {L_KT + 6144 - 16*3072}
    s_sub_u32 s18, {L_KT + 6144 - 16*3072}, s18
    v_add_u32 v9, s18, v4
    s_mul_i32 s18, s7, {64*FS}
    s_add_u32 s18, s18, {FL_B}
    v_mul_u32_u24 v120, {FS}, v0
    v_add_u32 v120, s18, v120
    s_waitcnt lgkmcnt(0)
    s_barrier
    """)
    stamp("Bbar")
    a("s_cmp_ge_u32 s2, 192\ns_cbranch_scc1 c_ntr")
    for k in range(18):
        va = 4 if k < 16 else 9
        a(f"ds_read_b64_tr_b16 {vr(128+4*k if k < 9 else 32+4*(k-9),2)}, v{va} offset:{k*3072}\nds_read_b64_tr_b16 {vr(130+4*k if k < 9 else 34+4*(k-9),2)}, v{va} offset:{k*3072+8*192}")
        if k % 4 == 3: a("s_waitcnt lgkmcnt(6)")
    a("c_ntr:\ns_cmp_eq_u32 s59, 0\ns_cbranch_scc1 c_nf\ns_waitcnt vmcnt(0)")
    stamp("Back")
    flag_set("s59", 2)
    a(f"""c_nf:
    s_cmp_ge_u32 s2, 192
    s_cbranch_scc1 c_idle
    v_lshlrev_b32 v2, 4, v0
    s_mul_i32 s17, s8, {18*1024}
    v_add_u32 v3, s17, v2
    v_and_b32 v11, 31, v0
    v_lshlrev_b32 v11, 2, v11
    v_lshl_add_u32 v11, v5, 9, v11
    v_add_u32 v11, s17, v11
    v_add_u32 v11, {14*1024}, v11
    s_lshl_b32 s15, s7, 1
    s_add_u32 s15, s15, s14
    s_mul_i32 s16, s15, {O_T}
    s_mul_i32 s18, s13, {18*1024}
    s_add_u32 s16, s16, s18
    s_lshl_b32 s18, s9, 10
    s_add_u32 s16, s16, s18
    s_add_u32 s16, s16, {WS_O}
    s_add_u32 m0, s17, s18
    s_cmp_lg_u32 s3, 8
    s_cbranch_scc1 c_np
    s_sleep {OPT.get("cslp", 0)}
    """)
    flag_poll("c_pb", 1, 120)
    a("c_np:\ns_waitcnt lgkmcnt(0)\ns_barrier")
    stamp("Cflag")
    for i in range(6):
        a("buffer_load_dwordx4 v2, s[36:39], s16 offen sc1 lds")
        if i < 5: a("s_add_u32 m0, m0, 3072\ns_add_u32 s16, s16, 3072")
    a(f"""
    v_and_b32 v6, 19, v0
    v_bfe_u32 v7, v0, 2, 1
    v_lshl_add_u32 v6, v7, 3, v6
    v_bfe_u32 v7, v0, 3, 1
    v_lshl_add_u32 v6, v7, 2, v6         ; token inside the tile
    v_mul_u32_u24 v6, 400, v6
    v_lshl_add_u32 v6, v5, 4, v6
    s_mul_i32 s18, s8, {32*400}
    s_lshl_b32 s19, s9, 7
    s_add_u32 s18, s18, s19
    s_add_u32 s18, s18, 81920
    v_add_u32 v6, s18, v6
    s_lshl_b32 s18, s3, 6
    v_add_u32 v7, s18, v0
    v_mul_u32_u24 v8, 5462, v7
    v_lshrrev_b32 v8, 16, v8             ; row
    v_mul_u32_u24 v10, 12, v8
    v_sub_u32 v10, v7, v10
    v_mul_u32_u24 v7, 400, v8
    v_lshl_add_u32 v7, v10, 5, v7
    v_add_u32 v7, 81920, v7
    v_mul_u32_u24 v5, 2304, v8
    v_lshl_add_u32 v5, v10, 4, v5
    s_mul_i32 s17, s7, {64*2304}
    s_mul_i32 s18, s5, 192
    s_add_u32 s17, s17, s18
    """)
    wf = lambda k: vr(128+4*k if k < 9 else 32+4*(k-9), 4)
    NC = int(OPT.get("nc", 3)); CK = 18 // NC
    for c in range(NC):
        a(f"s_waitcnt vmcnt({6 - (c+1)*CK//3})\ns_barrier")
        if c == 0: stamp("Cfirst")
        ks = list(range(c*CK, (c+1)*CK))
        reg = lambda k: 72 + 4*(k % 6)
        plain = [k for k in ks if k < 14]; tail = [k for k in ks if k >= 14]
        for k in plain: a(f"ds_read_b128 {vr(reg(k),4)}, v3 offset:{k*1024}")
        if tail:
            a(f"s_cmp_eq_u32 s13, 1\ns_cbranch_scc1 c_tl{c}")
            for k in tail: a(f"ds_read_b128 {vr(reg(k),4)}, v3 offset:{k*1024}")
            a(f"s_branch c_tm{c}\nc_tl{c}:")
            for k in tail:
                a(f"""ds_read2_b32 {vr(reg(k),2)}, v11 offset0:0 offset1:32
                ds_read2_b32 {vr(reg(k)+2,2)}, v11 offset0:64 offset1:96
                v_add_u32 v11, 1024, v11""")
            a(f"s_waitcnt lgkmcnt(0)\nc_tm{c}:")
        for i, k in enumerate(ks):
            a(f"s_waitcnt lgkmcnt({CK-1-i})")
            a(f"v_mfma_f32_32x32x16_bf16 v[16:31], {wf(k)}, {vr(reg(k),4)}, " + ("0" if k == 0 else "v[16:31]"))
    stamp("Cmfma")
    a("s_nop 11")
    for rq in range(4): a(f"ds_write_b128 v6, {vr(16+4*rq,4)} offset:{32*rq}")
    a("s_waitcnt lgkmcnt(0)\ns_barrier")
    stamp("Cx")
    a(f"""ds_read_b128 v[32:35], v7
    ds_read_b128 v[36:39], v7 offset:16
    ds_read_b128 v[40:43], v7 offset:{64*400}
    ds_read_b128 v[44:47], v7 offset:{64*400+16}
    s_waitcnt lgkmcnt(0)""")
    for r in range(8): a(f"v_add_f32 v{32+r}, v{32+r}, v{40+r}")
    for c in range(4): a(f"v_cvt_pk_bf16_f32 v{48+c}, v{32+2*c}, v{32+2*c+1}")
    stamp("Ccvt")
    a(f"buffer_store_dwordx4 v[48:51], v5, s[32:35], s17 offen {OPT.get('sto','')}")
    stamp("Cst")
    a("k_done2:")
    if DIAG and "dmax" in OPT:
        a(f"""s_load_dwordx2 s[80:81], s[0:1], 88
        s_waitcnt vmcnt(0)
        s_memrealtime s[74:75]
        s_waitcnt lgkmcnt(0)
        {"s_mov_b32 s72, s74" if DIAG == "end" else ""}
        s_cmp_eq_u32 s72, 0
        s_cbranch_scc1 dg_n
        dg_d:
        s_sleep 20
        s_memrealtime s[78:79]
        s_waitcnt lgkmcnt(0)
        s_sub_u32 s77, s78, s70
        s_cmp_lt_u32 s77, 4000
        s_cbranch_scc1 dg_d
        s_lshl_b32 s76, s72, 8
        s_or_b32 s76, s76, s2
        s_lshl_b32 s77, s70, 8
        s_not_b32 s77, s77
        v_mov_b32 v2, 0
        v_mov_b32 v3, s76
        v_mov_b32 v4, s77
        s_mov_b64 exec, 1
        global_atomic_umax v2, v3, s[80:81] sc1
        global_atomic_umax v2, v4, s[80:81] offset:128 sc1
        s_mov_b64 exec, -1
        dg_n:
        s_cmp_lg_u32 s2, 0
        s_cbranch_scc1 k_done
        s_cmp_lg_u32 s3, 4
        s_cbranch_scc1 k_done
        dg_w:
        s_memrealtime s[78:79]
        s_waitcnt lgkmcnt(0)
        s_sub_u32 s77, s78, s70
        s_cmp_lt_u32 s77, 14000
        s_cbranch_scc1 dg_w
        v_mov_b32 v2, 0
        global_load_dword v3, v2, s[80:81] sc1
        global_load_dword v4, v2, s[80:81] offset:128 sc1
        s_waitcnt vmcnt(0)
        v_readfirstlane_b32 s76, v3
        v_readfirstlane_b32 s77, v4
        s_nop 3
        s_not_b32 s77, s77
        {"s_and_b32 s76, s76, 255" if OPT["dmax"] == "id" else "s_sub_u32 s76, s76, s77"}
        {"s_mul_i32 s76, s76, 25" if OPT["dmax"] == "id" else "s_lshr_b32 s76, s76, 8"}
        s_min_u32 s76, s76, 10000
        s_lshl_b32 s76, s76, 2
        s_add_u32 s76, s76, 15000
        dg_spin:
        s_memrealtime s[78:79]
        s_waitcnt lgkmcnt(0)
        s_sub_u32 s77, s78, s70
        s_cmp_lt_u32 s77, s76
        s_cbranch_scc1 dg_spin""")
    elif DIAG:
        a(f"""s_cmp_lg_u32 s2, {OPT.get("dwg", 0)}
        s_cbranch_scc1 k_done
        s_cmp_lg_u32 s3, {OPT.get("dw", 4)}
        s_cbranch_scc1 k_done
        s_waitcnt vmcnt(0)
        s_memrealtime s[74:75]
        s_waitcnt lgkmcnt(0)
        {"s_mov_b32 s72, s74" if DIAG == "end" else "s_mov_b32 s72, s70" if DIAG == "none" else ""}
        s_sub_u32 s76, s72, s70
        s_min_u32 s76, s76, 10000
        s_lshl_b32 s76, s76, 2
        s_add_u32 s76, s76, 5000
        dg_spin:
        s_memrealtime s[78:79]
        s_waitcnt lgkmcnt(0)
        s_sub_u32 s77, s78, s70
        s_cmp_lt_u32 s77, s76
        s_cbranch_scc1 dg_spin""")
    stamp_out()
    a(f"""k_done:
    s_endpgm
    c_idle:
    s_cmp_lg_u32 s2, 255
    s_cbranch_scc1 k_done2
    s_cmp_lg_u32 s3, 8
    s_cbranch_scc1 k_done2
    v_lshrrev_b32 v120, 5, v116
    v_lshlrev_b32 v120, 8, v120
    v_and_b32 v121, 31, v116
    v_add_u32 v120, v120, v121
    v_mul_u32_u24 v120, {FS}, v120
    v_add_u32 v120, {FL_B}, v120
    v_add_u32 v121, {512*FS}, v120
    v_add_u32 v122, {1024*FS}, v120
    v_add_u32 v123, {1536*FS}, v120
    """)
    flag_poll("c_pe", 4, 120)
    a(f"s_mov_b32 s6, {FL_E}")
    flag_set("s6", 2)
    a("s_branch k_done2")
    a(f"""
    b_slow:
    s_mul_i32 s6, s4, 9
    s_lshr_b32 s6, s6, 2
    s_bfe_u32 s7, s4, 0x10001
    s_add_u32 s8, s6, s7
    s_lshl_b32 s8, s8, 9
    s_add_u32 s8, s8, {72*512}
    s_lshl_b32 s9, s6, 9
    s_mul_i32 s13, s7, {1024 - 8}
    s_sub_u32 s9, s9, s13
    s_add_u32 s9, s9, {72*512 + 1024}
    s_mul_i32 s13, s4, 288
    s_add_u32 s13, s13, {WS_V}
    v_lshlrev_b32 v118, 4, v117
    v_lshrrev_b32 v120, 5, v116
    v_mul_u32_u24 v120, 9216, v120
    v_add_u32 v120, v120, v118
    v_mov_b32 v121, 0xff800000
    s_waitcnt lgkmcnt(0)
    """)
    def scores(c):
        a(f"""buffer_load_dwordx4 {vr(KF[0],4)}, v119, s[36:39], s14 offen sc1
        buffer_load_dwordx2 {vr(TF[0],2)}, v118, s[36:39], s15 offen sc1
        s_add_u32 s14, s14, {QK_T}
        s_add_u32 s15, s15, {QK_T}
        s_waitcnt vmcnt(0)
        v_mfma_f32_32x32x16_bf16 {vr(S[0],16)}, {vr(KF[0],4)}, {vr(Q,4)}, {c}
        v_mfma_f32_32x32x8_bf16 {vr(S[0],16)}, {vr(TF[0],2)}, {vr(QL,2)}, {vr(S[0],16)}
        s_nop 15""")
    a("s_mov_b32 s14, s8\ns_mov_b32 s15, s9\ns_mov_b32 s26, 0\nb_mx:")
    scores("0")
    for r in range(8): a(f"v_max3_f32 v121, v{S[0]+2*r}, v{S[0]+2*r+1}, v121")
    a(f"""
    s_add_u32 s26, s26, 1
    s_cmp_lt_u32 s26, 64
    s_cbranch_scc1 b_mx
    v_mov_b32 v122, v121
    s_nop 1
    v_permlane32_swap_b32 v121, v122
    s_nop 1
    v_max_f32 v121, v121, v122
    """)
    for i in range(16): a(f"v_sub_f32 v{NEG+i}, 0, v121\nv_mov_b32 v{O+i}, 0")
    a(f"""s_mov_b32 s14, s8
    s_mov_b32 s15, s9
    s_mov_b32 s26, 0
    b_sl:
    s_add_u32 s16, s13, {2*9216}
    s_mov_b64 exec, s[18:19]
    buffer_load_dwordx4 {vr(VF[0],4)}, v120, s[36:39], s13 offen sc1
    buffer_load_dwordx4 {vr(VF[0]+4,4)}, v120, s[36:39], s16 offen sc1
    s_mov_b64 exec, -1
    s_add_u32 s13, s13, {4*9216}""")
    scores(vr(NEG,16))
    ex(0, 0, 16); cv(0, 0, 8)
    a("s_nop 1")
    pv(0, 0); pv(0, 1)
    a("""s_add_u32 s26, s26, 1
    s_cmp_lt_u32 s26, 64
    s_cbranch_scc1 b_sl
    s_nop 15
    s_branch b_fin
    k_last:""")

def main():
    ref = open("concat_heads__mha_block__ssm_conv_s4d__prompt.s.ref").read().split("\n")
    head = [l for l in ref if l.startswith(";") and "@launch" not in l and "Override launch" not in l and "grid=ceil" not in l]
    head += ["; @launch grid=(256,1,1) block=(768,1,1) lds=163840"]
    a(f".text\n.globl {KN}\n.p2align 8\n.type {KN},@function\n{KN}:")
    if INSTR:
        for i in range(70, 90): a(f"s_mov_b32 s{i}, 0")
        a("s_memtime s[70:71]\ns_memrealtime s[86:87]")
    if DIAG: a("s_mov_b32 s72, 0\ns_memrealtime s[70:71]")
    phaseA(); phaseB(); phaseC()
    desc = f""".section .rodata,"a"
.p2align 6
.amdhsa_kernel {KN}
  .amdhsa_next_free_vgpr 168
  .amdhsa_next_free_sgpr 102
  .amdhsa_accum_offset 168
  .amdhsa_group_segment_fixed_size 0
  .amdhsa_kernarg_size 104
  .amdhsa_user_sgpr_count 2
  .amdhsa_user_sgpr_kernarg_segment_ptr 1
  .amdhsa_system_sgpr_workgroup_id_x 1
.end_amdhsa_kernel
"""
    out = "\n".join(head) + "\n.amdgcn_target \"amdgcn-amd-amdhsa--gfx950\"\n" + a.text() + desc
    path = sys.argv[1] if len(sys.argv) > 1 and sys.argv[1].endswith(".s") else "concat_heads__mha_block__ssm_conv_s4d__prompt.s"
    open(path, "w").write(out)
main()
```

```python
import sys, struct
KN = "concat_heads__mha_block__ssm_conv_s4d__prompt_kernel"
def f2u(x): return struct.unpack("<I", struct.pack("<f", x))[0]
INSTR = "instr" in sys.argv
OPT = dict(x.split("=") for x in sys.argv if "=" in x)

WS_QK = 0; QK_T = 73728
WS_V = WS_QK + 64 * QK_T
WS_O = WS_V + 256 * 9216; O_T = 36864
WS_U = WS_O + 64 * O_T
WS_Y = WS_U + 576 * 4096
WS_FL = WS_Y + 576 * 4096
FS = 128
FL_A = 0; FL_S = 864 * FS; FL_Y = FL_S + 288 * FS; FL_B = FL_Y + 1152 * FS; FL_E = FL_B + 2048 * FS
WS_END = WS_FL + FL_E + FS
WS_ST = 24 << 20
L_FL = 155648
KC = 4156
KAREA = 8448
L_KT = 65536; L_V = 81920; L_BOUNCE = 155648; L_Q = 102400

class A:
    def __init__(s): s.l = []
    def __call__(s, t):
        for line in t.strip("\n").split("\n"):
            q = line.strip()
            if not q: continue
            s.l.append(q if q.endswith(":") else "    " + q)
    def text(s): return "\n".join(s.l) + "\n"
a = A()
def vr(b, n): return f"v[{b}:{b+n-1}]"
def srd(d, lo, size):
    a(f"""s_mov_b32 s{d}, s{lo}
    s_mov_b32 s{d+1}, s{lo+1}
    s_mov_b32 s{d+2}, {size}
    s_mov_b32 s{d+3}, 0x20000""")

SSETS = {"1": ["Aend", "Aack", "Bflag", "Bgo", "Bloop", "Back"],
         "2": ["Bgo", "Bloop", "Back", "Cflag", "Cfirst", "Cmfma"],
         "5": ["Bloop", "Bbar", "Cmfma", "Cx", "Ccvt", "Cst"],
         "4": ["Aack", "Xpw", "Xpoll", "Xiss", "Xland", "Bgo"],
         "3": ["Afirst", "Akgen", "Abuilt", "Aconv", "Aend", "Aack"]}
DIAG = OPT.get("diag")
def stamp(name):
    if DIAG == name: a("s_memrealtime s[72:73]")
    if INSTR and name in SSETS[OPT.get("sset", "1")]:
        i = SSETS[OPT.get("sset", "1")].index(name) + 1
        a(f"s_memtime s[{70+2*i}:{71+2*i}]")
def stamp_out():
    if not INSTR: return
    a(f"""s_waitcnt vmcnt(0)
    s_memtime s[84:85]
    s_memrealtime s[88:89]
    s_waitcnt lgkmcnt(0)
    s_mov_b64 exec, 1
    s_lshl_b32 s90, s2, 4
    s_add_u32 s90, s90, s3
    s_lshl_b32 s90, s90, 6
    s_add_u32 s90, s90, {WS_ST}
    v_mov_b32 v166, s90""")
    for i in range(10):
        a(f"v_mov_b32 v167, s{70+2*i}\nglobal_store_dword v166, v167, s[24:25] offset:{4*i}")

def transpose8(I, O, sLO, sHI):
    for c in range(8):
        for t in range(4):
            a(f"v_perm_b32 v{O+4*c+t}, v{I+4*(2*t+1)+(c>>1)}, v{I+4*(2*t)+(c>>1)}, s{sHI if c&1 else sLO}")

def flag_set(soff, t):
    if OPT.get("ffl", "0") == "1":
        a(f"""v_mbcnt_lo_u32_b32 v{t}, -1, 0
        v_mov_b32 v{t+1}, s92
        v_lshl_add_u32 v{t}, v{t}, 2, s93
        s_mov_b32 exec_hi, 0
        buffer_store_dword v{t+1}, v{t}, s[36:39], {soff} offen sc1
        s_mov_b32 exec_hi, -1""")
    else:
        a(f"""v_mov_b32 v{t}, {WS_FL}
        v_mov_b32 v{t+1}, s92
        s_mov_b64 exec, 1
        buffer_store_dword v{t+1}, v{t}, s[36:39], {soff} offen {OPT.get('sfl', 'sc1').replace('+', ' ')}
        s_mov_b64 exec, -1""")
def poll_issue(n, t):
    for i in range(n): a(f"buffer_load_dword v{t+4+i}, v{t+i}, s[36:39], s93 offen {OPT.get('pfl', 'sc1').replace('+', ' ')}")
def flag_poll(tag, n, t, issued=False):
    a("s_mov_b32 s91, 0")
    if issued: a(f"s_branch {tag}_c")
    a(f"{tag}:")
    poll_issue(n, t)
    a(f"{tag}_c:\ns_add_u32 s91, s91, 1\ns_waitcnt vmcnt(0)")
    for i in range(n): a(f"v_xor_b32 v{t+4+i}, s92, v{t+4+i}")
    for i in range(1, n): a(f"v_or_b32 v{t+4}, v{t+4}, v{t+4+i}")
    a(f"""v_cmp_ne_u32 vcc, 0, v{t+4}
    s_cbranch_vccz {tag}_x
    s_mov_b64 exec, vcc
    s_sleep {OPT.get("slp", 2)}
    s_cmp_lt_u32 s91, 0x80000
    s_cbranch_scc1 {tag}
    {tag}_x:
    s_mov_b64 exec, -1""")
def lds_wait(tag, vaddr, off, t, slp=False):
    a(f"""{tag}:
    {"s_sleep 1" if slp else ""}
    ds_read_b32 v{t}, v{vaddr} offset:{off}
    s_waitcnt lgkmcnt(0)
    v_cmp_eq_u32 vcc, 0, v{t}
    s_cbranch_vccz {tag}""")
def kargs():
    a(f"""s_waitcnt lgkmcnt(0)
    s_add_u32 s68, s24, {WS_FL + FL_E}
    s_addc_u32 s69, s25, 0
    s_load_dword s92, s[68:69], 0""")
    srd(36, 24, WS_END)

def ufetch(tag):
    a(f"""
    s_sub_u32 s43, s3, 8
    s_lshl_b32 s40, s2, 1
    s_add_u32 s40, s40, s43              ; channel
    s_lshl_b32 s44, s43, 13
    s_add_u32 m0, s44, 147968
    s_lshr_b32 s46, s40, 6
    s_mul_i32 s46, s46, {32*FS}
    s_add_u32 s46, s46, {FL_S}
    v_and_b32 v10, 31, v0
    v_mul_u32_u24 v10, {FS}, v10
    v_add_u32 v10, s46, v10
    v_lshlrev_b32 v12, 4, v0
    v_mov_b32 v13, 0x7ffffff0
    s_lshl_b32 s44, s40, 12
    s_add_u32 s44, s44, {WS_U}
    s_mov_b32 exec_hi, 0
    """)
    flag_poll(tag, 1, 10)
    for i in range(4): a(f"buffer_load_dwordx4 v12, s[36:39], s44 offen offset:{1024*i} sc1 lds")
    a(f"""s_lshl_b32 s43, s43, 2
    s_add_u32 m0, s43, {L_FL + 448}
    s_mov_b64 exec, 1
    buffer_load_dword v13, s[36:39], 0 offen lds
    s_mov_b64 exec, -1""")

def phaseA():
    mod9 = """
    s_mul_i32 s49, s48, 57
    s_lshr_b32 s49, s49, 9
    s_mul_i32 s49, s49, 9
    s_sub_u32 s48, s48, s49"""
    ROT = {"wg": "s_lshl_b32 s48, s40, 1\ns_add_u32 s48, s48, s41" + mod9, "none": "s_mov_b32 s48, 0",
           "three": "s_and_b32 s48, s27, 3\ns_lshr_b32 s49, s27, 2\ns_add_u32 s48, s48, s49\ns_mul_i32 s48, s48, 3\ns_add_u32 s48, s48, s26" + mod9,
           "two5": "s_and_b32 s48, s27, 1\ns_lshr_b32 s49, s27, 2\ns_xor_b32 s48, s48, s49\ns_and_b32 s48, s48, 1\ns_mul_i32 s48, s48, 5\ns_add_u32 s48, s48, s26" + mod9,
           "twox": "s_and_b32 s48, s27, 1\ns_lshr_b32 s49, s27, 2\ns_xor_b32 s48, s48, s49\ns_and_b32 s48, s48, 1\ns_lshl_b32 s48, s48, 2\ns_and_b32 s49, s26, 3\ns_add_u32 s48, s48, s49\ns_lshr_b32 s49, s26, 2\ns_lshl_b32 s49, s49, 1\ns_add_u32 s48, s48, s49" + mod9,
           "wgb": "s_and_b32 s48, s27, 3\ns_mul_i32 s48, s48, 9\ns_lshr_b32 s48, s48, 2\ns_lshr_b32 s49, s27, 2\ns_mul_i32 s49, s49, 4\ns_add_u32 s48, s48, s49\ns_add_u32 s48, s48, s26" + mod9,
           "wgm": "s_and_b32 s48, s27, 3\ns_mul_i32 s48, s48, 9\ns_lshr_b32 s48, s48, 2\ns_add_u32 s48, s48, s26" + mod9,
           "two": "s_and_b32 s48, s27, 1\ns_lshr_b32 s49, s27, 2\ns_xor_b32 s48, s48, s49\ns_and_b32 s48, s48, 1\ns_lshl_b32 s48, s48, 2\ns_add_u32 s48, s48, s26" + mod9,
           "xcd": "s_and_b32 s48, s26, 3\ns_lshl_b32 s48, s48, 1\ns_lshr_b32 s49, s26, 2\ns_mul_i32 s49, s49, 5\ns_add_u32 s48, s48, s49" + mod9}[OPT.get("rot", "two")]
    a(f"""
    s_cmp_ge_u32 s2, 256
    s_cbranch_scc1 k_done
    v_lshrrev_b32 v1, 6, v0
    v_and_b32 v0, 63, v0
    v_readfirstlane_b32 s3, v1
    v_mov_b32 v23, {L_FL}
    s_cmp_lg_u32 s3, 9
    s_cbranch_scc1 a_noarm
    v_mov_b32 v14, -1
    v_mov_b32 v15, -1
    v_lshl_add_u32 v16, v0, 3, v23
    ds_write_b64 v16, v[14:15]
    s_waitcnt lgkmcnt(0)
    a_noarm:
    s_load_dwordx16 s[4:19], s[0:1], 0
    s_load_dwordx4 s[20:23], s[0:1], 64
    s_load_dwordx2 s[24:25], s[0:1], 96
    s_load_dwordx2 s[96:97], s[0:1], 80
    s_load_dwordx2 s[94:95], s[0:1], 16
    s_add_u32 s26, s3, 8
    s_sub_u32 s27, s3, 4
    s_cmp_lt_u32 s3, 4
    {"" if OPT.get("remap", "1") == "0" else "s_cselect_b32 s3, s26, s27           ; the waves that start first take the loader role (8..11)"}
    s_and_b32 s26, s2, 7
    s_lshr_b32 s27, s2, 3
    s_and_b32 s40, s26, 3
    s_lshl_b32 s40, s40, 2
    s_and_b32 s44, s27, 3
    s_add_u32 s40, s40, s44
    s_lshr_b32 s41, s26, 2
    s_mul_i32 s41, s41, 7
    s_lshr_b32 s44, s27, 2
    s_add_u32 s41, s41, s44
    s_mov_b32 s93, {WS_FL}
    s_cmp_ge_u32 s3, 8
    s_cbranch_scc1 a_aux
    s_cmp_lt_u32 s3, 4
    s_cbranch_scc1 a_ssm
    s_branch a_gemm
    a_aux:
    s_cmp_ge_u32 s27, 28
    s_cbranch_scc1 a_task
    {ROT}
    s_bfe_u32 s56, s3, 0x10001
    s_bitcmp1_b32 s3, 0
    s_cbranch_scc1 a_ldw
    v_lshrrev_b32 v4, 3, v0
    v_lshrrev_b32 v5, 2, v4
    v_lshlrev_b32 v5, 3, v5
    v_and_b32 v6, 3, v4
    v_add_u32 v5, v5, v6
    s_lshl_b32 s44, s40, 7
    v_add_u32 v5, s44, v5
    v_mul_u32_u24 v5, 1152, v5
    v_lshrrev_b32 v6, 1, v4
    v_and_b32 v7, 7, v0
    v_xor_b32 v6, v6, v7
    v_lshl_add_u32 v2, v6, 4, v5
    v_xor_b32 v6, 4, v6
    v_lshl_add_u32 v3, v6, 4, v5
    v_add_u32 v3, {4608-1024}, v3
    s_mov_b32 s50, 128
    s_mov_b32 s51, 18432
    s_mov_b32 s52, 0
    s_waitcnt lgkmcnt(0)
    s_mov_b32 s28, s4
    s_mov_b32 s29, s5
    s_mov_b32 s30, 2359296
    s_branch a_ld
    a_ldw:
    v_lshrrev_b32 v5, 4, v0
    v_mul_u32_u24 v2, 3456, v5
    v_lshlrev_b32 v5, 2, v5
    v_and_b32 v6, 15, v0
    v_xor_b32 v5, v5, v6
    v_lshl_add_u32 v2, v5, 4, v2
    s_lshl_b32 s44, s41, 8
    v_add_u32 v2, s44, v2
    v_add_u32 v3, {13824-1024}, v2
    s_mov_b32 s50, 221184
    s_mov_b32 s51, 27648
    s_mov_b32 s52, 16384
    s_waitcnt lgkmcnt(0)
    s_mov_b32 s28, s6
    s_mov_b32 s29, s7
    s_mov_b32 s30, 1990656
    a_ld:
    s_setprio {OPT.get("lprio", 0)}
    s_mov_b32 s31, 0x20000
    s_mul_i32 s57, s56, s51
    s_lshl_b32 s57, s57, 2
    s_lshl_b32 s56, s56, 13
    s_add_u32 s52, s52, s56
    s_and_b32 s58, s3, 3
    s_lshl_b32 s58, s58, 2
    s_add_u32 s58, s58, {L_FL}
    v_mov_b32 v4, 0x7ffffff0
    s_mov_b32 s53, 0
    """)
    kargs()
    a(f"""
    a_ld_loop:
    s_cmp_lt_u32 s53, 4
    s_cbranch_scc1 a_ld_go
    a_ld_poll:
    ds_read_b128 v[8:11], v23 offset:160
    s_waitcnt lgkmcnt(0)
    v_or_b32 v8, v8, v9
    v_or3_b32 v8, v8, v10, v11
    v_cmp_eq_u32 vcc, 0, v8
    s_cbranch_vccz a_ld_poll
    v_add_u32 v23, 16, v23
    a_ld_go:
    s_mul_i32 s47, s48, s50
    s_add_u32 s47, s47, s57
    s_and_b32 s55, s53, 3
    s_lshl_b32 s55, s55, 15
    s_add_u32 m0, s55, s52
    s_add_u32 s48, s48, 1
    """)
    for p in range(4):
        a(f"buffer_load_dwordx4 v2, s[28:31], s47 offen {OPT.get('ldf','')} lds\nbuffer_load_dwordx4 v3, s[28:31], s47 offen offset:1024 {OPT.get('ldf','')} lds")
        if p < 3: a("s_add_u32 m0, m0, 2048\ns_add_u32 s47, s47, s51")
    a(f"""
    s_cmp_eq_u32 s48, 9
    s_cselect_b32 s48, 0, s48
    s_cmp_lg_u32 s53, 0
    s_cbranch_scc1 a_ld_nb
    s_barrier
    a_ld_nb:
    s_mov_b32 m0, s58
    s_mov_b64 exec, 1
    buffer_load_dword v4, s[28:31], 0 offen lds
    s_mov_b64 exec, -1
    s_add_u32 s58, s58, 16
    s_add_u32 s53, s53, 1
    s_cmp_lt_u32 s53, 9
    s_cbranch_scc1 a_ld_loop
    """)
    a("v_mov_b32 v116, v0\ns_waitcnt lgkmcnt(0)\ns_add_u32 s92, s92, 0x9e3779b1\ns_cmp_ge_u32 s3, 10\ns_cbranch_scc1 b_aux\na_uf:")
    ufetch("a_pu")
    a("s_branch b_aux")
    CPF = "" if OPT.get("cpf", "1") == "0" else f"""
    ; read this kernel's own code once per XCD so that later instruction fetches find it in L2 (speed only)
    s_getpc_b64 s[44:45]
    a_pc:
    s_lshl_b32 s46, s27, 2
    s_add_u32 s46, s46, s3
    s_sub_u32 s46, s46, 4
    s_lshl_b32 s46, s46, 8
    s_min_u32 s46, s46, k_last - {KN} - 256
    s_sub_u32 s44, s44, a_pc - {KN}
    s_subb_u32 s45, s45, 0
    s_add_u32 s44, s44, s46
    s_addc_u32 s45, s45, 0
    v_lshlrev_b32 v60, 6, v0
    v_mov_b32 v61, s45
    v_add_co_u32 v60, vcc, s44, v60
    s_mov_b64 exec, 15
    s_nop 0
    v_addc_co_u32 v61, vcc, 0, v61, vcc
    global_load_dword v62, v[60:61], off
    s_mov_b64 exec, -1"""
    a(f"""
    a_gemm:
    {CPF}
    s_cmp_ge_u32 s27, 28
    s_cbranch_scc1 a_ssm
    s_barrier
    """)
    kargs()
    if OPT.get("tcha", "0") == "1":
        a(f"""s_cmp_lg_u32 s3, 5
        s_cbranch_scc1 a_ntch
        v_lshlrev_b32 v60, 18, v0
        buffer_load_dword v63, v60, s[36:39], 0 offen
        a_ntch:""")
    a(f"""
    s_sub_u32 s45, s3, 4
    s_and_b32 s42, s45, 1                ; mw
    s_lshr_b32 s43, s45, 1               ; nw
    s_lshl_b32 s58, s45, 2
    s_add_u32 s58, s58, {L_FL + 160}
    v_mov_b32 v22, 0x7ffffff0
    v_and_b32 v5, 31, v0
    v_lshrrev_b32 v6, 5, v0
    s_lshl_b32 s44, s42, 6
    v_add_u32 v7, s44, v5
    v_lshlrev_b32 v7, 7, v7
    v_bfe_u32 v5, v5, 1, 3
    v_xor_b32 v5, v5, v6
    """)
    for j in range(4):
        a(f"v_xor_b32 v20, {2*j}, v5\nv_lshl_add_u32 v{8+j}, v20, 4, v7\nv_add_u32 v{12+j}, 0x10000, v{8+j}")
    a(f"""
    v_bfe_u32 v5, v0, 2, 2
    v_lshl_add_u32 v7, v6, 3, v5
    v_lshlrev_b32 v7, 8, v7
    v_bfe_u32 v20, v0, 4, 1
    v_lshl_add_u32 v7, v20, 5, v7
    v_and_b32 v20, 1, v0
    v_lshl_add_u32 v7, v20, 4, v7
    v_and_b32 v20, 2, v0
    v_lshl_add_u32 v7, v20, 2, v7
    v_add_u32 v7, 16384, v7
    s_lshl_b32 s44, s43, 1
    v_xor_b32 v5, s44, v5
    v_lshl_add_u32 v16, v5, 6, v7
    v_xor_b32 v5, 1, v5
    v_lshl_add_u32 v17, v5, 6, v7
    v_add_u32 v18, 0x10000, v16
    v_add_u32 v19, 0x10000, v17
    s_setprio {OPT.get('gprio', 2)}
    s_waitcnt lgkmcnt(0)
    s_add_u32 s92, s92, 0x9e3779b1
    s_lshl_b32 s46, s40, 1
    s_add_u32 s46, s46, s42
    s_lshl_b32 s47, s41, 1
    s_add_u32 s47, s47, s43
    s_lshl_b32 s59, s47, 5
    s_add_u32 s59, s59, s46
    s_mul_i32 s59, s59, {FS}
    s_cmp_ge_u32 s41, 9
    s_cbranch_scc1 a_gemm_v""")
    FB = [24, 40, 128]
    def reads(stage, j, fb):
        slot = stage & 3; hi = slot >> 1; base = (slot & 1) * 32768
        return [f"ds_read_b128 {vr(fb,4)}, v{8+4*hi+j} offset:{base}",
                f"ds_read_b64_tr_b16 {vr(fb+8,2)}, v{16+2*hi} offset:{base+j*4096}",
                f"ds_read_b64_tr_b16 {vr(fb+10,2)}, v{16+2*hi} offset:{base+j*4096+1024}",
                f"ds_read_b64_tr_b16 {vr(fb+12,2)}, v{17+2*hi} offset:{base+j*4096}",
                f"ds_read_b64_tr_b16 {vr(fb+14,2)}, v{17+2*hi} offset:{base+j*4096+1024}",
                f"ds_read_b128 {vr(fb+4,4)}, v{8+4*hi+j} offset:{base+4096}"]
    def mfmas(fb, vor, first):
        out = []
        for (ta, tb) in ((0,0),(0,1),(1,0),(1,1)):
            acc = vr(64 + 16*(2*ta+tb), 16); X = vr(fb+4*ta, 4); W = vr(fb+8+4*tb, 4)
            out.append(f"v_mfma_f32_32x32x16_bf16 {acc}, " + (f"{X}, {W}" if vor else f"{W}, {X}") + ", " + ("0" if first else acc))
        return out
    def check(tag, st, first_read):
        if not first_read:
            a(f"""v_or_b32 v56, v56, v57
            v_or3_b32 v56, v56, v58, v59
            v_cmp_eq_u32 vcc, 0, v56
            s_cbranch_vccnz {tag}_ok""")
        a(f"""{tag}_p:
        ds_read_b128 v[56:59], v23 offset:{16*st}
        s_waitcnt lgkmcnt(0)
        v_or_b32 v56, v56, v57
        v_or3_b32 v56, v56, v58, v59
        v_cmp_eq_u32 vcc, 0, v56
        s_cbranch_vccz {tag}_p
        {tag}_ok:""")
    def mainloop(vor):
        check(f"a_c{int(vor)}_0", 0, True)
        stamp("Afirst")
        a("\n".join(reads(0, 0, FB[0]) + reads(0, 1, FB[1])))
        for g in range(36):
            st, j = divmod(g, 4)
            a(f"s_waitcnt lgkmcnt({6 if g < 35 else 0})")
            m = mfmas(FB[g % 3], vor, g == 0)
            a(m[0])
            if j == 1 and st < 8: a(f"ds_read_b128 v[56:59], v23 offset:{16*(st+1)}")
            if j == 2 and st < 8: check(f"a_c{int(vor)}_{st+1}", st+1, False)
            if j == 3 and st < 5: a(f"s_add_u32 m0, s58, {16*st}\ns_mov_b64 exec, 1\nbuffer_load_dword v22, s[36:39], 0 offen lds\ns_mov_b64 exec, -1")
            rd = reads((g+2)//4, (g+2)%4, FB[(g+2) % 3]) if g + 2 < 36 else []
            a("\n".join(rd[:3])); a(m[1]); a("\n".join(rd[3:])); a(m[2]); a(m[3])
        stamp("Aconv")
    a(f"""
    s_mul_i32 s44, s46, {2*QK_T}
    s_lshl_b32 s45, s47, 12
    s_add_u32 s44, s44, s45
    s_add_u32 s45, s44, {QK_T}
    v_lshlrev_b32 v2, 4, v0
    """)
    mainloop(False)
    for ta in range(2):
        for tb in range(2):
            acc = 64 + 16*(2*ta+tb); o = 24 + 8*(2*ta+tb)
            if ta + tb == 0: a("s_nop 8")
            for r in range(8): a(f"v_cvt_pk_bf16_f32 v{o+r}, v{acc+2*r}, v{acc+2*r+1}")
            for hh in range(2): a(f"buffer_store_dwordx4 {vr(o+4*hh,4)}, v2, s[36:39], s{44+ta} offen offset:{tb*2048+hh*1024} sc1")
    a(f"""s_branch a_gemm_end
    a_gemm_v:
    v_and_b32 v5, 19, v0
    v_bfe_u32 v6, v0, 2, 1
    v_lshl_add_u32 v5, v6, 3, v5
    v_bfe_u32 v6, v0, 3, 1
    v_lshl_add_u32 v5, v6, 2, v5         ; feature inside the tile
    v_lshrrev_b32 v6, 5, v0
    v_mul_u32_u24 v6, 9216, v6
    v_lshl_add_u32 v2, v5, 4, v6
    s_sub_u32 s45, s47, 18
    s_lshl_b32 s45, s45, 10
    s_mul_i32 s44, s46, {8*9216}
    s_add_u32 s44, s44, s45
    s_add_u32 s44, s44, {WS_V}
    """)
    mainloop(True)
    a("s_cmp_ge_u32 s47, 27\ns_cbranch_scc1 a_end")
    for ta in range(2):
        for tb in range(2):
            acc = 64 + 16*(2*ta+tb); o = 24 + 8*(2*ta+tb)
            if ta + tb == 0: a("s_nop 8")
            for r in range(8): a(f"v_cvt_pk_bf16_f32 v{o+r}, v{acc+2*r}, v{acc+2*r+1}")
            for hh in range(2): a(f"s_add_u32 s45, s44, {(4*ta+2*hh)*9216}\nbuffer_store_dwordx4 {vr(o+4*hh,4)}, v2, s[36:39], s45 offen offset:{tb*512} sc1")
    a("a_gemm_end:")
    if OPT.get("early", "0") == "1":
        a(f"""s_lshl_b32 s44, s3, 2
        s_add_u32 s44, s44, {L_FL}
        v_mov_b32 v4, s44
        v_mov_b32 v5, 0
        ds_write_b32 v4, v5 offset:400""")
    stamp("Aend")
    a("s_waitcnt vmcnt(0)")
    stamp("Aack")
    flag_set("s59", 2)
    a("s_branch a_end")

    a(f"""
    a_task:
    s_cmp_eq_u32 s3, 11
    s_cbranch_scc1 a_fetch
    s_sub_u32 s44, s2, 224
    s_lshr_b32 s45, s44, 1               ; B
    s_and_b32 s46, s44, 1                ; es
    s_sub_u32 s47, 16, s3
    s_lshl_b32 s59, s47, 5
    s_add_u32 s59, s59, s44
    s_mul_i32 s59, s59, {FS}
    s_add_u32 s59, s59, {FL_S}
    s_lshl_b32 s48, s45, 3
    s_add_u32 s48, s48, s46
    s_mul_i32 s48, s48, {16*1152}
    s_lshl_b32 s49, s47, 7
    s_add_u32 s48, s48, s49
    v_lshrrev_b32 v10, 3, v0
    v_and_b32 v9, 7, v0
    v_mul_u32_u24 v11, 1152, v10
    v_lshl_add_u32 v11, v9, 4, v11
    v_xor_b32 v12, v10, v9
    v_lshlrev_b32 v12, 4, v12
    v_lshl_add_u32 v12, v9, 10, v12
    s_mul_i32 s49, s3, 24576
    s_sub_u32 s49, s49, {8*24576 - 57344}
    v_add_u32 v12, s49, v12
    s_mov_b32 m0, s49
    v_lshlrev_b32 v17, 15, v10
    v_lshl_add_u32 v17, v9, 4, v17
    s_lshl_b32 s60, s47, 18
    s_lshl_b32 s45, s45, 7
    s_lshl_b32 s46, s46, 11
    s_add_u32 s60, s60, s45
    s_add_u32 s60, s60, s46
    s_add_u32 s60, s60, {WS_U}
    s_mov_b32 s50, 0x05040100
    s_mov_b32 s51, 0x07060302
    """)
    for p in range(8): a(f"v_xor_b32 v{24+p}, {16*p}, v11")
    kargs()
    srd(28, 10, 2359296)
    def uload():
        for p in range(8):
            a(f"""s_add_u32 s49, s48, {((p>>1)*32 + (p&1)*8)*1152}
            buffer_load_dwordx4 v{24+p}, s[28:31], s49 offen lds
            s_add_u32 m0, m0, 1024""")
        a("s_sub_u32 s48, s48, 384")
    def uproc(i):
        for j in range(8): a(f"ds_read_b128 {vr(32+4*j,4)}, v12 offset:{i*8192 + j*128}")
        a("s_waitcnt lgkmcnt(0)")
        transpose8(32, [64, 96, 128][i], 50, 51)
    def ustore(i):
        for c in range(8):
            a(f"s_add_u32 s49, s60, {c*4096}\nbuffer_store_dwordx4 {vr([64, 96, 128][i]+4*c,4)}, v17, s[36:39], s49 offen sc1")
        a(f"s_sub_u32 s60, s60, {3<<18}")
    def uflag():
        flag_set("s59", 2)
        a(f"s_sub_u32 s59, s59, {96*FS}")
    uload()
    a("s_barrier\ns_mov_b32 s52, 0\ns_cmp_eq_u32 s3, 10\ns_cbranch_scc1 a_t1\ns_setprio 3\ns_waitcnt vmcnt(0)\na_t0:")
    uproc(0); ustore(0)
    a("s_add_u32 s92, s92, 0x9e3779b1\ns_setprio 0\ns_cmp_eq_u32 s3, 10\ns_cbranch_scc1 a_t2\na_t1:")
    uload(); uload()
    a("s_waitcnt vmcnt(16)\ns_cmp_eq_u32 s3, 10\ns_cbranch_scc1 a_t0")
    uflag()
    a("s_mov_b32 s52, 1\na_t2:\ns_waitcnt vmcnt(8)")
    uproc(1)
    a("s_waitcnt vmcnt(0)\ns_cmp_eq_u32 s52, 1\ns_cbranch_scc1 a_t3")
    uflag()
    a("a_t3:")
    ustore(1); uproc(2)
    a("s_waitcnt vmcnt(0)")
    uflag(); ustore(2)
    a("s_branch a_gemm_end\na_fetch:\ns_barrier")
    kargs()
    a(f"""
    v_mul_u32_u24 v10, {FS}, v0
    v_add_u32 v10, {FL_S + 224*FS}, v10
    v_lshlrev_b32 v12, 4, v0
    v_mov_b32 v13, 0x7ffffff0
    s_lshl_b32 s44, s2, 13
    s_add_u32 s44, s44, {WS_U}
    s_waitcnt lgkmcnt(0)
    s_add_u32 s92, s92, 0x9e3779b1
    s_sleep {OPT.get("fslp", 32)}
    """)
    flag_poll("a_pf", 1, 10)
    for p in range(4):
        a(f"s_mov_b32 m0, {[147968, 156160, 40960, 49152][p]}\ns_add_u32 s45, s44, {(p&1)*4096 + (p>>1)*64*4096}")
        for i in range(4): a(f"buffer_load_dwordx4 v12, s[36:39], s45 offen offset:{1024*i} sc1 lds")
        a(f"""s_mov_b32 m0, {L_FL + 448 + 4*p}
        s_mov_b64 exec, 1
        buffer_load_dword v13, s[36:39], 0 offen lds
        s_mov_b64 exec, -1""")
    a("s_branch a_end")

    L2E = f2u(1.4426950408889634); L2E_LO = f2u(1.4426950408889634 - struct.unpack("<f", struct.pack("<I", L2E))[0])
    LN2 = f2u(0.6931471805599453)
    z0 = list(range(9)) + [14,15,16,20,21,24,25]
    z1 = [9,9,10,11,11,11,12,13,13,17,18,19,22,23,26,27]
    def pack(z, lo):
        v = 0
        for r in range(lo, lo+8): v |= (z[r]-r) << (4*(r-lo))
        return v
    a(f"""
    a_ssm:
    s_and_b32 s41, s3, 1                 ; half
    s_bfe_u32 s45, s3, 0x10001
    s_lshl_b32 s40, s2, 1
    s_add_u32 s40, s40, s45
    s_add_u32 s46, s40, {512 - 448}
    s_mul_i32 s42, s45, {KAREA}
    s_add_u32 s47, s42, 16384
    s_add_u32 s42, s42, 131072
    s_cmp_ge_u32 s3, 4
    s_cselect_b32 s40, s46, s40          ; channel
    s_cselect_b32 s42, s47, s42
    s_lshr_b32 s43, s3, 1
    s_lshl_b32 s43, s43, 13
    s_add_u32 s47, s43, {40960 - 16384}
    s_add_u32 s43, s43, 147968
    s_cmp_ge_u32 s3, 4
    s_cselect_b32 s43, s47, s43
    s_lshl_b32 s45, s40, 7
    s_lshl_b32 s46, s41, 6
    s_add_u32 s45, s45, s46
    v_add_u32 v2, s45, v0
    v_lshlrev_b32 v2, 1, v2
    s_lshl_b32 s45, s40, 1
    v_mov_b32 v3, s45
    s_waitcnt lgkmcnt(0)
    global_load_ushort v4, v3, s[20:21]
    global_load_ushort v6, v2, s[12:13]
    global_load_ushort v7, v2, s[14:15]
    global_load_ushort v8, v2, s[16:17]
    global_load_ushort v9, v2, s[18:19]
    global_load_ushort v5, v3, s[22:23]
    s_barrier
    """)
    kargs()
    a(f"""
    v_and_b32 v14, 31, v0
    v_and_b32 v16, 3, v14
    v_lshrrev_b32 v17, 3, v14
    v_lshl_add_u32 v16, v17, 2, v16
    v_mov_b32 v17, {pack(z0,0):#x}
    v_mov_b32 v18, {pack(z0,8):#x}
    v_mov_b32 v19, {pack(z1,0):#x}
    v_mov_b32 v20, {pack(z1,8):#x}
    v_cmp_lt_u32 vcc, 7, v16
    v_and_b32 v21, 4, v14
    v_and_b32 v22, 7, v16
    v_cndmask_b32 v17, v17, v18, vcc
    v_cndmask_b32 v19, v19, v20, vcc
    v_cmp_ne_u32 vcc, 0, v21
    v_lshlrev_b32 v22, 2, v22
    v_lshrrev_b32 v15, 5, v0
    v_cndmask_b32 v17, v17, v19, vcc
    v_bfe_u32 v17, v17, v22, 4
    v_add_u32 v17, v17, v16
    v_lshlrev_b32 v15, 2, v15
    s_mov_b32 s50, 0x3f80
    """)
    for (zr, dst) in ((14, 40), (17, 48)):
        a(f"""v_and_b32 v18, 1, v{zr}
        v_lshlrev_b32 v18, 4, v18
        v_lshlrev_b32 v18, v18, s50
        v_lshrrev_b32 v19, 1, v{zr}
        v_sub_u32 v19, v19, v15""")
        for d in range(8): a(f"v_cmp_eq_u32 s[{52+2*d}:{53+2*d}], {8*(d>>2) + (d&3)}, v19")
        for d in range(8): a(f"v_cndmask_b32 v{dst+d}, 0, v18, s[{52+2*d}:{53+2*d}]")
    a(f"""
    s_mov_b32 s50, {L2E:#x}
    s_mov_b32 s51, {L2E_LO:#x}
    s_mov_b32 s52, {LN2:#x}
    s_mov_b32 s53, {f2u(248.0):#x}
    s_mov_b32 s54, {f2u(8.0):#x}
    s_waitcnt vmcnt(0) lgkmcnt(0)
    s_add_u32 s92, s92, 0x9e3779b1
    """)
    stamp("Afirst")
    if "nossm" in OPT: a("s_branch a_end")
    def exp_bf16(x, t, lo):
        a(f"""v_mul_f32 v{t}, s50, v{x}
        v_fma_f32 v{lo}, v{x}, s50, -v{t}
        v_exp_f32 v{t}, v{t}
        v_fma_f32 v{lo}, v{x}, s51, v{lo}
        v_mul_f32 v{lo}, s52, v{lo}
        v_fma_f32 v{t}, v{t}, v{lo}, v{t}
        v_cvt_pk_bf16_f32 v{t}, v{t}, v{t}
        v_lshlrev_b32 v{x}, 16, v{t}""")
    for r in range(4, 10): a(f"v_lshlrev_b32 v{r}, 16, v{r}")
    exp_bf16(4, 20, 21)
    exp_bf16(6, 20, 21)
    a("""
    v_mul_f32 v6, v6, v4
    v_mul_f32 v7, v7, v4
    v_mul_f32 v8, v8, v4
    v_mul_f32 v9, v9, v4
    v_mul_f32 v6, s50, v6                ; -Re(z)*log2e
    v_mul_f32 v7, 0.15915494, v7         ; Im(z)/(2pi)
    v_add_f32 v8, v8, v8
    v_mul_f32 v9, -2.0, v9
    """)
    DL = [8, 1, 2, 4, 248]
    DS = {8: "s54", 1: "1.0", 2: "2.0", 4: "4.0", 248: "s53"}
    MR = {d: 24 + 2*i for i, d in enumerate(DL)}
    def mkE(d):
        a(f"""v_mul_f32 v21, {DS[d]}, v6
        v_mul_f32 v22, {DS[d]}, v7
        v_exp_f32 v21, -v21
        v_fract_f32 v22, v22
        v_cos_f32 v20, v22
        v_sin_f32 v22, v22
        v_mul_f32 v{MR[d]}, v21, v20
        v_mul_f32 v{MR[d]+1}, v21, v22""")
    P = 56; Dt = 88; YO = 120; ACC = 152
    R = lambda z: 34 + 2*(z % 3)
    def chain(dl, conj, mid=None):
        n = "-" if conj else ""; p = "" if conj else "-"
        for z in range(len(dl) + 1):
            cur, nxt = R(z), R(z+1)
            if z < len(dl):
                W = MR[dl[z]]
                a(f"v_mul_f32 v{nxt}, v{cur}, v{W}\nv_mul_f32 v{nxt+1}, v{cur+1}, v{W}")
            if z & 1: a(f"v_cvt_pk_bf16_f32 v{P+(z>>1)}, v{R(z-1)}, v{cur}")
            if z < len(dl): a(f"v_fma_f32 v{nxt}, {p}v{cur+1}, v{W+1}, v{nxt}\nv_fma_f32 v{nxt+1}, {n}v{cur}, v{W+1}, v{nxt+1}")
            if z & 1: a(f"v_cvt_pk_bf16_f32 v{P+16+(z>>1)}, v{R(z-1)+1}, v{cur+1}")
            if mid and z == 4: mid()
    def swaps(comp):
        for pr in range(2):
            for t in range(4): a(f"v_permlane32_swap_b32 v{P+16*comp+8*pr+t}, v{P+16*comp+8*pr+4+t}")
    def tmfma(comp, sel):
        for blk in range(2): a(f"v_mfma_f32_32x32x16_bf16 {vr(Dt+16*blk,16)}, {vr(P+16*comp+4*blk,4)}, {vr(sel,4)}, 0")
        for blk in range(2): a(f"v_mfma_f32_32x32x16_bf16 {vr(Dt+16*blk,16)}, {vr(P+16*comp+8+4*blk,4)}, {vr(sel+4,4)}, {vr(Dt+16*blk,16)}")
    def tcvt(dst):
        for i in range(16): a(f"v_cvt_pk_bf16_f32 v{dst+i}, v{Dt+2*i}, v{Dt+2*i+1}")
    mkE(8)
    a(f"v_mov_b32 v{R(0)}, 1.0\nv_mov_b32 v{R(0)+1}, 0")
    chain([8]*31, False)
    mkE(1); swaps(0); swaps(1); tmfma(0, 40); mkE(2); mkE(4); tcvt(YO); tmfma(1, 40); mkE(248)
    a(f"v_mov_b32 v{R(0)}, v8\nv_mov_b32 v{R(0)+1}, v9")
    deltas = [1]*8 + [248] + [2]*4 + [248] + [4]*2 + [248] + [4]*2 + [248, 8, 248, 8, 248, 8, 248, 8]
    chain(deltas, True, mid=lambda: tcvt(YO+16))
    a("v_lshl_add_u32 v21, s41, 6, v0\nv_cmp_eq_u32 vcc, 0, v21\nv_sub_u32 v21, 63, v0")
    swaps(0); swaps(1); tmfma(0, 48)
    a(f"""
    v_cndmask_b32 v5, 0, v5, vcc
    v_lshl_add_u32 v21, v21, 4, s42
    s_lshl_b32 s46, s3, 4
    v_add_u32 v22, s46, v23
    v_xor_b32 v20, 16, v22               ; partner's
    v_mov_b32 v19, 0
    s_nop 5
    """)
    tcvt(P); tmfma(1, 48)
    for i in range(4): a(f"v_mfma_f32_32x32x16_bf16 {vr(ACC,16)}, {vr(P+4*i,4)}, {vr(YO+4*i,4)}, " + ("0" if i == 0 else vr(ACC,16)))
    a("s_nop 7")
    tcvt(P+16)
    a("s_nop 1")
    for i in range(4, 8): a(f"v_mfma_f32_32x32x16_bf16 {vr(ACC,16)}, {vr(P+4*i,4)}, {vr(YO+4*i,4)}, {vr(ACC,16)}")
    stamp("Akgen")
    if "noconv" in OPT: a("s_branch a_end")
    CA = 24; CU = 68; CF = 132
    for i in range(44): a(f"v_mov_b32 v{CA+i}, 0")
    for i in range(32): a(f"v_mov_b32 v{CU+i}, 0")
    a(f"""
    v_and_b32 v12, 31, v0
    v_lshrrev_b32 v13, 5, v0             ; h
    v_lshlrev_b32 v16, 5, v12
    v_lshl_add_u32 v16, v13, 4, v16
    s_lshl_b32 s45, s41, 7
    s_sub_u32 s44, s43, s45
    s_sub_u32 s44, s44, 96
    v_add_u32 v16, s44, v16
    s_lshl_b32 s45, s41, 2
    v_lshlrev_b32 v17, 3, v13
    v_sub_u32 v17, v17, v12
    v_lshlrev_b32 v17, 1, v17            ; 2*(8h - b)
    v_and_b32 v18, 1, v12
    v_cmp_eq_u32 s[56:57], 1, v18        ; b odd
    v_xor_b32 v18, 1, v18
    v_mul_u32_u24 v18, {KC + 2}, v18
    s_lshl_b32 s46, s41, 8
    s_sub_u32 s46, s42, s46
    s_add_u32 s46, s46, {62 + 120*32}
    v_add3_u32 v17, v17, v18, s46
    v_subrev_u32 v18, 2048, v17
    v_add_f32 v{ACC}, v{ACC}, v5
    v_lshl_add_u32 v133, v0, 2, s42
    s_add_u32 s46, s43, 4096
    v_lshl_add_u32 v138, v0, 4, s46
    """)
    for G in range(4): a(f"v_add_u32 v{134+G}, {(3-G)*1024 + KC}, v21")
    a(f"""
    s_cmp_ge_u32 s27, 28
    s_cbranch_scc1 a_s_g2
    a_s_w2:
    ds_read_b128 v[8:11], v23 offset:128
    s_waitcnt lgkmcnt(0)
    v_or_b32 v8, v8, v9
    v_or3_b32 v8, v8, v10, v11
    v_cmp_eq_u32 vcc, 0, v8
    s_cbranch_vccnz a_s_g2
    s_sleep 1
    s_branch a_s_w2
    a_s_g2:
    s_setprio 3
    s_cmp_eq_u32 s41, 0
    s_cbranch_scc1 a_s_even
    """)
    d = lambda r: f"v{ACC+r}" if r < 16 else f"v{r-24}"
    units = [
      (0, 0, [(7,6),(5,4),(3,2),(1,0)]), (0, 1, [(8,7),(6,5),(4,3),(2,1)]),
      (1, 0, [(11,11),(10,10),(10,9),(9,9)]), (1, 1, [(11,11),(11,10),(10,10),(9,9)]),
      (2, 0, [(13,13),(13,32),(12,12),(12,12)]), (2, 1, [(13,13),(13,13),(32,12),(12,12)]),
      (3, 0, [(15,15),(15,33),(14,14),(14,14)]), (3, 1, [(15,15),(15,15),(33,14),(14,14)])]
    def build(us):
        for ui in us:
            G, cp, prs = units[ui]; o = 100 + 4*ui
            for t, (lo, hi) in enumerate(prs): a(f"v_cvt_pk_bf16_f32 v{o+t}, {d(lo)}, {d(hi)}")
            if cp == 0: a(f"ds_write_b128 v21, {vr(o,4)} offset:{(3-G)*1024}")
            else: a(f"ds_write2_b32 v{134+G}, v{o}, v{o+1} offset0:0 offset1:1\nds_write2_b32 v{134+G}, v{o+2}, v{o+3} offset0:2 offset1:3")
    for i in range(3): a(f"ds_write_b128 v138, {vr(ACC+4*i,4)} offset:{1024*i}")
    a("ds_write_b32 v22, v19 offset:256")
    lds_wait("a_s_o0", 20, 256, 8)
    a("ds_read_b128 v[140:143], v21\ns_waitcnt lgkmcnt(0)")
    for i in range(4): a(f"v_add_f32 v{ACC+12+i}, v{ACC+12+i}, v{140+i}")
    a(f"v_cndmask_b32 v8, {d(12)}, {d(13)}, s[56:57]\nv_cndmask_b32 v9, {d(14)}, {d(15)}, s[56:57]")
    build([4, 5, 6, 7])
    a(f"s_branch a_s_u\na_s_even:\nds_write_b128 v21, {vr(ACC+12,4)}\nds_write_b32 v22, v19 offset:256")
    lds_wait("a_s_e0", 20, 256, 8)
    for i in range(3): a(f"ds_read_b128 {vr(140+4*i,4)}, v138 offset:{1024*i}")
    a("v_cmp_eq_u32 vcc, 0, v0\ns_waitcnt lgkmcnt(0)")
    for i in range(12): a(f"v_add_f32 v{ACC+i}, v{ACC+i}, v{140+i}")
    build([0, 1, 2, 3])
    a(f"""
    v_cvt_pk_bf16_f32 v132, {d(0)}, v19
    s_mov_b64 exec, 0x7fff
    ds_write_b32 v133, v19 offset:4096   ; zeros behind both copies; the odd copy ends with K[0]
    s_mov_b64 exec, 0xffff
    v_cndmask_b32 v132, 0, v132, vcc
    ds_write_b32 v133, v132 offset:{4096 + KC}
    s_mov_b64 exec, -1
    a_s_u:
    ds_write_b32 v22, v19 offset:268
    s_setprio 0
    s_lshr_b32 s46, s3, 1
    s_lshl_b32 s46, s46, 2
    v_add_u32 v9, s46, v23
    """)
    lds_wait("a_s_uw", 9, 448, 8)
    for q in range(4):
        a(f"s_add_u32 s46, s45, {q}\ns_lshl_b32 exec_lo, -1, s46\ns_mov_b32 exec_hi, exec_lo")
        for es in range(2): a(f"ds_read_b128 {vr(CU+8*q+4*es,4)}, v16 offset:{es*2048 + (3-q)*32}")
        a("s_mov_b64 exec, -1")
        for es in range(2): a(f"ds_read_b128 {vr(CU+32+8*q+4*es,4)}, v16 offset:{es*2048 + 1024 + (3-q)*32}")
        if q == 2: a("s_waitcnt lgkmcnt(4)")
    lds_wait("a_s_o1", 20, 268, 8)
    stamp("Abuilt")
    steps = [(k, q, es) for k in range(4) for q in range(4) for es in range(2)]
    def frd(i):
        k, q, es = steps[i]; b = CF + 8*(i & 3); o = (6 - 2*q + es) * 8
        if q == 0 and es == 0 and k: a("v_subrev_u32 v17, 512, v17\nv_subrev_u32 v18, 512, v18")
        a(f"""ds_read2_b32 {vr(b,2)}, v17 offset0:{o} offset1:{o+1}
        ds_read2_b32 {vr(b+2,2)}, v17 offset0:{o+2} offset1:{o+3}
        ds_read2_b32 {vr(b+4,2)}, v18 offset0:{o} offset1:{o+1}
        ds_read2_b32 {vr(b+6,2)}, v18 offset0:{o+2} offset1:{o+3}""")
    for i in range(3): frd(i)
    for i, (k, q, es) in enumerate(steps):
        b = CF + 8*(i & 3); U0 = vr(CU+8*q+4*es, 4); U1 = vr(CU+32+8*q+4*es, 4)
        lo = vr(CA+4*k, 16); hi = vr(CA+16+4*k, 16)
        w = f"s_waitcnt lgkmcnt({4*min(2, 31-i)})"
        a(w)
        if q == 0 and es == 0 and k: a("s_nop 9")
        a(f"v_mfma_f32_32x32x16_bf16 {lo}, {U0}, {vr(b,4)}, {lo}")
        a(f"v_mfma_f32_32x32x16_bf16 {hi}, {U1}, {vr(b,4)}, {hi}")
        if i + 3 < 32: frd(i+3)
        a(f"v_mfma_f32_32x32x16_bf16 {hi}, {U0}, {vr(b+4,4)}, {hi}")
    stamp("Aconv")
    a(f"""
    ds_write_b32 v22, v19 offset:260
    s_lshl_b32 s46, s41, 12
    s_add_u32 s46, s46, s42
    v_lshl_add_u32 v16, v0, 4, s46
    s_lshl_b32 s46, s41, 13
    s_sub_u32 s46, 4096, s46
    v_add_u32 v17, s46, v16              ; partner's
    v_lshlrev_b32 v18, 4, v0
    s_lshl_b32 s44, s40, 12
    s_lshl_b32 s45, s41, 11
    s_add_u32 s44, s44, s45
    s_add_u32 s44, s44, {WS_Y}
    s_lshl_b32 s59, s40, 1
    s_add_u32 s59, s59, s41
    s_mul_i32 s59, s59, {FS}
    s_add_u32 s59, s59, {FL_Y}
    """)
    lds_wait("a_s_y1", 20, 260, 12)
    a("s_cmp_eq_u32 s41, 0\ns_cbranch_scc1 a_s_y0")
    for i in range(4): a(f"ds_write_b128 v16, {vr(CA+4*i,4)} offset:{1024*i}")
    a("ds_write_b32 v22, v19 offset:264\ns_waitcnt lgkmcnt(0)")
    for i in range(16): a(f"v_mov_b32 v{CA+i}, v{CA+16+i}")
    a("s_branch a_s_y2\na_s_y0:")
    for i in range(4): a(f"ds_write_b128 v16, {vr(CA+16+4*i,4)} offset:{1024*i}")
    a("ds_write_b32 v22, v19 offset:264\na_s_y2:")
    lds_wait("a_s_y3", 20, 264, 12)
    for i in range(4): a(f"ds_read_b128 {vr(CU+4*i,4)}, v17 offset:{1024*i}")
    a("s_waitcnt lgkmcnt(0)")
    for i in range(16): a(f"v_add_f32 v{CA+i}, v{CA+i}, v{CU+i}")
    for i in range(8): a(f"v_cvt_pk_bf16_f32 v{CF+i}, v{CA+2*i}, v{CA+2*i+1}")
    for g in range(2): a(f"buffer_store_dwordx4 {vr(CF+4*g,4)}, v18, s[36:39], s44 offen offset:{1024*g} sc1")
    stamp("Aend")
    a("s_mov_b32 s62, s59\ns_branch a_end1")
    a(f"""a_end:
    s_mov_b32 s62, 0
    a_end1:
    v_mov_b32 v116, v0
    s_lshl_b32 s44, s3, 2
    s_add_u32 s44, s44, {L_FL}
    v_mov_b32 v4, s44
    v_mov_b32 v5, 0
    ds_write_b32 v4, v5 offset:400""")

S = [0, 16]; O = 32; NEG = 48; P = 64; KF = [72, 76]; TF = [80, 84]; VF = [88, 96]; Q = 104; QL = 108; QH = 110
vK, vT, vV = 112, 113, 114
def rdK(buf, t): a(f"ds_read_b128 {vr(KF[buf],4)}, v{vK} offset:{1024*t}")
def rdT(buf, q): a(f"ds_read2st64_b64 {vr(TF[buf],4)}, v{vT} offset0:{2*q} offset1:{2*q+1}")
def rdV(buf, t):
    a(f"""s_mov_b64 exec, s[18:19]
    ds_read_b128 {vr(VF[buf],4)}, v{vV} offset:{t*1152}
    ds_read_b128 {vr(VF[buf]+4,4)}, v{vV} offset:{t*1152+576}
    s_mov_b64 exec, -1""")
def qk_tail(t, tb):
    tt = t & 3
    a(f"v_mfma_f32_32x32x8_bf16 {vr(S[t&1],16)}, {vr(TF[tb]+2*(tt>>1),2)}, {vr(QH if tt&1 else QL,2)}, {vr(S[t&1],16)}")
def pv(t, half): a(f"v_mfma_f32_32x32x16_bf16 {vr(O,16)}, {vr(VF[t&1]+4*half,4)}, {vr(P+4*half,4)}, {vr(O,16)}")
def ex(t, r0, r1):
    for r in range(r0, r1): a(f"v_exp_f32 v{S[t&1]+r}, v{S[t&1]+r}")
def cv(t, c0, c1):
    for c in range(c0, c1): a(f"v_cvt_pk_bf16_f32 v{P+c}, v{S[t&1]+2*c}, v{S[t&1]+2*c+1}")
LATER = []
def att_run():
    tag = "b_f"
    def qk_main(t): a(f"v_mfma_f32_32x32x16_bf16 {vr(S[t&1],16)}, {vr(KF[t&1],4)}, {vr(Q,4)}, 0")
    rdK(0, 0); rdT(0, 0); rdK(1, 1); rdV(0, 0)
    a("s_mov_b32 s26, 0\ns_waitcnt lgkmcnt(3)")
    qk_main(0); qk_tail(0, 0)
    a(f"s_nop 7\ns_nop 3\n.p2align 6\n{tag}_loop:")
    def at(it, t, code):
        a(f"s_cmp_eq_u32 s26, {it}\ns_cbranch_scc1 {tag}_e{it}_{t}\n{tag}_n{it}_{t}:")
        def h():
            a(f"{tag}_e{it}_{t}:"); code(); a(f"s_branch {tag}_n{it}_{t}")
        LATER.append(h)
    def bar1():
        a("s_cmp_eq_u32 s62, 0\ns_cbranch_scc1 b_nyf\ns_waitcnt vmcnt(0)")
        flag_set("s62", 122)
        a("b_nyf:\ns_barrier\ns_setprio 3")
    def chk1():
        a(f"""v_mov_b32 v121, {L_FL}
        {tag}_f1:
        ds_read_b96 v[124:126], v121 offset:464
        s_waitcnt lgkmcnt(0)
        v_or3_b32 v124, v124, v125, v126
        v_cmp_eq_u32 vcc, 0, v124
        s_cbranch_vccz {tag}_f1""")
    def half():
        a(f"""s_lshl_b32 s27, s3, 2
        s_add_u32 s27, s27, {L_KT}
        v_mov_b32 v121, s27
        v_mov_b32 v122, s92
        ds_write_b32 v121, v122
        s_setprio 1""")
    EV = {(1,2): lambda: a("s_setprio 2"), (1,4): bar1, (0,5): chk1, (5,0): lambda: a("s_setprio 2"), (6,1): half, (7,5): lambda: a("s_setprio 0")}
    for t in range(8):
        for (it, tt), code in EV.items():
            if tt == t: at(it, t, code)
        def adv():
            if t == 7:
                a(f"""v_add_u32 v{vK}, 8192, v{vK}
                v_add_u32 v{vT}, 2048, v{vT}
                v_add_u32 v{vV}, 9216, v{vV}
                s_add_u32 s26, s26, 1
                s_cmp_lt_u32 s26, 8""")
        def rK():
            rdK(t&1, t+2)
            if (t & 3) == 1: rdT(((t>>2)+1)&1, (t>>2)+1)
        M1 = lambda: qk_main(t+1); M2 = lambda: pv(t-1, 1); M3 = lambda: qk_tail(t+1, ((t+1)>>2)&1); M4 = lambda: pv(t, 0)
        rV = lambda: rdV((t+1)&1, t+1)
        E = lambda i, j: ex(t, i, j); C = lambda i, j: cv(t, i, j)
        a("s_waitcnt lgkmcnt(0)")
        o = OPT.get("ord", "a")
        if o == "a":
            M1(); rK(); E(0,4); M2(); rV(); E(4,8); C(0,4); M3(); E(8,12); M4(); adv(); E(12,16); C(4,8)
        elif o == "b":
            M1(); rK(); M2(); rV(); E(0,8); C(0,4); M3(); E(8,9); M4(); adv(); E(9,16); C(4,8)
        elif o == "c":
            M1(); rK(); E(0,5); M2(); rV(); E(5,8); C(0,4); M3(); E(8,13); M4(); adv(); E(13,16); C(4,8)
        elif o == "d":
            M1(); rK(); E(0,4); C(0,1); M2(); rV(); E(4,8); C(1,3); M3(); E(8,12); C(3,5); E(12,13); M4(); adv(); E(13,16); C(5,8)
        elif o == "e":
            M1(); rK(); M2(); rV(); M3(); E(0,8); C(0,4); E(8,10); M4(); adv(); E(10,16); C(4,8)
        elif o == "f":
            M1(); E(0,2); rK(); E(2,4); M2(); E(4,6); rV(); E(6,8); C(0,4); M3(); E(8,12); M4(); adv(); E(12,16); C(4,8)
    a(f"s_cbranch_scc1 {tag}_loop")
    stamp("Bloop")
    a("s_nop 1")
    pv(7, 1)

def phaseB():
    TOUCH = "" if OPT.get("tch", "0") == "0" else f"""s_cmp_lg_u32 s3, 10
    s_cbranch_scc1 b_ntch
    v_lshlrev_b32 v121, 16, v116
    s_mov_b32 s12, {WS_O}
    buffer_load_dword v114, v121, s[36:39], s12 offen
    s_mov_b32 s12, {WS_FL}
    buffer_load_dword v113, v121, s[36:39], s12 offen
    buffer_load_dword v112, v121, s[32:35], 0 offen
    s_mov_b32 s12, {64 << 16}
    buffer_load_dword v111, v121, s[32:35], s12 offen
    b_ntch:"""
    a(f"""
    s_cmp_ge_u32 s3, 8
    s_cbranch_scc1 b_aux
    s_and_b32 s4, s2, 31                 ; head
    s_lshr_b32 s5, s2, 5
    s_lshl_b32 s5, s5, 3
    s_add_u32 s5, s5, s3
    s_and_b32 s7, s4, 3
    v_lshlrev_b32 v{vK}, 4, v116
    v_and_b32 v117, 31, v116
    v_lshlrev_b32 v119, 4, v116
    s_lshl_b32 s8, s3, 10
    s_add_u32 s8, s8, {L_Q}
    v_add_u32 v120, s8, v{vK}
    s_lshl_b32 s8, s3, 8
    s_add_u32 s8, s8, {L_Q + 8192}
    v_lshl_add_u32 v118, v117, 3, s8
    """)
    for i in range(16): a(f"v_mov_b32 v{O+i}, 0")
    for i in range(4): a(f"v_mov_b32 v{P+4+i}, 0")
    a(f"""v_and_b32 v121, 27, v116
    v_cmp_eq_u32 vcc, 18, v121
    v_mov_b32 v121, 0x3f803f80
    s_nop 0
    v_cndmask_b32 v{VF[0]}, 0, v121, vcc""")
    for i in range(1, 16): a(f"v_mov_b32 v{VF[0]+i}, v{VF[0]}")
    a(f"""
    v_lshlrev_b32 v{vT}, 3, v116
    v_add_u32 v{vT}, {L_KT}, v{vT}
    v_lshrrev_b32 v121, 5, v116
    v_mul_u32_u24 v121, 288, v121
    v_lshl_add_u32 v{vV}, v117, 4, v121
    v_add_u32 v{vV}, {L_V}, v{vV}
    s_mov_b32 s18, 0x3ffff
    s_mov_b32 s19, 0x3ffff
    s_mov_b32 s21, {f2u(18**-0.5 * 1.4426950408889634):#x}
    v_cmp_lt_u32 s[22:23], 31, v116
    s_setprio 3
    """)
    stamp("Bflag")
    a(f"""
    s_barrier
    ds_read_b128 {vr(Q,4)}, v120
    ds_read_b64 {vr(QL,2)}, v118
    s_waitcnt lgkmcnt(0)
    s_barrier
    """)
    for r in list(range(Q, Q+4)) + [QL, QL+1]:
        a(f"""v_lshlrev_b32 v121, 16, v{r}
        v_and_b32 v{r}, 0xffff0000, v{r}
        v_mul_f32 v121, s21, v121
        v_mul_f32 v{r}, s21, v{r}
        v_cvt_pk_bf16_f32 v{r}, v121, v{r}""")
    a(f"""
    s_cmp_eq_u32 s7, 1
    s_cselect_b32 vcc_lo, -1, 0
    s_mov_b32 vcc_hi, 0
    v_cndmask_b32 v{Q}, v{Q}, 0, vcc
    s_cmp_eq_u32 s7, 2
    s_cselect_b32 vcc_hi, -1, 0
    s_mov_b32 vcc_lo, 0
    v_cndmask_b32 v{Q+3}, v{Q+3}, 0, vcc
    s_cmp_eq_u32 s7, 3
    s_cselect_b64 vcc, -1, 0
    v_cndmask_b32 v{QL}, v{QL}, 0, vcc
    s_cmp_eq_u32 s7, 0
    s_cselect_b64 vcc, -1, 0
    v_cndmask_b32 v{QL+1}, v{QL+1}, 0, vcc
    v_cndmask_b32 v{QH}, 0, v{QL}, s[22:23]
    v_cndmask_b32 v{QH+1}, 0, v{QL+1}, s[22:23]
    v_cndmask_b32 v{QL}, v{QL}, 0, s[22:23]
    v_cndmask_b32 v{QL+1}, v{QL+1}, 0, s[22:23]
    """)
    stamp("Bgo")
    att_run()
    a(f"""
    s_mul_i32 s10, s5, {O_T}
    s_add_u32 s10, s10, {WS_O}
    s_lshl_b32 s11, s4, 10
    s_add_u32 s11, s11, s10
    s_lshl_b32 s12, s4, 7
    s_add_u32 s12, s12, s10
    s_add_u32 s12, s12, 32768
    s_lshl_b32 s59, s5, 5
    s_add_u32 s59, s59, s4
    s_mul_i32 s59, s59, {FS}
    s_add_u32 s59, s59, {FL_B}
    s_mov_b32 s27, {f2u(2.0**100):#x}
    v_lshlrev_b32 v127, 2, v116
    s_nop 1
    v_add_f32 v122, abs(v{O}), abs(v{O+1})
    v_add_f32 v123, abs(v{O+2}), abs(v{O+3})
    v_add_f32 v124, abs(v{O+4}), abs(v{O+5})
    v_add_f32 v125, abs(v{O+6}), abs(v{O+7})
    v_add_f32 v126, abs(v{O+8}), abs(v{O+9})
    v_add_f32 v122, v122, v123
    v_add_f32 v124, v124, v125
    v_add_f32 v126, v126, v{O+10}
    v_add_f32 v122, v122, v124
    v_add_f32 v122, v122, v126
    v_cmp_nle_f32 s[28:29], 1.0, v{O+10}
    v_cmp_ngt_f32 vcc, s27, v122
    s_or_b64 vcc, vcc, s[28:29]
    s_cbranch_vccnz b_slow
    b_fin:
    v_rcp_f32 v121, v{O+10}
    s_nop 0
    """)
    for r in range(10): a(f"v_mul_f32 v{O+r}, v{O+r}, v121")
    for c in range(5): a(f"v_cvt_pk_bf16_f32 v{P+c}, v{O+2*c}, v{O+2*c+1}")
    a(f"""
    buffer_store_dwordx4 {vr(P,4)}, v119, s[36:39], s11 offen sc1
    s_mov_b32 exec_hi, 0
    buffer_store_dword v{P+4}, v127, s[36:39], s12 offen sc1
    s_mov_b32 exec_hi, -1
    v_mov_b32 v0, v116
    s_branch c_start
    """)
    for h in LATER: h()
    a(f"""
    b_aux:
    s_and_b32 s4, s2, 31
    s_mul_i32 s6, s4, 9
    s_lshr_b32 s6, s6, 2
    v_mov_b32 v8, {L_FL}
    s_setprio 3
    s_cmp_lg_u32 s3, 11
    s_cbranch_scc1 b_nopoll
    s_mul_i32 s9, s4, 18
    v_lshrrev_b32 v7, 5, v116
    v_lshl_add_u32 v9, v7, 1, s6
    v_add_u32 v10, 72, v9
    v_lshrrev_b32 v10, 3, v10
    v_and_b32 v11, 31, v116
    v_lshl_add_u32 v10, v10, 5, v11
    v_mul_u32_u24 v120, {FS}, v10
    v_mul_u32_u24 v10, 17, v7
    v_add_u32 v10, s9, v10
    v_add_u32 v10, 1152, v10
    v_lshrrev_b32 v10, 6, v10
    v_lshl_add_u32 v10, v10, 5, v11
    v_mul_u32_u24 v121, {FS}, v10
    v_lshrrev_b32 v10, 3, v9
    s_lshr_b32 s9, s2, 5
    s_lshl_b32 s9, s9, 2
    v_and_b32 v11, 3, v116
    v_add_u32 v11, s9, v11
    v_lshl_add_u32 v10, v10, 5, v11
    v_mul_u32_u24 v122, {FS}, v10
    s_cmp_ge_u32 s2, 224
    s_cselect_b32 s9, 16, 0
    v_add_u32 v9, s9, v8
    b_pw:
    s_sleep 1
    ds_read_b128 v[12:15], v9 offset:416
    s_waitcnt lgkmcnt(0)
    v_or_b32 v12, v12, v13
    v_or3_b32 v12, v12, v14, v15
    v_cmp_eq_u32 vcc, 0, v12
    s_cbranch_vccz b_pw
    """)
    if OPT.get("spw", "1") == "1":
        a("s_cmp_lt_u32 s2, 224\ns_cbranch_scc1 b_pw2_x")
        lds_wait("b_pw2", 8, 400, 12, True)
        a("b_pw2_x:")
    stamp("Xpw")
    flag_poll("b_pa", 3, 120)
    stamp("Xpoll")
    a(f"""
    v_mov_b32 v9, 0
    ds_write_b32 v8, v9 offset:244
    b_nopoll:
    s_bitcmp1_b32 s3, 0
    s_cbranch_scc1 b_ldv
    s_bfe_u32 s7, s4, 0x10001
    s_add_u32 s8, s6, s7
    s_lshl_b32 s8, s8, 9
    s_lshl_b32 s9, s6, 9
    s_mul_i32 s10, s7, {1024 - 8}
    s_sub_u32 s9, s9, s10
    s_add_u32 s9, s9, 1024
    v_lshlrev_b32 v118, 4, v116
    v_lshrrev_b32 v119, 1, v116
    v_lshlrev_b32 v119, 4, v119
    v_and_b32 v120, 1, v116
    v_lshl_add_u32 v119, v120, 2, v119
    s_lshr_b32 s15, s2, 5
    s_mul_i32 s15, s15, {8*QK_T}
    s_cmp_eq_u32 s3, 10
    s_cbranch_scc1 b_ldt
    """)
    def zflag(off):
        a(f"""s_mov_b32 s13, m0
        s_mov_b32 m0, {L_FL + off}
        v_mov_b32 v13, 0x7ffffff0
        s_mov_b64 exec, 1
        buffer_load_dword v13, s[36:39], 0 offen lds
        s_mov_b64 exec, -1
        s_mov_b32 m0, s13""")
    def stream(tag, op, vreg, sbase, lq, lk, step, fl):
        a(f"s_add_u32 s15, s15, {sbase}\ns_add_u32 s16, {sbase}, {72*512}\ns_mov_b32 m0, {lq}\ns_mov_b32 s12, 8")
        lds_wait(f"{tag}_go", 8, 244, 9, True)
        def loop(t, sreg):
            a(f"""{t}:
            {op} v{vreg}, s[36:39], {sreg} offen sc1 lds
            s_add_u32 m0, m0, {step}
            s_add_u32 {sreg}, {sreg}, {QK_T}
            s_sub_u32 s12, s12, 1
            s_cmp_lg_u32 s12, 0
            s_cbranch_scc1 {t}""")
        loop(f"{tag}_q", "s15")
        a(f"s_mov_b32 m0, {lk}\ns_mov_b32 s12, 8")
        loop(f"{tag}_1", "s16")
        stamp("Xiss")
        a("s_mov_b32 s12, 8\ns_waitcnt vmcnt(0)")
        stamp("Xland")
        a("s_barrier\ns_barrier")
        loop(f"{tag}_2", "s16")
        zflag(fl)
        a("s_mov_b32 s12, 48")
        loop(f"{tag}_3", "s16")
        a("s_branch b_lend")
    stream("b_k", "buffer_load_dwordx4", 118, "s8", L_Q, 0, 1024, 464)
    a("b_ldt:")
    stream("b_t", "buffer_load_dword", 119, "s9", L_Q + 8192, L_KT, 256, 468)
    a(f"""
    b_ldv:
    s_mov_b32 s10, {9216 - 288}
    """)
    for p in range(9):
        a(f"""v_add_u32 v10, {64*p}, v116
        v_mul_u32_u24 v11, 3641, v10
        v_lshrrev_b32 v11, 16, v11
        v_mul_lo_u32 v11, v11, s10
        v_lshl_add_u32 v{24+p}, v10, 4, v11""")
    a(f"""
    s_bfe_u32 s9, s3, 0x10001
    s_mul_i32 s8, s9, {32*9216}
    s_mul_i32 s10, s4, 288
    s_add_u32 s8, s8, s10
    s_add_u32 s8, s8, {WS_V}
    s_mul_i32 s9, s9, 9216
    s_add_u32 m0, s9, {L_V}
    s_mov_b32 s12, 0
    """)
    a("s_cmp_eq_u32 s3, 9\ns_cbranch_scc1 b_v_go\ns_barrier\ns_barrier\ns_branch b_v")
    lds_wait("b_v_go", 8, 244, 9, True)
    a("b_v:")
    for p in range(9): a(f"buffer_load_dwordx4 v{24+p}, s[36:39], s8 offen sc1 lds\ns_add_u32 m0, m0, {1024 if p < 8 else 1024 + 9216}\ns_nop 0")
    a(f"""
    s_add_u32 s8, s8, {64*9216}
    s_cmp_lg_u32 s12, 0
    s_cbranch_scc1 b_v1
    s_cmp_eq_u32 s3, 9
    s_cbranch_scc1 b_v0
    """)
    zflag(472)
    a(f"""
    s_branch b_v1
    b_v0:
    s_waitcnt vmcnt(0)
    s_barrier
    s_barrier
    b_v1:
    s_add_u32 s12, s12, 1
    s_cmp_lt_u32 s12, 4
    s_cbranch_scc1 b_v
    b_lend:
    s_waitcnt vmcnt(0)
    s_barrier
    s_setprio {OPT.get("aprio", 0)}
    """)
    srd(28, 94, 663552)
    srd(32, 96, 4718592)
    a(f"""
    s_lshr_b32 s12, s2, 3
    s_lshl_b32 s12, s12, 2
    s_add_u32 s12, s12, s3
    s_sub_u32 s12, s12, 8
    s_lshl_b32 s12, s12, 13
    v_lshlrev_b32 v121, 7, v116
    buffer_load_dword v115, v121, s[28:31], s12 offen
    {TOUCH}
    s_cmp_lg_u32 s3, {99 if ("nossm" in OPT or "noconv" in OPT) else 9}
    s_cbranch_scc1 b_noy
    s_mov_b32 s4, s2
    v_lshrrev_b32 v10, 3, v116
    v_and_b32 v9, 7, v116
    v_lshlrev_b32 v11, 12, v10
    v_lshl_add_u32 v11, v9, 4, v11
    v_xor_b32 v12, v10, v9
    v_lshlrev_b32 v12, 4, v12
    v_lshl_add_u32 v12, v9, 10, v12
    v_add_u32 v12, {L_BOUNCE}, v12
    s_mov_b32 s50, 0x05040100
    s_mov_b32 s51, 0x07060302
    """)
    for p in range(8): a(f"v_xor_b32 v{24+p}, {16*p}, v11")
    a(f"""
    b_y:
    s_lshr_b32 s5, s4, 5
    s_and_b32 s6, s4, 31                 ; sub
    s_lshl_b32 s7, s5, 7
    s_lshr_b32 s8, s6, 4
    s_add_u32 s7, s7, s8
    v_lshl_add_u32 v120, v116, 1, s7
    v_mul_u32_u24 v120, {FS}, v120
    v_add_u32 v120, {FL_Y}, v120
    """)
    flag_poll("b_py", 1, 120)
    a(f"""
    s_lshl_b32 s7, s5, 18
    s_lshl_b32 s8, s6, 7
    s_add_u32 s7, s7, s8
    s_add_u32 s7, s7, {WS_Y}
    s_mov_b32 m0, {L_BOUNCE}
    """)
    for p in range(8):
        a(f"s_nop 0\nbuffer_load_dwordx4 v{24+p}, s[36:39], s7 offen sc1 lds\ns_add_u32 m0, m0, 1024\ns_add_u32 s7, s7, 32768")
    a(f"""
    s_and_b32 s8, s6, 3
    s_lshl_b32 s8, s8, 3
    s_bfe_u32 s9, s6, 0x10002
    s_lshl_b32 s9, s9, 7
    s_add_u32 s8, s8, s9
    s_lshr_b32 s9, s6, 3
    s_lshl_b32 s9, s9, 9
    s_add_u32 s8, s8, s9
    v_add_u32 v17, s8, v10
    v_mul_u32_u24 v17, 2304, v17
    v_lshl_add_u32 v17, v9, 4, v17
    s_lshl_b32 s8, s5, 7
    s_add_u32 s8, s8, 1152
    s_waitcnt vmcnt(0)
    """)
    for j in range(8): a(f"ds_read_b128 {vr(32+4*j,4)}, v12 offset:{j*128}")
    a("s_waitcnt lgkmcnt(0)")
    transpose8(32, 64, 50, 51)
    for c in range(8):
        a(f"s_add_u32 s9, s8, {((c&3)*32 + (c>>2)*256)*2304}\nbuffer_store_dwordx4 {vr(64+4*c,4)}, v17, s[32:35], s9 offen {OPT.get('sty','sc1')}")
    a(f"""
    s_add_u32 s4, s4, 256
    s_cmp_lt_u32 s4, 288
    s_cbranch_scc1 b_y
    b_noy:
    s_setprio 0
    v_mov_b32 v0, v116
    s_lshr_b32 s5, s2, 5                 ; tn
    s_mul_i32 s17, s5, 192
    """)
    for t in range(3):
        a(f"""v_add_u32 v5, {64*t}, v0
        v_mul_u32_u24 v6, 5462, v5
        v_lshrrev_b32 v6, 16, v6             ; row
        v_mul_u32_u24 v7, 12, v6
        v_sub_u32 v7, v5, v7
        v_lshl_add_u32 v7, v7, 4, s17
        v_mul_u32_u24 v8, 1152, v6
        v_add_u32 v{12+t}, v8, v7
        v_and_b32 v9, 4, v6
        v_lshrrev_b32 v10, 3, v6
        v_lshl_add_u32 v9, v10, 1, v9
        v_bfe_u32 v10, v6, 1, 1
        v_add_u32 v9, v9, v10
        v_mul_u32_u24 v9, 18, v9
        v_and_b32 v10, 1, v6
        v_add3_u32 v9, v9, v10, 16
        v_mul_u32_u24 v9, 1152, v9
        v_add_u32 v{16+t}, v9, v7""")
    a(f"""
    s_sub_u32 s8, s3, 8
    s_mul_i32 s10, s8, {9*20736}
    s_mul_i32 s11, s8, {9*3072}
    s_add_u32 s12, s11, {L_V - 18*3072}
    s_cmp_ge_u32 s8, 2
    s_cselect_b32 m0, s12, s11
    s_mov_b32 s12, 20736
    s_mov_b32 s13, 0
    s_cmp_ge_u32 s2, 192
    s_cbranch_scc1 b_wend
    v_and_b32 v9, 7, v0
    v_lshlrev_b32 v9, 2, v9
    v_add_u32 v9, {L_KT}, v9
    s_setprio 3
    b_hw:
    s_sleep 4
    ds_read_b32 v10, v9
    s_waitcnt lgkmcnt(0)
    v_cmp_ne_u32 vcc, s92, v10
    s_cbranch_vccnz b_hw
    b_w:
    s_lshl_b32 s11, s8, 4
    s_add_u32 s11, s11, s13
    s_cmp_eq_u32 s11, {16 + 7}
    s_cselect_b32 m0, {L_KT + 6144}, m0
    s_cmp_lg_u32 s11, {48 + 5}
    s_cbranch_scc1 b_w1
    v_mov_b32 v12, v16
    v_mov_b32 v13, v17
    v_mov_b32 v14, v18
    s_mov_b32 s10, 0
    s_mov_b32 s12, {8*20736}
    b_w1:
    buffer_load_dwordx4 v12, s[28:31], s10 offen lds
    s_add_u32 m0, m0, 1024
    s_add_u32 s13, s13, 1
    buffer_load_dwordx4 v13, s[28:31], s10 offen lds
    s_add_u32 m0, m0, 1024
    s_nop 0
    buffer_load_dwordx4 v14, s[28:31], s10 offen lds
    s_add_u32 m0, m0, 1024
    s_add_u32 s10, s10, s12
    s_cmp_lt_u32 s13, 9
    s_cbranch_scc1 b_w
    b_wend:
    s_setprio 0
    s_mov_b32 s59, 0
    s_waitcnt vmcnt(0)
    """)

def phaseC():
    a("c_start:")
    srd(32, 96, 4718592)
    a(f"""
    s_and_b32 s4, s2, 7
    s_bfe_u32 s6, s2, 0x20003
    s_lshl_b32 s7, s4, 2
    s_add_u32 s7, s7, s6                 ; tm
    s_lshr_b32 s5, s2, 5                 ; tn
    s_mul_i32 s8, s3, 43
    s_lshr_b32 s8, s8, 7                 ; w/3
    s_mul_i32 s9, s8, 3
    s_sub_u32 s9, s3, s9                 ; tb = w%3
    s_lshr_b32 s13, s8, 1                ; kh
    s_and_b32 s14, s8, 1                 ; ta
    v_lshrrev_b32 v5, 5, v0
    v_bfe_u32 v6, v0, 2, 2
    v_lshl_add_u32 v6, v5, 2, v6
    v_mul_u32_u24 v4, 192, v6
    v_bfe_u32 v6, v0, 4, 1
    v_lshl_add_u32 v4, v6, 5, v4
    v_and_b32 v6, 3, v0
    v_lshl_add_u32 v4, v6, 3, v4
    s_lshl_b32 s17, s9, 6
    s_mul_i32 s18, s13, {L_V}
    s_add_u32 s17, s17, s18
    v_add_u32 v4, s17, v4
    s_mul_i32 s18, s13, {L_KT + 6144 - 16*3072}
    s_sub_u32 s18, {L_KT + 6144 - 16*3072}, s18
    v_add_u32 v9, s18, v4
    s_mul_i32 s18, s7, {64*FS}
    s_add_u32 s18, s18, {FL_B}
    v_mul_u32_u24 v120, {FS}, v0
    v_add_u32 v120, s18, v120
    s_cmp_eq_u32 s59, 0
    s_cbranch_scc1 c_nf
    s_waitcnt vmcnt(0)
    """)
    stamp("Back")
    flag_set("s59", 2)
    a("c_nf:\ns_cmp_ge_u32 s2, 192\ns_cbranch_scc1 c_idle\ns_waitcnt lgkmcnt(0)\ns_barrier")
    stamp("Bbar")
    a("s_cmp_lg_u32 s3, 8\ns_cbranch_scc1 c_ni")
    poll_issue(1, 120)
    a("c_ni:")
    for k in range(18):
        va = 4 if k < 16 else 9
        a(f"ds_read_b64_tr_b16 {vr(128+4*k if k < 9 else 32+4*(k-9),2)}, v{va} offset:{k*3072}\nds_read_b64_tr_b16 {vr(130+4*k if k < 9 else 34+4*(k-9),2)}, v{va} offset:{k*3072+8*192}")
        if k % 4 == 3: a("s_waitcnt lgkmcnt(6)")
    a(f"""
    v_lshlrev_b32 v2, 4, v0
    s_mul_i32 s17, s8, {18*1024}
    v_add_u32 v3, s17, v2
    v_and_b32 v11, 31, v0
    v_lshlrev_b32 v11, 2, v11
    v_lshl_add_u32 v11, v5, 9, v11
    v_add_u32 v11, s17, v11
    v_add_u32 v11, {14*1024}, v11
    s_lshl_b32 s15, s7, 1
    s_add_u32 s15, s15, s14
    s_mul_i32 s16, s15, {O_T}
    s_mul_i32 s18, s13, {18*1024}
    s_add_u32 s16, s16, s18
    s_lshl_b32 s18, s9, 10
    s_add_u32 s16, s16, s18
    s_add_u32 s16, s16, {WS_O}
    s_add_u32 m0, s17, s18
    s_cmp_lg_u32 s3, 8
    s_cbranch_scc1 c_np
    """)
    flag_poll("c_pb", 1, 120, issued=True)
    a("c_np:\ns_waitcnt lgkmcnt(0)\ns_barrier")
    stamp("Cflag")
    for i in range(6):
        a("buffer_load_dwordx4 v2, s[36:39], s16 offen sc1 lds")
        if i < 5: a("s_add_u32 m0, m0, 3072\ns_add_u32 s16, s16, 3072")
    a(f"""
    v_and_b32 v6, 19, v0
    v_bfe_u32 v7, v0, 2, 1
    v_lshl_add_u32 v6, v7, 3, v6
    v_bfe_u32 v7, v0, 3, 1
    v_lshl_add_u32 v6, v7, 2, v6         ; token inside the tile
    v_mul_u32_u24 v6, 400, v6
    v_lshl_add_u32 v6, v5, 4, v6
    s_mul_i32 s18, s8, {32*400}
    s_lshl_b32 s19, s9, 7
    s_add_u32 s18, s18, s19
    s_add_u32 s18, s18, 81920
    v_add_u32 v6, s18, v6
    s_lshl_b32 s18, s3, 6
    v_add_u32 v7, s18, v0
    v_mul_u32_u24 v8, 5462, v7
    v_lshrrev_b32 v8, 16, v8             ; row
    v_mul_u32_u24 v10, 12, v8
    v_sub_u32 v10, v7, v10
    v_mul_u32_u24 v7, 400, v8
    v_lshl_add_u32 v7, v10, 5, v7
    v_add_u32 v7, 81920, v7
    v_mul_u32_u24 v5, 2304, v8
    v_lshl_add_u32 v5, v10, 4, v5
    s_mul_i32 s17, s7, {64*2304}
    s_mul_i32 s18, s5, 192
    s_add_u32 s17, s17, s18
    """)
    wf = lambda k: vr(128+4*k if k < 9 else 32+4*(k-9), 4)
    NC = int(OPT.get("nc", 3)); CK = 18 // NC
    for c in range(NC):
        a(f"s_waitcnt vmcnt({6 - (c+1)*CK//3})\ns_barrier")
        if c == 0: stamp("Cfirst")
        ks = list(range(c*CK, (c+1)*CK))
        reg = lambda k: 72 + 4*(k % 6)
        plain = [k for k in ks if k < 14]; tail = [k for k in ks if k >= 14]
        for k in plain: a(f"ds_read_b128 {vr(reg(k),4)}, v3 offset:{k*1024}")
        if tail:
            a(f"s_cmp_eq_u32 s13, 1\ns_cbranch_scc1 c_tl{c}")
            for k in tail: a(f"ds_read_b128 {vr(reg(k),4)}, v3 offset:{k*1024}")
            a(f"s_branch c_tm{c}\nc_tl{c}:")
            for k in tail:
                a(f"""ds_read2_b32 {vr(reg(k),2)}, v11 offset0:0 offset1:32
                ds_read2_b32 {vr(reg(k)+2,2)}, v11 offset0:64 offset1:96
                v_add_u32 v11, 1024, v11""")
            a(f"s_waitcnt lgkmcnt(0)\nc_tm{c}:")
        for i, k in enumerate(ks):
            a(f"s_waitcnt lgkmcnt({CK-1-i})")
            a(f"v_mfma_f32_32x32x16_bf16 v[16:31], {wf(k)}, {vr(reg(k),4)}, " + ("0" if k == 0 else "v[16:31]"))
    stamp("Cmfma")
    a("s_nop 11")
    for rq in range(4): a(f"ds_write_b128 v6, {vr(16+4*rq,4)} offset:{32*rq}")
    a("s_waitcnt lgkmcnt(0)\ns_barrier")
    stamp("Cx")
    a(f"""ds_read_b128 v[32:35], v7
    ds_read_b128 v[36:39], v7 offset:16
    ds_read_b128 v[40:43], v7 offset:{64*400}
    ds_read_b128 v[44:47], v7 offset:{64*400+16}
    s_waitcnt lgkmcnt(0)""")
    for r in range(8): a(f"v_add_f32 v{32+r}, v{32+r}, v{40+r}")
    for c in range(4): a(f"v_cvt_pk_bf16_f32 v{48+c}, v{32+2*c}, v{32+2*c+1}")
    stamp("Ccvt")
    a(f"buffer_store_dwordx4 v[48:51], v5, s[32:35], s17 offen {OPT.get('sto','')}")
    stamp("Cst")
    a("k_done2:")
    if DIAG and "dmax" in OPT:
        a(f"""s_load_dwordx2 s[80:81], s[0:1], 88
        s_waitcnt vmcnt(0)
        s_memrealtime s[74:75]
        s_waitcnt lgkmcnt(0)
        {"s_mov_b32 s72, s74" if DIAG == "end" else ""}
        s_cmp_eq_u32 s72, 0
        s_cbranch_scc1 dg_n
        dg_d:
        s_sleep 20
        s_memrealtime s[78:79]
        s_waitcnt lgkmcnt(0)
        s_sub_u32 s77, s78, s70
        s_cmp_lt_u32 s77, 4000
        s_cbranch_scc1 dg_d
        s_lshl_b32 s76, s72, 8
        s_or_b32 s76, s76, s2
        s_lshl_b32 s77, s70, 8
        s_not_b32 s77, s77
        v_mov_b32 v2, 0
        v_mov_b32 v3, s76
        v_mov_b32 v4, s77
        s_mov_b64 exec, 1
        global_atomic_umax v2, v3, s[80:81] sc1
        global_atomic_umax v2, v4, s[80:81] offset:128 sc1
        s_mov_b64 exec, -1
        dg_n:
        s_cmp_lg_u32 s2, 0
        s_cbranch_scc1 k_done
        s_cmp_lg_u32 s3, 4
        s_cbranch_scc1 k_done
        dg_w:
        s_memrealtime s[78:79]
        s_waitcnt lgkmcnt(0)
        s_sub_u32 s77, s78, s70
        s_cmp_lt_u32 s77, 14000
        s_cbranch_scc1 dg_w
        v_mov_b32 v2, 0
        global_load_dword v3, v2, s[80:81] sc1
        global_load_dword v4, v2, s[80:81] offset:128 sc1
        s_waitcnt vmcnt(0)
        v_readfirstlane_b32 s76, v3
        v_readfirstlane_b32 s77, v4
        s_nop 3
        s_not_b32 s77, s77
        {"s_and_b32 s76, s76, 255" if OPT["dmax"] == "id" else "s_sub_u32 s76, s76, s77"}
        {"s_mul_i32 s76, s76, 25" if OPT["dmax"] == "id" else "s_lshr_b32 s76, s76, 8"}
        s_min_u32 s76, s76, 10000
        s_lshl_b32 s76, s76, 2
        s_add_u32 s76, s76, 15000
        dg_spin:
        s_memrealtime s[78:79]
        s_waitcnt lgkmcnt(0)
        s_sub_u32 s77, s78, s70
        s_cmp_lt_u32 s77, s76
        s_cbranch_scc1 dg_spin""")
    elif DIAG:
        a(f"""s_cmp_lg_u32 s2, {OPT.get("dwg", 0)}
        s_cbranch_scc1 k_done
        s_cmp_lg_u32 s3, {OPT.get("dw", 4)}
        s_cbranch_scc1 k_done
        s_waitcnt vmcnt(0)
        s_memrealtime s[74:75]
        s_waitcnt lgkmcnt(0)
        {"s_mov_b32 s72, s74" if DIAG == "end" else "s_mov_b32 s72, s70" if DIAG == "none" else ""}
        s_sub_u32 s76, s72, s70
        s_min_u32 s76, s76, 10000
        s_lshl_b32 s76, s76, 2
        s_add_u32 s76, s76, 5000
        dg_spin:
        s_memrealtime s[78:79]
        s_waitcnt lgkmcnt(0)
        s_sub_u32 s77, s78, s70
        s_cmp_lt_u32 s77, s76
        s_cbranch_scc1 dg_spin""")
    stamp_out()
    a(f"""k_done:
    s_endpgm
    c_idle:
    s_cmp_lg_u32 s2, 255
    s_cbranch_scc1 k_done2
    s_cmp_lg_u32 s3, 7
    s_cbranch_scc1 k_done2
    v_lshrrev_b32 v120, 5, v116
    v_lshlrev_b32 v120, 8, v120
    v_and_b32 v121, 31, v116
    v_add_u32 v120, v120, v121
    v_mul_u32_u24 v120, {FS}, v120
    v_add_u32 v120, {FL_B}, v120
    v_add_u32 v121, {512*FS}, v120
    v_add_u32 v122, {1024*FS}, v120
    v_add_u32 v123, {1536*FS}, v120
    """)
    flag_poll("c_pe", 4, 120)
    a(f"s_mov_b32 s6, {FL_E}")
    flag_set("s6", 2)
    a("s_branch k_done2")
    a(f"""
    b_slow:
    s_mul_i32 s6, s4, 9
    s_lshr_b32 s6, s6, 2
    s_bfe_u32 s7, s4, 0x10001
    s_add_u32 s8, s6, s7
    s_lshl_b32 s8, s8, 9
    s_add_u32 s8, s8, {72*512}
    s_lshl_b32 s9, s6, 9
    s_mul_i32 s13, s7, {1024 - 8}
    s_sub_u32 s9, s9, s13
    s_add_u32 s9, s9, {72*512 + 1024}
    s_mul_i32 s13, s4, 288
    s_add_u32 s13, s13, {WS_V}
    v_lshlrev_b32 v118, 4, v117
    v_lshrrev_b32 v120, 5, v116
    v_mul_u32_u24 v120, 9216, v120
    v_add_u32 v120, v120, v118
    v_mov_b32 v121, 0xff800000
    s_waitcnt lgkmcnt(0)
    """)
    def scores(c):
        a(f"""buffer_load_dwordx4 {vr(KF[0],4)}, v119, s[36:39], s14 offen sc1
        buffer_load_dwordx2 {vr(TF[0],2)}, v118, s[36:39], s15 offen sc1
        s_add_u32 s14, s14, {QK_T}
        s_add_u32 s15, s15, {QK_T}
        s_waitcnt vmcnt(0)
        v_mfma_f32_32x32x16_bf16 {vr(S[0],16)}, {vr(KF[0],4)}, {vr(Q,4)}, {c}
        v_mfma_f32_32x32x8_bf16 {vr(S[0],16)}, {vr(TF[0],2)}, {vr(QL,2)}, {vr(S[0],16)}
        s_nop 15""")
    a("s_mov_b32 s14, s8\ns_mov_b32 s15, s9\ns_mov_b32 s26, 0\nb_mx:")
    scores("0")
    for r in range(8): a(f"v_max3_f32 v121, v{S[0]+2*r}, v{S[0]+2*r+1}, v121")
    a(f"""
    s_add_u32 s26, s26, 1
    s_cmp_lt_u32 s26, 64
    s_cbranch_scc1 b_mx
    v_mov_b32 v122, v121
    s_nop 1
    v_permlane32_swap_b32 v121, v122
    s_nop 1
    v_max_f32 v121, v121, v122
    """)
    for i in range(16): a(f"v_sub_f32 v{NEG+i}, 0, v121\nv_mov_b32 v{O+i}, 0")
    a(f"""s_mov_b32 s14, s8
    s_mov_b32 s15, s9
    s_mov_b32 s26, 0
    b_sl:
    s_add_u32 s16, s13, {2*9216}
    s_mov_b64 exec, s[18:19]
    buffer_load_dwordx4 {vr(VF[0],4)}, v120, s[36:39], s13 offen sc1
    buffer_load_dwordx4 {vr(VF[0]+4,4)}, v120, s[36:39], s16 offen sc1
    s_mov_b64 exec, -1
    s_add_u32 s13, s13, {4*9216}""")
    scores(vr(NEG,16))
    ex(0, 0, 16); cv(0, 0, 8)
    a("s_nop 1")
    pv(0, 0); pv(0, 1)
    a("""s_add_u32 s26, s26, 1
    s_cmp_lt_u32 s26, 64
    s_cbranch_scc1 b_sl
    s_nop 15
    s_branch b_fin
    k_last:""")

def main():
    ref = open("concat_heads__mha_block__ssm_conv_s4d__prompt.s.ref").read().split("\n")
    head = [l for l in ref if l.startswith(";") and "@launch" not in l and "Override launch" not in l and "grid=ceil" not in l]
    head += ["; @launch grid=(256,1,1) block=(768,1,1) lds=163840"]
    a(f".text\n.globl {KN}\n.p2align 8\n.type {KN},@function\n{KN}:")
    if INSTR:
        for i in range(70, 90): a(f"s_mov_b32 s{i}, 0")
        a("s_memtime s[70:71]\ns_memrealtime s[86:87]")
    if DIAG: a("s_mov_b32 s72, 0\ns_memrealtime s[70:71]")
    phaseA(); phaseB(); phaseC()
    desc = f""".section .rodata,"a"
.p2align 6
.amdhsa_kernel {KN}
  .amdhsa_next_free_vgpr 168
  .amdhsa_next_free_sgpr 102
  .amdhsa_accum_offset 168
  .amdhsa_group_segment_fixed_size 0
  .amdhsa_kernarg_size 104
  .amdhsa_user_sgpr_count 2
  .amdhsa_user_sgpr_kernarg_segment_ptr 1
  .amdhsa_system_sgpr_workgroup_id_x 1
.end_amdhsa_kernel
"""
    out = "\n".join(head) + "\n.amdgcn_target \"amdgcn-amd-amdhsa--gfx950\"\n" + a.text() + desc
    path = sys.argv[1] if len(sys.argv) > 1 and sys.argv[1].endswith(".s") else "concat_heads__mha_block__ssm_conv_s4d__prompt.s"
    open(path, "w").write(out)
main()
```

```python
import sys, struct
KN = "concat_heads__mha_block__ssm_conv_s4d__prompt_kernel"
def f2u(x): return struct.unpack("<I", struct.pack("<f", x))[0]
INSTR = "instr" in sys.argv
OPT = dict(x.split("=") for x in sys.argv if "=" in x)

WS_QK = 0; QK_T = 73728
WS_V = WS_QK + 64 * QK_T
WS_O = WS_V + 256 * 9216; O_T = 36864
WS_U = WS_O + 64 * O_T
WS_Y = WS_U + 576 * 4096
WS_FL = WS_Y + 576 * 4096
FS = 128
FL_A = 0; FL_S = 864 * FS; FL_Y = FL_S + 288 * FS; FL_B = FL_Y + 1152 * FS; FL_E = FL_B + 2048 * FS
WS_END = WS_FL + FL_E + FS
WS_ST = 24 << 20
L_FL = 155648
KC = 4156
KAREA = 8448
L_KT = 65536; L_V = 81920; L_BOUNCE = 155648; L_Q = 102400

class A:
    def __init__(s): s.l = []
    def __call__(s, t):
        for line in t.strip("\n").split("\n"):
            q = line.strip()
            if not q: continue
            s.l.append(q if q.endswith(":") else "    " + q)
    def text(s): return "\n".join(s.l) + "\n"
a = A()
def vr(b, n): return f"v[{b}:{b+n-1}]"
def srd(d, lo, size):
    a(f"""s_mov_b32 s{d}, s{lo}
    s_mov_b32 s{d+1}, s{lo+1}
    s_mov_b32 s{d+2}, {size}
    s_mov_b32 s{d+3}, 0x20000""")

SSETS = {"1": ["Aend", "Aack", "Bflag", "Bgo", "Bloop", "Back"],
         "2": ["Bgo", "Bloop", "Back", "Cflag", "Cfirst", "Cmfma"],
         "5": ["Bloop", "Bbar", "Cmfma", "Cx", "Ccvt", "Cst"],
         "4": ["Aack", "Xpw", "Xpoll", "Xiss", "Xland", "Bgo"],
         "3": ["Afirst", "Akgen", "Abuilt", "Aconv", "Aend", "Aack"]}
DIAG = OPT.get("diag")
def stamp(name):
    if DIAG == name: a("s_memrealtime s[72:73]")
    if INSTR and name in SSETS[OPT.get("sset", "1")]:
        i = SSETS[OPT.get("sset", "1")].index(name) + 1
        a(f"s_memtime s[{70+2*i}:{71+2*i}]")
def stamp_out():
    if not INSTR: return
    a(f"""s_waitcnt vmcnt(0)
    s_memtime s[84:85]
    s_memrealtime s[88:89]
    s_waitcnt lgkmcnt(0)
    s_mov_b64 exec, 1
    s_lshl_b32 s90, s2, 4
    s_add_u32 s90, s90, s3
    s_lshl_b32 s90, s90, 6
    s_add_u32 s90, s90, {WS_ST}
    v_mov_b32 v166, s90""")
    for i in range(10):
        a(f"v_mov_b32 v167, s{70+2*i}\nglobal_store_dword v166, v167, s[24:25] offset:{4*i}")

def transpose8(I, O, sLO, sHI):
    for c in range(8):
        for t in range(4):
            a(f"v_perm_b32 v{O+4*c+t}, v{I+4*(2*t+1)+(c>>1)}, v{I+4*(2*t)+(c>>1)}, s{sHI if c&1 else sLO}")

def flag_set(soff, t):
    if OPT.get("ffl", "0") == "1":
        a(f"""v_mbcnt_lo_u32_b32 v{t}, -1, 0
        v_mov_b32 v{t+1}, s92
        v_lshl_add_u32 v{t}, v{t}, 2, s93
        s_mov_b32 exec_hi, 0
        buffer_store_dword v{t+1}, v{t}, s[36:39], {soff} offen sc1
        s_mov_b32 exec_hi, -1""")
    else:
        a(f"""v_mov_b32 v{t}, {WS_FL}
        v_mov_b32 v{t+1}, s92
        s_mov_b64 exec, 1
        buffer_store_dword v{t+1}, v{t}, s[36:39], {soff} offen {OPT.get('sfl', 'sc1').replace('+', ' ')}
        s_mov_b64 exec, -1""")
def poll_issue(n, t):
    for i in range(n): a(f"buffer_load_dword v{t+4+i}, v{t+i}, s[36:39], s93 offen {OPT.get('pfl', 'sc1').replace('+', ' ')}")
def flag_poll(tag, n, t, issued=False):
    a("s_mov_b32 s91, 0")
    if issued: a(f"s_branch {tag}_c")
    a(f"{tag}:")
    poll_issue(n, t)
    a(f"{tag}_c:\ns_add_u32 s91, s91, 1\ns_waitcnt vmcnt(0)")
    for i in range(n): a(f"v_xor_b32 v{t+4+i}, s92, v{t+4+i}")
    for i in range(1, n): a(f"v_or_b32 v{t+4}, v{t+4}, v{t+4+i}")
    a(f"""v_cmp_ne_u32 vcc, 0, v{t+4}
    s_cbranch_vccz {tag}_x
    s_mov_b64 exec, vcc
    s_sleep {OPT.get("slp", 2)}
    s_cmp_lt_u32 s91, 0x80000
    s_cbranch_scc1 {tag}
    {tag}_x:
    s_mov_b64 exec, -1""")
def lds_wait(tag, vaddr, off, t, slp=False):
    a(f"""{tag}:
    {"s_sleep 1" if slp else ""}
    ds_read_b32 v{t}, v{vaddr} offset:{off}
    s_waitcnt lgkmcnt(0)
    v_cmp_eq_u32 vcc, 0, v{t}
    s_cbranch_vccz {tag}""")
def kargs():
    a(f"""s_waitcnt lgkmcnt(0)
    s_add_u32 s68, s24, {WS_FL + FL_E}
    s_addc_u32 s69, s25, 0
    s_load_dword s92, s[68:69], 0""")
    srd(36, 24, WS_END)

def ufetch(tag):
    a(f"""
    s_sub_u32 s43, s3, 8
    s_lshl_b32 s40, s2, 1
    s_add_u32 s40, s40, s43              ; channel
    s_lshl_b32 s44, s43, 13
    s_add_u32 m0, s44, 147968
    s_lshr_b32 s46, s40, 6
    s_mul_i32 s46, s46, {32*FS}
    s_add_u32 s46, s46, {FL_S}
    v_and_b32 v10, 31, v0
    v_mul_u32_u24 v10, {FS}, v10
    v_add_u32 v10, s46, v10
    v_lshlrev_b32 v12, 4, v0
    v_mov_b32 v13, 0x7ffffff0
    s_lshl_b32 s44, s40, 12
    s_add_u32 s44, s44, {WS_U}
    s_mov_b32 exec_hi, 0
    """)
    flag_poll(tag, 1, 10)
    for i in range(4): a(f"buffer_load_dwordx4 v12, s[36:39], s44 offen offset:{1024*i} sc1 lds")
    a(f"""s_lshl_b32 s43, s43, 2
    s_add_u32 m0, s43, {L_FL + 448}
    s_mov_b64 exec, 1
    buffer_load_dword v13, s[36:39], 0 offen lds
    s_mov_b64 exec, -1""")

def phaseA():
    mod9 = """
    s_mul_i32 s49, s48, 57
    s_lshr_b32 s49, s49, 9
    s_mul_i32 s49, s49, 9
    s_sub_u32 s48, s48, s49"""
    ROT = {"wg": "s_lshl_b32 s48, s40, 1\ns_add_u32 s48, s48, s41" + mod9, "none": "s_mov_b32 s48, 0",
           "three": "s_and_b32 s48, s27, 3\ns_lshr_b32 s49, s27, 2\ns_add_u32 s48, s48, s49\ns_mul_i32 s48, s48, 3\ns_add_u32 s48, s48, s26" + mod9,
           "two5": "s_and_b32 s48, s27, 1\ns_lshr_b32 s49, s27, 2\ns_xor_b32 s48, s48, s49\ns_and_b32 s48, s48, 1\ns_mul_i32 s48, s48, 5\ns_add_u32 s48, s48, s26" + mod9,
           "twox": "s_and_b32 s48, s27, 1\ns_lshr_b32 s49, s27, 2\ns_xor_b32 s48, s48, s49\ns_and_b32 s48, s48, 1\ns_lshl_b32 s48, s48, 2\ns_and_b32 s49, s26, 3\ns_add_u32 s48, s48, s49\ns_lshr_b32 s49, s26, 2\ns_lshl_b32 s49, s49, 1\ns_add_u32 s48, s48, s49" + mod9,
           "wgb": "s_and_b32 s48, s27, 3\ns_mul_i32 s48, s48, 9\ns_lshr_b32 s48, s48, 2\ns_lshr_b32 s49, s27, 2\ns_mul_i32 s49, s49, 4\ns_add_u32 s48, s48, s49\ns_add_u32 s48, s48, s26" + mod9,
           "wgm": "s_and_b32 s48, s27, 3\ns_mul_i32 s48, s48, 9\ns_lshr_b32 s48, s48, 2\ns_add_u32 s48, s48, s26" + mod9,
           "two": "s_and_b32 s48, s27, 1\ns_lshr_b32 s49, s27, 2\ns_xor_b32 s48, s48, s49\ns_and_b32 s48, s48, 1\ns_lshl_b32 s48, s48, 2\ns_add_u32 s48, s48, s26" + mod9,
           "xcd": "s_and_b32 s48, s26, 3\ns_lshl_b32 s48, s48, 1\ns_lshr_b32 s49, s26, 2\ns_mul_i32 s49, s49, 5\ns_add_u32 s48, s48, s49" + mod9}[OPT.get("rot", "two")]
    LIN = "" if OPT.get("lin", "0") == "0" else f"""s_lshl_b32 s57, s2, 1
    s_add_u32 s57, s57, s56
    s_mul_i32 s57, s57, {42*128}
    v_lshlrev_b32 v12, 7, v0
    s_mov_b32 exec_hi, 0x3ff
    buffer_load_dword v13, v12, s[28:31], s57 offen
    s_mov_b32 exec_hi, -1"""
    a(f"""
    s_cmp_ge_u32 s2, 256
    s_cbranch_scc1 k_done
    v_lshrrev_b32 v1, 6, v0
    v_and_b32 v0, 63, v0
    v_readfirstlane_b32 s3, v1
    v_mov_b32 v23, {L_FL}
    s_cmp_lg_u32 s3, 9
    s_cbranch_scc1 a_noarm
    v_mov_b32 v14, -1
    v_mov_b32 v15, -1
    v_lshl_add_u32 v16, v0, 3, v23
    ds_write_b64 v16, v[14:15]
    s_waitcnt lgkmcnt(0)
    a_noarm:
    s_load_dwordx16 s[4:19], s[0:1], 0
    s_load_dwordx4 s[20:23], s[0:1], 64
    s_load_dwordx2 s[24:25], s[0:1], 96
    s_load_dwordx2 s[96:97], s[0:1], 80
    s_load_dwordx2 s[94:95], s[0:1], 16
    s_add_u32 s26, s3, 8
    s_sub_u32 s27, s3, 4
    s_cmp_lt_u32 s3, 4
    {"" if OPT.get("remap", "1") == "0" else "s_cselect_b32 s3, s26, s27           ; the waves that start first take the loader role (8..11)"}
    s_and_b32 s26, s2, 7
    s_lshr_b32 s27, s2, 3
    s_and_b32 s40, s26, 3
    s_lshl_b32 s40, s40, 2
    s_and_b32 s44, s27, 3
    s_add_u32 s40, s40, s44
    s_lshr_b32 s41, s26, 2
    s_mul_i32 s41, s41, 7
    s_lshr_b32 s44, s27, 2
    s_add_u32 s41, s41, s44
    s_mov_b32 s93, {WS_FL}
    s_cmp_ge_u32 s3, 8
    s_cbranch_scc1 a_aux
    s_cmp_lt_u32 s3, 4
    s_cbranch_scc1 a_ssm
    s_branch a_gemm
    a_aux:
    s_cmp_ge_u32 s27, 28
    s_cbranch_scc1 a_task
    {ROT}
    s_bfe_u32 s56, s3, 0x10001
    s_bitcmp1_b32 s3, 0
    s_cbranch_scc1 a_ldw
    v_lshrrev_b32 v4, 3, v0
    v_lshrrev_b32 v5, 2, v4
    v_lshlrev_b32 v5, 3, v5
    v_and_b32 v6, 3, v4
    v_add_u32 v5, v5, v6
    s_lshl_b32 s44, s40, 7
    v_add_u32 v5, s44, v5
    v_mul_u32_u24 v5, 1152, v5
    v_lshrrev_b32 v6, 1, v4
    v_and_b32 v7, 7, v0
    v_xor_b32 v6, v6, v7
    v_lshl_add_u32 v2, v6, 4, v5
    v_xor_b32 v6, 4, v6
    v_lshl_add_u32 v3, v6, 4, v5
    v_add_u32 v3, {4608-1024}, v3
    s_mov_b32 s50, 128
    s_mov_b32 s51, 18432
    s_mov_b32 s52, 0
    s_waitcnt lgkmcnt(0)
    s_mov_b32 s28, s4
    s_mov_b32 s29, s5
    s_mov_b32 s30, 2359296
    s_branch a_ld
    a_ldw:
    v_lshrrev_b32 v5, 4, v0
    v_mul_u32_u24 v2, 3456, v5
    v_lshlrev_b32 v5, 2, v5
    v_and_b32 v6, 15, v0
    v_xor_b32 v5, v5, v6
    v_lshl_add_u32 v2, v5, 4, v2
    s_lshl_b32 s44, s41, 8
    v_add_u32 v2, s44, v2
    v_add_u32 v3, {13824-1024}, v2
    s_mov_b32 s50, 221184
    s_mov_b32 s51, 27648
    s_mov_b32 s52, 16384
    s_waitcnt lgkmcnt(0)
    s_mov_b32 s28, s6
    s_mov_b32 s29, s7
    s_mov_b32 s30, 1990656
    a_ld:
    s_setprio {OPT.get("lprio", 0)}
    s_mov_b32 s31, 0x20000
    {LIN}
    s_mul_i32 s57, s56, s51
    s_lshl_b32 s57, s57, 2
    s_lshl_b32 s56, s56, 13
    s_add_u32 s52, s52, s56
    s_and_b32 s58, s3, 3
    s_lshl_b32 s58, s58, 2
    s_add_u32 s58, s58, {L_FL}
    v_mov_b32 v4, 0x7ffffff0
    s_mov_b32 s53, 0
    """)
    kargs()
    a(f"""
    a_ld_loop:
    s_cmp_lt_u32 s53, 4
    s_cbranch_scc1 a_ld_go
    a_ld_poll:
    ds_read_b128 v[8:11], v23 offset:160
    s_waitcnt lgkmcnt(0)
    v_or_b32 v8, v8, v9
    v_or3_b32 v8, v8, v10, v11
    v_cmp_eq_u32 vcc, 0, v8
    s_cbranch_vccz a_ld_poll
    v_add_u32 v23, 16, v23
    a_ld_go:
    s_mul_i32 s47, s48, s50
    s_add_u32 s47, s47, s57
    s_and_b32 s55, s53, 3
    s_lshl_b32 s55, s55, 15
    s_add_u32 m0, s55, s52
    s_add_u32 s48, s48, 1
    """)
    for p in range(4):
        a(f"buffer_load_dwordx4 v2, s[28:31], s47 offen {OPT.get('ldf','')} lds\nbuffer_load_dwordx4 v3, s[28:31], s47 offen offset:1024 {OPT.get('ldf','')} lds")
        if p < 3: a("s_add_u32 m0, m0, 2048\ns_add_u32 s47, s47, s51")
    a(f"""
    s_cmp_eq_u32 s48, 9
    s_cselect_b32 s48, 0, s48
    s_cmp_lg_u32 s53, 0
    s_cbranch_scc1 a_ld_nb
    s_barrier
    a_ld_nb:
    s_mov_b32 m0, s58
    s_mov_b64 exec, 1
    buffer_load_dword v4, s[28:31], 0 offen lds
    s_mov_b64 exec, -1
    s_add_u32 s58, s58, 16
    s_add_u32 s53, s53, 1
    s_cmp_lt_u32 s53, 9
    s_cbranch_scc1 a_ld_loop
    """)
    a("v_mov_b32 v116, v0\ns_waitcnt lgkmcnt(0)\ns_add_u32 s92, s92, 0x9e3779b1\ns_cmp_ge_u32 s3, 10\ns_cbranch_scc1 b_aux\na_uf:")
    ufetch("a_pu")
    a("s_branch b_aux")
    CPF = "" if OPT.get("cpf", "1") == "0" else f"""
    ; read this kernel's own code once per XCD so that later instruction fetches find it in L2 (speed only)
    s_getpc_b64 s[44:45]
    a_pc:
    s_lshl_b32 s46, s27, 2
    s_add_u32 s46, s46, s3
    s_sub_u32 s46, s46, 4
    s_lshl_b32 s46, s46, 8
    s_min_u32 s46, s46, k_last - {KN} - 256
    s_sub_u32 s44, s44, a_pc - {KN}
    s_subb_u32 s45, s45, 0
    s_add_u32 s44, s44, s46
    s_addc_u32 s45, s45, 0
    v_lshlrev_b32 v60, 6, v0
    v_mov_b32 v61, s45
    v_add_co_u32 v60, vcc, s44, v60
    s_mov_b64 exec, 15
    s_nop 0
    v_addc_co_u32 v61, vcc, 0, v61, vcc
    global_load_dword v62, v[60:61], off
    s_mov_b64 exec, -1"""
    a(f"""
    a_gemm:
    {CPF}
    s_cmp_ge_u32 s27, 28
    s_cbranch_scc1 a_ssm
    s_barrier
    """)
    kargs()
    if OPT.get("tcha", "0") == "1":
        a(f"""s_cmp_lg_u32 s3, 5
        s_cbranch_scc1 a_ntch
        v_lshlrev_b32 v60, 18, v0
        buffer_load_dword v63, v60, s[36:39], 0 offen
        a_ntch:""")
    a(f"""
    s_sub_u32 s45, s3, 4
    s_and_b32 s42, s45, 1                ; mw
    s_lshr_b32 s43, s45, 1               ; nw
    s_lshl_b32 s58, s45, 2
    s_add_u32 s58, s58, {L_FL + 160}
    v_mov_b32 v22, 0x7ffffff0
    v_and_b32 v5, 31, v0
    v_lshrrev_b32 v6, 5, v0
    s_lshl_b32 s44, s42, 6
    v_add_u32 v7, s44, v5
    v_lshlrev_b32 v7, 7, v7
    v_bfe_u32 v5, v5, 1, 3
    v_xor_b32 v5, v5, v6
    """)
    for j in range(4):
        a(f"v_xor_b32 v20, {2*j}, v5\nv_lshl_add_u32 v{8+j}, v20, 4, v7\nv_add_u32 v{12+j}, 0x10000, v{8+j}")
    a(f"""
    v_bfe_u32 v5, v0, 2, 2
    v_lshl_add_u32 v7, v6, 3, v5
    v_lshlrev_b32 v7, 8, v7
    v_bfe_u32 v20, v0, 4, 1
    v_lshl_add_u32 v7, v20, 5, v7
    v_and_b32 v20, 1, v0
    v_lshl_add_u32 v7, v20, 4, v7
    v_and_b32 v20, 2, v0
    v_lshl_add_u32 v7, v20, 2, v7
    v_add_u32 v7, 16384, v7
    s_lshl_b32 s44, s43, 1
    v_xor_b32 v5, s44, v5
    v_lshl_add_u32 v16, v5, 6, v7
    v_xor_b32 v5, 1, v5
    v_lshl_add_u32 v17, v5, 6, v7
    v_add_u32 v18, 0x10000, v16
    v_add_u32 v19, 0x10000, v17
    s_setprio {OPT.get('gprio', 2)}
    s_waitcnt lgkmcnt(0)
    s_add_u32 s92, s92, 0x9e3779b1
    s_lshl_b32 s46, s40, 1
    s_add_u32 s46, s46, s42
    s_lshl_b32 s47, s41, 1
    s_add_u32 s47, s47, s43
    s_lshl_b32 s59, s47, 5
    s_add_u32 s59, s59, s46
    s_mul_i32 s59, s59, {FS}
    s_cmp_ge_u32 s41, 9
    s_cbranch_scc1 a_gemm_v""")
    FB = [24, 40, 128]
    def reads(stage, j, fb):
        slot = stage & 3; hi = slot >> 1; base = (slot & 1) * 32768
        return [f"ds_read_b128 {vr(fb,4)}, v{8+4*hi+j} offset:{base}",
                f"ds_read_b64_tr_b16 {vr(fb+8,2)}, v{16+2*hi} offset:{base+j*4096}",
                f"ds_read_b64_tr_b16 {vr(fb+10,2)}, v{16+2*hi} offset:{base+j*4096+1024}",
                f"ds_read_b64_tr_b16 {vr(fb+12,2)}, v{17+2*hi} offset:{base+j*4096}",
                f"ds_read_b64_tr_b16 {vr(fb+14,2)}, v{17+2*hi} offset:{base+j*4096+1024}",
                f"ds_read_b128 {vr(fb+4,4)}, v{8+4*hi+j} offset:{base+4096}"]
    def mfmas(fb, vor, first):
        out = []
        for (ta, tb) in ((0,0),(0,1),(1,0),(1,1)):
            acc = vr(64 + 16*(2*ta+tb), 16); X = vr(fb+4*ta, 4); W = vr(fb+8+4*tb, 4)
            out.append(f"v_mfma_f32_32x32x16_bf16 {acc}, " + (f"{X}, {W}" if vor else f"{W}, {X}") + ", " + ("0" if first else acc))
        return out
    def check(tag, st, first_read):
        if not first_read:
            a(f"""v_or_b32 v56, v56, v57
            v_or3_b32 v56, v56, v58, v59
            v_cmp_eq_u32 vcc, 0, v56
            s_cbranch_vccnz {tag}_ok""")
        a(f"""{tag}_p:
        ds_read_b128 v[56:59], v23 offset:{16*st}
        s_waitcnt lgkmcnt(0)
        v_or_b32 v56, v56, v57
        v_or3_b32 v56, v56, v58, v59
        v_cmp_eq_u32 vcc, 0, v56
        s_cbranch_vccz {tag}_p
        {tag}_ok:""")
    def mainloop(vor):
        check(f"a_c{int(vor)}_0", 0, True)
        stamp("Afirst")
        a("\n".join(reads(0, 0, FB[0]) + reads(0, 1, FB[1])))
        for g in range(36):
            st, j = divmod(g, 4)
            a(f"s_waitcnt lgkmcnt({6 if g < 35 else 0})")
            m = mfmas(FB[g % 3], vor, g == 0)
            a(m[0])
            if j == 1 and st < 8: a(f"ds_read_b128 v[56:59], v23 offset:{16*(st+1)}")
            if j == 2 and st < 8: check(f"a_c{int(vor)}_{st+1}", st+1, False)
            if j == 3 and st < 5: a(f"s_add_u32 m0, s58, {16*st}\ns_mov_b64 exec, 1\nbuffer_load_dword v22, s[36:39], 0 offen lds\ns_mov_b64 exec, -1")
            rd = reads((g+2)//4, (g+2)%4, FB[(g+2) % 3]) if g + 2 < 36 else []
            a("\n".join(rd[:3])); a(m[1]); a("\n".join(rd[3:])); a(m[2]); a(m[3])
        stamp("Aconv")
    a(f"""
    s_mul_i32 s44, s46, {2*QK_T}
    s_lshl_b32 s45, s47, 12
    s_add_u32 s44, s44, s45
    s_add_u32 s45, s44, {QK_T}
    v_lshlrev_b32 v2, 4, v0
    """)
    mainloop(False)
    for ta in range(2):
        for tb in range(2):
            acc = 64 + 16*(2*ta+tb); o = 24 + 8*(2*ta+tb)
            if ta + tb == 0: a("s_nop 8")
            for r in range(8): a(f"v_cvt_pk_bf16_f32 v{o+r}, v{acc+2*r}, v{acc+2*r+1}")
            for hh in range(2): a(f"buffer_store_dwordx4 {vr(o+4*hh,4)}, v2, s[36:39], s{44+ta} offen offset:{tb*2048+hh*1024} sc1")
    a(f"""s_branch a_gemm_end
    a_gemm_v:
    v_and_b32 v5, 19, v0
    v_bfe_u32 v6, v0, 2, 1
    v_lshl_add_u32 v5, v6, 3, v5
    v_bfe_u32 v6, v0, 3, 1
    v_lshl_add_u32 v5, v6, 2, v5         ; feature inside the tile
    v_lshrrev_b32 v6, 5, v0
    v_mul_u32_u24 v6, 9216, v6
    v_lshl_add_u32 v2, v5, 4, v6
    s_sub_u32 s45, s47, 18
    s_lshl_b32 s45, s45, 10
    s_mul_i32 s44, s46, {8*9216}
    s_add_u32 s44, s44, s45
    s_add_u32 s44, s44, {WS_V}
    """)
    mainloop(True)
    a("s_cmp_ge_u32 s47, 27\ns_cbranch_scc1 a_end")
    for ta in range(2):
        for tb in range(2):
            acc = 64 + 16*(2*ta+tb); o = 24 + 8*(2*ta+tb)
            if ta + tb == 0: a("s_nop 8")
            for r in range(8): a(f"v_cvt_pk_bf16_f32 v{o+r}, v{acc+2*r}, v{acc+2*r+1}")
            for hh in range(2): a(f"s_add_u32 s45, s44, {(4*ta+2*hh)*9216}\nbuffer_store_dwordx4 {vr(o+4*hh,4)}, v2, s[36:39], s45 offen offset:{tb*512} sc1")
    a("a_gemm_end:")
    if OPT.get("early", "0") == "1":
        a(f"""s_lshl_b32 s44, s3, 2
        s_add_u32 s44, s44, {L_FL}
        v_mov_b32 v4, s44
        v_mov_b32 v5, 0
        ds_write_b32 v4, v5 offset:400""")
    stamp("Aend")
    a("s_waitcnt vmcnt(0)")
    stamp("Aack")
    flag_set("s59", 2)
    a("s_branch a_end")

    a(f"""
    a_task:
    s_cmp_eq_u32 s3, 11
    s_cbranch_scc1 a_fetch
    s_sub_u32 s44, s2, 224
    s_lshr_b32 s45, s44, 1               ; B
    s_and_b32 s46, s44, 1                ; es
    s_sub_u32 s47, 16, s3
    s_lshl_b32 s59, s47, 5
    s_add_u32 s59, s59, s44
    s_mul_i32 s59, s59, {FS}
    s_add_u32 s59, s59, {FL_S}
    s_lshl_b32 s48, s45, 3
    s_add_u32 s48, s48, s46
    s_mul_i32 s48, s48, {16*1152}
    s_lshl_b32 s49, s47, 7
    s_add_u32 s48, s48, s49
    v_lshrrev_b32 v10, 3, v0
    v_and_b32 v9, 7, v0
    v_mul_u32_u24 v11, 1152, v10
    v_lshl_add_u32 v11, v9, 4, v11
    v_xor_b32 v12, v10, v9
    v_lshlrev_b32 v12, 4, v12
    v_lshl_add_u32 v12, v9, 10, v12
    s_mul_i32 s49, s3, 24576
    s_sub_u32 s49, s49, {8*24576 - 57344}
    v_add_u32 v12, s49, v12
    s_mov_b32 m0, s49
    v_lshlrev_b32 v17, 15, v10
    v_lshl_add_u32 v17, v9, 4, v17
    s_lshl_b32 s60, s47, 18
    s_lshl_b32 s45, s45, 7
    s_lshl_b32 s46, s46, 11
    s_add_u32 s60, s60, s45
    s_add_u32 s60, s60, s46
    s_add_u32 s60, s60, {WS_U}
    s_mov_b32 s50, 0x05040100
    s_mov_b32 s51, 0x07060302
    """)
    for p in range(8): a(f"v_xor_b32 v{24+p}, {16*p}, v11")
    kargs()
    srd(28, 10, 2359296)
    def uload():
        for p in range(8):
            a(f"""s_add_u32 s49, s48, {((p>>1)*32 + (p&1)*8)*1152}
            buffer_load_dwordx4 v{24+p}, s[28:31], s49 offen lds
            s_add_u32 m0, m0, 1024""")
        a("s_sub_u32 s48, s48, 384")
    def uproc(i):
        for j in range(8): a(f"ds_read_b128 {vr(32+4*j,4)}, v12 offset:{i*8192 + j*128}")
        a("s_waitcnt lgkmcnt(0)")
        transpose8(32, [64, 96, 128][i], 50, 51)
    def ustore(i):
        for c in range(8):
            a(f"s_add_u32 s49, s60, {c*4096}\nbuffer_store_dwordx4 {vr([64, 96, 128][i]+4*c,4)}, v17, s[36:39], s49 offen sc1")
        a(f"s_sub_u32 s60, s60, {3<<18}")
    def uflag():
        flag_set("s59", 2)
        a(f"s_sub_u32 s59, s59, {96*FS}")
    uload()
    a("s_barrier\ns_mov_b32 s52, 0\ns_cmp_eq_u32 s3, 10\ns_cbranch_scc1 a_t1\ns_setprio 3\ns_waitcnt vmcnt(0)\na_t0:")
    uproc(0); ustore(0)
    a("s_add_u32 s92, s92, 0x9e3779b1\ns_setprio 0\ns_cmp_eq_u32 s3, 10\ns_cbranch_scc1 a_t2\na_t1:")
    uload(); uload()
    a("s_waitcnt vmcnt(16)\ns_cmp_eq_u32 s3, 10\ns_cbranch_scc1 a_t0")
    uflag()
    a("s_mov_b32 s52, 1\na_t2:\ns_waitcnt vmcnt(8)")
    uproc(1)
    a("s_waitcnt vmcnt(0)\ns_cmp_eq_u32 s52, 1\ns_cbranch_scc1 a_t3")
    uflag()
    a("a_t3:")
    ustore(1); uproc(2)
    a("s_waitcnt vmcnt(0)")
    uflag(); ustore(2)
    a("s_branch a_gemm_end\na_fetch:\ns_barrier")
    kargs()
    a(f"""
    v_mul_u32_u24 v10, {FS}, v0
    v_add_u32 v10, {FL_S + 224*FS}, v10
    v_lshlrev_b32 v12, 4, v0
    v_mov_b32 v13, 0x7ffffff0
    s_lshl_b32 s44, s2, 13
    s_add_u32 s44, s44, {WS_U}
    s_waitcnt lgkmcnt(0)
    s_add_u32 s92, s92, 0x9e3779b1
    s_sleep {OPT.get("fslp", 32)}
    """)
    flag_poll("a_pf", 1, 10)
    for p in range(4):
        a(f"s_mov_b32 m0, {[147968, 156160, 40960, 49152][p]}\ns_add_u32 s45, s44, {(p&1)*4096 + (p>>1)*64*4096}")
        for i in range(4): a(f"buffer_load_dwordx4 v12, s[36:39], s45 offen offset:{1024*i} sc1 lds")
        a(f"""s_mov_b32 m0, {L_FL + 448 + 4*p}
        s_mov_b64 exec, 1
        buffer_load_dword v13, s[36:39], 0 offen lds
        s_mov_b64 exec, -1""")
    a("s_branch a_end")

    L2E = f2u(1.4426950408889634); L2E_LO = f2u(1.4426950408889634 - struct.unpack("<f", struct.pack("<I", L2E))[0])
    LN2 = f2u(0.6931471805599453)
    z0 = list(range(9)) + [14,15,16,20,21,24,25]
    z1 = [9,9,10,11,11,11,12,13,13,17,18,19,22,23,26,27]
    def pack(z, lo):
        v = 0
        for r in range(lo, lo+8): v |= (z[r]-r) << (4*(r-lo))
        return v
    a(f"""
    a_ssm:
    s_and_b32 s41, s3, 1                 ; half
    s_bfe_u32 s45, s3, 0x10001
    s_lshl_b32 s40, s2, 1
    s_add_u32 s40, s40, s45
    s_add_u32 s46, s40, {512 - 448}
    s_mul_i32 s42, s45, {KAREA}
    s_add_u32 s47, s42, 16384
    s_add_u32 s42, s42, 131072
    s_cmp_ge_u32 s3, 4
    s_cselect_b32 s40, s46, s40          ; channel
    s_cselect_b32 s42, s47, s42
    s_lshr_b32 s43, s3, 1
    s_lshl_b32 s43, s43, 13
    s_add_u32 s47, s43, {40960 - 16384}
    s_add_u32 s43, s43, 147968
    s_cmp_ge_u32 s3, 4
    s_cselect_b32 s43, s47, s43
    s_lshl_b32 s45, s40, 7
    s_lshl_b32 s46, s41, 6
    s_add_u32 s45, s45, s46
    v_add_u32 v2, s45, v0
    v_lshlrev_b32 v2, 1, v2
    s_lshl_b32 s45, s40, 1
    v_mov_b32 v3, s45
    s_waitcnt lgkmcnt(0)
    global_load_ushort v4, v3, s[20:21]
    global_load_ushort v6, v2, s[12:13]
    global_load_ushort v7, v2, s[14:15]
    global_load_ushort v8, v2, s[16:17]
    global_load_ushort v9, v2, s[18:19]
    global_load_ushort v5, v3, s[22:23]
    s_barrier
    """)
    kargs()
    a(f"""
    v_and_b32 v14, 31, v0
    v_and_b32 v16, 3, v14
    v_lshrrev_b32 v17, 3, v14
    v_lshl_add_u32 v16, v17, 2, v16
    v_mov_b32 v17, {pack(z0,0):#x}
    v_mov_b32 v18, {pack(z0,8):#x}
    v_mov_b32 v19, {pack(z1,0):#x}
    v_mov_b32 v20, {pack(z1,8):#x}
    v_cmp_lt_u32 vcc, 7, v16
    v_and_b32 v21, 4, v14
    v_and_b32 v22, 7, v16
    v_cndmask_b32 v17, v17, v18, vcc
    v_cndmask_b32 v19, v19, v20, vcc
    v_cmp_ne_u32 vcc, 0, v21
    v_lshlrev_b32 v22, 2, v22
    v_lshrrev_b32 v15, 5, v0
    v_cndmask_b32 v17, v17, v19, vcc
    v_bfe_u32 v17, v17, v22, 4
    v_add_u32 v17, v17, v16
    v_lshlrev_b32 v15, 2, v15
    s_mov_b32 s50, 0x3f80
    """)
    for (zr, dst) in ((14, 40), (17, 48)):
        a(f"""v_and_b32 v18, 1, v{zr}
        v_lshlrev_b32 v18, 4, v18
        v_lshlrev_b32 v18, v18, s50
        v_lshrrev_b32 v19, 1, v{zr}
        v_sub_u32 v19, v19, v15""")
        for d in range(8): a(f"v_cmp_eq_u32 s[{52+2*d}:{53+2*d}], {8*(d>>2) + (d&3)}, v19")
        for d in range(8): a(f"v_cndmask_b32 v{dst+d}, 0, v18, s[{52+2*d}:{53+2*d}]")
    a(f"""
    s_mov_b32 s50, {L2E:#x}
    s_mov_b32 s51, {L2E_LO:#x}
    s_mov_b32 s52, {LN2:#x}
    s_mov_b32 s53, {f2u(248.0):#x}
    s_mov_b32 s54, {f2u(8.0):#x}
    s_waitcnt vmcnt(0) lgkmcnt(0)
    s_add_u32 s92, s92, 0x9e3779b1
    """)
    stamp("Afirst")
    if "nossm" in OPT: a("s_branch a_end")
    def exp_bf16(x, t, lo):
        a(f"""v_mul_f32 v{t}, s50, v{x}
        v_fma_f32 v{lo}, v{x}, s50, -v{t}
        v_exp_f32 v{t}, v{t}
        v_fma_f32 v{lo}, v{x}, s51, v{lo}
        v_mul_f32 v{lo}, s52, v{lo}
        v_fma_f32 v{t}, v{t}, v{lo}, v{t}
        v_cvt_pk_bf16_f32 v{t}, v{t}, v{t}
        v_lshlrev_b32 v{x}, 16, v{t}""")
    for r in range(4, 10): a(f"v_lshlrev_b32 v{r}, 16, v{r}")
    exp_bf16(4, 20, 21)
    exp_bf16(6, 20, 21)
    a("""
    v_mul_f32 v6, v6, v4
    v_mul_f32 v7, v7, v4
    v_mul_f32 v8, v8, v4
    v_mul_f32 v9, v9, v4
    v_mul_f32 v6, s50, v6                ; -Re(z)*log2e
    v_mul_f32 v7, 0.15915494, v7         ; Im(z)/(2pi)
    v_add_f32 v8, v8, v8
    v_mul_f32 v9, -2.0, v9
    """)
    DL = [8, 1, 2, 4, 248]
    DS = {8: "s54", 1: "1.0", 2: "2.0", 4: "4.0", 248: "s53"}
    MR = {d: 24 + 2*i for i, d in enumerate(DL)}
    def mkE(d):
        a(f"""v_mul_f32 v21, {DS[d]}, v6
        v_mul_f32 v22, {DS[d]}, v7
        v_exp_f32 v21, -v21
        v_fract_f32 v22, v22
        v_cos_f32 v20, v22
        v_sin_f32 v22, v22
        v_mul_f32 v{MR[d]}, v21, v20
        v_mul_f32 v{MR[d]+1}, v21, v22""")
    P = 56; Dt = 88; YO = 120; ACC = 152
    R = lambda z: 34 + 2*(z % 3)
    def chain(dl, conj, mid=None):
        n = "-" if conj else ""; p = "" if conj else "-"
        for z in range(len(dl) + 1):
            cur, nxt = R(z), R(z+1)
            if z < len(dl):
                W = MR[dl[z]]
                a(f"v_mul_f32 v{nxt}, v{cur}, v{W}\nv_mul_f32 v{nxt+1}, v{cur+1}, v{W}")
            if z & 1: a(f"v_cvt_pk_bf16_f32 v{P+(z>>1)}, v{R(z-1)}, v{cur}")
            if z < len(dl): a(f"v_fma_f32 v{nxt}, {p}v{cur+1}, v{W+1}, v{nxt}\nv_fma_f32 v{nxt+1}, {n}v{cur}, v{W+1}, v{nxt+1}")
            if z & 1: a(f"v_cvt_pk_bf16_f32 v{P+16+(z>>1)}, v{R(z-1)+1}, v{cur+1}")
            if mid and z == 4: mid()
    def swaps(comp):
        for pr in range(2):
            for t in range(4): a(f"v_permlane32_swap_b32 v{P+16*comp+8*pr+t}, v{P+16*comp+8*pr+4+t}")
    def tmfma(comp, sel):
        for blk in range(2): a(f"v_mfma_f32_32x32x16_bf16 {vr(Dt+16*blk,16)}, {vr(P+16*comp+4*blk,4)}, {vr(sel,4)}, 0")
        for blk in range(2): a(f"v_mfma_f32_32x32x16_bf16 {vr(Dt+16*blk,16)}, {vr(P+16*comp+8+4*blk,4)}, {vr(sel+4,4)}, {vr(Dt+16*blk,16)}")
    def tcvt(dst):
        for i in range(16): a(f"v_cvt_pk_bf16_f32 v{dst+i}, v{Dt+2*i}, v{Dt+2*i+1}")
    mkE(8)
    a(f"v_mov_b32 v{R(0)}, 1.0\nv_mov_b32 v{R(0)+1}, 0")
    chain([8]*31, False)
    mkE(1); swaps(0); swaps(1); tmfma(0, 40); mkE(2); mkE(4); tcvt(YO); tmfma(1, 40); mkE(248)
    a(f"v_mov_b32 v{R(0)}, v8\nv_mov_b32 v{R(0)+1}, v9")
    deltas = [1]*8 + [248] + [2]*4 + [248] + [4]*2 + [248] + [4]*2 + [248, 8, 248, 8, 248, 8, 248, 8]
    chain(deltas, True, mid=lambda: tcvt(YO+16))
    a("v_lshl_add_u32 v21, s41, 6, v0\nv_cmp_eq_u32 vcc, 0, v21\nv_sub_u32 v21, 63, v0")
    swaps(0); swaps(1); tmfma(0, 48)
    a(f"""
    v_cndmask_b32 v5, 0, v5, vcc
    v_lshl_add_u32 v21, v21, 4, s42
    s_lshl_b32 s46, s3, 4
    v_add_u32 v22, s46, v23
    v_xor_b32 v20, 16, v22               ; partner's
    v_mov_b32 v19, 0
    s_nop 5
    """)
    tcvt(P); tmfma(1, 48)
    for i in range(4): a(f"v_mfma_f32_32x32x16_bf16 {vr(ACC,16)}, {vr(P+4*i,4)}, {vr(YO+4*i,4)}, " + ("0" if i == 0 else vr(ACC,16)))
    a("s_nop 7")
    tcvt(P+16)
    a("s_nop 1")
    for i in range(4, 8): a(f"v_mfma_f32_32x32x16_bf16 {vr(ACC,16)}, {vr(P+4*i,4)}, {vr(YO+4*i,4)}, {vr(ACC,16)}")
    stamp("Akgen")
    if "noconv" in OPT: a("s_branch a_end")
    CA = 24; CU = 68; CF = 132
    for i in range(44): a(f"v_mov_b32 v{CA+i}, 0")
    for i in range(32): a(f"v_mov_b32 v{CU+i}, 0")
    a(f"""
    v_and_b32 v12, 31, v0
    v_lshrrev_b32 v13, 5, v0             ; h
    v_lshlrev_b32 v16, 5, v12
    v_lshl_add_u32 v16, v13, 4, v16
    s_lshl_b32 s45, s41, 7
    s_sub_u32 s44, s43, s45
    s_sub_u32 s44, s44, 96
    v_add_u32 v16, s44, v16
    s_lshl_b32 s45, s41, 2
    v_lshlrev_b32 v17, 3, v13
    v_sub_u32 v17, v17, v12
    v_lshlrev_b32 v17, 1, v17            ; 2*(8h - b)
    v_and_b32 v18, 1, v12
    v_cmp_eq_u32 s[56:57], 1, v18        ; b odd
    v_xor_b32 v18, 1, v18
    v_mul_u32_u24 v18, {KC + 2}, v18
    s_lshl_b32 s46, s41, 8
    s_sub_u32 s46, s42, s46
    s_add_u32 s46, s46, {62 + 120*32}
    v_add3_u32 v17, v17, v18, s46
    v_subrev_u32 v18, 2048, v17
    v_add_f32 v{ACC}, v{ACC}, v5
    v_lshl_add_u32 v133, v0, 2, s42
    s_add_u32 s46, s43, 4096
    v_lshl_add_u32 v138, v0, 4, s46
    """)
    for G in range(4): a(f"v_add_u32 v{134+G}, {(3-G)*1024 + KC}, v21")
    a(f"""
    s_cmp_ge_u32 s27, 28
    s_cbranch_scc1 a_s_g2
    a_s_w2:
    ds_read_b128 v[8:11], v23 offset:128
    s_waitcnt lgkmcnt(0)
    v_or_b32 v8, v8, v9
    v_or3_b32 v8, v8, v10, v11
    v_cmp_eq_u32 vcc, 0, v8
    s_cbranch_vccnz a_s_g2
    s_sleep 1
    s_branch a_s_w2
    a_s_g2:
    s_setprio 3
    s_cmp_eq_u32 s41, 0
    s_cbranch_scc1 a_s_even
    """)
    d = lambda r: f"v{ACC+r}" if r < 16 else f"v{r-24}"
    units = [
      (0, 0, [(7,6),(5,4),(3,2),(1,0)]), (0, 1, [(8,7),(6,5),(4,3),(2,1)]),
      (1, 0, [(11,11),(10,10),(10,9),(9,9)]), (1, 1, [(11,11),(11,10),(10,10),(9,9)]),
      (2, 0, [(13,13),(13,32),(12,12),(12,12)]), (2, 1, [(13,13),(13,13),(32,12),(12,12)]),
      (3, 0, [(15,15),(15,33),(14,14),(14,14)]), (3, 1, [(15,15),(15,15),(33,14),(14,14)])]
    def build(us):
        for ui in us:
            G, cp, prs = units[ui]; o = 100 + 4*ui
            for t, (lo, hi) in enumerate(prs): a(f"v_cvt_pk_bf16_f32 v{o+t}, {d(lo)}, {d(hi)}")
            if cp == 0: a(f"ds_write_b128 v21, {vr(o,4)} offset:{(3-G)*1024}")
            else: a(f"ds_write2_b32 v{134+G}, v{o}, v{o+1} offset0:0 offset1:1\nds_write2_b32 v{134+G}, v{o+2}, v{o+3} offset0:2 offset1:3")
    for i in range(3): a(f"ds_write_b128 v138, {vr(ACC+4*i,4)} offset:{1024*i}")
    a("ds_write_b32 v22, v19 offset:256")
    lds_wait("a_s_o0", 20, 256, 8)
    a("ds_read_b128 v[140:143], v21\ns_waitcnt lgkmcnt(0)")
    for i in range(4): a(f"v_add_f32 v{ACC+12+i}, v{ACC+12+i}, v{140+i}")
    a(f"v_cndmask_b32 v8, {d(12)}, {d(13)}, s[56:57]\nv_cndmask_b32 v9, {d(14)}, {d(15)}, s[56:57]")
    build([4, 5, 6, 7])
    a(f"s_branch a_s_u\na_s_even:\nds_write_b128 v21, {vr(ACC+12,4)}\nds_write_b32 v22, v19 offset:256")
    lds_wait("a_s_e0", 20, 256, 8)
    for i in range(3): a(f"ds_read_b128 {vr(140+4*i,4)}, v138 offset:{1024*i}")
    a("v_cmp_eq_u32 vcc, 0, v0\ns_waitcnt lgkmcnt(0)")
    for i in range(12): a(f"v_add_f32 v{ACC+i}, v{ACC+i}, v{140+i}")
    build([0, 1, 2, 3])
    a(f"""
    v_cvt_pk_bf16_f32 v132, {d(0)}, v19
    s_mov_b64 exec, 0x7fff
    ds_write_b32 v133, v19 offset:4096   ; zeros behind both copies; the odd copy ends with K[0]
    s_mov_b64 exec, 0xffff
    v_cndmask_b32 v132, 0, v132, vcc
    ds_write_b32 v133, v132 offset:{4096 + KC}
    s_mov_b64 exec, -1
    a_s_u:
    ds_write_b32 v22, v19 offset:268
    s_setprio 0
    s_lshr_b32 s46, s3, 1
    s_lshl_b32 s46, s46, 2
    v_add_u32 v9, s46, v23
    """)
    lds_wait("a_s_uw", 9, 448, 8)
    for q in range(4):
        a(f"s_add_u32 s46, s45, {q}\ns_lshl_b32 exec_lo, -1, s46\ns_mov_b32 exec_hi, exec_lo")
        for es in range(2): a(f"ds_read_b128 {vr(CU+8*q+4*es,4)}, v16 offset:{es*2048 + (3-q)*32}")
        a("s_mov_b64 exec, -1")
        for es in range(2): a(f"ds_read_b128 {vr(CU+32+8*q+4*es,4)}, v16 offset:{es*2048 + 1024 + (3-q)*32}")
        if q == 2: a("s_waitcnt lgkmcnt(4)")
    lds_wait("a_s_o1", 20, 268, 8)
    stamp("Abuilt")
    steps = [(k, q, es) for k in range(4) for q in range(4) for es in range(2)]
    def frd(i):
        k, q, es = steps[i]; b = CF + 8*(i & 3); o = (6 - 2*q + es) * 8
        if q == 0 and es == 0 and k: a("v_subrev_u32 v17, 512, v17\nv_subrev_u32 v18, 512, v18")
        a(f"""ds_read2_b32 {vr(b,2)}, v17 offset0:{o} offset1:{o+1}
        ds_read2_b32 {vr(b+2,2)}, v17 offset0:{o+2} offset1:{o+3}
        ds_read2_b32 {vr(b+4,2)}, v18 offset0:{o} offset1:{o+1}
        ds_read2_b32 {vr(b+6,2)}, v18 offset0:{o+2} offset1:{o+3}""")
    for i in range(3): frd(i)
    for i, (k, q, es) in enumerate(steps):
        b = CF + 8*(i & 3); U0 = vr(CU+8*q+4*es, 4); U1 = vr(CU+32+8*q+4*es, 4)
        lo = vr(CA+4*k, 16); hi = vr(CA+16+4*k, 16)
        w = f"s_waitcnt lgkmcnt({4*min(2, 31-i)})"
        a(w)
        if q == 0 and es == 0 and k: a("s_nop 9")
        a(f"v_mfma_f32_32x32x16_bf16 {lo}, {U0}, {vr(b,4)}, {lo}")
        a(f"v_mfma_f32_32x32x16_bf16 {hi}, {U1}, {vr(b,4)}, {hi}")
        if i + 3 < 32: frd(i+3)
        a(f"v_mfma_f32_32x32x16_bf16 {hi}, {U0}, {vr(b+4,4)}, {hi}")
    stamp("Aconv")
    a(f"""
    ds_write_b32 v22, v19 offset:260
    s_lshl_b32 s46, s41, 12
    s_add_u32 s46, s46, s42
    v_lshl_add_u32 v16, v0, 4, s46
    s_lshl_b32 s46, s41, 13
    s_sub_u32 s46, 4096, s46
    v_add_u32 v17, s46, v16              ; partner's
    v_lshlrev_b32 v18, 4, v0
    s_lshl_b32 s44, s40, 12
    s_lshl_b32 s45, s41, 11
    s_add_u32 s44, s44, s45
    s_add_u32 s44, s44, {WS_Y}
    s_lshl_b32 s59, s40, 1
    s_add_u32 s59, s59, s41
    s_mul_i32 s59, s59, {FS}
    s_add_u32 s59, s59, {FL_Y}
    """)
    lds_wait("a_s_y1", 20, 260, 12)
    a("s_cmp_eq_u32 s41, 0\ns_cbranch_scc1 a_s_y0")
    for i in range(4): a(f"ds_write_b128 v16, {vr(CA+4*i,4)} offset:{1024*i}")
    a("ds_write_b32 v22, v19 offset:264\ns_waitcnt lgkmcnt(0)")
    for i in range(16): a(f"v_mov_b32 v{CA+i}, v{CA+16+i}")
    a("s_branch a_s_y2\na_s_y0:")
    for i in range(4): a(f"ds_write_b128 v16, {vr(CA+16+4*i,4)} offset:{1024*i}")
    a("ds_write_b32 v22, v19 offset:264\na_s_y2:")
    lds_wait("a_s_y3", 20, 264, 12)
    for i in range(4): a(f"ds_read_b128 {vr(CU+4*i,4)}, v17 offset:{1024*i}")
    a("s_waitcnt lgkmcnt(0)")
    for i in range(16): a(f"v_add_f32 v{CA+i}, v{CA+i}, v{CU+i}")
    for i in range(8): a(f"v_cvt_pk_bf16_f32 v{CF+i}, v{CA+2*i}, v{CA+2*i+1}")
    for g in range(2): a(f"buffer_store_dwordx4 {vr(CF+4*g,4)}, v18, s[36:39], s44 offen offset:{1024*g} sc1")
    stamp("Aend")
    a("s_mov_b32 s62, s59\ns_branch a_end1")
    a(f"""a_end:
    s_mov_b32 s62, 0
    a_end1:
    v_mov_b32 v116, v0
    s_lshl_b32 s44, s3, 2
    s_add_u32 s44, s44, {L_FL}
    v_mov_b32 v4, s44
    v_mov_b32 v5, 0
    ds_write_b32 v4, v5 offset:400""")

S = [0, 16]; O = 32; NEG = 48; P = 64; KF = [72, 76]; TF = [80, 84]; VF = [88, 96]; Q = 104; QL = 108; QH = 110
vK, vT, vV = 112, 113, 114
def rdK(buf, t): a(f"ds_read_b128 {vr(KF[buf],4)}, v{vK} offset:{1024*t}")
def rdT(buf, q): a(f"ds_read2st64_b64 {vr(TF[buf],4)}, v{vT} offset0:{2*q} offset1:{2*q+1}")
def rdV(buf, t):
    a(f"""s_mov_b64 exec, s[18:19]
    ds_read_b128 {vr(VF[buf],4)}, v{vV} offset:{t*1152}
    ds_read_b128 {vr(VF[buf]+4,4)}, v{vV} offset:{t*1152+576}
    s_mov_b64 exec, -1""")
def qk_tail(t, tb):
    tt = t & 3
    a(f"v_mfma_f32_32x32x8_bf16 {vr(S[t&1],16)}, {vr(TF[tb]+2*(tt>>1),2)}, {vr(QH if tt&1 else QL,2)}, {vr(S[t&1],16)}")
def pv(t, half): a(f"v_mfma_f32_32x32x16_bf16 {vr(O,16)}, {vr(VF[t&1]+4*half,4)}, {vr(P+4*half,4)}, {vr(O,16)}")
def ex(t, r0, r1):
    for r in range(r0, r1): a(f"v_exp_f32 v{S[t&1]+r}, v{S[t&1]+r}")
def cv(t, c0, c1):
    for c in range(c0, c1): a(f"v_cvt_pk_bf16_f32 v{P+c}, v{S[t&1]+2*c}, v{S[t&1]+2*c+1}")
LATER = []
def att_run():
    tag = "b_f"
    def qk_main(t): a(f"v_mfma_f32_32x32x16_bf16 {vr(S[t&1],16)}, {vr(KF[t&1],4)}, {vr(Q,4)}, 0")
    rdK(0, 0); rdT(0, 0); rdK(1, 1); rdV(0, 0)
    a("s_mov_b32 s26, 0\ns_waitcnt lgkmcnt(3)")
    qk_main(0); qk_tail(0, 0)
    a(f"s_nop 7\ns_nop 3\n.p2align 6\n{tag}_loop:")
    def at(it, t, code):
        a(f"s_cmp_eq_u32 s26, {it}\ns_cbranch_scc1 {tag}_e{it}_{t}\n{tag}_n{it}_{t}:")
        def h():
            a(f"{tag}_e{it}_{t}:"); code(); a(f"s_branch {tag}_n{it}_{t}")
        LATER.append(h)
    def bar1():
        a("s_cmp_eq_u32 s62, 0\ns_cbranch_scc1 b_nyf\ns_waitcnt vmcnt(0)")
        flag_set("s62", 122)
        a("b_nyf:\ns_barrier\ns_setprio 3")
    def chk1():
        a(f"""v_mov_b32 v121, {L_FL}
        {tag}_f1:
        ds_read_b96 v[124:126], v121 offset:464
        s_waitcnt lgkmcnt(0)
        v_or3_b32 v124, v124, v125, v126
        v_cmp_eq_u32 vcc, 0, v124
        s_cbranch_vccz {tag}_f1""")
    def half():
        a(f"""s_lshl_b32 s27, s3, 2
        s_add_u32 s27, s27, {L_KT}
        v_mov_b32 v121, s27
        v_mov_b32 v122, s92
        ds_write_b32 v121, v122
        s_setprio 1""")
    EV = {(1,2): lambda: a("s_setprio 2"), (1,4): bar1, (0,5): chk1, (5,0): lambda: a("s_setprio 2"), (6,1): half, (7,5): lambda: a("s_setprio 0")}
    for t in range(8):
        for (it, tt), code in EV.items():
            if tt == t: at(it, t, code)
        def adv():
            if t == 7:
                a(f"""v_add_u32 v{vK}, 8192, v{vK}
                v_add_u32 v{vT}, 2048, v{vT}
                v_add_u32 v{vV}, 9216, v{vV}
                s_add_u32 s26, s26, 1
                s_cmp_lt_u32 s26, 8""")
        def rK():
            rdK(t&1, t+2)
            if (t & 3) == 1: rdT(((t>>2)+1)&1, (t>>2)+1)
        M1 = lambda: qk_main(t+1); M2 = lambda: pv(t-1, 1); M3 = lambda: qk_tail(t+1, ((t+1)>>2)&1); M4 = lambda: pv(t, 0)
        rV = lambda: rdV((t+1)&1, t+1)
        E = lambda i, j: ex(t, i, j); C = lambda i, j: cv(t, i, j)
        a("s_waitcnt lgkmcnt(0)")
        o = OPT.get("ord", "a")
        if o == "a":
            M1(); rK(); E(0,4); M2(); rV(); E(4,8); C(0,4); M3(); E(8,12); M4(); adv(); E(12,16); C(4,8)
        elif o == "b":
            M1(); rK(); M2(); rV(); E(0,8); C(0,4); M3(); E(8,9); M4(); adv(); E(9,16); C(4,8)
        elif o == "c":
            M1(); rK(); E(0,5); M2(); rV(); E(5,8); C(0,4); M3(); E(8,13); M4(); adv(); E(13,16); C(4,8)
        elif o == "d":
            M1(); rK(); E(0,4); C(0,1); M2(); rV(); E(4,8); C(1,3); M3(); E(8,12); C(3,5); E(12,13); M4(); adv(); E(13,16); C(5,8)
        elif o == "e":
            M1(); rK(); M2(); rV(); M3(); E(0,8); C(0,4); E(8,10); M4(); adv(); E(10,16); C(4,8)
        elif o == "f":
            M1(); E(0,2); rK(); E(2,4); M2(); E(4,6); rV(); E(6,8); C(0,4); M3(); E(8,12); M4(); adv(); E(12,16); C(4,8)
    a(f"s_cbranch_scc1 {tag}_loop")
    stamp("Bloop")
    a("s_nop 1")
    pv(7, 1)

def phaseB():
    TOUCH = "" if OPT.get("tch", "0") == "0" else f"""s_cmp_lg_u32 s3, 10
    s_cbranch_scc1 b_ntch
    v_lshlrev_b32 v121, 16, v116
    s_mov_b32 s12, {WS_O}
    buffer_load_dword v114, v121, s[36:39], s12 offen
    s_mov_b32 s12, {WS_FL}
    buffer_load_dword v113, v121, s[36:39], s12 offen
    buffer_load_dword v112, v121, s[32:35], 0 offen
    s_mov_b32 s12, {64 << 16}
    buffer_load_dword v111, v121, s[32:35], s12 offen
    b_ntch:"""
    a(f"""
    s_cmp_ge_u32 s3, 8
    s_cbranch_scc1 b_aux
    s_and_b32 s4, s2, 31                 ; head
    s_lshr_b32 s5, s2, 5
    s_lshl_b32 s5, s5, 3
    s_add_u32 s5, s5, s3
    s_and_b32 s7, s4, 3
    v_lshlrev_b32 v{vK}, 4, v116
    v_and_b32 v117, 31, v116
    v_lshlrev_b32 v119, 4, v116
    s_lshl_b32 s8, s3, 10
    s_add_u32 s8, s8, {L_Q}
    v_add_u32 v120, s8, v{vK}
    s_lshl_b32 s8, s3, 8
    s_add_u32 s8, s8, {L_Q + 8192}
    v_lshl_add_u32 v118, v117, 3, s8
    """)
    for i in range(16): a(f"v_mov_b32 v{O+i}, 0")
    for i in range(4): a(f"v_mov_b32 v{P+4+i}, 0")
    a(f"""v_and_b32 v121, 27, v116
    v_cmp_eq_u32 vcc, 18, v121
    v_mov_b32 v121, 0x3f803f80
    s_nop 0
    v_cndmask_b32 v{VF[0]}, 0, v121, vcc""")
    for i in range(1, 16): a(f"v_mov_b32 v{VF[0]+i}, v{VF[0]}")
    a(f"""
    v_lshlrev_b32 v{vT}, 3, v116
    v_add_u32 v{vT}, {L_KT}, v{vT}
    v_lshrrev_b32 v121, 5, v116
    v_mul_u32_u24 v121, 288, v121
    v_lshl_add_u32 v{vV}, v117, 4, v121
    v_add_u32 v{vV}, {L_V}, v{vV}
    s_mov_b32 s18, 0x3ffff
    s_mov_b32 s19, 0x3ffff
    s_mov_b32 s21, {f2u(18**-0.5 * 1.4426950408889634):#x}
    v_cmp_lt_u32 s[22:23], 31, v116
    s_setprio 3
    """)
    stamp("Bflag")
    a(f"""
    s_barrier
    ds_read_b128 {vr(Q,4)}, v120
    ds_read_b64 {vr(QL,2)}, v118
    s_waitcnt lgkmcnt(0)
    s_barrier
    """)
    for r in list(range(Q, Q+4)) + [QL, QL+1]:
        a(f"""v_lshlrev_b32 v121, 16, v{r}
        v_and_b32 v{r}, 0xffff0000, v{r}
        v_mul_f32 v121, s21, v121
        v_mul_f32 v{r}, s21, v{r}
        v_cvt_pk_bf16_f32 v{r}, v121, v{r}""")
    a(f"""
    s_cmp_eq_u32 s7, 1
    s_cselect_b32 vcc_lo, -1, 0
    s_mov_b32 vcc_hi, 0
    v_cndmask_b32 v{Q}, v{Q}, 0, vcc
    s_cmp_eq_u32 s7, 2
    s_cselect_b32 vcc_hi, -1, 0
    s_mov_b32 vcc_lo, 0
    v_cndmask_b32 v{Q+3}, v{Q+3}, 0, vcc
    s_cmp_eq_u32 s7, 3
    s_cselect_b64 vcc, -1, 0
    v_cndmask_b32 v{QL}, v{QL}, 0, vcc
    s_cmp_eq_u32 s7, 0
    s_cselect_b64 vcc, -1, 0
    v_cndmask_b32 v{QL+1}, v{QL+1}, 0, vcc
    v_cndmask_b32 v{QH}, 0, v{QL}, s[22:23]
    v_cndmask_b32 v{QH+1}, 0, v{QL+1}, s[22:23]
    v_cndmask_b32 v{QL}, v{QL}, 0, s[22:23]
    v_cndmask_b32 v{QL+1}, v{QL+1}, 0, s[22:23]
    """)
    stamp("Bgo")
    att_run()
    a(f"""
    s_mul_i32 s10, s5, {O_T}
    s_add_u32 s10, s10, {WS_O}
    s_lshl_b32 s11, s4, 10
    s_add_u32 s11, s11, s10
    s_lshl_b32 s12, s4, 7
    s_add_u32 s12, s12, s10
    s_add_u32 s12, s12, 32768
    s_lshl_b32 s59, s5, 5
    s_add_u32 s59, s59, s4
    s_mul_i32 s59, s59, {FS}
    s_add_u32 s59, s59, {FL_B}
    s_mov_b32 s27, {f2u(2.0**100):#x}
    v_lshlrev_b32 v127, 2, v116
    s_nop 1
    v_add_f32 v122, abs(v{O}), abs(v{O+1})
    v_add_f32 v123, abs(v{O+2}), abs(v{O+3})
    v_add_f32 v124, abs(v{O+4}), abs(v{O+5})
    v_add_f32 v125, abs(v{O+6}), abs(v{O+7})
    v_add_f32 v126, abs(v{O+8}), abs(v{O+9})
    v_add_f32 v122, v122, v123
    v_add_f32 v124, v124, v125
    v_add_f32 v126, v126, v{O+10}
    v_add_f32 v122, v122, v124
    v_add_f32 v122, v122, v126
    v_cmp_nle_f32 s[28:29], 1.0, v{O+10}
    v_cmp_ngt_f32 vcc, s27, v122
    s_or_b64 vcc, vcc, s[28:29]
    s_cbranch_vccnz b_slow
    b_fin:
    v_rcp_f32 v121, v{O+10}
    s_nop 0
    """)
    for r in range(10): a(f"v_mul_f32 v{O+r}, v{O+r}, v121")
    for c in range(5): a(f"v_cvt_pk_bf16_f32 v{P+c}, v{O+2*c}, v{O+2*c+1}")
    a(f"""
    buffer_store_dwordx4 {vr(P,4)}, v119, s[36:39], s11 offen sc1
    s_mov_b32 exec_hi, 0
    buffer_store_dword v{P+4}, v127, s[36:39], s12 offen sc1
    s_mov_b32 exec_hi, -1
    v_mov_b32 v0, v116
    s_branch c_start
    """)
    for h in LATER: h()
    a(f"""
    b_aux:
    s_and_b32 s4, s2, 31
    s_mul_i32 s6, s4, 9
    s_lshr_b32 s6, s6, 2
    v_mov_b32 v8, {L_FL}
    s_setprio 3
    s_cmp_lg_u32 s3, 11
    s_cbranch_scc1 b_nopoll
    s_mul_i32 s9, s4, 18
    v_lshrrev_b32 v7, 5, v116
    v_lshl_add_u32 v9, v7, 1, s6
    v_add_u32 v10, 72, v9
    v_lshrrev_b32 v10, 3, v10
    v_and_b32 v11, 31, v116
    v_lshl_add_u32 v10, v10, 5, v11
    v_mul_u32_u24 v120, {FS}, v10
    v_mul_u32_u24 v10, 17, v7
    v_add_u32 v10, s9, v10
    v_add_u32 v10, 1152, v10
    v_lshrrev_b32 v10, 6, v10
    v_lshl_add_u32 v10, v10, 5, v11
    v_mul_u32_u24 v121, {FS}, v10
    v_lshrrev_b32 v10, 3, v9
    s_lshr_b32 s9, s2, 5
    s_lshl_b32 s9, s9, 2
    v_and_b32 v11, 3, v116
    v_add_u32 v11, s9, v11
    v_lshl_add_u32 v10, v10, 5, v11
    v_mul_u32_u24 v122, {FS}, v10
    s_cmp_ge_u32 s2, 224
    s_cselect_b32 s9, 16, 0
    v_add_u32 v9, s9, v8
    b_pw:
    s_sleep 1
    ds_read_b128 v[12:15], v9 offset:416
    s_waitcnt lgkmcnt(0)
    v_or_b32 v12, v12, v13
    v_or3_b32 v12, v12, v14, v15
    v_cmp_eq_u32 vcc, 0, v12
    s_cbranch_vccz b_pw
    """)
    if OPT.get("spw", "1") == "1":
        a("s_cmp_lt_u32 s2, 224\ns_cbranch_scc1 b_pw2_x")
        lds_wait("b_pw2", 8, 400, 12, True)
        a("b_pw2_x:")
    stamp("Xpw")
    flag_poll("b_pa", 3, 120)
    stamp("Xpoll")
    a(f"""
    v_mov_b32 v9, 0
    ds_write_b32 v8, v9 offset:244
    b_nopoll:
    s_bitcmp1_b32 s3, 0
    s_cbranch_scc1 b_ldv
    s_bfe_u32 s7, s4, 0x10001
    s_add_u32 s8, s6, s7
    s_lshl_b32 s8, s8, 9
    s_lshl_b32 s9, s6, 9
    s_mul_i32 s10, s7, {1024 - 8}
    s_sub_u32 s9, s9, s10
    s_add_u32 s9, s9, 1024
    v_lshlrev_b32 v118, 4, v116
    v_lshrrev_b32 v119, 1, v116
    v_lshlrev_b32 v119, 4, v119
    v_and_b32 v120, 1, v116
    v_lshl_add_u32 v119, v120, 2, v119
    s_lshr_b32 s15, s2, 5
    s_mul_i32 s15, s15, {8*QK_T}
    s_cmp_eq_u32 s3, 10
    s_cbranch_scc1 b_ldt
    """)
    def zflag(off):
        a(f"""s_mov_b32 s13, m0
        s_mov_b32 m0, {L_FL + off}
        v_mov_b32 v13, 0x7ffffff0
        s_mov_b64 exec, 1
        buffer_load_dword v13, s[36:39], 0 offen lds
        s_mov_b64 exec, -1
        s_mov_b32 m0, s13""")
    def stream(tag, op, vreg, sbase, lq, lk, step, fl):
        a(f"s_add_u32 s15, s15, {sbase}\ns_add_u32 s16, {sbase}, {72*512}\ns_mov_b32 m0, {lq}\ns_mov_b32 s12, 8")
        lds_wait(f"{tag}_go", 8, 244, 9, True)
        def loop(t, sreg):
            a(f"""{t}:
            {op} v{vreg}, s[36:39], {sreg} offen sc1 lds
            s_add_u32 m0, m0, {step}
            s_add_u32 {sreg}, {sreg}, {QK_T}
            s_sub_u32 s12, s12, 1
            s_cmp_lg_u32 s12, 0
            s_cbranch_scc1 {t}""")
        loop(f"{tag}_q", "s15")
        a(f"s_mov_b32 m0, {lk}\ns_mov_b32 s12, 8")
        loop(f"{tag}_1", "s16")
        stamp("Xiss")
        a("s_mov_b32 s12, 8\ns_waitcnt vmcnt(0)")
        stamp("Xland")
        a("s_barrier\ns_barrier")
        loop(f"{tag}_2", "s16")
        zflag(fl)
        a("s_mov_b32 s12, 48")
        loop(f"{tag}_3", "s16")
        a("s_branch b_lend")
    stream("b_k", "buffer_load_dwordx4", 118, "s8", L_Q, 0, 1024, 464)
    a("b_ldt:")
    stream("b_t", "buffer_load_dword", 119, "s9", L_Q + 8192, L_KT, 256, 468)
    a(f"""
    b_ldv:
    s_mov_b32 s10, {9216 - 288}
    """)
    for p in range(9):
        a(f"""v_add_u32 v10, {64*p}, v116
        v_mul_u32_u24 v11, 3641, v10
        v_lshrrev_b32 v11, 16, v11
        v_mul_lo_u32 v11, v11, s10
        v_lshl_add_u32 v{24+p}, v10, 4, v11""")
    a(f"""
    s_bfe_u32 s9, s3, 0x10001
    s_mul_i32 s8, s9, {32*9216}
    s_mul_i32 s10, s4, 288
    s_add_u32 s8, s8, s10
    s_add_u32 s8, s8, {WS_V}
    s_mul_i32 s9, s9, 9216
    s_add_u32 m0, s9, {L_V}
    s_mov_b32 s12, 0
    """)
    a("s_cmp_eq_u32 s3, 9\ns_cbranch_scc1 b_v_go\ns_barrier\ns_barrier\ns_branch b_v")
    lds_wait("b_v_go", 8, 244, 9, True)
    a("b_v:")
    for p in range(9): a(f"buffer_load_dwordx4 v{24+p}, s[36:39], s8 offen sc1 lds\ns_add_u32 m0, m0, {1024 if p < 8 else 1024 + 9216}\ns_nop 0")
    a(f"""
    s_add_u32 s8, s8, {64*9216}
    s_cmp_lg_u32 s12, 0
    s_cbranch_scc1 b_v1
    s_cmp_eq_u32 s3, 9
    s_cbranch_scc1 b_v0
    """)
    zflag(472)
    a(f"""
    s_branch b_v1
    b_v0:
    s_waitcnt vmcnt(0)
    s_barrier
    s_barrier
    b_v1:
    s_add_u32 s12, s12, 1
    s_cmp_lt_u32 s12, 4
    s_cbranch_scc1 b_v
    b_lend:
    s_waitcnt vmcnt(0)
    s_barrier
    s_setprio {OPT.get("aprio", 0)}
    """)
    srd(28, 94, 663552)
    srd(32, 96, 4718592)
    a(f"""
    ; bring wo close (one dword per 128-byte line; speed only)
    s_lshr_b32 s12, s2, 3
    s_lshl_b32 s12, s12, 2
    s_add_u32 s12, s12, s3
    s_sub_u32 s12, s12, 8
    s_lshl_b32 s12, s12, 13
    v_lshlrev_b32 v121, 7, v116
    buffer_load_dword v115, v121, s[28:31], s12 offen
    {TOUCH}
    s_cmp_lg_u32 s3, {99 if ("nossm" in OPT or "noconv" in OPT) else 9}
    s_cbranch_scc1 b_noy
    s_mov_b32 s4, s2
    v_lshrrev_b32 v10, 3, v116
    v_and_b32 v9, 7, v116
    v_lshlrev_b32 v11, 12, v10
    v_lshl_add_u32 v11, v9, 4, v11
    v_xor_b32 v12, v10, v9
    v_lshlrev_b32 v12, 4, v12
    v_lshl_add_u32 v12, v9, 10, v12
    v_add_u32 v12, {L_BOUNCE}, v12
    s_mov_b32 s50, 0x05040100
    s_mov_b32 s51, 0x07060302
    """)
    for p in range(8): a(f"v_xor_b32 v{24+p}, {16*p}, v11")
    a(f"""
    b_y:
    s_lshr_b32 s5, s4, 5
    s_and_b32 s6, s4, 31                 ; sub
    s_lshl_b32 s7, s5, 7
    s_lshr_b32 s8, s6, 4
    s_add_u32 s7, s7, s8
    v_lshl_add_u32 v120, v116, 1, s7
    v_mul_u32_u24 v120, {FS}, v120
    v_add_u32 v120, {FL_Y}, v120
    """)
    flag_poll("b_py", 1, 120)
    a(f"""
    s_lshl_b32 s7, s5, 18
    s_lshl_b32 s8, s6, 7
    s_add_u32 s7, s7, s8
    s_add_u32 s7, s7, {WS_Y}
    s_mov_b32 m0, {L_BOUNCE}
    """)
    for p in range(8):
        a(f"s_nop 0\nbuffer_load_dwordx4 v{24+p}, s[36:39], s7 offen sc1 lds\ns_add_u32 m0, m0, 1024\ns_add_u32 s7, s7, 32768")
    a(f"""
    s_and_b32 s8, s6, 3
    s_lshl_b32 s8, s8, 3
    s_bfe_u32 s9, s6, 0x10002
    s_lshl_b32 s9, s9, 7
    s_add_u32 s8, s8, s9
    s_lshr_b32 s9, s6, 3
    s_lshl_b32 s9, s9, 9
    s_add_u32 s8, s8, s9
    v_add_u32 v17, s8, v10
    v_mul_u32_u24 v17, 2304, v17
    v_lshl_add_u32 v17, v9, 4, v17
    s_lshl_b32 s8, s5, 7
    s_add_u32 s8, s8, 1152
    s_waitcnt vmcnt(0)
    """)
    for j in range(8): a(f"ds_read_b128 {vr(32+4*j,4)}, v12 offset:{j*128}")
    a("s_waitcnt lgkmcnt(0)")
    transpose8(32, 64, 50, 51)
    for c in range(8):
        a(f"s_add_u32 s9, s8, {((c&3)*32 + (c>>2)*256)*2304}\nbuffer_store_dwordx4 {vr(64+4*c,4)}, v17, s[32:35], s9 offen {OPT.get('sty','sc1')}")
    a(f"""
    s_add_u32 s4, s4, 256
    s_cmp_lt_u32 s4, 288
    s_cbranch_scc1 b_y
    b_noy:
    s_setprio 0
    v_mov_b32 v0, v116
    s_lshr_b32 s5, s2, 5                 ; tn
    s_mul_i32 s17, s5, 192
    """)
    for t in range(3):
        a(f"""v_add_u32 v5, {64*t}, v0
        v_mul_u32_u24 v6, 5462, v5
        v_lshrrev_b32 v6, 16, v6             ; row
        v_mul_u32_u24 v7, 12, v6
        v_sub_u32 v7, v5, v7
        v_lshl_add_u32 v7, v7, 4, s17
        v_mul_u32_u24 v8, 1152, v6
        v_add_u32 v{12+t}, v8, v7
        v_and_b32 v9, 4, v6
        v_lshrrev_b32 v10, 3, v6
        v_lshl_add_u32 v9, v10, 1, v9
        v_bfe_u32 v10, v6, 1, 1
        v_add_u32 v9, v9, v10
        v_mul_u32_u24 v9, 18, v9
        v_and_b32 v10, 1, v6
        v_add3_u32 v9, v9, v10, 16
        v_mul_u32_u24 v9, 1152, v9
        v_add_u32 v{16+t}, v9, v7""")
    a(f"""
    s_sub_u32 s8, s3, 8
    s_mul_i32 s10, s8, {9*20736}
    s_mul_i32 s11, s8, {9*3072}
    s_add_u32 s12, s11, {L_V - 18*3072}
    s_cmp_ge_u32 s8, 2
    s_cselect_b32 m0, s12, s11
    s_mov_b32 s12, 20736
    s_mov_b32 s13, 0
    s_cmp_ge_u32 s2, 192
    s_cbranch_scc1 b_wend
    v_and_b32 v9, 7, v0
    v_lshlrev_b32 v9, 2, v9
    v_add_u32 v9, {L_KT}, v9
    s_setprio 3
    b_hw:
    s_sleep 4
    ds_read_b32 v10, v9
    s_waitcnt lgkmcnt(0)
    v_cmp_ne_u32 vcc, s92, v10
    s_cbranch_vccnz b_hw
    b_w:
    s_lshl_b32 s11, s8, 4
    s_add_u32 s11, s11, s13
    s_cmp_eq_u32 s11, {16 + 7}
    s_cselect_b32 m0, {L_KT + 6144}, m0
    s_cmp_lg_u32 s11, {48 + 5}
    s_cbranch_scc1 b_w1
    v_mov_b32 v12, v16
    v_mov_b32 v13, v17
    v_mov_b32 v14, v18
    s_mov_b32 s10, 0
    s_mov_b32 s12, {8*20736}
    b_w1:
    buffer_load_dwordx4 v12, s[28:31], s10 offen lds
    s_add_u32 m0, m0, 1024
    s_add_u32 s13, s13, 1
    buffer_load_dwordx4 v13, s[28:31], s10 offen lds
    s_add_u32 m0, m0, 1024
    s_nop 0
    buffer_load_dwordx4 v14, s[28:31], s10 offen lds
    s_add_u32 m0, m0, 1024
    s_add_u32 s10, s10, s12
    s_cmp_lt_u32 s13, 9
    s_cbranch_scc1 b_w
    b_wend:
    s_setprio 0
    s_mov_b32 s59, 0
    s_waitcnt vmcnt(0)
    """)

def phaseC():
    a("c_start:")
    srd(32, 96, 4718592)
    a(f"""
    s_and_b32 s4, s2, 7
    s_bfe_u32 s6, s2, 0x20003
    s_lshl_b32 s7, s4, 2
    s_add_u32 s7, s7, s6                 ; tm
    s_lshr_b32 s5, s2, 5                 ; tn
    s_mul_i32 s8, s3, 43
    s_lshr_b32 s8, s8, 7                 ; w/3
    s_mul_i32 s9, s8, 3
    s_sub_u32 s9, s3, s9                 ; tb = w%3
    s_lshr_b32 s13, s8, 1                ; kh
    s_and_b32 s14, s8, 1                 ; ta
    v_lshrrev_b32 v5, 5, v0
    v_bfe_u32 v6, v0, 2, 2
    v_lshl_add_u32 v6, v5, 2, v6
    v_mul_u32_u24 v4, 192, v6
    v_bfe_u32 v6, v0, 4, 1
    v_lshl_add_u32 v4, v6, 5, v4
    v_and_b32 v6, 3, v0
    v_lshl_add_u32 v4, v6, 3, v4
    s_lshl_b32 s17, s9, 6
    s_mul_i32 s18, s13, {L_V}
    s_add_u32 s17, s17, s18
    v_add_u32 v4, s17, v4
    s_mul_i32 s18, s13, {L_KT + 6144 - 16*3072}
    s_sub_u32 s18, {L_KT + 6144 - 16*3072}, s18
    v_add_u32 v9, s18, v4
    s_mul_i32 s18, s7, {64*FS}
    s_add_u32 s18, s18, {FL_B}
    v_mul_u32_u24 v120, {FS}, v0
    v_add_u32 v120, s18, v120
    s_cmp_eq_u32 s59, 0
    s_cbranch_scc1 c_nf
    s_waitcnt vmcnt(0)
    """)
    stamp("Back")
    flag_set("s59", 2)
    a("c_nf:\ns_cmp_ge_u32 s2, 192\ns_cbranch_scc1 c_idle\ns_waitcnt lgkmcnt(0)\ns_barrier")
    stamp("Bbar")
    a("s_cmp_lg_u32 s3, 8\ns_cbranch_scc1 c_ni")
    poll_issue(1, 120)
    a("c_ni:")
    for k in range(18):
        va = 4 if k < 16 else 9
        a(f"ds_read_b64_tr_b16 {vr(128+4*k if k < 9 else 32+4*(k-9),2)}, v{va} offset:{k*3072}\nds_read_b64_tr_b16 {vr(130+4*k if k < 9 else 34+4*(k-9),2)}, v{va} offset:{k*3072+8*192}")
        if k % 4 == 3: a("s_waitcnt lgkmcnt(6)")
    a(f"""
    v_lshlrev_b32 v2, 4, v0
    s_mul_i32 s17, s8, {18*1024}
    v_add_u32 v3, s17, v2
    v_and_b32 v11, 31, v0
    v_lshlrev_b32 v11, 2, v11
    v_lshl_add_u32 v11, v5, 9, v11
    v_add_u32 v11, s17, v11
    v_add_u32 v11, {14*1024}, v11
    s_lshl_b32 s15, s7, 1
    s_add_u32 s15, s15, s14
    s_mul_i32 s16, s15, {O_T}
    s_mul_i32 s18, s13, {18*1024}
    s_add_u32 s16, s16, s18
    s_lshl_b32 s18, s9, 10
    s_add_u32 s16, s16, s18
    s_add_u32 s16, s16, {WS_O}
    s_add_u32 m0, s17, s18
    s_cmp_lg_u32 s3, 8
    s_cbranch_scc1 c_np
    """)
    flag_poll("c_pb", 1, 120, issued=True)
    a("c_np:\ns_waitcnt lgkmcnt(0)\ns_barrier")
    stamp("Cflag")
    for i in range(6):
        a("buffer_load_dwordx4 v2, s[36:39], s16 offen sc1 lds")
        if i < 5: a("s_add_u32 m0, m0, 3072\ns_add_u32 s16, s16, 3072")
    a(f"""
    v_and_b32 v6, 19, v0
    v_bfe_u32 v7, v0, 2, 1
    v_lshl_add_u32 v6, v7, 3, v6
    v_bfe_u32 v7, v0, 3, 1
    v_lshl_add_u32 v6, v7, 2, v6         ; token inside the tile
    v_mul_u32_u24 v6, 400, v6
    v_lshl_add_u32 v6, v5, 4, v6
    s_mul_i32 s18, s8, {32*400}
    s_lshl_b32 s19, s9, 7
    s_add_u32 s18, s18, s19
    s_add_u32 s18, s18, 81920
    v_add_u32 v6, s18, v6
    s_lshl_b32 s18, s3, 6
    v_add_u32 v7, s18, v0
    v_mul_u32_u24 v8, 5462, v7
    v_lshrrev_b32 v8, 16, v8             ; row
    v_mul_u32_u24 v10, 12, v8
    v_sub_u32 v10, v7, v10
    v_mul_u32_u24 v7, 400, v8
    v_lshl_add_u32 v7, v10, 5, v7
    v_add_u32 v7, 81920, v7
    v_mul_u32_u24 v5, 2304, v8
    v_lshl_add_u32 v5, v10, 4, v5
    s_mul_i32 s17, s7, {64*2304}
    s_mul_i32 s18, s5, 192
    s_add_u32 s17, s17, s18
    """)
    wf = lambda k: vr(128+4*k if k < 9 else 32+4*(k-9), 4)
    NC = int(OPT.get("nc", 3)); CK = 18 // NC
    for c in range(NC):
        a(f"s_waitcnt vmcnt({6 - (c+1)*CK//3})\ns_barrier")
        if c == 0: stamp("Cfirst")
        ks = list(range(c*CK, (c+1)*CK))
        reg = lambda k: 72 + 4*(k % 6)
        plain = [k for k in ks if k < 14]; tail = [k for k in ks if k >= 14]
        for k in plain: a(f"ds_read_b128 {vr(reg(k),4)}, v3 offset:{k*1024}")
        if tail:
            a(f"s_cmp_eq_u32 s13, 1\ns_cbranch_scc1 c_tl{c}")
            for k in tail: a(f"ds_read_b128 {vr(reg(k),4)}, v3 offset:{k*1024}")
            a(f"s_branch c_tm{c}\nc_tl{c}:")
            for k in tail:
                a(f"""ds_read2_b32 {vr(reg(k),2)}, v11 offset0:0 offset1:32
                ds_read2_b32 {vr(reg(k)+2,2)}, v11 offset0:64 offset1:96
                v_add_u32 v11, 1024, v11""")
            a(f"s_waitcnt lgkmcnt(0)\nc_tm{c}:")
        for i, k in enumerate(ks):
            a(f"s_waitcnt lgkmcnt({CK-1-i})")
            a(f"v_mfma_f32_32x32x16_bf16 v[16:31], {wf(k)}, {vr(reg(k),4)}, " + ("0" if k == 0 else "v[16:31]"))
    stamp("Cmfma")
    a("s_nop 11")
    for rq in range(4): a(f"ds_write_b128 v6, {vr(16+4*rq,4)} offset:{32*rq}")
    a("s_waitcnt lgkmcnt(0)\ns_barrier")
    stamp("Cx")
    a(f"""ds_read_b128 v[32:35], v7
    ds_read_b128 v[36:39], v7 offset:16
    ds_read_b128 v[40:43], v7 offset:{64*400}
    ds_read_b128 v[44:47], v7 offset:{64*400+16}
    s_waitcnt lgkmcnt(0)""")
    for r in range(8): a(f"v_add_f32 v{32+r}, v{32+r}, v{40+r}")
    for c in range(4): a(f"v_cvt_pk_bf16_f32 v{48+c}, v{32+2*c}, v{32+2*c+1}")
    stamp("Ccvt")
    a(f"buffer_store_dwordx4 v[48:51], v5, s[32:35], s17 offen {OPT.get('sto','')}")
    stamp("Cst")
    a("k_done2:")
    if DIAG and "dmax" in OPT:
        a(f"""s_load_dwordx2 s[80:81], s[0:1], 88
        s_waitcnt vmcnt(0)
        s_memrealtime s[74:75]
        s_waitcnt lgkmcnt(0)
        {"s_mov_b32 s72, s74" if DIAG == "end" else ""}
        s_cmp_eq_u32 s72, 0
        s_cbranch_scc1 dg_n
        dg_d:
        s_sleep 20
        s_memrealtime s[78:79]
        s_waitcnt lgkmcnt(0)
        s_sub_u32 s77, s78, s70
        s_cmp_lt_u32 s77, 4000
        s_cbranch_scc1 dg_d
        s_lshl_b32 s76, s72, 8
        s_or_b32 s76, s76, s2
        s_lshl_b32 s77, s70, 8
        s_not_b32 s77, s77
        v_mov_b32 v2, 0
        v_mov_b32 v3, s76
        v_mov_b32 v4, s77
        s_mov_b64 exec, 1
        global_atomic_umax v2, v3, s[80:81] sc1
        global_atomic_umax v2, v4, s[80:81] offset:128 sc1
        s_mov_b64 exec, -1
        dg_n:
        s_cmp_lg_u32 s2, 0
        s_cbranch_scc1 k_done
        s_cmp_lg_u32 s3, 4
        s_cbranch_scc1 k_done
        dg_w:
        s_memrealtime s[78:79]
        s_waitcnt lgkmcnt(0)
        s_sub_u32 s77, s78, s70
        s_cmp_lt_u32 s77, 14000
        s_cbranch_scc1 dg_w
        v_mov_b32 v2, 0
        global_load_dword v3, v2, s[80:81] sc1
        global_load_dword v4, v2, s[80:81] offset:128 sc1
        s_waitcnt vmcnt(0)
        v_readfirstlane_b32 s76, v3
        v_readfirstlane_b32 s77, v4
        s_nop 3
        s_not_b32 s77, s77
        {"s_and_b32 s76, s76, 255" if OPT["dmax"] == "id" else "s_sub_u32 s76, s76, s77"}
        {"s_mul_i32 s76, s76, 25" if OPT["dmax"] == "id" else "s_lshr_b32 s76, s76, 8"}
        s_min_u32 s76, s76, 10000
        s_lshl_b32 s76, s76, 2
        s_add_u32 s76, s76, 15000
        dg_spin:
        s_memrealtime s[78:79]
        s_waitcnt lgkmcnt(0)
        s_sub_u32 s77, s78, s70
        s_cmp_lt_u32 s77, s76
        s_cbranch_scc1 dg_spin""")
    elif DIAG:
        a(f"""s_cmp_lg_u32 s2, {OPT.get("dwg", 0)}
        s_cbranch_scc1 k_done
        s_cmp_lg_u32 s3, {OPT.get("dw", 4)}
        s_cbranch_scc1 k_done
        s_waitcnt vmcnt(0)
        s_memrealtime s[74:75]
        s_waitcnt lgkmcnt(0)
        {"s_mov_b32 s72, s74" if DIAG == "end" else "s_mov_b32 s72, s70" if DIAG == "none" else ""}
        s_sub_u32 s76, s72, s70
        s_min_u32 s76, s76, 10000
        s_lshl_b32 s76, s76, 2
        s_add_u32 s76, s76, 5000
        dg_spin:
        s_memrealtime s[78:79]
        s_waitcnt lgkmcnt(0)
        s_sub_u32 s77, s78, s70
        s_cmp_lt_u32 s77, s76
        s_cbranch_scc1 dg_spin""")
    stamp_out()
    a(f"""k_done:
    s_endpgm
    c_idle:
    s_cmp_lg_u32 s2, 255
    s_cbranch_scc1 k_done2
    s_cmp_lg_u32 s3, 7
    s_cbranch_scc1 k_done2
    v_lshrrev_b32 v120, 5, v116
    v_lshlrev_b32 v120, 8, v120
    v_and_b32 v121, 31, v116
    v_add_u32 v120, v120, v121
    v_mul_u32_u24 v120, {FS}, v120
    v_add_u32 v120, {FL_B}, v120
    v_add_u32 v121, {512*FS}, v120
    v_add_u32 v122, {1024*FS}, v120
    v_add_u32 v123, {1536*FS}, v120
    """)
    flag_poll("c_pe", 4, 120)
    a(f"s_mov_b32 s6, {FL_E}")
    flag_set("s6", 2)
    a("s_branch k_done2")
    a(f"""
    b_slow:
    s_mul_i32 s6, s4, 9
    s_lshr_b32 s6, s6, 2
    s_bfe_u32 s7, s4, 0x10001
    s_add_u32 s8, s6, s7
    s_lshl_b32 s8, s8, 9
    s_add_u32 s8, s8, {72*512}
    s_lshl_b32 s9, s6, 9
    s_mul_i32 s13, s7, {1024 - 8}
    s_sub_u32 s9, s9, s13
    s_add_u32 s9, s9, {72*512 + 1024}
    s_mul_i32 s13, s4, 288
    s_add_u32 s13, s13, {WS_V}
    v_lshlrev_b32 v118, 4, v117
    v_lshrrev_b32 v120, 5, v116
    v_mul_u32_u24 v120, 9216, v120
    v_add_u32 v120, v120, v118
    v_mov_b32 v121, 0xff800000
    s_waitcnt lgkmcnt(0)
    """)
    def scores(c):
        a(f"""buffer_load_dwordx4 {vr(KF[0],4)}, v119, s[36:39], s14 offen sc1
        buffer_load_dwordx2 {vr(TF[0],2)}, v118, s[36:39], s15 offen sc1
        s_add_u32 s14, s14, {QK_T}
        s_add_u32 s15, s15, {QK_T}
        s_waitcnt vmcnt(0)
        v_mfma_f32_32x32x16_bf16 {vr(S[0],16)}, {vr(KF[0],4)}, {vr(Q,4)}, {c}
        v_mfma_f32_32x32x8_bf16 {vr(S[0],16)}, {vr(TF[0],2)}, {vr(QL,2)}, {vr(S[0],16)}
        s_nop 15""")
    a("s_mov_b32 s14, s8\ns_mov_b32 s15, s9\ns_mov_b32 s26, 0\nb_mx:")
    scores("0")
    for r in range(8): a(f"v_max3_f32 v121, v{S[0]+2*r}, v{S[0]+2*r+1}, v121")
    a(f"""
    s_add_u32 s26, s26, 1
    s_cmp_lt_u32 s26, 64
    s_cbranch_scc1 b_mx
    v_mov_b32 v122, v121
    s_nop 1
    v_permlane32_swap_b32 v121, v122
    s_nop 1
    v_max_f32 v121, v121, v122
    """)
    for i in range(16): a(f"v_sub_f32 v{NEG+i}, 0, v121\nv_mov_b32 v{O+i}, 0")
    a(f"""s_mov_b32 s14, s8
    s_mov_b32 s15, s9
    s_mov_b32 s26, 0
    b_sl:
    s_add_u32 s16, s13, {2*9216}
    s_mov_b64 exec, s[18:19]
    buffer_load_dwordx4 {vr(VF[0],4)}, v120, s[36:39], s13 offen sc1
    buffer_load_dwordx4 {vr(VF[0]+4,4)}, v120, s[36:39], s16 offen sc1
    s_mov_b64 exec, -1
    s_add_u32 s13, s13, {4*9216}""")
    scores(vr(NEG,16))
    ex(0, 0, 16); cv(0, 0, 8)
    a("s_nop 1")
    pv(0, 0); pv(0, 1)
    a("""s_add_u32 s26, s26, 1
    s_cmp_lt_u32 s26, 64
    s_cbranch_scc1 b_sl
    s_nop 15
    s_branch b_fin
    k_last:""")

def main():
    ref = open("concat_heads__mha_block__ssm_conv_s4d__prompt.s.ref").read().split("\n")
    head = [l for l in ref if l.startswith(";") and "@launch" not in l and "Override launch" not in l and "grid=ceil" not in l]
    head += ["; @launch grid=(256,1,1) block=(768,1,1) lds=163840"]
    a(f".text\n.globl {KN}\n.p2align 8\n.type {KN},@function\n{KN}:")
    if INSTR:
        for i in range(70, 90): a(f"s_mov_b32 s{i}, 0")
        a("s_memtime s[70:71]\ns_memrealtime s[86:87]")
    if DIAG: a("s_mov_b32 s72, 0\ns_memrealtime s[70:71]")
    phaseA(); phaseB(); phaseC()
    desc = f""".section .rodata,"a"
.p2align 6
.amdhsa_kernel {KN}
  .amdhsa_next_free_vgpr 168
  .amdhsa_next_free_sgpr 102
  .amdhsa_accum_offset 168
  .amdhsa_group_segment_fixed_size 0
  .amdhsa_kernarg_size 104
  .amdhsa_user_sgpr_count 2
  .amdhsa_user_sgpr_kernarg_segment_ptr 1
  .amdhsa_system_sgpr_workgroup_id_x 1
.end_amdhsa_kernel
"""
    out = "\n".join(head) + "\n.amdgcn_target \"amdgcn-amd-amdhsa--gfx950\"\n" + a.text() + desc
    path = sys.argv[1] if len(sys.argv) > 1 and sys.argv[1].endswith(".s") else "concat_heads__mha_block__ssm_conv_s4d__prompt.s"
    open(path, "w").write(out)
main()
```

```python
import sys, struct
KN = "concat_heads__mha_block__ssm_conv_s4d__prompt_kernel"
def f2u(x): return struct.unpack("<I", struct.pack("<f", x))[0]
INSTR = "instr" in sys.argv
OPT = dict(x.split("=") for x in sys.argv if "=" in x)

WS_QK = 0; QK_T = 73728
WS_V = WS_QK + 64 * QK_T
WS_O = WS_V + 256 * 9216; O_T = 36864
WS_U = WS_O + 64 * O_T
WS_Y = WS_U + 576 * 4096
WS_FL = WS_Y + 576 * 4096
FS = 128
FL_A = 0; FL_S = 864 * FS; FL_Y = FL_S + 288 * FS; FL_B = FL_Y + 1152 * FS; FL_E = FL_B + 2048 * FS
WS_END = WS_FL + FL_E + FS
WS_ST = 24 << 20
L_FL = 155648
KC = 4156
KAREA = 8448
L_KT = 65536; L_V = 81920; L_BOUNCE = 155648; L_Q = 102400

class A:
    def __init__(s): s.l = []
    def __call__(s, t):
        for line in t.strip("\n").split("\n"):
            q = line.strip()
            if not q: continue
            s.l.append(q if q.endswith(":") else "    " + q)
    def text(s): return "\n".join(s.l) + "\n"
a = A()
def vr(b, n): return f"v[{b}:{b+n-1}]"
def srd(d, lo, size):
    a(f"""s_mov_b32 s{d}, s{lo}
    s_mov_b32 s{d+1}, s{lo+1}
    s_mov_b32 s{d+2}, {size}
    s_mov_b32 s{d+3}, 0x20000""")

SSETS = {"1": ["Aend", "Aack", "Bflag", "Bgo", "Bloop", "Back"],
         "2": ["Bgo", "Bloop", "Back", "Cflag", "Cfirst", "Cmfma"],
         "5": ["Bloop", "Bbar", "Cmfma", "Cx", "Ccvt", "Cst"],
         "4": ["Aack", "Xpw", "Xpoll", "Xiss", "Xland", "Bgo"],
         "3": ["Afirst", "Akgen", "Abuilt", "Aconv", "Aend", "Aack"]}
DIAG = OPT.get("diag")
def stamp(name):
    if DIAG == name: a("s_memrealtime s[72:73]")
    if INSTR and name in SSETS[OPT.get("sset", "1")]:
        i = SSETS[OPT.get("sset", "1")].index(name) + 1
        a(f"s_memtime s[{70+2*i}:{71+2*i}]")
def stamp_out():
    if not INSTR: return
    a(f"""s_waitcnt vmcnt(0)
    s_memtime s[84:85]
    s_memrealtime s[88:89]
    s_waitcnt lgkmcnt(0)
    s_mov_b64 exec, 1
    s_lshl_b32 s90, s2, 4
    s_add_u32 s90, s90, s3
    s_lshl_b32 s90, s90, 6
    s_add_u32 s90, s90, {WS_ST}
    v_mov_b32 v166, s90""")
    for i in range(10):
        a(f"v_mov_b32 v167, s{70+2*i}\nglobal_store_dword v166, v167, s[24:25] offset:{4*i}")

def transpose8(I, O, sLO, sHI):
    for c in range(8):
        for t in range(4):
            a(f"v_perm_b32 v{O+4*c+t}, v{I+4*(2*t+1)+(c>>1)}, v{I+4*(2*t)+(c>>1)}, s{sHI if c&1 else sLO}")

def flag_set(soff, t):
    if OPT.get("ffl", "0") == "1":
        a(f"""v_mbcnt_lo_u32_b32 v{t}, -1, 0
        v_mov_b32 v{t+1}, s92
        v_lshl_add_u32 v{t}, v{t}, 2, s93
        s_mov_b32 exec_hi, 0
        buffer_store_dword v{t+1}, v{t}, s[36:39], {soff} offen sc1
        s_mov_b32 exec_hi, -1""")
    else:
        a(f"""v_mov_b32 v{t}, {WS_FL}
        v_mov_b32 v{t+1}, s92
        s_mov_b64 exec, 1
        buffer_store_dword v{t+1}, v{t}, s[36:39], {soff} offen {OPT.get('sfl', 'sc1').replace('+', ' ')}
        s_mov_b64 exec, -1""")
def poll_issue(n, t):
    for i in range(n): a(f"buffer_load_dword v{t+4+i}, v{t+i}, s[36:39], s93 offen {OPT.get('pfl', 'sc1').replace('+', ' ')}")
def flag_poll(tag, n, t, issued=False):
    a("s_mov_b32 s91, 0")
    if issued: a(f"s_branch {tag}_c")
    a(f"{tag}:")
    poll_issue(n, t)
    a(f"{tag}_c:\ns_add_u32 s91, s91, 1\ns_waitcnt vmcnt(0)")
    for i in range(n): a(f"v_xor_b32 v{t+4+i}, s92, v{t+4+i}")
    for i in range(1, n): a(f"v_or_b32 v{t+4}, v{t+4}, v{t+4+i}")
    a(f"""v_cmp_ne_u32 vcc, 0, v{t+4}
    s_cbranch_vccz {tag}_x
    s_mov_b64 exec, vcc
    s_sleep {OPT.get("slp", 2)}
    s_cmp_lt_u32 s91, 0x80000
    s_cbranch_scc1 {tag}
    {tag}_x:
    s_mov_b64 exec, -1""")
def lds_wait(tag, vaddr, off, t, slp=False):
    a(f"""{tag}:
    {"s_sleep 1" if slp else ""}
    ds_read_b32 v{t}, v{vaddr} offset:{off}
    s_waitcnt lgkmcnt(0)
    v_cmp_eq_u32 vcc, 0, v{t}
    s_cbranch_vccz {tag}""")
def kargs():
    a(f"""s_waitcnt lgkmcnt(0)
    s_add_u32 s68, s24, {WS_FL + FL_E}
    s_addc_u32 s69, s25, 0
    s_load_dword s92, s[68:69], 0""")
    srd(36, 24, WS_END)

def ufetch(tag):
    a(f"""
    s_sub_u32 s43, s3, 8
    s_lshl_b32 s40, s2, 1
    s_add_u32 s40, s40, s43              ; channel
    s_lshl_b32 s44, s43, 13
    s_add_u32 m0, s44, 147968
    s_lshr_b32 s46, s40, 6
    s_mul_i32 s46, s46, {32*FS}
    s_add_u32 s46, s46, {FL_S}
    v_and_b32 v10, 31, v0
    v_mul_u32_u24 v10, {FS}, v10
    v_add_u32 v10, s46, v10
    v_lshlrev_b32 v12, 4, v0
    v_mov_b32 v13, 0x7ffffff0
    s_lshl_b32 s44, s40, 12
    s_add_u32 s44, s44, {WS_U}
    s_mov_b32 exec_hi, 0
    """)
    flag_poll(tag, 1, 10)
    for i in range(4): a(f"buffer_load_dwordx4 v12, s[36:39], s44 offen offset:{1024*i} sc1 lds")
    a(f"""s_lshl_b32 s43, s43, 2
    s_add_u32 m0, s43, {L_FL + 448}
    s_mov_b64 exec, 1
    buffer_load_dword v13, s[36:39], 0 offen lds
    s_mov_b64 exec, -1""")

def phaseA():
    mod9 = """
    s_mul_i32 s49, s48, 57
    s_lshr_b32 s49, s49, 9
    s_mul_i32 s49, s49, 9
    s_sub_u32 s48, s48, s49"""
    ROT = {"wg": "s_lshl_b32 s48, s40, 1\ns_add_u32 s48, s48, s41" + mod9, "none": "s_mov_b32 s48, 0",
           "three": "s_and_b32 s48, s27, 3\ns_lshr_b32 s49, s27, 2\ns_add_u32 s48, s48, s49\ns_mul_i32 s48, s48, 3\ns_add_u32 s48, s48, s26" + mod9,
           "two5": "s_and_b32 s48, s27, 1\ns_lshr_b32 s49, s27, 2\ns_xor_b32 s48, s48, s49\ns_and_b32 s48, s48, 1\ns_mul_i32 s48, s48, 5\ns_add_u32 s48, s48, s26" + mod9,
           "twox": "s_and_b32 s48, s27, 1\ns_lshr_b32 s49, s27, 2\ns_xor_b32 s48, s48, s49\ns_and_b32 s48, s48, 1\ns_lshl_b32 s48, s48, 2\ns_and_b32 s49, s26, 3\ns_add_u32 s48, s48, s49\ns_lshr_b32 s49, s26, 2\ns_lshl_b32 s49, s49, 1\ns_add_u32 s48, s48, s49" + mod9,
           "wgb": "s_and_b32 s48, s27, 3\ns_mul_i32 s48, s48, 9\ns_lshr_b32 s48, s48, 2\ns_lshr_b32 s49, s27, 2\ns_mul_i32 s49, s49, 4\ns_add_u32 s48, s48, s49\ns_add_u32 s48, s48, s26" + mod9,
           "wgm": "s_and_b32 s48, s27, 3\ns_mul_i32 s48, s48, 9\ns_lshr_b32 s48, s48, 2\ns_add_u32 s48, s48, s26" + mod9,
           "two": "s_and_b32 s48, s27, 1\ns_lshr_b32 s49, s27, 2\ns_xor_b32 s48, s48, s49\ns_and_b32 s48, s48, 1\ns_lshl_b32 s48, s48, 2\ns_add_u32 s48, s48, s26" + mod9,
           "xcd": "s_and_b32 s48, s26, 3\ns_lshl_b32 s48, s48, 1\ns_lshr_b32 s49, s26, 2\ns_mul_i32 s49, s49, 5\ns_add_u32 s48, s48, s49" + mod9}[OPT.get("rot", "two")]
    LIN = "" if OPT.get("lin", "0") == "0" else f"""s_lshl_b32 s57, s2, 1
    s_add_u32 s57, s57, s56
    s_mul_i32 s57, s57, {42*128}
    v_lshlrev_b32 v12, 7, v0
    s_mov_b32 exec_hi, 0x3ff
    buffer_load_dword v13, v12, s[28:31], s57 offen
    s_mov_b32 exec_hi, -1"""
    a(f"""
    s_cmp_ge_u32 s2, 256
    s_cbranch_scc1 k_done
    v_lshrrev_b32 v1, 6, v0
    v_and_b32 v0, 63, v0
    v_readfirstlane_b32 s3, v1
    v_mov_b32 v23, {L_FL}
    s_cmp_lg_u32 s3, 9
    s_cbranch_scc1 a_noarm
    v_mov_b32 v14, -1
    v_mov_b32 v15, -1
    v_lshl_add_u32 v16, v0, 3, v23
    ds_write_b64 v16, v[14:15]
    s_waitcnt lgkmcnt(0)
    a_noarm:
    s_load_dwordx16 s[4:19], s[0:1], 0
    s_load_dwordx4 s[20:23], s[0:1], 64
    s_load_dwordx2 s[24:25], s[0:1], 96
    s_load_dwordx2 s[96:97], s[0:1], 80
    s_load_dwordx2 s[94:95], s[0:1], 16
    s_add_u32 s26, s3, 8
    s_sub_u32 s27, s3, 4
    s_cmp_lt_u32 s3, 4
    {"" if OPT.get("remap", "1") == "0" else "s_cselect_b32 s3, s26, s27           ; the waves that start first take the loader role (8..11)"}
    s_and_b32 s26, s2, 7
    s_lshr_b32 s27, s2, 3
    s_and_b32 s40, s26, 3
    s_lshl_b32 s40, s40, 2
    s_and_b32 s44, s27, 3
    s_add_u32 s40, s40, s44
    s_lshr_b32 s41, s26, 2
    s_mul_i32 s41, s41, 7
    s_lshr_b32 s44, s27, 2
    s_add_u32 s41, s41, s44
    s_mov_b32 s93, {WS_FL}
    s_cmp_ge_u32 s3, 8
    s_cbranch_scc1 a_aux
    s_cmp_lt_u32 s3, 4
    s_cbranch_scc1 a_ssm
    s_branch a_gemm
    a_aux:
    s_cmp_ge_u32 s27, 28
    s_cbranch_scc1 a_task
    {ROT}
    s_bfe_u32 s56, s3, 0x10001
    s_bitcmp1_b32 s3, 0
    s_cbranch_scc1 a_ldw
    v_lshrrev_b32 v4, 3, v0
    v_lshrrev_b32 v5, 2, v4
    v_lshlrev_b32 v5, 3, v5
    v_and_b32 v6, 3, v4
    v_add_u32 v5, v5, v6
    s_lshl_b32 s44, s40, 7
    v_add_u32 v5, s44, v5
    v_mul_u32_u24 v5, 1152, v5
    v_lshrrev_b32 v6, 1, v4
    v_and_b32 v7, 7, v0
    v_xor_b32 v6, v6, v7
    v_lshl_add_u32 v2, v6, 4, v5
    v_xor_b32 v6, 4, v6
    v_lshl_add_u32 v3, v6, 4, v5
    v_add_u32 v3, {4608-1024}, v3
    s_mov_b32 s50, 128
    s_mov_b32 s51, 18432
    s_mov_b32 s52, 0
    s_waitcnt lgkmcnt(0)
    s_mov_b32 s28, s4
    s_mov_b32 s29, s5
    s_mov_b32 s30, 2359296
    s_branch a_ld
    a_ldw:
    v_lshrrev_b32 v5, 4, v0
    v_mul_u32_u24 v2, 3456, v5
    v_lshlrev_b32 v5, 2, v5
    v_and_b32 v6, 15, v0
    v_xor_b32 v5, v5, v6
    v_lshl_add_u32 v2, v5, 4, v2
    s_lshl_b32 s44, s41, 8
    v_add_u32 v2, s44, v2
    v_add_u32 v3, {13824-1024}, v2
    s_mov_b32 s50, 221184
    s_mov_b32 s51, 27648
    s_mov_b32 s52, 16384
    s_waitcnt lgkmcnt(0)
    s_mov_b32 s28, s6
    s_mov_b32 s29, s7
    s_mov_b32 s30, 1990656
    a_ld:
    s_setprio {OPT.get("lprio", 0)}
    s_mov_b32 s31, 0x20000
    {LIN}
    s_mul_i32 s57, s56, s51
    s_lshl_b32 s57, s57, 2
    s_lshl_b32 s56, s56, 13
    s_add_u32 s52, s52, s56
    s_and_b32 s58, s3, 3
    s_lshl_b32 s58, s58, 2
    s_add_u32 s58, s58, {L_FL}
    v_mov_b32 v4, 0x7ffffff0
    s_mov_b32 s53, 0
    """)
    kargs()
    a(f"""
    a_ld_loop:
    s_cmp_lt_u32 s53, 4
    s_cbranch_scc1 a_ld_go
    a_ld_poll:
    ds_read_b128 v[8:11], v23 offset:160
    s_waitcnt lgkmcnt(0)
    v_or_b32 v8, v8, v9
    v_or3_b32 v8, v8, v10, v11
    v_cmp_eq_u32 vcc, 0, v8
    s_cbranch_vccz a_ld_poll
    v_add_u32 v23, 16, v23
    a_ld_go:
    s_mul_i32 s47, s48, s50
    s_add_u32 s47, s47, s57
    s_and_b32 s55, s53, 3
    s_lshl_b32 s55, s55, 15
    s_add_u32 m0, s55, s52
    s_add_u32 s48, s48, 1
    """)
    for p in range(4):
        a(f"buffer_load_dwordx4 v2, s[28:31], s47 offen {OPT.get('ldf','')} lds\nbuffer_load_dwordx4 v3, s[28:31], s47 offen offset:1024 {OPT.get('ldf','')} lds")
        if p < 3: a("s_add_u32 m0, m0, 2048\ns_add_u32 s47, s47, s51")
    a(f"""
    s_cmp_eq_u32 s48, 9
    s_cselect_b32 s48, 0, s48
    s_cmp_lg_u32 s53, 0
    s_cbranch_scc1 a_ld_nb
    s_barrier
    a_ld_nb:
    s_mov_b32 m0, s58
    s_mov_b64 exec, 1
    buffer_load_dword v4, s[28:31], 0 offen lds
    s_mov_b64 exec, -1
    s_add_u32 s58, s58, 16
    s_add_u32 s53, s53, 1
    s_cmp_lt_u32 s53, 9
    s_cbranch_scc1 a_ld_loop
    """)
    a("v_mov_b32 v116, v0\ns_waitcnt lgkmcnt(0)\ns_add_u32 s92, s92, 0x9e3779b1\ns_cmp_ge_u32 s3, 10\ns_cbranch_scc1 b_aux\na_uf:")
    ufetch("a_pu")
    a("s_branch b_aux")
    CPF = "" if OPT.get("cpf", "1") == "0" else f"""
    ; read this kernel's own code once per XCD so that later instruction fetches find it in L2 (speed only)
    s_getpc_b64 s[44:45]
    a_pc:
    s_lshl_b32 s46, s27, 2
    s_add_u32 s46, s46, s3
    s_sub_u32 s46, s46, 4
    s_lshl_b32 s46, s46, 8
    s_min_u32 s46, s46, k_last - {KN} - 256
    s_sub_u32 s44, s44, a_pc - {KN}
    s_subb_u32 s45, s45, 0
    s_add_u32 s44, s44, s46
    s_addc_u32 s45, s45, 0
    v_lshlrev_b32 v60, 6, v0
    v_mov_b32 v61, s45
    v_add_co_u32 v60, vcc, s44, v60
    s_mov_b64 exec, 15
    s_nop 0
    v_addc_co_u32 v61, vcc, 0, v61, vcc
    global_load_dword v62, v[60:61], off
    s_mov_b64 exec, -1"""
    a(f"""
    a_gemm:
    {CPF}
    s_cmp_ge_u32 s27, 28
    s_cbranch_scc1 a_ssm
    s_barrier
    """)
    kargs()
    if OPT.get("tcha", "0") == "1":
        a(f"""s_cmp_lg_u32 s3, 5
        s_cbranch_scc1 a_ntch
        v_lshlrev_b32 v60, 18, v0
        buffer_load_dword v63, v60, s[36:39], 0 offen
        a_ntch:""")
    a(f"""
    s_sub_u32 s45, s3, 4
    s_and_b32 s42, s45, 1                ; mw
    s_lshr_b32 s43, s45, 1               ; nw
    s_lshl_b32 s58, s45, 2
    s_add_u32 s58, s58, {L_FL + 160}
    v_mov_b32 v22, 0x7ffffff0
    v_and_b32 v5, 31, v0
    v_lshrrev_b32 v6, 5, v0
    s_lshl_b32 s44, s42, 6
    v_add_u32 v7, s44, v5
    v_lshlrev_b32 v7, 7, v7
    v_bfe_u32 v5, v5, 1, 3
    v_xor_b32 v5, v5, v6
    """)
    for j in range(4):
        a(f"v_xor_b32 v20, {2*j}, v5\nv_lshl_add_u32 v{8+j}, v20, 4, v7\nv_add_u32 v{12+j}, 0x10000, v{8+j}")
    a(f"""
    v_bfe_u32 v5, v0, 2, 2
    v_lshl_add_u32 v7, v6, 3, v5
    v_lshlrev_b32 v7, 8, v7
    v_bfe_u32 v20, v0, 4, 1
    v_lshl_add_u32 v7, v20, 5, v7
    v_and_b32 v20, 1, v0
    v_lshl_add_u32 v7, v20, 4, v7
    v_and_b32 v20, 2, v0
    v_lshl_add_u32 v7, v20, 2, v7
    v_add_u32 v7, 16384, v7
    s_lshl_b32 s44, s43, 1
    v_xor_b32 v5, s44, v5
    v_lshl_add_u32 v16, v5, 6, v7
    v_xor_b32 v5, 1, v5
    v_lshl_add_u32 v17, v5, 6, v7
    v_add_u32 v18, 0x10000, v16
    v_add_u32 v19, 0x10000, v17
    s_setprio {OPT.get('gprio', 2)}
    s_waitcnt lgkmcnt(0)
    s_add_u32 s92, s92, 0x9e3779b1
    s_lshl_b32 s46, s40, 1
    s_add_u32 s46, s46, s42
    s_lshl_b32 s47, s41, 1
    s_add_u32 s47, s47, s43
    s_lshl_b32 s59, s47, 5
    s_add_u32 s59, s59, s46
    s_mul_i32 s59, s59, {FS}
    s_cmp_ge_u32 s41, 9
    s_cbranch_scc1 a_gemm_v""")
    FB = [24, 40, 128]
    def reads(stage, j, fb):
        slot = stage & 3; hi = slot >> 1; base = (slot & 1) * 32768
        return [f"ds_read_b128 {vr(fb,4)}, v{8+4*hi+j} offset:{base}",
                f"ds_read_b64_tr_b16 {vr(fb+8,2)}, v{16+2*hi} offset:{base+j*4096}",
                f"ds_read_b64_tr_b16 {vr(fb+10,2)}, v{16+2*hi} offset:{base+j*4096+1024}",
                f"ds_read_b64_tr_b16 {vr(fb+12,2)}, v{17+2*hi} offset:{base+j*4096}",
                f"ds_read_b64_tr_b16 {vr(fb+14,2)}, v{17+2*hi} offset:{base+j*4096+1024}",
                f"ds_read_b128 {vr(fb+4,4)}, v{8+4*hi+j} offset:{base+4096}"]
    def mfmas(fb, vor, first):
        out = []
        for (ta, tb) in ((0,0),(0,1),(1,0),(1,1)):
            acc = vr(64 + 16*(2*ta+tb), 16); X = vr(fb+4*ta, 4); W = vr(fb+8+4*tb, 4)
            out.append(f"v_mfma_f32_32x32x16_bf16 {acc}, " + (f"{X}, {W}" if vor else f"{W}, {X}") + ", " + ("0" if first else acc))
        return out
    def check(tag, st, first_read):
        if not first_read:
            a(f"""v_or_b32 v56, v56, v57
            v_or3_b32 v56, v56, v58, v59
            v_cmp_eq_u32 vcc, 0, v56
            s_cbranch_vccnz {tag}_ok""")
        a(f"""{tag}_p:
        ds_read_b128 v[56:59], v23 offset:{16*st}
        s_waitcnt lgkmcnt(0)
        v_or_b32 v56, v56, v57
        v_or3_b32 v56, v56, v58, v59
        v_cmp_eq_u32 vcc, 0, v56
        s_cbranch_vccz {tag}_p
        {tag}_ok:""")
    def mainloop(vor):
        check(f"a_c{int(vor)}_0", 0, True)
        stamp("Afirst")
        a("\n".join(reads(0, 0, FB[0]) + reads(0, 1, FB[1])))
        for g in range(36):
            st, j = divmod(g, 4)
            a(f"s_waitcnt lgkmcnt({6 if g < 35 else 0})")
            m = mfmas(FB[g % 3], vor, g == 0)
            a(m[0])
            if j == 1 and st < 8: a(f"ds_read_b128 v[56:59], v23 offset:{16*(st+1)}")
            if j == 2 and st < 8: check(f"a_c{int(vor)}_{st+1}", st+1, False)
            if j == 3 and st < 5: a(f"s_add_u32 m0, s58, {16*st}\ns_mov_b64 exec, 1\nbuffer_load_dword v22, s[36:39], 0 offen lds\ns_mov_b64 exec, -1")
            rd = reads((g+2)//4, (g+2)%4, FB[(g+2) % 3]) if g + 2 < 36 else []
            a("\n".join(rd[:3])); a(m[1]); a("\n".join(rd[3:])); a(m[2]); a(m[3])
            if g == 15: stamp("G4")
        stamp("Aconv"); stamp("Gloop")
    a(f"""
    s_mul_i32 s44, s46, {2*QK_T}
    s_lshl_b32 s45, s47, 12
    s_add_u32 s44, s44, s45
    s_add_u32 s45, s44, {QK_T}
    v_lshlrev_b32 v2, 4, v0
    """)
    mainloop(False)
    for ta in range(2):
        for tb in range(2):
            acc = 64 + 16*(2*ta+tb); o = 24 + 8*(2*ta+tb)
            if ta + tb == 0: a("s_nop 8")
            for r in range(8): a(f"v_cvt_pk_bf16_f32 v{o+r}, v{acc+2*r}, v{acc+2*r+1}")
            for hh in range(2): a(f"buffer_store_dwordx4 {vr(o+4*hh,4)}, v2, s[36:39], s{44+ta} offen offset:{tb*2048+hh*1024} {OPT.get('stq','sc1').replace('+',' ')}")
    a(f"""s_branch a_gemm_end
    a_gemm_v:
    v_and_b32 v5, 19, v0
    v_bfe_u32 v6, v0, 2, 1
    v_lshl_add_u32 v5, v6, 3, v5
    v_bfe_u32 v6, v0, 3, 1
    v_lshl_add_u32 v5, v6, 2, v5         ; feature inside the tile
    v_lshrrev_b32 v6, 5, v0
    v_mul_u32_u24 v6, 9216, v6
    v_lshl_add_u32 v2, v5, 4, v6
    s_sub_u32 s45, s47, 18
    s_lshl_b32 s45, s45, 10
    s_mul_i32 s44, s46, {8*9216}
    s_add_u32 s44, s44, s45
    s_add_u32 s44, s44, {WS_V}
    """)
    mainloop(True)
    a("s_cmp_ge_u32 s47, 27\ns_cbranch_scc1 a_end")
    for ta in range(2):
        for tb in range(2):
            acc = 64 + 16*(2*ta+tb); o = 24 + 8*(2*ta+tb)
            if ta + tb == 0: a("s_nop 8")
            for r in range(8): a(f"v_cvt_pk_bf16_f32 v{o+r}, v{acc+2*r}, v{acc+2*r+1}")
            for hh in range(2): a(f"s_add_u32 s45, s44, {(4*ta+2*hh)*9216}\nbuffer_store_dwordx4 {vr(o+4*hh,4)}, v2, s[36:39], s45 offen offset:{tb*512} {OPT.get('stq','sc1').replace('+',' ')}")
    a("a_gemm_end:")
    if OPT.get("early", "0") == "1":
        a(f"""s_lshl_b32 s44, s3, 2
        s_add_u32 s44, s44, {L_FL}
        v_mov_b32 v4, s44
        v_mov_b32 v5, 0
        ds_write_b32 v4, v5 offset:400""")
    stamp("Aend")
    a("s_waitcnt vmcnt(0)")
    stamp("Aack")
    flag_set("s59", 2)
    a("s_branch a_end")

    a(f"""
    a_task:
    s_cmp_eq_u32 s3, 11
    s_cbranch_scc1 a_fetch
    s_sub_u32 s44, s2, 224
    s_lshr_b32 s45, s44, 1               ; B
    s_and_b32 s46, s44, 1                ; es
    s_sub_u32 s47, 16, s3
    s_lshl_b32 s59, s47, 5
    s_add_u32 s59, s59, s44
    s_mul_i32 s59, s59, {FS}
    s_add_u32 s59, s59, {FL_S}
    s_lshl_b32 s48, s45, 3
    s_add_u32 s48, s48, s46
    s_mul_i32 s48, s48, {16*1152}
    s_lshl_b32 s49, s47, 7
    s_add_u32 s48, s48, s49
    v_lshrrev_b32 v10, 3, v0
    v_and_b32 v9, 7, v0
    v_mul_u32_u24 v11, 1152, v10
    v_lshl_add_u32 v11, v9, 4, v11
    v_xor_b32 v12, v10, v9
    v_lshlrev_b32 v12, 4, v12
    v_lshl_add_u32 v12, v9, 10, v12
    s_mul_i32 s49, s3, 24576
    s_sub_u32 s49, s49, {8*24576 - 57344}
    v_add_u32 v12, s49, v12
    s_mov_b32 m0, s49
    v_lshlrev_b32 v17, 15, v10
    v_lshl_add_u32 v17, v9, 4, v17
    s_lshl_b32 s60, s47, 18
    s_lshl_b32 s45, s45, 7
    s_lshl_b32 s46, s46, 11
    s_add_u32 s60, s60, s45
    s_add_u32 s60, s60, s46
    s_add_u32 s60, s60, {WS_U}
    s_mov_b32 s50, 0x05040100
    s_mov_b32 s51, 0x07060302
    """)
    for p in range(8): a(f"v_xor_b32 v{24+p}, {16*p}, v11")
    kargs()
    srd(28, 10, 2359296)
    def uload():
        for p in range(8):
            a(f"""s_add_u32 s49, s48, {((p>>1)*32 + (p&1)*8)*1152}
            buffer_load_dwordx4 v{24+p}, s[28:31], s49 offen lds
            s_add_u32 m0, m0, 1024""")
        a("s_sub_u32 s48, s48, 384")
    def uproc(i):
        for j in range(8): a(f"ds_read_b128 {vr(32+4*j,4)}, v12 offset:{i*8192 + j*128}")
        a("s_waitcnt lgkmcnt(0)")
        transpose8(32, [64, 96, 128][i], 50, 51)
    def ustore(i):
        for c in range(8):
            a(f"s_add_u32 s49, s60, {c*4096}\nbuffer_store_dwordx4 {vr([64, 96, 128][i]+4*c,4)}, v17, s[36:39], s49 offen sc1")
        a(f"s_sub_u32 s60, s60, {3<<18}")
    def uflag():
        flag_set("s59", 2)
        a(f"s_sub_u32 s59, s59, {96*FS}")
    uload()
    a("s_barrier\ns_mov_b32 s52, 0\ns_cmp_eq_u32 s3, 10\ns_cbranch_scc1 a_t1\ns_setprio 3\ns_waitcnt vmcnt(0)\na_t0:")
    uproc(0); ustore(0)
    a("s_add_u32 s92, s92, 0x9e3779b1\ns_setprio 0\ns_cmp_eq_u32 s3, 10\ns_cbranch_scc1 a_t2\na_t1:")
    uload(); uload()
    a("s_waitcnt vmcnt(16)\ns_cmp_eq_u32 s3, 10\ns_cbranch_scc1 a_t0")
    uflag()
    a("s_mov_b32 s52, 1\na_t2:\ns_waitcnt vmcnt(8)")
    uproc(1)
    a("s_waitcnt vmcnt(0)\ns_cmp_eq_u32 s52, 1\ns_cbranch_scc1 a_t3")
    uflag()
    a("a_t3:")
    ustore(1); uproc(2)
    a("s_waitcnt vmcnt(0)")
    uflag(); ustore(2)
    a("s_branch a_gemm_end\na_fetch:\ns_barrier")
    kargs()
    a(f"""
    v_mul_u32_u24 v10, {FS}, v0
    v_add_u32 v10, {FL_S + 224*FS}, v10
    v_lshlrev_b32 v12, 4, v0
    v_mov_b32 v13, 0x7ffffff0
    s_lshl_b32 s44, s2, 13
    s_add_u32 s44, s44, {WS_U}
    s_waitcnt lgkmcnt(0)
    s_add_u32 s92, s92, 0x9e3779b1
    s_sleep {OPT.get("fslp", 32)}
    """)
    flag_poll("a_pf", 1, 10)
    for p in range(4):
        a(f"s_mov_b32 m0, {[147968, 156160, 40960, 49152][p]}\ns_add_u32 s45, s44, {(p&1)*4096 + (p>>1)*64*4096}")
        for i in range(4): a(f"buffer_load_dwordx4 v12, s[36:39], s45 offen offset:{1024*i} sc1 lds")
        a(f"""s_mov_b32 m0, {L_FL + 448 + 4*p}
        s_mov_b64 exec, 1
        buffer_load_dword v13, s[36:39], 0 offen lds
        s_mov_b64 exec, -1""")
    a("s_branch a_end")

    L2E = f2u(1.4426950408889634); L2E_LO = f2u(1.4426950408889634 - struct.unpack("<f", struct.pack("<I", L2E))[0])
    LN2 = f2u(0.6931471805599453)
    z0 = list(range(9)) + [14,15,16,20,21,24,25]
    z1 = [9,9,10,11,11,11,12,13,13,17,18,19,22,23,26,27]
    def pack(z, lo):
        v = 0
        for r in range(lo, lo+8): v |= (z[r]-r) << (4*(r-lo))
        return v
    a(f"""
    a_ssm:
    s_and_b32 s41, s3, 1                 ; half
    s_bfe_u32 s45, s3, 0x10001
    s_lshl_b32 s40, s2, 1
    s_add_u32 s40, s40, s45
    s_add_u32 s46, s40, {512 - 448}
    s_mul_i32 s42, s45, {KAREA}
    s_add_u32 s47, s42, 16384
    s_add_u32 s42, s42, 131072
    s_cmp_ge_u32 s3, 4
    s_cselect_b32 s40, s46, s40          ; channel
    s_cselect_b32 s42, s47, s42
    s_lshr_b32 s43, s3, 1
    s_lshl_b32 s43, s43, 13
    s_add_u32 s47, s43, {40960 - 16384}
    s_add_u32 s43, s43, 147968
    s_cmp_ge_u32 s3, 4
    s_cselect_b32 s43, s47, s43
    s_lshl_b32 s45, s40, 7
    s_lshl_b32 s46, s41, 6
    s_add_u32 s45, s45, s46
    v_add_u32 v2, s45, v0
    v_lshlrev_b32 v2, 1, v2
    s_lshl_b32 s45, s40, 1
    v_mov_b32 v3, s45
    s_waitcnt lgkmcnt(0)
    global_load_ushort v4, v3, s[20:21]
    global_load_ushort v6, v2, s[12:13]
    global_load_ushort v7, v2, s[14:15]
    global_load_ushort v8, v2, s[16:17]
    global_load_ushort v9, v2, s[18:19]
    global_load_ushort v5, v3, s[22:23]
    s_barrier
    """)
    kargs()
    a(f"""
    v_and_b32 v14, 31, v0
    v_and_b32 v16, 3, v14
    v_lshrrev_b32 v17, 3, v14
    v_lshl_add_u32 v16, v17, 2, v16
    v_mov_b32 v17, {pack(z0,0):#x}
    v_mov_b32 v18, {pack(z0,8):#x}
    v_mov_b32 v19, {pack(z1,0):#x}
    v_mov_b32 v20, {pack(z1,8):#x}
    v_cmp_lt_u32 vcc, 7, v16
    v_and_b32 v21, 4, v14
    v_and_b32 v22, 7, v16
    v_cndmask_b32 v17, v17, v18, vcc
    v_cndmask_b32 v19, v19, v20, vcc
    v_cmp_ne_u32 vcc, 0, v21
    v_lshlrev_b32 v22, 2, v22
    v_lshrrev_b32 v15, 5, v0
    v_cndmask_b32 v17, v17, v19, vcc
    v_bfe_u32 v17, v17, v22, 4
    v_add_u32 v17, v17, v16
    v_lshlrev_b32 v15, 2, v15
    s_mov_b32 s50, 0x3f80
    """)
    for (zr, dst) in ((14, 40), (17, 48)):
        a(f"""v_and_b32 v18, 1, v{zr}
        v_lshlrev_b32 v18, 4, v18
        v_lshlrev_b32 v18, v18, s50
        v_lshrrev_b32 v19, 1, v{zr}
        v_sub_u32 v19, v19, v15""")
        for d in range(8): a(f"v_cmp_eq_u32 s[{52+2*d}:{53+2*d}], {8*(d>>2) + (d&3)}, v19")
        for d in range(8): a(f"v_cndmask_b32 v{dst+d}, 0, v18, s[{52+2*d}:{53+2*d}]")
    a(f"""
    s_mov_b32 s50, {L2E:#x}
    s_mov_b32 s51, {L2E_LO:#x}
    s_mov_b32 s52, {LN2:#x}
    s_mov_b32 s53, {f2u(248.0):#x}
    s_mov_b32 s54, {f2u(8.0):#x}
    s_waitcnt vmcnt(0) lgkmcnt(0)
    s_add_u32 s92, s92, 0x9e3779b1
    """)
    stamp("Afirst")
    if "nossm" in OPT: a("s_branch a_end")
    def exp_bf16(x, t, lo):
        a(f"""v_mul_f32 v{t}, s50, v{x}
        v_fma_f32 v{lo}, v{x}, s50, -v{t}
        v_exp_f32 v{t}, v{t}
        v_fma_f32 v{lo}, v{x}, s51, v{lo}
        v_mul_f32 v{lo}, s52, v{lo}
        v_fma_f32 v{t}, v{t}, v{lo}, v{t}
        v_cvt_pk_bf16_f32 v{t}, v{t}, v{t}
        v_lshlrev_b32 v{x}, 16, v{t}""")
    for r in range(4, 10): a(f"v_lshlrev_b32 v{r}, 16, v{r}")
    exp_bf16(4, 20, 21)
    exp_bf16(6, 20, 21)
    a("""
    v_mul_f32 v6, v6, v4
    v_mul_f32 v7, v7, v4
    v_mul_f32 v8, v8, v4
    v_mul_f32 v9, v9, v4
    v_mul_f32 v6, s50, v6                ; -Re(z)*log2e
    v_mul_f32 v7, 0.15915494, v7         ; Im(z)/(2pi)
    v_add_f32 v8, v8, v8
    v_mul_f32 v9, -2.0, v9
    """)
    DL = [8, 1, 2, 4, 248]
    DS = {8: "s54", 1: "1.0", 2: "2.0", 4: "4.0", 248: "s53"}
    MR = {d: 24 + 2*i for i, d in enumerate(DL)}
    def mkE(d):
        a(f"""v_mul_f32 v21, {DS[d]}, v6
        v_mul_f32 v22, {DS[d]}, v7
        v_exp_f32 v21, -v21
        v_fract_f32 v22, v22
        v_cos_f32 v20, v22
        v_sin_f32 v22, v22
        v_mul_f32 v{MR[d]}, v21, v20
        v_mul_f32 v{MR[d]+1}, v21, v22""")
    P = 56; Dt = 88; YO = 120; ACC = 152
    R = lambda z: 34 + 2*(z % 3)
    def chain(dl, conj, mid=None):
        n = "-" if conj else ""; p = "" if conj else "-"
        for z in range(len(dl) + 1):
            cur, nxt = R(z), R(z+1)
            if z < len(dl):
                W = MR[dl[z]]
                a(f"v_mul_f32 v{nxt}, v{cur}, v{W}\nv_mul_f32 v{nxt+1}, v{cur+1}, v{W}")
            if z & 1: a(f"v_cvt_pk_bf16_f32 v{P+(z>>1)}, v{R(z-1)}, v{cur}")
            if z < len(dl): a(f"v_fma_f32 v{nxt}, {p}v{cur+1}, v{W+1}, v{nxt}\nv_fma_f32 v{nxt+1}, {n}v{cur}, v{W+1}, v{nxt+1}")
            if z & 1: a(f"v_cvt_pk_bf16_f32 v{P+16+(z>>1)}, v{R(z-1)+1}, v{cur+1}")
            if mid and z == 4: mid()
    def swaps(comp):
        for pr in range(2):
            for t in range(4): a(f"v_permlane32_swap_b32 v{P+16*comp+8*pr+t}, v{P+16*comp+8*pr+4+t}")
    def tmfma(comp, sel):
        for blk in range(2): a(f"v_mfma_f32_32x32x16_bf16 {vr(Dt+16*blk,16)}, {vr(P+16*comp+4*blk,4)}, {vr(sel,4)}, 0")
        for blk in range(2): a(f"v_mfma_f32_32x32x16_bf16 {vr(Dt+16*blk,16)}, {vr(P+16*comp+8+4*blk,4)}, {vr(sel+4,4)}, {vr(Dt+16*blk,16)}")
    def tcvt(dst):
        for i in range(16): a(f"v_cvt_pk_bf16_f32 v{dst+i}, v{Dt+2*i}, v{Dt+2*i+1}")
    mkE(8)
    a(f"v_mov_b32 v{R(0)}, 1.0\nv_mov_b32 v{R(0)+1}, 0")
    chain([8]*31, False)
    mkE(1); swaps(0); swaps(1); tmfma(0, 40); mkE(2); mkE(4); tcvt(YO); tmfma(1, 40); mkE(248)
    a(f"v_mov_b32 v{R(0)}, v8\nv_mov_b32 v{R(0)+1}, v9")
    deltas = [1]*8 + [248] + [2]*4 + [248] + [4]*2 + [248] + [4]*2 + [248, 8, 248, 8, 248, 8, 248, 8]
    chain(deltas, True, mid=lambda: tcvt(YO+16))
    a("v_lshl_add_u32 v21, s41, 6, v0\nv_cmp_eq_u32 vcc, 0, v21\nv_sub_u32 v21, 63, v0")
    swaps(0); swaps(1); tmfma(0, 48)
    a(f"""
    v_cndmask_b32 v5, 0, v5, vcc
    v_lshl_add_u32 v21, v21, 4, s42
    s_lshl_b32 s46, s3, 4
    v_add_u32 v22, s46, v23
    v_xor_b32 v20, 16, v22               ; partner's
    v_mov_b32 v19, 0
    s_nop 5
    """)
    tcvt(P); tmfma(1, 48)
    for i in range(4): a(f"v_mfma_f32_32x32x16_bf16 {vr(ACC,16)}, {vr(P+4*i,4)}, {vr(YO+4*i,4)}, " + ("0" if i == 0 else vr(ACC,16)))
    a("s_nop 7")
    tcvt(P+16)
    a("s_nop 1")
    for i in range(4, 8): a(f"v_mfma_f32_32x32x16_bf16 {vr(ACC,16)}, {vr(P+4*i,4)}, {vr(YO+4*i,4)}, {vr(ACC,16)}")
    stamp("Akgen")
    if "noconv" in OPT: a("s_branch a_end")
    CA = 24; CU = 68; CF = 132
    for i in range(44): a(f"v_mov_b32 v{CA+i}, 0")
    for i in range(32): a(f"v_mov_b32 v{CU+i}, 0")
    a(f"""
    v_and_b32 v12, 31, v0
    v_lshrrev_b32 v13, 5, v0             ; h
    v_lshlrev_b32 v16, 5, v12
    v_lshl_add_u32 v16, v13, 4, v16
    s_lshl_b32 s45, s41, 7
    s_sub_u32 s44, s43, s45
    s_sub_u32 s44, s44, 96
    v_add_u32 v16, s44, v16
    s_lshl_b32 s45, s41, 2
    v_lshlrev_b32 v17, 3, v13
    v_sub_u32 v17, v17, v12
    v_lshlrev_b32 v17, 1, v17            ; 2*(8h - b)
    v_and_b32 v18, 1, v12
    v_cmp_eq_u32 s[56:57], 1, v18        ; b odd
    v_xor_b32 v18, 1, v18
    v_mul_u32_u24 v18, {KC + 2}, v18
    s_lshl_b32 s46, s41, 8
    s_sub_u32 s46, s42, s46
    s_add_u32 s46, s46, {62 + 120*32}
    v_add3_u32 v17, v17, v18, s46
    v_subrev_u32 v18, 2048, v17
    v_add_f32 v{ACC}, v{ACC}, v5
    v_lshl_add_u32 v133, v0, 2, s42
    s_add_u32 s46, s43, 4096
    v_lshl_add_u32 v138, v0, 4, s46
    """)
    for G in range(4): a(f"v_add_u32 v{134+G}, {(3-G)*1024 + KC}, v21")
    a(f"""
    s_cmp_ge_u32 s27, 28
    s_cbranch_scc1 a_s_g2
    a_s_w2:
    ds_read_b128 v[8:11], v23 offset:128
    s_waitcnt lgkmcnt(0)
    v_or_b32 v8, v8, v9
    v_or3_b32 v8, v8, v10, v11
    v_cmp_eq_u32 vcc, 0, v8
    s_cbranch_vccnz a_s_g2
    s_sleep 1
    s_branch a_s_w2
    a_s_g2:
    s_setprio 3
    s_cmp_eq_u32 s41, 0
    s_cbranch_scc1 a_s_even
    """)
    d = lambda r: f"v{ACC+r}" if r < 16 else f"v{r-24}"
    units = [
      (0, 0, [(7,6),(5,4),(3,2),(1,0)]), (0, 1, [(8,7),(6,5),(4,3),(2,1)]),
      (1, 0, [(11,11),(10,10),(10,9),(9,9)]), (1, 1, [(11,11),(11,10),(10,10),(9,9)]),
      (2, 0, [(13,13),(13,32),(12,12),(12,12)]), (2, 1, [(13,13),(13,13),(32,12),(12,12)]),
      (3, 0, [(15,15),(15,33),(14,14),(14,14)]), (3, 1, [(15,15),(15,15),(33,14),(14,14)])]
    def build(us):
        for ui in us:
            G, cp, prs = units[ui]; o = 100 + 4*ui
            for t, (lo, hi) in enumerate(prs): a(f"v_cvt_pk_bf16_f32 v{o+t}, {d(lo)}, {d(hi)}")
            if cp == 0: a(f"ds_write_b128 v21, {vr(o,4)} offset:{(3-G)*1024}")
            else: a(f"ds_write2_b32 v{134+G}, v{o}, v{o+1} offset0:0 offset1:1\nds_write2_b32 v{134+G}, v{o+2}, v{o+3} offset0:2 offset1:3")
    for i in range(3): a(f"ds_write_b128 v138, {vr(ACC+4*i,4)} offset:{1024*i}")
    a("ds_write_b32 v22, v19 offset:256")
    lds_wait("a_s_o0", 20, 256, 8)
    a("ds_read_b128 v[140:143], v21\ns_waitcnt lgkmcnt(0)")
    for i in range(4): a(f"v_add_f32 v{ACC+12+i}, v{ACC+12+i}, v{140+i}")
    a(f"v_cndmask_b32 v8, {d(12)}, {d(13)}, s[56:57]\nv_cndmask_b32 v9, {d(14)}, {d(15)}, s[56:57]")
    build([4, 5, 6, 7])
    a(f"s_branch a_s_u\na_s_even:\nds_write_b128 v21, {vr(ACC+12,4)}\nds_write_b32 v22, v19 offset:256")
    lds_wait("a_s_e0", 20, 256, 8)
    for i in range(3): a(f"ds_read_b128 {vr(140+4*i,4)}, v138 offset:{1024*i}")
    a("v_cmp_eq_u32 vcc, 0, v0\ns_waitcnt lgkmcnt(0)")
    for i in range(12): a(f"v_add_f32 v{ACC+i}, v{ACC+i}, v{140+i}")
    build([0, 1, 2, 3])
    a(f"""
    v_cvt_pk_bf16_f32 v132, {d(0)}, v19
    s_mov_b64 exec, 0x7fff
    ds_write_b32 v133, v19 offset:4096   ; zeros behind both copies; the odd copy ends with K[0]
    s_mov_b64 exec, 0xffff
    v_cndmask_b32 v132, 0, v132, vcc
    ds_write_b32 v133, v132 offset:{4096 + KC}
    s_mov_b64 exec, -1
    a_s_u:
    ds_write_b32 v22, v19 offset:268
    s_setprio 0
    s_lshr_b32 s46, s3, 1
    s_lshl_b32 s46, s46, 2
    v_add_u32 v9, s46, v23
    """)
    lds_wait("a_s_uw", 9, 448, 8)
    for q in range(4):
        a(f"s_add_u32 s46, s45, {q}\ns_lshl_b32 exec_lo, -1, s46\ns_mov_b32 exec_hi, exec_lo")
        for es in range(2): a(f"ds_read_b128 {vr(CU+8*q+4*es,4)}, v16 offset:{es*2048 + (3-q)*32}")
        a("s_mov_b64 exec, -1")
        for es in range(2): a(f"ds_read_b128 {vr(CU+32+8*q+4*es,4)}, v16 offset:{es*2048 + 1024 + (3-q)*32}")
        if q == 2: a("s_waitcnt lgkmcnt(4)")
    lds_wait("a_s_o1", 20, 268, 8)
    stamp("Abuilt")
    steps = [(k, q, es) for k in range(4) for q in range(4) for es in range(2)]
    def frd(i):
        k, q, es = steps[i]; b = CF + 8*(i & 3); o = (6 - 2*q + es) * 8
        if q == 0 and es == 0 and k: a("v_subrev_u32 v17, 512, v17\nv_subrev_u32 v18, 512, v18")
        a(f"""ds_read2_b32 {vr(b,2)}, v17 offset0:{o} offset1:{o+1}
        ds_read2_b32 {vr(b+2,2)}, v17 offset0:{o+2} offset1:{o+3}
        ds_read2_b32 {vr(b+4,2)}, v18 offset0:{o} offset1:{o+1}
        ds_read2_b32 {vr(b+6,2)}, v18 offset0:{o+2} offset1:{o+3}""")
    for i in range(3): frd(i)
    for i, (k, q, es) in enumerate(steps):
        b = CF + 8*(i & 3); U0 = vr(CU+8*q+4*es, 4); U1 = vr(CU+32+8*q+4*es, 4)
        lo = vr(CA+4*k, 16); hi = vr(CA+16+4*k, 16)
        w = f"s_waitcnt lgkmcnt({4*min(2, 31-i)})"
        a(w)
        if q == 0 and es == 0 and k: a("s_nop 9")
        a(f"v_mfma_f32_32x32x16_bf16 {lo}, {U0}, {vr(b,4)}, {lo}")
        a(f"v_mfma_f32_32x32x16_bf16 {hi}, {U1}, {vr(b,4)}, {hi}")
        if i + 3 < 32: frd(i+3)
        a(f"v_mfma_f32_32x32x16_bf16 {hi}, {U0}, {vr(b+4,4)}, {hi}")
    stamp("Aconv")
    a(f"""
    ds_write_b32 v22, v19 offset:260
    s_lshl_b32 s46, s41, 12
    s_add_u32 s46, s46, s42
    v_lshl_add_u32 v16, v0, 4, s46
    s_lshl_b32 s46, s41, 13
    s_sub_u32 s46, 4096, s46
    v_add_u32 v17, s46, v16              ; partner's
    v_lshlrev_b32 v18, 4, v0
    s_lshl_b32 s44, s40, 12
    s_lshl_b32 s45, s41, 11
    s_add_u32 s44, s44, s45
    s_add_u32 s44, s44, {WS_Y}
    s_lshl_b32 s59, s40, 1
    s_add_u32 s59, s59, s41
    s_mul_i32 s59, s59, {FS}
    s_add_u32 s59, s59, {FL_Y}
    """)
    lds_wait("a_s_y1", 20, 260, 12)
    a("s_cmp_eq_u32 s41, 0\ns_cbranch_scc1 a_s_y0")
    for i in range(4): a(f"ds_write_b128 v16, {vr(CA+4*i,4)} offset:{1024*i}")
    a("ds_write_b32 v22, v19 offset:264\ns_waitcnt lgkmcnt(0)")
    for i in range(16): a(f"v_mov_b32 v{CA+i}, v{CA+16+i}")
    a("s_branch a_s_y2\na_s_y0:")
    for i in range(4): a(f"ds_write_b128 v16, {vr(CA+16+4*i,4)} offset:{1024*i}")
    a("ds_write_b32 v22, v19 offset:264\na_s_y2:")
    lds_wait("a_s_y3", 20, 264, 12)
    for i in range(4): a(f"ds_read_b128 {vr(CU+4*i,4)}, v17 offset:{1024*i}")
    a("s_waitcnt lgkmcnt(0)")
    for i in range(16): a(f"v_add_f32 v{CA+i}, v{CA+i}, v{CU+i}")
    for i in range(8): a(f"v_cvt_pk_bf16_f32 v{CF+i}, v{CA+2*i}, v{CA+2*i+1}")
    for g in range(2): a(f"buffer_store_dwordx4 {vr(CF+4*g,4)}, v18, s[36:39], s44 offen offset:{1024*g} sc1")
    stamp("Aend")
    a("s_mov_b32 s62, s59\ns_branch a_end1")
    a(f"""a_end:
    s_mov_b32 s62, 0
    a_end1:
    v_mov_b32 v116, v0
    s_lshl_b32 s44, s3, 2
    s_add_u32 s44, s44, {L_FL}
    v_mov_b32 v4, s44
    v_mov_b32 v5, 0
    ds_write_b32 v4, v5 offset:400""")

S = [0, 16]; O = 32; NEG = 48; P = 64; KF = [72, 76]; TF = [80, 84]; VF = [88, 96]; Q = 104; QL = 108; QH = 110
vK, vT, vV = 112, 113, 114
def rdK(buf, t): a(f"ds_read_b128 {vr(KF[buf],4)}, v{vK} offset:{1024*t}")
def rdT(buf, q): a(f"ds_read2st64_b64 {vr(TF[buf],4)}, v{vT} offset0:{2*q} offset1:{2*q+1}")
def rdV(buf, t):
    a(f"""s_mov_b64 exec, s[18:19]
    ds_read_b128 {vr(VF[buf],4)}, v{vV} offset:{t*1152}
    ds_read_b128 {vr(VF[buf]+4,4)}, v{vV} offset:{t*1152+576}
    s_mov_b64 exec, -1""")
def qk_tail(t, tb):
    tt = t & 3
    a(f"v_mfma_f32_32x32x8_bf16 {vr(S[t&1],16)}, {vr(TF[tb]+2*(tt>>1),2)}, {vr(QH if tt&1 else QL,2)}, {vr(S[t&1],16)}")
def pv(t, half): a(f"v_mfma_f32_32x32x16_bf16 {vr(O,16)}, {vr(VF[t&1]+4*half,4)}, {vr(P+4*half,4)}, {vr(O,16)}")
def ex(t, r0, r1):
    for r in range(r0, r1): a(f"v_exp_f32 v{S[t&1]+r}, v{S[t&1]+r}")
def cv(t, c0, c1):
    for c in range(c0, c1): a(f"v_cvt_pk_bf16_f32 v{P+c}, v{S[t&1]+2*c}, v{S[t&1]+2*c+1}")
LATER = []
def att_run():
    tag = "b_f"
    def qk_main(t): a(f"v_mfma_f32_32x32x16_bf16 {vr(S[t&1],16)}, {vr(KF[t&1],4)}, {vr(Q,4)}, 0")
    rdK(0, 0); rdT(0, 0); rdK(1, 1); rdV(0, 0)
    a("s_mov_b32 s26, 0\ns_waitcnt lgkmcnt(3)")
    qk_main(0); qk_tail(0, 0)
    a(f"s_nop 7\ns_nop 3\n.p2align 6\n{tag}_loop:")
    def at(it, t, code):
        a(f"s_cmp_eq_u32 s26, {it}\ns_cbranch_scc1 {tag}_e{it}_{t}\n{tag}_n{it}_{t}:")
        def h():
            a(f"{tag}_e{it}_{t}:"); code(); a(f"s_branch {tag}_n{it}_{t}")
        LATER.append(h)
    def bar1():
        a("s_cmp_eq_u32 s62, 0\ns_cbranch_scc1 b_nyf\ns_waitcnt vmcnt(0)")
        flag_set("s62", 122)
        a("b_nyf:\ns_barrier\ns_setprio 3")
    def chk1():
        a(f"""v_mov_b32 v121, {L_FL}
        {tag}_f1:
        ds_read_b96 v[124:126], v121 offset:464
        s_waitcnt lgkmcnt(0)
        v_or3_b32 v124, v124, v125, v126
        v_cmp_eq_u32 vcc, 0, v124
        s_cbranch_vccz {tag}_f1""")
    def half():
        a(f"""s_lshl_b32 s27, s3, 2
        s_add_u32 s27, s27, {L_KT}
        v_mov_b32 v121, s27
        v_mov_b32 v122, s92
        ds_write_b32 v121, v122
        s_setprio 1""")
    EV = {(1,2): lambda: a("s_setprio 2"), (1,4): bar1, (0,5): chk1, (5,0): lambda: a("s_setprio 2"), (6,1): half, (7,5): lambda: a("s_setprio 0")}
    for t in range(8):
        for (it, tt), code in EV.items():
            if tt == t: at(it, t, code)
        def adv():
            if t == 7:
                a(f"""v_add_u32 v{vK}, 8192, v{vK}
                v_add_u32 v{vT}, 2048, v{vT}
                v_add_u32 v{vV}, 9216, v{vV}
                s_add_u32 s26, s26, 1
                s_cmp_lt_u32 s26, 8""")
        def rK():
            rdK(t&1, t+2)
            if (t & 3) == 1: rdT(((t>>2)+1)&1, (t>>2)+1)
        M1 = lambda: qk_main(t+1); M2 = lambda: pv(t-1, 1); M3 = lambda: qk_tail(t+1, ((t+1)>>2)&1); M4 = lambda: pv(t, 0)
        rV = lambda: rdV((t+1)&1, t+1)
        E = lambda i, j: ex(t, i, j); C = lambda i, j: cv(t, i, j)
        a("s_waitcnt lgkmcnt(0)")
        o = OPT.get("ord", "a")
        if o == "a":
            M1(); rK(); E(0,4); M2(); rV(); E(4,8); C(0,4); M3(); E(8,12); M4(); adv(); E(12,16); C(4,8)
        elif o == "b":
            M1(); rK(); M2(); rV(); E(0,8); C(0,4); M3(); E(8,9); M4(); adv(); E(9,16); C(4,8)
        elif o == "c":
            M1(); rK(); E(0,5); M2(); rV(); E(5,8); C(0,4); M3(); E(8,13); M4(); adv(); E(13,16); C(4,8)
        elif o == "d":
            M1(); rK(); E(0,4); C(0,1); M2(); rV(); E(4,8); C(1,3); M3(); E(8,12); C(3,5); E(12,13); M4(); adv(); E(13,16); C(5,8)
        elif o == "e":
            M1(); rK(); M2(); rV(); M3(); E(0,8); C(0,4); E(8,10); M4(); adv(); E(10,16); C(4,8)
        elif o == "f":
            M1(); E(0,2); rK(); E(2,4); M2(); E(4,6); rV(); E(6,8); C(0,4); M3(); E(8,12); M4(); adv(); E(12,16); C(4,8)
    a(f"s_cbranch_scc1 {tag}_loop")
    stamp("Bloop")
    a("s_nop 1")
    pv(7, 1)

def phaseB():
    TOUCH = "" if OPT.get("tch", "0") == "0" else f"""s_cmp_lg_u32 s3, 10
    s_cbranch_scc1 b_ntch
    v_lshlrev_b32 v121, 16, v116
    s_mov_b32 s12, {WS_O}
    buffer_load_dword v114, v121, s[36:39], s12 offen
    s_mov_b32 s12, {WS_FL}
    buffer_load_dword v113, v121, s[36:39], s12 offen
    buffer_load_dword v112, v121, s[32:35], 0 offen
    s_mov_b32 s12, {64 << 16}
    buffer_load_dword v111, v121, s[32:35], s12 offen
    b_ntch:"""
    a(f"""
    s_cmp_ge_u32 s3, 8
    s_cbranch_scc1 b_aux
    s_and_b32 s4, s2, 31                 ; head
    s_lshr_b32 s5, s2, 5
    s_lshl_b32 s5, s5, 3
    s_add_u32 s5, s5, s3
    s_and_b32 s7, s4, 3
    v_lshlrev_b32 v{vK}, 4, v116
    v_and_b32 v117, 31, v116
    v_lshlrev_b32 v119, 4, v116
    s_lshl_b32 s8, s3, 10
    s_add_u32 s8, s8, {L_Q}
    v_add_u32 v120, s8, v{vK}
    s_lshl_b32 s8, s3, 8
    s_add_u32 s8, s8, {L_Q + 8192}
    v_lshl_add_u32 v118, v117, 3, s8
    """)
    for i in range(16): a(f"v_mov_b32 v{O+i}, 0")
    for i in range(4): a(f"v_mov_b32 v{P+4+i}, 0")
    a(f"""v_and_b32 v121, 27, v116
    v_cmp_eq_u32 vcc, 18, v121
    v_mov_b32 v121, 0x3f803f80
    s_nop 0
    v_cndmask_b32 v{VF[0]}, 0, v121, vcc""")
    for i in range(1, 16): a(f"v_mov_b32 v{VF[0]+i}, v{VF[0]}")
    a(f"""
    v_lshlrev_b32 v{vT}, 3, v116
    v_add_u32 v{vT}, {L_KT}, v{vT}
    v_lshrrev_b32 v121, 5, v116
    v_mul_u32_u24 v121, 288, v121
    v_lshl_add_u32 v{vV}, v117, 4, v121
    v_add_u32 v{vV}, {L_V}, v{vV}
    s_mov_b32 s18, 0x3ffff
    s_mov_b32 s19, 0x3ffff
    s_mov_b32 s21, {f2u(18**-0.5 * 1.4426950408889634):#x}
    v_cmp_lt_u32 s[22:23], 31, v116
    s_setprio 3
    """)
    stamp("Bflag")
    a(f"""
    s_barrier
    ds_read_b128 {vr(Q,4)}, v120
    ds_read_b64 {vr(QL,2)}, v118
    s_waitcnt lgkmcnt(0)
    s_barrier
    """)
    for r in list(range(Q, Q+4)) + [QL, QL+1]:
        a(f"""v_lshlrev_b32 v121, 16, v{r}
        v_and_b32 v{r}, 0xffff0000, v{r}
        v_mul_f32 v121, s21, v121
        v_mul_f32 v{r}, s21, v{r}
        v_cvt_pk_bf16_f32 v{r}, v121, v{r}""")
    a(f"""
    s_cmp_eq_u32 s7, 1
    s_cselect_b32 vcc_lo, -1, 0
    s_mov_b32 vcc_hi, 0
    v_cndmask_b32 v{Q}, v{Q}, 0, vcc
    s_cmp_eq_u32 s7, 2
    s_cselect_b32 vcc_hi, -1, 0
    s_mov_b32 vcc_lo, 0
    v_cndmask_b32 v{Q+3}, v{Q+3}, 0, vcc
    s_cmp_eq_u32 s7, 3
    s_cselect_b64 vcc, -1, 0
    v_cndmask_b32 v{QL}, v{QL}, 0, vcc
    s_cmp_eq_u32 s7, 0
    s_cselect_b64 vcc, -1, 0
    v_cndmask_b32 v{QL+1}, v{QL+1}, 0, vcc
    v_cndmask_b32 v{QH}, 0, v{QL}, s[22:23]
    v_cndmask_b32 v{QH+1}, 0, v{QL+1}, s[22:23]
    v_cndmask_b32 v{QL}, v{QL}, 0, s[22:23]
    v_cndmask_b32 v{QL+1}, v{QL+1}, 0, s[22:23]
    """)
    stamp("Bgo")
    att_run()
    a(f"""
    s_mul_i32 s10, s5, {O_T}
    s_add_u32 s10, s10, {WS_O}
    s_lshl_b32 s11, s4, 10
    s_add_u32 s11, s11, s10
    s_lshl_b32 s12, s4, 7
    s_add_u32 s12, s12, s10
    s_add_u32 s12, s12, 32768
    s_lshl_b32 s59, s5, 5
    s_add_u32 s59, s59, s4
    s_mul_i32 s59, s59, {FS}
    s_add_u32 s59, s59, {FL_B}
    s_mov_b32 s27, {f2u(2.0**100):#x}
    v_lshlrev_b32 v127, 2, v116
    s_nop 1
    v_add_f32 v122, abs(v{O}), abs(v{O+1})
    v_add_f32 v123, abs(v{O+2}), abs(v{O+3})
    v_add_f32 v124, abs(v{O+4}), abs(v{O+5})
    v_add_f32 v125, abs(v{O+6}), abs(v{O+7})
    v_add_f32 v126, abs(v{O+8}), abs(v{O+9})
    v_add_f32 v122, v122, v123
    v_add_f32 v124, v124, v125
    v_add_f32 v126, v126, v{O+10}
    v_add_f32 v122, v122, v124
    v_add_f32 v122, v122, v126
    v_cmp_nle_f32 s[28:29], 1.0, v{O+10}
    v_cmp_ngt_f32 vcc, s27, v122
    s_or_b64 vcc, vcc, s[28:29]
    s_cbranch_vccnz b_slow
    b_fin:
    v_rcp_f32 v121, v{O+10}
    s_nop 0
    """)
    for r in range(10): a(f"v_mul_f32 v{O+r}, v{O+r}, v121")
    for c in range(5): a(f"v_cvt_pk_bf16_f32 v{P+c}, v{O+2*c}, v{O+2*c+1}")
    a(f"""
    buffer_store_dwordx4 {vr(P,4)}, v119, s[36:39], s11 offen sc1
    s_mov_b32 exec_hi, 0
    buffer_store_dword v{P+4}, v127, s[36:39], s12 offen sc1
    s_mov_b32 exec_hi, -1
    v_mov_b32 v0, v116
    s_branch c_start
    """)
    for h in LATER: h()
    a(f"""
    b_aux:
    s_and_b32 s4, s2, 31
    s_mul_i32 s6, s4, 9
    s_lshr_b32 s6, s6, 2
    v_mov_b32 v8, {L_FL}
    s_setprio 3
    s_cmp_lg_u32 s3, 11
    s_cbranch_scc1 b_nopoll
    s_mul_i32 s9, s4, 18
    v_lshrrev_b32 v7, 5, v116
    v_lshl_add_u32 v9, v7, 1, s6
    v_add_u32 v10, 72, v9
    v_lshrrev_b32 v10, 3, v10
    v_and_b32 v11, 31, v116
    v_lshl_add_u32 v10, v10, 5, v11
    v_mul_u32_u24 v120, {FS}, v10
    v_mul_u32_u24 v10, 17, v7
    v_add_u32 v10, s9, v10
    v_add_u32 v10, 1152, v10
    v_lshrrev_b32 v10, 6, v10
    v_lshl_add_u32 v10, v10, 5, v11
    v_mul_u32_u24 v121, {FS}, v10
    v_lshrrev_b32 v10, 3, v9
    s_lshr_b32 s9, s2, 5
    s_lshl_b32 s9, s9, 2
    v_and_b32 v11, 3, v116
    v_add_u32 v11, s9, v11
    v_lshl_add_u32 v10, v10, 5, v11
    v_mul_u32_u24 v122, {FS}, v10
    s_cmp_ge_u32 s2, 224
    s_cselect_b32 s9, 16, 0
    v_add_u32 v9, s9, v8
    b_pw:
    s_sleep 1
    ds_read_b128 v[12:15], v9 offset:416
    s_waitcnt lgkmcnt(0)
    v_or_b32 v12, v12, v13
    v_or3_b32 v12, v12, v14, v15
    v_cmp_eq_u32 vcc, 0, v12
    s_cbranch_vccz b_pw
    """)
    if OPT.get("spw", "1") == "1":
        a("s_cmp_lt_u32 s2, 224\ns_cbranch_scc1 b_pw2_x")
        lds_wait("b_pw2", 8, 400, 12, True)
        a("b_pw2_x:")
    stamp("Xpw")
    flag_poll("b_pa", 3, 120)
    stamp("Xpoll")
    a(f"""
    v_mov_b32 v9, 0
    ds_write_b32 v8, v9 offset:244
    b_nopoll:
    s_bitcmp1_b32 s3, 0
    s_cbranch_scc1 b_ldv
    s_bfe_u32 s7, s4, 0x10001
    s_add_u32 s8, s6, s7
    s_lshl_b32 s8, s8, 9
    s_lshl_b32 s9, s6, 9
    s_mul_i32 s10, s7, {1024 - 8}
    s_sub_u32 s9, s9, s10
    s_add_u32 s9, s9, 1024
    v_lshlrev_b32 v118, 4, v116
    v_lshrrev_b32 v119, 1, v116
    v_lshlrev_b32 v119, 4, v119
    v_and_b32 v120, 1, v116
    v_lshl_add_u32 v119, v120, 2, v119
    s_lshr_b32 s15, s2, 5
    s_mul_i32 s15, s15, {8*QK_T}
    s_cmp_eq_u32 s3, 10
    s_cbranch_scc1 b_ldt
    """)
    def zflag(off):
        a(f"""s_mov_b32 s13, m0
        s_mov_b32 m0, {L_FL + off}
        v_mov_b32 v13, 0x7ffffff0
        s_mov_b64 exec, 1
        buffer_load_dword v13, s[36:39], 0 offen lds
        s_mov_b64 exec, -1
        s_mov_b32 m0, s13""")
    def stream(tag, op, vreg, sbase, lq, lk, step, fl):
        a(f"s_add_u32 s15, s15, {sbase}\ns_add_u32 s16, {sbase}, {72*512}\ns_mov_b32 m0, {lq}\ns_mov_b32 s12, 8")
        lds_wait(f"{tag}_go", 8, 244, 9, True)
        def loop(t, sreg):
            a(f"""{t}:
            {op} v{vreg}, s[36:39], {sreg} offen sc1 lds
            s_add_u32 m0, m0, {step}
            s_add_u32 {sreg}, {sreg}, {QK_T}
            s_sub_u32 s12, s12, 1
            s_cmp_lg_u32 s12, 0
            s_cbranch_scc1 {t}""")
        loop(f"{tag}_q", "s15")
        a(f"s_mov_b32 m0, {lk}\ns_mov_b32 s12, 8")
        loop(f"{tag}_1", "s16")
        stamp("Xiss")
        a("s_mov_b32 s12, 8\ns_waitcnt vmcnt(0)")
        stamp("Xland")
        a("s_barrier\ns_barrier")
        loop(f"{tag}_2", "s16")
        zflag(fl)
        a("s_mov_b32 s12, 48")
        loop(f"{tag}_3", "s16")
        a("s_branch b_lend")
    stream("b_k", "buffer_load_dwordx4", 118, "s8", L_Q, 0, 1024, 464)
    a("b_ldt:")
    stream("b_t", "buffer_load_dword", 119, "s9", L_Q + 8192, L_KT, 256, 468)
    a(f"""
    b_ldv:
    s_mov_b32 s10, {9216 - 288}
    """)
    for p in range(9):
        a(f"""v_add_u32 v10, {64*p}, v116
        v_mul_u32_u24 v11, 3641, v10
        v_lshrrev_b32 v11, 16, v11
        v_mul_lo_u32 v11, v11, s10
        v_lshl_add_u32 v{24+p}, v10, 4, v11""")
    a(f"""
    s_bfe_u32 s9, s3, 0x10001
    s_mul_i32 s8, s9, {32*9216}
    s_mul_i32 s10, s4, 288
    s_add_u32 s8, s8, s10
    s_add_u32 s8, s8, {WS_V}
    s_mul_i32 s9, s9, 9216
    s_add_u32 m0, s9, {L_V}
    s_mov_b32 s12, 0
    """)
    a("s_cmp_eq_u32 s3, 9\ns_cbranch_scc1 b_v_go\ns_barrier\ns_barrier\ns_branch b_v")
    lds_wait("b_v_go", 8, 244, 9, True)
    a("b_v:")
    for p in range(9): a(f"buffer_load_dwordx4 v{24+p}, s[36:39], s8 offen sc1 lds\ns_add_u32 m0, m0, {1024 if p < 8 else 1024 + 9216}\ns_nop 0")
    a(f"""
    s_add_u32 s8, s8, {64*9216}
    s_cmp_lg_u32 s12, 0
    s_cbranch_scc1 b_v1
    s_cmp_eq_u32 s3, 9
    s_cbranch_scc1 b_v0
    """)
    zflag(472)
    a(f"""
    s_branch b_v1
    b_v0:
    s_waitcnt vmcnt(0)
    s_barrier
    s_barrier
    b_v1:
    s_add_u32 s12, s12, 1
    s_cmp_lt_u32 s12, 4
    s_cbranch_scc1 b_v
    b_lend:
    s_waitcnt vmcnt(0)
    s_barrier
    s_setprio {OPT.get("aprio", 0)}
    """)
    srd(28, 94, 663552)
    srd(32, 96, 4718592)
    a(f"""
    ; bring wo close (one dword per 128-byte line; speed only)
    s_lshr_b32 s12, s2, 3
    s_lshl_b32 s12, s12, 2
    s_add_u32 s12, s12, s3
    s_sub_u32 s12, s12, 8
    s_lshl_b32 s12, s12, 13
    v_lshlrev_b32 v121, 7, v116
    buffer_load_dword v115, v121, s[28:31], s12 offen
    {TOUCH}
    s_cmp_lg_u32 s3, {99 if ("nossm" in OPT or "noconv" in OPT) else 9}
    s_cbranch_scc1 b_noy
    s_mov_b32 s4, s2
    v_lshrrev_b32 v10, 3, v116
    v_and_b32 v9, 7, v116
    v_lshlrev_b32 v11, 12, v10
    v_lshl_add_u32 v11, v9, 4, v11
    v_xor_b32 v12, v10, v9
    v_lshlrev_b32 v12, 4, v12
    v_lshl_add_u32 v12, v9, 10, v12
    v_add_u32 v12, {L_BOUNCE}, v12
    s_mov_b32 s50, 0x05040100
    s_mov_b32 s51, 0x07060302
    """)
    for p in range(8): a(f"v_xor_b32 v{24+p}, {16*p}, v11")
    a(f"""
    b_y:
    s_lshr_b32 s5, s4, 5
    s_and_b32 s6, s4, 31                 ; sub
    s_lshl_b32 s7, s5, 7
    s_lshr_b32 s8, s6, 4
    s_add_u32 s7, s7, s8
    v_lshl_add_u32 v120, v116, 1, s7
    v_mul_u32_u24 v120, {FS}, v120
    v_add_u32 v120, {FL_Y}, v120
    """)
    flag_poll("b_py", 1, 120)
    a(f"""
    s_lshl_b32 s7, s5, 18
    s_lshl_b32 s8, s6, 7
    s_add_u32 s7, s7, s8
    s_add_u32 s7, s7, {WS_Y}
    s_mov_b32 m0, {L_BOUNCE}
    """)
    for p in range(8):
        a(f"s_nop 0\nbuffer_load_dwordx4 v{24+p}, s[36:39], s7 offen sc1 lds\ns_add_u32 m0, m0, 1024\ns_add_u32 s7, s7, 32768")
    a(f"""
    s_and_b32 s8, s6, 3
    s_lshl_b32 s8, s8, 3
    s_bfe_u32 s9, s6, 0x10002
    s_lshl_b32 s9, s9, 7
    s_add_u32 s8, s8, s9
    s_lshr_b32 s9, s6, 3
    s_lshl_b32 s9, s9, 9
    s_add_u32 s8, s8, s9
    v_add_u32 v17, s8, v10
    v_mul_u32_u24 v17, 2304, v17
    v_lshl_add_u32 v17, v9, 4, v17
    s_lshl_b32 s8, s5, 7
    s_add_u32 s8, s8, 1152
    s_waitcnt vmcnt(0)
    """)
    for j in range(8): a(f"ds_read_b128 {vr(32+4*j,4)}, v12 offset:{j*128}")
    a("s_waitcnt lgkmcnt(0)")
    transpose8(32, 64, 50, 51)
    for c in range(8):
        a(f"s_add_u32 s9, s8, {((c&3)*32 + (c>>2)*256)*2304}\nbuffer_store_dwordx4 {vr(64+4*c,4)}, v17, s[32:35], s9 offen {OPT.get('sty','sc1')}")
    a(f"""
    s_add_u32 s4, s4, 256
    s_cmp_lt_u32 s4, 288
    s_cbranch_scc1 b_y
    b_noy:
    s_setprio 0
    v_mov_b32 v0, v116
    s_lshr_b32 s5, s2, 5                 ; tn
    s_mul_i32 s17, s5, 192
    """)
    for t in range(3):
        a(f"""v_add_u32 v5, {64*t}, v0
        v_mul_u32_u24 v6, 5462, v5
        v_lshrrev_b32 v6, 16, v6             ; row
        v_mul_u32_u24 v7, 12, v6
        v_sub_u32 v7, v5, v7
        v_lshl_add_u32 v7, v7, 4, s17
        v_mul_u32_u24 v8, 1152, v6
        v_add_u32 v{12+t}, v8, v7
        v_and_b32 v9, 4, v6
        v_lshrrev_b32 v10, 3, v6
        v_lshl_add_u32 v9, v10, 1, v9
        v_bfe_u32 v10, v6, 1, 1
        v_add_u32 v9, v9, v10
        v_mul_u32_u24 v9, 18, v9
        v_and_b32 v10, 1, v6
        v_add3_u32 v9, v9, v10, 16
        v_mul_u32_u24 v9, 1152, v9
        v_add_u32 v{16+t}, v9, v7""")
    a(f"""
    s_sub_u32 s8, s3, 8
    s_mul_i32 s10, s8, {9*20736}
    s_mul_i32 s11, s8, {9*3072}
    s_add_u32 s12, s11, {L_V - 18*3072}
    s_cmp_ge_u32 s8, 2
    s_cselect_b32 m0, s12, s11
    s_mov_b32 s12, 20736
    s_mov_b32 s13, 0
    s_cmp_ge_u32 s2, 192
    s_cbranch_scc1 b_wend
    v_and_b32 v9, 7, v0
    v_lshlrev_b32 v9, 2, v9
    v_add_u32 v9, {L_KT}, v9
    s_setprio 3
    b_hw:
    s_sleep 4
    ds_read_b32 v10, v9
    s_waitcnt lgkmcnt(0)
    v_cmp_ne_u32 vcc, s92, v10
    s_cbranch_vccnz b_hw
    b_w:
    s_lshl_b32 s11, s8, 4
    s_add_u32 s11, s11, s13
    s_cmp_eq_u32 s11, {16 + 7}
    s_cselect_b32 m0, {L_KT + 6144}, m0
    s_cmp_lg_u32 s11, {48 + 5}
    s_cbranch_scc1 b_w1
    v_mov_b32 v12, v16
    v_mov_b32 v13, v17
    v_mov_b32 v14, v18
    s_mov_b32 s10, 0
    s_mov_b32 s12, {8*20736}
    b_w1:
    buffer_load_dwordx4 v12, s[28:31], s10 offen lds
    s_add_u32 m0, m0, 1024
    s_add_u32 s13, s13, 1
    buffer_load_dwordx4 v13, s[28:31], s10 offen lds
    s_add_u32 m0, m0, 1024
    s_nop 0
    buffer_load_dwordx4 v14, s[28:31], s10 offen lds
    s_add_u32 m0, m0, 1024
    s_add_u32 s10, s10, s12
    s_cmp_lt_u32 s13, 9
    s_cbranch_scc1 b_w
    b_wend:
    s_setprio 0
    s_mov_b32 s59, 0
    s_waitcnt vmcnt(0)
    """)

def phaseC():
    a("c_start:")
    srd(32, 96, 4718592)
    a(f"""
    s_and_b32 s4, s2, 7
    s_bfe_u32 s6, s2, 0x20003
    s_lshl_b32 s7, s4, 2
    s_add_u32 s7, s7, s6                 ; tm
    s_lshr_b32 s5, s2, 5                 ; tn
    s_mul_i32 s8, s3, 43
    s_lshr_b32 s8, s8, 7                 ; w/3
    s_mul_i32 s9, s8, 3
    s_sub_u32 s9, s3, s9                 ; tb = w%3
    s_lshr_b32 s13, s8, 1                ; kh
    s_and_b32 s14, s8, 1                 ; ta
    v_lshrrev_b32 v5, 5, v0
    v_bfe_u32 v6, v0, 2, 2
    v_lshl_add_u32 v6, v5, 2, v6
    v_mul_u32_u24 v4, 192, v6
    v_bfe_u32 v6, v0, 4, 1
    v_lshl_add_u32 v4, v6, 5, v4
    v_and_b32 v6, 3, v0
    v_lshl_add_u32 v4, v6, 3, v4
    s_lshl_b32 s17, s9, 6
    s_mul_i32 s18, s13, {L_V}
    s_add_u32 s17, s17, s18
    v_add_u32 v4, s17, v4
    s_mul_i32 s18, s13, {L_KT + 6144 - 16*3072}
    s_sub_u32 s18, {L_KT + 6144 - 16*3072}, s18
    v_add_u32 v9, s18, v4
    s_mul_i32 s18, s7, {64*FS}
    s_add_u32 s18, s18, {FL_B}
    v_mul_u32_u24 v120, {FS}, v0
    v_add_u32 v120, s18, v120
    s_cmp_eq_u32 s59, 0
    s_cbranch_scc1 c_nf
    s_waitcnt vmcnt(0)
    """)
    stamp("Back")
    flag_set("s59", 2)
    a("c_nf:\ns_cmp_ge_u32 s2, 192\ns_cbranch_scc1 c_idle\ns_waitcnt lgkmcnt(0)\ns_barrier")
    stamp("Bbar")
    a("s_cmp_lg_u32 s3, 8\ns_cbranch_scc1 c_ni")
    poll_issue(1, 120)
    a("c_ni:")
    for k in range(18):
        va = 4 if k < 16 else 9
        a(f"ds_read_b64_tr_b16 {vr(128+4*k if k < 9 else 32+4*(k-9),2)}, v{va} offset:{k*3072}\nds_read_b64_tr_b16 {vr(130+4*k if k < 9 else 34+4*(k-9),2)}, v{va} offset:{k*3072+8*192}")
        if k % 4 == 3: a("s_waitcnt lgkmcnt(6)")
    a(f"""
    v_lshlrev_b32 v2, 4, v0
    s_mul_i32 s17, s8, {18*1024}
    v_add_u32 v3, s17, v2
    v_and_b32 v11, 31, v0
    v_lshlrev_b32 v11, 2, v11
    v_lshl_add_u32 v11, v5, 9, v11
    v_add_u32 v11, s17, v11
    v_add_u32 v11, {14*1024}, v11
    s_lshl_b32 s15, s7, 1
    s_add_u32 s15, s15, s14
    s_mul_i32 s16, s15, {O_T}
    s_mul_i32 s18, s13, {18*1024}
    s_add_u32 s16, s16, s18
    s_lshl_b32 s18, s9, 10
    s_add_u32 s16, s16, s18
    s_add_u32 s16, s16, {WS_O}
    s_add_u32 m0, s17, s18
    s_cmp_lg_u32 s3, 8
    s_cbranch_scc1 c_np
    """)
    flag_poll("c_pb", 1, 120, issued=True)
    a("c_np:\ns_waitcnt lgkmcnt(0)\ns_barrier")
    stamp("Cflag")
    for i in range(6):
        a("buffer_load_dwordx4 v2, s[36:39], s16 offen sc1 lds")
        if i < 5: a("s_add_u32 m0, m0, 3072\ns_add_u32 s16, s16, 3072")
    a(f"""
    v_and_b32 v6, 19, v0
    v_bfe_u32 v7, v0, 2, 1
    v_lshl_add_u32 v6, v7, 3, v6
    v_bfe_u32 v7, v0, 3, 1
    v_lshl_add_u32 v6, v7, 2, v6         ; token inside the tile
    v_mul_u32_u24 v6, 400, v6
    v_lshl_add_u32 v6, v5, 4, v6
    s_mul_i32 s18, s8, {32*400}
    s_lshl_b32 s19, s9, 7
    s_add_u32 s18, s18, s19
    s_add_u32 s18, s18, 81920
    v_add_u32 v6, s18, v6
    s_lshl_b32 s18, s3, 6
    v_add_u32 v7, s18, v0
    v_mul_u32_u24 v8, 5462, v7
    v_lshrrev_b32 v8, 16, v8             ; row
    v_mul_u32_u24 v10, 12, v8
    v_sub_u32 v10, v7, v10
    v_mul_u32_u24 v7, 400, v8
    v_lshl_add_u32 v7, v10, 5, v7
    v_add_u32 v7, 81920, v7
    v_mul_u32_u24 v5, 2304, v8
    v_lshl_add_u32 v5, v10, 4, v5
    s_mul_i32 s17, s7, {64*2304}
    s_mul_i32 s18, s5, 192
    s_add_u32 s17, s17, s18
    """)
    wf = lambda k: vr(128+4*k if k < 9 else 32+4*(k-9), 4)
    NC = int(OPT.get("nc", 3)); CK = 18 // NC
    for c in range(NC):
        a(f"s_waitcnt vmcnt({6 - (c+1)*CK//3})\ns_barrier")
        if c == 0: stamp("Cfirst")
        ks = list(range(c*CK, (c+1)*CK))
        reg = lambda k: 72 + 4*(k % 6)
        plain = [k for k in ks if k < 14]; tail = [k for k in ks if k >= 14]
        for k in plain: a(f"ds_read_b128 {vr(reg(k),4)}, v3 offset:{k*1024}")
        if tail:
            a(f"s_cmp_eq_u32 s13, 1\ns_cbranch_scc1 c_tl{c}")
            for k in tail: a(f"ds_read_b128 {vr(reg(k),4)}, v3 offset:{k*1024}")
            a(f"s_branch c_tm{c}\nc_tl{c}:")
            for k in tail:
                a(f"""ds_read2_b32 {vr(reg(k),2)}, v11 offset0:0 offset1:32
                ds_read2_b32 {vr(reg(k)+2,2)}, v11 offset0:64 offset1:96
                v_add_u32 v11, 1024, v11""")
            a(f"s_waitcnt lgkmcnt(0)\nc_tm{c}:")
        for i, k in enumerate(ks):
            a(f"s_waitcnt lgkmcnt({CK-1-i})")
            a(f"v_mfma_f32_32x32x16_bf16 v[16:31], {wf(k)}, {vr(reg(k),4)}, " + ("0" if k == 0 else "v[16:31]"))
    stamp("Cmfma")
    a("s_nop 11")
    for rq in range(4): a(f"ds_write_b128 v6, {vr(16+4*rq,4)} offset:{32*rq}")
    a("s_waitcnt lgkmcnt(0)\ns_barrier")
    stamp("Cx")
    a(f"""ds_read_b128 v[32:35], v7
    ds_read_b128 v[36:39], v7 offset:16
    ds_read_b128 v[40:43], v7 offset:{64*400}
    ds_read_b128 v[44:47], v7 offset:{64*400+16}
    s_waitcnt lgkmcnt(0)""")
    for r in range(8): a(f"v_add_f32 v{32+r}, v{32+r}, v{40+r}")
    for c in range(4): a(f"v_cvt_pk_bf16_f32 v{48+c}, v{32+2*c}, v{32+2*c+1}")
    stamp("Ccvt")
    a(f"buffer_store_dwordx4 v[48:51], v5, s[32:35], s17 offen {OPT.get('sto','')}")
    stamp("Cst")
    a("k_done2:")
    if DIAG and "dmax" in OPT:
        a(f"""s_load_dwordx2 s[80:81], s[0:1], 88
        s_waitcnt vmcnt(0)
        s_memrealtime s[74:75]
        s_waitcnt lgkmcnt(0)
        {"s_mov_b32 s72, s74" if DIAG == "end" else ""}
        s_cmp_eq_u32 s72, 0
        s_cbranch_scc1 dg_n
        dg_d:
        s_sleep 20
        s_memrealtime s[78:79]
        s_waitcnt lgkmcnt(0)
        s_sub_u32 s77, s78, s70
        s_cmp_lt_u32 s77, 4000
        s_cbranch_scc1 dg_d
        s_lshl_b32 s76, s72, 8
        s_or_b32 s76, s76, s2
        s_lshl_b32 s77, s70, 8
        s_not_b32 s77, s77
        v_mov_b32 v2, 0
        v_mov_b32 v3, s76
        v_mov_b32 v4, s77
        s_mov_b64 exec, 1
        global_atomic_umax v2, v3, s[80:81] sc1
        global_atomic_umax v2, v4, s[80:81] offset:128 sc1
        s_mov_b64 exec, -1
        dg_n:
        s_cmp_lg_u32 s2, 0
        s_cbranch_scc1 k_done
        s_cmp_lg_u32 s3, 4
        s_cbranch_scc1 k_done
        dg_w:
        s_memrealtime s[78:79]
        s_waitcnt lgkmcnt(0)
        s_sub_u32 s77, s78, s70
        s_cmp_lt_u32 s77, 14000
        s_cbranch_scc1 dg_w
        v_mov_b32 v2, 0
        global_load_dword v3, v2, s[80:81] sc1
        global_load_dword v4, v2, s[80:81] offset:128 sc1
        s_waitcnt vmcnt(0)
        v_readfirstlane_b32 s76, v3
        v_readfirstlane_b32 s77, v4
        s_nop 3
        s_not_b32 s77, s77
        {"s_and_b32 s76, s76, 255" if OPT["dmax"] == "id" else "s_sub_u32 s76, s76, s77"}
        {"s_mul_i32 s76, s76, 25" if OPT["dmax"] == "id" else "s_lshr_b32 s76, s76, 8"}
        s_min_u32 s76, s76, 10000
        s_lshl_b32 s76, s76, 2
        s_add_u32 s76, s76, 15000
        dg_spin:
        s_memrealtime s[78:79]
        s_waitcnt lgkmcnt(0)
        s_sub_u32 s77, s78, s70
        s_cmp_lt_u32 s77, s76
        s_cbranch_scc1 dg_spin""")
    elif DIAG:
        a(f"""s_cmp_lg_u32 s2, {OPT.get("dwg", 0)}
        s_cbranch_scc1 k_done
        s_cmp_lg_u32 s3, {OPT.get("dw", 4)}
        s_cbranch_scc1 k_done
        s_waitcnt vmcnt(0)
        s_memrealtime s[74:75]
        s_waitcnt lgkmcnt(0)
        {"s_mov_b32 s72, s74" if DIAG == "end" else "s_mov_b32 s72, s70" if DIAG == "none" else ""}
        s_sub_u32 s76, s72, s70
        s_min_u32 s76, s76, 10000
        s_lshl_b32 s76, s76, 2
        s_add_u32 s76, s76, 5000
        dg_spin:
        s_memrealtime s[78:79]
        s_waitcnt lgkmcnt(0)
        s_sub_u32 s77, s78, s70
        s_cmp_lt_u32 s77, s76
        s_cbranch_scc1 dg_spin""")
    stamp_out()
    a(f"""k_done:
    s_endpgm
    c_idle:
    s_cmp_lg_u32 s2, 255
    s_cbranch_scc1 k_done2
    s_cmp_lg_u32 s3, 7
    s_cbranch_scc1 k_done2
    v_lshrrev_b32 v120, 5, v116
    v_lshlrev_b32 v120, 8, v120
    v_and_b32 v121, 31, v116
    v_add_u32 v120, v120, v121
    v_mul_u32_u24 v120, {FS}, v120
    v_add_u32 v120, {FL_B}, v120
    v_add_u32 v121, {512*FS}, v120
    v_add_u32 v122, {1024*FS}, v120
    v_add_u32 v123, {1536*FS}, v120
    """)
    flag_poll("c_pe", 4, 120)
    a(f"s_mov_b32 s6, {FL_E}")
    flag_set("s6", 2)
    a("s_branch k_done2")
    a(f"""
    b_slow:
    s_mul_i32 s6, s4, 9
    s_lshr_b32 s6, s6, 2
    s_bfe_u32 s7, s4, 0x10001
    s_add_u32 s8, s6, s7
    s_lshl_b32 s8, s8, 9
    s_add_u32 s8, s8, {72*512}
    s_lshl_b32 s9, s6, 9
    s_mul_i32 s13, s7, {1024 - 8}
    s_sub_u32 s9, s9, s13
    s_add_u32 s9, s9, {72*512 + 1024}
    s_mul_i32 s13, s4, 288
    s_add_u32 s13, s13, {WS_V}
    v_lshlrev_b32 v118, 4, v117
    v_lshrrev_b32 v120, 5, v116
    v_mul_u32_u24 v120, 9216, v120
    v_add_u32 v120, v120, v118
    v_mov_b32 v121, 0xff800000
    s_waitcnt lgkmcnt(0)
    """)
    def scores(c):
        a(f"""buffer_load_dwordx4 {vr(KF[0],4)}, v119, s[36:39], s14 offen sc1
        buffer_load_dwordx2 {vr(TF[0],2)}, v118, s[36:39], s15 offen sc1
        s_add_u32 s14, s14, {QK_T}
        s_add_u32 s15, s15, {QK_T}
        s_waitcnt vmcnt(0)
        v_mfma_f32_32x32x16_bf16 {vr(S[0],16)}, {vr(KF[0],4)}, {vr(Q,4)}, {c}
        v_mfma_f32_32x32x8_bf16 {vr(S[0],16)}, {vr(TF[0],2)}, {vr(QL,2)}, {vr(S[0],16)}
        s_nop 15""")
    a("s_mov_b32 s14, s8\ns_mov_b32 s15, s9\ns_mov_b32 s26, 0\nb_mx:")
    scores("0")
    for r in range(8): a(f"v_max3_f32 v121, v{S[0]+2*r}, v{S[0]+2*r+1}, v121")
    a(f"""
    s_add_u32 s26, s26, 1
    s_cmp_lt_u32 s26, 64
    s_cbranch_scc1 b_mx
    v_mov_b32 v122, v121
    s_nop 1
    v_permlane32_swap_b32 v121, v122
    s_nop 1
    v_max_f32 v121, v121, v122
    """)
    for i in range(16): a(f"v_sub_f32 v{NEG+i}, 0, v121\nv_mov_b32 v{O+i}, 0")
    a(f"""s_mov_b32 s14, s8
    s_mov_b32 s15, s9
    s_mov_b32 s26, 0
    b_sl:
    s_add_u32 s16, s13, {2*9216}
    s_mov_b64 exec, s[18:19]
    buffer_load_dwordx4 {vr(VF[0],4)}, v120, s[36:39], s13 offen sc1
    buffer_load_dwordx4 {vr(VF[0]+4,4)}, v120, s[36:39], s16 offen sc1
    s_mov_b64 exec, -1
    s_add_u32 s13, s13, {4*9216}""")
    scores(vr(NEG,16))
    ex(0, 0, 16); cv(0, 0, 8)
    a("s_nop 1")
    pv(0, 0); pv(0, 1)
    a("""s_add_u32 s26, s26, 1
    s_cmp_lt_u32 s26, 64
    s_cbranch_scc1 b_sl
    s_nop 15
    s_branch b_fin
    k_last:""")

def main():
    ref = open("concat_heads__mha_block__ssm_conv_s4d__prompt.s.ref").read().split("\n")
    head = [l for l in ref if l.startswith(";") and "@launch" not in l and "Override launch" not in l and "grid=ceil" not in l]
    head += ["; @launch grid=(256,1,1) block=(768,1,1) lds=163840"]
    a(f".text\n.globl {KN}\n.p2align 8\n.type {KN},@function\n{KN}:")
    if INSTR:
        for i in range(70, 90): a(f"s_mov_b32 s{i}, 0")
        a("s_memtime s[70:71]\ns_memrealtime s[86:87]")
    if DIAG: a("s_mov_b32 s72, 0\ns_memrealtime s[70:71]")
    phaseA(); phaseB(); phaseC()
    desc = f""".section .rodata,"a"
.p2align 6
.amdhsa_kernel {KN}
  .amdhsa_next_free_vgpr 168
  .amdhsa_next_free_sgpr 102
  .amdhsa_accum_offset 168
  .amdhsa_group_segment_fixed_size 0
  .amdhsa_kernarg_size 104
  .amdhsa_user_sgpr_count 2
  .amdhsa_user_sgpr_kernarg_segment_ptr 1
  .amdhsa_system_sgpr_workgroup_id_x 1
.end_amdhsa_kernel
"""
    out = "\n".join(head) + "\n.amdgcn_target \"amdgcn-amd-amdhsa--gfx950\"\n" + a.text() + desc
    path = sys.argv[1] if len(sys.argv) > 1 and sys.argv[1].endswith(".s") else "concat_heads__mha_block__ssm_conv_s4d__prompt.s"
    open(path, "w").write(out)
main()
```

```python
import sys, struct
KN = "concat_heads__mha_block__ssm_conv_s4d__prompt_kernel"
def f2u(x): return struct.unpack("<I", struct.pack("<f", x))[0]
INSTR = "instr" in sys.argv
OPT = dict(x.split("=") for x in sys.argv if "=" in x)

WS_QK = 0; QK_T = 73728
WS_V = WS_QK + 64 * QK_T
WS_O = WS_V + 256 * 9216; O_T = 36864
WS_U = WS_O + 64 * O_T
WS_Y = WS_U + 576 * 4096
WS_FL = WS_Y + 576 * 4096
FS = 128
FL_A = 0; FL_S = 864 * FS; FL_Y = FL_S + 288 * FS; FL_B = FL_Y + 1152 * FS; FL_E = FL_B + 2048 * FS
WS_END = WS_FL + FL_E + FS
WS_ST = 24 << 20
L_FL = 155648
KC = 4156
KAREA = 8448
L_KT = 65536; L_V = 81920; L_BOUNCE = 155648; L_Q = 102400

class A:
    def __init__(s): s.l = []
    def __call__(s, t):
        for line in t.strip("\n").split("\n"):
            q = line.strip()
            if not q: continue
            s.l.append(q if q.endswith(":") else "    " + q)
    def text(s): return "\n".join(s.l) + "\n"
a = A()
def vr(b, n): return f"v[{b}:{b+n-1}]"
def srd(d, lo, size):
    a(f"""s_mov_b32 s{d}, s{lo}
    s_mov_b32 s{d+1}, s{lo+1}
    s_mov_b32 s{d+2}, {size}
    s_mov_b32 s{d+3}, 0x20000""")

SSETS = {"1": ["Aend", "Aack", "Bflag", "Bgo", "Bloop", "Back"],
         "2": ["Bgo", "Bloop", "Back", "Cflag", "Cfirst", "Cmfma"],
         "5": ["Bloop", "Bbar", "Cmfma", "Cx", "Ccvt", "Cst"],
         "4": ["Aack", "Xpw", "Xpoll", "Xiss", "Xland", "Bgo"],
         "3": ["Afirst", "Akgen", "Abuilt", "Aconv", "Aend", "Aack"]}
DIAG = OPT.get("diag")
def stamp(name):
    if DIAG == name: a("s_memrealtime s[72:73]")
    if INSTR and name in SSETS[OPT.get("sset", "1")]:
        i = SSETS[OPT.get("sset", "1")].index(name) + 1
        a(f"s_memtime s[{70+2*i}:{71+2*i}]")
def stamp_out():
    if not INSTR: return
    a(f"""s_waitcnt vmcnt(0)
    s_memtime s[84:85]
    s_memrealtime s[88:89]
    s_waitcnt lgkmcnt(0)
    s_mov_b64 exec, 1
    s_lshl_b32 s90, s2, 4
    s_add_u32 s90, s90, s3
    s_lshl_b32 s90, s90, 6
    s_add_u32 s90, s90, {WS_ST}
    v_mov_b32 v166, s90""")
    for i in range(10):
        a(f"v_mov_b32 v167, s{70+2*i}\nglobal_store_dword v166, v167, s[24:25] offset:{4*i}")

def transpose8(I, O, sLO, sHI):
    for c in range(8):
        for t in range(4):
            a(f"v_perm_b32 v{O+4*c+t}, v{I+4*(2*t+1)+(c>>1)}, v{I+4*(2*t)+(c>>1)}, s{sHI if c&1 else sLO}")

def flag_set(soff, t):
    if OPT.get("ffl", "0") == "1":
        a(f"""v_mbcnt_lo_u32_b32 v{t}, -1, 0
        v_mov_b32 v{t+1}, s92
        v_lshl_add_u32 v{t}, v{t}, 2, s93
        s_mov_b32 exec_hi, 0
        buffer_store_dword v{t+1}, v{t}, s[36:39], {soff} offen sc1
        s_mov_b32 exec_hi, -1""")
    else:
        a(f"""v_mov_b32 v{t}, {WS_FL}
        v_mov_b32 v{t+1}, s92
        s_mov_b64 exec, 1
        buffer_store_dword v{t+1}, v{t}, s[36:39], {soff} offen {OPT.get('sfl', 'sc1').replace('+', ' ')}
        s_mov_b64 exec, -1""")
def poll_issue(n, t):
    for i in range(n): a(f"buffer_load_dword v{t+4+i}, v{t+i}, s[36:39], s93 offen {OPT.get('pfl', 'sc1').replace('+', ' ')}")
def flag_poll(tag, n, t, issued=False):
    a("s_mov_b32 s91, 0")
    if issued: a(f"s_branch {tag}_c")
    a(f"{tag}:")
    poll_issue(n, t)
    a(f"{tag}_c:\ns_add_u32 s91, s91, 1\ns_waitcnt vmcnt(0)")
    for i in range(n): a(f"v_xor_b32 v{t+4+i}, s92, v{t+4+i}")
    for i in range(1, n): a(f"v_or_b32 v{t+4}, v{t+4}, v{t+4+i}")
    a(f"""v_cmp_ne_u32 vcc, 0, v{t+4}
    s_cbranch_vccz {tag}_x
    s_mov_b64 exec, vcc
    s_sleep {OPT.get("slp", 2)}
    s_cmp_lt_u32 s91, 0x80000
    s_cbranch_scc1 {tag}
    {tag}_x:
    s_mov_b64 exec, -1""")
def lds_wait(tag, vaddr, off, t, slp=False):
    a(f"""{tag}:
    {"s_sleep 1" if slp else ""}
    ds_read_b32 v{t}, v{vaddr} offset:{off}
    s_waitcnt lgkmcnt(0)
    v_cmp_eq_u32 vcc, 0, v{t}
    s_cbranch_vccz {tag}""")
def kargs():
    a(f"""s_waitcnt lgkmcnt(0)
    s_add_u32 s68, s24, {WS_FL + FL_E}
    s_addc_u32 s69, s25, 0
    s_load_dword s92, s[68:69], 0""")
    srd(36, 24, WS_END)

def ufetch(tag):
    a(f"""
    s_sub_u32 s43, s3, 8
    s_lshl_b32 s40, s2, 1
    s_add_u32 s40, s40, s43              ; channel
    s_lshl_b32 s44, s43, 13
    s_add_u32 m0, s44, 147968
    s_lshr_b32 s46, s40, 6
    s_mul_i32 s46, s46, {32*FS}
    s_add_u32 s46, s46, {FL_S}
    v_and_b32 v10, 31, v0
    v_mul_u32_u24 v10, {FS}, v10
    v_add_u32 v10, s46, v10
    v_lshlrev_b32 v12, 4, v0
    v_mov_b32 v13, 0x7ffffff0
    s_lshl_b32 s44, s40, 12
    s_add_u32 s44, s44, {WS_U}
    s_mov_b32 exec_hi, 0
    """)
    flag_poll(tag, 1, 10)
    for i in range(4): a(f"buffer_load_dwordx4 v12, s[36:39], s44 offen offset:{1024*i} sc1 lds")
    a(f"""s_lshl_b32 s43, s43, 2
    s_add_u32 m0, s43, {L_FL + 448}
    s_mov_b64 exec, 1
    buffer_load_dword v13, s[36:39], 0 offen lds
    s_mov_b64 exec, -1""")

def phaseA():
    mod9 = """
    s_mul_i32 s49, s48, 57
    s_lshr_b32 s49, s49, 9
    s_mul_i32 s49, s49, 9
    s_sub_u32 s48, s48, s49"""
    ROT = {"wg": "s_lshl_b32 s48, s40, 1\ns_add_u32 s48, s48, s41" + mod9, "none": "s_mov_b32 s48, 0",
           "three": "s_and_b32 s48, s27, 3\ns_lshr_b32 s49, s27, 2\ns_add_u32 s48, s48, s49\ns_mul_i32 s48, s48, 3\ns_add_u32 s48, s48, s26" + mod9,
           "two5": "s_and_b32 s48, s27, 1\ns_lshr_b32 s49, s27, 2\ns_xor_b32 s48, s48, s49\ns_and_b32 s48, s48, 1\ns_mul_i32 s48, s48, 5\ns_add_u32 s48, s48, s26" + mod9,
           "twox": "s_and_b32 s48, s27, 1\ns_lshr_b32 s49, s27, 2\ns_xor_b32 s48, s48, s49\ns_and_b32 s48, s48, 1\ns_lshl_b32 s48, s48, 2\ns_and_b32 s49, s26, 3\ns_add_u32 s48, s48, s49\ns_lshr_b32 s49, s26, 2\ns_lshl_b32 s49, s49, 1\ns_add_u32 s48, s48, s49" + mod9,
           "wgb": "s_and_b32 s48, s27, 3\ns_mul_i32 s48, s48, 9\ns_lshr_b32 s48, s48, 2\ns_lshr_b32 s49, s27, 2\ns_mul_i32 s49, s49, 4\ns_add_u32 s48, s48, s49\ns_add_u32 s48, s48, s26" + mod9,
           "wgm": "s_and_b32 s48, s27, 3\ns_mul_i32 s48, s48, 9\ns_lshr_b32 s48, s48, 2\ns_add_u32 s48, s48, s26" + mod9,
           "two": "s_and_b32 s48, s27, 1\ns_lshr_b32 s49, s27, 2\ns_xor_b32 s48, s48, s49\ns_and_b32 s48, s48, 1\ns_lshl_b32 s48, s48, 2\ns_add_u32 s48, s48, s26" + mod9,
           "xcd": "s_and_b32 s48, s26, 3\ns_lshl_b32 s48, s48, 1\ns_lshr_b32 s49, s26, 2\ns_mul_i32 s49, s49, 5\ns_add_u32 s48, s48, s49" + mod9}[OPT.get("rot", "two")]
    LIN = "" if OPT.get("lin", "0") == "0" else f"""s_lshl_b32 s57, s2, 1
    s_add_u32 s57, s57, s56
    s_mul_i32 s57, s57, {42*128}
    v_lshlrev_b32 v12, 7, v0
    s_mov_b32 exec_hi, 0x3ff
    buffer_load_dword v13, v12, s[28:31], s57 offen
    s_mov_b32 exec_hi, -1"""
    a(f"""
    s_cmp_ge_u32 s2, 256
    s_cbranch_scc1 k_done
    v_lshrrev_b32 v1, 6, v0
    v_and_b32 v0, 63, v0
    v_readfirstlane_b32 s3, v1
    v_mov_b32 v23, {L_FL}
    s_cmp_lg_u32 s3, 9
    s_cbranch_scc1 a_noarm
    v_mov_b32 v14, -1
    v_mov_b32 v15, -1
    v_lshl_add_u32 v16, v0, 3, v23
    ds_write_b64 v16, v[14:15]
    s_waitcnt lgkmcnt(0)
    a_noarm:
    s_load_dwordx16 s[4:19], s[0:1], 0
    s_load_dwordx4 s[20:23], s[0:1], 64
    s_load_dwordx2 s[24:25], s[0:1], 96
    s_load_dwordx2 s[96:97], s[0:1], 80
    s_load_dwordx2 s[94:95], s[0:1], 16
    s_add_u32 s26, s3, 8
    s_sub_u32 s27, s3, 4
    s_cmp_lt_u32 s3, 4
    {"" if OPT.get("remap", "1") == "0" else "s_cselect_b32 s3, s26, s27           ; the waves that start first take the loader role (8..11)"}
    {"s_add_u32 s2, s2, 224" if OPT.get("sfirst", "1") == "1" else ""}
    s_and_b32 s2, s2, 255
    s_and_b32 s26, s2, 7
    s_lshr_b32 s27, s2, 3
    s_and_b32 s40, s26, 3
    s_lshl_b32 s40, s40, 2
    s_and_b32 s44, s27, 3
    s_add_u32 s40, s40, s44
    s_lshr_b32 s41, s26, 2
    s_mul_i32 s41, s41, 7
    s_lshr_b32 s44, s27, 2
    s_add_u32 s41, s41, s44
    s_mov_b32 s93, {WS_FL}
    s_cmp_ge_u32 s3, 8
    s_cbranch_scc1 a_aux
    s_cmp_lt_u32 s3, 4
    s_cbranch_scc1 a_ssm
    s_branch a_gemm
    a_aux:
    s_cmp_ge_u32 s27, 28
    s_cbranch_scc1 a_task
    {ROT}
    s_bfe_u32 s56, s3, 0x10001
    s_bitcmp1_b32 s3, 0
    s_cbranch_scc1 a_ldw
    v_lshrrev_b32 v4, 3, v0
    v_lshrrev_b32 v5, 2, v4
    v_lshlrev_b32 v5, 3, v5
    v_and_b32 v6, 3, v4
    v_add_u32 v5, v5, v6
    s_lshl_b32 s44, s40, 7
    v_add_u32 v5, s44, v5
    v_mul_u32_u24 v5, 1152, v5
    v_lshrrev_b32 v6, 1, v4
    v_and_b32 v7, 7, v0
    v_xor_b32 v6, v6, v7
    v_lshl_add_u32 v2, v6, 4, v5
    v_xor_b32 v6, 4, v6
    v_lshl_add_u32 v3, v6, 4, v5
    v_add_u32 v3, {4608-1024}, v3
    s_mov_b32 s50, 128
    s_mov_b32 s51, 18432
    s_mov_b32 s52, 0
    s_waitcnt lgkmcnt(0)
    s_mov_b32 s28, s4
    s_mov_b32 s29, s5
    s_mov_b32 s30, 2359296
    s_branch a_ld
    a_ldw:
    v_lshrrev_b32 v5, 4, v0
    v_mul_u32_u24 v2, 3456, v5
    v_lshlrev_b32 v5, 2, v5
    v_and_b32 v6, 15, v0
    v_xor_b32 v5, v5, v6
    v_lshl_add_u32 v2, v5, 4, v2
    s_lshl_b32 s44, s41, 8
    v_add_u32 v2, s44, v2
    v_add_u32 v3, {13824-1024}, v2
    s_mov_b32 s50, 221184
    s_mov_b32 s51, 27648
    s_mov_b32 s52, 16384
    s_waitcnt lgkmcnt(0)
    s_mov_b32 s28, s6
    s_mov_b32 s29, s7
    s_mov_b32 s30, 1990656
    a_ld:
    s_setprio {OPT.get("lprio", 0)}
    s_mov_b32 s31, 0x20000
    {LIN}
    s_mul_i32 s57, s56, s51
    s_lshl_b32 s57, s57, 2
    s_lshl_b32 s56, s56, 13
    s_add_u32 s52, s52, s56
    s_and_b32 s58, s3, 3
    s_lshl_b32 s58, s58, 2
    s_add_u32 s58, s58, {L_FL}
    v_mov_b32 v4, 0x7ffffff0
    s_mov_b32 s53, 0
    """)
    kargs()
    a(f"""
    a_ld_loop:
    s_cmp_lt_u32 s53, 4
    s_cbranch_scc1 a_ld_go
    a_ld_poll:
    ds_read_b128 v[8:11], v23 offset:160
    s_waitcnt lgkmcnt(0)
    v_or_b32 v8, v8, v9
    v_or3_b32 v8, v8, v10, v11
    v_cmp_eq_u32 vcc, 0, v8
    s_cbranch_vccz a_ld_poll
    v_add_u32 v23, 16, v23
    a_ld_go:
    s_mul_i32 s47, s48, s50
    s_add_u32 s47, s47, s57
    s_and_b32 s55, s53, 3
    s_lshl_b32 s55, s55, 15
    s_add_u32 m0, s55, s52
    s_add_u32 s48, s48, 1
    """)
    for p in range(4):
        a(f"buffer_load_dwordx4 v2, s[28:31], s47 offen {OPT.get('ldf','')} lds\nbuffer_load_dwordx4 v3, s[28:31], s47 offen offset:1024 {OPT.get('ldf','')} lds")
        if p < 3: a("s_add_u32 m0, m0, 2048\ns_add_u32 s47, s47, s51")
    a(f"""
    s_cmp_eq_u32 s48, 9
    s_cselect_b32 s48, 0, s48
    s_cmp_lg_u32 s53, 0
    s_cbranch_scc1 a_ld_nb
    s_barrier
    a_ld_nb:
    s_mov_b32 m0, s58
    s_mov_b64 exec, 1
    buffer_load_dword v4, s[28:31], 0 offen lds
    s_mov_b64 exec, -1
    s_add_u32 s58, s58, 16
    s_add_u32 s53, s53, 1
    s_cmp_lt_u32 s53, 9
    s_cbranch_scc1 a_ld_loop
    """)
    a("v_mov_b32 v116, v0\ns_waitcnt lgkmcnt(0)\ns_add_u32 s92, s92, 0x9e3779b1\ns_cmp_ge_u32 s3, 10\ns_cbranch_scc1 b_aux\na_uf:")
    ufetch("a_pu")
    a("s_branch b_aux")
    CPF = "" if OPT.get("cpf", "1") == "0" else f"""
    ; read this kernel's own code once per XCD so that later instruction fetches find it in L2 (speed only)
    s_getpc_b64 s[44:45]
    a_pc:
    s_lshl_b32 s46, s27, 2
    s_add_u32 s46, s46, s3
    s_sub_u32 s46, s46, 4
    s_lshl_b32 s46, s46, 8
    s_min_u32 s46, s46, k_last - {KN} - 256
    s_sub_u32 s44, s44, a_pc - {KN}
    s_subb_u32 s45, s45, 0
    s_add_u32 s44, s44, s46
    s_addc_u32 s45, s45, 0
    v_lshlrev_b32 v60, 6, v0
    v_mov_b32 v61, s45
    v_add_co_u32 v60, vcc, s44, v60
    s_mov_b64 exec, 15
    s_nop 0
    v_addc_co_u32 v61, vcc, 0, v61, vcc
    global_load_dword v62, v[60:61], off
    s_mov_b64 exec, -1"""
    a(f"""
    a_gemm:
    {CPF}
    s_cmp_ge_u32 s27, 28
    s_cbranch_scc1 a_ssm
    s_barrier
    """)
    kargs()
    if OPT.get("tcha", "0") == "1":
        a(f"""s_cmp_lg_u32 s3, 5
        s_cbranch_scc1 a_ntch
        v_lshlrev_b32 v60, 18, v0
        buffer_load_dword v63, v60, s[36:39], 0 offen
        a_ntch:""")
    a(f"""
    s_sub_u32 s45, s3, 4
    s_and_b32 s42, s45, 1                ; mw
    s_lshr_b32 s43, s45, 1               ; nw
    s_lshl_b32 s58, s45, 2
    s_add_u32 s58, s58, {L_FL + 160}
    v_mov_b32 v22, 0x7ffffff0
    v_and_b32 v5, 31, v0
    v_lshrrev_b32 v6, 5, v0
    s_lshl_b32 s44, s42, 6
    v_add_u32 v7, s44, v5
    v_lshlrev_b32 v7, 7, v7
    v_bfe_u32 v5, v5, 1, 3
    v_xor_b32 v5, v5, v6
    """)
    for j in range(4):
        a(f"v_xor_b32 v20, {2*j}, v5\nv_lshl_add_u32 v{8+j}, v20, 4, v7\nv_add_u32 v{12+j}, 0x10000, v{8+j}")
    a(f"""
    v_bfe_u32 v5, v0, 2, 2
    v_lshl_add_u32 v7, v6, 3, v5
    v_lshlrev_b32 v7, 8, v7
    v_bfe_u32 v20, v0, 4, 1
    v_lshl_add_u32 v7, v20, 5, v7
    v_and_b32 v20, 1, v0
    v_lshl_add_u32 v7, v20, 4, v7
    v_and_b32 v20, 2, v0
    v_lshl_add_u32 v7, v20, 2, v7
    v_add_u32 v7, 16384, v7
    s_lshl_b32 s44, s43, 1
    v_xor_b32 v5, s44, v5
    v_lshl_add_u32 v16, v5, 6, v7
    v_xor_b32 v5, 1, v5
    v_lshl_add_u32 v17, v5, 6, v7
    v_add_u32 v18, 0x10000, v16
    v_add_u32 v19, 0x10000, v17
    s_setprio {OPT.get('gprio', 2)}
    s_waitcnt lgkmcnt(0)
    s_add_u32 s92, s92, 0x9e3779b1
    s_lshl_b32 s46, s40, 1
    s_add_u32 s46, s46, s42
    s_lshl_b32 s47, s41, 1
    s_add_u32 s47, s47, s43
    s_lshl_b32 s59, s47, 5
    s_add_u32 s59, s59, s46
    s_mul_i32 s59, s59, {FS}
    s_cmp_ge_u32 s41, 9
    s_cbranch_scc1 a_gemm_v""")
    FB = [24, 40, 128]
    def reads(stage, j, fb):
        slot = stage & 3; hi = slot >> 1; base = (slot & 1) * 32768
        return [f"ds_read_b128 {vr(fb,4)}, v{8+4*hi+j} offset:{base}",
                f"ds_read_b64_tr_b16 {vr(fb+8,2)}, v{16+2*hi} offset:{base+j*4096}",
                f"ds_read_b64_tr_b16 {vr(fb+10,2)}, v{16+2*hi} offset:{base+j*4096+1024}",
                f"ds_read_b64_tr_b16 {vr(fb+12,2)}, v{17+2*hi} offset:{base+j*4096}",
                f"ds_read_b64_tr_b16 {vr(fb+14,2)}, v{17+2*hi} offset:{base+j*4096+1024}",
                f"ds_read_b128 {vr(fb+4,4)}, v{8+4*hi+j} offset:{base+4096}"]
    def mfmas(fb, vor, first):
        out = []
        for (ta, tb) in ((0,0),(0,1),(1,0),(1,1)):
            acc = vr(64 + 16*(2*ta+tb), 16); X = vr(fb+4*ta, 4); W = vr(fb+8+4*tb, 4)
            out.append(f"v_mfma_f32_32x32x16_bf16 {acc}, " + (f"{X}, {W}" if vor else f"{W}, {X}") + ", " + ("0" if first else acc))
        return out
    def check(tag, st, first_read):
        if not first_read:
            a(f"""v_or_b32 v56, v56, v57
            v_or3_b32 v56, v56, v58, v59
            v_cmp_eq_u32 vcc, 0, v56
            s_cbranch_vccnz {tag}_ok""")
        a(f"""{tag}_p:
        ds_read_b128 v[56:59], v23 offset:{16*st}
        s_waitcnt lgkmcnt(0)
        v_or_b32 v56, v56, v57
        v_or3_b32 v56, v56, v58, v59
        v_cmp_eq_u32 vcc, 0, v56
        s_cbranch_vccz {tag}_p
        {tag}_ok:""")
    def mainloop(vor):
        check(f"a_c{int(vor)}_0", 0, True)
        stamp("Afirst")
        a("\n".join(reads(0, 0, FB[0]) + reads(0, 1, FB[1])))
        for g in range(36):
            st, j = divmod(g, 4)
            a(f"s_waitcnt lgkmcnt({6 if g < 35 else 0})")
            m = mfmas(FB[g % 3], vor, g == 0)
            a(m[0])
            if j == 1 and st < 8: a(f"ds_read_b128 v[56:59], v23 offset:{16*(st+1)}")
            if j == 2 and st < 8: check(f"a_c{int(vor)}_{st+1}", st+1, False)
            if j == 3 and st < 5: a(f"s_add_u32 m0, s58, {16*st}\ns_mov_b64 exec, 1\nbuffer_load_dword v22, s[36:39], 0 offen lds\ns_mov_b64 exec, -1")
            rd = reads((g+2)//4, (g+2)%4, FB[(g+2) % 3]) if g + 2 < 36 else []
            a("\n".join(rd[:3])); a(m[1]); a("\n".join(rd[3:])); a(m[2]); a(m[3])
            if g == 15: stamp("G4")
        stamp("Aconv"); stamp("Gloop")
    a(f"""
    s_mul_i32 s44, s46, {2*QK_T}
    s_lshl_b32 s45, s47, 12
    s_add_u32 s44, s44, s45
    s_add_u32 s45, s44, {QK_T}
    v_lshlrev_b32 v2, 4, v0
    """)
    mainloop(False)
    for ta in range(2):
        for tb in range(2):
            acc = 64 + 16*(2*ta+tb); o = 24 + 8*(2*ta+tb)
            if ta + tb == 0: a("s_nop 8")
            for r in range(8): a(f"v_cvt_pk_bf16_f32 v{o+r}, v{acc+2*r}, v{acc+2*r+1}")
            for hh in range(2): a(f"buffer_store_dwordx4 {vr(o+4*hh,4)}, v2, s[36:39], s{44+ta} offen offset:{tb*2048+hh*1024} {OPT.get('stq','sc1').replace('+',' ')}")
    a(f"""s_branch a_gemm_end
    a_gemm_v:
    v_lshrrev_b32 v5, 1, v0
    v_xor_b32 v5, v5, v0
    v_and_b32 v5, 1, v5
    v_mul_u32_u24 v5, 24, v5
    v_xor_b32 v16, v16, v5
    v_xor_b32 v17, v17, v5
    v_xor_b32 v18, v18, v5
    v_xor_b32 v19, v19, v5
    v_and_b32 v5, 31, v0
    v_lshrrev_b32 v6, 5, v0
    v_mul_u32_u24 v6, 9216, v6
    v_lshl_add_u32 v2, v5, 4, v6
    s_sub_u32 s45, s47, 18
    s_lshl_b32 s45, s45, 10
    s_mul_i32 s44, s46, {8*9216}
    s_add_u32 s44, s44, s45
    s_add_u32 s44, s44, {WS_V}
    """)
    mainloop(True)
    a("s_cmp_ge_u32 s47, 27\ns_cbranch_scc1 a_end")
    for ta in range(2):
        for tb in range(2):
            acc = 64 + 16*(2*ta+tb); o = 24 + 8*(2*ta+tb)
            if ta + tb == 0: a("s_nop 8")
            for r in range(8): a(f"v_cvt_pk_bf16_f32 v{o+r}, v{acc+2*r}, v{acc+2*r+1}")
            for hh in range(2): a(f"s_add_u32 s45, s44, {(4*ta+2*hh)*9216}\nbuffer_store_dwordx4 {vr(o+4*hh,4)}, v2, s[36:39], s45 offen offset:{tb*512} {OPT.get('stq','sc1').replace('+',' ')}")
    a("a_gemm_end:")
    if OPT.get("early", "0") == "1":
        a(f"""s_lshl_b32 s44, s3, 2
        s_add_u32 s44, s44, {L_FL}
        v_mov_b32 v4, s44
        v_mov_b32 v5, 0
        ds_write_b32 v4, v5 offset:400""")
    stamp("Aend")
    a("s_waitcnt vmcnt(0)")
    stamp("Aack")
    flag_set("s59", 2)
    a("s_branch a_end")

    a(f"""
    a_task:
    s_cmp_eq_u32 s3, 11
    s_cbranch_scc1 a_fetch
    s_sub_u32 s44, s2, 224
    s_lshr_b32 s45, s44, 1               ; B
    s_and_b32 s46, s44, 1                ; es
    s_sub_u32 s47, 16, s3
    s_lshl_b32 s59, s47, 5
    s_add_u32 s59, s59, s44
    s_mul_i32 s59, s59, {FS}
    s_add_u32 s59, s59, {FL_S}
    s_lshl_b32 s48, s45, 3
    s_add_u32 s48, s48, s46
    s_mul_i32 s48, s48, {16*1152}
    s_lshl_b32 s49, s47, 7
    s_add_u32 s48, s48, s49
    v_lshrrev_b32 v10, 3, v0
    v_and_b32 v9, 7, v0
    v_mul_u32_u24 v11, 1152, v10
    v_lshl_add_u32 v11, v9, 4, v11
    v_xor_b32 v12, v10, v9
    v_lshlrev_b32 v12, 4, v12
    v_lshl_add_u32 v12, v9, 10, v12
    s_mul_i32 s49, s3, 24576
    s_sub_u32 s49, s49, {8*24576 - 57344}
    v_add_u32 v12, s49, v12
    s_mov_b32 m0, s49
    v_lshlrev_b32 v17, 15, v10
    v_lshl_add_u32 v17, v9, 4, v17
    s_lshl_b32 s60, s47, 18
    s_lshl_b32 s45, s45, 7
    s_lshl_b32 s46, s46, 11
    s_add_u32 s60, s60, s45
    s_add_u32 s60, s60, s46
    s_add_u32 s60, s60, {WS_U}
    s_mov_b32 s50, 0x05040100
    s_mov_b32 s51, 0x07060302
    """)
    for p in range(8): a(f"v_xor_b32 v{24+p}, {16*p}, v11")
    kargs()
    srd(28, 10, 2359296)
    def uload():
        for p in range(8):
            a(f"""s_add_u32 s49, s48, {((p>>1)*32 + (p&1)*8)*1152}
            buffer_load_dwordx4 v{24+p}, s[28:31], s49 offen lds
            s_add_u32 m0, m0, 1024""")
        a("s_sub_u32 s48, s48, 384")
    def uproc(i):
        for j in range(8): a(f"ds_read_b128 {vr(32+4*j,4)}, v12 offset:{i*8192 + j*128}")
        a("s_waitcnt lgkmcnt(0)")
        transpose8(32, [64, 96, 128][i], 50, 51)
    def ustore(i):
        for c in range(8):
            a(f"s_add_u32 s49, s60, {c*4096}\nbuffer_store_dwordx4 {vr([64, 96, 128][i]+4*c,4)}, v17, s[36:39], s49 offen sc1")
        a(f"s_sub_u32 s60, s60, {3<<18}")
    def uflag():
        flag_set("s59", 2)
        a(f"s_sub_u32 s59, s59, {96*FS}")
    uload()
    a("s_barrier\ns_mov_b32 s52, 0\ns_cmp_eq_u32 s3, 10\ns_cbranch_scc1 a_t1\ns_setprio 3\ns_waitcnt vmcnt(0)\na_t0:")
    uproc(0); ustore(0)
    a("s_add_u32 s92, s92, 0x9e3779b1\ns_setprio 0\ns_cmp_eq_u32 s3, 10\ns_cbranch_scc1 a_t2\na_t1:")
    uload(); uload()
    a("s_waitcnt vmcnt(16)\ns_cmp_eq_u32 s3, 10\ns_cbranch_scc1 a_t0")
    uflag()
    a("s_mov_b32 s52, 1\na_t2:\ns_waitcnt vmcnt(8)")
    uproc(1)
    a("s_waitcnt vmcnt(0)\ns_cmp_eq_u32 s52, 1\ns_cbranch_scc1 a_t3")
    uflag()
    a("a_t3:")
    ustore(1); uproc(2)
    a("s_waitcnt vmcnt(0)")
    uflag(); ustore(2)
    a("s_branch a_gemm_end\na_fetch:\ns_barrier")
    kargs()
    a(f"""
    v_mul_u32_u24 v10, {FS}, v0
    v_add_u32 v10, {FL_S + 224*FS}, v10
    v_lshlrev_b32 v12, 4, v0
    v_mov_b32 v13, 0x7ffffff0
    s_lshl_b32 s44, s2, 13
    s_add_u32 s44, s44, {WS_U}
    s_waitcnt lgkmcnt(0)
    s_add_u32 s92, s92, 0x9e3779b1
    s_sleep {OPT.get("fslp", 32)}
    """)
    flag_poll("a_pf", 1, 10)
    for p in range(4):
        a(f"s_mov_b32 m0, {[147968, 156160, 40960, 49152][p]}\ns_add_u32 s45, s44, {(p&1)*4096 + (p>>1)*64*4096}")
        for i in range(4): a(f"buffer_load_dwordx4 v12, s[36:39], s45 offen offset:{1024*i} sc1 lds")
        a(f"""s_mov_b32 m0, {L_FL + 448 + 4*p}
        s_mov_b64 exec, 1
        buffer_load_dword v13, s[36:39], 0 offen lds
        s_mov_b64 exec, -1""")
    a("s_branch a_end")

    L2E = f2u(1.4426950408889634); L2E_LO = f2u(1.4426950408889634 - struct.unpack("<f", struct.pack("<I", L2E))[0])
    LN2 = f2u(0.6931471805599453)
    z0 = list(range(9)) + [14,15,16,20,21,24,25]
    z1 = [9,9,10,11,11,11,12,13,13,17,18,19,22,23,26,27]
    def pack(z, lo):
        v = 0
        for r in range(lo, lo+8): v |= (z[r]-r) << (4*(r-lo))
        return v
    a(f"""
    a_ssm:
    s_and_b32 s41, s3, 1                 ; half
    s_bfe_u32 s45, s3, 0x10001
    s_lshl_b32 s40, s2, 1
    s_add_u32 s40, s40, s45
    s_add_u32 s46, s40, {512 - 448}
    s_mul_i32 s42, s45, {KAREA}
    s_add_u32 s47, s42, 16384
    s_add_u32 s42, s42, 131072
    s_cmp_ge_u32 s3, 4
    s_cselect_b32 s40, s46, s40          ; channel
    s_cselect_b32 s42, s47, s42
    s_lshr_b32 s43, s3, 1
    s_lshl_b32 s43, s43, 13
    s_add_u32 s47, s43, {40960 - 16384}
    s_add_u32 s43, s43, 147968
    s_cmp_ge_u32 s3, 4
    s_cselect_b32 s43, s47, s43
    s_lshl_b32 s45, s40, 7
    s_lshl_b32 s46, s41, 6
    s_add_u32 s45, s45, s46
    v_add_u32 v2, s45, v0
    v_lshlrev_b32 v2, 1, v2
    s_lshl_b32 s45, s40, 1
    v_mov_b32 v3, s45
    s_waitcnt lgkmcnt(0)
    global_load_ushort v4, v3, s[20:21]
    global_load_ushort v6, v2, s[12:13]
    global_load_ushort v7, v2, s[14:15]
    global_load_ushort v8, v2, s[16:17]
    global_load_ushort v9, v2, s[18:19]
    global_load_ushort v5, v3, s[22:23]
    s_barrier
    """)
    kargs()
    a(f"""
    v_and_b32 v14, 31, v0
    v_and_b32 v16, 3, v14
    v_lshrrev_b32 v17, 3, v14
    v_lshl_add_u32 v16, v17, 2, v16
    v_mov_b32 v17, {pack(z0,0):#x}
    v_mov_b32 v18, {pack(z0,8):#x}
    v_mov_b32 v19, {pack(z1,0):#x}
    v_mov_b32 v20, {pack(z1,8):#x}
    v_cmp_lt_u32 vcc, 7, v16
    v_and_b32 v21, 4, v14
    v_and_b32 v22, 7, v16
    v_cndmask_b32 v17, v17, v18, vcc
    v_cndmask_b32 v19, v19, v20, vcc
    v_cmp_ne_u32 vcc, 0, v21
    v_lshlrev_b32 v22, 2, v22
    v_lshrrev_b32 v15, 5, v0
    v_cndmask_b32 v17, v17, v19, vcc
    v_bfe_u32 v17, v17, v22, 4
    v_add_u32 v17, v17, v16
    v_lshlrev_b32 v15, 2, v15
    s_mov_b32 s50, 0x3f80
    """)
    for (zr, dst) in ((14, 40), (17, 48)):
        a(f"""v_and_b32 v18, 1, v{zr}
        v_lshlrev_b32 v18, 4, v18
        v_lshlrev_b32 v18, v18, s50
        v_lshrrev_b32 v19, 1, v{zr}
        v_sub_u32 v19, v19, v15""")
        for d in range(8): a(f"v_cmp_eq_u32 s[{52+2*d}:{53+2*d}], {8*(d>>2) + (d&3)}, v19")
        for d in range(8): a(f"v_cndmask_b32 v{dst+d}, 0, v18, s[{52+2*d}:{53+2*d}]")
    a(f"""
    s_mov_b32 s50, {L2E:#x}
    s_mov_b32 s51, {L2E_LO:#x}
    s_mov_b32 s52, {LN2:#x}
    s_mov_b32 s53, {f2u(248.0):#x}
    s_mov_b32 s54, {f2u(8.0):#x}
    s_waitcnt vmcnt(0) lgkmcnt(0)
    s_add_u32 s92, s92, 0x9e3779b1
    """)
    stamp("Afirst")
    if "nossm" in OPT: a("s_branch a_end")
    def exp_bf16(x, t, lo):
        a(f"""v_mul_f32 v{t}, s50, v{x}
        v_fma_f32 v{lo}, v{x}, s50, -v{t}
        v_exp_f32 v{t}, v{t}
        v_fma_f32 v{lo}, v{x}, s51, v{lo}
        v_mul_f32 v{lo}, s52, v{lo}
        v_fma_f32 v{t}, v{t}, v{lo}, v{t}
        v_cvt_pk_bf16_f32 v{t}, v{t}, v{t}
        v_lshlrev_b32 v{x}, 16, v{t}""")
    for r in range(4, 10): a(f"v_lshlrev_b32 v{r}, 16, v{r}")
    exp_bf16(4, 20, 21)
    exp_bf16(6, 20, 21)
    a("""
    v_mul_f32 v6, v6, v4
    v_mul_f32 v7, v7, v4
    v_mul_f32 v8, v8, v4
    v_mul_f32 v9, v9, v4
    v_mul_f32 v6, s50, v6                ; -Re(z)*log2e
    v_mul_f32 v7, 0.15915494, v7         ; Im(z)/(2pi)
    v_add_f32 v8, v8, v8
    v_mul_f32 v9, -2.0, v9
    """)
    DL = [8, 1, 2, 4, 248]
    DS = {8: "s54", 1: "1.0", 2: "2.0", 4: "4.0", 248: "s53"}
    MR = {d: 24 + 2*i for i, d in enumerate(DL)}
    def mkE(d):
        a(f"""v_mul_f32 v21, {DS[d]}, v6
        v_mul_f32 v22, {DS[d]}, v7
        v_exp_f32 v21, -v21
        v_fract_f32 v22, v22
        v_cos_f32 v20, v22
        v_sin_f32 v22, v22
        v_mul_f32 v{MR[d]}, v21, v20
        v_mul_f32 v{MR[d]+1}, v21, v22""")
    P = 56; Dt = 88; YO = 120; ACC = 152
    R = lambda z: 34 + 2*(z % 3)
    def chain(dl, conj, mid=None):
        n = "-" if conj else ""; p = "" if conj else "-"
        for z in range(len(dl) + 1):
            cur, nxt = R(z), R(z+1)
            if z < len(dl):
                W = MR[dl[z]]
                a(f"v_mul_f32 v{nxt}, v{cur}, v{W}\nv_mul_f32 v{nxt+1}, v{cur+1}, v{W}")
            if z & 1: a(f"v_cvt_pk_bf16_f32 v{P+(z>>1)}, v{R(z-1)}, v{cur}")
            if z < len(dl): a(f"v_fma_f32 v{nxt}, {p}v{cur+1}, v{W+1}, v{nxt}\nv_fma_f32 v{nxt+1}, {n}v{cur}, v{W+1}, v{nxt+1}")
            if z & 1: a(f"v_cvt_pk_bf16_f32 v{P+16+(z>>1)}, v{R(z-1)+1}, v{cur+1}")
            if mid and z == 4: mid()
    def swaps(comp):
        for pr in range(2):
            for t in range(4): a(f"v_permlane32_swap_b32 v{P+16*comp+8*pr+t}, v{P+16*comp+8*pr+4+t}")
    def tmfma(comp, sel):
        for blk in range(2): a(f"v_mfma_f32_32x32x16_bf16 {vr(Dt+16*blk,16)}, {vr(P+16*comp+4*blk,4)}, {vr(sel,4)}, 0")
        for blk in range(2): a(f"v_mfma_f32_32x32x16_bf16 {vr(Dt+16*blk,16)}, {vr(P+16*comp+8+4*blk,4)}, {vr(sel+4,4)}, {vr(Dt+16*blk,16)}")
    def tcvt(dst):
        for i in range(16): a(f"v_cvt_pk_bf16_f32 v{dst+i}, v{Dt+2*i}, v{Dt+2*i+1}")
    mkE(8)
    a(f"v_mov_b32 v{R(0)}, 1.0\nv_mov_b32 v{R(0)+1}, 0")
    chain([8]*31, False)
    mkE(1); swaps(0); swaps(1); tmfma(0, 40); mkE(2); mkE(4); tcvt(YO); tmfma(1, 40); mkE(248)
    a(f"v_mov_b32 v{R(0)}, v8\nv_mov_b32 v{R(0)+1}, v9")
    deltas = [1]*8 + [248] + [2]*4 + [248] + [4]*2 + [248] + [4]*2 + [248, 8, 248, 8, 248, 8, 248, 8]
    chain(deltas, True, mid=lambda: tcvt(YO+16))
    a("v_lshl_add_u32 v21, s41, 6, v0\nv_cmp_eq_u32 vcc, 0, v21\nv_sub_u32 v21, 63, v0")
    swaps(0); swaps(1); tmfma(0, 48)
    a(f"""
    v_cndmask_b32 v5, 0, v5, vcc
    v_lshl_add_u32 v21, v21, 4, s42
    s_lshl_b32 s46, s3, 4
    v_add_u32 v22, s46, v23
    v_xor_b32 v20, 16, v22               ; partner's
    v_mov_b32 v19, 0
    s_nop 5
    """)
    tcvt(P); tmfma(1, 48)
    for i in range(4): a(f"v_mfma_f32_32x32x16_bf16 {vr(ACC,16)}, {vr(P+4*i,4)}, {vr(YO+4*i,4)}, " + ("0" if i == 0 else vr(ACC,16)))
    a("s_nop 7")
    tcvt(P+16)
    a("s_nop 1")
    for i in range(4, 8): a(f"v_mfma_f32_32x32x16_bf16 {vr(ACC,16)}, {vr(P+4*i,4)}, {vr(YO+4*i,4)}, {vr(ACC,16)}")
    stamp("Akgen")
    if "noconv" in OPT: a("s_branch a_end")
    CA = 24; CU = 68; CF = 132
    for i in range(44): a(f"v_mov_b32 v{CA+i}, 0")
    for i in range(32): a(f"v_mov_b32 v{CU+i}, 0")
    a(f"""
    v_and_b32 v12, 31, v0
    v_lshrrev_b32 v13, 5, v0             ; h
    v_lshlrev_b32 v16, 5, v12
    v_lshl_add_u32 v16, v13, 4, v16
    s_lshl_b32 s45, s41, 7
    s_sub_u32 s44, s43, s45
    s_sub_u32 s44, s44, 96
    v_add_u32 v16, s44, v16
    s_lshl_b32 s45, s41, 2
    v_lshlrev_b32 v17, 3, v13
    v_sub_u32 v17, v17, v12
    v_lshlrev_b32 v17, 1, v17            ; 2*(8h - b)
    v_and_b32 v18, 1, v12
    v_cmp_eq_u32 s[56:57], 1, v18        ; b odd
    v_xor_b32 v18, 1, v18
    v_mul_u32_u24 v18, {KC + 2}, v18
    s_lshl_b32 s46, s41, 8
    s_sub_u32 s46, s42, s46
    s_add_u32 s46, s46, {62 + 120*32}
    v_add3_u32 v17, v17, v18, s46
    v_subrev_u32 v18, 2048, v17
    v_add_f32 v{ACC}, v{ACC}, v5
    v_lshl_add_u32 v133, v0, 2, s42
    s_add_u32 s46, s43, 4096
    v_lshl_add_u32 v138, v0, 4, s46
    """)
    for G in range(4): a(f"v_add_u32 v{134+G}, {(3-G)*1024 + KC}, v21")
    a(f"""
    s_cmp_ge_u32 s27, 28
    s_cbranch_scc1 a_s_g2
    a_s_w2:
    ds_read_b128 v[8:11], v23 offset:128
    s_waitcnt lgkmcnt(0)
    v_or_b32 v8, v8, v9
    v_or3_b32 v8, v8, v10, v11
    v_cmp_eq_u32 vcc, 0, v8
    s_cbranch_vccnz a_s_g2
    s_sleep 1
    s_branch a_s_w2
    a_s_g2:
    s_setprio 3
    s_cmp_eq_u32 s41, 0
    s_cbranch_scc1 a_s_even
    """)
    d = lambda r: f"v{ACC+r}" if r < 16 else f"v{r-24}"
    units = [
      (0, 0, [(7,6),(5,4),(3,2),(1,0)]), (0, 1, [(8,7),(6,5),(4,3),(2,1)]),
      (1, 0, [(11,11),(10,10),(10,9),(9,9)]), (1, 1, [(11,11),(11,10),(10,10),(9,9)]),
      (2, 0, [(13,13),(13,32),(12,12),(12,12)]), (2, 1, [(13,13),(13,13),(32,12),(12,12)]),
      (3, 0, [(15,15),(15,33),(14,14),(14,14)]), (3, 1, [(15,15),(15,15),(33,14),(14,14)])]
    def build(us):
        for ui in us:
            G, cp, prs = units[ui]; o = 100 + 4*ui
            for t, (lo, hi) in enumerate(prs): a(f"v_cvt_pk_bf16_f32 v{o+t}, {d(lo)}, {d(hi)}")
            if cp == 0: a(f"ds_write_b128 v21, {vr(o,4)} offset:{(3-G)*1024}")
            else: a(f"ds_write2_b32 v{134+G}, v{o}, v{o+1} offset0:0 offset1:1\nds_write2_b32 v{134+G}, v{o+2}, v{o+3} offset0:2 offset1:3")
    for i in range(3): a(f"ds_write_b128 v138, {vr(ACC+4*i,4)} offset:{1024*i}")
    a("ds_write_b32 v22, v19 offset:256")
    lds_wait("a_s_o0", 20, 256, 8)
    a("ds_read_b128 v[140:143], v21\ns_waitcnt lgkmcnt(0)")
    for i in range(4): a(f"v_add_f32 v{ACC+12+i}, v{ACC+12+i}, v{140+i}")
    a(f"v_cndmask_b32 v8, {d(12)}, {d(13)}, s[56:57]\nv_cndmask_b32 v9, {d(14)}, {d(15)}, s[56:57]")
    build([4, 5, 6, 7])
    a(f"s_branch a_s_u\na_s_even:\nds_write_b128 v21, {vr(ACC+12,4)}\nds_write_b32 v22, v19 offset:256")
    lds_wait("a_s_e0", 20, 256, 8)
    for i in range(3): a(f"ds_read_b128 {vr(140+4*i,4)}, v138 offset:{1024*i}")
    a("v_cmp_eq_u32 vcc, 0, v0\ns_waitcnt lgkmcnt(0)")
    for i in range(12): a(f"v_add_f32 v{ACC+i}, v{ACC+i}, v{140+i}")
    build([0, 1, 2, 3])
    a(f"""
    v_cvt_pk_bf16_f32 v132, {d(0)}, v19
    s_mov_b64 exec, 0x7fff
    ds_write_b32 v133, v19 offset:4096   ; zeros behind both copies; the odd copy ends with K[0]
    s_mov_b64 exec, 0xffff
    v_cndmask_b32 v132, 0, v132, vcc
    ds_write_b32 v133, v132 offset:{4096 + KC}
    s_mov_b64 exec, -1
    a_s_u:
    ds_write_b32 v22, v19 offset:268
    s_setprio 0
    s_lshr_b32 s46, s3, 1
    s_lshl_b32 s46, s46, 2
    v_add_u32 v9, s46, v23
    """)
    lds_wait("a_s_uw", 9, 448, 8)
    for q in range(4):
        a(f"s_add_u32 s46, s45, {q}\ns_lshl_b32 exec_lo, -1, s46\ns_mov_b32 exec_hi, exec_lo")
        for es in range(2): a(f"ds_read_b128 {vr(CU+8*q+4*es,4)}, v16 offset:{es*2048 + (3-q)*32}")
        a("s_mov_b64 exec, -1")
        for es in range(2): a(f"ds_read_b128 {vr(CU+32+8*q+4*es,4)}, v16 offset:{es*2048 + 1024 + (3-q)*32}")
        if q == 2: a("s_waitcnt lgkmcnt(4)")
    lds_wait("a_s_o1", 20, 268, 8)
    stamp("Abuilt")
    steps = [(k, q, es) for k in range(4) for q in range(4) for es in range(2)]
    def frd(i):
        k, q, es = steps[i]; b = CF + 8*(i & 3); o = (6 - 2*q + es) * 8
        if q == 0 and es == 0 and k: a("v_subrev_u32 v17, 512, v17\nv_subrev_u32 v18, 512, v18")
        a(f"""ds_read2_b32 {vr(b,2)}, v17 offset0:{o} offset1:{o+1}
        ds_read2_b32 {vr(b+2,2)}, v17 offset0:{o+2} offset1:{o+3}
        ds_read2_b32 {vr(b+4,2)}, v18 offset0:{o} offset1:{o+1}
        ds_read2_b32 {vr(b+6,2)}, v18 offset0:{o+2} offset1:{o+3}""")
    for i in range(3): frd(i)
    for i, (k, q, es) in enumerate(steps):
        b = CF + 8*(i & 3); U0 = vr(CU+8*q+4*es, 4); U1 = vr(CU+32+8*q+4*es, 4)
        lo = vr(CA+4*k, 16); hi = vr(CA+16+4*k, 16)
        w = f"s_waitcnt lgkmcnt({4*min(2, 31-i)})"
        a(w)
        if q == 0 and es == 0 and k: a("s_nop 9")
        a(f"v_mfma_f32_32x32x16_bf16 {lo}, {U0}, {vr(b,4)}, {lo}")
        a(f"v_mfma_f32_32x32x16_bf16 {hi}, {U1}, {vr(b,4)}, {hi}")
        if i + 3 < 32: frd(i+3)
        a(f"v_mfma_f32_32x32x16_bf16 {hi}, {U0}, {vr(b+4,4)}, {hi}")
    stamp("Aconv")
    a(f"""
    ds_write_b32 v22, v19 offset:260
    s_lshl_b32 s46, s41, 12
    s_add_u32 s46, s46, s42
    v_lshl_add_u32 v16, v0, 4, s46
    s_lshl_b32 s46, s41, 13
    s_sub_u32 s46, 4096, s46
    v_add_u32 v17, s46, v16              ; partner's
    v_lshlrev_b32 v18, 4, v0
    s_lshl_b32 s44, s40, 12
    s_lshl_b32 s45, s41, 11
    s_add_u32 s44, s44, s45
    s_add_u32 s44, s44, {WS_Y}
    s_lshl_b32 s59, s40, 1
    s_add_u32 s59, s59, s41
    s_mul_i32 s59, s59, {FS}
    s_add_u32 s59, s59, {FL_Y}
    """)
    lds_wait("a_s_y1", 20, 260, 12)
    a("s_cmp_eq_u32 s41, 0\ns_cbranch_scc1 a_s_y0")
    for i in range(4): a(f"ds_write_b128 v16, {vr(CA+4*i,4)} offset:{1024*i}")
    a("ds_write_b32 v22, v19 offset:264\ns_waitcnt lgkmcnt(0)")
    for i in range(16): a(f"v_mov_b32 v{CA+i}, v{CA+16+i}")
    a("s_branch a_s_y2\na_s_y0:")
    for i in range(4): a(f"ds_write_b128 v16, {vr(CA+16+4*i,4)} offset:{1024*i}")
    a("ds_write_b32 v22, v19 offset:264\na_s_y2:")
    lds_wait("a_s_y3", 20, 264, 12)
    for i in range(4): a(f"ds_read_b128 {vr(CU+4*i,4)}, v17 offset:{1024*i}")
    a("s_waitcnt lgkmcnt(0)")
    for i in range(16): a(f"v_add_f32 v{CA+i}, v{CA+i}, v{CU+i}")
    for i in range(8): a(f"v_cvt_pk_bf16_f32 v{CF+i}, v{CA+2*i}, v{CA+2*i+1}")
    for g in range(2): a(f"buffer_store_dwordx4 {vr(CF+4*g,4)}, v18, s[36:39], s44 offen offset:{1024*g} sc1")
    stamp("Aend")
    a("s_mov_b32 s62, s59\ns_branch a_end1")
    a(f"""a_end:
    s_mov_b32 s62, 0
    a_end1:
    v_mov_b32 v116, v0
    s_lshl_b32 s44, s3, 2
    s_add_u32 s44, s44, {L_FL}
    v_mov_b32 v4, s44
    v_mov_b32 v5, 0
    ds_write_b32 v4, v5 offset:400""")

S = [0, 16]; O = 32; NEG = 48; P = 64; KF = [72, 76]; TF = [80, 84]; VF = [88, 96]; Q = 104; QL = 108; QH = 110
vK, vT, vV = 112, 113, 114
def rdK(buf, t): a(f"ds_read_b128 {vr(KF[buf],4)}, v{vK} offset:{1024*t}")
def rdT(buf, q): a(f"ds_read2st64_b64 {vr(TF[buf],4)}, v{vT} offset0:{2*q} offset1:{2*q+1}")
def rdV(buf, t):
    a(f"""s_mov_b64 exec, s[18:19]
    ds_read_b128 {vr(VF[buf],4)}, v{vV} offset:{t*1152}
    ds_read_b128 {vr(VF[buf]+4,4)}, v{vV} offset:{t*1152+576}
    s_mov_b64 exec, -1""")
def qk_tail(t, tb):
    tt = t & 3
    a(f"v_mfma_f32_32x32x8_bf16 {vr(S[t&1],16)}, {vr(TF[tb]+2*(tt>>1),2)}, {vr(QH if tt&1 else QL,2)}, {vr(S[t&1],16)}")
def pv(t, half): a(f"v_mfma_f32_32x32x16_bf16 {vr(O,16)}, {vr(VF[t&1]+4*half,4)}, {vr(P+4*half,4)}, {vr(O,16)}")
def ex(t, r0, r1):
    for r in range(r0, r1): a(f"v_exp_f32 v{S[t&1]+r}, v{S[t&1]+r}")
def cv(t, c0, c1):
    for c in range(c0, c1): a(f"v_cvt_pk_bf16_f32 v{P+c}, v{S[t&1]+2*c}, v{S[t&1]+2*c+1}")
LATER = []
def att_run():
    tag = "b_f"
    def qk_main(t): a(f"v_mfma_f32_32x32x16_bf16 {vr(S[t&1],16)}, {vr(KF[t&1],4)}, {vr(Q,4)}, 0")
    rdK(0, 0); rdT(0, 0); rdK(1, 1); rdV(0, 0)
    a("s_mov_b32 s26, 0\ns_waitcnt lgkmcnt(3)")
    qk_main(0); qk_tail(0, 0)
    a(f"s_nop 7\ns_nop 3\n.p2align 6\n{tag}_loop:")
    def at(it, t, code):
        a(f"s_cmp_eq_u32 s26, {it}\ns_cbranch_scc1 {tag}_e{it}_{t}\n{tag}_n{it}_{t}:")
        def h():
            a(f"{tag}_e{it}_{t}:"); code(); a(f"s_branch {tag}_n{it}_{t}")
        LATER.append(h)
    def bar1():
        a("s_cmp_eq_u32 s62, 0\ns_cbranch_scc1 b_nyf\ns_waitcnt vmcnt(0)")
        flag_set("s62", 122)
        a("b_nyf:\ns_barrier\ns_setprio 3")
    def chk1():
        a(f"""v_mov_b32 v121, {L_FL}
        {tag}_f1:
        ds_read_b96 v[124:126], v121 offset:464
        s_waitcnt lgkmcnt(0)
        v_or3_b32 v124, v124, v125, v126
        v_cmp_eq_u32 vcc, 0, v124
        s_cbranch_vccz {tag}_f1""")
    def half():
        a(f"""s_lshl_b32 s27, s3, 2
        s_add_u32 s27, s27, {L_KT}
        v_mov_b32 v121, s27
        v_mov_b32 v122, s92
        ds_write_b32 v121, v122
        s_setprio 1""")
    EV = {(1,2): lambda: a("s_setprio 2"), (1,4): bar1, (0,5): chk1, (5,0): lambda: a("s_setprio 2"), (6,1): half, (7,5): lambda: a("s_setprio 0")}
    for t in range(8):
        for (it, tt), code in EV.items():
            if tt == t: at(it, t, code)
        def adv():
            if t == 7:
                a(f"""v_add_u32 v{vK}, 8192, v{vK}
                v_add_u32 v{vT}, 2048, v{vT}
                v_add_u32 v{vV}, 9216, v{vV}
                s_add_u32 s26, s26, 1
                s_cmp_lt_u32 s26, 8""")
        def rK():
            rdK(t&1, t+2)
            if (t & 3) == 1: rdT(((t>>2)+1)&1, (t>>2)+1)
        M1 = lambda: qk_main(t+1); M2 = lambda: pv(t-1, 1); M3 = lambda: qk_tail(t+1, ((t+1)>>2)&1); M4 = lambda: pv(t, 0)
        rV = lambda: rdV((t+1)&1, t+1)
        E = lambda i, j: ex(t, i, j); C = lambda i, j: cv(t, i, j)
        a("s_waitcnt lgkmcnt(0)")
        o = OPT.get("ord", "a")
        if o == "a":
            M1(); rK(); E(0,4); M2(); rV(); E(4,8); C(0,4); M3(); E(8,12); M4(); adv(); E(12,16); C(4,8)
        elif o == "b":
            M1(); rK(); M2(); rV(); E(0,8); C(0,4); M3(); E(8,9); M4(); adv(); E(9,16); C(4,8)
        elif o == "c":
            M1(); rK(); E(0,5); M2(); rV(); E(5,8); C(0,4); M3(); E(8,13); M4(); adv(); E(13,16); C(4,8)
        elif o == "d":
            M1(); rK(); E(0,4); C(0,1); M2(); rV(); E(4,8); C(1,3); M3(); E(8,12); C(3,5); E(12,13); M4(); adv(); E(13,16); C(5,8)
        elif o == "e":
            M1(); rK(); M2(); rV(); M3(); E(0,8); C(0,4); E(8,10); M4(); adv(); E(10,16); C(4,8)
        elif o == "f":
            M1(); E(0,2); rK(); E(2,4); M2(); E(4,6); rV(); E(6,8); C(0,4); M3(); E(8,12); M4(); adv(); E(12,16); C(4,8)
    a(f"s_cbranch_scc1 {tag}_loop")
    stamp("Bloop")
    a("s_nop 1")
    pv(7, 1)

def phaseB():
    TOUCH = "" if OPT.get("tch", "0") == "0" else f"""s_cmp_lg_u32 s3, 10
    s_cbranch_scc1 b_ntch
    v_lshlrev_b32 v121, 16, v116
    s_mov_b32 s12, {WS_O}
    buffer_load_dword v114, v121, s[36:39], s12 offen
    s_mov_b32 s12, {WS_FL}
    buffer_load_dword v113, v121, s[36:39], s12 offen
    buffer_load_dword v112, v121, s[32:35], 0 offen
    s_mov_b32 s12, {64 << 16}
    buffer_load_dword v111, v121, s[32:35], s12 offen
    b_ntch:"""
    a(f"""
    s_cmp_ge_u32 s3, 8
    s_cbranch_scc1 b_aux
    s_and_b32 s4, s2, 31                 ; head
    s_lshr_b32 s5, s2, 5
    s_lshl_b32 s5, s5, 3
    s_add_u32 s5, s5, s3
    s_and_b32 s7, s4, 3
    v_lshlrev_b32 v{vK}, 4, v116
    v_and_b32 v117, 31, v116
    v_lshlrev_b32 v119, 4, v116
    s_lshl_b32 s8, s3, 10
    s_add_u32 s8, s8, {L_Q}
    v_add_u32 v120, s8, v{vK}
    s_lshl_b32 s8, s3, 8
    s_add_u32 s8, s8, {L_Q + 8192}
    v_lshl_add_u32 v118, v117, 3, s8
    """)
    for i in range(16): a(f"v_mov_b32 v{O+i}, 0")
    for i in range(4): a(f"v_mov_b32 v{P+4+i}, 0")
    a(f"""v_and_b32 v121, 27, v116
    v_cmp_eq_u32 vcc, 18, v121
    v_mov_b32 v121, 0x3f803f80
    s_nop 0
    v_cndmask_b32 v{VF[0]}, 0, v121, vcc""")
    for i in range(1, 16): a(f"v_mov_b32 v{VF[0]+i}, v{VF[0]}")
    a(f"""
    v_lshlrev_b32 v{vT}, 3, v116
    v_add_u32 v{vT}, {L_KT}, v{vT}
    v_lshrrev_b32 v121, 5, v116
    v_mul_u32_u24 v121, 288, v121
    v_lshl_add_u32 v{vV}, v117, 4, v121
    v_add_u32 v{vV}, {L_V}, v{vV}
    s_mov_b32 s18, 0x3ffff
    s_mov_b32 s19, 0x3ffff
    s_mov_b32 s21, {f2u(18**-0.5 * 1.4426950408889634):#x}
    v_cmp_lt_u32 s[22:23], 31, v116
    s_setprio 3
    """)
    stamp("Bflag")
    a(f"""
    s_barrier
    ds_read_b128 {vr(Q,4)}, v120
    ds_read_b64 {vr(QL,2)}, v118
    s_waitcnt lgkmcnt(0)
    s_barrier
    """)
    for r in list(range(Q, Q+4)) + [QL, QL+1]:
        a(f"""v_lshlrev_b32 v121, 16, v{r}
        v_and_b32 v{r}, 0xffff0000, v{r}
        v_mul_f32 v121, s21, v121
        v_mul_f32 v{r}, s21, v{r}
        v_cvt_pk_bf16_f32 v{r}, v121, v{r}""")
    a(f"""
    s_cmp_eq_u32 s7, 1
    s_cselect_b32 vcc_lo, -1, 0
    s_mov_b32 vcc_hi, 0
    v_cndmask_b32 v{Q}, v{Q}, 0, vcc
    s_cmp_eq_u32 s7, 2
    s_cselect_b32 vcc_hi, -1, 0
    s_mov_b32 vcc_lo, 0
    v_cndmask_b32 v{Q+3}, v{Q+3}, 0, vcc
    s_cmp_eq_u32 s7, 3
    s_cselect_b64 vcc, -1, 0
    v_cndmask_b32 v{QL}, v{QL}, 0, vcc
    s_cmp_eq_u32 s7, 0
    s_cselect_b64 vcc, -1, 0
    v_cndmask_b32 v{QL+1}, v{QL+1}, 0, vcc
    v_cndmask_b32 v{QH}, 0, v{QL}, s[22:23]
    v_cndmask_b32 v{QH+1}, 0, v{QL+1}, s[22:23]
    v_cndmask_b32 v{QL}, v{QL}, 0, s[22:23]
    v_cndmask_b32 v{QL+1}, v{QL+1}, 0, s[22:23]
    """)
    stamp("Bgo")
    att_run()
    a(f"""
    s_mul_i32 s10, s5, {O_T}
    s_add_u32 s10, s10, {WS_O}
    s_lshl_b32 s11, s4, 10
    s_add_u32 s11, s11, s10
    s_lshl_b32 s12, s4, 7
    s_add_u32 s12, s12, s10
    s_add_u32 s12, s12, 32768
    s_lshl_b32 s59, s5, 5
    s_add_u32 s59, s59, s4
    s_mul_i32 s59, s59, {FS}
    s_add_u32 s59, s59, {FL_B}
    s_mov_b32 s27, {f2u(2.0**100):#x}
    v_lshlrev_b32 v127, 2, v116
    s_nop 1
    v_add_f32 v122, abs(v{O}), abs(v{O+1})
    v_add_f32 v123, abs(v{O+2}), abs(v{O+3})
    v_add_f32 v124, abs(v{O+4}), abs(v{O+5})
    v_add_f32 v125, abs(v{O+6}), abs(v{O+7})
    v_add_f32 v126, abs(v{O+8}), abs(v{O+9})
    v_add_f32 v122, v122, v123
    v_add_f32 v124, v124, v125
    v_add_f32 v126, v126, v{O+10}
    v_add_f32 v122, v122, v124
    v_add_f32 v122, v122, v126
    v_cmp_nle_f32 s[28:29], 1.0, v{O+10}
    v_cmp_ngt_f32 vcc, s27, v122
    s_or_b64 vcc, vcc, s[28:29]
    s_cbranch_vccnz b_slow
    b_fin:
    v_rcp_f32 v121, v{O+10}
    s_nop 0
    """)
    for r in range(10): a(f"v_mul_f32 v{O+r}, v{O+r}, v121")
    for c in range(5): a(f"v_cvt_pk_bf16_f32 v{P+c}, v{O+2*c}, v{O+2*c+1}")
    a(f"""
    buffer_store_dwordx4 {vr(P,4)}, v119, s[36:39], s11 offen sc1
    s_mov_b32 exec_hi, 0
    buffer_store_dword v{P+4}, v127, s[36:39], s12 offen sc1
    s_mov_b32 exec_hi, -1
    v_mov_b32 v0, v116
    s_branch c_start
    """)
    for h in LATER: h()
    a(f"""
    b_aux:
    s_and_b32 s4, s2, 31
    s_mul_i32 s6, s4, 9
    s_lshr_b32 s6, s6, 2
    v_mov_b32 v8, {L_FL}
    s_setprio 3
    s_cmp_lg_u32 s3, 11
    s_cbranch_scc1 b_nopoll
    s_mul_i32 s9, s4, 18
    v_lshrrev_b32 v7, 5, v116
    v_lshl_add_u32 v9, v7, 1, s6
    v_add_u32 v10, 72, v9
    v_lshrrev_b32 v10, 3, v10
    v_and_b32 v11, 31, v116
    v_lshl_add_u32 v10, v10, 5, v11
    v_mul_u32_u24 v120, {FS}, v10
    v_mul_u32_u24 v10, 17, v7
    v_add_u32 v10, s9, v10
    v_add_u32 v10, 1152, v10
    v_lshrrev_b32 v10, 6, v10
    v_lshl_add_u32 v10, v10, 5, v11
    v_mul_u32_u24 v121, {FS}, v10
    v_lshrrev_b32 v10, 3, v9
    s_lshr_b32 s9, s2, 5
    s_lshl_b32 s9, s9, 2
    v_and_b32 v11, 3, v116
    v_add_u32 v11, s9, v11
    v_lshl_add_u32 v10, v10, 5, v11
    v_mul_u32_u24 v122, {FS}, v10
    s_cmp_ge_u32 s2, 224
    s_cselect_b32 s9, 16, 0
    v_add_u32 v9, s9, v8
    b_pw:
    s_sleep 1
    ds_read_b128 v[12:15], v9 offset:416
    s_waitcnt lgkmcnt(0)
    v_or_b32 v12, v12, v13
    v_or3_b32 v12, v12, v14, v15
    v_cmp_eq_u32 vcc, 0, v12
    s_cbranch_vccz b_pw
    """)
    if OPT.get("spw", "1") == "1":
        a("s_cmp_lt_u32 s2, 224\ns_cbranch_scc1 b_pw2_x")
        lds_wait("b_pw2", 8, 400, 12, True)
        a("b_pw2_x:")
    stamp("Xpw")
    flag_poll("b_pa", 3, 120)
    stamp("Xpoll")
    a(f"""
    v_mov_b32 v9, 0
    ds_write_b32 v8, v9 offset:244
    b_nopoll:
    s_bitcmp1_b32 s3, 0
    s_cbranch_scc1 b_ldv
    s_bfe_u32 s7, s4, 0x10001
    s_add_u32 s8, s6, s7
    s_lshl_b32 s8, s8, 9
    s_lshl_b32 s9, s6, 9
    s_mul_i32 s10, s7, {1024 - 8}
    s_sub_u32 s9, s9, s10
    s_add_u32 s9, s9, 1024
    v_lshlrev_b32 v118, 4, v116
    v_lshrrev_b32 v119, 1, v116
    v_lshlrev_b32 v119, 4, v119
    v_and_b32 v120, 1, v116
    v_lshl_add_u32 v119, v120, 2, v119
    s_lshr_b32 s15, s2, 5
    s_mul_i32 s15, s15, {8*QK_T}
    s_cmp_eq_u32 s3, 10
    s_cbranch_scc1 b_ldt
    """)
    def zflag(off):
        a(f"""s_mov_b32 s13, m0
        s_mov_b32 m0, {L_FL + off}
        v_mov_b32 v13, 0x7ffffff0
        s_mov_b64 exec, 1
        buffer_load_dword v13, s[36:39], 0 offen lds
        s_mov_b64 exec, -1
        s_mov_b32 m0, s13""")
    def stream(tag, op, vreg, sbase, lq, lk, step, fl):
        a(f"s_add_u32 s15, s15, {sbase}\ns_add_u32 s16, {sbase}, {72*512}\ns_mov_b32 m0, {lq}\ns_mov_b32 s12, 8")
        lds_wait(f"{tag}_go", 8, 244, 9, True)
        def loop(t, sreg):
            a(f"""{t}:
            {op} v{vreg}, s[36:39], {sreg} offen sc1 lds
            s_add_u32 m0, m0, {step}
            s_add_u32 {sreg}, {sreg}, {QK_T}
            s_sub_u32 s12, s12, 1
            s_cmp_lg_u32 s12, 0
            s_cbranch_scc1 {t}""")
        loop(f"{tag}_q", "s15")
        a(f"s_mov_b32 m0, {lk}\ns_mov_b32 s12, 8")
        loop(f"{tag}_1", "s16")
        stamp("Xiss")
        a("s_mov_b32 s12, 8\ns_waitcnt vmcnt(0)")
        stamp("Xland")
        a("s_barrier\ns_barrier")
        loop(f"{tag}_2", "s16")
        zflag(fl)
        a("s_mov_b32 s12, 48")
        loop(f"{tag}_3", "s16")
        a("s_branch b_lend")
    stream("b_k", "buffer_load_dwordx4", 118, "s8", L_Q, 0, 1024, 464)
    a("b_ldt:")
    stream("b_t", "buffer_load_dword", 119, "s9", L_Q + 8192, L_KT, 256, 468)
    a(f"""
    b_ldv:
    s_mov_b32 s10, {9216 - 288}
    """)
    for p in range(9):
        a(f"""v_add_u32 v10, {64*p}, v116
        v_mul_u32_u24 v11, 3641, v10
        v_lshrrev_b32 v11, 16, v11
        v_mul_lo_u32 v11, v11, s10
        v_lshl_add_u32 v{24+p}, v10, 4, v11""")
    a(f"""
    s_bfe_u32 s9, s3, 0x10001
    s_mul_i32 s8, s9, {32*9216}
    s_mul_i32 s10, s4, 288
    s_add_u32 s8, s8, s10
    s_add_u32 s8, s8, {WS_V}
    s_mul_i32 s9, s9, 9216
    s_add_u32 m0, s9, {L_V}
    s_mov_b32 s12, 0
    """)
    a("s_cmp_eq_u32 s3, 9\ns_cbranch_scc1 b_v_go\ns_barrier\ns_barrier\ns_branch b_v")
    lds_wait("b_v_go", 8, 244, 9, True)
    a("b_v:")
    for p in range(9): a(f"buffer_load_dwordx4 v{24+p}, s[36:39], s8 offen sc1 lds\ns_add_u32 m0, m0, {1024 if p < 8 else 1024 + 9216}\ns_nop 0")
    a(f"""
    s_add_u32 s8, s8, {64*9216}
    s_cmp_lg_u32 s12, 0
    s_cbranch_scc1 b_v1
    s_cmp_eq_u32 s3, 9
    s_cbranch_scc1 b_v0
    """)
    zflag(472)
    a(f"""
    s_branch b_v1
    b_v0:
    s_waitcnt vmcnt(0)
    s_barrier
    s_barrier
    b_v1:
    s_add_u32 s12, s12, 1
    s_cmp_lt_u32 s12, 4
    s_cbranch_scc1 b_v
    b_lend:
    s_waitcnt vmcnt(0)
    s_barrier
    s_setprio {OPT.get("aprio", 0)}
    """)
    srd(28, 94, 663552)
    srd(32, 96, 4718592)
    a(f"""
    ; bring wo close (one dword per 128-byte line; speed only)
    s_lshr_b32 s12, s2, 3
    s_lshl_b32 s12, s12, 2
    s_add_u32 s12, s12, s3
    s_sub_u32 s12, s12, 8
    s_lshl_b32 s12, s12, 13
    v_lshlrev_b32 v121, 7, v116
    buffer_load_dword v115, v121, s[28:31], s12 offen
    {TOUCH}
    s_cmp_lg_u32 s3, {99 if ("nossm" in OPT or "noconv" in OPT) else 9}
    s_cbranch_scc1 b_noy
    s_mov_b32 s4, s2
    v_lshrrev_b32 v10, 3, v116
    v_and_b32 v9, 7, v116
    v_lshlrev_b32 v11, 12, v10
    v_lshl_add_u32 v11, v9, 4, v11
    v_xor_b32 v12, v10, v9
    v_lshlrev_b32 v12, 4, v12
    v_lshl_add_u32 v12, v9, 10, v12
    v_add_u32 v12, {L_BOUNCE}, v12
    s_mov_b32 s50, 0x05040100
    s_mov_b32 s51, 0x07060302
    """)
    for p in range(8): a(f"v_xor_b32 v{24+p}, {16*p}, v11")
    a(f"""
    b_y:
    s_lshr_b32 s5, s4, 5
    s_and_b32 s6, s4, 31                 ; sub
    s_lshl_b32 s7, s5, 7
    s_lshr_b32 s8, s6, 4
    s_add_u32 s7, s7, s8
    v_lshl_add_u32 v120, v116, 1, s7
    v_mul_u32_u24 v120, {FS}, v120
    v_add_u32 v120, {FL_Y}, v120
    """)
    flag_poll("b_py", 1, 120)
    a(f"""
    s_lshl_b32 s7, s5, 18
    s_lshl_b32 s8, s6, 7
    s_add_u32 s7, s7, s8
    s_add_u32 s7, s7, {WS_Y}
    s_mov_b32 m0, {L_BOUNCE}
    """)
    for p in range(8):
        a(f"s_nop 0\nbuffer_load_dwordx4 v{24+p}, s[36:39], s7 offen sc1 lds\ns_add_u32 m0, m0, 1024\ns_add_u32 s7, s7, 32768")
    a(f"""
    s_and_b32 s8, s6, 3
    s_lshl_b32 s8, s8, 3
    s_bfe_u32 s9, s6, 0x10002
    s_lshl_b32 s9, s9, 7
    s_add_u32 s8, s8, s9
    s_lshr_b32 s9, s6, 3
    s_lshl_b32 s9, s9, 9
    s_add_u32 s8, s8, s9
    v_add_u32 v17, s8, v10
    v_mul_u32_u24 v17, 2304, v17
    v_lshl_add_u32 v17, v9, 4, v17
    s_lshl_b32 s8, s5, 7
    s_add_u32 s8, s8, 1152
    s_waitcnt vmcnt(0)
    """)
    for j in range(8): a(f"ds_read_b128 {vr(32+4*j,4)}, v12 offset:{j*128}")
    a("s_waitcnt lgkmcnt(0)")
    transpose8(32, 64, 50, 51)
    for c in range(8):
        a(f"s_add_u32 s9, s8, {((c&3)*32 + (c>>2)*256)*2304}\nbuffer_store_dwordx4 {vr(64+4*c,4)}, v17, s[32:35], s9 offen {OPT.get('sty','sc1')}")
    a(f"""
    s_add_u32 s4, s4, 256
    s_cmp_lt_u32 s4, 288
    s_cbranch_scc1 b_y
    b_noy:
    s_setprio 0
    v_mov_b32 v0, v116
    s_lshr_b32 s5, s2, 5                 ; tn
    s_mul_i32 s17, s5, 192
    """)
    for t in range(3):
        a(f"""v_add_u32 v5, {64*t}, v0
        v_mul_u32_u24 v6, 5462, v5
        v_lshrrev_b32 v6, 16, v6             ; row
        v_mul_u32_u24 v7, 12, v6
        v_sub_u32 v7, v5, v7
        v_lshl_add_u32 v7, v7, 4, s17
        v_mul_u32_u24 v8, 1152, v6
        v_add_u32 v{12+t}, v8, v7
        v_and_b32 v9, 4, v6
        v_lshrrev_b32 v10, 3, v6
        v_lshl_add_u32 v9, v10, 1, v9
        v_bfe_u32 v10, v6, 1, 1
        v_add_u32 v9, v9, v10
        v_mul_u32_u24 v9, 18, v9
        v_and_b32 v10, 1, v6
        v_add3_u32 v9, v9, v10, 16
        v_mul_u32_u24 v9, 1152, v9
        v_add_u32 v{16+t}, v9, v7""")
    a(f"""
    s_sub_u32 s8, s3, 8
    s_mul_i32 s10, s8, {9*20736}
    s_mul_i32 s11, s8, {9*3072}
    s_add_u32 s12, s11, {L_V - 18*3072}
    s_cmp_ge_u32 s8, 2
    s_cselect_b32 m0, s12, s11
    s_mov_b32 s12, 20736
    s_mov_b32 s13, 0
    s_cmp_ge_u32 s2, 192
    s_cbranch_scc1 b_wend
    v_and_b32 v9, 7, v0
    v_lshlrev_b32 v9, 2, v9
    v_add_u32 v9, {L_KT}, v9
    s_setprio 3
    b_hw:
    s_sleep 4
    ds_read_b32 v10, v9
    s_waitcnt lgkmcnt(0)
    v_cmp_ne_u32 vcc, s92, v10
    s_cbranch_vccnz b_hw
    b_w:
    s_lshl_b32 s11, s8, 4
    s_add_u32 s11, s11, s13
    s_cmp_eq_u32 s11, {16 + 7}
    s_cselect_b32 m0, {L_KT + 6144}, m0
    s_cmp_lg_u32 s11, {48 + 5}
    s_cbranch_scc1 b_w1
    v_mov_b32 v12, v16
    v_mov_b32 v13, v17
    v_mov_b32 v14, v18
    s_mov_b32 s10, 0
    s_mov_b32 s12, {8*20736}
    b_w1:
    buffer_load_dwordx4 v12, s[28:31], s10 offen lds
    s_add_u32 m0, m0, 1024
    s_add_u32 s13, s13, 1
    buffer_load_dwordx4 v13, s[28:31], s10 offen lds
    s_add_u32 m0, m0, 1024
    s_nop 0
    buffer_load_dwordx4 v14, s[28:31], s10 offen lds
    s_add_u32 m0, m0, 1024
    s_add_u32 s10, s10, s12
    s_cmp_lt_u32 s13, 9
    s_cbranch_scc1 b_w
    b_wend:
    s_setprio 0
    s_mov_b32 s59, 0
    s_waitcnt vmcnt(0)
    """)

def phaseC():
    a("c_start:")
    srd(32, 96, 4718592)
    a(f"""
    s_and_b32 s4, s2, 7
    s_bfe_u32 s6, s2, 0x20003
    s_lshl_b32 s7, s4, 2
    s_add_u32 s7, s7, s6                 ; tm
    s_lshr_b32 s5, s2, 5                 ; tn
    s_mul_i32 s8, s3, 43
    s_lshr_b32 s8, s8, 7                 ; w/3
    s_mul_i32 s9, s8, 3
    s_sub_u32 s9, s3, s9                 ; tb = w%3
    s_lshr_b32 s13, s8, 1                ; kh
    s_and_b32 s14, s8, 1                 ; ta
    v_lshrrev_b32 v5, 5, v0
    v_bfe_u32 v6, v0, 2, 2
    v_lshl_add_u32 v6, v5, 2, v6
    v_mul_u32_u24 v4, 192, v6
    v_bfe_u32 v6, v0, 4, 1
    v_lshl_add_u32 v4, v6, 5, v4
    v_and_b32 v6, 3, v0
    v_lshl_add_u32 v4, v6, 3, v4
    s_lshl_b32 s17, s9, 6
    s_mul_i32 s18, s13, {L_V}
    s_add_u32 s17, s17, s18
    v_add_u32 v4, s17, v4
    s_mul_i32 s18, s13, {L_KT + 6144 - 16*3072}
    s_sub_u32 s18, {L_KT + 6144 - 16*3072}, s18
    v_add_u32 v9, s18, v4
    s_mul_i32 s18, s7, {64*FS}
    s_add_u32 s18, s18, {FL_B}
    v_mul_u32_u24 v120, {FS}, v0
    v_add_u32 v120, s18, v120
    s_cmp_eq_u32 s59, 0
    s_cbranch_scc1 c_nf
    s_waitcnt vmcnt(0)
    """)
    stamp("Back")
    flag_set("s59", 2)
    a("c_nf:\ns_cmp_ge_u32 s2, 192\ns_cbranch_scc1 c_idle\ns_waitcnt lgkmcnt(0)\ns_barrier")
    stamp("Bbar")
    a("s_cmp_lg_u32 s3, 8\ns_cbranch_scc1 c_ni")
    poll_issue(1, 120)
    a("c_ni:")
    for k in range(18):
        va = 4 if k < 16 else 9
        a(f"ds_read_b64_tr_b16 {vr(128+4*k if k < 9 else 32+4*(k-9),2)}, v{va} offset:{k*3072}\nds_read_b64_tr_b16 {vr(130+4*k if k < 9 else 34+4*(k-9),2)}, v{va} offset:{k*3072+8*192}")
        if k % 4 == 3: a("s_waitcnt lgkmcnt(6)")
    a(f"""
    v_lshlrev_b32 v2, 4, v0
    s_mul_i32 s17, s8, {18*1024}
    v_add_u32 v3, s17, v2
    v_and_b32 v11, 31, v0
    v_lshlrev_b32 v11, 2, v11
    v_lshl_add_u32 v11, v5, 9, v11
    v_add_u32 v11, s17, v11
    v_add_u32 v11, {14*1024}, v11
    s_lshl_b32 s15, s7, 1
    s_add_u32 s15, s15, s14
    s_mul_i32 s16, s15, {O_T}
    s_mul_i32 s18, s13, {18*1024}
    s_add_u32 s16, s16, s18
    s_lshl_b32 s18, s9, 10
    s_add_u32 s16, s16, s18
    s_add_u32 s16, s16, {WS_O}
    s_add_u32 m0, s17, s18
    s_cmp_lg_u32 s3, 8
    s_cbranch_scc1 c_np
    """)
    flag_poll("c_pb", 1, 120, issued=True)
    a("c_np:\ns_waitcnt lgkmcnt(0)\ns_barrier")
    stamp("Cflag")
    for i in range(6):
        a("buffer_load_dwordx4 v2, s[36:39], s16 offen sc1 lds")
        if i < 5: a("s_add_u32 m0, m0, 3072\ns_add_u32 s16, s16, 3072")
    a(f"""
    v_and_b32 v6, 19, v0
    v_bfe_u32 v7, v0, 2, 1
    v_lshl_add_u32 v6, v7, 3, v6
    v_bfe_u32 v7, v0, 3, 1
    v_lshl_add_u32 v6, v7, 2, v6         ; token inside the tile
    v_mul_u32_u24 v6, 400, v6
    v_lshl_add_u32 v6, v5, 4, v6
    s_mul_i32 s18, s8, {32*400}
    s_lshl_b32 s19, s9, 7
    s_add_u32 s18, s18, s19
    s_add_u32 s18, s18, 81920
    v_add_u32 v6, s18, v6
    s_lshl_b32 s18, s3, 6
    v_add_u32 v7, s18, v0
    v_mul_u32_u24 v8, 5462, v7
    v_lshrrev_b32 v8, 16, v8             ; row
    v_mul_u32_u24 v10, 12, v8
    v_sub_u32 v10, v7, v10
    v_mul_u32_u24 v7, 400, v8
    v_lshl_add_u32 v7, v10, 5, v7
    v_add_u32 v7, 81920, v7
    v_mul_u32_u24 v5, 2304, v8
    v_lshl_add_u32 v5, v10, 4, v5
    s_mul_i32 s17, s7, {64*2304}
    s_mul_i32 s18, s5, 192
    s_add_u32 s17, s17, s18
    """)
    wf = lambda k: vr(128+4*k if k < 9 else 32+4*(k-9), 4)
    NC = int(OPT.get("nc", 3)); CK = 18 // NC
    for c in range(NC):
        a(f"s_waitcnt vmcnt({6 - (c+1)*CK//3})\ns_barrier")
        if c == 0: stamp("Cfirst")
        ks = list(range(c*CK, (c+1)*CK))
        reg = lambda k: 72 + 4*(k % 6)
        plain = [k for k in ks if k < 14]; tail = [k for k in ks if k >= 14]
        for k in plain: a(f"ds_read_b128 {vr(reg(k),4)}, v3 offset:{k*1024}")
        if tail:
            a(f"s_cmp_eq_u32 s13, 1\ns_cbranch_scc1 c_tl{c}")
            for k in tail: a(f"ds_read_b128 {vr(reg(k),4)}, v3 offset:{k*1024}")
            a(f"s_branch c_tm{c}\nc_tl{c}:")
            for k in tail:
                a(f"""ds_read2_b32 {vr(reg(k),2)}, v11 offset0:0 offset1:32
                ds_read2_b32 {vr(reg(k)+2,2)}, v11 offset0:64 offset1:96
                v_add_u32 v11, 1024, v11""")
            a(f"s_waitcnt lgkmcnt(0)\nc_tm{c}:")
        for i, k in enumerate(ks):
            a(f"s_waitcnt lgkmcnt({CK-1-i})")
            a(f"v_mfma_f32_32x32x16_bf16 v[16:31], {wf(k)}, {vr(reg(k),4)}, " + ("0" if k == 0 else "v[16:31]"))
    stamp("Cmfma")
    a("s_nop 11")
    for rq in range(4): a(f"ds_write_b128 v6, {vr(16+4*rq,4)} offset:{32*rq}")
    a("s_waitcnt lgkmcnt(0)\ns_barrier")
    stamp("Cx")
    a(f"""ds_read_b128 v[32:35], v7
    ds_read_b128 v[36:39], v7 offset:16
    ds_read_b128 v[40:43], v7 offset:{64*400}
    ds_read_b128 v[44:47], v7 offset:{64*400+16}
    s_waitcnt lgkmcnt(0)""")
    for r in range(8): a(f"v_add_f32 v{32+r}, v{32+r}, v{40+r}")
    for c in range(4): a(f"v_cvt_pk_bf16_f32 v{48+c}, v{32+2*c}, v{32+2*c+1}")
    stamp("Ccvt")
    a(f"buffer_store_dwordx4 v[48:51], v5, s[32:35], s17 offen {OPT.get('sto','')}")
    stamp("Cst")
    a("k_done2:")
    if DIAG and "dmax" in OPT:
        a(f"""s_load_dwordx2 s[80:81], s[0:1], 88
        s_waitcnt vmcnt(0)
        s_memrealtime s[74:75]
        s_waitcnt lgkmcnt(0)
        {"s_mov_b32 s72, s74" if DIAG == "end" else ""}
        s_cmp_eq_u32 s72, 0
        s_cbranch_scc1 dg_n
        dg_d:
        s_sleep 20
        s_memrealtime s[78:79]
        s_waitcnt lgkmcnt(0)
        s_sub_u32 s77, s78, s70
        s_cmp_lt_u32 s77, 4000
        s_cbranch_scc1 dg_d
        s_lshl_b32 s76, s72, 8
        s_or_b32 s76, s76, s2
        s_lshl_b32 s77, s70, 8
        s_not_b32 s77, s77
        v_mov_b32 v2, 0
        v_mov_b32 v3, s76
        v_mov_b32 v4, s77
        s_mov_b64 exec, 1
        global_atomic_umax v2, v3, s[80:81] sc1
        global_atomic_umax v2, v4, s[80:81] offset:128 sc1
        s_mov_b64 exec, -1
        dg_n:
        s_cmp_lg_u32 s2, 0
        s_cbranch_scc1 k_done
        s_cmp_lg_u32 s3, 4
        s_cbranch_scc1 k_done
        dg_w:
        s_memrealtime s[78:79]
        s_waitcnt lgkmcnt(0)
        s_sub_u32 s77, s78, s70
        s_cmp_lt_u32 s77, 14000
        s_cbranch_scc1 dg_w
        v_mov_b32 v2, 0
        global_load_dword v3, v2, s[80:81] sc1
        global_load_dword v4, v2, s[80:81] offset:128 sc1
        s_waitcnt vmcnt(0)
        v_readfirstlane_b32 s76, v3
        v_readfirstlane_b32 s77, v4
        s_nop 3
        s_not_b32 s77, s77
        {"s_and_b32 s76, s76, 255" if OPT["dmax"] == "id" else "s_sub_u32 s76, s76, s77"}
        {"s_mul_i32 s76, s76, 25" if OPT["dmax"] == "id" else "s_lshr_b32 s76, s76, 8"}
        s_min_u32 s76, s76, 10000
        s_lshl_b32 s76, s76, 2
        s_add_u32 s76, s76, 15000
        dg_spin:
        s_memrealtime s[78:79]
        s_waitcnt lgkmcnt(0)
        s_sub_u32 s77, s78, s70
        s_cmp_lt_u32 s77, s76
        s_cbranch_scc1 dg_spin""")
    elif DIAG:
        a(f"""s_cmp_lg_u32 s2, {OPT.get("dwg", 0)}
        s_cbranch_scc1 k_done
        s_cmp_lg_u32 s3, {OPT.get("dw", 4)}
        s_cbranch_scc1 k_done
        s_waitcnt vmcnt(0)
        s_memrealtime s[74:75]
        s_waitcnt lgkmcnt(0)
        {"s_mov_b32 s72, s74" if DIAG == "end" else "s_mov_b32 s72, s70" if DIAG == "none" else ""}
        s_sub_u32 s76, s72, s70
        s_min_u32 s76, s76, 10000
        s_lshl_b32 s76, s76, 2
        s_add_u32 s76, s76, 5000
        dg_spin:
        s_memrealtime s[78:79]
        s_waitcnt lgkmcnt(0)
        s_sub_u32 s77, s78, s70
        s_cmp_lt_u32 s77, s76
        s_cbranch_scc1 dg_spin""")
    stamp_out()
    a(f"""k_done:
    s_endpgm
    c_idle:
    s_cmp_lg_u32 s2, 255
    s_cbranch_scc1 k_done2
    s_cmp_lg_u32 s3, 7
    s_cbranch_scc1 k_done2
    v_lshrrev_b32 v120, 5, v116
    v_lshlrev_b32 v120, 8, v120
    v_and_b32 v121, 31, v116
    v_add_u32 v120, v120, v121
    v_mul_u32_u24 v120, {FS}, v120
    v_add_u32 v120, {FL_B}, v120
    v_add_u32 v121, {512*FS}, v120
    v_add_u32 v122, {1024*FS}, v120
    v_add_u32 v123, {1536*FS}, v120
    """)
    flag_poll("c_pe", 4, 120)
    a(f"s_mov_b32 s6, {FL_E}")
    flag_set("s6", 2)
    a("s_branch k_done2")
    a(f"""
    b_slow:
    s_mul_i32 s6, s4, 9
    s_lshr_b32 s6, s6, 2
    s_bfe_u32 s7, s4, 0x10001
    s_add_u32 s8, s6, s7
    s_lshl_b32 s8, s8, 9
    s_add_u32 s8, s8, {72*512}
    s_lshl_b32 s9, s6, 9
    s_mul_i32 s13, s7, {1024 - 8}
    s_sub_u32 s9, s9, s13
    s_add_u32 s9, s9, {72*512 + 1024}
    s_mul_i32 s13, s4, 288
    s_add_u32 s13, s13, {WS_V}
    v_lshlrev_b32 v118, 4, v117
    v_lshrrev_b32 v120, 5, v116
    v_mul_u32_u24 v120, 9216, v120
    v_add_u32 v120, v120, v118
    v_mov_b32 v121, 0xff800000
    s_waitcnt lgkmcnt(0)
    """)
    def scores(c):
        a(f"""buffer_load_dwordx4 {vr(KF[0],4)}, v119, s[36:39], s14 offen sc1
        buffer_load_dwordx2 {vr(TF[0],2)}, v118, s[36:39], s15 offen sc1
        s_add_u32 s14, s14, {QK_T}
        s_add_u32 s15, s15, {QK_T}
        s_waitcnt vmcnt(0)
        v_mfma_f32_32x32x16_bf16 {vr(S[0],16)}, {vr(KF[0],4)}, {vr(Q,4)}, {c}
        v_mfma_f32_32x32x8_bf16 {vr(S[0],16)}, {vr(TF[0],2)}, {vr(QL,2)}, {vr(S[0],16)}
        s_nop 15""")
    a("s_mov_b32 s14, s8\ns_mov_b32 s15, s9\ns_mov_b32 s26, 0\nb_mx:")
    scores("0")
    for r in range(8): a(f"v_max3_f32 v121, v{S[0]+2*r}, v{S[0]+2*r+1}, v121")
    a(f"""
    s_add_u32 s26, s26, 1
    s_cmp_lt_u32 s26, 64
    s_cbranch_scc1 b_mx
    v_mov_b32 v122, v121
    s_nop 1
    v_permlane32_swap_b32 v121, v122
    s_nop 1
    v_max_f32 v121, v121, v122
    """)
    for i in range(16): a(f"v_sub_f32 v{NEG+i}, 0, v121\nv_mov_b32 v{O+i}, 0")
    a(f"""s_mov_b32 s14, s8
    s_mov_b32 s15, s9
    s_mov_b32 s26, 0
    b_sl:
    s_add_u32 s16, s13, {2*9216}
    s_mov_b64 exec, s[18:19]
    buffer_load_dwordx4 {vr(VF[0],4)}, v120, s[36:39], s13 offen sc1
    buffer_load_dwordx4 {vr(VF[0]+4,4)}, v120, s[36:39], s16 offen sc1
    s_mov_b64 exec, -1
    s_add_u32 s13, s13, {4*9216}""")
    scores(vr(NEG,16))
    ex(0, 0, 16); cv(0, 0, 8)
    a("s_nop 1")
    pv(0, 0); pv(0, 1)
    a("""s_add_u32 s26, s26, 1
    s_cmp_lt_u32 s26, 64
    s_cbranch_scc1 b_sl
    s_nop 15
    s_branch b_fin
    k_last:""")

def main():
    ref = open("concat_heads__mha_block__ssm_conv_s4d__prompt.s.ref").read().split("\n")
    head = [l for l in ref if l.startswith(";") and "@launch" not in l and "Override launch" not in l and "grid=ceil" not in l]
    head += ["; @launch grid=(256,1,1) block=(768,1,1) lds=163840"]
    a(f".text\n.globl {KN}\n.p2align 8\n.type {KN},@function\n{KN}:")
    if INSTR:
        for i in range(70, 90): a(f"s_mov_b32 s{i}, 0")
        a("s_memtime s[70:71]\ns_memrealtime s[86:87]")
    if DIAG: a("s_mov_b32 s72, 0\ns_memrealtime s[70:71]")
    phaseA(); phaseB(); phaseC()
    desc = f""".section .rodata,"a"
.p2align 6
.amdhsa_kernel {KN}
  .amdhsa_next_free_vgpr 168
  .amdhsa_next_free_sgpr 102
  .amdhsa_accum_offset 168
  .amdhsa_group_segment_fixed_size 0
  .amdhsa_kernarg_size 104
  .amdhsa_user_sgpr_count 2
  .amdhsa_user_sgpr_kernarg_segment_ptr 1
  .amdhsa_system_sgpr_workgroup_id_x 1
.end_amdhsa_kernel
"""
    out = "\n".join(head) + "\n.amdgcn_target \"amdgcn-amd-amdhsa--gfx950\"\n" + a.text() + desc
    path = sys.argv[1] if len(sys.argv) > 1 and sys.argv[1].endswith(".s") else "concat_heads__mha_block__ssm_conv_s4d__prompt.s"
    open(path, "w").write(out)
main()
```
